```python
import torch

def _softmax(x, axis=-1):
    return torch.softmax(x, dim=axis)

def _gelu(x):
    return torch.nn.functional.gelu(x, approximate='tanh')

def _silu(x):
    return torch.nn.functional.silu(x)

def _sigmoid(x):
    return torch.sigmoid(x)

def _layernorm(x, axis=-1, eps=1e-05):
    m = x.mean(dim=axis, keepdim=True)
    v = x.var(dim=axis, keepdim=True, unbiased=False)
    return (x - m) / torch.sqrt(v + eps)

def _scatter_add(tgt, idx, src, axis=0):
    return tgt.clone().index_add_(axis, idx, src)

def _segment_sum(src, seg, n):
    out = torch.zeros((n,) + src.shape[1:], dtype=src.dtype)
    return out.index_add_(0, seg, src)

def _pad(x, pw):
    flat = tuple((v for pair in reversed(pw) for v in pair))
    return torch.nn.functional.pad(x, flat)
kernel_name = 'standalone__neighborhood_nat__vision'

def setup_inputs():

    _w = lambda a: (lambda t: t.to(torch.bfloat16) if t.is_floating_point() else t)(torch.as_tensor(a))
    H = W = 224
    C = 192
    return {'x': _w((lambda *s: torch.randn(*s, dtype=torch.bfloat16) * 0.2)(1, H, W, C)), 'wqkv': _w((lambda *s: torch.randn(*s, dtype=torch.bfloat16) * 0.2)(C, 3 * C)), 'wo': _w((lambda *s: torch.randn(*s, dtype=torch.bfloat16) * 0.05)(C, C))}

def reference(x, wqkv, wo):
    B, H, W, C = x.shape
    ks, dil = (7, 2)
    qkv = x @ wqkv
    q, k, v = (qkv[..., :C].clone(), qkv[..., C:2 * C].clone(), qkv[..., 2 * C:].clone())
    half = (ks - 1) // 2 * dil
    ir = torch.arange(H)
    ic = torch.arange(W)
    off = torch.arange(ks) * dil
    r0 = torch.clip(ir - half, 0, H - 1 - (ks - 1) * dil)
    c0 = torch.clip(ic - half, 0, W - 1 - (ks - 1) * dil)
    ri = r0[:, None] + off[None, :]
    ci = c0[:, None] + off[None, :]
    nidx = (ri[:, None, :, None] * W + ci[None, :, None, :]).reshape(1, H * W * ks * ks, 1)
    kf = k.reshape(B, H * W, C)
    vf = v.reshape(B, H * W, C)
    kn = (lambda x, i, axis: torch.take_along_dim(x, i, dim=axis))(kf, nidx, 1).reshape(B, H * W, ks * ks, C)
    vn = (lambda x, i, axis: torch.take_along_dim(x, i, dim=axis))(vf, nidx, 1).reshape(B, H * W, ks * ks, C)
    qf = q.reshape(B, H * W, C)
    scale = C ** (-0.5)
    logits = torch.einsum('bnc,bnkc->bnk', qf, kn) * scale
    p = _softmax(logits, axis=-1)
    o = torch.einsum('bnk,bnkc->bnc', p, vn) @ wo
    return o.reshape(B, H, W, C)
```

```python
import sys, struct, math
OPT = dict(a.split('=') if '=' in a else (a, '1') for a in sys.argv[1:])
OUTF = OPT.get('out', 'standalone__neighborhood_nat__vision.s')
TS = 'ts' in OPT
L = []
def e(s): L.append(s)

X_BYTES = 19267584
WS_BYTES = 268435456
XB = 10240
ROW = 7680
HALF = 36864
SCALE = struct.unpack('<I', struct.pack('<f', (192 ** -0.5) * math.log2(math.e)))[0]

hdr = open('standalone__neighborhood_nat__vision.s.ref').read().split('\n')
for ln in hdr:
    if ln.startswith('; @launch'): break
    e(ln)
e('; @launch kernel=prep_kernel grid=(144,1,1) block=(64,1,1) lds=0')
e('; @launch kernel=main_kernel grid=(256,1,1) block=(512,1,1) lds=163840')
e('.amdgcn_target "amdgcn-amd-amdhsa--gfx950"')
e('.text')

def srd(d, b, n):
    e(f'  s_mov_b32 s{d}, s{b}'); e(f'  s_and_b32 s{d+1}, s{b+1}, 0xffff')
    e(f'  s_mov_b32 s{d+2}, {n}'); e(f'  s_mov_b32 s{d+3}, 0x00020000')
def V(a, n=4): return f'v[{a}:{a+n-1}]'
def mfma(d, a, b, c):
    cs = '0' if c is None else V(c)
    return f'  v_mfma_f32_16x16x32_bf16 {V(d)}, {V(a)}, {V(b)}, {cs}'

e('.globl prep_kernel'); e('.p2align 8'); e('.type prep_kernel,@function'); e('prep_kernel:')
e('  s_cmp_ge_u32 s2, 144'); e('  s_cbranch_scc1 PR_done')
e('  s_load_dwordx4 s[4:7], s[0:1], 8')
e('  s_load_dwordx2 s[8:9], s[0:1], 40')
e('  s_cmp_ge_u32 s2, 72'); e('  s_cselect_b32 s24, 1, 0')
e('  s_mul_i32 s25, s24, 72'); e('  s_sub_u32 s25, s2, s25')
e('  s_mul_hi_u32 s26, s25, 0x15555556')
e('  s_mul_i32 s27, s26, 12'); e('  s_sub_u32 s27, s25, s27')
e('  s_and_b32 s28, s27, 1')
e('  s_lshr_b32 s27, s27, 1')
e('  v_and_b32 v1, 15, v0')
e('  v_lshrrev_b32 v2, 4, v0')
e('  v_lshrrev_b32 v3, 2, v1')
e('  v_and_b32 v4, 3, v1')
e('  s_lshl_b32 s29, s26, 5'); e('  s_lshl_b32 s30, s28, 2'); e('  s_add_u32 s29, s29, s30')
e('  v_lshl_add_u32 v5, v3, 3, v4'); e('  v_add_u32 v5, s29, v5')
e('  s_waitcnt lgkmcnt(0)')
srd(12, 4, 192*576*2); srd(16, 6, 192*192*2); srd(20, 8, 147456)
e('  s_cmp_eq_u32 s24, 1'); e('  s_cbranch_scc1 PR_n')
e('  s_lshl_b32 s29, s27, 5')
e('  v_lshl_add_u32 v6, v3, 3, v4'); e('  v_add_u32 v6, s29, v6')
e('  v_mul_u32_u24 v6, 1152, v6'); e('  v_lshl_add_u32 v6, v2, 4, v6')
e('  v_add_u32 v7, 4608, v6')
e('  v_mul_u32_u24 v8, 1152, v5'); e('  v_lshl_add_u32 v8, v2, 4, v8')
for kk in range(6):
    e(f'  buffer_load_dwordx4 {V(64+4*kk)}, v8, s[12:15], 0 offen offset:{384+64*kk}')
e(f'  s_mov_b32 s31, {SCALE}')
e('  s_sub_u32 s25, 71, s25'); e('  s_lshl_b32 s25, s25, 10')
e('  s_branch PR_go')
e('PR_n:')
e('  s_lshr_b32 s29, s27, 1'); e('  s_lshl_b32 s29, s29, 3')
e('  s_and_b32 s30, s27, 1'); e('  s_lshl_b32 s30, s30, 1')
e('  s_add_u32 s29, s29, s30'); e('  s_lshl_b32 s29, s29, 3')
e('  v_lshrrev_b32 v6, 1, v3'); e('  v_lshlrev_b32 v6, 5, v6')
e('  v_and_b32 v7, 1, v3'); e('  v_lshl_add_u32 v6, v7, 2, v6')
e('  v_add3_u32 v6, v6, v4, s29')
e('  v_mul_u32_u24 v6, 1152, v6'); e('  v_lshl_add_u32 v6, v2, 4, v6')
e('  v_add_u32 v6, 768, v6')
e('  v_add_u32 v7, 9216, v6')
e('  v_mul_u32_u24 v8, 3072, v2'); e('  v_lshl_add_u32 v8, v5, 1, v8')
for kk in range(6):
    e(f'  s_mov_b32 s32, {kk*32*384}')
    for jj in range(8):
        e(f'  buffer_load_ushort v{104+8*kk+jj}, v8, s[16:19], s32 offen offset:{jj*384}')
e('  s_mov_b32 s31, 1.0')
e('  s_lshl_b32 s25, s25, 10'); e('  s_add_u32 s25, s25, 73728')
e('PR_go:')
for kk in range(6):
    e(f'  buffer_load_dwordx4 {V(16+4*kk)}, v6, s[12:15], 0 offen offset:{64*kk}')
    e(f'  buffer_load_dwordx4 {V(40+4*kk)}, v7, s[12:15], 0 offen offset:{64*kk}')
e('  s_waitcnt vmcnt(0)')
e('  s_cmp_eq_u32 s24, 0'); e('  s_cbranch_scc1 PR_mm')
for r in range(24): e(f'  v_lshl_or_b32 v{64+r}, v{105+2*r}, 16, v{104+2*r}')
e('  s_nop 1')
e('PR_mm:')
for kk in range(6):
    e(mfma(88, 16+4*kk, 64+4*kk, None if kk == 0 else 88))
    e(mfma(92, 40+4*kk, 64+4*kk, None if kk == 0 else 92))
e('  s_nop 15')
for r in range(8): e(f'  v_mul_f32 v{88+r}, s31, v{88+r}')
for r in range(4): e(f'  v_cvt_pk_bf16_f32 v{96+r}, v{88+2*r}, v{89+2*r}')
e('  v_lshlrev_b32 v9, 4, v0')
e('  buffer_store_dwordx4 v[96:99], v9, s[20:23], s25 offen')
e('PR_done:')
e('  s_endpgm')

vL0, vL1 = 1, 2
vQ = (3, 4); vO = (5, 6)
vSe, vSo = 7, 8
vP = (9, 10, 11, 12)
vD = (13, 14)
vT = list(range(15, 24))
SACC = (24, 56)
QP = 88
XQ = 136
ACC = 184
ABUF = 216; NB = 10
PREG = (88, 104)
YB = ([88, 92, 96, 100, 120, 124], [104, 108, 112, 116, 128, 132])
YACC = ([136+4*i for i in range(12)] + [184], [24+4*i for i in range(13)])
ONES = 188
RINV = (192, 193)
sW, sU, sH, sPR, sPC, sTR, sTC, sKR, sKC, sXB = range(24, 34)
sA2, sR0, sR1, sR9, sD0, sD1, sD9, sC0, sSHR, sSHC = range(34, 44)
sM0X = 44
sM0X1 = 45
sT = list(range(46, 60))
sTS = 60

e('.globl main_kernel'); e('.p2align 8'); e('.type main_kernel,@function'); e('main_kernel:')
nts = [0]
def ts():
    if TS:
        e(f'  s_memtime s[{sTS+2*nts[0]}:{sTS+2*nts[0]+1}]'); nts[0] += 1
e('  s_cmp_ge_u32 s2, 256'); e('  s_cbranch_scc1 MK_done')
ts()
e('  s_load_dwordx2 s[4:5], s[0:1], 0')
e('  s_load_dwordx2 s[6:7], s[0:1], 24')
e('  s_load_dwordx2 s[8:9], s[0:1], 40')
e('  v_lshrrev_b32 v15, 6, v0')
e('  v_and_b32 v0, 63, v0')
e(f'  v_readfirstlane_b32 s{sW}, v15')
e(f'  v_lshlrev_b32 v{vL0}, 4, v0')
e(f'  v_add_u32 v{vL1}, {HALF}, v{vL0}')
e(f'  s_and_b32 s{sT[0]}, s2, 7')
e(f'  s_lshr_b32 s{sT[1]}, s2, 3')
e(f'  s_lshr_b32 s{sPR}, s{sT[0]}, 2')
e(f'  s_bfe_u32 s{sPC}, s{sT[0]}, 0x10001')
e(f'  s_and_b32 s{sTR}, s{sT[0]}, 1'); e(f'  s_lshl_b32 s{sTR}, s{sTR}, 2')
e(f'  s_lshr_b32 s{sT[2]}, s{sT[1]}, 3'); e(f'  s_add_u32 s{sTR}, s{sTR}, s{sT[2]}')
e(f'  s_and_b32 s{sTC}, s{sT[1]}, 7')
e(f'  s_lshr_b32 s{sU}, s{sW}, 1'); e(f'  s_and_b32 s{sH}, s{sW}, 1')
for (sP, sTt, sSH, sK) in ((sPR, sTR, sSHR, sKR), (sPC, sTC, sSHC, sKC)):
    e(f'  s_mul_i32 s{sSH}, s{sTt}, 14')
    e(f'  s_mul_i32 s{sT[2]}, s{sP}, 6')
    e(f'  s_add_i32 s{sSH}, s{sSH}, s{sT[2]}'); e(f'  s_add_i32 s{sSH}, s{sSH}, -6')
    e(f'  s_max_i32 s{sK}, s{sSH}, 0'); e(f'  s_min_i32 s{sK}, s{sK}, 92')
e('  s_waitcnt lgkmcnt(0)')
srd(20, 8, 147456)
e(f'  s_lshl_b32 s{sT[3]}, s{sW}, 10')
def dma_lin(ldsoff, goff):
    e(f'  s_add_u32 m0, s{sT[3]}, {ldsoff}')
    e(f'  s_add_u32 s{sT[4]}, s{sT[3]}, {goff}')
    e(f'  buffer_load_dwordx4 v{vL0}, s[20:23], s{sT[4]} offen lds')
for i in reversed(range(9)):
    dma_lin(i*8192, i*8192)
srd(12, 4, X_BYTES)
vn, vg, vqr, vqc = 15, 16, 17, 18
e(f'  v_and_b32 v{vn}, 15, v0'); e(f'  v_lshrrev_b32 v{vg}, 4, v0')
e(f'  v_lshrrev_b32 v{vqr}, 3, v{vn}'); e(f'  v_and_b32 v{vqc}, 7, v{vn}')
e(f'  s_mul_i32 s{sT[5]}, s{sH}, 7'); e(f'  s_add_i32 s{sT[5]}, s{sT[5]}, s{sSHC}')
e(f'  v_min_u32 v19, 6, v{vqc}'); e(f'  v_add_u32 v19, s{sT[5]}, v19')
e(f'  s_movk_i32 s{sT[6]}, 105')
e(f'  v_med3_i32 v20, v19, 0, s{sT[6]}')
e(f'  s_add_u32 s{sT[7]}, s{sPC}, 6')
e(f'  v_add3_u32 v19, v19, v20, s{sT[7]}')
e(f'  v_subrev_u32 v20, s{sKC}, v20')
e(f'  v_mul_u32_u24 v19, 384, v19'); e(f'  v_lshl_add_u32 v19, v{vg}, 4, v19')
e(f'  s_lshl_b32 s{sT[8]}, s{sU}, 2')
e(f'  s_add_u32 s{sT[7]}, s{sPR}, 6')
e(f'  s_mov_b32 s{sT[9]}, 86016')
for t in range(2):
    e(f'  v_add_u32 v23, s{sT[8]}, v{vqr}')
    if t: e(f'  v_add_u32 v23, 2, v23')
    e(f'  v_min_u32 v{vQ[t]}, 13, v23')
    e(f'  v_add_u32 v{vQ[t]}, s{sSHR}, v{vQ[t]}')
    e(f'  v_med3_i32 v{21+t}, v{vQ[t]}, 0, s{sT[6]}')
    e(f'  v_add3_u32 v{vQ[t]}, v{vQ[t]}, v{21+t}, s{sT[7]}')
    e(f'  v_subrev_u32 v{21+t}, s{sKR}, v{21+t}')
    e(f'  v_mad_u32_u24 v{vQ[t]}, v{vQ[t]}, s{sT[9]}, v19')
    for s in range(6):
        e(f'  buffer_load_dwordx4 {V(XQ+24*t+4*s)}, v{vQ[t]}, s[12:15], 0 offen offset:{64*s}')
    e(f'  v_cmp_gt_u32 vcc, 14, v23')
    e(f'  v_cmp_gt_u32 s[{sT[10]}:{sT[11]}], 7, v{vqc}')
    e(f'  s_and_b64 vcc, vcc, s[{sT[10]}:{sT[11]}]')
    e(f'  v_mov_b32 v23, 0x80000000')
    e(f'  s_nop 0')
    e(f'  v_cndmask_b32 v{vO[t]}, v23, v{vQ[t]}, vcc')
assert sT[10] % 2 == 0
e(f'  s_lshl_b32 s{sT[5]}, s{sKR}, 1'); e(f'  s_add_u32 s{sT[5]}, s{sT[5]}, s{sPR}')
e(f'  s_mul_i32 s{sT[5]}, s{sT[5]}, 224')
e(f'  s_lshl_b32 s{sT[7]}, s{sKC}, 1'); e(f'  s_add_u32 s{sT[5]}, s{sT[5]}, s{sT[7]}'); e(f'  s_add_u32 s{sT[5]}, s{sT[5]}, s{sPC}')
e(f'  s_mul_i32 s{sXB}, s{sT[5]}, 384')
e(f'  s_lshl_b32 s{sT[5]}, s{sW}, 1')
e(f'  s_add_u32 s{sT[7]}, s{sT[5]}, 1'); e(f'  s_min_u32 s{sT[7]}, s{sT[7]}, 14')
e(f'  s_lshl_b32 s{sM0X}, s{sT[5]}, 10'); e(f'  s_add_u32 s{sM0X}, s{sM0X}, {XB}')
e(f'  s_lshl_b32 s{sM0X1}, s{sT[7]}, 10'); e(f'  s_add_u32 s{sM0X1}, s{sM0X1}, {XB}')
for b in range(960): assert (b * 2731) >> 16 == b // 24
for j, sk in enumerate((sT[5], sT[7])):
    d = vD[j]
    e(f'  s_lshl_b32 s{sT[8]}, s{sk}, 6')
    e(f'  v_add_u32 v23, s{sT[8]}, v0')
    e(f'  v_mul_u32_u24 v{d}, 2731, v23'); e(f'  v_lshrrev_b32 v{d}, 16, v{d}')
    e(f'  v_mul_u32_u24 v19, 24, v{d}'); e(f'  v_sub_u32 v23, v23, v19')
    e(f'  v_cmp_le_u32 vcc, 20, v{d}')
    e(f'  v_subrev_u32 v19, 20, v{d}')
    e(f'  s_nop 0')
    e(f'  v_cndmask_b32 v{d}, v{d}, v19, vcc')
    e(f'  v_bfe_u32 v19, v{d}, 1, 3')
    e(f'  v_xor_b32 v23, v23, v19')
    e(f'  v_mul_u32_u24 v{d}, 768, v{d}')
    e(f'  v_lshl_add_u32 v{d}, v23, 4, v{d}')
    e(f'  v_add_u32 v19, 172032, v{d}')
    e(f'  v_cndmask_b32 v{d}, v{d}, v19, vcc')
def dma_x(G):
    out = []
    out.append(f'  s_add_u32 s{sT[4]}, s{sXB}, {G*344064}')
    for j, sm in enumerate((sM0X, sM0X1)):
        out.append(f'  s_add_u32 m0, s{sm}, {G*15360}')
        out.append(f'  s_nop 0')
        out.append(f'  buffer_load_dwordx4 v{vD[j]}, s[12:15], s{sT[4]} offen lds')
    return out
for G in (9, 8, 7, 6, 5):
    for l in dma_x(G): e(l)
srd(16, 6, X_BYTES)
def srel(dst, add):
    e(f'  s_lshl_b32 s{dst}, s{sU}, 2'); e(f'  s_add_u32 s{dst}, s{dst}, {add}'); e(f'  s_min_u32 s{dst}, s{dst}, 13')
    e(f'  s_add_i32 s{dst}, s{dst}, s{sSHR}'); e(f'  s_max_i32 s{dst}, s{dst}, 0'); e(f'  s_min_i32 s{dst}, s{dst}, 105')
    e(f'  s_sub_u32 s{dst}, s{dst}, s{sKR}')
srel(sT[5], 0); srel(sA2, 2)
e(f'  s_sub_u32 s{sT[5]}, s{sA2}, s{sT[5]}')
e(f'  s_cmp_eq_u32 s{sT[5]}, 2'); e(f'  s_cselect_b32 s{sD0}, -2, 6')
e(f'  s_cmp_ge_u32 s{sA2}, 1'); e(f'  s_cselect_b32 s{sD1}, -1, 7')
e(f'  s_cmp_le_u32 s{sA2}, 12'); e(f'  s_cselect_b32 s{sD9}, 7, -1')
for (sr, sd) in ((sR0, sD0), (sR1, sD1), (sR9, sD9)):
    e(f'  s_add_i32 s{sr}, s{sA2}, s{sd}'); e(f'  s_mul_i32 s{sd}, s{sd}, {ROW}')
e(f'  s_mul_i32 s{sT[5]}, s{sH}, 7'); e(f'  s_add_i32 s{sT[5]}, s{sT[5]}, s{sSHC}')
e(f'  s_max_i32 s{sT[5]}, s{sT[5]}, 0'); e(f'  s_min_i32 s{sT[5]}, s{sT[5]}, 105'); e(f'  s_sub_u32 s{sT[5]}, s{sT[5]}, s{sKC}')
e(f'  s_cmp_ge_u32 s{sT[5]}, 4'); e(f'  s_cselect_b32 s{sC0}, 4, 0')
e(f'  s_mul_i32 s{sT[5]}, s{sA2}, {ROW}'); e(f'  s_add_u32 s{sT[5]}, s{sT[5]}, {XB}')
e(f'  v_add_u32 v19, s{sC0}, v{vn}')
e(f'  v_bfe_u32 v23, v19, 1, 3'); e(f'  v_xor_b32 v23, v23, v{vg}')
e(f'  v_mul_u32_u24 v19, 384, v19'); e(f'  v_lshl_add_u32 v19, v23, 4, v19')
e(f'  v_add_u32 v{vSe}, s{sT[5]}, v19'); e(f'  v_xor_b32 v{vSo}, 64, v{vSe}')
e(f'  v_lshrrev_b32 v19, 2, v{vn}'); e(f'  v_lshl_add_u32 v19, v{vg}, 2, v19'); e(f'  v_add_u32 v19, s{sC0}, v19')
e(f'  v_bfe_u32 v23, v19, 1, 3')
e(f'  v_and_b32 v{vP[1]}, 2, v{vn}'); e(f'  v_lshlrev_b32 v{vP[1]}, 1, v{vP[1]}'); e(f'  v_xor_b32 v23, v23, v{vP[1]}')
e(f'  v_mul_u32_u24 v19, 384, v19'); e(f'  v_lshl_add_u32 v19, v23, 4, v19')
e(f'  v_and_b32 v23, 1, v{vn}'); e(f'  v_lshl_add_u32 v19, v23, 3, v19')
e(f'  v_add_u32 v{vP[0]}, s{sT[5]}, v19')
for k in range(1, 4): e(f'  v_xor_b32 v{vP[k]}, {16*k}, v{vP[0]}')
e('  v_mov_b32 v220, 0xff800000')
e(f'  v_lshl_add_u32 v19, v{vg}, 2, s{sC0}'); e('  v_sub_u32 v19, v19, v20')
for i in range(4):
    e(f'  v_add_u32 v23, {i}, v19'); e('  v_cmp_gt_u32 vcc, 7, v23'); e('  s_nop 1')
    e(f'  v_cndmask_b32 v{216+i}, v220, 0, vcc')
for t in range(2):
    for jj in range(8):
        slot = jj + 2*t
        if slot == 0: e(f'  v_sub_u32 v23, s{sR0}, v{21+t}')
        elif slot == 1: e(f'  v_sub_u32 v23, s{sR1}, v{21+t}')
        elif slot == 9: e(f'  v_sub_u32 v23, s{sR9}, v{21+t}')
        else:
            e(f'  v_sub_u32 v23, s{sA2}, v{21+t}')
            if slot > 2: e(f'  v_add_u32 v23, {slot-2}, v23')
        e('  v_cmp_gt_u32 vcc, 7, v23'); e('  s_nop 1')
        for i in range(4):
            e(f'  v_cndmask_b32 v{SACC[t]+4*jj+i}, v220, v{216+i}, vcc')

stream = []
frags = []
def add_frag(reads, gate): frags.append(dict(reads=reads, gate=gate, uses=0)); return len(frags) - 1
def use(fid, fn): frags[fid]['uses'] += 1; stream.append(('mfma', fn, fid))
def raw(*lines):
    for l in lines: stream.append(('raw', l))
def need(fid): stream.append(('need', fid))
def gate(name): stream.append(('gate', name))
def lin_read(addr):
    if addr < HALF: return [f'  ds_read_b128 {{d4}}, v{vL0} offset:{addr}']
    return [f'  ds_read_b128 {{d4}}, v{vL1} offset:{addr-HALF}']
def tsr():
    if TS:
        raw(f'  s_memtime s[{sTS+2*nts[0]}:{sTS+2*nts[0]+1}]'); stream.append(('smem',)); nts[0] += 1

def proj(B, frag_addr, gate_of, post, hooks):
    pend = []
    for s in range(6):
        for ks in range(6):
            for hh in range(2):
                f = 12*s + 2*ks + hh
                fid = add_frag(lin_read(frag_addr(f)), gate_of(f))
                if f in hooks.get('pre', {}): hooks['pre'][f](fid)
                for t in range(2):
                    acc = ACC + 16*(s % 2) + 8*t + 4*hh
                    use(fid, (lambda buf, acc=acc, t=t, ks=ks: mfma(acc, buf, B(t, ks), None if ks == 0 else acc)))
                if pend and (2*ks + hh) >= 2:
                    n = 4 if len(pend) > 16 else 2
                    for l in pend[:n]: raw(l)
                    pend = pend[n:]
        assert not pend, pend
        pend = post(s)
    raw('  s_nop 7')
    for l in pend: raw(l)

tsr()
raw('  s_waitcnt vmcnt(10)', '  s_barrier'); gate('G0')
tsr()
def p1_post(s):
    out = []
    for t in range(2):
        acc = ACC + 16*(s % 2) + 8*t
        for r in range(4): out.append(f'  v_cvt_pk_bf16_f32 v{QP+24*t+4*s+r}, v{acc+2*r}, v{acc+2*r+1}')
    return out
def hook_x(groups):
    def h(fid):
        need(fid); raw('  s_barrier')
        for G in groups: raw(*dma_x(G))
    return h
proj(lambda t, ks: XQ+24*t+4*ks, lambda f: (71-f)*1024, lambda f: 'G0', p1_post,
     dict(pre={17: hook_x((4, 3)), 31: hook_x((2,)), 47: hook_x((1,)), 61: hook_x((0,))}))
tsr()
raw('  s_waitcnt vmcnt(2)', '  s_barrier'); gate('A')
def dma_n(i):
    return [f'  s_add_u32 m0, s{sT[3]}, {i*8192}', f'  s_add_u32 s{sT[4]}, s{sT[3]}, {73728+i*8192}',
            f'  buffer_load_dwordx4 v{vL0}, s[20:23], s{sT[4]} offen lds']
raw(*dma_n(0))
sb = {9: (15, 16), 1: (17, 18), 0: (19, 20)}
pre = []
for sl, sd in ((9, sD9), (1, sD1), (0, sD0)):
    pre.append(f'  v_add_u32 v{sb[sl][0]}, s{sd}, v{vSe}'); pre.append(f'  v_add_u32 v{sb[sl][1]}, s{sd}, v{vSo}')
for l in pre: e(l)
for slot in range(9, -1, -1):
    if slot == 3:
        raw('  s_waitcnt vmcnt(1)', '  s_barrier'); gate('B')
    for s in range(6):
        if slot in sb: base, off = sb[slot][s % 2], 128*(s//2)
        else: base, off = (vSe, vSo)[s % 2], (slot-2)*ROW + 128*(s//2)
        fid = add_frag([f'  ds_read_b128 {{d4}}, v{base} offset:{off}'], 'A' if slot > 3 else 'B')
        for t in range(2):
            jj = slot - 2*t
            if 0 <= jj < 8:
                acc = SACC[t] + 4*jj
                use(fid, (lambda buf, acc=acc, t=t, s=s: mfma(acc, buf, QP+24*t+4*s, acc)))
tsr()
for k in range(4):
    raw(f'  v_add_u32 v{15+k}, s{sD0}, v{vP[k]}'); raw(f'  v_add_u32 v{19+k}, s{sD1}, v{vP[k]}')
gate('PVA')
vm = (V and 120, 124)
vm = (ACC+8, ACC+12); vt = (ACC+9, ACC+13); vm2 = (ACC+10, ACC+14)
raw('  s_nop 7')
ch = [[], []]
for t in range(2):
    R = SACC[t]
    c = ch[t]
    c.append(f'  v_max3_f32 v{vm[t]}, v{R}, v{R+1}, v{R+2}')
    c.append(f'  v_max3_f32 v{vm2[t]}, v{R+3}, v{R+4}, v{R+5}')
    k = 6
    while k < 30:
        c.append(f'  v_max3_f32 v{vm[t]}, v{vm[t]}, v{R+k}, v{R+k+1}')
        c.append(f'  v_max3_f32 v{vm2[t]}, v{vm2[t]}, v{R+k+2}, v{R+k+3}'); k += 4
    c.append(f'  v_max3_f32 v{vm[t]}, v{vm[t]}, v{R+30}, v{R+31}')
    c.append(f'  v_max_f32 v{vm[t]}, v{vm[t]}, v{vm2[t]}')
for a, b in zip(ch[1], ch[0]): raw(a, b)
for sw in ('v_permlane32_swap_b32', 'v_permlane16_swap_b32'):
    for t in range(2): raw(f'  v_mov_b32 v{vt[t]}, v{vm[t]}')
    raw('  s_nop 1')
    for t in range(2): raw(f'  {sw} v{vm[t]}, v{vt[t]}')
    raw('  s_nop 1')
    for t in range(2): raw(f'  v_max_f32 v{vm[t]}, v{vm[t]}, v{vt[t]}')
for r in range(4): raw(f'  v_mov_b32 v{ONES+r}, 0x3f803f80')
for t in range(2):
    R = SACC[t]
    for k in range(0, 32, 4):
        for i in range(4): raw(f'  v_sub_f32 v{R+k+i}, v{R+k+i}, v{vm[t]}')
        for i in range(4): raw(f'  v_exp_f32 v{R+k+i}, v{R+k+i}')
        if k >= 4:
            for i in range(2): raw(f'  v_cvt_pk_bf16_f32 v{PREG[t]+(k-4)//2+i}, v{R+k-4+2*i}, v{R+k-4+2*i+1}')
    raw('  s_nop 0')
    for i in range(2): raw(f'  v_cvt_pk_bf16_f32 v{PREG[t]+14+i}, v{R+28+2*i}, v{R+28+2*i+1}')
raw('  s_nop 1')
tsr()
lastf = None
for st in range(5):
    if st == 3:
        need(lastf); raw('  s_waitcnt vmcnt(0)', '  s_barrier'); gate('C')
        for i in range(1, 5): raw(*dma_n(i))
    if st == 1:
        need(lastf)
        for k in range(4): raw(f'  v_add_u32 v{15+k}, s{sD9}, v{vP[k]}')
        gate('PV9')
    for ct in range(13):
        tl = [t for t in range(2) if 0 <= st - t < 4]
        if ct == 12:
            for t in tl:
                acc = YACC[t][12]
                raw(mfma(acc, ONES, PREG[t]+4*(st-t), None if st == t else acc))
            continue
        b_, e_ = ct // 4, ct % 4
        rd = []
        for hf in range(2):
            slot = 2*st + hf
            if slot == 0: base, off = 15+e_, 128*b_
            elif slot == 1: base, off = 19+e_, 128*b_
            elif slot == 9: base, off = 15+e_, 128*b_
            else: base, off = vP[e_], (slot-2)*ROW + 128*b_
            rd.append(f'  ds_read_b64_tr_b16 {{d{"lo" if hf == 0 else "hi"}}}, v{base} offset:{off}')
        fid = add_frag(rd, 'PV9' if st == 4 else 'PVA'); lastf = fid
        for t in tl:
            acc = YACC[t][ct]
            use(fid, (lambda buf, acc=acc, t=t, st=st: mfma(acc, buf, PREG[t]+4*(st-t), None if st == t else acc)))
tsr()
raw('  s_waitcnt vmcnt(0)', '  s_barrier'); gate('D')
for i in range(5, 9): raw(*dma_n(i))
raw('  s_nop 7')
RI = (22, 23)
for t in range(2): raw(f'  v_rcp_f32 v{RI[t]}, v{YACC[t][12]}')
for t in range(2):
    for ks in range(6):
        for hf in range(2):
            y = YACC[t][2*ks+hf]
            for i in range(2): raw(f'  v_cvt_pk_bf16_f32 v{YB[t][ks]+2*hf+i}, v{y+2*i}, v{y+2*i+1}')
raw('  s_nop 1')
tsr()
OUTR = 24
def p4_post(s):
    out = []
    for t in range(2):
        acc = ACC + 16*(s % 2) + 8*t
        o = OUTR + 8*(s % 2) + 4*t
        for r in range(8): out.append(f'  v_mul_f32 v{acc+r}, v{acc+r}, v{RI[t]}')
        for r in range(4): out.append(f'  v_cvt_pk_bf16_f32 v{o+r}, v{acc+2*r}, v{acc+2*r+1}')
        out.append(f'  buffer_store_dwordx4 {V(o)}, v{vO[t]}, s[16:19], 0 offen offset:{64*s}')
    return out
def hookE(fid):
    raw('  s_waitcnt vmcnt(4)', '  s_barrier'); gate('E')
proj(lambda t, ks: YB[t][ks], lambda f: f*1024, lambda f: 'C' if f < 8 else ('D' if f < 40 else 'E'), p4_post,
     dict(pre={36: hookE}))
tsr()

gates = set(); nxt = 0; done_uses = [0]*len(frags)
ops = []
landed = -1
def buf_of(f): return ABUF + 4*(f % NB)
def try_issue(budget):
    global nxt
    while budget > 0 and nxt < len(frags):
        fr = frags[nxt]
        if fr['gate'] not in gates: break
        if nxt >= NB and done_uses[nxt-NB] < frags[nxt-NB]['uses']: break
        if len(ops) + len(fr['reads']) > 15: break
        b = buf_of(nxt)
        for r in fr['reads']:
            e(r.format(d4=V(b), dlo=V(b, 2), dhi=V(b+2, 2))); ops.append(nxt)
        nxt += 1; budget -= 1
def wait_for(f):
    global landed, ops
    if f <= landed: return
    while nxt <= f:
        n0 = nxt; try_issue(1)
        if nxt == n0:
            raise RuntimeError(f'cannot issue frag {nxt}')
    tgt = f
    if f + 1 < nxt and sum(1 for o in ops if o > f + 1) >= 4: tgt = f + 1
    n = sum(1 for o in ops if o > tgt)
    e(f'  s_waitcnt lgkmcnt({n})')
    ops = [o for o in ops if o > tgt]; landed = tgt
for ent in stream:
    k = ent[0]
    if k == 'raw':
        e(ent[1])
    elif k == 'smem':
        e('  s_waitcnt lgkmcnt(0)'); ops = []; landed = nxt - 1
    elif k == 'gate':
        gates.add(ent[1]); try_issue(NB)
    elif k == 'need':
        wait_for(ent[1])
    elif k == 'mfma':
        wait_for(ent[2])
        e(ent[1](buf_of(ent[2]))); done_uses[ent[2]] += 1
        try_issue(2)
if TS:
    e('  s_waitcnt vmcnt(0)')
    e(f'  s_memtime s[{sTS+2*nts[0]}:{sTS+2*nts[0]+1}]'); nts[0] += 1
    e('  s_waitcnt lgkmcnt(0)')
    e(f'  s_mov_b32 s22, {WS_BYTES}')
    e(f'  s_lshl_b32 s{sT[0]}, s2, 3'); e(f'  s_add_u32 s{sT[0]}, s{sT[0]}, s{sW}'); e(f'  s_lshl_b32 s{sT[0]}, s{sT[0]}, 6')
    e(f'  s_add_u32 s{sT[0]}, s{sT[0]}, 0x100000')
    e('  v_mov_b32 v1, 0')
    for i in range(nts[0]):
        if i == 0: e(f'  v_mov_b32 v2, s{sTS}')
        else:
            e(f'  s_sub_u32 s{sT[1]}, s{sTS+2*i}, s{sTS}'); e(f'  v_mov_b32 v2, s{sT[1]}')
        e(f'  buffer_store_dword v2, v1, s[20:23], s{sT[0]} offen offset:{4*i}')
e('MK_done:')
e('  s_endpgm')

e('.section .rodata,"a"')
for k, nv in (('prep_kernel', 152), ('main_kernel', 256)):
    e('.p2align 6'); e(f'.amdhsa_kernel {k}')
    e(f'  .amdhsa_next_free_vgpr {nv}'); e('  .amdhsa_next_free_sgpr 102'); e(f'  .amdhsa_accum_offset {nv}')
    e('  .amdhsa_group_segment_fixed_size 0'); e('  .amdhsa_kernarg_size 48'); e('  .amdhsa_user_sgpr_count 2')
    e('  .amdhsa_user_sgpr_kernarg_segment_ptr 1'); e('  .amdhsa_system_sgpr_workgroup_id_x 1')
    e('.end_amdhsa_kernel')
open(OUTF, 'w').write('\n'.join(L) + '\n')
```

```python
import sys, struct, math
OPT = dict(a.split('=') if '=' in a else (a, '1') for a in sys.argv[1:])
OUTF = OPT.get('out', 'standalone__neighborhood_nat__vision.s')
TS = 'ts' in OPT
L = []
def e(s): L.append(s)

X_BYTES = 19267584
WS_BYTES = 268435456
XB = 10240
ROW = 7680
HALF = 36864
SCALE = struct.unpack('<I', struct.pack('<f', (192 ** -0.5) * math.log2(math.e)))[0]

hdr = open('standalone__neighborhood_nat__vision.s.ref').read().split('\n')
for ln in hdr:
    if ln.startswith('; @launch'): break
    e(ln)
e('; @launch kernel=prep_kernel grid=(144,1,1) block=(64,1,1) lds=0')
e('; @launch kernel=main_kernel grid=(256,1,1) block=(512,1,1) lds=163840')
e('.amdgcn_target "amdgcn-amd-amdhsa--gfx950"')
e('.text')

def srd(d, b, n):
    e(f'  s_mov_b32 s{d}, s{b}'); e(f'  s_and_b32 s{d+1}, s{b+1}, 0xffff')
    e(f'  s_mov_b32 s{d+2}, {n}'); e(f'  s_mov_b32 s{d+3}, 0x00020000')
def V(a, n=4): return f'v[{a}:{a+n-1}]'
def mfma(d, a, b, c):
    cs = '0' if c is None else V(c)
    return f'  v_mfma_f32_16x16x32_bf16 {V(d)}, {V(a)}, {V(b)}, {cs}'

e('.globl prep_kernel'); e('.p2align 8'); e('.type prep_kernel,@function'); e('prep_kernel:')
e('  s_cmp_ge_u32 s2, 144'); e('  s_cbranch_scc1 PR_done')
e('  s_load_dwordx4 s[4:7], s[0:1], 8')
e('  s_load_dwordx2 s[8:9], s[0:1], 40')
e('  s_cmp_ge_u32 s2, 72'); e('  s_cselect_b32 s24, 1, 0')
e('  s_mul_i32 s25, s24, 72'); e('  s_sub_u32 s25, s2, s25')
e('  s_mul_hi_u32 s26, s25, 0x15555556')
e('  s_mul_i32 s27, s26, 12'); e('  s_sub_u32 s27, s25, s27')
e('  s_and_b32 s28, s27, 1')
e('  s_lshr_b32 s27, s27, 1')
e('  v_and_b32 v1, 15, v0')
e('  v_lshrrev_b32 v2, 4, v0')
e('  v_lshrrev_b32 v3, 2, v1')
e('  v_and_b32 v4, 3, v1')
e('  s_lshl_b32 s29, s26, 5'); e('  s_lshl_b32 s30, s28, 2'); e('  s_add_u32 s29, s29, s30')
e('  v_lshl_add_u32 v5, v3, 3, v4'); e('  v_add_u32 v5, s29, v5')
e('  s_waitcnt lgkmcnt(0)')
srd(12, 4, 192*576*2); srd(16, 6, 192*192*2); srd(20, 8, 147456)
e('  s_cmp_eq_u32 s24, 1'); e('  s_cbranch_scc1 PR_n')
e('  s_lshl_b32 s29, s27, 5')
e('  v_lshl_add_u32 v6, v3, 3, v4'); e('  v_add_u32 v6, s29, v6')
e('  v_mul_u32_u24 v6, 1152, v6'); e('  v_lshl_add_u32 v6, v2, 4, v6')
e('  v_add_u32 v7, 4608, v6')
e('  v_mul_u32_u24 v8, 1152, v5'); e('  v_lshl_add_u32 v8, v2, 4, v8')
for kk in range(6):
    e(f'  buffer_load_dwordx4 {V(64+4*kk)}, v8, s[12:15], 0 offen offset:{384+64*kk}')
e(f'  s_mov_b32 s31, {SCALE}')
e('  s_sub_u32 s25, 71, s25'); e('  s_lshl_b32 s25, s25, 10')
e('  s_branch PR_go')
e('PR_n:')
e('  s_lshr_b32 s29, s27, 1'); e('  s_lshl_b32 s29, s29, 3')
e('  s_and_b32 s30, s27, 1'); e('  s_lshl_b32 s30, s30, 1')
e('  s_add_u32 s29, s29, s30'); e('  s_lshl_b32 s29, s29, 3')
e('  v_lshrrev_b32 v6, 1, v3'); e('  v_lshlrev_b32 v6, 5, v6')
e('  v_and_b32 v7, 1, v3'); e('  v_lshl_add_u32 v6, v7, 2, v6')
e('  v_add3_u32 v6, v6, v4, s29')
e('  v_mul_u32_u24 v6, 1152, v6'); e('  v_lshl_add_u32 v6, v2, 4, v6')
e('  v_add_u32 v6, 768, v6')
e('  v_add_u32 v7, 9216, v6')
e('  v_mul_u32_u24 v8, 3072, v2'); e('  v_lshl_add_u32 v8, v5, 1, v8')
for kk in range(6):
    e(f'  s_mov_b32 s32, {kk*32*384}')
    for jj in range(8):
        e(f'  buffer_load_ushort v{104+8*kk+jj}, v8, s[16:19], s32 offen offset:{jj*384}')
e('  s_mov_b32 s31, 1.0')
e('  s_lshl_b32 s25, s25, 10'); e('  s_add_u32 s25, s25, 73728')
e('PR_go:')
for kk in range(6):
    e(f'  buffer_load_dwordx4 {V(16+4*kk)}, v6, s[12:15], 0 offen offset:{64*kk}')
    e(f'  buffer_load_dwordx4 {V(40+4*kk)}, v7, s[12:15], 0 offen offset:{64*kk}')
e('  s_waitcnt vmcnt(0)')
e('  s_cmp_eq_u32 s24, 0'); e('  s_cbranch_scc1 PR_mm')
for r in range(24): e(f'  v_lshl_or_b32 v{64+r}, v{105+2*r}, 16, v{104+2*r}')
e('  s_nop 1')
e('PR_mm:')
for kk in range(6):
    e(mfma(88, 16+4*kk, 64+4*kk, None if kk == 0 else 88))
    e(mfma(92, 40+4*kk, 64+4*kk, None if kk == 0 else 92))
e('  s_nop 15')
for r in range(8): e(f'  v_mul_f32 v{88+r}, s31, v{88+r}')
for r in range(4): e(f'  v_cvt_pk_bf16_f32 v{96+r}, v{88+2*r}, v{89+2*r}')
e('  v_lshlrev_b32 v9, 4, v0')
e('  buffer_store_dwordx4 v[96:99], v9, s[20:23], s25 offen')
e('PR_done:')
e('  s_endpgm')

vL0, vL1 = 1, 2
vO = (5, 6)
vSe, vSo = 7, 8
vP = (9, 10, 11, 12)
vD = (13, 14, 3, 4)
vT = list(range(15, 24))
SACC = (24, 56)
QP = 88
XQ = 136
ACC = 184
ABUF = 216; NB = 10
PREG = (88, 104)
YB = ([88, 92, 96, 100, 120, 124], [104, 108, 112, 116, 128, 132])
YACC = ([136+4*i for i in range(12)] + [184], [24+4*i for i in range(13)])
ONES = 188
RINV = (192, 193)
sW, sU, sH, sPR, sPC, sTR, sTC, sKR, sKC, sXB = range(24, 34)
sA2, sR0, sR1, sR9, sD0, sD1, sD9, sC0, sSHR, sSHC = range(34, 44)
sM0X = 44
sM0X3 = 45
sXBmin = 3
NT = '' if 'nont' in OPT else ' nt'
NTX = '' if 'nontx' in OPT else ' nt'
NTO = ' nt' if 'nto' in OPT else ''
sT = list(range(46, 60))
sTS = 60

e('.globl main_kernel'); e('.p2align 8'); e('.type main_kernel,@function'); e('main_kernel:')
nts = [0]
def ts():
    if TS:
        e(f'  s_memtime s[{sTS+2*nts[0]}:{sTS+2*nts[0]+1}]'); nts[0] += 1
e('  s_cmp_ge_u32 s2, 256'); e('  s_cbranch_scc1 MK_done')
ts()
if TS: e('  s_memrealtime s[96:97]')
e('  s_load_dwordx2 s[4:5], s[0:1], 0')
e('  s_load_dwordx2 s[6:7], s[0:1], 24')
e('  s_load_dwordx2 s[8:9], s[0:1], 40')
e('  v_lshrrev_b32 v15, 6, v0')
e('  v_and_b32 v0, 63, v0')
e(f'  v_readfirstlane_b32 s{sW}, v15')
e(f'  v_lshlrev_b32 v{vL0}, 4, v0')
e(f'  v_add_u32 v{vL1}, {HALF}, v{vL0}')
e(f'  s_and_b32 s{sT[0]}, s2, 7')
e(f'  s_lshr_b32 s{sT[1]}, s2, 3')
e(f'  s_lshr_b32 s{sPR}, s{sT[0]}, 2')
e(f'  s_bfe_u32 s{sPC}, s{sT[0]}, 0x10001')
e(f'  s_and_b32 s{sTR}, s{sT[0]}, 1'); e(f'  s_lshl_b32 s{sTR}, s{sTR}, 2')
e(f'  s_lshr_b32 s{sT[2]}, s{sT[1]}, 3'); e(f'  s_add_u32 s{sTR}, s{sTR}, s{sT[2]}')
e(f'  s_and_b32 s{sTC}, s{sT[1]}, 7')
e(f'  s_lshr_b32 s{sU}, s{sW}, 1'); e(f'  s_add_u32 s{sU}, s{sU}, 2'); e(f'  s_and_b32 s{sU}, s{sU}, 3')
e(f'  s_and_b32 s{sH}, s{sW}, 1')
for (sP, sTt, sSH, sK) in ((sPR, sTR, sSHR, sKR), (sPC, sTC, sSHC, sKC)):
    e(f'  s_mul_i32 s{sSH}, s{sTt}, 14')
    e(f'  s_mul_i32 s{sT[2]}, s{sP}, 6')
    e(f'  s_add_i32 s{sSH}, s{sSH}, s{sT[2]}'); e(f'  s_add_i32 s{sSH}, s{sSH}, -6')
    if sK == sKC: e(f'  s_max_i32 s{sK}, s{sSH}, 0'); e(f'  s_min_i32 s{sK}, s{sK}, 92')
    else: e(f'  s_min_i32 s{sK}, s{sSH}, 92')
e('  s_waitcnt lgkmcnt(0)')
srd(20, 8, 147456)
e(f'  s_lshl_b32 s{sT[3]}, s{sW}, 10')
def dma_lin(ldsoff, goff):
    e(f'  s_add_u32 m0, s{sT[3]}, {ldsoff}')
    e(f'  s_add_u32 s{sT[4]}, s{sT[3]}, {goff}')
    e(f'  buffer_load_dwordx4 v{vL0}, s[20:23], s{sT[4]} offen lds')
e(f'  s_cmp_ge_u32 s{sW}, 4'); e('  s_cbranch_scc1 MK_noM')
for i in reversed(range(18)):
    dma_lin(i*4096, i*4096)
e('MK_noM:')
if 'ser' in OPT:
    e('  s_waitcnt vmcnt(0)'); e('  s_barrier'); ts()
srd(12, 4, X_BYTES)
vn, vg, vqr, vqc = 15, 16, 17, 18
e(f'  v_and_b32 v{vn}, 15, v0'); e(f'  v_lshrrev_b32 v{vg}, 4, v0')
e(f'  v_lshrrev_b32 v{vqr}, 3, v{vn}'); e(f'  v_and_b32 v{vqc}, 7, v{vn}')
e(f'  s_mul_i32 s{sT[5]}, s{sH}, 7'); e(f'  s_add_i32 s{sT[5]}, s{sT[5]}, s{sSHC}')
e(f'  v_min_u32 v19, 6, v{vqc}'); e(f'  v_add_u32 v19, s{sT[5]}, v19')
e(f'  s_movk_i32 s{sT[6]}, 105')
e(f'  v_med3_i32 v20, v19, 0, s{sT[6]}')
e(f'  s_add_u32 s{sT[7]}, s{sPC}, 6')
e(f'  v_add3_u32 v19, v19, v20, s{sT[7]}')
e(f'  v_subrev_u32 v20, s{sKC}, v20')
e(f'  v_mul_u32_u24 v19, 384, v19'); e(f'  v_lshl_add_u32 v19, v{vg}, 4, v19')
e(f'  s_lshl_b32 s{sT[8]}, s{sU}, 2')
e(f'  s_add_u32 s{sT[7]}, s{sPR}, 6')
e(f'  s_mov_b32 s{sT[9]}, 86016')
for t in range(2):
    e(f'  v_add_u32 v23, s{sT[8]}, v{vqr}')
    if t: e(f'  v_add_u32 v23, 2, v23')
    e(f'  v_min_u32 v{vO[t]}, 13, v23')
    e(f'  v_add_u32 v{vO[t]}, s{sSHR}, v{vO[t]}')
    e(f'  v_med3_i32 v{21+t}, v{vO[t]}, 0, s{sT[6]}')
    e(f'  v_add3_u32 v{vO[t]}, v{vO[t]}, v{21+t}, s{sT[7]}')
    e(f'  v_subrev_u32 v{21+t}, s{sKR}, v{21+t}')
    e(f'  v_mad_u32_u24 v{vO[t]}, v{vO[t]}, s{sT[9]}, v19')
    e(f'  v_cmp_gt_u32 vcc, 14, v23')
    e(f'  v_cmp_gt_u32 s[{sT[10]}:{sT[11]}], 7, v{vqc}')
    e(f'  s_and_b64 vcc, vcc, s[{sT[10]}:{sT[11]}]')
    e(f'  v_mov_b32 v23, 0x80000000')
    e(f'  s_nop 0')
    e(f'  v_cndmask_b32 v{vO[t]}, v23, v{vO[t]}, vcc')
    e(f'  v_cndmask_b32 v{21+t}, v23, v{21+t}, vcc')
e(f'  s_cmp_lt_u32 s{sW}, 4'); e('  s_cbranch_scc1 MK_noB0'); e('  s_barrier'); e('MK_noB0:')
for s_ in range(6):
    for t in range(2):
        e(f'  buffer_load_dwordx4 {V(XQ+24*t+4*s_)}, v{vO[t]}, s[12:15], 0 offen offset:{64*s_}{NT}')
assert sT[10] % 2 == 0
e(f'  s_cmp_ge_u32 s{sW}, 4'); e('  s_cbranch_scc1 MK_noB0b'); e('  s_waitcnt vmcnt(12)'); e('  s_barrier'); e('MK_noB0b:')
if 'ser' in OPT:
    e('  s_waitcnt vmcnt(0)'); e('  s_barrier'); ts()
e(f'  s_lshl_b32 s{sT[5]}, s{sKR}, 1'); e(f'  s_add_i32 s{sT[5]}, s{sT[5]}, s{sPR}')
e(f'  s_mul_i32 s{sT[5]}, s{sT[5]}, 224')
e(f'  s_lshl_b32 s{sT[7]}, s{sKC}, 1'); e(f'  s_add_u32 s{sT[5]}, s{sT[5]}, s{sT[7]}'); e(f'  s_add_u32 s{sT[5]}, s{sT[5]}, s{sPC}')
e(f'  s_mul_i32 s{sXB}, s{sT[5]}, 384')
e(f'  s_cmp_lt_i32 s{sKR}, 0'); e(f'  s_cselect_b32 s{sXBmin}, {3*344064}, 0'); e(f'  s_add_i32 s{sXBmin}, s{sXBmin}, s{sXB}')
e(f'  s_and_b32 s{sT[5]}, s{sW}, 3'); e(f'  s_lshl_b32 s{sT[5]}, s{sT[5]}, 2')
e(f'  s_add_u32 s{sT[7]}, s{sT[5]}, 3'); e(f'  s_min_u32 s{sT[7]}, s{sT[7]}, 14')
e(f'  s_lshl_b32 s{sM0X}, s{sT[5]}, 10'); e(f'  s_add_u32 s{sM0X}, s{sM0X}, {XB}')
e(f'  s_lshl_b32 s{sM0X3}, s{sT[7]}, 10'); e(f'  s_add_u32 s{sM0X3}, s{sM0X3}, {XB}')
for b in range(960): assert (b * 2731) >> 16 == b // 24
for j in range(4):
    d = vD[j]
    if j < 3:
        e(f'  s_lshl_b32 s{sT[8]}, s{sT[5]}, 6'); e(f'  s_add_u32 s{sT[8]}, s{sT[8]}, {64*j}')
    else: e(f'  s_lshl_b32 s{sT[8]}, s{sT[7]}, 6')
    e(f'  v_add_u32 v23, s{sT[8]}, v0')
    e(f'  v_mul_u32_u24 v{d}, 2731, v23'); e(f'  v_lshrrev_b32 v{d}, 16, v{d}')
    e(f'  v_mul_u32_u24 v19, 24, v{d}'); e(f'  v_sub_u32 v23, v23, v19')
    e(f'  v_cmp_le_u32 vcc, 20, v{d}')
    e(f'  v_subrev_u32 v19, 20, v{d}')
    e(f'  s_nop 0')
    e(f'  v_cndmask_b32 v{d}, v{d}, v19, vcc')
    e(f'  v_bfe_u32 v19, v{d}, 1, 3')
    e(f'  v_xor_b32 v23, v23, v19')
    e(f'  v_mul_u32_u24 v{d}, 768, v{d}')
    e(f'  v_lshl_add_u32 v{d}, v23, 4, v{d}')
    e(f'  v_add_u32 v19, 172032, v{d}')
    e(f'  v_cndmask_b32 v{d}, v{d}, v19, vcc')
def dma_x(G):
    out = []
    out.append(f'  s_add_i32 s{sT[4]}, s{sXB}, {G*344064}')
    if G < 3: out.append(f'  s_max_i32 s{sT[4]}, s{sT[4]}, s{sXBmin}')
    for j in range(4):
        if j < 3: out.append(f'  s_add_u32 m0, s{sM0X}, {G*15360 + j*1024}')
        else: out.append(f'  s_add_u32 m0, s{sM0X3}, {G*15360}')
        out.append(f'  s_nop 0')
        out.append(f'  buffer_load_dwordx4 v{vD[j]}, s[12:15], s{sT[4]} offen{NTX} lds')
    return out
srd(16, 6, X_BYTES)
def srel(dst, add):
    e(f'  s_lshl_b32 s{dst}, s{sU}, 2'); e(f'  s_add_u32 s{dst}, s{dst}, {add}'); e(f'  s_min_u32 s{dst}, s{dst}, 13')
    e(f'  s_add_i32 s{dst}, s{dst}, s{sSHR}'); e(f'  s_max_i32 s{dst}, s{dst}, 0'); e(f'  s_min_i32 s{dst}, s{dst}, 105')
    e(f'  s_sub_u32 s{dst}, s{dst}, s{sKR}')
srel(sT[5], 0); srel(sA2, 2)
e(f'  s_sub_u32 s{sT[5]}, s{sA2}, s{sT[5]}')
e(f'  s_cmp_eq_u32 s{sT[5]}, 2'); e(f'  s_cselect_b32 s{sD0}, -1, 7')
e(f'  s_cmp_le_u32 s{sA2}, 12'); e(f'  s_cselect_b32 s{sD9}, 8, 0')
e(f'  s_sub_u32 s{sA2}, s{sA2}, 1')
for (sr, sd) in ((sR0, sD0), (sR9, sD9)):
    e(f'  s_add_i32 s{sr}, s{sA2}, s{sd}'); e(f'  s_mul_i32 s{sd}, s{sd}, {ROW}')
e(f'  s_mul_i32 s{sT[5]}, s{sH}, 7'); e(f'  s_add_i32 s{sT[5]}, s{sT[5]}, s{sSHC}')
e(f'  s_max_i32 s{sT[5]}, s{sT[5]}, 0'); e(f'  s_min_i32 s{sT[5]}, s{sT[5]}, 105'); e(f'  s_sub_u32 s{sT[5]}, s{sT[5]}, s{sKC}')
e(f'  s_cmp_ge_u32 s{sT[5]}, 4'); e(f'  s_cselect_b32 s{sC0}, 4, 0')
e(f'  s_mul_i32 s{sT[5]}, s{sA2}, {ROW}'); e(f'  s_add_u32 s{sT[5]}, s{sT[5]}, {XB}')
e(f'  v_add_u32 v19, s{sC0}, v{vn}')
e(f'  v_bfe_u32 v23, v19, 1, 3'); e(f'  v_xor_b32 v23, v23, v{vg}')
e(f'  v_mul_u32_u24 v19, 384, v19'); e(f'  v_lshl_add_u32 v19, v23, 4, v19')
e(f'  v_add_u32 v{vSe}, s{sT[5]}, v19'); e(f'  v_xor_b32 v{vSo}, 64, v{vSe}')
e(f'  v_lshrrev_b32 v19, 2, v{vn}'); e(f'  v_lshl_add_u32 v19, v{vg}, 2, v19'); e(f'  v_add_u32 v19, s{sC0}, v19')
e(f'  v_bfe_u32 v23, v19, 1, 3')
e(f'  v_and_b32 v{vP[1]}, 2, v{vn}'); e(f'  v_lshlrev_b32 v{vP[1]}, 1, v{vP[1]}'); e(f'  v_xor_b32 v23, v23, v{vP[1]}')
e(f'  v_mul_u32_u24 v19, 384, v19'); e(f'  v_lshl_add_u32 v19, v23, 4, v19')
e(f'  v_and_b32 v23, 1, v{vn}'); e(f'  v_lshl_add_u32 v19, v23, 3, v19')
e(f'  v_add_u32 v{vP[0]}, s{sT[5]}, v19')
for k in range(1, 4): e(f'  v_xor_b32 v{vP[k]}, {16*k}, v{vP[0]}')
e('  v_mov_b32 v220, 0xff800000')
e(f'  v_lshl_add_u32 v19, v{vg}, 2, s{sC0}'); e('  v_sub_u32 v19, v19, v20')
for i in range(4):
    e(f'  v_add_u32 v23, {i}, v19'); e('  v_cmp_gt_u32 vcc, 7, v23'); e('  s_nop 1')
    e(f'  v_cndmask_b32 v{216+i}, v220, 0, vcc')
for t in range(2):
    for jj in range(8):
        slot = jj + 2*t
        if slot == 0: e(f'  v_sub_u32 v23, s{sR0}, v{21+t}')
        elif slot == 9: e(f'  v_sub_u32 v23, s{sR9}, v{21+t}')
        else:
            e(f'  v_sub_u32 v23, s{sA2}, v{21+t}')
            if slot > 1: e(f'  v_add_u32 v23, {slot-1}, v23')
        e('  v_cmp_gt_u32 vcc, 7, v23'); e('  s_nop 1')
        for i in range(4):
            e(f'  v_cndmask_b32 v{SACC[t]+4*jj+i}, v220, v{216+i}, vcc')

stream = []
frags = []
def add_frag(reads, gate): frags.append(dict(reads=reads, gate=gate, uses=0)); return len(frags) - 1
def use(fid, fn): frags[fid]['uses'] += 1; stream.append(('mfma', fn, fid))
def raw(*lines):
    for l in lines: stream.append(('raw', l))
def need(fid): stream.append(('need', fid))
def gate(name): stream.append(('gate', name))
def lin_read(addr):
    if addr < HALF: return [f'  ds_read_b128 {{d4}}, v{vL0} offset:{addr}']
    return [f'  ds_read_b128 {{d4}}, v{vL1} offset:{addr-HALF}']
def tsr():
    if TS:
        raw(f'  s_memtime s[{sTS+2*nts[0]}:{sTS+2*nts[0]+1}]'); stream.append(('smem',)); nts[0] += 1

def proj(B, frag_addr, gate_of, post, hooks):
    pend = []
    for s in range(6):
        for ks in range(6):
            for hh in range(2):
                f = 12*s + 2*ks + hh
                fid = add_frag(lin_read(frag_addr(f)), gate_of(f))
                if f in hooks.get('pre', {}): hooks['pre'][f](fid)
                for t in range(2):
                    acc = ACC + 16*(s % 2) + 8*t + 4*hh
                    use(fid, (lambda buf, acc=acc, t=t, ks=ks: mfma(acc, buf, B(t, ks), None if ks == 0 else acc)))
                if pend and (2*ks + hh) >= 2:
                    n = 4 if len(pend) > 16 else 2
                    for l in pend[:n]: raw(l)
                    pend = pend[n:]
        assert not pend, pend
        pend = post(s)
    raw('  s_nop 7')
    for l in pend: raw(l)

lab = [0]
def role(r, lines):
    lab[0] += 1
    raw(f'  s_cbranch_vcc{"z" if r == "O" else "nz"} RL{lab[0]}')
    raw(*lines)
    raw(f'RL{lab[0]}:')
BAR = '  s_barrier'
def dma_n(i4):
    return [f'  s_add_u32 m0, s{sT[5]}, {i4*4096}', f'  s_add_u32 s{sT[4]}, s{sT[5]}, {73728+i4*4096}',
            f'  buffer_load_dwordx4 v{vL0}, s[20:23], s{sT[4]} offen lds']
sb = {9: (15, 16), 0: (17, 18)}
for sl, sd in ((9, sD9), (0, sD0)):
    e(f'  v_add_u32 v{sb[sl][0]}, s{sd}, v{vSe}'); e(f'  v_add_u32 v{sb[sl][1]}, s{sd}, v{vSo}')
e(f'  s_and_b32 s{sT[5]}, s{sW}, 3'); e(f'  s_lshl_b32 s{sT[5]}, s{sT[5]}, 10')
e(f'  s_cmp_lt_u32 s{sW}, 4'); e('  s_cselect_b64 vcc, -1, 0')

tsr()
gate('G0')
tsr()
def p1_post(s):
    out = []
    for t in range(2):
        acc = ACC + 16*(s % 2) + 8*t
        for r in range(4): out.append(f'  v_cvt_pk_bf16_f32 v{QP+24*t+4*s+r}, v{acc+2*r}, v{acc+2*r+1}')
    return out
hk = {}
for ks in range(6): hk[2*ks] = (lambda fid, ks=ks: raw(f'  s_waitcnt vmcnt({10-2*ks})'))
for i, G in enumerate((9, 8, 7, 6, 5)): hk[12+4*i+1] = (lambda fid, G=G: role('O', dma_x(G)))
def ybar(fid): need(fid); role('Y', [BAR])
def ybar17(fid): role('O', dma_x(8)); ybar(fid)
for f in (31, 47, 61): hk[f] = ybar
hk[17] = ybar17
proj(lambda t, ks: XQ+24*t+4*ks, lambda f: (71-f)*1024, lambda f: 'G0', p1_post, dict(pre=hk))
tsr()
role('O', [BAR] + dma_x(4) + dma_x(3) + [BAR] + dma_x(2) + [BAR] + dma_x(1) + ['  s_waitcnt vmcnt(12)', BAR] + dma_x(0))
role('Y', [BAR])
gate('S')
tsr()
for slot in range(9, -1, -1):
    for s in range(6):
        if slot in sb: base, off = sb[slot][s % 2], 128*(s//2)
        else: base, off = (vSe, vSo)[s % 2], (slot-1)*ROW + 128*(s//2)
        fid = add_frag([f'  ds_read_b128 {{d4}}, v{base} offset:{off}'], 'S')
        for t in range(2):
            jj = slot - 2*t
            if 0 <= jj < 8:
                acc = SACC[t] + 4*jj
                use(fid, (lambda buf, acc=acc, t=t, s=s: mfma(acc, buf, QP+24*t+4*s, acc)))
role('O', ['  s_waitcnt vmcnt(0)', BAR] + dma_n(0) + dma_n(1))
tsr()
for k in range(4):
    raw(f'  v_add_u32 v{15+k}, s{sD0}, v{vP[k]}'); raw(f'  v_add_u32 v{19+k}, s{sD9}, v{vP[k]}')
gate('PVA')
vm = (ACC+8, ACC+12); vt = (ACC+9, ACC+13); vm2 = (ACC+10, ACC+14)
raw('  s_nop 3')
ch = [[], []]
for t in range(2):
    R = SACC[t]
    c = ch[t]
    c.append(f'  v_max3_f32 v{vm[t]}, v{R+31}, v{R+30}, v{R+29}')
    c.append(f'  v_max3_f32 v{vm2[t]}, v{R+28}, v{R+27}, v{R+26}')
    k = 25
    while k > 1:
        c.append(f'  v_max3_f32 v{vm[t]}, v{vm[t]}, v{R+k}, v{R+k-1}')
        c.append(f'  v_max3_f32 v{vm2[t]}, v{vm2[t]}, v{R+k-2}, v{R+k-3}'); k -= 4
    c.append(f'  v_max3_f32 v{vm[t]}, v{vm[t]}, v{R+1}, v{R}')
    c.append(f'  v_max3_f32 v{vm[t]}, v{vm[t]}, v{vm2[t]}, s{sT[6]}')
raw(f'  s_mov_b32 s{sT[6]}, 0xff7fffff')
for a, b in zip(ch[1], ch[0]): raw(a, b)
for sw in ('v_permlane32_swap_b32', 'v_permlane16_swap_b32'):
    for t in range(2): raw(f'  v_mov_b32 v{vt[t]}, v{vm[t]}')
    raw('  s_nop 1')
    for t in range(2): raw(f'  {sw} v{vm[t]}, v{vt[t]}')
    raw('  s_nop 1')
    for t in range(2): raw(f'  v_max_f32 v{vm[t]}, v{vm[t]}, v{vt[t]}')
for r in range(4): raw(f'  v_mov_b32 v{ONES+r}, 0x3f803f80')
for t in range(2):
    R = SACC[t]
    for k in range(0, 32, 4):
        for i in range(4): raw(f'  v_sub_f32 v{R+k+i}, v{R+k+i}, v{vm[t]}')
        for i in range(4): raw(f'  v_exp_f32 v{R+k+i}, v{R+k+i}')
        if k >= 4:
            for i in range(2): raw(f'  v_cvt_pk_bf16_f32 v{PREG[t]+(k-4)//2+i}, v{R+k-4+2*i}, v{R+k-4+2*i+1}')
    raw('  s_nop 0')
    for i in range(2): raw(f'  v_cvt_pk_bf16_f32 v{PREG[t]+14+i}, v{R+28+2*i}, v{R+28+2*i+1}')
raw('  s_nop 1')
tsr()
lastf = None
for st in range(5):
    if st == 2:
        need(lastf); role('Y', [BAR])
    for ct in range(13):
        tl = [t for t in range(2) if 0 <= st - t < 4]
        if ct == 12:
            for t in tl:
                acc = YACC[t][12]
                raw(mfma(acc, ONES, PREG[t]+4*(st-t), None if st == t else acc))
            continue
        b_, e_ = ct // 4, ct % 4
        rd = []
        for hf in range(2):
            slot = 2*st + hf
            if slot == 0: base, off = 15+e_, 128*b_
            elif slot == 9: base, off = 19+e_, 128*b_
            else: base, off = vP[e_], (slot-1)*ROW + 128*b_
            rd.append(f'  ds_read_b64_tr_b16 {{d{"lo" if hf == 0 else "hi"}}}, v{base} offset:{off}')
        fid = add_frag(rd, 'PVA'); lastf = fid
        for t in tl:
            acc = YACC[t][ct]
            use(fid, (lambda buf, acc=acc, t=t, st=st: mfma(acc, buf, PREG[t]+4*(st-t), None if st == t else acc)))
role('Y', [BAR] + sum((dma_n(i) for i in range(10, 18)), []))
tsr()
raw('  s_nop 7')
RI = (22, 23)
for t in range(2): raw(f'  v_rcp_f32 v{RI[t]}, v{YACC[t][12]}')
for t in range(2):
    for ks in range(6):
        for hf in range(2):
            y = YACC[t][2*ks+hf]
            for i in range(2): raw(f'  v_cvt_pk_bf16_f32 v{YB[t][ks]+2*hf+i}, v{y+2*i}, v{y+2*i+1}')
role('O', [BAR] + sum((dma_n(i) for i in range(2, 10)), []) + ['  s_waitcnt vmcnt(0)', BAR])
role('Y', ['  s_waitcnt vmcnt(0)', BAR])
gate('P4a')
tsr()
OUTR = 24
def p4_post(s):
    out = []
    for t in range(2):
        acc = ACC + 16*(s % 2) + 8*t
        o = OUTR + 8*(s % 2) + 4*t
        if 'nomul' not in OPT:
            for r in range(8): out.append(f'  v_mul_f32 v{acc+r}, v{acc+r}, v{RI[t]}')
        for r in range(4): out.append(f'  v_cvt_pk_bf16_f32 v{o+r}, v{acc+2*r}, v{acc+2*r+1}')
        if 'nost' not in OPT: out.append(f'  buffer_store_dwordx4 {V(o)}, v{vO[t]}, s[16:19], 0 offen offset:{64*s}{NTO}')
    return out
def hookE(fid):
    role('O', [BAR]); gate('P4b')
proj(lambda t, ks: YB[t][ks], lambda f: f*1024, lambda f: 'P4a' if f < 40 else 'P4b', p4_post, dict(pre={31: hookE}))
tsr()

gates = set(); nxt = 0; done_uses = [0]*len(frags)
ops = []
landed = -1
def buf_of(f): return ABUF + 4*(f % NB)
def try_issue(budget):
    global nxt
    while budget > 0 and nxt < len(frags):
        fr = frags[nxt]
        if fr['gate'] not in gates: break
        if nxt >= NB and done_uses[nxt-NB] < frags[nxt-NB]['uses']: break
        if len(ops) + len(fr['reads']) > 15: break
        b = buf_of(nxt)
        for r in fr['reads']:
            e(r.format(d4=V(b), dlo=V(b, 2), dhi=V(b+2, 2))); ops.append(nxt)
        nxt += 1; budget -= 1
def wait_for(f):
    global landed, ops
    if f <= landed: return
    while nxt <= f:
        n0 = nxt; try_issue(1)
        if nxt == n0:
            raise RuntimeError(f'cannot issue frag {nxt}')
    tgt = f
    if f + 1 < nxt and sum(1 for o in ops if o > f + 1) >= 4: tgt = f + 1
    n = sum(1 for o in ops if o > tgt)
    e(f'  s_waitcnt lgkmcnt({n})')
    ops = [o for o in ops if o > tgt]; landed = tgt
for ent in stream:
    k = ent[0]
    if k == 'raw':
        e(ent[1])
    elif k == 'smem':
        e('  s_waitcnt lgkmcnt(0)'); ops = []; landed = nxt - 1
    elif k == 'gate':
        gates.add(ent[1]); try_issue(NB)
    elif k == 'need':
        wait_for(ent[1])
    elif k == 'mfma':
        wait_for(ent[2])
        e(ent[1](buf_of(ent[2]))); done_uses[ent[2]] += 1
        try_issue(2)
if TS:
    e('  s_waitcnt vmcnt(0)')
    e(f'  s_memtime s[{sTS+2*nts[0]}:{sTS+2*nts[0]+1}]'); nts[0] += 1
    e('  s_memrealtime s[98:99]')
    e('  s_waitcnt lgkmcnt(0)')
    e(f'  s_mov_b32 s22, {WS_BYTES}')
    e(f'  s_lshl_b32 s{sT[0]}, s2, 3'); e(f'  s_add_u32 s{sT[0]}, s{sT[0]}, s{sW}'); e(f'  s_lshl_b32 s{sT[0]}, s{sT[0]}, 6')
    e(f'  s_add_u32 s{sT[0]}, s{sT[0]}, 0x100000')
    e('  v_mov_b32 v1, 0')
    for i in range(nts[0]):
        if i == 0: e(f'  v_mov_b32 v2, s{sTS}')
        else:
            e(f'  s_sub_u32 s{sT[1]}, s{sTS+2*i}, s{sTS}'); e(f'  v_mov_b32 v2, s{sT[1]}')
        e(f'  buffer_store_dword v2, v1, s[20:23], s{sT[0]} offen offset:{4*i}')
if TS:
    e('  v_mov_b32 v2, s96'); e('  v_mov_b32 v3, s98')
    e(f'  buffer_store_dwordx2 v[2:3], v1, s[20:23], s{sT[0]} offen offset:56')
e('MK_done:')
e('  s_endpgm')

e('.section .rodata,"a"')
for k, nv in (('prep_kernel', 152), ('main_kernel', 256)):
    e('.p2align 6'); e(f'.amdhsa_kernel {k}')
    e(f'  .amdhsa_next_free_vgpr {nv}'); e('  .amdhsa_next_free_sgpr 102'); e(f'  .amdhsa_accum_offset {nv}')
    e('  .amdhsa_group_segment_fixed_size 0'); e('  .amdhsa_kernarg_size 48'); e('  .amdhsa_user_sgpr_count 2')
    e('  .amdhsa_user_sgpr_kernarg_segment_ptr 1'); e('  .amdhsa_system_sgpr_workgroup_id_x 1')
    e('.end_amdhsa_kernel')
open(OUTF, 'w').write('\n'.join(L) + '\n')
```

```python
import sys, struct, math, re
OPT = dict(a.split('=') if '=' in a else (a, '1') for a in sys.argv[1:])
OUTF = OPT.get('out', 'standalone__neighborhood_nat__vision.s')
TS = 'ts' in OPT
L = []
def e(s): L.append(s)

X_BYTES = 19267584
WS_BYTES = 268435456
XB = 10240
ROW = 7680
HALF = 36864
NHI = XB + 14*ROW
SCALE = struct.unpack('<I', struct.pack('<f', (192 ** -0.5) * math.log2(math.e)))[0]
NT = '' if 'nont' in OPT else ' nt'
NTO = ' nt' if 'nto' in OPT else ''

hdr = open('standalone__neighborhood_nat__vision.s.ref').read().split('\n')
for ln in hdr:
    if ln.startswith('; @launch'): break
    e(ln)
e('; @launch kernel=prep_kernel grid=(144,1,1) block=(64,1,1) lds=0')
e('; @launch kernel=main_kernel grid=(256,1,1) block=(512,1,1) lds=163840')
e('.amdgcn_target "amdgcn-amd-amdhsa--gfx950"')
e('.text')

def srd(d, b, n):
    e(f'  s_mov_b32 s{d}, s{b}'); e(f'  s_and_b32 s{d+1}, s{b+1}, 0xffff')
    e(f'  s_mov_b32 s{d+2}, {n}'); e(f'  s_mov_b32 s{d+3}, 0x00020000')
def V(a, n=4): return f'v[{a}:{a+n-1}]'
def mfma(d, a, b, c):
    cs = '0' if c is None else V(c)
    return f'  v_mfma_f32_16x16x32_bf16 {V(d)}, {V(a)}, {V(b)}, {cs}'

e('.globl prep_kernel'); e('.p2align 8'); e('.type prep_kernel,@function'); e('prep_kernel:')
e('  s_cmp_ge_u32 s2, 144'); e('  s_cbranch_scc1 PR_done')
e('  s_load_dwordx4 s[4:7], s[0:1], 8')
e('  s_load_dwordx2 s[8:9], s[0:1], 40')
e('  s_cmp_ge_u32 s2, 72'); e('  s_cselect_b32 s24, 1, 0')
e('  s_mul_i32 s25, s24, 72'); e('  s_sub_u32 s25, s2, s25')
e('  s_mul_hi_u32 s26, s25, 0x15555556')
e('  s_mul_i32 s27, s26, 12'); e('  s_sub_u32 s27, s25, s27')
e('  s_and_b32 s28, s27, 1')
e('  s_lshr_b32 s27, s27, 1')
e('  v_and_b32 v1, 15, v0')
e('  v_lshrrev_b32 v2, 4, v0')
e('  v_lshrrev_b32 v3, 2, v1')
e('  v_and_b32 v4, 3, v1')
e('  s_lshl_b32 s29, s26, 5'); e('  s_lshl_b32 s30, s28, 2'); e('  s_add_u32 s29, s29, s30')
e('  v_lshl_add_u32 v5, v3, 3, v4'); e('  v_add_u32 v5, s29, v5')
e('  s_waitcnt lgkmcnt(0)')
srd(12, 4, 192*576*2); srd(16, 6, 192*192*2); srd(20, 8, 147456)
e('  s_cmp_eq_u32 s24, 1'); e('  s_cbranch_scc1 PR_n')
e('  s_lshl_b32 s29, s27, 5')
e('  v_lshl_add_u32 v6, v3, 3, v4'); e('  v_add_u32 v6, s29, v6')
e('  v_mul_u32_u24 v6, 1152, v6'); e('  v_lshl_add_u32 v6, v2, 4, v6')
e('  v_add_u32 v7, 4608, v6')
e('  v_mul_u32_u24 v8, 1152, v5'); e('  v_lshl_add_u32 v8, v2, 4, v8')
for kk in range(6):
    e(f'  buffer_load_dwordx4 {V(64+4*kk)}, v8, s[12:15], 0 offen offset:{384+64*kk}{NT}')
e(f'  s_mov_b32 s31, {SCALE}')
e('  s_sub_u32 s25, 71, s25'); e('  s_lshl_b32 s25, s25, 10')
e('  s_branch PR_go')
e('PR_n:')
e('  s_lshr_b32 s29, s27, 1'); e('  s_lshl_b32 s29, s29, 3')
e('  s_and_b32 s30, s27, 1'); e('  s_lshl_b32 s30, s30, 1')
e('  s_add_u32 s29, s29, s30'); e('  s_lshl_b32 s29, s29, 3')
e('  v_lshrrev_b32 v6, 1, v3'); e('  v_lshlrev_b32 v6, 5, v6')
e('  v_and_b32 v7, 1, v3'); e('  v_lshl_add_u32 v6, v7, 2, v6')
e('  v_add3_u32 v6, v6, v4, s29')
e('  v_mul_u32_u24 v6, 1152, v6'); e('  v_lshl_add_u32 v6, v2, 4, v6')
e('  v_add_u32 v6, 768, v6')
e('  v_add_u32 v7, 9216, v6')
e('  v_mul_u32_u24 v8, 3072, v2'); e('  v_lshl_add_u32 v8, v5, 1, v8')
for kk in range(6):
    e(f'  s_mov_b32 s32, {kk*32*384}')
    for jj in range(8):
        e(f'  buffer_load_ushort v{104+8*kk+jj}, v8, s[16:19], s32 offen offset:{jj*384}{NT}')
e('  s_mov_b32 s31, 1.0')
e('  s_lshl_b32 s25, s25, 10'); e('  s_add_u32 s25, s25, 73728')
e('PR_go:')
for kk in range(6):
    e(f'  buffer_load_dwordx4 {V(16+4*kk)}, v6, s[12:15], 0 offen offset:{64*kk}{NT}')
    e(f'  buffer_load_dwordx4 {V(40+4*kk)}, v7, s[12:15], 0 offen offset:{64*kk}{NT}')
e('  s_waitcnt vmcnt(0)')
e('  s_cmp_eq_u32 s24, 0'); e('  s_cbranch_scc1 PR_mm')
for r in range(24): e(f'  v_lshl_or_b32 v{64+r}, v{105+2*r}, 16, v{104+2*r}')
e('  s_nop 1')
e('PR_mm:')
for kk in range(6):
    e(mfma(88, 16+4*kk, 64+4*kk, None if kk == 0 else 88))
    e(mfma(92, 40+4*kk, 64+4*kk, None if kk == 0 else 92))
e('  s_nop 15')
for r in range(8): e(f'  v_mul_f32 v{88+r}, s31, v{88+r}')
for r in range(4): e(f'  v_cvt_pk_bf16_f32 v{96+r}, v{88+2*r}, v{89+2*r}')
e('  v_lshlrev_b32 v9, 4, v0')
e('  buffer_store_dwordx4 v[96:99], v9, s[20:23], s25 offen')
e('PR_done:')
e('  s_endpgm')

vL0, vL1 = 1, 2
vO = (5, 6)
vSe, vSo = 7, 8
vP = (9, 10, 11, 12)
vD = (13, 14, 3, 4)
SACC = (24, 56)
QP = 88
XQ = 136
ACC = 184
ABUF = 216; NB = 10
PREG = (136, 152)
YB = ([136, 140, 144, 148, 168, 172], [152, 156, 160, 164, 176, 180])
YACC = ([88+4*i for i in range(12)], [24+4*i for i in range(12)])
SUM = (184, 188)
ONES = 192
ET = 196
RI = (22, 23)
OUTR = 24
FLAG = 69*1024
sW, sU, sH, sPR, sPC, sKR, sKC, sXB, sGS, sGmin = range(24, 34)
sA2, sR0, sR9, sD0, sD9, sM0X, sM0X3, sW4 = range(34, 42)
sINV = (42, 44)
sT = list(range(46, 60))
sTS = 60

e('.globl main_kernel'); e('.p2align 8'); e('.type main_kernel,@function'); e('main_kernel:')
nts = [0]
def ts_line():
    s = f'  s_memtime s[{sTS+2*nts[0]}:{sTS+2*nts[0]+1}]'; nts[0] += 1; return s
e('  s_cmp_ge_u32 s2, 256'); e('  s_cbranch_scc1 MK_done')
if TS: e(ts_line()); e('  s_memrealtime s[96:97]')
e('  s_load_dwordx2 s[4:5], s[0:1], 0')
e('  s_load_dwordx2 s[6:7], s[0:1], 24')
e('  s_load_dwordx2 s[8:9], s[0:1], 40')
e('  v_lshrrev_b32 v15, 6, v0')
e('  v_and_b32 v0, 63, v0')
e(f'  v_readfirstlane_b32 s{sW}, v15')
e(f'  v_lshlrev_b32 v{vL0}, 4, v0')
e(f'  v_add_u32 v{vL1}, {HALF}, v{vL0}')
e(f'  s_bfe_u32 s{sPR}, s2, 0x10002')
e(f'  s_bfe_u32 s{sPC}, s2, 0x10001')
e(f'  s_and_b32 s{sKR}, s2, 1'); e(f'  s_lshl_b32 s{sKR}, s{sKR}, 2')
e(f'  s_lshr_b32 s{sT[0]}, s2, 6'); e(f'  s_add_u32 s{sKR}, s{sKR}, s{sT[0]}')
e(f'  s_bfe_u32 s{sKC}, s2, 0x30003')
e(f'  s_mul_i32 s{sKR}, s{sKR}, 14'); e(f'  s_add_i32 s{sKR}, s{sKR}, -6')
e(f'  s_mul_i32 s{sKC}, s{sKC}, 14'); e(f'  s_add_i32 s{sKC}, s{sKC}, -6')
e(f'  s_lshr_b32 s{sU}, s{sW}, 1'); e(f'  s_add_u32 s{sU}, s{sU}, 2'); e(f'  s_and_b32 s{sU}, s{sU}, 3')
e(f'  s_and_b32 s{sH}, s{sW}, 1')
e(f'  s_and_b32 s{sW4}, s{sW}, 3'); e(f'  s_lshl_b32 s{sW4}, s{sW4}, 10')
vn, vg, vqr, vqc = 15, 16, 17, 18
e(f'  v_and_b32 v{vn}, 15, v0'); e(f'  v_lshrrev_b32 v{vg}, 4, v0')
e(f'  v_lshrrev_b32 v{vqr}, 3, v{vn}'); e(f'  v_and_b32 v{vqc}, 7, v{vn}')
sMR, sAR, sMC, sAC = sT[10], sT[11], sT[12], sT[13]
e(f'  s_sub_u32 s{sMR}, 0, s{sPR}'); e(f'  s_mul_i32 s{sAR}, s{sPR}, 224')
e(f'  s_sub_u32 s{sMC}, 0, s{sPC}'); e(f'  s_mul_i32 s{sAC}, s{sPC}, 224')
e(f'  s_mul_i32 s{sT[0]}, s{sH}, 7'); e(f'  s_add_i32 s{sT[0]}, s{sT[0]}, s{sKC}')
e(f'  v_add_u32 v19, s{sT[0]}, v{vqc}')
e(f'  v_max_i32 v20, 0, v19')
e(f'  v_add3_u32 v19, v19, v20, 6')
e(f'  v_xor_b32 v19, s{sMC}, v19'); e(f'  v_add_u32 v19, s{sAC}, v19')
e(f'  v_subrev_u32 v20, s{sKC}, v20')
e(f'  v_mul_u32_u24 v19, 384, v19'); e(f'  v_lshl_add_u32 v19, v{vg}, 4, v19')
e(f'  s_lshl_b32 s{sT[0]}, s{sU}, 2')
e(f'  s_mov_b32 s{sT[1]}, 86016')
e(f'  v_cmp_gt_u32 s[{sT[2]}:{sT[3]}], 7, v{vqc}')
assert sT[2] % 2 == 0
for t in range(2):
    e(f'  v_add_u32 v23, s{sT[0]}, v{vqr}')
    if t: e(f'  v_add_u32 v23, 2, v23')
    e(f'  v_add_u32 v{vO[t]}, s{sKR}, v23')
    e(f'  v_max_i32 v{21+t}, 0, v{vO[t]}')
    e(f'  v_add3_u32 v{vO[t]}, v{vO[t]}, v{21+t}, 6')
    e(f'  v_xor_b32 v{vO[t]}, s{sMR}, v{vO[t]}'); e(f'  v_add_u32 v{vO[t]}, s{sAR}, v{vO[t]}')
    e(f'  v_subrev_u32 v{21+t}, s{sKR}, v{21+t}')
    e(f'  v_cmp_gt_u32 vcc, 14, v23')
    e(f'  v_mad_u32_u24 v{vO[t]}, v{vO[t]}, s{sT[1]}, v19')
    e(f'  s_and_b64 vcc, vcc, s[{sT[2]}:{sT[3]}]')
    e(f'  v_mov_b32 v23, 0x80000000')
    e(f'  s_nop 0')
    e(f'  v_cndmask_b32 v{vO[t]}, v23, v{vO[t]}, vcc')
    e(f'  v_cndmask_b32 v{21+t}, v23, v{21+t}, vcc')
for t in range(2): e(f'  v_cmp_gt_i32 s[{sINV[t]}:{sINV[t]+1}], 0, v{vO[t]}')
e(f'  v_mov_b32 v23, {FLAG}'); e('  v_mov_b32 v19, 0'); e('  ds_write_b32 v23, v19')
e('  s_waitcnt lgkmcnt(0)')
e('  s_barrier')
srd(20, 8, 147456)
srd(12, 4, X_BYTES)
def q_loads():
    for s_ in range(6):
        for t in range(2):
            e(f'  buffer_load_dwordx4 {V(XQ+24*t+4*s_)}, v{vO[t]}, s[12:15], 0 offen offset:{64*s_}{NT}')
def m01_loads():
    e(f'  s_mov_b32 s{sT[4]}, {69*1024}')
    e(f'  buffer_load_dwordx4 {V(ABUF)}, v{vL0}, s[20:23], s{sT[4]} offen offset:2048')
    e(f'  buffer_load_dwordx4 {V(ABUF+4)}, v{vL0}, s[20:23], s{sT[4]} offen offset:1024')
    e(f'  buffer_load_dwordx4 {V(ABUF+8)}, v{vL0}, s[20:23], s{sT[4]} offen')
e(f'  s_cmp_ge_u32 s{sW}, 4'); e('  s_cbranch_scc1 MK_noM')
for i in reversed(range(18)):
    if i == 17:
        e(f'  s_mov_b32 s{sT[4]}, {i*4096}')
    else: e(f'  s_add_u32 s{sT[4]}, s{sW4}, {i*4096}')
    e(f'  s_mov_b32 m0, s{sT[4]}'); e('  s_nop 0')
    e(f'  buffer_load_dwordx4 v{vL0}, s[20:23], s{sT[4]} offen lds')
e('MK_noM:')
m01_loads(); q_loads()
e(f'  s_lshl_b32 s{sT[0]}, s{sKR}, 1')
e(f'  s_sub_i32 s{sT[1]}, 221, s{sT[0]}')
e(f'  s_cmp_eq_u32 s{sPR}, 0'); e(f'  s_cselect_b32 s{sXB}, s{sT[0]}, s{sT[1]}')
e(f'  s_cselect_b32 s{sGS}, 1, -1'); e(f'  s_mul_i32 s{sGS}, s{sGS}, 344064')
e(f'  s_mul_i32 s{sXB}, s{sXB}, 86016')
e(f'  s_cmp_lt_i32 s{sKR}, 0'); e(f'  s_cselect_b32 s{sGmin}, 3, 0')
e(f'  s_lshl_b32 s{sM0X}, s{sW4}, 2')
e(f'  s_add_u32 s{sM0X3}, s{sM0X}, 3072'); e(f'  s_min_u32 s{sM0X3}, s{sM0X3}, {14*1024}')
e(f'  s_mul_i32 s{sT[2]}, s{sPR}, 172032')
e(f'  s_sub_u32 s{sT[3]}, 172032, s{sT[2]}')
for b in range(960): assert (b * 2731) >> 16 == b // 24
for j in range(4):
    d = vD[j]
    if j < 3:
        e(f'  s_lshr_b32 s{sT[0]}, s{sM0X}, 4'); e(f'  s_add_u32 s{sT[0]}, s{sT[0]}, {64*j}')
    else: e(f'  s_lshr_b32 s{sT[0]}, s{sM0X3}, 4')
    e(f'  v_add_u32 v23, s{sT[0]}, v0')
    e(f'  v_mul_u32_u24 v{d}, 2731, v23'); e(f'  v_lshrrev_b32 v{d}, 16, v{d}')
    e(f'  v_mul_u32_u24 v19, 24, v{d}'); e(f'  v_sub_u32 v23, v23, v19')
    e(f'  v_cmp_le_u32 vcc, 20, v{d}')
    e(f'  v_subrev_u32 v19, 20, v{d}')
    e(f'  v_mov_b32 v232, s{sT[2]}')
    e(f'  v_cndmask_b32 v{d}, v{d}, v19, vcc')
    e(f'  v_mov_b32 v233, s{sT[3]}')
    e(f'  v_cndmask_b32 v232, v232, v233, vcc')
    e(f'  v_bfe_u32 v19, v{d}, 1, 3')
    e(f'  v_xor_b32 v23, v23, v19')
    e(f'  v_lshl_add_u32 v23, v23, 4, v232')
    e(f'  v_add_u32 v{d}, s{sKC}, v{d}'); e(f'  v_max_i32 v{d}, 0, v{d}'); e(f'  v_lshlrev_b32 v{d}, 1, v{d}')
    e(f'  v_xor_b32 v{d}, s{sMC}, v{d}'); e(f'  v_add_u32 v{d}, s{sAC}, v{d}')
    e(f'  v_mul_u32_u24 v{d}, 384, v{d}'); e(f'  v_add_u32 v{d}, v{d}, v23')
e(f'  s_add_u32 s{sM0X}, s{sM0X}, {XB}'); e(f'  s_add_u32 s{sM0X3}, s{sM0X3}, {XB}')
def dma_x(G):
    out = []
    if G < 3:
        out.append(f'  s_max_u32 s{sT[4]}, s{sGmin}, {G}'); out.append(f'  s_mul_i32 s{sT[4]}, s{sT[4]}, s{sGS}')
    else: out.append(f'  s_mul_i32 s{sT[4]}, s{sGS}, {G}')
    out.append(f'  s_add_i32 s{sT[4]}, s{sT[4]}, s{sXB}')
    for j in range(4):
        if j < 3: out.append(f'  s_add_u32 m0, s{sM0X}, {G*15360 + j*1024}')
        else: out.append(f'  s_add_u32 m0, s{sM0X3}, {G*15360}')
        out.append(f'  s_nop 0')
        out.append(f'  buffer_load_dwordx4 v{vD[j]}, s[12:15], s{sT[4]} offen{NT} lds')
    return out
srd(16, 6, X_BYTES)
def srel(dst, add):
    e(f'  s_lshl_b32 s{dst}, s{sU}, 2'); e(f'  s_add_u32 s{dst}, s{dst}, {add}'); e(f'  s_min_u32 s{dst}, s{dst}, 13')
    e(f'  s_add_i32 s{dst}, s{dst}, s{sKR}'); e(f'  s_max_i32 s{dst}, s{dst}, 0'); e(f'  s_sub_i32 s{dst}, s{dst}, s{sKR}')
srel(sT[0], 0); srel(sA2, 2)
e(f'  s_sub_u32 s{sT[0]}, s{sA2}, s{sT[0]}')
e(f'  s_cmp_eq_u32 s{sT[0]}, 2'); e(f'  s_cselect_b32 s{sD0}, -1, 7')
e(f'  s_cmp_le_u32 s{sA2}, 12'); e(f'  s_cselect_b32 s{sD9}, 8, 0')
e(f'  s_sub_u32 s{sA2}, s{sA2}, 1')
for (sr, sd) in ((sR0, sD0), (sR9, sD9)):
    e(f'  s_add_i32 s{sr}, s{sA2}, s{sd}'); e(f'  s_mul_i32 s{sd}, s{sd}, {ROW}')
e(f'  s_lshl_b32 s{sT[1]}, s{sH}, 2')
e(f'  s_mul_i32 s{sT[0]}, s{sA2}, {ROW}'); e(f'  s_add_u32 s{sT[0]}, s{sT[0]}, {XB}')
e(f'  v_add_u32 v19, s{sT[1]}, v{vn}')
e(f'  v_bfe_u32 v23, v19, 1, 3'); e(f'  v_xor_b32 v23, v23, v{vg}')
e(f'  v_mul_u32_u24 v19, 384, v19'); e(f'  v_lshl_add_u32 v19, v23, 4, v19')
e(f'  v_add_u32 v{vSe}, s{sT[0]}, v19'); e(f'  v_xor_b32 v{vSo}, 64, v{vSe}')
e(f'  v_lshrrev_b32 v19, 2, v{vn}'); e(f'  v_lshl_add_u32 v19, v{vg}, 2, v19'); e(f'  v_add_u32 v19, s{sT[1]}, v19')
e(f'  v_bfe_u32 v23, v19, 1, 3')
e(f'  v_and_b32 v{vP[1]}, 2, v{vn}'); e(f'  v_lshlrev_b32 v{vP[1]}, 1, v{vP[1]}'); e(f'  v_xor_b32 v23, v23, v{vP[1]}')
e(f'  v_mul_u32_u24 v19, 384, v19'); e(f'  v_lshl_add_u32 v19, v23, 4, v19')
e(f'  v_and_b32 v23, 1, v{vn}'); e(f'  v_lshl_add_u32 v19, v23, 3, v19')
e(f'  v_add_u32 v{vP[0]}, s{sT[0]}, v19')
for k in range(1, 4): e(f'  v_xor_b32 v{vP[k]}, {16*k}, v{vP[0]}')
e('  v_mov_b32 v236, 0xff800000')
e(f'  v_lshl_add_u32 v19, v{vg}, 2, s{sT[1]}'); e('  v_sub_u32 v19, v19, v20')
for i in range(4):
    e(f'  v_add_u32 v{237+i}, {i}, v19')
for i in range(4):
    e(f'  v_cmp_gt_u32 s[{sT[2+2*i]}:{sT[3+2*i]}], 7, v{237+i}')
for i in range(4):
    e(f'  v_cndmask_b32 v{232+i}, v236, 0, s[{sT[2+2*i]}:{sT[3+2*i]}]')
for t in range(2):
    for j4 in range(2):
        for jj in range(4*j4, 4*j4+4):
            slot = jj + 2*t; r = 237 + jj % 4
            if slot == 0: e(f'  v_sub_u32 v{r}, s{sR0}, v{21+t}')
            elif slot == 9: e(f'  v_sub_u32 v{r}, s{sR9}, v{21+t}')
            else:
                e(f'  s_add_u32 s{sT[0]}, s{sA2}, {slot-1}'); e(f'  v_sub_u32 v{r}, s{sT[0]}, v{21+t}')
        for jj in range(4*j4, 4*j4+4):
            q = jj % 4
            e(f'  v_cmp_gt_u32 s[{sT[2+2*q]}:{sT[3+2*q]}], 7, v{237+q}')
        for jj in range(4*j4, 4*j4+4):
            q = jj % 4
            for i in range(4):
                e(f'  v_cndmask_b32 v{SACC[t]+4*jj+i}, v236, v{232+i}, s[{sT[2+2*q]}:{sT[3+2*q]}]')
sb = {9: (15, 16), 0: (17, 18)}
PB0 = (17, 18, 19, 20); PB9 = (15, 16, 21, 0)
for sl, sd in ((9, sD9), (0, sD0)):
    e(f'  v_add_u32 v{sb[sl][0]}, s{sd}, v{vSe}'); e(f'  v_add_u32 v{sb[sl][1]}, s{sd}, v{vSo}')
e(f'  s_cmp_lt_u32 s{sW}, 4'); e('  s_cselect_b64 vcc, -1, 0')
if TS: e(ts_line())
e(f'  v_mov_b32 v23, {FLAG}')
e('  s_cbranch_vccz MK_p0')
e('  s_waitcnt vmcnt(15)')
e('  v_mov_b32 v19, 1')
e('  s_mov_b64 exec, 1'); e('  ds_add_u32 v23, v19'); e('  s_mov_b64 exec, -1')
e('MK_p0:')
e('  ds_read_b32 v19, v23'); e('  s_waitcnt lgkmcnt(0)')
e(f'  v_readfirstlane_b32 s{sT[0]}, v19'); e(f'  s_cmp_lt_u32 s{sT[0]}, 4'); e('  s_cbranch_scc1 MK_p0')

stream = []; frags = []
def add_frag(reads, gate): frags.append(dict(reads=reads, gate=gate, uses=0)); return len(frags) - 1
def use(fid, fn): frags[fid]['uses'] += 1; stream.append(('mfma', fn, fid))
def mf(text): stream.append(('mfma', (lambda buf: text), None))
def raw(*lines):
    for l in lines: stream.append(('raw', l))
def fill(*lines):
    for l in lines: stream.append(('fill', l))
def flush(): stream.append(('flush',))
def need(fid): stream.append(('need', fid))
def gate(name): stream.append(('gate', name))
def role(r, lines): stream.append(('role', r, lines))
def role2(lo, ly): stream.append(('role2', lo, ly))
def tsr():
    if TS: stream.append(('ts', ts_line()))
BAR = '  s_barrier'
def m_read(f):
    if f < 3: return []
    addr = (71-f)*1024
    if addr < HALF: return [f'  ds_read_b128 {{d4}}, v{vL0} offset:{addr}']
    return [f'  ds_read_b128 {{d4}}, v{vL1} offset:{addr-HALF}']
def n_addr(f): return NHI + 1024*f if f < 45 else (f-45)*1024
def n_read(f):
    if f < 45: return [f'  ds_read_b128 {{d4}}, v{vL1} offset:{1024*f}']
    return [f'  ds_read_b128 {{d4}}, v{vL0} offset:{(f-45)*1024}']
def dma_n(f0, fmax):
    lim = (fmax - f0) * 1024
    out = []
    if lim < 3072:
        out.append(f'  s_min_u32 s{sT[5]}, s{sW4}, {lim}'); src = sT[5]
    else: src = sW4
    out += [f'  s_add_u32 m0, s{src}, {n_addr(f0)}', f'  s_add_u32 s{sT[4]}, s{src}, {73728+f0*1024}',
            f'  buffer_load_dwordx4 v{vL0}, s[20:23], s{sT[4]} offen lds']
    return out
def dma_n_range(a, b):
    out = []; n = 0
    for f0 in range(a, b, 4): out += dma_n(f0, b-1); n += 1
    return out, n

def proj(B, rd, gate_of, post, hooks):
    for s in range(6):
        for ks in range(6):
            for hh in range(2):
                f = 12*s + 2*ks + hh
                fid = add_frag(rd(f), gate_of(f))
                if f in hooks: hooks[f](fid)
                for t in range(2):
                    acc = ACC + 16*(s % 2) + 8*t + 4*hh
                    use(fid, (lambda buf, acc=acc, t=t, ks=ks: mfma(acc, buf, B(t, ks), None if ks == 0 else acc)))
        flush()
        fill(*post(s))

gate('G0')
tsr()
def p1_post(s):
    out = []
    for t in range(2):
        acc = ACC + 16*(s % 2) + 8*t
        for r in range(4): out.append(f'  v_cvt_pk_bf16_f32 v{QP+24*t+4*s+r}, v{acc+2*r}, v{acc+2*r+1}')
    return out
hk = {}
for ks in range(6):
    hk[2*ks] = (lambda fid, ks=ks: raw(f'  s_waitcnt vmcnt({10-2*ks})'))
hk[31] = lambda fid: (need(fid), role('Y', [BAR]))
hk[61] = lambda fid: (need(fid), role('Y', [BAR]))
proj(lambda t, ks: XQ+24*t+4*ks, m_read, lambda f: 'G0', p1_post, hk)
flush()
raw(f'  v_add_u32 v{vL1}, {NHI}, v{vL0}')
for r in range(4): raw(f'  v_mov_b32 v{ONES+r}, 0x3f803f80')
tsr()
role2(sum((dma_x(G) for G in (9, 8, 7, 6, 5, 4)), []) + [BAR] + dma_x(3) + dma_x(2) + ['  s_waitcnt vmcnt(8)', BAR] + dma_x(1) + dma_x(0), [BAR])
if TS: raw('  s_memrealtime s[94:95]')
gate('S')
tsr()
etn = [0]
def sm_fill(t, jj):
    tmp = ET + 4*(etn[0] % 5); etn[0] += 1
    acc = SACC[t] + 4*jj
    for i in range(4): fill(f'  v_exp_f32 v{tmp+i}, v{acc+i}')
    for i in range(2): fill(f'  v_cvt_pk_bf16_f32 v{PREG[t]+2*jj+i}, v{tmp+2*i}, v{tmp+2*i+1}')
    stream.append(('tag', f'P{t}_{jj}'))
def sum_mfmas(t):
    stream.append(('flushto', f'P{t}_7'))
    for kt in range(4): mf(mfma(SUM[t], ONES, PREG[t]+4*kt, None if kt == 0 else SUM[t]))
LO, HI = (127-30) << 23, (127+30) << 23
def check(t):
    raw(f'  v_subrev_u32 v{RI[1]}, {LO}, v{SUM[t]}')
    raw(f'  s_mov_b32 s{sT[6]}, {HI-LO}')
    raw(f'  v_cmp_gt_u32 s[{sT[2]}:{sT[3]}], s{sT[6]}, v{RI[1]}')
    raw(f'  s_or_b64 s[{sT[2]}:{sT[3]}], s[{sT[2]}:{sT[3]}], s[{sINV[t]}:{sINV[t]+1}]')
    raw(f'  s_cmp_eq_u64 s[{sT[2]}:{sT[3]}], -1')
    raw(f'  s_cbranch_scc0 FB{t}')
    stream.append(('label', f'FBR{t}:'))
B4SLOT = int(OPT.get('b4', 5)); B5SLOT = int(OPT.get('b5', 5))
for slot in range(10):
    if slot == B4SLOT: role('O', ['  s_waitcnt vmcnt(0)', BAR])
    if slot == B5SLOT: role('Y', [BAR])
    for s in range(6):
        if slot == 9 and s == 3: sum_mfmas(0)
        if slot in sb: base, off = sb[slot][s % 2], 128*(s//2)
        else: base, off = (vSe, vSo)[s % 2], (slot-1)*ROW + 128*(s//2)
        fid = add_frag([f'  ds_read_b128 {{d4}}, v{base} offset:{off}'], 'S')
        for t in range(2):
            jj = slot - 2*t
            if 0 <= jj < 8:
                acc = SACC[t] + 4*jj
                use(fid, (lambda buf, acc=acc, t=t, s=s: mfma(acc, buf, QP+24*t+4*s, acc)))
        if slot == 2 and s == 0:
            pass
    for t in range(2):
        jj = slot - 2*t
        if 0 <= jj < 8: sm_fill(t, jj)
    if slot == 1:
        for k in range(4): fill(f'  v_add_u32 v{PB0[k]}, s{sD0}, v{vP[k]}')
        stream.append(('tag', 'PB0'))
    if slot == 7:
        stream.append(('flushto', 'PB0')); gate('PVA')
tsr()
check(0)
lastf = None
for st in range(5):
    if st == 1:
        sum_mfmas(1)
        for k in range(4): raw(f'  v_add_u32 v{PB9[k]}, s{sD9}, v{vP[k]}')
        gate('PV9')
        check(1)
    if st == 2:
        need(lastf); role('Y', [BAR])
    if st == 4:
        for ks in range(6):
            for hf in range(2):
                y = YACC[0][2*ks+hf]
                for i in range(2): fill(f'  v_cvt_pk_bf16_f32 v{YB[0][ks]+2*hf+i}, v{y+2*i}, v{y+2*i+1}')
    for ct in range(12):
        tl = [t for t in range(2) if 0 <= st - t < 4]
        b_, e_ = ct // 4, ct % 4
        rd = []
        for hf in range(2):
            slot = 2*st + hf
            if slot == 0: base, off = PB0[e_], 128*b_
            elif slot == 9: base, off = PB9[e_], 128*b_
            else: base, off = vP[e_], (slot-1)*ROW + 128*b_
            rd.append(f'  ds_read_b64_tr_b16 {{d{"lo" if hf == 0 else "hi"}}}, v{base} offset:{off}')
        fid = add_frag(rd, 'PV9' if st == 4 else 'PVA'); lastf = fid
        for t in tl:
            acc = YACC[t][ct]
            use(fid, (lambda buf, acc=acc, t=t, st=st: mfma(acc, buf, PREG[t]+4*(st-t), None if st == t else acc)))
n1a, c1a = dma_n_range(0, 45); n1b, c1b = dma_n_range(45, 55); n2, c2 = dma_n_range(55, 72)
role2([BAR] + n1a + n1b, [BAR])
tsr()
flush()
for ks in range(6):
    for hf in range(2):
        y = YACC[1][2*ks+hf]
        for i in range(2): raw(f'  v_cvt_pk_bf16_f32 v{YB[1][ks]+2*hf+i}, v{y+2*i}, v{y+2*i+1}')
for t in range(2): raw(f'  v_rcp_f32 v{RI[t]}, v{SUM[t]}')
role('O', ['  s_waitcnt vmcnt(0)', BAR] + n2)
gate('P4a')
tsr()
def p4_post(s):
    out = []
    for t in range(2):
        acc = ACC + 16*(s % 2) + 8*t
        o = OUTR + 8*(s % 2) + 4*t
        if 'nomul' not in OPT:
            for r in range(8): out.append(f'  v_mul_f32 v{acc+r}, v{acc+r}, v{RI[t]}')
        for r in range(4): out.append(f'  v_cvt_pk_bf16_f32 v{o+r}, v{acc+2*r}, v{acc+2*r+1}')
        if 'nost' not in OPT: out.append(f'  buffer_store_dwordx4 {V(o)}, v{vO[t]}, s[16:19], 0 offen offset:{64*s}{NTO}')
    return out
def hook7(fid): role('O', ['  s_waitcnt vmcnt(4)', BAR]); gate('P4b')
proj(lambda t, ks: YB[t][ks], n_read, lambda f: 'P4a' if f < 55 else 'P4b', p4_post, {36: hook7})
flush()
tsr()

def regs_of(tok):
    m = re.fullmatch(r'v\[(\d+):(\d+)\]', tok)
    if m: return list(range(int(m.group(1)), int(m.group(2)) + 1))
    m = re.fullmatch(r'-?v(\d+)', tok)
    return [int(m.group(1))] if m else []
def parse(line):
    p = line.strip().split(None, 1)
    op = p[0]; args = [a.strip().split()[0] for a in p[1].split(',')] if len(p) > 1 else []
    return op, args
clock = [0]
mf_w = {}; va_w = {}; tr_w = {}; mf_c = {}
def hazard(line):
    op, args = parse(line); need_ = 0
    allr = [r for a in args for r in regs_of(a)]
    if op.startswith('v_mfma'):
        src = [r for a in args[1:] for r in regs_of(a)]
        for r in src:
            if r in va_w: need_ = max(need_, 2 - (clock[0] - va_w[r] - 1))
        for r in regs_of(args[1]) + regs_of(args[2]):
            if r in mf_w: need_ = max(need_, 8 - (clock[0] - mf_w[r] - 1))
    elif op.startswith('v_') or op.startswith('buffer_') or op.startswith('ds_'):
        for r in allr:
            if r in mf_w: need_ = max(need_, 8 - (clock[0] - mf_w[r] - 1))
        if op.startswith('v_'):
            for r in regs_of(args[0]):
                if r in mf_c: need_ = max(need_, 3 - (clock[0] - mf_c[r] - 1))
            srcs = allr if op.startswith('v_permlane') else [r for a in args[1:] for r in regs_of(a)]
            for r in srcs:
                if op.startswith('v_permlane') and r in va_w: need_ = max(need_, 2 - (clock[0] - va_w[r] - 1))
                if r in tr_w: need_ = max(need_, 1 - (clock[0] - tr_w[r] - 1))
    return need_
def emit(line):
    n = hazard(line)
    if n > 0:
        e(f'  s_nop {n-1}'); clock[0] += n
    op, args = parse(line)
    e(line)
    if op.startswith('v_mfma'):
        for r in regs_of(args[0]): mf_w[r] = clock[0]
        for r in regs_of(args[3]): mf_c[r] = clock[0]
    elif op.startswith('v_'):
        d = regs_of(args[0]) + (regs_of(args[1]) if op.startswith('v_permlane') else [])
        for r in d:
            va_w[r] = clock[0]; tr_w.pop(r, None)
            if op in ('v_exp_f32', 'v_rcp_f32'): tr_w[r] = clock[0]
    if op == 's_nop': clock[0] += int(args[0])
    clock[0] += 1

gates = set(); nxt = 0; done_uses = [0]*len(frags)
ops = []; landed = -1; half = [None]
fq = []
def buf_of(f): return ABUF + 4*(f % NB)
def issue_one():
    global nxt
    while True:
        if half[0] is not None:
            emit(half[0]); ops.append(nxt); half[0] = None; nxt += 1; return True
        if nxt >= len(frags): return False
        fr = frags[nxt]
        if fr['gate'] not in gates: return False
        if nxt >= NB and done_uses[nxt-NB] < frags[nxt-NB]['uses']: return False
        if not fr['reads']:
            nxt += 1; continue
        if len(ops) + len(fr['reads']) > 15: return False
        b = buf_of(nxt)
        rs = [r.format(d4=V(b), dlo=V(b, 2), dhi=V(b+2, 2)) for r in fr['reads']]
        emit(rs[0]); ops.append(nxt)
        if len(rs) == 2: half[0] = rs[1]
        else: nxt += 1
        return True
def wait_for(f):
    global landed, ops
    if f is None or f <= landed: return
    while nxt <= f:
        n0 = nxt
        if not issue_one() and nxt == n0: raise RuntimeError(f'cannot issue frag {nxt}')
    if any(o <= f for o in ops):
        if f + 1 < nxt and sum(1 for o in ops if o > f + 1) >= PAIRMIN: f = f + 1
        n = sum(1 for o in ops if o > f)
        emit(f'  s_waitcnt lgkmcnt({n})')
        ops = [o for o in ops if o > f]
    landed = f
lab = [0]
BACKLOG = int(OPT.get('backlog', 6))
PAIRMIN = int(OPT.get('pairmin', 5))
STREAM_NEXT = {}
mi = [i for i, x in enumerate(stream) if x[0] == 'mfma']
for a_, b_ in zip(mi, mi[1:]): STREAM_NEXT[a_] = stream[b_][2]
for si, ent in enumerate(stream):
    k = ent[0]
    if k == 'raw': emit(ent[1])
    elif k == 'fill': fq.append(ent[1])
    elif k == 'flush':
        for l in fq:
            if not l.startswith('#'): emit(l)
        fq = []
    elif k == 'tag': fq.append('#' + ent[1])
    elif k == 'flushto':
        if '#' + ent[1] in fq:
            i = fq.index('#' + ent[1])
            for l in fq[:i]:
                if not l.startswith('#'): emit(l)
            fq = fq[i+1:]
    elif k == 'label': e(ent[1])
    elif k == 'ts':
        if half[0] is not None: issue_one()
        e(ent[1]); e('  s_waitcnt lgkmcnt(0)'); ops = []; landed = nxt - 1
    elif k == 'gate':
        gates.add(ent[1])
        while issue_one(): pass
    elif k == 'need': wait_for(ent[1])
    elif k == 'role':
        lab[0] += 1
        emit(f'  s_cbranch_vcc{"z" if ent[1] == "O" else "nz"} RL{lab[0]}')
        for l in ent[2]: e(l)
        e(f'RL{lab[0]}:')
    elif k == 'role2':
        lab[0] += 1
        emit(f'  s_cbranch_vccz RL{lab[0]}')
        for l in ent[1]: e(l)
        e(f'  s_branch RM{lab[0]}')
        e(f'RL{lab[0]}:')
        for l in ent[2]: e(l)
        e(f'RM{lab[0]}:')
    elif k == 'mfma':
        wait_for(ent[2])
        emit(ent[1](buf_of(ent[2]) if ent[2] is not None else None))
        if ent[2] is not None: done_uses[ent[2]] += 1
        slots = 2
        nf = STREAM_NEXT.get(si)
        if nf is not None and nf > landed: slots -= 1
        ahead = nxt - (ent[2] if ent[2] is not None else landed)
        if issue_one(): slots -= 1
        if (half[0] is not None or (slots > 0 and (not fq or ahead < 6))) and issue_one(): slots -= 1
        if sum(1 for l in fq if 'v_exp' in l) > BACKLOG: slots = max(slots, 2)
        while fq:
            if fq[0].startswith('#'): fq.pop(0); continue
            cost = 2 if 'v_exp' in fq[0] else 1
            if slots < cost or hazard(fq[0]) > 0: break
            emit(fq.pop(0)); slots -= cost
if TS:
    e('  s_waitcnt vmcnt(0)')
    e(ts_line()); e('  s_memrealtime s[98:99]')
    e('  s_waitcnt lgkmcnt(0)')
    e(f'  s_mov_b32 s22, {WS_BYTES}')
    e(f'  s_lshl_b32 s{sT[0]}, s2, 3'); e(f'  s_add_u32 s{sT[0]}, s{sT[0]}, s{sW}'); e(f'  s_lshl_b32 s{sT[0]}, s{sT[0]}, 6')
    e(f'  s_add_u32 s{sT[0]}, s{sT[0]}, 0x100000')
    e('  v_mov_b32 v1, 0')
    for i in range(nts[0]):
        if i == 0: e(f'  v_mov_b32 v2, s{sTS}')
        else:
            e(f'  s_sub_u32 s{sT[1]}, s{sTS+2*i}, s{sTS}'); e(f'  v_mov_b32 v2, s{sT[1]}')
        e(f'  buffer_store_dword v2, v1, s[20:23], s{sT[0]} offen offset:{4*i}')
    e('  v_mov_b32 v2, s94'); e(f'  buffer_store_dword v2, v1, s[20:23], s{sT[0]} offen offset:52')
    e('  v_mov_b32 v2, s96'); e('  v_mov_b32 v3, s98')
    e(f'  buffer_store_dwordx2 v[2:3], v1, s[20:23], s{sT[0]} offen offset:56')
    print('timestamps', nts[0])
e('MK_done:')
e('  s_endpgm')
for t in range(2):
    R = SACC[t]; vm, vt = RI[0], RI[1]
    e(f'FB{t}:')
    e('  s_nop 7')
    e(f'  v_max3_f32 v{vm}, v{R}, v{R+1}, v{R+2}')
    for k in range(3, 31, 2): e(f'  v_max3_f32 v{vm}, v{vm}, v{R+k}, v{R+k+1}')
    e(f'  s_mov_b32 s{sT[6]}, 0xff7fffff')
    e(f'  v_max3_f32 v{vm}, v{vm}, v{R+31}, s{sT[6]}')
    for sw in ('v_permlane32_swap_b32', 'v_permlane16_swap_b32'):
        e(f'  v_mov_b32 v{vt}, v{vm}'); e('  s_nop 1'); e(f'  {sw} v{vm}, v{vt}'); e('  s_nop 1')
        e(f'  v_max_f32 v{vm}, v{vm}, v{vt}')
    for k in range(32): e(f'  v_sub_f32 v{R+k}, v{R+k}, v{vm}')
    for k in range(32): e(f'  v_exp_f32 v{R+k}, v{R+k}')
    e('  s_nop 0')
    for k in range(16): e(f'  v_cvt_pk_bf16_f32 v{PREG[t]+k}, v{R+2*k}, v{R+2*k+1}')
    e('  s_nop 1')
    for kt in range(4): e(mfma(SUM[t], ONES, PREG[t]+4*kt, None if kt == 0 else SUM[t]))
    e('  s_nop 7')
    e(f'  s_branch FBR{t}')

e('.section .rodata,"a"')
for k, nv in (('prep_kernel', 152), ('main_kernel', 256)):
    e('.p2align 6'); e(f'.amdhsa_kernel {k}')
    e(f'  .amdhsa_next_free_vgpr {nv}'); e('  .amdhsa_next_free_sgpr 102'); e(f'  .amdhsa_accum_offset {nv}')
    e('  .amdhsa_group_segment_fixed_size 0'); e('  .amdhsa_kernarg_size 48'); e('  .amdhsa_user_sgpr_count 2')
    e('  .amdhsa_user_sgpr_kernarg_segment_ptr 1'); e('  .amdhsa_system_sgpr_workgroup_id_x 1')
    e('.end_amdhsa_kernel')
open(OUTF, 'w').write('\n'.join(L) + '\n')
```

```python
import sys, struct, math, re
OPT = dict(a.split('=') if '=' in a else (a, '1') for a in sys.argv[1:])
OUTF = OPT.get('out', 'standalone__neighborhood_nat__vision.s')
TS = 'ts' in OPT
L = []
def e(s): L.append(s)

X_BYTES = 19267584
WS_BYTES = 268435456
XB = 10240
ROW = 7680
HALF = 36864
NHI = XB + 14*ROW
SCALE = struct.unpack('<I', struct.pack('<f', (192 ** -0.5) * math.log2(math.e)))[0]
NT = '' if 'nont' in OPT else ' nt'
NTO = ' nt' if 'nto' in OPT else ''

hdr = open('standalone__neighborhood_nat__vision.s.ref').read().split('\n')
for ln in hdr:
    if ln.startswith('; @launch'): break
    e(ln)
e('; @launch kernel=prep_kernel grid=(144,1,1) block=(64,1,1) lds=0')
e('; @launch kernel=main_kernel grid=(256,1,1) block=(512,1,1) lds=163840')
e('.amdgcn_target "amdgcn-amd-amdhsa--gfx950"')
e('.text')

def srd(d, b, n):
    e(f'  s_mov_b32 s{d}, s{b}'); e(f'  s_and_b32 s{d+1}, s{b+1}, 0xffff')
    e(f'  s_mov_b32 s{d+2}, {n}'); e(f'  s_mov_b32 s{d+3}, 0x00020000')
def V(a, n=4): return f'v[{a}:{a+n-1}]'
def mfma(d, a, b, c):
    cs = '0' if c is None else V(c)
    return f'  v_mfma_f32_16x16x32_bf16 {V(d)}, {V(a)}, {V(b)}, {cs}'

e('.globl prep_kernel'); e('.p2align 8'); e('.type prep_kernel,@function'); e('prep_kernel:')
e('  s_cmp_ge_u32 s2, 144'); e('  s_cbranch_scc1 PR_done')
e('  s_load_dwordx4 s[4:7], s[0:1], 8')
e('  s_load_dwordx2 s[8:9], s[0:1], 40')
e('  s_cmp_ge_u32 s2, 72'); e('  s_cselect_b32 s24, 1, 0')
e('  s_mul_i32 s25, s24, 72'); e('  s_sub_u32 s25, s2, s25')
e('  s_mul_hi_u32 s26, s25, 0x15555556')
e('  s_mul_i32 s27, s26, 12'); e('  s_sub_u32 s27, s25, s27')
e('  s_and_b32 s28, s27, 1')
e('  s_lshr_b32 s27, s27, 1')
e('  v_and_b32 v1, 15, v0')
e('  v_lshrrev_b32 v2, 4, v0')
e('  v_lshrrev_b32 v3, 2, v1')
e('  v_and_b32 v4, 3, v1')
e('  s_lshl_b32 s29, s26, 5'); e('  s_lshl_b32 s30, s28, 2'); e('  s_add_u32 s29, s29, s30')
e('  v_lshl_add_u32 v5, v3, 3, v4'); e('  v_add_u32 v5, s29, v5')
e('  s_waitcnt lgkmcnt(0)')
srd(12, 4, 192*576*2); srd(16, 6, 192*192*2); srd(20, 8, 147456)
e('  s_cmp_eq_u32 s24, 1'); e('  s_cbranch_scc1 PR_n')
e('  s_lshl_b32 s29, s27, 5')
e('  v_lshl_add_u32 v6, v3, 3, v4'); e('  v_add_u32 v6, s29, v6')
e('  v_mul_u32_u24 v6, 1152, v6'); e('  v_lshl_add_u32 v6, v2, 4, v6')
e('  v_add_u32 v7, 4608, v6')
e('  v_mul_u32_u24 v8, 1152, v5'); e('  v_lshl_add_u32 v8, v2, 4, v8')
for kk in range(6):
    e(f'  buffer_load_dwordx4 {V(64+4*kk)}, v8, s[12:15], 0 offen offset:{384+64*kk}{NT}')
e(f'  s_mov_b32 s31, {SCALE}')
e('  s_sub_u32 s25, 71, s25'); e('  s_lshl_b32 s25, s25, 10')
e('  s_branch PR_go')
e('PR_n:')
e('  s_lshr_b32 s29, s27, 1'); e('  s_lshl_b32 s29, s29, 3')
e('  s_and_b32 s30, s27, 1'); e('  s_lshl_b32 s30, s30, 1')
e('  s_add_u32 s29, s29, s30'); e('  s_lshl_b32 s29, s29, 3')
e('  v_lshrrev_b32 v6, 1, v3'); e('  v_lshlrev_b32 v6, 5, v6')
e('  v_and_b32 v7, 1, v3'); e('  v_lshl_add_u32 v6, v7, 2, v6')
e('  v_add3_u32 v6, v6, v4, s29')
e('  v_mul_u32_u24 v6, 1152, v6'); e('  v_lshl_add_u32 v6, v2, 4, v6')
e('  v_add_u32 v6, 768, v6')
e('  v_add_u32 v7, 9216, v6')
e('  v_mul_u32_u24 v8, 3072, v2'); e('  v_lshl_add_u32 v8, v5, 1, v8')
for kk in range(6):
    e(f'  s_mov_b32 s32, {kk*32*384}')
    for jj in range(8):
        e(f'  buffer_load_ushort v{104+8*kk+jj}, v8, s[16:19], s32 offen offset:{jj*384}{NT}')
e('  s_mov_b32 s31, 1.0')
e('  s_lshl_b32 s25, s25, 10'); e('  s_add_u32 s25, s25, 73728')
e('PR_go:')
for kk in range(6):
    e(f'  buffer_load_dwordx4 {V(16+4*kk)}, v6, s[12:15], 0 offen offset:{64*kk}{NT}')
    e(f'  buffer_load_dwordx4 {V(40+4*kk)}, v7, s[12:15], 0 offen offset:{64*kk}{NT}')
e('  s_waitcnt vmcnt(0)')
e('  s_cmp_eq_u32 s24, 0'); e('  s_cbranch_scc1 PR_mm')
for r in range(24): e(f'  v_lshl_or_b32 v{64+r}, v{105+2*r}, 16, v{104+2*r}')
e('  s_nop 1')
e('PR_mm:')
for kk in range(6):
    e(mfma(88, 16+4*kk, 64+4*kk, None if kk == 0 else 88))
    e(mfma(92, 40+4*kk, 64+4*kk, None if kk == 0 else 92))
e('  s_nop 15')
for r in range(8): e(f'  v_mul_f32 v{88+r}, s31, v{88+r}')
for r in range(4): e(f'  v_cvt_pk_bf16_f32 v{96+r}, v{88+2*r}, v{89+2*r}')
e('  v_lshlrev_b32 v9, 4, v0')
e('  buffer_store_dwordx4 v[96:99], v9, s[20:23], s25 offen')
e('PR_done:')
e('  s_endpgm')

vL0, vL1 = 1, 2
vO = (5, 6)
vSe, vSo = 7, 8
vP = (9, 10, 11, 12)
vD = (13, 14, 3, 4)
SACC = (24, 56)
QP = 88
XQ = 136
ACC = 184
ABUF = 216; NB = 10
PREG = (136, 152)
YB = ([136, 140, 144, 148, 168, 172], [152, 156, 160, 164, 176, 180])
YACC = ([88+4*i for i in range(12)], [24+4*i for i in range(12)])
SUM = (184, 188)
ONES = 192
ET = 196
RI = (22, 23)
OUTR = 24
FLAG = 69*1024
sW, sU, sH, sPR, sPC, sKR, sKC, sXB, sGS, sGmin = range(24, 34)
sA2, sR0, sR9, sD0, sD9, sM0X, sM0X3, sW4 = range(34, 42)
sINV = (42, 44)
sT = list(range(46, 60))
sTS = 60

e('.globl main_kernel'); e('.p2align 8'); e('.type main_kernel,@function'); e('main_kernel:')
nts = [0]
def ts_line():
    s = f'  s_memtime s[{sTS+2*nts[0]}:{sTS+2*nts[0]+1}]'; nts[0] += 1; return s
e('  s_cmp_ge_u32 s2, 256'); e('  s_cbranch_scc1 MK_done')
if TS: e(ts_line()); e('  s_memrealtime s[96:97]')
e('  s_load_dwordx2 s[4:5], s[0:1], 0')
e('  s_load_dwordx2 s[6:7], s[0:1], 24')
e('  s_load_dwordx2 s[8:9], s[0:1], 40')
e('  v_lshrrev_b32 v15, 6, v0')
e('  v_and_b32 v0, 63, v0')
e(f'  v_readfirstlane_b32 s{sW}, v15')
e(f'  v_lshlrev_b32 v{vL0}, 4, v0')
e(f'  v_add_u32 v{vL1}, {HALF}, v{vL0}')
e(f'  s_bfe_u32 s{sPR}, s2, 0x10002')
e(f'  s_bfe_u32 s{sPC}, s2, 0x10001')
e(f'  s_and_b32 s{sKR}, s2, 1'); e(f'  s_lshl_b32 s{sKR}, s{sKR}, 2')
e(f'  s_lshr_b32 s{sT[0]}, s2, 6'); e(f'  s_add_u32 s{sKR}, s{sKR}, s{sT[0]}')
e(f'  s_bfe_u32 s{sKC}, s2, 0x30003')
e(f'  s_mul_i32 s{sKR}, s{sKR}, 14'); e(f'  s_add_i32 s{sKR}, s{sKR}, -6')
e(f'  s_mul_i32 s{sKC}, s{sKC}, 14'); e(f'  s_add_i32 s{sKC}, s{sKC}, -6')
e(f'  s_lshr_b32 s{sU}, s{sW}, 1'); e(f'  s_add_u32 s{sU}, s{sU}, 2'); e(f'  s_and_b32 s{sU}, s{sU}, 3')
e(f'  s_and_b32 s{sH}, s{sW}, 1')
e(f'  s_and_b32 s{sW4}, s{sW}, 3'); e(f'  s_lshl_b32 s{sW4}, s{sW4}, 10')
vn, vg, vqr, vqc = 15, 16, 17, 18
e(f'  v_and_b32 v{vn}, 15, v0'); e(f'  v_lshrrev_b32 v{vg}, 4, v0')
e(f'  v_lshrrev_b32 v{vqr}, 3, v{vn}'); e(f'  v_and_b32 v{vqc}, 7, v{vn}')
sMR, sAR, sMC, sAC = sT[10], sT[11], sT[12], sT[13]
e(f'  s_sub_u32 s{sMR}, 0, s{sPR}'); e(f'  s_mul_i32 s{sAR}, s{sPR}, 224')
e(f'  s_sub_u32 s{sMC}, 0, s{sPC}'); e(f'  s_mul_i32 s{sAC}, s{sPC}, 224')
e(f'  s_mul_i32 s{sT[0]}, s{sH}, 7'); e(f'  s_add_i32 s{sT[0]}, s{sT[0]}, s{sKC}')
e(f'  v_add_u32 v19, s{sT[0]}, v{vqc}')
e(f'  v_max_i32 v20, 0, v19')
e(f'  v_add3_u32 v19, v19, v20, 6')
e(f'  v_xor_b32 v19, s{sMC}, v19'); e(f'  v_add_u32 v19, s{sAC}, v19')
e(f'  v_subrev_u32 v20, s{sKC}, v20')
e(f'  v_mul_u32_u24 v19, 384, v19'); e(f'  v_lshl_add_u32 v19, v{vg}, 4, v19')
e(f'  s_lshl_b32 s{sT[0]}, s{sU}, 2')
e(f'  s_mov_b32 s{sT[1]}, 86016')
e(f'  v_cmp_gt_u32 s[{sT[2]}:{sT[3]}], 7, v{vqc}')
assert sT[2] % 2 == 0
for t in range(2):
    e(f'  v_add_u32 v23, s{sT[0]}, v{vqr}')
    if t: e(f'  v_add_u32 v23, 2, v23')
    e(f'  v_add_u32 v{vO[t]}, s{sKR}, v23')
    e(f'  v_max_i32 v{21+t}, 0, v{vO[t]}')
    e(f'  v_add3_u32 v{vO[t]}, v{vO[t]}, v{21+t}, 6')
    e(f'  v_xor_b32 v{vO[t]}, s{sMR}, v{vO[t]}'); e(f'  v_add_u32 v{vO[t]}, s{sAR}, v{vO[t]}')
    e(f'  v_subrev_u32 v{21+t}, s{sKR}, v{21+t}')
    e(f'  v_cmp_gt_u32 vcc, 14, v23')
    e(f'  v_mad_u32_u24 v{vO[t]}, v{vO[t]}, s{sT[1]}, v19')
    e(f'  s_and_b64 vcc, vcc, s[{sT[2]}:{sT[3]}]')
    e(f'  v_mov_b32 v23, 0x80000000')
    e(f'  s_nop 0')
    e(f'  v_cndmask_b32 v{vO[t]}, v23, v{vO[t]}, vcc')
    e(f'  v_cndmask_b32 v{21+t}, v23, v{21+t}, vcc')
for t in range(2): e(f'  v_cmp_gt_i32 s[{sINV[t]}:{sINV[t]+1}], 0, v{vO[t]}')
e(f'  v_mov_b32 v23, {FLAG}'); e('  v_mov_b32 v19, 0'); e('  ds_write_b32 v23, v19')
e('  s_waitcnt lgkmcnt(0)')
e('  s_barrier')
srd(20, 8, 147456)
srd(12, 4, X_BYTES)
def q_loads():
    for s_ in range(6):
        for t in range(2):
            e(f'  buffer_load_dwordx4 {V(XQ+24*t+4*s_)}, v{vO[t]}, s[12:15], 0 offen offset:{64*s_}{NT}')
def m01_loads():
    e(f'  s_mov_b32 s{sT[4]}, {69*1024}')
    e(f'  buffer_load_dwordx4 {V(ABUF)}, v{vL0}, s[20:23], s{sT[4]} offen offset:2048')
    e(f'  buffer_load_dwordx4 {V(ABUF+4)}, v{vL0}, s[20:23], s{sT[4]} offen offset:1024')
    e(f'  buffer_load_dwordx4 {V(ABUF+8)}, v{vL0}, s[20:23], s{sT[4]} offen')
e(f'  s_cmp_ge_u32 s{sW}, 4'); e('  s_cbranch_scc1 MK_noM')
for i in reversed(range(18)):
    if i == 17:
        e(f'  s_mov_b32 s{sT[4]}, {i*4096}')
    else: e(f'  s_add_u32 s{sT[4]}, s{sW4}, {i*4096}')
    e(f'  s_mov_b32 m0, s{sT[4]}'); e('  s_nop 0')
    e(f'  buffer_load_dwordx4 v{vL0}, s[20:23], s{sT[4]} offen lds')
e('MK_noM:')
m01_loads(); q_loads()
e(f'  s_lshl_b32 s{sT[0]}, s{sKR}, 1')
e(f'  s_sub_i32 s{sT[1]}, 221, s{sT[0]}')
e(f'  s_cmp_eq_u32 s{sPR}, 0'); e(f'  s_cselect_b32 s{sXB}, s{sT[0]}, s{sT[1]}')
e(f'  s_cselect_b32 s{sGS}, 1, -1'); e(f'  s_mul_i32 s{sGS}, s{sGS}, 344064')
e(f'  s_mul_i32 s{sXB}, s{sXB}, 86016')
e(f'  s_cmp_lt_i32 s{sKR}, 0'); e(f'  s_cselect_b32 s{sGmin}, 3, 0')
e(f'  s_lshl_b32 s{sM0X}, s{sW4}, 2')
e(f'  s_add_u32 s{sM0X3}, s{sM0X}, 3072'); e(f'  s_min_u32 s{sM0X3}, s{sM0X3}, {14*1024}')
e(f'  s_mul_i32 s{sT[2]}, s{sPR}, 172032')
e(f'  s_sub_u32 s{sT[3]}, 172032, s{sT[2]}')
for b in range(960): assert (b * 2731) >> 16 == b // 24
for j in range(4):
    d = vD[j]
    if j < 3:
        e(f'  s_lshr_b32 s{sT[0]}, s{sM0X}, 4'); e(f'  s_add_u32 s{sT[0]}, s{sT[0]}, {64*j}')
    else: e(f'  s_lshr_b32 s{sT[0]}, s{sM0X3}, 4')
    e(f'  v_add_u32 v23, s{sT[0]}, v0')
    e(f'  v_mul_u32_u24 v{d}, 2731, v23'); e(f'  v_lshrrev_b32 v{d}, 16, v{d}')
    e(f'  v_mul_u32_u24 v19, 24, v{d}'); e(f'  v_sub_u32 v23, v23, v19')
    e(f'  v_cmp_le_u32 vcc, 20, v{d}')
    e(f'  v_subrev_u32 v19, 20, v{d}')
    e(f'  v_mov_b32 v232, s{sT[2]}')
    e(f'  v_cndmask_b32 v{d}, v{d}, v19, vcc')
    e(f'  v_mov_b32 v233, s{sT[3]}')
    e(f'  v_cndmask_b32 v232, v232, v233, vcc')
    e(f'  v_bfe_u32 v19, v{d}, 1, 3')
    e(f'  v_xor_b32 v23, v23, v19')
    e(f'  v_lshl_add_u32 v23, v23, 4, v232')
    e(f'  v_add_u32 v{d}, s{sKC}, v{d}'); e(f'  v_max_i32 v{d}, 0, v{d}'); e(f'  v_lshlrev_b32 v{d}, 1, v{d}')
    e(f'  v_xor_b32 v{d}, s{sMC}, v{d}'); e(f'  v_add_u32 v{d}, s{sAC}, v{d}')
    e(f'  v_mul_u32_u24 v{d}, 384, v{d}'); e(f'  v_add_u32 v{d}, v{d}, v23')
e(f'  s_add_u32 s{sM0X}, s{sM0X}, {XB}'); e(f'  s_add_u32 s{sM0X3}, s{sM0X3}, {XB}')
def dma_x(G):
    out = []
    if G < 3:
        out.append(f'  s_max_u32 s{sT[4]}, s{sGmin}, {G}'); out.append(f'  s_mul_i32 s{sT[4]}, s{sT[4]}, s{sGS}')
    else: out.append(f'  s_mul_i32 s{sT[4]}, s{sGS}, {G}')
    out.append(f'  s_add_i32 s{sT[4]}, s{sT[4]}, s{sXB}')
    for j in range(4):
        if j < 3: out.append(f'  s_add_u32 m0, s{sM0X}, {G*15360 + j*1024}')
        else: out.append(f'  s_add_u32 m0, s{sM0X3}, {G*15360}')
        out.append(f'  s_nop 0')
        out.append(f'  buffer_load_dwordx4 v{vD[j]}, s[12:15], s{sT[4]} offen{NT} lds')
    return out
srd(16, 6, X_BYTES)
def srel(dst, add):
    e(f'  s_lshl_b32 s{dst}, s{sU}, 2'); e(f'  s_add_u32 s{dst}, s{dst}, {add}'); e(f'  s_min_u32 s{dst}, s{dst}, 13')
    e(f'  s_add_i32 s{dst}, s{dst}, s{sKR}'); e(f'  s_max_i32 s{dst}, s{dst}, 0'); e(f'  s_sub_i32 s{dst}, s{dst}, s{sKR}')
srel(sT[0], 0); srel(sA2, 2)
e(f'  s_sub_u32 s{sT[0]}, s{sA2}, s{sT[0]}')
e(f'  s_cmp_eq_u32 s{sT[0]}, 2'); e(f'  s_cselect_b32 s{sD0}, -1, 7')
e(f'  s_cmp_le_u32 s{sA2}, 12'); e(f'  s_cselect_b32 s{sD9}, 8, 0')
e(f'  s_sub_u32 s{sA2}, s{sA2}, 1')
for (sr, sd) in ((sR0, sD0), (sR9, sD9)):
    e(f'  s_add_i32 s{sr}, s{sA2}, s{sd}'); e(f'  s_mul_i32 s{sd}, s{sd}, {ROW}')
e(f'  s_lshl_b32 s{sT[1]}, s{sH}, 2')
e(f'  s_mul_i32 s{sT[0]}, s{sA2}, {ROW}'); e(f'  s_add_u32 s{sT[0]}, s{sT[0]}, {XB}')
e(f'  v_add_u32 v19, s{sT[1]}, v{vn}')
e(f'  v_bfe_u32 v23, v19, 1, 3'); e(f'  v_xor_b32 v23, v23, v{vg}')
e(f'  v_mul_u32_u24 v19, 384, v19'); e(f'  v_lshl_add_u32 v19, v23, 4, v19')
e(f'  v_add_u32 v{vSe}, s{sT[0]}, v19'); e(f'  v_xor_b32 v{vSo}, 64, v{vSe}')
e(f'  v_lshrrev_b32 v19, 2, v{vn}'); e(f'  v_lshl_add_u32 v19, v{vg}, 2, v19'); e(f'  v_add_u32 v19, s{sT[1]}, v19')
e(f'  v_bfe_u32 v23, v19, 1, 3')
e(f'  v_and_b32 v{vP[1]}, 2, v{vn}'); e(f'  v_lshlrev_b32 v{vP[1]}, 1, v{vP[1]}'); e(f'  v_xor_b32 v23, v23, v{vP[1]}')
e(f'  v_mul_u32_u24 v19, 384, v19'); e(f'  v_lshl_add_u32 v19, v23, 4, v19')
e(f'  v_and_b32 v23, 1, v{vn}'); e(f'  v_lshl_add_u32 v19, v23, 3, v19')
e(f'  v_add_u32 v{vP[0]}, s{sT[0]}, v19')
for k in range(1, 4): e(f'  v_xor_b32 v{vP[k]}, {16*k}, v{vP[0]}')
e('  v_mov_b32 v236, 0xff800000')
e(f'  v_lshl_add_u32 v19, v{vg}, 2, s{sT[1]}'); e('  v_sub_u32 v19, v19, v20')
for i in range(4):
    e(f'  v_add_u32 v{237+i}, {i}, v19')
for i in range(4):
    e(f'  v_cmp_gt_u32 s[{sT[2+2*i]}:{sT[3+2*i]}], 7, v{237+i}')
for i in range(4):
    e(f'  v_cndmask_b32 v{232+i}, v236, 0, s[{sT[2+2*i]}:{sT[3+2*i]}]')
for t in range(2):
    for j4 in range(2):
        for jj in range(4*j4, 4*j4+4):
            slot = jj + 2*t; r = 237 + jj % 4
            if slot == 0: e(f'  v_sub_u32 v{r}, s{sR0}, v{21+t}')
            elif slot == 9: e(f'  v_sub_u32 v{r}, s{sR9}, v{21+t}')
            else:
                e(f'  s_add_u32 s{sT[0]}, s{sA2}, {slot-1}'); e(f'  v_sub_u32 v{r}, s{sT[0]}, v{21+t}')
        for jj in range(4*j4, 4*j4+4):
            q = jj % 4
            e(f'  v_cmp_gt_u32 s[{sT[2+2*q]}:{sT[3+2*q]}], 7, v{237+q}')
        for jj in range(4*j4, 4*j4+4):
            q = jj % 4
            for i in range(4):
                e(f'  v_cndmask_b32 v{SACC[t]+4*jj+i}, v236, v{232+i}, s[{sT[2+2*q]}:{sT[3+2*q]}]')
sb = {9: (15, 16), 0: (17, 18)}
PB0 = (17, 18, 19, 20); PB9 = (15, 16, 21, 0)
for sl, sd in ((9, sD9), (0, sD0)):
    e(f'  v_add_u32 v{sb[sl][0]}, s{sd}, v{vSe}'); e(f'  v_add_u32 v{sb[sl][1]}, s{sd}, v{vSo}')
e(f'  s_cmp_lt_u32 s{sW}, 4'); e('  s_cselect_b64 vcc, -1, 0')
if TS: e(ts_line())
e(f'  v_mov_b32 v23, {FLAG}')
e('  s_cbranch_vccz MK_p0')
e('  s_waitcnt vmcnt(15)')
e('  v_mov_b32 v19, 1')
e('  s_mov_b64 exec, 1'); e('  ds_add_u32 v23, v19'); e('  s_mov_b64 exec, -1')
e('MK_p0:')
e('  ds_read_b32 v19, v23'); e('  s_waitcnt lgkmcnt(0)')
e(f'  v_readfirstlane_b32 s{sT[0]}, v19'); e(f'  s_cmp_lt_u32 s{sT[0]}, 4'); e('  s_cbranch_scc1 MK_p0')

stream = []; frags = []
def add_frag(reads, gate): frags.append(dict(reads=reads, gate=gate, uses=0)); return len(frags) - 1
def use(fid, fn): frags[fid]['uses'] += 1; stream.append(('mfma', fn, fid))
def mf(text): stream.append(('mfma', (lambda buf: text), None))
def raw(*lines):
    for l in lines: stream.append(('raw', l))
def fill(*lines):
    for l in lines: stream.append(('fill', l))
def flush(): stream.append(('flush',))
def need(fid): stream.append(('need', fid))
def gate(name): stream.append(('gate', name))
def role(r, lines): stream.append(('role', r, lines))
def role2(lo, ly): stream.append(('role2', lo, ly))
def tsr():
    if TS: stream.append(('ts', ts_line()))
BAR = '  s_barrier'
def m_read(f):
    if f < 3: return []
    addr = (71-f)*1024
    if addr < HALF: return [f'  ds_read_b128 {{d4}}, v{vL0} offset:{addr}']
    return [f'  ds_read_b128 {{d4}}, v{vL1} offset:{addr-HALF}']
def n_addr(f): return NHI + 1024*f if f < 45 else (f-45)*1024
def n_read(f):
    if f < 45: return [f'  ds_read_b128 {{d4}}, v{vL1} offset:{1024*f}']
    return [f'  ds_read_b128 {{d4}}, v{vL0} offset:{(f-45)*1024}']
def dma_n(f0, fmax):
    lim = (fmax - f0) * 1024
    out = []
    if lim < 3072:
        out.append(f'  s_min_u32 s{sT[5]}, s{sW4}, {lim}'); src = sT[5]
    else: src = sW4
    out += [f'  s_add_u32 m0, s{src}, {n_addr(f0)}', f'  s_add_u32 s{sT[4]}, s{src}, {73728+f0*1024}',
            f'  buffer_load_dwordx4 v{vL0}, s[20:23], s{sT[4]} offen lds']
    return out
def dma_n_range(a, b):
    out = []; n = 0
    for f0 in range(a, b, 4): out += dma_n(f0, b-1); n += 1
    return out, n

def proj(B, rd, gate_of, post, hooks):
    for s in range(6):
        for ks in range(6):
            for hh in range(2):
                f = 12*s + 2*ks + hh
                fid = add_frag(rd(f), gate_of(f))
                if f in hooks: hooks[f](fid)
                for t in range(2):
                    acc = ACC + 16*(s % 2) + 8*t + 4*hh
                    use(fid, (lambda buf, acc=acc, t=t, ks=ks: mfma(acc, buf, B(t, ks), None if ks == 0 else acc)))
        flush()
        fill(*post(s))

gate('G0')
tsr()
def p1_post(s):
    out = []
    for t in range(2):
        acc = ACC + 16*(s % 2) + 8*t
        for r in range(4): out.append(f'  v_cvt_pk_bf16_f32 v{QP+24*t+4*s+r}, v{acc+2*r}, v{acc+2*r+1}')
    return out
hk = {}
for ks in range(6):
    hk[2*ks] = (lambda fid, ks=ks: raw(f'  s_waitcnt vmcnt({10-2*ks})'))
hk[31] = lambda fid: (need(fid), role('Y', [BAR]))
hk[61] = lambda fid: (need(fid), role('Y', [BAR]))
proj(lambda t, ks: XQ+24*t+4*ks, m_read, lambda f: 'G0', p1_post, hk)
flush()
raw(f'  v_add_u32 v{vL1}, {NHI}, v{vL0}')
for r in range(4): raw(f'  v_mov_b32 v{ONES+r}, 0x3f803f80')
tsr()
role2(sum((dma_x(G) for G in (9, 8, 7, 6, 5, 4)), []) + [BAR] + dma_x(3) + dma_x(2) + ['  s_waitcnt vmcnt(8)', BAR] + dma_x(1) + dma_x(0), [BAR])
if TS: raw('  s_memrealtime s[94:95]')
gate('S')
tsr()
etn = [0]
def sm_fill(t, jj):
    tmp = ET + 4*(etn[0] % 5); etn[0] += 1
    acc = SACC[t] + 4*jj
    for i in range(4): fill(f'  v_exp_f32 v{tmp+i}, v{acc+i}')
    for i in range(2): fill(f'  v_cvt_pk_bf16_f32 v{PREG[t]+2*jj+i}, v{tmp+2*i}, v{tmp+2*i+1}')
    stream.append(('tag', f'P{t}_{jj}'))
def sum_mfmas(t):
    stream.append(('flushto', f'P{t}_7'))
    for kt in range(4): mf(mfma(SUM[t], ONES, PREG[t]+4*kt, None if kt == 0 else SUM[t]))
LO, HI = (127-30) << 23, (127+30) << 23
def check(t):
    raw(f'  v_subrev_u32 v{RI[1]}, {LO}, v{SUM[t]}')
    raw(f'  s_mov_b32 s{sT[6]}, {HI-LO}')
    raw(f'  v_cmp_gt_u32 s[{sT[2]}:{sT[3]}], s{sT[6]}, v{RI[1]}')
    raw(f'  s_or_b64 s[{sT[2]}:{sT[3]}], s[{sT[2]}:{sT[3]}], s[{sINV[t]}:{sINV[t]+1}]')
    raw(f'  s_cmp_eq_u64 s[{sT[2]}:{sT[3]}], -1')
    raw(f'  s_cbranch_scc0 FB{t}')
    stream.append(('label', f'FBR{t}:'))
B4SLOT = int(OPT.get('b4', 5)); B5SLOT = int(OPT.get('b5', 5))
for slot in range(10):
    if slot == B4SLOT: role('O', ['  s_waitcnt vmcnt(0)', BAR])
    if slot == B5SLOT: role('Y', [BAR])
    for s in range(6):
        if slot == 9 and s == 3: sum_mfmas(0)
        if slot in sb: base, off = sb[slot][s % 2], 128*(s//2)
        else: base, off = (vSe, vSo)[s % 2], (slot-1)*ROW + 128*(s//2)
        fid = add_frag([f'  ds_read_b128 {{d4}}, v{base} offset:{off}'], 'S')
        for t in range(2):
            jj = slot - 2*t
            if 0 <= jj < 8:
                acc = SACC[t] + 4*jj
                use(fid, (lambda buf, acc=acc, t=t, s=s: mfma(acc, buf, QP+24*t+4*s, acc)))
        if slot == 2 and s == 0:
            pass
    for t in range(2):
        jj = slot - 2*t
        if 0 <= jj < 8: sm_fill(t, jj)
    if slot == 1:
        for k in range(4): fill(f'  v_add_u32 v{PB0[k]}, s{sD0}, v{vP[k]}')
        stream.append(('tag', 'PB0'))
    if slot == 7:
        stream.append(('flushto', 'PB0')); gate('PVA')
tsr()
check(0)
lastf = None
for st in range(5):
    if st == 1:
        sum_mfmas(1)
        for k in range(4): raw(f'  v_add_u32 v{PB9[k]}, s{sD9}, v{vP[k]}')
        gate('PV9')
        check(1)
    if st == 2:
        need(lastf); role('Y', [BAR])
    if st == 4:
        for ks in range(6):
            for hf in range(2):
                y = YACC[0][2*ks+hf]
                for i in range(2): fill(f'  v_cvt_pk_bf16_f32 v{YB[0][ks]+2*hf+i}, v{y+2*i}, v{y+2*i+1}')
    for ct in range(12):
        tl = [t for t in range(2) if 0 <= st - t < 4]
        b_, e_ = ct // 4, ct % 4
        rd = []
        for hf in range(2):
            slot = 2*st + hf
            if slot == 0: base, off = PB0[e_], 128*b_
            elif slot == 9: base, off = PB9[e_], 128*b_
            else: base, off = vP[e_], (slot-1)*ROW + 128*b_
            rd.append(f'  ds_read_b64_tr_b16 {{d{"lo" if hf == 0 else "hi"}}}, v{base} offset:{off}')
        fid = add_frag(rd, 'PV9' if st == 4 else 'PVA'); lastf = fid
        for t in tl:
            acc = YACC[t][ct]
            use(fid, (lambda buf, acc=acc, t=t, st=st: mfma(acc, buf, PREG[t]+4*(st-t), None if st == t else acc)))
n1a, c1a = dma_n_range(0, 45); n1b, c1b = dma_n_range(45, 55); n2, c2 = dma_n_range(55, 72)
role2([BAR] + n1a + n1b, [BAR])
tsr()
flush()
for ks in range(6):
    for hf in range(2):
        y = YACC[1][2*ks+hf]
        for i in range(2): raw(f'  v_cvt_pk_bf16_f32 v{YB[1][ks]+2*hf+i}, v{y+2*i}, v{y+2*i+1}')
for t in range(2): raw(f'  v_rcp_f32 v{RI[t]}, v{SUM[t]}')
role('O', ['  s_waitcnt vmcnt(0)', BAR] + n2)
gate('P4a')
tsr()
def p4_post(s):
    out = []
    for t in range(2):
        acc = ACC + 16*(s % 2) + 8*t
        o = OUTR + 8*(s % 2) + 4*t
        if 'nomul' not in OPT:
            for r in range(8): out.append(f'  v_mul_f32 v{acc+r}, v{acc+r}, v{RI[t]}')
        for r in range(4): out.append(f'  v_cvt_pk_bf16_f32 v{o+r}, v{acc+2*r}, v{acc+2*r+1}')
        if 'nost' not in OPT: out.append(f'  buffer_store_dwordx4 {V(o)}, v{vO[t]}, s[16:19], 0 offen offset:{64*s}{NTO}')
    return out
def hook7(fid): role('O', ['  s_waitcnt vmcnt(4)', BAR]); gate('P4b')
proj(lambda t, ks: YB[t][ks], n_read, lambda f: 'P4a' if f < 55 else 'P4b', p4_post, {36: hook7})
flush()
tsr()

def regs_of(tok):
    m = re.fullmatch(r'v\[(\d+):(\d+)\]', tok)
    if m: return list(range(int(m.group(1)), int(m.group(2)) + 1))
    m = re.fullmatch(r'-?v(\d+)', tok)
    return [int(m.group(1))] if m else []
def parse(line):
    p = line.strip().split(None, 1)
    op = p[0]; args = [a.strip().split()[0] for a in p[1].split(',')] if len(p) > 1 else []
    return op, args
clock = [0]
mf_w = {}; va_w = {}; tr_w = {}; mf_c = {}
def hazard(line):
    op, args = parse(line); need_ = 0
    allr = [r for a in args for r in regs_of(a)]
    if op.startswith('v_mfma'):
        src = [r for a in args[1:] for r in regs_of(a)]
        for r in src:
            if r in va_w: need_ = max(need_, 2 - (clock[0] - va_w[r] - 1))
        for r in regs_of(args[1]) + regs_of(args[2]):
            if r in mf_w: need_ = max(need_, 8 - (clock[0] - mf_w[r] - 1))
    elif op.startswith('v_') or op.startswith('buffer_') or op.startswith('ds_'):
        for r in allr:
            if r in mf_w: need_ = max(need_, 8 - (clock[0] - mf_w[r] - 1))
        if op.startswith('v_'):
            for r in regs_of(args[0]):
                if r in mf_c: need_ = max(need_, 3 - (clock[0] - mf_c[r] - 1))
            srcs = allr if op.startswith('v_permlane') else [r for a in args[1:] for r in regs_of(a)]
            for r in srcs:
                if op.startswith('v_permlane') and r in va_w: need_ = max(need_, 2 - (clock[0] - va_w[r] - 1))
                if r in tr_w: need_ = max(need_, 1 - (clock[0] - tr_w[r] - 1))
    return need_
def emit(line):
    n = hazard(line)
    if n > 0:
        e(f'  s_nop {n-1}'); clock[0] += n
    op, args = parse(line)
    e(line)
    if op.startswith('v_mfma'):
        for r in regs_of(args[0]): mf_w[r] = clock[0]
        for r in regs_of(args[3]): mf_c[r] = clock[0]
    elif op.startswith('v_'):
        d = regs_of(args[0]) + (regs_of(args[1]) if op.startswith('v_permlane') else [])
        for r in d:
            va_w[r] = clock[0]; tr_w.pop(r, None)
            if op in ('v_exp_f32', 'v_rcp_f32'): tr_w[r] = clock[0]
    if op == 's_nop': clock[0] += int(args[0])
    clock[0] += 1

gates = set(); nxt = 0; done_uses = [0]*len(frags)
ops = []; landed = -1; half = [None]
fq = []
def buf_of(f): return ABUF + 4*(f % NB)
def issue_one():
    global nxt
    while True:
        if half[0] is not None:
            emit(half[0]); ops.append(nxt); half[0] = None; nxt += 1; return True
        if nxt >= len(frags): return False
        fr = frags[nxt]
        if fr['gate'] not in gates: return False
        if nxt >= NB and done_uses[nxt-NB] < frags[nxt-NB]['uses']: return False
        if not fr['reads']:
            nxt += 1; continue
        if len(ops) + len(fr['reads']) > 15: return False
        b = buf_of(nxt)
        rs = [r.format(d4=V(b), dlo=V(b, 2), dhi=V(b+2, 2)) for r in fr['reads']]
        emit(rs[0]); ops.append(nxt)
        if len(rs) == 2: half[0] = rs[1]
        else: nxt += 1
        return True
def wait_for(f):
    global landed, ops
    if f is None or f <= landed: return
    while nxt <= f:
        n0 = nxt
        if not issue_one() and nxt == n0: raise RuntimeError(f'cannot issue frag {nxt}')
    if any(o <= f for o in ops):
        if f + 1 < nxt and sum(1 for o in ops if o > f + 1) >= PAIRMIN: f = f + 1
        n = sum(1 for o in ops if o > f)
        emit(f'  s_waitcnt lgkmcnt({n})')
        ops = [o for o in ops if o > f]
    landed = f
lab = [0]
BACKLOG = int(OPT.get('backlog', 6))
PAIRMIN = int(OPT.get('pairmin', 5))
STREAM_NEXT = {}
mi = [i for i, x in enumerate(stream) if x[0] == 'mfma']
for a_, b_ in zip(mi, mi[1:]): STREAM_NEXT[a_] = stream[b_][2]
for si, ent in enumerate(stream):
    k = ent[0]
    if k == 'raw': emit(ent[1])
    elif k == 'fill': fq.append(ent[1])
    elif k == 'flush':
        for l in fq:
            if not l.startswith('#'): emit(l)
        fq = []
    elif k == 'tag': fq.append('#' + ent[1])
    elif k == 'flushto':
        if '#' + ent[1] in fq:
            i = fq.index('#' + ent[1])
            for l in fq[:i]:
                if not l.startswith('#'): emit(l)
            fq = fq[i+1:]
    elif k == 'label': e(ent[1])
    elif k == 'ts':
        if half[0] is not None: issue_one()
        e(ent[1]); e('  s_waitcnt lgkmcnt(0)'); ops = []; landed = nxt - 1
    elif k == 'gate':
        gates.add(ent[1])
        while issue_one(): pass
    elif k == 'need': wait_for(ent[1])
    elif k == 'role':
        lab[0] += 1
        emit(f'  s_cbranch_vcc{"z" if ent[1] == "O" else "nz"} RL{lab[0]}')
        for l in ent[2]: e(l)
        e(f'RL{lab[0]}:')
    elif k == 'role2':
        lab[0] += 1
        emit(f'  s_cbranch_vccz RL{lab[0]}')
        for l in ent[1]: e(l)
        e(f'  s_branch RM{lab[0]}')
        e(f'RL{lab[0]}:')
        for l in ent[2]: e(l)
        e(f'RM{lab[0]}:')
    elif k == 'mfma':
        wait_for(ent[2])
        emit(ent[1](buf_of(ent[2]) if ent[2] is not None else None))
        if ent[2] is not None: done_uses[ent[2]] += 1
        slots = 2
        nf = STREAM_NEXT.get(si)
        if nf is not None and nf > landed: slots -= 1
        ahead = nxt - (ent[2] if ent[2] is not None else landed)
        if issue_one(): slots -= 1
        if (half[0] is not None or (slots > 0 and (not fq or ahead < 6))) and issue_one(): slots -= 1
        if sum(1 for l in fq if 'v_exp' in l) > BACKLOG: slots = max(slots, 2)
        while fq:
            if fq[0].startswith('#'): fq.pop(0); continue
            cost = 2 if 'v_exp' in fq[0] else 1
            if slots < cost or hazard(fq[0]) > 0: break
            emit(fq.pop(0)); slots -= cost
if TS:
    e('  s_waitcnt vmcnt(0)')
    e(ts_line()); e('  s_memrealtime s[98:99]')
    e('  s_waitcnt lgkmcnt(0)')
    e(f'  s_mov_b32 s22, {WS_BYTES}')
    e(f'  s_lshl_b32 s{sT[0]}, s2, 3'); e(f'  s_add_u32 s{sT[0]}, s{sT[0]}, s{sW}'); e(f'  s_lshl_b32 s{sT[0]}, s{sT[0]}, 6')
    e(f'  s_add_u32 s{sT[0]}, s{sT[0]}, 0x100000')
    e('  v_mov_b32 v1, 0')
    for i in range(nts[0]):
        if i == 0: e(f'  v_mov_b32 v2, s{sTS}')
        else:
            e(f'  s_sub_u32 s{sT[1]}, s{sTS+2*i}, s{sTS}'); e(f'  v_mov_b32 v2, s{sT[1]}')
        e(f'  buffer_store_dword v2, v1, s[20:23], s{sT[0]} offen offset:{4*i}')
    e('  v_mov_b32 v2, s94'); e(f'  buffer_store_dword v2, v1, s[20:23], s{sT[0]} offen offset:52')
    e('  v_mov_b32 v2, s96'); e('  v_mov_b32 v3, s98')
    e(f'  buffer_store_dwordx2 v[2:3], v1, s[20:23], s{sT[0]} offen offset:56')
    print('timestamps', nts[0])
    if 'dbg' in OPT:
        e(f'  s_cmp_lg_u32 s2, {OPT["dbg"]}'); e('  s_cbranch_scc1 MK_done')
        e(f'  s_and_b32 s{sT[0]}, s{sW}, 3'); e(f'  s_cmp_lg_u32 s{sT[0]}, 0'); e('  s_cbranch_scc1 MK_done')
        e('  s_load_dwordx2 s[4:5], s[0:1], 32'); e('  s_waitcnt lgkmcnt(0)')
        srd(12, 4, 256)
        e(f'  s_lshl_b32 s{sT[0]}, s{sW}, 3')
        for j, i in enumerate((2, 3, 4, 5, 6, 7, 9)):
            e(f'  s_sub_u32 s{sT[1]}, s{sTS+2*i}, s{sTS}'); e(f'  v_mov_b32 v2, s{sT[1]}')
            e(f'  buffer_store_dword v2, v1, s[12:15], s{sT[0]} offen offset:{4*j}')
        e(f'  s_sub_u32 s{sT[1]}, s98, s96'); e(f'  v_mov_b32 v2, s{sT[1]}')
        e(f'  buffer_store_dword v2, v1, s[12:15], s{sT[0]} offen offset:28')
e('MK_done:')
e('  s_endpgm')
for t in range(2):
    R = SACC[t]; vm, vt = RI[0], RI[1]
    e(f'FB{t}:')
    e('  s_nop 7')
    e(f'  v_max3_f32 v{vm}, v{R}, v{R+1}, v{R+2}')
    for k in range(3, 31, 2): e(f'  v_max3_f32 v{vm}, v{vm}, v{R+k}, v{R+k+1}')
    e(f'  s_mov_b32 s{sT[6]}, 0xff7fffff')
    e(f'  v_max3_f32 v{vm}, v{vm}, v{R+31}, s{sT[6]}')
    for sw in ('v_permlane32_swap_b32', 'v_permlane16_swap_b32'):
        e(f'  v_mov_b32 v{vt}, v{vm}'); e('  s_nop 1'); e(f'  {sw} v{vm}, v{vt}'); e('  s_nop 1')
        e(f'  v_max_f32 v{vm}, v{vm}, v{vt}')
    for k in range(32): e(f'  v_sub_f32 v{R+k}, v{R+k}, v{vm}')
    for k in range(32): e(f'  v_exp_f32 v{R+k}, v{R+k}')
    e('  s_nop 0')
    for k in range(16): e(f'  v_cvt_pk_bf16_f32 v{PREG[t]+k}, v{R+2*k}, v{R+2*k+1}')
    e('  s_nop 1')
    for kt in range(4): e(mfma(SUM[t], ONES, PREG[t]+4*kt, None if kt == 0 else SUM[t]))
    e('  s_nop 7')
    e(f'  s_branch FBR{t}')

e('.section .rodata,"a"')
for k, nv in (('prep_kernel', 152), ('main_kernel', 256)):
    e('.p2align 6'); e(f'.amdhsa_kernel {k}')
    e(f'  .amdhsa_next_free_vgpr {nv}'); e('  .amdhsa_next_free_sgpr 102'); e(f'  .amdhsa_accum_offset {nv}')
    e('  .amdhsa_group_segment_fixed_size 0'); e('  .amdhsa_kernarg_size 48'); e('  .amdhsa_user_sgpr_count 2')
    e('  .amdhsa_user_sgpr_kernarg_segment_ptr 1'); e('  .amdhsa_system_sgpr_workgroup_id_x 1')
    e('.end_amdhsa_kernel')
open(OUTF, 'w').write('\n'.join(L) + '\n')
```

```python
import sys, struct, math, re
OPT = dict(a.split('=') if '=' in a else (a, '1') for a in sys.argv[1:])
OUTF = OPT.get('out', 'standalone__neighborhood_nat__vision.s')
TS = 'ts' in OPT
L = []
def e(s): L.append(s)

X_BYTES = 19267584
WS_BYTES = 268435456
XB = 10240
ROW = 7680
HALF = 36864
NHI = XB + 14*ROW
SCALE = struct.unpack('<I', struct.pack('<f', (192 ** -0.5) * math.log2(math.e)))[0]
NT = '' if 'nont' in OPT else ' nt'
NTO = ' nt' if 'nto' in OPT else ''
if 'st' in OPT: NTO = ' ' + OPT['st'].replace('+', ' ')

hdr = open('standalone__neighborhood_nat__vision.s.ref').read().split('\n')
for ln in hdr:
    if ln.startswith('; @launch'): break
    e(ln)
e('; @launch kernel=prep_kernel grid=(144,1,1) block=(64,1,1) lds=0')
e('; @launch kernel=main_kernel grid=(256,1,1) block=(512,1,1) lds=163840')
if 'rep' in OPT: e('; @launch kernel=rep_kernel grid=(1,1,1) block=(64,1,1) lds=0')
e('.amdgcn_target "amdgcn-amd-amdhsa--gfx950"')
e('.text')

def srd(d, b, n):
    e(f'  s_mov_b32 s{d}, s{b}'); e(f'  s_and_b32 s{d+1}, s{b+1}, 0xffff')
    e(f'  s_mov_b32 s{d+2}, {n}'); e(f'  s_mov_b32 s{d+3}, 0x00020000')
def V(a, n=4): return f'v[{a}:{a+n-1}]'
def mfma(d, a, b, c):
    cs = '0' if c is None else V(c)
    return f'  v_mfma_f32_16x16x32_bf16 {V(d)}, {V(a)}, {V(b)}, {cs}'

e('.globl prep_kernel'); e('.p2align 8'); e('.type prep_kernel,@function'); e('prep_kernel:')
e('  s_cmp_ge_u32 s2, 144'); e('  s_cbranch_scc1 PR_done')
if TS: e('  s_memrealtime s[40:41]')
e('  s_load_dwordx4 s[4:7], s[0:1], 8')
e('  s_load_dwordx2 s[8:9], s[0:1], 40')
e('  s_cmp_ge_u32 s2, 72'); e('  s_cselect_b32 s24, 1, 0')
e('  s_mul_i32 s25, s24, 72'); e('  s_sub_u32 s25, s2, s25')
e('  s_mul_hi_u32 s26, s25, 0x15555556')
e('  s_mul_i32 s27, s26, 12'); e('  s_sub_u32 s27, s25, s27')
e('  s_and_b32 s28, s27, 1')
e('  s_lshr_b32 s27, s27, 1')
e('  v_and_b32 v1, 15, v0')
e('  v_lshrrev_b32 v2, 4, v0')
e('  v_lshrrev_b32 v3, 2, v1')
e('  v_and_b32 v4, 3, v1')
e('  s_lshl_b32 s29, s26, 5'); e('  s_lshl_b32 s30, s28, 2'); e('  s_add_u32 s29, s29, s30')
e('  v_lshl_add_u32 v5, v3, 3, v4'); e('  v_add_u32 v5, s29, v5')
e('  s_waitcnt lgkmcnt(0)')
srd(12, 4, 192*576*2); srd(16, 6, 192*192*2); srd(20, 8, 147456)
e('  s_cmp_eq_u32 s24, 1'); e('  s_cbranch_scc1 PR_n')
e('  s_lshl_b32 s29, s27, 5')
e('  v_lshl_add_u32 v6, v3, 3, v4'); e('  v_add_u32 v6, s29, v6')
e('  v_mul_u32_u24 v6, 1152, v6'); e('  v_lshl_add_u32 v6, v2, 4, v6')
e('  v_add_u32 v7, 4608, v6')
e('  v_mul_u32_u24 v8, 1152, v5'); e('  v_lshl_add_u32 v8, v2, 4, v8')
for kk in range(6):
    e(f'  buffer_load_dwordx4 {V(64+4*kk)}, v8, s[12:15], 0 offen offset:{384+64*kk}{NT}')
e(f'  s_mov_b32 s31, {SCALE}')
e('  s_sub_u32 s25, 71, s25'); e('  s_lshl_b32 s25, s25, 10')
e('  s_branch PR_go')
e('PR_n:')
e('  s_lshr_b32 s29, s27, 1'); e('  s_lshl_b32 s29, s29, 3')
e('  s_and_b32 s30, s27, 1'); e('  s_lshl_b32 s30, s30, 1')
e('  s_add_u32 s29, s29, s30'); e('  s_lshl_b32 s29, s29, 3')
e('  v_lshrrev_b32 v6, 1, v3'); e('  v_lshlrev_b32 v6, 5, v6')
e('  v_and_b32 v7, 1, v3'); e('  v_lshl_add_u32 v6, v7, 2, v6')
e('  v_add3_u32 v6, v6, v4, s29')
e('  v_mul_u32_u24 v6, 1152, v6'); e('  v_lshl_add_u32 v6, v2, 4, v6')
e('  v_add_u32 v6, 768, v6')
e('  v_add_u32 v7, 9216, v6')
e('  v_mul_u32_u24 v8, 3072, v2'); e('  v_lshl_add_u32 v8, v5, 1, v8')
for kk in range(6):
    e(f'  s_mov_b32 s32, {kk*32*384}')
    for jj in range(8):
        e(f'  buffer_load_ushort v{104+8*kk+jj}, v8, s[16:19], s32 offen offset:{jj*384}{NT}')
e('  s_mov_b32 s31, 1.0')
e('  s_lshl_b32 s25, s25, 10'); e('  s_add_u32 s25, s25, 73728')
e('PR_go:')
for kk in range(6):
    e(f'  buffer_load_dwordx4 {V(16+4*kk)}, v6, s[12:15], 0 offen offset:{64*kk}{NT}')
    e(f'  buffer_load_dwordx4 {V(40+4*kk)}, v7, s[12:15], 0 offen offset:{64*kk}{NT}')
e('  s_waitcnt vmcnt(0)')
e('  s_cmp_eq_u32 s24, 0'); e('  s_cbranch_scc1 PR_mm')
for r in range(24): e(f'  v_lshl_or_b32 v{64+r}, v{105+2*r}, 16, v{104+2*r}')
e('  s_nop 1')
e('PR_mm:')
for kk in range(6):
    e(mfma(88, 16+4*kk, 64+4*kk, None if kk == 0 else 88))
    e(mfma(92, 40+4*kk, 64+4*kk, None if kk == 0 else 92))
e('  s_nop 15')
for r in range(8): e(f'  v_mul_f32 v{88+r}, s31, v{88+r}')
for r in range(4): e(f'  v_cvt_pk_bf16_f32 v{96+r}, v{88+2*r}, v{89+2*r}')
e('  v_lshlrev_b32 v9, 4, v0')
e('  buffer_store_dwordx4 v[96:99], v9, s[20:23], s25 offen')
if TS:
    e('  s_waitcnt vmcnt(0)'); e('  s_memrealtime s[42:43]'); e('  s_waitcnt lgkmcnt(0)')
    e(f'  s_mov_b32 s22, {WS_BYTES}'); e('  s_lshl_b32 s33, s2, 3'); e('  s_add_u32 s33, s33, 0x200000')
    e('  v_mov_b32 v1, 0'); e('  v_mov_b32 v2, s40'); e('  v_mov_b32 v3, s42')
    e('  buffer_store_dwordx2 v[2:3], v1, s[20:23], s33 offen')
e('PR_done:')
e('  s_endpgm')

vL0, vL1 = 1, 2
vO = (5, 6)
vSe, vSo = 7, 8
vP = (9, 10, 11, 12)
vD = (13, 14, 3, 4)
SACC = (24, 56)
QP = 88
XQ = 136
ACC = 184
ABUF = 216; NB = 10
PREG = (136, 152)
YB = ([136, 140, 144, 148, 168, 172], [152, 156, 160, 164, 176, 180])
YACC = ([88+4*i for i in range(12)], [24+4*i for i in range(12)])
SUM = (184, 188)
ONES = 192
ET = 196
RI = (22, 23)
OUTR = 24
FLAG = 69*1024
sW, sU, sH, sPR, sPC, sKR, sKC, sXB, sGS, sGmin = range(24, 34)
sA2, sR0, sR9, sD0, sD9, sM0X, sM0X3, sW4 = range(34, 42)
sINV = (42, 44)
sT = list(range(46, 60))
sTS = 60

e('.globl main_kernel'); e('.p2align 8'); e('.type main_kernel,@function'); e('main_kernel:')
nts = [0]
def ts_line():
    s = f'  s_memtime s[{sTS+2*nts[0]}:{sTS+2*nts[0]+1}]'; nts[0] += 1; return s
e('  s_cmp_ge_u32 s2, 256'); e('  s_cbranch_scc1 MK_done')
if TS: e(ts_line()); e('  s_memrealtime s[96:97]')
e('  s_load_dwordx2 s[4:5], s[0:1], 0')
e('  s_load_dwordx2 s[6:7], s[0:1], 24')
e('  s_load_dwordx2 s[8:9], s[0:1], 40')
e('  v_lshrrev_b32 v15, 6, v0')
e('  v_and_b32 v0, 63, v0')
e(f'  v_readfirstlane_b32 s{sW}, v15')
e(f'  v_lshlrev_b32 v{vL0}, 4, v0')
e(f'  v_add_u32 v{vL1}, {HALF}, v{vL0}')
e(f'  s_bfe_u32 s{sPR}, s2, 0x10002')
e(f'  s_bfe_u32 s{sPC}, s2, 0x10001')
e(f'  s_and_b32 s{sKR}, s2, 1'); e(f'  s_lshl_b32 s{sKR}, s{sKR}, 2')
e(f'  s_lshr_b32 s{sT[0]}, s2, 6'); e(f'  s_add_u32 s{sKR}, s{sKR}, s{sT[0]}')
e(f'  s_bfe_u32 s{sKC}, s2, 0x30003')
e(f'  s_mul_i32 s{sKR}, s{sKR}, 14'); e(f'  s_add_i32 s{sKR}, s{sKR}, -6')
e(f'  s_mul_i32 s{sKC}, s{sKC}, 14'); e(f'  s_add_i32 s{sKC}, s{sKC}, -6')
e(f'  s_lshr_b32 s{sU}, s{sW}, 1'); e(f'  s_add_u32 s{sU}, s{sU}, 2'); e(f'  s_and_b32 s{sU}, s{sU}, 3')
e(f'  s_and_b32 s{sH}, s{sW}, 1')
e(f'  s_and_b32 s{sW4}, s{sW}, 3'); e(f'  s_lshl_b32 s{sW4}, s{sW4}, 10')
vn, vg, vqr, vqc = 15, 16, 17, 18
e(f'  v_and_b32 v{vn}, 15, v0'); e(f'  v_lshrrev_b32 v{vg}, 4, v0')
e(f'  v_lshrrev_b32 v{vqr}, 3, v{vn}'); e(f'  v_and_b32 v{vqc}, 7, v{vn}')
sMR, sAR, sMC, sAC = sT[10], sT[11], sT[12], sT[13]
e(f'  s_sub_u32 s{sMR}, 0, s{sPR}'); e(f'  s_mul_i32 s{sAR}, s{sPR}, 224')
e(f'  s_sub_u32 s{sMC}, 0, s{sPC}'); e(f'  s_mul_i32 s{sAC}, s{sPC}, 224')
e(f'  s_mul_i32 s{sT[0]}, s{sH}, 7'); e(f'  s_add_i32 s{sT[0]}, s{sT[0]}, s{sKC}')
e(f'  v_add_u32 v19, s{sT[0]}, v{vqc}')
e(f'  v_max_i32 v20, 0, v19')
e(f'  v_add3_u32 v19, v19, v20, 6')
e(f'  v_xor_b32 v19, s{sMC}, v19'); e(f'  v_add_u32 v19, s{sAC}, v19')
e(f'  v_subrev_u32 v20, s{sKC}, v20')
e(f'  v_mul_u32_u24 v19, 384, v19'); e(f'  v_lshl_add_u32 v19, v{vg}, 4, v19')
e(f'  s_lshl_b32 s{sT[0]}, s{sU}, 2')
e(f'  s_mov_b32 s{sT[1]}, 86016')
e(f'  v_cmp_gt_u32 s[{sT[2]}:{sT[3]}], 7, v{vqc}')
assert sT[2] % 2 == 0
for t in range(2):
    e(f'  v_add_u32 v23, s{sT[0]}, v{vqr}')
    if t: e(f'  v_add_u32 v23, 2, v23')
    e(f'  v_add_u32 v{vO[t]}, s{sKR}, v23')
    e(f'  v_max_i32 v{21+t}, 0, v{vO[t]}')
    e(f'  v_add3_u32 v{vO[t]}, v{vO[t]}, v{21+t}, 6')
    e(f'  v_xor_b32 v{vO[t]}, s{sMR}, v{vO[t]}'); e(f'  v_add_u32 v{vO[t]}, s{sAR}, v{vO[t]}')
    e(f'  v_subrev_u32 v{21+t}, s{sKR}, v{21+t}')
    e(f'  v_cmp_gt_u32 vcc, 14, v23')
    e(f'  v_mad_u32_u24 v{vO[t]}, v{vO[t]}, s{sT[1]}, v19')
    e(f'  s_and_b64 vcc, vcc, s[{sT[2]}:{sT[3]}]')
    e(f'  v_mov_b32 v23, 0x80000000')
    e(f'  s_nop 0')
    e(f'  v_cndmask_b32 v{vO[t]}, v23, v{vO[t]}, vcc')
    e(f'  v_cndmask_b32 v{21+t}, v23, v{21+t}, vcc')
for t in range(2): e(f'  v_cmp_gt_i32 s[{sINV[t]}:{sINV[t]+1}], 0, v{vO[t]}')
e(f'  v_mov_b32 v23, {FLAG}'); e('  v_mov_b32 v19, 0'); e('  ds_write_b32 v23, v19')
e('  s_waitcnt lgkmcnt(0)')
e('  s_barrier')
srd(20, 8, 147456)
srd(12, 4, X_BYTES)
def q_loads():
    for s_ in range(6):
        for t in range(2):
            e(f'  buffer_load_dwordx4 {V(XQ+24*t+4*s_)}, v{vO[t]}, s[12:15], 0 offen offset:{64*s_}{NT}')
def m01_loads():
    e(f'  s_mov_b32 s{sT[4]}, {69*1024}')
    e(f'  buffer_load_dwordx4 {V(ABUF)}, v{vL0}, s[20:23], s{sT[4]} offen offset:2048')
    e(f'  buffer_load_dwordx4 {V(ABUF+4)}, v{vL0}, s[20:23], s{sT[4]} offen offset:1024')
    e(f'  buffer_load_dwordx4 {V(ABUF+8)}, v{vL0}, s[20:23], s{sT[4]} offen')
e(f'  s_cmp_ge_u32 s{sW}, 4'); e('  s_cbranch_scc1 MK_noM')
for i in reversed(range(18)):
    if i == 17:
        e(f'  s_mov_b32 s{sT[4]}, {i*4096}')
    else: e(f'  s_add_u32 s{sT[4]}, s{sW4}, {i*4096}')
    e(f'  s_mov_b32 m0, s{sT[4]}'); e('  s_nop 0')
    e(f'  buffer_load_dwordx4 v{vL0}, s[20:23], s{sT[4]} offen lds')
e('MK_noM:')
m01_loads(); q_loads()
e(f'  s_lshl_b32 s{sT[0]}, s{sKR}, 1')
e(f'  s_sub_i32 s{sT[1]}, 221, s{sT[0]}')
e(f'  s_cmp_eq_u32 s{sPR}, 0'); e(f'  s_cselect_b32 s{sXB}, s{sT[0]}, s{sT[1]}')
e(f'  s_cselect_b32 s{sGS}, 1, -1'); e(f'  s_mul_i32 s{sGS}, s{sGS}, 344064')
e(f'  s_mul_i32 s{sXB}, s{sXB}, 86016')
e(f'  s_cmp_lt_i32 s{sKR}, 0'); e(f'  s_cselect_b32 s{sGmin}, 3, 0')
e(f'  s_lshl_b32 s{sM0X}, s{sW4}, 2')
e(f'  s_add_u32 s{sM0X3}, s{sM0X}, 3072'); e(f'  s_min_u32 s{sM0X3}, s{sM0X3}, {14*1024}')
e(f'  s_mul_i32 s{sT[2]}, s{sPR}, 172032')
e(f'  s_sub_u32 s{sT[3]}, 172032, s{sT[2]}')
for b in range(960): assert (b * 2731) >> 16 == b // 24
for j in range(4):
    d = vD[j]
    if j < 3:
        e(f'  s_lshr_b32 s{sT[0]}, s{sM0X}, 4'); e(f'  s_add_u32 s{sT[0]}, s{sT[0]}, {64*j}')
    else: e(f'  s_lshr_b32 s{sT[0]}, s{sM0X3}, 4')
    e(f'  v_add_u32 v23, s{sT[0]}, v0')
    e(f'  v_mul_u32_u24 v{d}, 2731, v23'); e(f'  v_lshrrev_b32 v{d}, 16, v{d}')
    e(f'  v_mul_u32_u24 v19, 24, v{d}'); e(f'  v_sub_u32 v23, v23, v19')
    e(f'  v_cmp_le_u32 vcc, 20, v{d}')
    e(f'  v_subrev_u32 v19, 20, v{d}')
    e(f'  v_mov_b32 v232, s{sT[2]}')
    e(f'  v_cndmask_b32 v{d}, v{d}, v19, vcc')
    e(f'  v_mov_b32 v233, s{sT[3]}')
    e(f'  v_cndmask_b32 v232, v232, v233, vcc')
    e(f'  v_bfe_u32 v19, v{d}, 1, 3')
    e(f'  v_xor_b32 v23, v23, v19')
    e(f'  v_lshl_add_u32 v23, v23, 4, v232')
    e(f'  v_add_u32 v{d}, s{sKC}, v{d}'); e(f'  v_max_i32 v{d}, 0, v{d}'); e(f'  v_lshlrev_b32 v{d}, 1, v{d}')
    e(f'  v_xor_b32 v{d}, s{sMC}, v{d}'); e(f'  v_add_u32 v{d}, s{sAC}, v{d}')
    e(f'  v_mul_u32_u24 v{d}, 384, v{d}'); e(f'  v_add_u32 v{d}, v{d}, v23')
e(f'  s_add_u32 s{sM0X}, s{sM0X}, {XB}'); e(f'  s_add_u32 s{sM0X3}, s{sM0X3}, {XB}')
def dma_x(G):
    out = []
    if G < 3:
        out.append(f'  s_max_u32 s{sT[4]}, s{sGmin}, {G}'); out.append(f'  s_mul_i32 s{sT[4]}, s{sT[4]}, s{sGS}')
    else: out.append(f'  s_mul_i32 s{sT[4]}, s{sGS}, {G}')
    out.append(f'  s_add_i32 s{sT[4]}, s{sT[4]}, s{sXB}')
    for j in range(4):
        if j < 3: out.append(f'  s_add_u32 m0, s{sM0X}, {G*15360 + j*1024}')
        else: out.append(f'  s_add_u32 m0, s{sM0X3}, {G*15360}')
        out.append(f'  s_nop 0')
        out.append(f'  buffer_load_dwordx4 v{vD[j]}, s[12:15], s{sT[4]} offen{NT} lds')
    return out
srd(16, 6, X_BYTES)
def srel(dst, add):
    e(f'  s_lshl_b32 s{dst}, s{sU}, 2'); e(f'  s_add_u32 s{dst}, s{dst}, {add}'); e(f'  s_min_u32 s{dst}, s{dst}, 13')
    e(f'  s_add_i32 s{dst}, s{dst}, s{sKR}'); e(f'  s_max_i32 s{dst}, s{dst}, 0'); e(f'  s_sub_i32 s{dst}, s{dst}, s{sKR}')
srel(sT[0], 0); srel(sA2, 2)
e(f'  s_sub_u32 s{sT[0]}, s{sA2}, s{sT[0]}')
e(f'  s_cmp_eq_u32 s{sT[0]}, 2'); e(f'  s_cselect_b32 s{sD0}, -1, 7')
e(f'  s_cmp_le_u32 s{sA2}, 12'); e(f'  s_cselect_b32 s{sD9}, 8, 0')
e(f'  s_sub_u32 s{sA2}, s{sA2}, 1')
for (sr, sd) in ((sR0, sD0), (sR9, sD9)):
    e(f'  s_add_i32 s{sr}, s{sA2}, s{sd}'); e(f'  s_mul_i32 s{sd}, s{sd}, {ROW}')
e(f'  s_lshl_b32 s{sT[1]}, s{sH}, 2')
e(f'  s_mul_i32 s{sT[0]}, s{sA2}, {ROW}'); e(f'  s_add_u32 s{sT[0]}, s{sT[0]}, {XB}')
e(f'  v_add_u32 v19, s{sT[1]}, v{vn}')
e(f'  v_bfe_u32 v23, v19, 1, 3'); e(f'  v_xor_b32 v23, v23, v{vg}')
e(f'  v_mul_u32_u24 v19, 384, v19'); e(f'  v_lshl_add_u32 v19, v23, 4, v19')
e(f'  v_add_u32 v{vSe}, s{sT[0]}, v19'); e(f'  v_xor_b32 v{vSo}, 64, v{vSe}')
e(f'  v_lshrrev_b32 v19, 2, v{vn}'); e(f'  v_lshl_add_u32 v19, v{vg}, 2, v19'); e(f'  v_add_u32 v19, s{sT[1]}, v19')
e(f'  v_bfe_u32 v23, v19, 1, 3')
e(f'  v_and_b32 v{vP[1]}, 2, v{vn}'); e(f'  v_lshlrev_b32 v{vP[1]}, 1, v{vP[1]}'); e(f'  v_xor_b32 v23, v23, v{vP[1]}')
e(f'  v_mul_u32_u24 v19, 384, v19'); e(f'  v_lshl_add_u32 v19, v23, 4, v19')
e(f'  v_and_b32 v23, 1, v{vn}'); e(f'  v_lshl_add_u32 v19, v23, 3, v19')
e(f'  v_add_u32 v{vP[0]}, s{sT[0]}, v19')
for k in range(1, 4): e(f'  v_xor_b32 v{vP[k]}, {16*k}, v{vP[0]}')
e('  v_mov_b32 v236, 0xff800000')
e(f'  v_lshl_add_u32 v19, v{vg}, 2, s{sT[1]}'); e('  v_sub_u32 v19, v19, v20')
for i in range(4):
    e(f'  v_add_u32 v{237+i}, {i}, v19')
for i in range(4):
    e(f'  v_cmp_gt_u32 s[{sT[2+2*i]}:{sT[3+2*i]}], 7, v{237+i}')
for i in range(4):
    e(f'  v_cndmask_b32 v{232+i}, v236, 0, s[{sT[2+2*i]}:{sT[3+2*i]}]')
for t in range(2):
    for j4 in range(2):
        for jj in range(4*j4, 4*j4+4):
            slot = jj + 2*t; r = 237 + jj % 4
            if slot == 0: e(f'  v_sub_u32 v{r}, s{sR0}, v{21+t}')
            elif slot == 9: e(f'  v_sub_u32 v{r}, s{sR9}, v{21+t}')
            else:
                e(f'  s_add_u32 s{sT[0]}, s{sA2}, {slot-1}'); e(f'  v_sub_u32 v{r}, s{sT[0]}, v{21+t}')
        for jj in range(4*j4, 4*j4+4):
            q = jj % 4
            e(f'  v_cmp_gt_u32 s[{sT[2+2*q]}:{sT[3+2*q]}], 7, v{237+q}')
        for jj in range(4*j4, 4*j4+4):
            q = jj % 4
            for i in range(4):
                e(f'  v_cndmask_b32 v{SACC[t]+4*jj+i}, v236, v{232+i}, s[{sT[2+2*q]}:{sT[3+2*q]}]')
sb = {9: (15, 16), 0: (17, 18)}
PB0 = (17, 18, 19, 20); PB9 = (15, 16, 21, 0)
for sl, sd in ((9, sD9), (0, sD0)):
    e(f'  v_add_u32 v{sb[sl][0]}, s{sd}, v{vSe}'); e(f'  v_add_u32 v{sb[sl][1]}, s{sd}, v{vSo}')
e(f'  s_cmp_lt_u32 s{sW}, 4'); e('  s_cselect_b64 vcc, -1, 0')
if TS: e(ts_line())
e(f'  v_mov_b32 v23, {FLAG}')
e('  s_cbranch_vccz MK_p0')
e('  s_waitcnt vmcnt(15)')
e('  v_mov_b32 v19, 1')
e('  s_mov_b64 exec, 1'); e('  ds_add_u32 v23, v19'); e('  s_mov_b64 exec, -1')
e('MK_p0:')
e('  ds_read_b32 v19, v23'); e('  s_waitcnt lgkmcnt(0)')
e(f'  v_readfirstlane_b32 s{sT[0]}, v19'); e(f'  s_cmp_lt_u32 s{sT[0]}, 4'); e('  s_cbranch_scc1 MK_p0')

stream = []; frags = []
def add_frag(reads, gate): frags.append(dict(reads=reads, gate=gate, uses=0)); return len(frags) - 1
def use(fid, fn): frags[fid]['uses'] += 1; stream.append(('mfma', fn, fid))
def mf(text): stream.append(('mfma', (lambda buf: text), None))
def raw(*lines):
    for l in lines: stream.append(('raw', l))
def fill(*lines):
    for l in lines: stream.append(('fill', l))
def flush(): stream.append(('flush',))
def need(fid): stream.append(('need', fid))
def gate(name): stream.append(('gate', name))
def role(r, lines): stream.append(('role', r, lines))
def role2(lo, ly): stream.append(('role2', lo, ly))
def tsr():
    if TS: stream.append(('ts', ts_line()))
BAR = '  s_barrier'
def m_read(f):
    if f < 3: return []
    addr = (71-f)*1024
    if addr < HALF: return [f'  ds_read_b128 {{d4}}, v{vL0} offset:{addr}']
    return [f'  ds_read_b128 {{d4}}, v{vL1} offset:{addr-HALF}']
def n_addr(f): return NHI + 1024*f if f < 45 else (f-45)*1024
def n_read(f):
    if f < 45: return [f'  ds_read_b128 {{d4}}, v{vL1} offset:{1024*f}']
    return [f'  ds_read_b128 {{d4}}, v{vL0} offset:{(f-45)*1024}']
def dma_n(f0, fmax):
    lim = (fmax - f0) * 1024
    out = []
    if lim < 3072:
        out.append(f'  s_min_u32 s{sT[5]}, s{sW4}, {lim}'); src = sT[5]
    else: src = sW4
    out += [f'  s_add_u32 m0, s{src}, {n_addr(f0)}', f'  s_add_u32 s{sT[4]}, s{src}, {73728+f0*1024}',
            f'  buffer_load_dwordx4 v{vL0}, s[20:23], s{sT[4]} offen lds']
    return out
def dma_n_range(a, b):
    out = []; n = 0
    for f0 in range(a, b, 4): out += dma_n(f0, b-1); n += 1
    return out, n

def proj(B, rd, gate_of, post, hooks):
    for s in range(6):
        for ks in range(6):
            for hh in range(2):
                f = 12*s + 2*ks + hh
                fid = add_frag(rd(f), gate_of(f))
                if f in hooks: hooks[f](fid)
                for t in range(2):
                    acc = ACC + 16*(s % 2) + 8*t + 4*hh
                    use(fid, (lambda buf, acc=acc, t=t, ks=ks: mfma(acc, buf, B(t, ks), None if ks == 0 else acc)))
        flush()
        fill(*post(s))

gate('G0')
tsr()
def p1_post(s):
    out = []
    for t in range(2):
        acc = ACC + 16*(s % 2) + 8*t
        for r in range(4): out.append(f'  v_cvt_pk_bf16_f32 v{QP+24*t+4*s+r}, v{acc+2*r}, v{acc+2*r+1}')
    return out
hk = {}
for ks in range(6):
    hk[2*ks] = (lambda fid, ks=ks: raw(f'  s_waitcnt vmcnt({10-2*ks})'))
hk[31] = lambda fid: (need(fid), role('Y', [BAR]))
hk[61] = lambda fid: (need(fid), role('Y', [BAR]))
proj(lambda t, ks: XQ+24*t+4*ks, m_read, lambda f: 'G0', p1_post, hk)
flush()
raw(f'  v_add_u32 v{vL1}, {NHI}, v{vL0}')
for r in range(4): raw(f'  v_mov_b32 v{ONES+r}, 0x3f803f80')
tsr()
role2(sum((dma_x(G) for G in (9, 8, 7, 6, 5, 4)), []) + [BAR] + dma_x(3) + dma_x(2) + ['  s_waitcnt vmcnt(8)', BAR] + dma_x(1) + dma_x(0), [BAR])
if TS: raw('  s_memrealtime s[94:95]')
gate('S')
tsr()
etn = [0]
def sm_fill(t, jj):
    tmp = ET + 4*(etn[0] % 5); etn[0] += 1
    acc = SACC[t] + 4*jj
    for i in range(4): fill(f'  v_exp_f32 v{tmp+i}, v{acc+i}')
    for i in range(2): fill(f'  v_cvt_pk_bf16_f32 v{PREG[t]+2*jj+i}, v{tmp+2*i}, v{tmp+2*i+1}')
    stream.append(('tag', f'P{t}_{jj}'))
def sum_mfmas(t):
    stream.append(('flushto', f'P{t}_7'))
    for kt in range(4): mf(mfma(SUM[t], ONES, PREG[t]+4*kt, None if kt == 0 else SUM[t]))
LO, HI = (127-30) << 23, (127+30) << 23
def check(t):
    raw(f'  v_subrev_u32 v{RI[1]}, {LO}, v{SUM[t]}')
    raw(f'  s_mov_b32 s{sT[6]}, {HI-LO}')
    raw(f'  v_cmp_gt_u32 s[{sT[2]}:{sT[3]}], s{sT[6]}, v{RI[1]}')
    raw(f'  s_or_b64 s[{sT[2]}:{sT[3]}], s[{sT[2]}:{sT[3]}], s[{sINV[t]}:{sINV[t]+1}]')
    raw(f'  s_cmp_eq_u64 s[{sT[2]}:{sT[3]}], -1')
    raw(f'  s_cbranch_scc0 FB{t}')
    stream.append(('label', f'FBR{t}:'))
B4SLOT = int(OPT.get('b4', 5)); B5SLOT = int(OPT.get('b5', 5))
for slot in range(10):
    if slot == B4SLOT: role('O', ['  s_waitcnt vmcnt(0)', BAR])
    if slot == B5SLOT: role('Y', [BAR])
    for s in range(6):
        if slot == 9 and s == 3: sum_mfmas(0)
        if slot in sb: base, off = sb[slot][s % 2], 128*(s//2)
        else: base, off = (vSe, vSo)[s % 2], (slot-1)*ROW + 128*(s//2)
        fid = add_frag([f'  ds_read_b128 {{d4}}, v{base} offset:{off}'], 'S')
        for t in range(2):
            jj = slot - 2*t
            if 0 <= jj < 8:
                acc = SACC[t] + 4*jj
                use(fid, (lambda buf, acc=acc, t=t, s=s: mfma(acc, buf, QP+24*t+4*s, acc)))
        if slot == 2 and s == 0:
            pass
    for t in range(2):
        jj = slot - 2*t
        if 0 <= jj < 8: sm_fill(t, jj)
    if slot == 1:
        for k in range(4): fill(f'  v_add_u32 v{PB0[k]}, s{sD0}, v{vP[k]}')
        stream.append(('tag', 'PB0'))
    if slot == 7:
        stream.append(('flushto', 'PB0')); gate('PVA')
tsr()
check(0)
lastf = None
for st in range(5):
    if st == 1:
        sum_mfmas(1)
        for k in range(4): raw(f'  v_add_u32 v{PB9[k]}, s{sD9}, v{vP[k]}')
        gate('PV9')
        check(1)
    if st == 2:
        need(lastf); role('Y', [BAR])
    if st == 4:
        for ks in range(6):
            for hf in range(2):
                y = YACC[0][2*ks+hf]
                for i in range(2): fill(f'  v_cvt_pk_bf16_f32 v{YB[0][ks]+2*hf+i}, v{y+2*i}, v{y+2*i+1}')
    for ct in range(12):
        tl = [t for t in range(2) if 0 <= st - t < 4]
        b_, e_ = ct // 4, ct % 4
        rd = []
        for hf in range(2):
            slot = 2*st + hf
            if slot == 0: base, off = PB0[e_], 128*b_
            elif slot == 9: base, off = PB9[e_], 128*b_
            else: base, off = vP[e_], (slot-1)*ROW + 128*b_
            rd.append(f'  ds_read_b64_tr_b16 {{d{"lo" if hf == 0 else "hi"}}}, v{base} offset:{off}')
        fid = add_frag(rd, 'PV9' if st == 4 else 'PVA'); lastf = fid
        for t in tl:
            acc = YACC[t][ct]
            use(fid, (lambda buf, acc=acc, t=t, st=st: mfma(acc, buf, PREG[t]+4*(st-t), None if st == t else acc)))
n1a, c1a = dma_n_range(0, 45); n1b, c1b = dma_n_range(45, 55); n2, c2 = dma_n_range(55, 72)
role2([BAR] + n1a + n1b, [BAR])
tsr()
flush()
for ks in range(6):
    for hf in range(2):
        y = YACC[1][2*ks+hf]
        for i in range(2): raw(f'  v_cvt_pk_bf16_f32 v{YB[1][ks]+2*hf+i}, v{y+2*i}, v{y+2*i+1}')
for t in range(2): raw(f'  v_rcp_f32 v{RI[t]}, v{SUM[t]}')
role('O', ['  s_waitcnt vmcnt(0)', BAR] + n2)
gate('P4a')
tsr()
def p4_post(s):
    out = []
    for t in range(2):
        acc = ACC + 16*(s % 2) + 8*t
        o = OUTR + 8*(s % 2) + 4*t
        if 'nomul' not in OPT:
            for r in range(8): out.append(f'  v_mul_f32 v{acc+r}, v{acc+r}, v{RI[t]}')
        for r in range(4): out.append(f'  v_cvt_pk_bf16_f32 v{o+r}, v{acc+2*r}, v{acc+2*r+1}')
        if 'nost' not in OPT: out.append(f'  buffer_store_dwordx4 {V(o)}, v{vO[t]}, s[16:19], 0 offen offset:{64*s}{NTO}')
    return out
def hook7(fid): role('O', ['  s_waitcnt vmcnt(4)', BAR]); gate('P4b')
proj(lambda t, ks: YB[t][ks], n_read, lambda f: 'P4a' if f < 55 else 'P4b', p4_post, {36: hook7})
flush()
tsr()

def regs_of(tok):
    m = re.fullmatch(r'v\[(\d+):(\d+)\]', tok)
    if m: return list(range(int(m.group(1)), int(m.group(2)) + 1))
    m = re.fullmatch(r'-?v(\d+)', tok)
    return [int(m.group(1))] if m else []
def parse(line):
    p = line.strip().split(None, 1)
    op = p[0]; args = [a.strip().split()[0] for a in p[1].split(',')] if len(p) > 1 else []
    return op, args
clock = [0]
mf_w = {}; va_w = {}; tr_w = {}; mf_c = {}
def hazard(line):
    op, args = parse(line); need_ = 0
    allr = [r for a in args for r in regs_of(a)]
    if op.startswith('v_mfma'):
        src = [r for a in args[1:] for r in regs_of(a)]
        for r in src:
            if r in va_w: need_ = max(need_, 2 - (clock[0] - va_w[r] - 1))
        for r in regs_of(args[1]) + regs_of(args[2]):
            if r in mf_w: need_ = max(need_, 8 - (clock[0] - mf_w[r] - 1))
    elif op.startswith('v_') or op.startswith('buffer_') or op.startswith('ds_'):
        for r in allr:
            if r in mf_w: need_ = max(need_, 8 - (clock[0] - mf_w[r] - 1))
        if op.startswith('v_'):
            for r in regs_of(args[0]):
                if r in mf_c: need_ = max(need_, 3 - (clock[0] - mf_c[r] - 1))
            srcs = allr if op.startswith('v_permlane') else [r for a in args[1:] for r in regs_of(a)]
            for r in srcs:
                if op.startswith('v_permlane') and r in va_w: need_ = max(need_, 2 - (clock[0] - va_w[r] - 1))
                if r in tr_w: need_ = max(need_, 1 - (clock[0] - tr_w[r] - 1))
    return need_
def emit(line):
    n = hazard(line)
    if n > 0:
        e(f'  s_nop {n-1}'); clock[0] += n
    op, args = parse(line)
    e(line)
    if op.startswith('v_mfma'):
        for r in regs_of(args[0]): mf_w[r] = clock[0]
        for r in regs_of(args[3]): mf_c[r] = clock[0]
    elif op.startswith('v_'):
        d = regs_of(args[0]) + (regs_of(args[1]) if op.startswith('v_permlane') else [])
        for r in d:
            va_w[r] = clock[0]; tr_w.pop(r, None)
            if op in ('v_exp_f32', 'v_rcp_f32'): tr_w[r] = clock[0]
    if op == 's_nop': clock[0] += int(args[0])
    clock[0] += 1

gates = set(); nxt = 0; done_uses = [0]*len(frags)
ops = []; landed = -1; half = [None]
fq = []
def buf_of(f): return ABUF + 4*(f % NB)
def issue_one():
    global nxt
    while True:
        if half[0] is not None:
            emit(half[0]); ops.append(nxt); half[0] = None; nxt += 1; return True
        if nxt >= len(frags): return False
        fr = frags[nxt]
        if fr['gate'] not in gates: return False
        if nxt >= NB and done_uses[nxt-NB] < frags[nxt-NB]['uses']: return False
        if not fr['reads']:
            nxt += 1; continue
        if len(ops) + len(fr['reads']) > 15: return False
        b = buf_of(nxt)
        rs = [r.format(d4=V(b), dlo=V(b, 2), dhi=V(b+2, 2)) for r in fr['reads']]
        emit(rs[0]); ops.append(nxt)
        if len(rs) == 2: half[0] = rs[1]
        else: nxt += 1
        return True
def wait_for(f):
    global landed, ops
    if f is None or f <= landed: return
    while nxt <= f:
        n0 = nxt
        if not issue_one() and nxt == n0: raise RuntimeError(f'cannot issue frag {nxt}')
    if any(o <= f for o in ops):
        if f + 1 < nxt and sum(1 for o in ops if o > f + 1) >= PAIRMIN: f = f + 1
        n = sum(1 for o in ops if o > f)
        emit(f'  s_waitcnt lgkmcnt({n})')
        ops = [o for o in ops if o > f]
    landed = f
lab = [0]
BACKLOG = int(OPT.get('backlog', 6))
PAIRMIN = int(OPT.get('pairmin', 5))
STREAM_NEXT = {}
mi = [i for i, x in enumerate(stream) if x[0] == 'mfma']
for a_, b_ in zip(mi, mi[1:]): STREAM_NEXT[a_] = stream[b_][2]
for si, ent in enumerate(stream):
    k = ent[0]
    if k == 'raw': emit(ent[1])
    elif k == 'fill': fq.append(ent[1])
    elif k == 'flush':
        for l in fq:
            if not l.startswith('#'): emit(l)
        fq = []
    elif k == 'tag': fq.append('#' + ent[1])
    elif k == 'flushto':
        if '#' + ent[1] in fq:
            i = fq.index('#' + ent[1])
            for l in fq[:i]:
                if not l.startswith('#'): emit(l)
            fq = fq[i+1:]
    elif k == 'label': e(ent[1])
    elif k == 'ts':
        if half[0] is not None: issue_one()
        e(ent[1]); e('  s_waitcnt lgkmcnt(0)'); ops = []; landed = nxt - 1
    elif k == 'gate':
        gates.add(ent[1])
        while issue_one(): pass
    elif k == 'need': wait_for(ent[1])
    elif k == 'role':
        lab[0] += 1
        emit(f'  s_cbranch_vcc{"z" if ent[1] == "O" else "nz"} RL{lab[0]}')
        for l in ent[2]: e(l)
        e(f'RL{lab[0]}:')
    elif k == 'role2':
        lab[0] += 1
        emit(f'  s_cbranch_vccz RL{lab[0]}')
        for l in ent[1]: e(l)
        e(f'  s_branch RM{lab[0]}')
        e(f'RL{lab[0]}:')
        for l in ent[2]: e(l)
        e(f'RM{lab[0]}:')
    elif k == 'mfma':
        wait_for(ent[2])
        emit(ent[1](buf_of(ent[2]) if ent[2] is not None else None))
        if ent[2] is not None: done_uses[ent[2]] += 1
        slots = 2
        nf = STREAM_NEXT.get(si)
        if nf is not None and nf > landed: slots -= 1
        ahead = nxt - (ent[2] if ent[2] is not None else landed)
        if issue_one(): slots -= 1
        if (half[0] is not None or (slots > 0 and (not fq or ahead < 6))) and issue_one(): slots -= 1
        if sum(1 for l in fq if 'v_exp' in l) > BACKLOG: slots = max(slots, 2)
        while fq:
            if fq[0].startswith('#'): fq.pop(0); continue
            cost = 2 if 'v_exp' in fq[0] else 1
            if slots < cost or hazard(fq[0]) > 0: break
            emit(fq.pop(0)); slots -= cost
if TS:
    e('  s_waitcnt vmcnt(0)')
    e(ts_line()); e('  s_memrealtime s[98:99]')
    e('  s_waitcnt lgkmcnt(0)')
    e(f'  s_mov_b32 s22, {WS_BYTES}')
    e(f'  s_lshl_b32 s{sT[0]}, s2, 3'); e(f'  s_add_u32 s{sT[0]}, s{sT[0]}, s{sW}'); e(f'  s_lshl_b32 s{sT[0]}, s{sT[0]}, 6')
    e(f'  s_add_u32 s{sT[0]}, s{sT[0]}, 0x100000')
    e('  v_mov_b32 v1, 0')
    for i in range(nts[0]):
        if i == 0: e(f'  v_mov_b32 v2, s{sTS}')
        else:
            e(f'  s_sub_u32 s{sT[1]}, s{sTS+2*i}, s{sTS}'); e(f'  v_mov_b32 v2, s{sT[1]}')
        e(f'  buffer_store_dword v2, v1, s[20:23], s{sT[0]} offen offset:{4*i}')
    e('  v_mov_b32 v2, s94'); e(f'  buffer_store_dword v2, v1, s[20:23], s{sT[0]} offen offset:52')
    e('  v_mov_b32 v2, s96'); e('  v_mov_b32 v3, s98')
    e(f'  buffer_store_dwordx2 v[2:3], v1, s[20:23], s{sT[0]} offen offset:56')
    print('timestamps', nts[0])
    if 'dbg' in OPT:
        e(f'  s_cmp_lg_u32 s2, {OPT["dbg"]}'); e('  s_cbranch_scc1 MK_done')
        e(f'  s_and_b32 s{sT[0]}, s{sW}, 3'); e(f'  s_cmp_lg_u32 s{sT[0]}, 0'); e('  s_cbranch_scc1 MK_done')
        e('  s_load_dwordx2 s[4:5], s[0:1], 32'); e('  s_waitcnt lgkmcnt(0)')
        srd(12, 4, 256)
        e(f'  s_lshl_b32 s{sT[0]}, s{sW}, 3')
        for j, i in enumerate((2, 3, 4, 5, 6, 7, 9)):
            e(f'  s_sub_u32 s{sT[1]}, s{sTS+2*i}, s{sTS}'); e(f'  v_mov_b32 v2, s{sT[1]}')
            e(f'  buffer_store_dword v2, v1, s[12:15], s{sT[0]} offen offset:{4*j}')
        e(f'  s_sub_u32 s{sT[1]}, s98, s96'); e(f'  v_mov_b32 v2, s{sT[1]}')
        e(f'  buffer_store_dword v2, v1, s[12:15], s{sT[0]} offen offset:28')
e('MK_done:')
e('  s_endpgm')
for t in range(2):
    R = SACC[t]; vm, vt = RI[0], RI[1]
    e(f'FB{t}:')
    e('  s_nop 7')
    e(f'  v_max3_f32 v{vm}, v{R}, v{R+1}, v{R+2}')
    for k in range(3, 31, 2): e(f'  v_max3_f32 v{vm}, v{vm}, v{R+k}, v{R+k+1}')
    e(f'  s_mov_b32 s{sT[6]}, 0xff7fffff')
    e(f'  v_max3_f32 v{vm}, v{vm}, v{R+31}, s{sT[6]}')
    for sw in ('v_permlane32_swap_b32', 'v_permlane16_swap_b32'):
        e(f'  v_mov_b32 v{vt}, v{vm}'); e('  s_nop 1'); e(f'  {sw} v{vm}, v{vt}'); e('  s_nop 1')
        e(f'  v_max_f32 v{vm}, v{vm}, v{vt}')
    for k in range(32): e(f'  v_sub_f32 v{R+k}, v{R+k}, v{vm}')
    for k in range(32): e(f'  v_exp_f32 v{R+k}, v{R+k}')
    e('  s_nop 0')
    for k in range(16): e(f'  v_cvt_pk_bf16_f32 v{PREG[t]+k}, v{R+2*k}, v{R+2*k+1}')
    e('  s_nop 1')
    for kt in range(4): e(mfma(SUM[t], ONES, PREG[t]+4*kt, None if kt == 0 else SUM[t]))
    e('  s_nop 7')
    e(f'  s_branch FBR{t}')

KL = [('prep_kernel', 152), ('main_kernel', 256)]
if 'rep' in OPT:
    a_, b_, sh = OPT['rep'].split(':')
    e('.globl rep_kernel'); e('.p2align 8'); e('.type rep_kernel,@function'); e('rep_kernel:')
    e('  s_cmp_ge_u32 s2, 1'); e('  s_cbranch_scc1 RP_done')
    e('  s_load_dwordx2 s[8:9], s[0:1], 40'); e('  s_waitcnt lgkmcnt(0)')
    e(f'  s_add_u32 s10, s8, {a_}'); e('  s_addc_u32 s11, s9, 0'); e(f'  s_add_u32 s12, s8, {b_}'); e('  s_addc_u32 s13, s9, 0')
    e('  s_load_dword s14, s[10:11], 0'); e('  s_load_dword s15, s[12:13], 0'); e('  s_memrealtime s[16:17]'); e('  s_waitcnt lgkmcnt(0)')
    e('  s_sub_u32 s14, s14, s15'); e(f'  s_lshr_b32 s14, s14, {sh}'); e('  s_min_u32 s14, s14, 10000')
    e('RP_l:'); e('  s_memrealtime s[18:19]'); e('  s_waitcnt lgkmcnt(0)'); e('  s_sub_u32 s18, s18, s16'); e('  s_cmp_lt_u32 s18, s14'); e('  s_cbranch_scc1 RP_l')
    e('RP_done:'); e('  s_endpgm')
    KL.append(('rep_kernel', 8))
e('.section .rodata,"a"')
for k, nv in KL:
    e('.p2align 6'); e(f'.amdhsa_kernel {k}')
    e(f'  .amdhsa_next_free_vgpr {nv}'); e('  .amdhsa_next_free_sgpr 102'); e(f'  .amdhsa_accum_offset {nv}')
    e('  .amdhsa_group_segment_fixed_size 0'); e('  .amdhsa_kernarg_size 48'); e('  .amdhsa_user_sgpr_count 2')
    e('  .amdhsa_user_sgpr_kernarg_segment_ptr 1'); e('  .amdhsa_system_sgpr_workgroup_id_x 1')
    e('.end_amdhsa_kernel')
open(OUTF, 'w').write('\n'.join(L) + '\n')
```

```python
import sys, struct, math, re
OPT = dict(a.split('=') if '=' in a else (a, '1') for a in sys.argv[1:])
OUTF = OPT.get('out', 'standalone__neighborhood_nat__vision.s')
TS = 'ts' in OPT
L = []
def e(s): L.append(s)

X_BYTES = 19267584
WS_BYTES = 268435456
XB = 10240
ROW = 7680
HALF = 36864
NHI = XB + 12*ROW
SCALE = struct.unpack('<I', struct.pack('<f', (192 ** -0.5) * math.log2(math.e)))[0]
NT = ' nt' if 'nt' in OPT else ''
NTO = ' ' + OPT.get('st', 'nt+sc1').replace('+', ' ')
KN = 'standalone__neighborhood_nat__vision_kernel'

hdr = open('standalone__neighborhood_nat__vision.s.ref').read().split('\n')
for ln in hdr:
    if ln.startswith('; @launch'): break
    e(ln)
e('; @launch grid=(256,1,1) block=(512,1,1) lds=163840')
e('.amdgcn_target "amdgcn-amd-amdhsa--gfx950"')
e('.text')

def srd(d, b, n):
    e(f'  s_mov_b32 s{d}, s{b}'); e(f'  s_and_b32 s{d+1}, s{b+1}, 0xffff')
    e(f'  s_mov_b32 s{d+2}, {n}'); e(f'  s_mov_b32 s{d+3}, 0x00020000')
def V(a, n=4): return f'v[{a}:{a+n-1}]'
def mfma(d, a, b, c):
    cs = '0' if c is None else V(c)
    return f'  v_mfma_f32_16x16x32_bf16 {V(d)}, {V(a)}, {V(b)}, {cs}'

vL0, vL1 = 1, 2
vO = (5, 6)
vSe, vSo = 7, 8
vP = (9, 10, 11, 12)
vD = (13, 14, 3, 4)
SACC = (24, 56)
QP = 88
XQ = 136
ACC = 184
ABUF = 216; NB = 10
PREG = (136, 152)
YB = ([136, 140, 144, 148, 168, 172], [152, 156, 160, 164, 176, 180])
YACC = ([88+4*i for i in range(12)], [24+4*i for i in range(12)])
SUM = (184, 188)
ONES = 192
ET = 196
RI = (22, 23)
OUTR = 24
sW, sU, sH, sPR, sPC, sKR, sKC, sXB, sGS, sGmin = range(24, 34)
sA2, sR0, sR9, sD0, sD9, sM0X, sM0X3, sW4 = range(34, 42)
sINV = (42, 44)
sT = list(range(46, 60))
sTS = 60
sPROD, sWB, sSC, sTR = 3, 92, 93, 100
NREG = 40
RX, RO, RWS, RW, RWO, RDB = 's[12:15]', 's[16:19]', 's[20:23]', 's[88:91]', 's[4:7]', 's[8:11]'

e(f'.globl {KN}'); e('.p2align 8'); e(f'.type {KN},@function'); e(f'{KN}:')
nts = [0]
def ts_line():
    s = f'  s_memtime s[{sTS+2*nts[0]}:{sTS+2*nts[0]+1}]'; nts[0] += 1; return s
def ts():
    if TS: e(ts_line()); e('  s_waitcnt lgkmcnt(0)')
e('  s_cmp_ge_u32 s2, 256'); e('  s_cbranch_scc1 MK_done')
if TS: e(ts_line()); e('  s_memrealtime s[96:97]')
e('  s_load_dwordx8 s[4:11], s[0:1], 0')
e('  s_load_dwordx4 s[84:87], s[0:1], 32')
e('  v_lshrrev_b32 v15, 6, v0')
e('  v_and_b32 v0, 63, v0')
e(f'  v_readfirstlane_b32 s{sW}, v15')
e(f'  v_lshlrev_b32 v{vL0}, 4, v0')
e(f'  v_add_u32 v{vL1}, {HALF}, v{vL0}')
vn, vg, vqr, vqc = 15, 16, 17, 18
e(f'  v_and_b32 v{vn}, 15, v0'); e(f'  v_lshrrev_b32 v{vg}, 4, v0')
vWA = 96
e('  v_lshrrev_b32 v19, 5, v0'); e('  v_bfe_u32 v20, v0, 3, 2'); e('  v_lshl_add_u32 v19, v19, 3, v20')
e('  v_mul_u32_u24 v19, 1152, v19')
e(f'  s_and_b32 s{sH}, s{sW}, 1')
e(f'  s_lshl_b32 s{sT[0]}, s{sH}, 2')
e(f'  v_add_u32 v20, s{sT[0]}, v{vg}'); e('  v_and_b32 v21, 7, v0'); e('  v_xor_b32 v20, v20, v21')
e(f'  v_lshl_add_u32 v{vWA}, v20, 4, v19')
e(f'  s_lshr_b32 s{sT[0]}, s{sW}, 2'); e(f'  s_lshl_b32 s{sT[0]}, s{sT[0]}, 5')
e(f'  s_lshl_b32 s{sT[1]}, s{sH}, 4'); e(f'  s_add_u32 s{sT[0]}, s{sT[0]}, s{sT[1]}')
e(f'  s_and_b32 s{sT[1]}, s{sW}, 2'); e(f'  s_lshl_b32 s{sT[1]}, s{sT[1]}, 1'); e(f'  s_add_u32 s{sT[0]}, s{sT[0]}, s{sT[1]}')
e(f'  s_mul_i32 s{sWB}, s{sT[0]}, 1152')
e(f'  s_lshl_b32 s{sT[9]}, s{sW}, 10')
e(f'  s_cmp_lt_u32 s2, 72'); e(f'  s_cselect_b32 s{sPROD}, 1, 0')
e(f'  s_cmp_eq_u32 s{sW}, 4'); e(f'  s_cselect_b32 s{sPROD}, s{sPROD}, 0')
e('  s_waitcnt lgkmcnt(0)')
TSP = 'tsp' in OPT
def tsp():
    if TSP: e(ts_line())
tsp()
srd(88, 6, 192*576*2)
def w_pieces(c):
    return [[f'  s_add_u32 m0, s{sT[9]}, {c*49152 + mat*24576 + j*8192}',
             f'  s_add_u32 s{sT[4]}, s{sWB}, {j*64*1152 + mat*384 + c*128}',
             f'  buffer_load_dwordx4 v{vWA}, {RW}, s{sT[4]} offen lds'] for mat in range(2) for j in range(3)]
def w_chunk(c):
    for p in w_pieces(c):
        for l in p: e(l)
srd(12, 4, X_BYTES); srd(16, 10, X_BYTES)
srd(4, 8, 192*192*2); srd(8, 84, 256); srd(20, 86, WS_BYTES if TS else 73728)
w_chunk(0)
tsp()
WOL = 147456
e(f'  s_cmp_eq_u32 s{sPROD}, 0'); e('  s_cbranch_scc1 MK_np1')
e(f'  s_mul_hi_u32 s{sT[0]}, s2, 0x15555556')
e(f'  s_mul_i32 s{sT[1]}, s{sT[0]}, 12'); e(f'  s_sub_u32 s{sT[1]}, s2, s{sT[1]}')
e(f'  s_and_b32 s{sT[2]}, s{sT[1]}, 1')
e(f'  s_lshr_b32 s{sT[1]}, s{sT[1]}, 1')
e(f'  s_lshl_b32 s{sT[0]}, s{sT[0]}, 6')
e('  v_lshrrev_b32 v21, 2, v0'); e('  v_mul_u32_u24 v21, 384, v21'); e('  v_and_b32 v20, 3, v0'); e('  v_lshl_add_u32 v21, v20, 4, v21')
for q in range(12):
    e(f'  s_mov_b32 m0, {WOL + q*1024}'); e(f'  s_add_u32 s{sT[4]}, s{sT[0]}, {q*16*384}')
    e(f'  buffer_load_dwordx4 v21, {RWO}, s{sT[4]} offen lds')
e(f'  v_lshrrev_b32 v19, 2, v{vn}')
e(f'  v_lshl_add_u32 v128, v{vg}, 3, v19'); e('  v_lshlrev_b32 v128, 6, v128'); e('  v_lshl_add_u32 v128, v20, 4, v128')
e(f'  s_lshl_b32 s{sT[2]}, s{sT[2]}, 3'); e(f'  s_add_u32 s{sT[2]}, s{sT[2]}, {WOL}'); e(f'  v_add_u32 v128, s{sT[2]}, v128')
e(f'  s_lshr_b32 s{sT[0]}, s{sT[1]}, 1'); e(f'  s_lshl_b32 s{sT[0]}, s{sT[0]}, 3')
e(f'  s_and_b32 s{sT[1]}, s{sT[1]}, 1'); e(f'  s_lshl_b32 s{sT[1]}, s{sT[1]}, 1')
e(f'  s_add_u32 s{sT[0]}, s{sT[0]}, s{sT[1]}'); e(f'  s_lshl_b32 s{sT[0]}, s{sT[0]}, 3')
e('  v_lshrrev_b32 v21, 1, v19'); e('  v_lshlrev_b32 v21, 5, v21')
e('  v_and_b32 v22, 1, v19'); e('  v_lshl_add_u32 v21, v22, 2, v21')
e(f'  v_add3_u32 v21, v21, v20, s{sT[0]}')
e('  v_mul_u32_u24 v21, 1152, v21'); e(f'  v_lshl_add_u32 v21, v{vg}, 4, v21')
e('  v_add_u32 v22, 9216, v21')
for kk in range(6):
    e(f'  buffer_load_dwordx4 {V(136+4*kk)}, v21, {RW}, 0 offen offset:{768+64*kk}')
    e(f'  buffer_load_dwordx4 {V(160+4*kk)}, v22, {RW}, 0 offen offset:{768+64*kk}')
e('MK_np1:')
e(f'  s_bfe_u32 s{sPR}, s2, 0x10002')
e(f'  s_bfe_u32 s{sPC}, s2, 0x10001')
e(f'  s_and_b32 s{sKR}, s2, 1'); e(f'  s_lshl_b32 s{sKR}, s{sKR}, 2')
e(f'  s_lshr_b32 s{sT[0]}, s2, 6'); e(f'  s_add_u32 s{sKR}, s{sKR}, s{sT[0]}')
e(f'  s_bfe_u32 s{sKC}, s2, 0x30003')
e(f'  s_mul_i32 s{sTR}, s{sKR}, 14'); e(f'  s_add_i32 s{sTR}, s{sTR}, -6'); e(f'  s_max_i32 s{sKR}, s{sTR}, -4')
e(f'  s_mul_i32 s{sKC}, s{sKC}, 14'); e(f'  s_add_i32 s{sKC}, s{sKC}, -6')
e(f'  s_lshr_b32 s{sU}, s{sW}, 1'); e(f'  s_add_u32 s{sU}, s{sU}, 2'); e(f'  s_and_b32 s{sU}, s{sU}, 3')
e(f'  s_and_b32 s{sW4}, s{sW}, 3'); e(f'  s_lshl_b32 s{sW4}, s{sW4}, 10')
e(f'  v_lshrrev_b32 v{vqr}, 3, v{vn}'); e(f'  v_and_b32 v{vqc}, 7, v{vn}')
sMR, sAR, sMC, sAC = sT[10], sT[11], sT[12], sT[13]
e(f'  s_sub_u32 s{sMR}, 0, s{sPR}'); e(f'  s_mul_i32 s{sAR}, s{sPR}, 224')
e(f'  s_sub_u32 s{sMC}, 0, s{sPC}'); e(f'  s_mul_i32 s{sAC}, s{sPC}, 224')
e(f'  s_mul_i32 s{sT[0]}, s{sH}, 7'); e(f'  s_add_i32 s{sT[0]}, s{sT[0]}, s{sKC}')
e(f'  v_add_u32 v19, s{sT[0]}, v{vqc}')
e(f'  v_max_i32 v20, 0, v19')
e(f'  v_add3_u32 v19, v19, v20, 6')
e(f'  v_xor_b32 v19, s{sMC}, v19'); e(f'  v_add_u32 v19, s{sAC}, v19')
e(f'  v_subrev_u32 v20, s{sKC}, v20')
e(f'  v_mul_u32_u24 v19, 384, v19'); e(f'  v_lshl_add_u32 v19, v{vg}, 4, v19')
e(f'  s_lshl_b32 s{sT[0]}, s{sU}, 2'); e(f'  s_add_i32 s{sT[0]}, s{sT[0]}, -2')
e(f'  s_mov_b32 s{sT[1]}, 86016')
e(f'  v_cmp_gt_u32 s[{sT[2]}:{sT[3]}], 7, v{vqc}')
for t in range(2):
    e(f'  v_add_u32 v23, s{sT[0]}, v{vqr}')
    if t: e(f'  v_add_u32 v23, 2, v23')
    e(f'  v_add_u32 v{vO[t]}, s{sTR}, v23')
    e(f'  v_max_i32 v{21+t}, 0, v{vO[t]}')
    e(f'  v_add3_u32 v{vO[t]}, v{vO[t]}, v{21+t}, 6')
    e(f'  v_xor_b32 v{vO[t]}, s{sMR}, v{vO[t]}'); e(f'  v_add_u32 v{vO[t]}, s{sAR}, v{vO[t]}')
    e(f'  v_subrev_u32 v{21+t}, s{sKR}, v{21+t}')
    e(f'  v_cmp_gt_u32 vcc, 14, v23')
    e(f'  v_mad_u32_u24 v{vO[t]}, v{vO[t]}, s{sT[1]}, v19')
    e(f'  s_and_b64 vcc, vcc, s[{sT[2]}:{sT[3]}]')
    e(f'  v_mov_b32 v23, 0x80000000')
    e(f'  s_nop 0')
    e(f'  v_cndmask_b32 v{vO[t]}, v23, v{vO[t]}, vcc')
    e(f'  v_cndmask_b32 v{21+t}, v23, v{21+t}, vcc')
def q_loads():
    return [f'  buffer_load_dwordx4 {V(XQ+24*t+4*s_)}, v{vO[t]}, {RX}, 0 offen offset:{64*s_}{NT}' for s_ in range(6) for t in range(2)]
for t in range(2): e(f'  v_cmp_gt_i32 s[{sINV[t]}:{sINV[t]+1}], 0, v{vO[t]}')
e(f'  s_lshl_b32 s{sT[0]}, s{sKR}, 1')
e(f'  s_sub_i32 s{sT[1]}, 221, s{sT[0]}')
e(f'  s_cmp_eq_u32 s{sPR}, 0'); e(f'  s_cselect_b32 s{sXB}, s{sT[0]}, s{sT[1]}')
e(f'  s_cselect_b32 s{sGS}, 1, -1'); e(f'  s_mul_i32 s{sGS}, s{sGS}, 344064')
e(f'  s_mul_i32 s{sXB}, s{sXB}, 86016')
e(f'  s_cmp_lt_i32 s{sKR}, 0'); e(f'  s_cselect_b32 s{sGmin}, 2, 0')
e(f'  s_lshl_b32 s{sM0X}, s{sW4}, 2')
e(f'  s_add_u32 s{sM0X3}, s{sM0X}, 3072'); e(f'  s_min_u32 s{sM0X3}, s{sM0X3}, {14*1024}')
e(f'  s_mul_i32 s{sT[2]}, s{sPR}, 172032')
e(f'  s_sub_u32 s{sT[3]}, 172032, s{sT[2]}')
for b in range(960): assert (b * 2731) >> 16 == b // 24
for j in range(4):
    d = vD[j]
    if j < 3:
        e(f'  s_lshr_b32 s{sT[0]}, s{sM0X}, 4'); e(f'  s_add_u32 s{sT[0]}, s{sT[0]}, {64*j}')
    else: e(f'  s_lshr_b32 s{sT[0]}, s{sM0X3}, 4')
    e(f'  v_add_u32 v23, s{sT[0]}, v0')
    e(f'  v_mul_u32_u24 v{d}, 2731, v23'); e(f'  v_lshrrev_b32 v{d}, 16, v{d}')
    e(f'  v_mul_u32_u24 v19, 24, v{d}'); e(f'  v_sub_u32 v23, v23, v19')
    e(f'  v_cmp_le_u32 vcc, 20, v{d}')
    e(f'  v_subrev_u32 v19, 20, v{d}')
    e(f'  v_mov_b32 v100, s{sT[2]}')
    e(f'  v_cndmask_b32 v{d}, v{d}, v19, vcc')
    e(f'  v_mov_b32 v101, s{sT[3]}')
    e(f'  v_cndmask_b32 v100, v100, v101, vcc')
    e(f'  v_bfe_u32 v19, v{d}, 1, 3')
    e(f'  v_xor_b32 v23, v23, v19')
    e(f'  v_lshl_add_u32 v23, v23, 4, v100')
    e(f'  v_add_u32 v{d}, s{sKC}, v{d}'); e(f'  v_max_i32 v{d}, 0, v{d}'); e(f'  v_lshlrev_b32 v{d}, 1, v{d}')
    e(f'  v_xor_b32 v{d}, s{sMC}, v{d}'); e(f'  v_add_u32 v{d}, s{sAC}, v{d}')
    e(f'  v_mul_u32_u24 v{d}, 384, v{d}'); e(f'  v_add_u32 v{d}, v{d}, v23')
e(f'  s_add_u32 s{sM0X}, s{sM0X}, {XB}'); e(f'  s_add_u32 s{sM0X3}, s{sM0X3}, {XB}')
def dma_x(G):
    out = []
    if G < 2:
        out.append(f'  s_max_u32 s{sT[4]}, s{sGmin}, {G}'); out.append(f'  s_mul_i32 s{sT[4]}, s{sT[4]}, s{sGS}')
    else: out.append(f'  s_mul_i32 s{sT[4]}, s{sGS}, {G}')
    out.append(f'  s_add_i32 s{sT[4]}, s{sT[4]}, s{sXB}')
    for j in range(4):
        if j < 3: out.append(f'  s_add_u32 m0, s{sM0X}, {G*15360 + j*1024}')
        else: out.append(f'  s_add_u32 m0, s{sM0X3}, {G*15360}')
        out.append(f'  s_nop 0')
        out.append(f'  buffer_load_dwordx4 v{vD[j]}, {RX}, s{sT[4]} offen{NT} lds')
    return out
def srel(dst, add):
    e(f'  s_lshl_b32 s{dst}, s{sU}, 2'); e(f'  s_add_i32 s{dst}, s{dst}, {add}'); e(f'  s_max_i32 s{dst}, s{dst}, 0')
    e(f'  s_add_i32 s{dst}, s{dst}, s{sTR}'); e(f'  s_max_i32 s{dst}, s{dst}, 0'); e(f'  s_sub_i32 s{dst}, s{dst}, s{sKR}')
srel(sT[0], -2); srel(sA2, 0)
e(f'  s_sub_u32 s{sT[0]}, s{sA2}, s{sT[0]}')
e(f'  s_cmp_eq_u32 s{sT[0]}, 2'); e(f'  s_cselect_b32 s{sD0}, -1, 7')
e(f'  s_add_i32 s{sA2}, s{sA2}, -1')
e(f'  s_add_i32 s{sR0}, s{sA2}, s{sD0}'); e(f'  s_mul_i32 s{sD0}, s{sD0}, {ROW}')
e(f'  s_lshl_b32 s{sT[1]}, s{sH}, 2')
e(f'  s_mul_i32 s{sT[0]}, s{sA2}, {ROW}'); e(f'  s_add_i32 s{sT[0]}, s{sT[0]}, {XB}')
e(f'  v_add_u32 v19, s{sT[1]}, v{vn}')
e(f'  v_bfe_u32 v23, v19, 1, 3'); e(f'  v_xor_b32 v23, v23, v{vg}')
e(f'  v_mul_u32_u24 v19, 384, v19'); e(f'  v_lshl_add_u32 v19, v23, 4, v19')
e(f'  v_add_u32 v{vSe}, s{sT[0]}, v19'); e(f'  v_xor_b32 v{vSo}, 64, v{vSe}')
e(f'  v_lshrrev_b32 v19, 2, v{vn}'); e(f'  v_lshl_add_u32 v19, v{vg}, 2, v19'); e(f'  v_add_u32 v19, s{sT[1]}, v19')
e(f'  v_bfe_u32 v23, v19, 1, 3')
e(f'  v_and_b32 v{vP[1]}, 2, v{vn}'); e(f'  v_lshlrev_b32 v{vP[1]}, 1, v{vP[1]}'); e(f'  v_xor_b32 v23, v23, v{vP[1]}')
e(f'  v_mul_u32_u24 v19, 384, v19'); e(f'  v_lshl_add_u32 v19, v23, 4, v19')
e(f'  v_and_b32 v23, 1, v{vn}'); e(f'  v_lshl_add_u32 v19, v23, 3, v19')
e(f'  v_add_u32 v{vP[0]}, s{sT[0]}, v19')
for k in range(1, 4): e(f'  v_xor_b32 v{vP[k]}, {16*k}, v{vP[0]}')
e(f'  v_lshl_add_u32 v19, v{vg}, 2, s{sT[1]}'); e('  v_sub_u32 v19, v19, v20')
vMA, vMB, vMW = (97, 98), (99, 100), (101, 102, 103)
e(f'  v_bfe_u32 v23, v{vn}, 1, 3'); e(f'  v_xor_b32 v23, v23, v{vg}')
e(f'  v_lshlrev_b32 v20, 7, v{vn}'); e('  v_lshl_add_u32 v20, v23, 4, v20')
e(f'  s_lshr_b32 s{sT[0]}, s{sW}, 2'); e(f'  s_mul_i32 s{sT[1]}, s{sT[0]}, {6*2048}')
e(f'  v_add_u32 v{vMA[0]}, s{sT[1]}, v20'); e(f'  v_xor_b32 v{vMA[1]}, 64, v{vMA[0]}')
e(f'  s_mul_i32 s{sT[1]}, s{sW4}, 6'); e(f'  s_add_u32 s{sT[1]}, s{sT[1]}, 24576')
e(f'  v_add_u32 v{vMB[0]}, s{sT[1]}, v20'); e(f'  v_xor_b32 v{vMB[1]}, 64, v{vMB[0]}')
e(f'  s_mul_i32 s{sT[0]}, s{sT[0]}, 6'); e(f'  s_sub_u32 s{sT[0]}, 67, s{sT[0]}')
e(f'  s_and_b32 s{sT[1]}, s{sW}, 3'); e(f'  s_mul_i32 s{sT[1]}, s{sT[1]}, 3')
for b in range(3):
    e(f'  s_add_u32 s{sT[2]}, s{sT[1]}, {b}')
    e(f'  s_lshr_b32 s{sT[3]}, s{sT[2]}, 1'); e(f'  s_mul_i32 s{sT[3]}, s{sT[3]}, 12')
    e(f'  s_and_b32 s{sT[2]}, s{sT[2]}, 1'); e(f'  s_add_u32 s{sT[2]}, s{sT[2]}, s{sT[3]}')
    e(f'  s_sub_u32 s{sT[2]}, s{sT[0]}, s{sT[2]}'); e(f'  s_lshl_b32 s{sT[2]}, s{sT[2]}, 10')
    e(f'  v_add_u32 v{vMW[b]}, s{sT[2]}, v{vL0}')
sb = {0: (20, 0)}
PB0 = (15, 16, 17, 18)
e(f'  v_add_u32 v20, s{sD0}, v{vSe}'); e(f'  v_add_u32 v0, s{sD0}, v{vSo}')
for k in range(4): e(f'  v_add_u32 v{PB0[k]}, s{sD0}, v{vP[k]}')
e(f'  s_mov_b32 s{sSC}, {SCALE}')
e(f'  s_cmp_lt_u32 s{sW}, 4'); e('  s_cselect_b64 vcc, -1, 0')
tsp()
w_chunk(1)
ts()
def bias_init(tmp):
    out = []; o = out.append
    cb, ninf, tt = tmp, tmp+4, tmp+5
    o(f'  v_mov_b32 v{ninf}, 0xff800000')
    for i in range(4): o(f'  v_add_u32 v{tt+i}, {i}, v19')
    for i in range(4): o(f'  v_cmp_gt_u32 s[{sT[2+2*i]}:{sT[3+2*i]}], 7, v{tt+i}')
    for i in range(4): o(f'  v_cndmask_b32 v{cb+i}, v{ninf}, 0, s[{sT[2+2*i]}:{sT[3+2*i]}]')
    for t in range(2):
        for j4 in range(2):
            for jj in range(4*j4, 4*j4+4):
                slot = jj + 2*t; r = tt + jj % 4
                if slot == 0: o(f'  v_sub_u32 v{r}, s{sR0}, v{21+t}')
                else:
                    o(f'  s_add_i32 s{sT[0]}, s{sA2}, {slot-1}'); o(f'  v_sub_u32 v{r}, s{sT[0]}, v{21+t}')
            for q in range(4): o(f'  v_cmp_gt_u32 s[{sT[2+2*q]}:{sT[3+2*q]}], 7, v{tt+q}')
            for jj in range(4*j4, 4*j4+4):
                q = jj % 4
                for i in range(4):
                    o(f'  v_cndmask_b32 v{SACC[t]+4*jj+i}, v{ninf}, v{cb+i}, s[{sT[2+2*q]}:{sT[3+2*q]}]')
    return out
MACC = 24
def m_reads(kk):
    rb = 184 + 36*(kk % 2)
    return ([f'  ds_read_b128 {V(rb+24+4*b)}, v{vMB[kk % 2]} offset:{2048*b}' for b in range(3)] +
            [f'  ds_read_b128 {V(rb+4*a)}, v{vMA[kk % 2]} offset:{2048*a}' for a in range(6)])
for kk in range(6):
    c = kk // 2
    extra = []
    if kk % 2 == 0:
        if c < 2: e('  s_waitcnt vmcnt(6)')
        else:
            e('  s_cbranch_vccz MW2'); e('  s_waitcnt vmcnt(12)'); e('  s_branch MX2')
            e('MW2:'); e('  s_waitcnt vmcnt(0)'); e('MX2:')
        e('  s_barrier')
        if TSP: ts()
        if c:
            for r in vMA + vMB: e(f'  v_add_u32 v{r}, 49152, v{r}')
        for l in m_reads(kk): e(l)
    if kk == 0: extra = w_pieces(2)
    if kk in (2, 3):
        q = q_loads()[6*(kk-2):6*(kk-2)+6]
        extra = [[f'  s_cbranch_vccz MQ{kk}{i}', x, f'MQ{kk}{i}:'] for i, x in enumerate(q)]
    rb = 184 + 36*(kk % 2)
    nx = m_reads(kk+1) if kk % 2 == 0 else []
    issued = 0
    for a in range(6):
        e(f'  s_waitcnt lgkmcnt({5 - a + issued})')
        if kk == 5 and a == 5:
            e(f'  s_cmp_eq_u32 s{sPROD}, 0'); e('  s_cbranch_scc1 MK_np2')
            for k2 in range(6):
                for hf in range(2):
                    e(f'  ds_read_b64_tr_b16 {V(104+4*k2+2*hf, 2)}, v128 offset:{(32*k2 + 4*hf)*64}')
            e('  s_waitcnt lgkmcnt(0)')
            e('MK_np2:')
            e('  s_barrier')
        for b in range(3):
            acc = MACC + 12*a + 4*b
            e(mfma(acc, rb+4*a, rb+24+4*b, None if kk == 0 else acc))
            if nx and b < 2 and a >= 1 and 5 - a + issued < 14:
                e(nx.pop(0)); issued += 1
            if b == 2 and extra:
                for l in extra.pop(0): e(l)
    for l in nx: e(l)
ts()
e('  s_nop 4')
for a3 in range(3):
    for b in range(3):
        o = 184 + 4*(3*a3 + b)
        for a in range(2):
            acc = MACC + 12*(2*a3 + a) + 4*b
            for i in range(2): e(f'  v_cvt_pk_bf16_f32 v{o+2*a+i}, v{acc+2*i}, v{acc+2*i+1}')
        e(f'  ds_write_b128 v{vMW[b]}, {V(o)} offset:{2048*(2-a3)}')
e('  s_waitcnt lgkmcnt(0)')
e('  s_barrier')
e('  s_cbranch_vccnz MK_nobi')
e(f'  s_cmp_eq_u32 s{sPROD}, 0'); e('  s_cbranch_scc1 MK_np3')
for kk in range(6):
    e(mfma(184, 136+4*kk, 104+4*kk, None if kk == 0 else 184))
    e(mfma(188, 160+4*kk, 104+4*kk, None if kk == 0 else 188))
e('  s_nop 7')
for r in range(4): e(f'  v_cvt_pk_bf16_f32 v{132+r}, v{184+2*r}, v{185+2*r}')
e(f'  s_lshl_b32 s{sT[4]}, s2, 10')
e(f'  buffer_store_dwordx4 v[132:135], v{vL0}, {RWS}, s{sT[4]} offen sc1')
e('MK_np3:')
for l in q_loads(): e(l)
for l in bias_init(QP): e(l)
for G in (9, 8, 7, 6, 5):
    for l in dma_x(G): e(l)
e('MK_nobi:')

stream = []; frags = []
def add_frag(reads, gate): frags.append(dict(reads=reads, gate=gate, uses=0)); return len(frags) - 1
def use(fid, fn): frags[fid]['uses'] += 1; stream.append(('mfma', fn, fid))
def mf(text): stream.append(('mfma', (lambda buf: text), None))
def raw(*lines):
    for l in lines: stream.append(('raw', l))
def fill(*lines):
    for l in lines: stream.append(('fill', l))
def flush(): stream.append(('flush',))
def need(fid): stream.append(('need', fid))
def gate(name): stream.append(('gate', name))
def role(r, lines): stream.append(('role', r, lines))
def role2(lo, ly): stream.append(('role2', lo, ly))
def tsr():
    if TS and not TSP: stream.append(('ts', ts_line()))
BAR = '  s_barrier'
def m_read(f):
    addr = (71-f)*1024
    if addr < HALF: return [f'  ds_read_b128 {{d4}}, v{vL0} offset:{addr}']
    return [f'  ds_read_b128 {{d4}}, v{vL1} offset:{addr-HALF}']
def n_addr(f): return NHI + 1024*f if f < 60 else (f-60)*1024
def n_read(f):
    if f >= 70: return []
    if f < 60: return [f'  ds_read_b128 {{d4}}, v{vL1} offset:{1024*f}']
    return [f'  ds_read_b128 {{d4}}, v{vL0} offset:{(f-60)*1024}']
def dma_n(f0, fmax):
    lim = (fmax - f0) * 1024
    out = []
    if lim < 3072:
        out.append(f'  s_min_u32 s{sT[5]}, s{sW4}, {lim}'); src = sT[5]
    else: src = sW4
    out += [f'  s_add_u32 m0, s{src}, {n_addr(f0)}', f'  s_add_u32 s{sT[4]}, s{src}, {f0*1024}',
            f'  buffer_load_dwordx4 v{vL0}, {RWS}, s{sT[4]} offen sc1 lds']
    return out
def dma_n_range(a, b):
    out = []; n = 0
    for f0 in range(a, b, 4): out += dma_n(f0, b-1); n += 1
    return out, n

def proj(B, rd, gate_of, post, hooks):
    for s in range(6):
        for ks in range(6):
            for hh in range(2):
                f = 12*s + 2*ks + hh
                fid = add_frag(rd(f), gate_of(f))
                if f in hooks: hooks[f](fid)
                for t in range(2):
                    acc = ACC + 16*(s % 2) + 8*t + 4*hh
                    fx = None if rd(f) else NREG + 4*(f-70)
                    use(fid, (lambda buf, acc=acc, t=t, ks=ks, fx=fx: mfma(acc, buf if fx is None else fx, B(t, ks), None if ks == 0 else acc)))
        flush()
        fill(*post(s))

gate('G0')
tsr()
def p1_post(s):
    out = []
    for t in range(2):
        acc = ACC + 16*(s % 2) + 8*t
        for r in range(8): out.append(f'  v_mul_f32 v{acc+r}, s{sSC}, v{acc+r}')
        for r in range(4): out.append(f'  v_cvt_pk_bf16_f32 v{QP+24*t+4*s+r}, v{acc+2*r}, v{acc+2*r+1}')
    return out
hk = {}
for ks in range(6):
    hk[2*ks] = (lambda fid, ks=ks: role2([f'  s_waitcnt vmcnt({10-2*ks})'], [f'  s_waitcnt vmcnt({30-2*ks})']))
hk[13] = lambda fid: (raw(f'  s_cmp_eq_u32 s{sPROD}, 0', '  s_cbranch_scc1 MK_np4'),
                      [stream.append(('label', l)) for l in ('  v_mov_b32 v23, 1', '  s_mov_b64 exec, 1',
                       f'  buffer_atomic_add v23, off, {RDB}, 0 sc1', '  s_mov_b64 exec, -1', '  s_nop 3', 'MK_np4:')])
hk[31] = lambda fid: (need(fid), role('Y', [BAR]))
hk[61] = lambda fid: (need(fid), role('Y', ['  s_waitcnt vmcnt(0)', BAR]))
proj(lambda t, ks: XQ+24*t+4*ks, m_read, lambda f: 'G0', p1_post, hk)
flush()
raw(f'  v_add_u32 v{vL1}, {NHI}, v{vL0}')
for r in range(4): raw(f'  v_mov_b32 v{ONES+r}, 0x3f803f80')
tsr()
role2(bias_init(XQ) + [BAR] + dma_x(4) + dma_x(3) + dma_x(2) + ['  s_waitcnt vmcnt(0)', BAR] + dma_x(1) + dma_x(0), [BAR])
if TS: raw('  s_memrealtime s[94:95]')
gate('S')
tsr()
etn = [0]
def sm_fill(t, jj):
    tmp = ET + 4*(etn[0] % 5); etn[0] += 1
    acc = SACC[t] + 4*jj
    for i in range(4): fill(f'  v_exp_f32 v{tmp+i}, v{acc+i}')
    for i in range(2): fill(f'  v_cvt_pk_bf16_f32 v{PREG[t]+2*jj+i}, v{tmp+2*i}, v{tmp+2*i+1}')
    stream.append(('tag', f'P{t}_{jj}'))
def sum_mfmas(t):
    stream.append(('flushto', f'P{t}_7'))
    for kt in range(4): mf(mfma(SUM[t], ONES, PREG[t]+4*kt, None if kt == 0 else SUM[t]))
LO, HI = (127-30) << 23, (127+30) << 23
def check(t):
    raw(f'  v_subrev_u32 v{RI[1]}, {LO}, v{SUM[t]}')
    raw(f'  s_mov_b32 s{sT[6]}, {HI-LO}')
    raw(f'  v_cmp_gt_u32 s[{sT[2]}:{sT[3]}], s{sT[6]}, v{RI[1]}')
    raw(f'  s_or_b64 s[{sT[2]}:{sT[3]}], s[{sT[2]}:{sT[3]}], s[{sINV[t]}:{sINV[t]+1}]')
    raw(f'  s_cmp_eq_u64 s[{sT[2]}:{sT[3]}], -1')
    raw(f'  s_cbranch_scc0 FB{t}')
    stream.append(('label', f'FBR{t}:'))
B4SLOT = int(OPT.get('b4', 5)); B5SLOT = int(OPT.get('b5', 2)); B6ST = int(OPT.get('b6', 0))
for slot in range(10):
    if slot == B4SLOT: role('O', ['  s_waitcnt vmcnt(0)', BAR])
    if slot == B5SLOT: role('Y', [BAR])
    for s in range(6):
        if slot == 9 and s == 3: sum_mfmas(0)
        if slot in sb: base, off = sb[slot][s % 2], 128*(s//2)
        else: base, off = (vSe, vSo)[s % 2], (slot-1)*ROW + 128*(s//2)
        fid = add_frag([f'  ds_read_b128 {{d4}}, v{base} offset:{off}'], 'S')
        for t in range(2):
            jj = slot - 2*t
            if 0 <= jj < 8:
                acc = SACC[t] + 4*jj
                use(fid, (lambda buf, acc=acc, t=t, s=s: mfma(acc, buf, QP+24*t+4*s, acc)))
    for t in range(2):
        jj = slot - 2*t
        if 0 <= jj < 8: sm_fill(t, jj)
tsr()
POLL = f'  buffer_load_dword v13, off, {RDB}, 0 sc1'
role('O', [POLL])
check(0)
lastf = None
for st in range(5):
    if st == 1:
        sum_mfmas(1)
        check(1)
    if st == B6ST: role('Y', [BAR])
    if st == 4:
        for ks in range(6):
            for hf in range(2):
                y = YACC[0][2*ks+hf]
                for i in range(2): fill(f'  v_cvt_pk_bf16_f32 v{YB[0][ks]+2*hf+i}, v{y+2*i}, v{y+2*i+1}')
    for ct in range(12):
        tl = [t for t in range(2) if 0 <= st - t < 4]
        b_, e_ = ct // 4, ct % 4
        rd = []
        for hf in range(2):
            slot = 2*st + hf
            if slot == 0: base, off = PB0[e_], 128*b_
            else: base, off = vP[e_], (slot-1)*ROW + 128*b_
            rd.append(f'  ds_read_b64_tr_b16 {{d{"lo" if hf == 0 else "hi"}}}, v{base} offset:{off}')
        fid = add_frag(rd, 'S'); lastf = fid
        for t in tl:
            acc = YACC[t][ct]
            use(fid, (lambda buf, acc=acc, t=t, st=st: mfma(acc, buf, PREG[t]+4*(st-t), None if st == t else acc)))
n1a, c1a = dma_n_range(0, 60); n1b, c1b = dma_n_range(60, 70)
pollw = [f'  s_mov_b32 s{sT[7]}, 0x400000', 'NPOLL:', '  s_waitcnt vmcnt(0)', f'  v_readfirstlane_b32 s{sT[0]}, v13', f'  s_sub_u32 s{sT[7]}, s{sT[7]}, 1',
         f'  s_cselect_b32 s{sT[0]}, 72, s{sT[0]}', f'  s_cmp_ge_u32 s{sT[0]}, 72', '  s_cbranch_scc1 NPOLLD', POLL, '  s_branch NPOLL', 'NPOLLD:']
role('O', [BAR] + pollw + n1a + n1b)
tsr()
flush()
for ks in range(6):
    for hf in range(2):
        y = YACC[1][2*ks+hf]
        for i in range(2): raw(f'  v_cvt_pk_bf16_f32 v{YB[1][ks]+2*hf+i}, v{y+2*i}, v{y+2*i+1}')
for t in range(2): raw(f'  v_rcp_f32 v{RI[t]}, v{SUM[t]}')
role('O', ['  s_waitcnt vmcnt(0)', BAR])
raw(f'  s_mov_b32 s{sT[4]}, {70*1024}')
for i in range(2): raw(f'  buffer_load_dwordx4 {V(NREG+4*i)}, v{vL0}, {RWS}, s{sT[4]} offen offset:{1024*i} sc1')
gate('P4a')
tsr()
def p4_post(s):
    out = []
    for t in range(2):
        acc = ACC + 16*(s % 2) + 8*t
        o = OUTR + 8*(s % 2) + 4*t
        if 'nomul' not in OPT:
            for r in range(8): out.append(f'  v_mul_f32 v{acc+r}, v{acc+r}, v{RI[t]}')
        for r in range(4): out.append(f'  v_cvt_pk_bf16_f32 v{o+r}, v{acc+2*r}, v{acc+2*r+1}')
        if 'nost' not in OPT: out.append(f'  buffer_store_dwordx4 {V(o)}, v{vO[t]}, {RO}, 0 offen offset:{64*s}{NTO}')
    return out
proj(lambda t, ks: YB[t][ks], n_read, lambda f: 'P4a', p4_post, {60: lambda fid: raw('  s_waitcnt vmcnt(8)')})
flush()
tsr()

def regs_of(tok):
    m = re.fullmatch(r'v\[(\d+):(\d+)\]', tok)
    if m: return list(range(int(m.group(1)), int(m.group(2)) + 1))
    m = re.fullmatch(r'-?v(\d+)', tok)
    return [int(m.group(1))] if m else []
def parse(line):
    p = line.strip().split(None, 1)
    op = p[0]; args = [a.strip().split()[0] for a in p[1].split(',')] if len(p) > 1 else []
    return op, args
clock = [0]
mf_w = {}; va_w = {}; tr_w = {}; mf_c = {}
def hazard(line):
    op, args = parse(line); need_ = 0
    allr = [r for a in args for r in regs_of(a)]
    if op.startswith('v_mfma'):
        src = [r for a in args[1:] for r in regs_of(a)]
        for r in src:
            if r in va_w: need_ = max(need_, 2 - (clock[0] - va_w[r] - 1))
        for r in regs_of(args[1]) + regs_of(args[2]):
            if r in mf_w: need_ = max(need_, 8 - (clock[0] - mf_w[r] - 1))
    elif op.startswith('v_') or op.startswith('buffer_') or op.startswith('ds_'):
        for r in allr:
            if r in mf_w: need_ = max(need_, 8 - (clock[0] - mf_w[r] - 1))
        if op.startswith('v_'):
            for r in regs_of(args[0]):
                if r in mf_c: need_ = max(need_, 3 - (clock[0] - mf_c[r] - 1))
            srcs = allr if op.startswith('v_permlane') else [r for a in args[1:] for r in regs_of(a)]
            for r in srcs:
                if op.startswith('v_permlane') and r in va_w: need_ = max(need_, 2 - (clock[0] - va_w[r] - 1))
                if r in tr_w: need_ = max(need_, 1 - (clock[0] - tr_w[r] - 1))
    return need_
def emit(line):
    if line.endswith(':'):
        e(line); return
    n = hazard(line)
    if n > 0:
        e(f'  s_nop {n-1}'); clock[0] += n
    op, args = parse(line)
    e(line)
    if op.startswith('v_mfma'):
        for r in regs_of(args[0]): mf_w[r] = clock[0]
        for r in regs_of(args[3]): mf_c[r] = clock[0]
    elif op.startswith('v_'):
        d = regs_of(args[0]) + (regs_of(args[1]) if op.startswith('v_permlane') else [])
        for r in d:
            va_w[r] = clock[0]; tr_w.pop(r, None)
            if op in ('v_exp_f32', 'v_rcp_f32'): tr_w[r] = clock[0]
    if op == 's_nop': clock[0] += int(args[0])
    clock[0] += 1

gates = set(); nxt = 0; done_uses = [0]*len(frags)
ops = []; landed = -1; half = [None]
fq = []
def buf_of(f): return ABUF + 4*(f % NB)
def issue_one():
    global nxt
    while True:
        if half[0] is not None:
            emit(half[0]); ops.append(nxt); half[0] = None; nxt += 1; return True
        if nxt >= len(frags): return False
        fr = frags[nxt]
        if fr['gate'] not in gates: return False
        if nxt >= NB and done_uses[nxt-NB] < frags[nxt-NB]['uses']: return False
        if not fr['reads']:
            nxt += 1; continue
        if len(ops) + len(fr['reads']) > 15: return False
        b = buf_of(nxt)
        rs = [r.format(d4=V(b), dlo=V(b, 2), dhi=V(b+2, 2)) for r in fr['reads']]
        emit(rs[0]); ops.append(nxt)
        if len(rs) == 2: half[0] = rs[1]
        else: nxt += 1
        return True
def wait_for(f):
    global landed, ops
    if f is None or f <= landed: return
    while nxt <= f:
        n0 = nxt
        if not issue_one() and nxt == n0: raise RuntimeError(f'cannot issue frag {nxt}')
    if any(o <= f for o in ops):
        if f + 1 < nxt and sum(1 for o in ops if o > f + 1) >= PAIRMIN: f = f + 1
        n = sum(1 for o in ops if o > f)
        emit(f'  s_waitcnt lgkmcnt({n})')
        ops = [o for o in ops if o > f]
    landed = f
lab = [0]
BACKLOG = int(OPT.get('backlog', 6))
PAIRMIN = int(OPT.get('pairmin', 5))
STREAM_NEXT = {}
mi = [i for i, x in enumerate(stream) if x[0] == 'mfma']
for a_, b_ in zip(mi, mi[1:]): STREAM_NEXT[a_] = stream[b_][2]
for si, ent in enumerate(stream):
    k = ent[0]
    if k == 'raw': emit(ent[1])
    elif k == 'fill': fq.append(ent[1])
    elif k == 'flush':
        for l in fq:
            if not l.startswith('#'): emit(l)
        fq = []
    elif k == 'tag': fq.append('#' + ent[1])
    elif k == 'flushto':
        if '#' + ent[1] in fq:
            i = fq.index('#' + ent[1])
            for l in fq[:i]:
                if not l.startswith('#'): emit(l)
            fq = fq[i+1:]
    elif k == 'label': e(ent[1])
    elif k == 'ts':
        if half[0] is not None: issue_one()
        e(ent[1]); e('  s_waitcnt lgkmcnt(0)'); ops = []; landed = nxt - 1
    elif k == 'gate':
        gates.add(ent[1])
        while issue_one(): pass
    elif k == 'need': wait_for(ent[1])
    elif k == 'role':
        lab[0] += 1
        emit(f'  s_cbranch_vcc{"z" if ent[1] == "O" else "nz"} RL{lab[0]}')
        for l in ent[2]: e(l)
        e(f'RL{lab[0]}:')
    elif k == 'role2':
        lab[0] += 1
        emit(f'  s_cbranch_vccz RL{lab[0]}')
        for l in ent[1]: e(l)
        e(f'  s_branch RM{lab[0]}')
        e(f'RL{lab[0]}:')
        for l in ent[2]: e(l)
        e(f'RM{lab[0]}:')
    elif k == 'mfma':
        wait_for(ent[2])
        emit(ent[1](buf_of(ent[2]) if ent[2] is not None else None))
        if ent[2] is not None: done_uses[ent[2]] += 1
        slots = 2
        nf = STREAM_NEXT.get(si)
        if nf is not None and nf > landed: slots -= 1
        ahead = nxt - (ent[2] if ent[2] is not None else landed)
        if issue_one(): slots -= 1
        if (half[0] is not None or (slots > 0 and (not fq or ahead < 6))) and issue_one(): slots -= 1
        if sum(1 for l in fq if 'v_exp' in l) > BACKLOG: slots = max(slots, 2)
        while fq:
            if fq[0].startswith('#'): fq.pop(0); continue
            cost = 2 if 'v_exp' in fq[0] else 1
            if slots < cost or hazard(fq[0]) > 0: break
            emit(fq.pop(0)); slots -= cost
if TS:
    e('  s_waitcnt vmcnt(0)')
    e(ts_line()); e('  s_memrealtime s[98:99]')
    e('  s_waitcnt lgkmcnt(0)')
    e(f'  s_lshl_b32 s{sT[0]}, s2, 3'); e(f'  s_add_u32 s{sT[0]}, s{sT[0]}, s{sW}'); e(f'  s_lshl_b32 s{sT[0]}, s{sT[0]}, 6')
    e(f'  s_add_u32 s{sT[0]}, s{sT[0]}, 0x100000')
    e('  v_mov_b32 v1, 0')
    for i in range(nts[0]):
        if i == 0: e(f'  v_mov_b32 v2, s{sTS}')
        else:
            e(f'  s_sub_u32 s{sT[1]}, s{sTS+2*i}, s{sTS}'); e(f'  v_mov_b32 v2, s{sT[1]}')
        e(f'  buffer_store_dword v2, v1, s[20:23], s{sT[0]} offen offset:{4*i}')
    e('  v_mov_b32 v2, s94'); e(f'  buffer_store_dword v2, v1, s[20:23], s{sT[0]} offen offset:52')
    e('  v_mov_b32 v2, s96'); e('  v_mov_b32 v3, s98')
    e(f'  buffer_store_dwordx2 v[2:3], v1, s[20:23], s{sT[0]} offen offset:56')
    print('timestamps', nts[0]); assert nts[0] <= 12
e('MK_done:')
e('  s_endpgm')
for t in range(2):
    R = SACC[t]; vm, vt = RI[0], RI[1]
    e(f'FB{t}:')
    e('  s_nop 7')
    e(f'  v_max3_f32 v{vm}, v{R}, v{R+1}, v{R+2}')
    for k in range(3, 31, 2): e(f'  v_max3_f32 v{vm}, v{vm}, v{R+k}, v{R+k+1}')
    e(f'  s_mov_b32 s{sT[6]}, 0xff7fffff')
    e(f'  v_max3_f32 v{vm}, v{vm}, v{R+31}, s{sT[6]}')
    for sw in ('v_permlane32_swap_b32', 'v_permlane16_swap_b32'):
        e(f'  v_mov_b32 v{vt}, v{vm}'); e('  s_nop 1'); e(f'  {sw} v{vm}, v{vt}'); e('  s_nop 1')
        e(f'  v_max_f32 v{vm}, v{vm}, v{vt}')
    for k in range(32): e(f'  v_sub_f32 v{R+k}, v{R+k}, v{vm}')
    for k in range(32): e(f'  v_exp_f32 v{R+k}, v{R+k}')
    e('  s_nop 0')
    for k in range(16): e(f'  v_cvt_pk_bf16_f32 v{PREG[t]+k}, v{R+2*k}, v{R+2*k+1}')
    e('  s_nop 1')
    for kt in range(4): e(mfma(SUM[t], ONES, PREG[t]+4*kt, None if kt == 0 else SUM[t]))
    e('  s_nop 7')
    e(f'  s_branch FBR{t}')

e('.section .rodata,"a"')
e('.p2align 6'); e(f'.amdhsa_kernel {KN}')
e('  .amdhsa_next_free_vgpr 256'); e('  .amdhsa_next_free_sgpr 102'); e('  .amdhsa_accum_offset 256')
e('  .amdhsa_group_segment_fixed_size 0'); e('  .amdhsa_kernarg_size 48'); e('  .amdhsa_user_sgpr_count 2')
e('  .amdhsa_user_sgpr_kernarg_segment_ptr 1'); e('  .amdhsa_system_sgpr_workgroup_id_x 1')
e('.end_amdhsa_kernel')
open(OUTF, 'w').write('\n'.join(L) + '\n')
```

```python
import sys
src, dst, wave, col, mode = sys.argv[1], sys.argv[2], int(sys.argv[3]), int(sys.argv[4]), sys.argv[5]
s = open(src).read()
KN = 'standalone__neighborhood_nat__vision_kernel'
s = s.replace("; @launch grid=(256,1,1) block=(512,1,1) lds=163840\n", f"; @launch kernel={KN} grid=(256,1,1) block=(512,1,1) lds=163840\n; @launch kernel=rep_kernel grid=(1,1,1) block=(64,1,1) lds=0\n")
L = []; e = L.append
e('.globl rep_kernel'); e('.p2align 8'); e('.type rep_kernel,@function'); e('rep_kernel:')
e('  s_cmp_ge_u32 s2, 1'); e('  s_cbranch_scc1 RP_done')
e('  s_load_dwordx2 s[8:9], s[0:1], 40'); e('  s_waitcnt lgkmcnt(0)')
e('  s_mov_b32 s20, s8'); e('  s_and_b32 s21, s9, 0xffff'); e('  s_mov_b32 s22, 268435456'); e('  s_mov_b32 s23, 0x00020000')
c = max(col, 0) if col != 99 else 14
e('  v_lshlrev_b32 v1, 9, v0'); e(f'  v_add_u32 v1, {0x100000 + wave*64 + 4*c}, v1')
for i in range(4):
    e(f'  s_mov_b32 s3, {i*32768}'); e(f'  buffer_load_dwordx2 v[{8+2*i}:{9+2*i}], v1, s[20:23], s3 offen')
e('  s_waitcnt vmcnt(0)')
if col == 99:
    e('  v_readfirstlane_b32 s15, v8'); e('  s_nop 3')
    for i in range(8): e(f'  v_subrev_u32 v{8+i}, s15, v{8+i}')
    e('  v_min_i32 v2, v8, v10'); e('  v_min_i32 v2, v2, v12'); e('  v_min_i32 v2, v2, v14')
    e('  v_max_i32 v3, v9, v11'); e('  v_max_i32 v3, v3, v13'); e('  v_max_i32 v3, v3, v15')
    e('  s_mov_b32 s24, 0x80000000'); e('  s_mov_b32 s25, 0x7fffffff')
    for l in range(64):
        e(f'  v_readlane_b32 s26, v3, {l}'); e(f'  v_readlane_b32 s27, v2, {l}'); e('  s_nop 1'); e('  s_max_i32 s24, s24, s26'); e('  s_min_i32 s25, s25, s27')
    e('  s_sub_u32 s14, s24, s25')
else:
    op, sop = ('v_add_u32', 's_add_u32') if mode == 'avg' else ('v_max_u32', 's_max_u32')
    e(f'  {op} v2, v8, v10'); e(f'  {op} v2, v2, v12'); e(f'  {op} v2, v2, v14'); e('  s_mov_b32 s14, 0')
    for l in range(64):
        e(f'  v_readlane_b32 s26, v2, {l}'); e(f'  v_readlane_b32 s27, v2, {l}'); e('  s_nop 1'); e(f'  {sop} s14, s14, s26'); e('  s_min_i32 s25, s25, s27')
    e(f'  s_lshr_b32 s14, s14, {12 if mode == "avg" else 4}')
    if col < 0: e('  s_mov_b32 s14, 0')
e('  s_min_u32 s14, s14, 10000'); e('  s_add_u32 s14, s14, 500')
e('  s_memrealtime s[16:17]'); e('  s_waitcnt lgkmcnt(0)')
e('RP_l:'); e('  s_memrealtime s[18:19]'); e('  s_waitcnt lgkmcnt(0)'); e('  s_sub_u32 s18, s18, s16'); e('  s_cmp_lt_u32 s18, s14'); e('  s_cbranch_scc1 RP_l')
e('RP_done:'); e('  s_endpgm')
s = s.replace('.section .rodata,"a"\n', '\n'.join(L) + '\n.section .rodata,"a"\n', 1)
s += """.p2align 6
.amdhsa_kernel rep_kernel
  .amdhsa_next_free_vgpr 32
  .amdhsa_next_free_sgpr 32
  .amdhsa_accum_offset 32
  .amdhsa_group_segment_fixed_size 0
  .amdhsa_kernarg_size 48
  .amdhsa_user_sgpr_count 2
  .amdhsa_user_sgpr_kernarg_segment_ptr 1
  .amdhsa_system_sgpr_workgroup_id_x 1
.end_amdhsa_kernel
"""
open(dst, 'w').write(s)
```

```python
import sys, struct, math, re
OPT = dict(a.split('=') if '=' in a else (a, '1') for a in sys.argv[1:])
OUTF = OPT.get('out', 'standalone__neighborhood_nat__vision.s')
TS = 'ts' in OPT
TSM = [int(x) for x in OPT['tsm'].split(',')] if 'tsm' in OPT else []
TSP = 'tsp' in OPT
def opt(k, d): return int(OPT.get(k, d))
L = []
def e(s): L.append(s)
def el(ls):
    for l in ls: L.append(l)

X_BYTES = 19267584
WS_BYTES = 268435456
XB = 10240
ROW = 7680
HALF = 36864
NHI = XB + 12*ROW
WOL = 147456
SCALE = struct.unpack('<I', struct.pack('<f', (192 ** -0.5) * math.log2(math.e)))[0]
NT = ' nt' if 'nt' in OPT else ''
NSC = '' if 'nplain' in OPT else ' sc1'
NTO = ' ' + OPT.get('st', 'nt+sc1').replace('+', ' ')
KN = 'standalone__neighborhood_nat__vision_kernel'

hdr = open('standalone__neighborhood_nat__vision.s.ref').read().split('\n')
for ln in hdr:
    if ln.startswith('; @launch'): break
    e(ln)
e('; @launch grid=(256,1,1) block=(512,1,1) lds=163840')
e('.amdgcn_target "amdgcn-amd-amdhsa--gfx950"')
e('.text')

def srd(d, b, n):
    return [f'  s_mov_b32 s{d}, s{b}', f'  s_and_b32 s{d+1}, s{b+1}, 0xffff', f'  s_mov_b32 s{d+2}, {n}', f'  s_mov_b32 s{d+3}, 0x00020000']
def V(a, n=4): return f'v[{a}:{a+n-1}]'
def mfma(d, a, b, c):
    cs = '0' if c is None else V(c)
    return f'  v_mfma_f32_16x16x32_bf16 {V(d)}, {V(a)}, {V(b)}, {cs}'

vL0, vL1 = 1, 2
vO = (5, 6)
vSe, vSo = 7, 8
vP = (9, 10, 11, 12)
vD = (13, 14, 3, 4)
PB0 = (15, 16, 17, 18)
vCT = 19
SB0 = (20, 0)
vRR = (21, 22)
RI = (22, 23)
SACC = (24, 56); QP = 88; XQ = 136; ACC = 184
ABUF = 216; NB = 10
PREG = (136, 152)
YB = ([136, 140, 144, 148, 168, 172], [152, 156, 160, 164, 176, 180])
YACC = ([24+4*i for i in range(12)], [88+4*i for i in range(12)])
SUM = (184, 188); ONES = 192; ET = 196
OUTR = 24; NREG = 40
MACC = 24; MPK = 104
vWA = 96; vMA, vMB, vMW = (97, 98), (99, 100), (101, 102, 103)
vn, vg, tA, tB, tC, tD = 128, 129, 130, 131, 132, 133
vNB, vNA = 134, 135
sW, sU, sH, sPR, sPC, sKR, sKC, sXB, sGS, sGmin = range(24, 34)
sA2, sR0, sD0, sTR, sM0X, sM0X3, sW4, sWL = range(34, 42)
sINV = (42, 44)
sT = list(range(46, 60))
sMR, sAR, sMC, sAC = sT[10], sT[11], sT[12], sT[13]
sTS = 60
sPROD, sWB, sSC, sVO = 3, 92, 93, 100
RX, RO, RWS, RW, RWO, RDB = 's[12:15]', 's[16:19]', 's[20:23]', 's[88:91]', 's[4:7]', 's[8:11]'
MSK = f's[{sT[6]}:{sT[7]}]'
assert sT[6] % 2 == 0 and sT[2] % 2 == 0

nts = [0]
def ts_line():
    s = f'  s_memtime s[{sTS+2*nts[0]}:{sTS+2*nts[0]+1}]'; nts[0] += 1; return s
def tsp():
    if TSP: e(ts_line())

e(f'.globl {KN}'); e('.p2align 8'); e(f'.type {KN},@function'); e(f'{KN}:')
e('  s_cmp_ge_u32 s2, 256'); e('  s_cbranch_scc1 MK_done')
if TS: e(ts_line()); e('  s_memrealtime s[96:97]')
e('  s_load_dwordx8 s[4:11], s[0:1], 0')
e('  s_load_dwordx4 s[84:87], s[0:1], 32')
if 'nopf' not in OPT:
    e('  s_getpc_b64 s[12:13]'); e('MK_pc:')
    e('  s_and_b32 s13, s13, 0xffff'); e('  s_mov_b32 s14, MK_end-MK_pc'); e('  s_mov_b32 s15, 0x00020000')
    e('  v_lshlrev_b32 v23, 7, v0')
    e('  buffer_load_dword v255, v23, s[12:15], 0 offen')
e(f'  v_lshrrev_b32 v{tA}, 6, v0')
e('  v_and_b32 v0, 63, v0')
e(f'  v_readfirstlane_b32 s{sW}, v{tA}')
e(f'  v_and_b32 v{vn}, 15, v0'); e(f'  v_lshrrev_b32 v{vg}, 4, v0')
e(f'  v_lshrrev_b32 v{tA}, 5, v0'); e(f'  v_bfe_u32 v{tB}, v0, 3, 2'); e(f'  v_lshl_add_u32 v{tA}, v{tA}, 3, v{tB}')
e(f'  v_mul_u32_u24 v{tA}, 1152, v{tA}')
e(f'  s_and_b32 s{sH}, s{sW}, 1')
e(f'  s_lshl_b32 s{sT[0]}, s{sH}, 2')
e(f'  v_add_u32 v{tB}, s{sT[0]}, v{vg}'); e(f'  v_and_b32 v{tC}, 7, v0'); e(f'  v_xor_b32 v{tB}, v{tB}, v{tC}')
e(f'  v_lshl_add_u32 v{vWA}, v{tB}, 4, v{tA}')
e(f'  s_lshr_b32 s{sT[0]}, s{sW}, 2'); e(f'  s_lshl_b32 s{sT[0]}, s{sT[0]}, 5')
e(f'  s_lshl_b32 s{sT[1]}, s{sH}, 4'); e(f'  s_add_u32 s{sT[0]}, s{sT[0]}, s{sT[1]}')
e(f'  s_and_b32 s{sT[1]}, s{sW}, 2'); e(f'  s_lshl_b32 s{sT[1]}, s{sT[1]}, 1'); e(f'  s_add_u32 s{sT[0]}, s{sT[0]}, s{sT[1]}')
e(f'  s_mul_i32 s{sWB}, s{sT[0]}, 1152')
e(f'  s_lshl_b32 s{sWL}, s{sW}, 10')
e(f'  s_cmp_lt_u32 s{sW}, 4'); e('  s_cselect_b64 vcc, -1, 0')
e('  s_waitcnt lgkmcnt(0)')
tsp()
el(srd(88, 6, 192*576*2))

def w_pieces(c, partner=0):
    return [[f'  s_add_u32 m0, s{sWL}, {c*49152 + mat*24576 + j*8192 + partner*4096}',
             f'  s_add_u32 s{sVO}, s{sWB}, {(j*64 + partner*32)*1152 + mat*384 + c*128}',
             f'  buffer_load_dwordx4 v{vWA}, {RW}, s{sVO} offen lds'] for mat in range(2) for j in range(3)]
def q_loads():
    return [f'  buffer_load_dwordx4 {V(XQ+24*t+4*s_)}, v{vO[t]}, {RX}, 0 offen offset:{64*s_}{NT}' for s_ in range(6) for t in range(2)]
SCH = {'O': OPT.get('so', 'A:W0,C:W1,0:W2,1:q4,2:q4,3:q4'), 'Y': OPT.get('sy', 'A:W0,C:W1,0:W2,Z:q12')}
PLAN = {}; ISS = {'O': [], 'Y': []}
for r_, sp in SCH.items():
    qi = 0
    for part in sp.split(','):
        pos, items = part.split(':')
        for it in items.split('+'):
            lst = PLAN.setdefault((r_, pos), [])
            if it[0] == 'W': lst += [(f'W{it[1]}', p) for p in w_pieces(int(it[1]))]
            elif it[0] == 'V': lst += [(f'W{it[1]}', p) for p in w_pieces(int(it[1]), 1)]
            else:
                for _ in range(int(it[1:])): lst.append(('q', [q_loads()[qi]])); qi += 1
    assert qi == 12
lbl = [0]
def role_lines(r_, lines):
    lbl[0] += 1
    return [f'  s_cbranch_vcc{"z" if r_ == "O" else "nz"} SL{lbl[0]}'] + list(lines) + [f'SL{lbl[0]}:']
def role2_lines(lo, ly):
    lbl[0] += 1; n = lbl[0]
    return [f'  s_cbranch_vccz SL{n}'] + list(lo) + [f'  s_branch SM{n}', f'SL{n}:'] + list(ly) + [f'SM{n}:']
def sched_items(pos):
    o, y = list(PLAN.get(('O', pos), [])), list(PLAN.get(('Y', pos), []))
    out = []
    while o or y: out.append((o.pop(0) if o else None, y.pop(0) if y else None))
    return out
def emit_item(it):
    o, y = it
    if o: ISS['O'].append(o[0])
    if y: ISS['Y'].append(y[0])
    if o and y and o == y: el(o[1])
    elif o and y: el(role2_lines(o[1], y[1]))
    elif o: el(role_lines('O', o[1]))
    else: el(role_lines('Y', y[1]))
def emit_pos(pos):
    o, y = PLAN.get(('O', pos), []), PLAN.get(('Y', pos), [])
    k = 0
    while k < len(o) and k < len(y) and o[k] == y[k]: emit_item((o[k], y[k])); k += 1
    for r_, x in (('O', o[k:]), ('Y', y[k:])):
        if x:
            ISS[r_] += [i[0] for i in x]; el(role_lines(r_, sum((i[1] for i in x), [])))
def after(r_, tag):
    l = ISS[r_]
    if tag not in l: return 63
    return min(63, len(l) - 1 - max(i for i, t in enumerate(l) if t == tag))

if 'nowpf' not in OPT:
    e(f'  s_cmp_lt_u32 s{sW}, 6'); e('  s_cbranch_scc1 MK_nwpf')
    e(f'  s_cmp_eq_u32 s{sW}, 6'); e(f'  s_cselect_b32 s{sT[0]}, 54, 18')
    e('  s_cselect_b32 s12, s6, s8'); e('  s_cselect_b32 s13, s7, s9'); e('  s_and_b32 s13, s13, 0xffff')
    e(f'  s_lshr_b32 s{sT[1]}, s2, 3'); e(f'  s_mul_i32 s{sT[1]}, s{sT[1]}, s{sT[0]}'); e(f'  s_lshl_b32 s{sVO}, s{sT[1]}, 7')
    e(f'  s_lshl_b32 s{sT[0]}, s{sT[0]}, 7'); e(f'  s_add_u32 s14, s{sVO}, s{sT[0]}'); e('  s_mov_b32 s15, 0x00020000')
    e('  v_lshlrev_b32 v23, 7, v0')
    e(f'  buffer_load_dword v254, v23, s[12:15], s{sVO} offen')
    e('MK_nwpf:')
emit_pos('A')
tsp()
el(srd(12, 4, X_BYTES)); el(srd(16, 10, X_BYTES)); el(srd(4, 8, 192*192*2)); el(srd(8, 84, 256)); el(srd(20, 86, WS_BYTES if TS else 73728))
e(f'  v_lshlrev_b32 v{vL0}, 4, v0')
e(f'  v_add_u32 v{vL1}, {HALF}, v{vL0}')
e(f'  s_and_b32 s{sW4}, s{sW}, 3'); e(f'  s_lshl_b32 s{sW4}, s{sW4}, 10')
e(f'  v_bfe_u32 v{tA}, v{vn}, 1, 3'); e(f'  v_xor_b32 v{tA}, v{tA}, v{vg}')
e(f'  v_lshlrev_b32 v{tB}, 7, v{vn}'); e(f'  v_lshl_add_u32 v{tB}, v{tA}, 4, v{tB}')
e(f'  s_lshr_b32 s{sT[0]}, s{sW}, 2'); e(f'  s_mul_i32 s{sT[1]}, s{sT[0]}, {6*2048}')
e(f'  v_add_u32 v{vMA[0]}, s{sT[1]}, v{tB}'); e(f'  v_xor_b32 v{vMA[1]}, 64, v{vMA[0]}')
e(f'  s_mul_i32 s{sT[1]}, s{sW4}, 6'); e(f'  s_add_u32 s{sT[1]}, s{sT[1]}, 24576')
e(f'  v_add_u32 v{vMB[0]}, s{sT[1]}, v{tB}'); e(f'  v_xor_b32 v{vMB[1]}, 64, v{vMB[0]}')
e(f'  s_bfe_u32 s{sPR}, s2, 0x10002')
e(f'  s_bfe_u32 s{sPC}, s2, 0x10001')
e(f'  s_and_b32 s{sKR}, s2, 1'); e(f'  s_lshl_b32 s{sKR}, s{sKR}, 2')
e(f'  s_lshr_b32 s{sT[0]}, s2, 6'); e(f'  s_add_u32 s{sKR}, s{sKR}, s{sT[0]}')
e(f'  s_bfe_u32 s{sKC}, s2, 0x30003')
e(f'  s_mul_i32 s{sTR}, s{sKR}, 14'); e(f'  s_add_i32 s{sTR}, s{sTR}, -6'); e(f'  s_max_i32 s{sKR}, s{sTR}, -4')
e(f'  s_mul_i32 s{sKC}, s{sKC}, 14'); e(f'  s_add_i32 s{sKC}, s{sKC}, -6')
e(f'  s_lshr_b32 s{sU}, s{sW}, 1'); e(f'  s_add_u32 s{sU}, s{sU}, 2'); e(f'  s_and_b32 s{sU}, s{sU}, 3')
e(f'  s_sub_u32 s{sMR}, 0, s{sPR}'); e(f'  s_mul_i32 s{sAR}, s{sPR}, 224')
e(f'  s_sub_u32 s{sMC}, 0, s{sPC}'); e(f'  s_mul_i32 s{sAC}, s{sPC}, 224')
e(f'  v_and_b32 v{tA}, 7, v{vn}')
e(f'  s_mul_i32 s{sT[0]}, s{sH}, 7'); e(f'  s_add_i32 s{sT[0]}, s{sT[0]}, s{sKC}')
e(f'  v_cmp_lt_u32 s[{sT[2]}:{sT[3]}], 6, v{tA}')
e(f'  v_add_u32 v{tA}, s{sT[0]}, v{tA}')
e(f'  v_max_i32 v{vCT}, 0, v{tA}')
e(f'  v_add3_u32 v{tA}, v{tA}, v{vCT}, 6')
e(f'  v_xor_b32 v{tA}, s{sMC}, v{tA}'); e(f'  v_add_u32 v{tA}, s{sAC}, v{tA}')
e(f'  v_subrev_u32 v{vCT}, s{sKC}, v{vCT}')
e(f'  v_mul_u32_u24 v{tA}, 384, v{tA}'); e(f'  v_lshl_add_u32 v{tA}, v{vg}, 4, v{tA}')
e(f'  s_lshl_b32 s{sT[0]}, s{sU}, 2'); e(f'  s_add_i32 s{sT[0]}, s{sT[0]}, -2')
e(f'  s_mov_b32 s{sT[1]}, 86016')
e(f'  v_lshrrev_b32 v{tB}, 3, v{vn}'); e(f'  v_add_u32 v{tB}, s{sT[0]}, v{tB}')
e(f'  v_mov_b32 v{tC}, 0x80000000')
for t in range(2):
    if t: e(f'  v_add_u32 v{tB}, 2, v{tB}')
    e(f'  v_cmp_gt_i32 s[{sINV[t]}:{sINV[t]+1}], 0, v{tB}')
    e(f'  v_add_u32 v{vO[t]}, s{sTR}, v{tB}')
    e(f'  v_max_i32 v{vRR[t]}, 0, v{vO[t]}')
    e(f'  v_add3_u32 v{vO[t]}, v{vO[t]}, v{vRR[t]}, 6')
    e(f'  s_or_b64 s[{sINV[t]}:{sINV[t]+1}], s[{sINV[t]}:{sINV[t]+1}], s[{sT[2]}:{sT[3]}]')
    e(f'  v_xor_b32 v{vO[t]}, s{sMR}, v{vO[t]}'); e(f'  v_add_u32 v{vO[t]}, s{sAR}, v{vO[t]}')
    e(f'  v_subrev_u32 v{vRR[t]}, s{sKR}, v{vRR[t]}')
    e(f'  v_mad_u32_u24 v{vO[t]}, v{vO[t]}, s{sT[1]}, v{tA}')
    e(f'  v_cndmask_b32 v{vRR[t]}, v{vRR[t]}, v{tC}, s[{sINV[t]}:{sINV[t]+1}]')
    e(f'  v_cndmask_b32 v{vO[t]}, v{vO[t]}, v{tC}, s[{sINV[t]}:{sINV[t]+1}]')

F = []; f_ = F.append
f_(f'  s_lshr_b32 s{sT[0]}, s{sW}, 2'); f_(f'  s_mul_i32 s{sT[0]}, s{sT[0]}, 6'); f_(f'  s_sub_u32 s{sT[0]}, 67, s{sT[0]}')
f_(f'  s_and_b32 s{sT[1]}, s{sW}, 3'); f_(f'  s_mul_i32 s{sT[1]}, s{sT[1]}, 3')
for b in range(3):
    f_(f'  s_add_u32 s{sT[2]}, s{sT[1]}, {b}')
    f_(f'  s_lshr_b32 s{sT[3]}, s{sT[2]}, 1'); f_(f'  s_mul_i32 s{sT[3]}, s{sT[3]}, 10')
    f_(f'  s_add_u32 s{sT[2]}, s{sT[2]}, s{sT[3]}')
    f_(f'  s_sub_u32 s{sT[2]}, s{sT[0]}, s{sT[2]}'); f_(f'  s_lshl_b32 s{sT[2]}, s{sT[2]}, 10')
    f_(f'  v_add_u32 v{vMW[b]}, s{sT[2]}, v{vL0}')
f_(f'  s_lshl_b32 s{sT[0]}, s{sKR}, 1'); f_(f'  s_xor_b32 s{sT[0]}, s{sT[0]}, s{sMR}')
f_(f'  s_mul_i32 s{sT[1]}, s{sPR}, 222'); f_(f'  s_add_i32 s{sXB}, s{sT[0]}, s{sT[1]}')
f_(f'  s_mul_i32 s{sXB}, s{sXB}, 86016')
f_(f'  s_mul_i32 s{sGS}, s{sPR}, {-2*344064}'); f_(f'  s_add_i32 s{sGS}, s{sGS}, 344064')
f_(f'  s_lshr_b32 s{sGmin}, s{sKR}, 31'); f_(f'  s_lshl_b32 s{sGmin}, s{sGmin}, 1')
f_(f'  s_lshl_b32 s{sM0X}, s{sW4}, 2')
f_(f'  s_add_u32 s{sM0X3}, s{sM0X}, 3072'); f_(f'  s_min_u32 s{sM0X3}, s{sM0X3}, {14*1024}')
f_(f'  s_mul_i32 s{sT[2]}, s{sPR}, 172032'); f_(f'  s_sub_u32 s{sT[3]}, 172032, s{sT[2]}')
f_(f'  v_mov_b32 v{tC}, s{sT[2]}'); f_(f'  v_mov_b32 v{tD}, s{sT[3]}')
for b in range(960): assert (b * 2731) >> 16 == b // 24
for j in range(4):
    d = vD[j]
    if j < 3:
        f_(f'  s_lshr_b32 s{sT[0]}, s{sM0X}, 4'); f_(f'  s_add_u32 s{sT[0]}, s{sT[0]}, {64*j}')
    else: f_(f'  s_lshr_b32 s{sT[0]}, s{sM0X3}, 4')
    f_(f'  v_add_u32 v{tA}, s{sT[0]}, v0')
    f_(f'  v_mul_u32_u24 v{d}, 2731, v{tA}'); f_(f'  v_lshrrev_b32 v{d}, 16, v{d}')
    f_(f'  v_cmp_le_u32 {MSK}, 20, v{d}')
    f_(f'  v_mul_u32_u24 v{tB}, 24, v{d}'); f_(f'  v_sub_u32 v{tA}, v{tA}, v{tB}')
    f_(f'  v_subrev_u32 v{tB}, 20, v{d}')
    f_(f'  v_cndmask_b32 v{d}, v{d}, v{tB}, {MSK}')
    f_(f'  v_bfe_u32 v{tB}, v{d}, 1, 3'); f_(f'  v_xor_b32 v{tA}, v{tA}, v{tB}')
    f_(f'  v_cndmask_b32 v{tB}, v{tC}, v{tD}, {MSK}')
    f_(f'  v_lshl_add_u32 v{tA}, v{tA}, 4, v{tB}')
    f_(f'  v_add_u32 v{d}, s{sKC}, v{d}'); f_(f'  v_max_i32 v{d}, 0, v{d}'); f_(f'  v_lshlrev_b32 v{d}, 1, v{d}')
    f_(f'  v_xor_b32 v{d}, s{sMC}, v{d}'); f_(f'  v_add_u32 v{d}, s{sAC}, v{d}')
    f_(f'  v_mul_u32_u24 v{d}, 384, v{d}'); f_(f'  v_add_u32 v{d}, v{d}, v{tA}')
f_(f'  s_add_u32 s{sM0X}, s{sM0X}, {XB}'); f_(f'  s_add_u32 s{sM0X3}, s{sM0X3}, {XB}')
for dst, add in ((sT[0], -2), (sA2, 0)):
    f_(f'  s_lshl_b32 s{dst}, s{sU}, 2')
    if add: f_(f'  s_add_i32 s{dst}, s{dst}, {add}'); f_(f'  s_max_i32 s{dst}, s{dst}, 0')
    f_(f'  s_add_i32 s{dst}, s{dst}, s{sTR}'); f_(f'  s_max_i32 s{dst}, s{dst}, 0'); f_(f'  s_sub_i32 s{dst}, s{dst}, s{sKR}')
f_(f'  s_sub_u32 s{sT[0]}, s{sA2}, s{sT[0]}'); f_(f'  s_lshr_b32 s{sT[0]}, s{sT[0]}, 1')
f_(f'  s_mul_i32 s{sD0}, s{sT[0]}, -8'); f_(f'  s_add_i32 s{sD0}, s{sD0}, 7')
f_(f'  s_add_i32 s{sA2}, s{sA2}, -1')
f_(f'  s_add_i32 s{sR0}, s{sA2}, s{sD0}'); f_(f'  s_mul_i32 s{sD0}, s{sD0}, {ROW}')
f_(f'  s_lshl_b32 s{sT[1]}, s{sH}, 2')
f_(f'  s_mul_i32 s{sT[0]}, s{sA2}, {ROW}'); f_(f'  s_add_i32 s{sT[0]}, s{sT[0]}, {XB}')
f_(f'  v_add_u32 v{tA}, s{sT[1]}, v{vn}')
f_(f'  v_bfe_u32 v{tB}, v{tA}, 1, 3'); f_(f'  v_xor_b32 v{tB}, v{tB}, v{vg}')
f_(f'  v_mul_u32_u24 v{tA}, 384, v{tA}'); f_(f'  v_lshl_add_u32 v{tA}, v{tB}, 4, v{tA}')
f_(f'  v_add_u32 v{vSe}, s{sT[0]}, v{tA}'); f_(f'  v_xor_b32 v{vSo}, 64, v{vSe}')
f_(f'  v_lshrrev_b32 v{tA}, 2, v{vn}'); f_(f'  v_lshl_add_u32 v{tA}, v{vg}, 2, v{tA}'); f_(f'  v_add_u32 v{tA}, s{sT[1]}, v{tA}')
f_(f'  v_bfe_u32 v{tB}, v{tA}, 1, 3')
f_(f'  v_and_b32 v{tC}, 2, v{vn}'); f_(f'  v_lshlrev_b32 v{tC}, 1, v{tC}'); f_(f'  v_xor_b32 v{tB}, v{tB}, v{tC}')
f_(f'  v_mul_u32_u24 v{tA}, 384, v{tA}'); f_(f'  v_lshl_add_u32 v{tA}, v{tB}, 4, v{tA}')
f_(f'  v_and_b32 v{tB}, 1, v{vn}'); f_(f'  v_lshl_add_u32 v{tA}, v{tB}, 3, v{tA}')
f_(f'  v_add_u32 v{vP[0]}, s{sT[0]}, v{tA}')
for k in range(1, 4): f_(f'  v_xor_b32 v{vP[k]}, {16*k}, v{vP[0]}')
f_(f'  v_lshl_add_u32 v{tA}, v{vg}, 2, s{sT[1]}'); f_(f'  v_sub_u32 v{vCT}, v{tA}, v{vCT}')
f_(f'  v_add_u32 v{SB0[0]}, s{sD0}, v{vSe}'); f_(f'  v_add_u32 v{SB0[1]}, s{sD0}, v{vSo}')
for k in range(4): f_(f'  v_add_u32 v{PB0[k]}, s{sD0}, v{vP[k]}')
f_(f'  s_mov_b32 s{sSC}, {SCALE}')
NPRE = opt('npre', 0)
el(F[:NPRE]); F = F[NPRE:]

def dma_x(G):
    out = []
    if G < 2: out += [f'  s_max_u32 s{sVO}, s{sGmin}, {G}', f'  s_mul_i32 s{sVO}, s{sVO}, s{sGS}']
    else: out.append(f'  s_mul_i32 s{sVO}, s{sGS}, {G}')
    out.append(f'  s_add_i32 s{sVO}, s{sVO}, s{sXB}')
    for j in range(4):
        out.append(f'  s_add_u32 m0, s{sM0X}, {G*15360 + j*1024}' if j < 3 else f'  s_add_u32 m0, s{sM0X3}, {G*15360}')
        out.append('  s_nop 0')
        out.append(f'  buffer_load_dwordx4 v{vD[j]}, {RX}, s{sVO} offen{NT} lds')
    return out
def dma_xs(Gs): return sum((dma_x(G) for G in Gs), [])
def bias_init(tmp):
    out = []; o = out.append
    cb, ninf, tt = tmp, tmp+4, tmp+5
    o(f'  v_mov_b32 v{ninf}, 0xff800000')
    for i in range(4): o(f'  v_add_u32 v{tt+i}, {i}, v{vCT}')
    for i in range(4): o(f'  v_cmp_gt_u32 s[{sT[2+2*i]}:{sT[3+2*i]}], 7, v{tt+i}')
    for i in range(4): o(f'  v_cndmask_b32 v{cb+i}, v{ninf}, 0, s[{sT[2+2*i]}:{sT[3+2*i]}]')
    for t in range(2):
        for j4 in range(2):
            for jj in range(4*j4, 4*j4+4):
                slot = jj + 2*t; r = tt + jj % 4
                if slot == 0: o(f'  v_sub_u32 v{r}, s{sR0}, v{vRR[t]}')
                else:
                    o(f'  s_add_i32 s{sT[0]}, s{sA2}, {slot-1}'); o(f'  v_sub_u32 v{r}, s{sT[0]}, v{vRR[t]}')
            for q in range(4): o(f'  v_cmp_gt_u32 s[{sT[2+2*q]}:{sT[3+2*q]}], 7, v{tt+q}')
            for jj in range(4*j4, 4*j4+4):
                q = jj % 4
                for i in range(4):
                    o(f'  v_cndmask_b32 v{SACC[t]+4*jj+i}, v{ninf}, v{cb+i}, s[{sT[2+2*q]}:{sT[3+2*q]}]')
    return out

tsp()
emit_pos('C')
tsp()
vLN = 107
def n_loads():
    e(f'  v_lshrrev_b32 v{vLN}, 4, v{vL0}')
    e(f'  s_cmp_lt_u32 s2, 72'); e('  s_cbranch_scc0 MK_np1')
    e(f'  s_mul_hi_u32 s{sT[8]}, s2, 0x15555556'); e(f'  s_lshl_b32 s{sT[8]}, s{sT[8]}, 6')
    e(f'  s_mul_i32 s{sT[9]}, s{sW}, {16*384}'); e(f'  s_add_u32 s{sVO}, s{sT[8]}, s{sT[9]}')
    e(f'  v_lshrrev_b32 v{MPK}, 2, v{vLN}'); e(f'  v_mul_u32_u24 v{MPK}, 384, v{MPK}'); e(f'  v_and_b32 v{MPK+1}, 3, v{vLN}'); e(f'  v_lshl_add_u32 v{MPK}, v{MPK+1}, 4, v{MPK}')
    e(f'  s_add_u32 m0, s{sWL}, {WOL}'); e('  s_nop 0')
    e(f'  buffer_load_dwordx4 v{MPK}, {RWO}, s{sVO} offen lds')
    e('  s_cbranch_vccz MK_np1')
    e(f'  s_add_u32 m0, s{sWL}, {WOL + 8192}'); e(f'  s_add_u32 s{sVO}, s{sVO}, {8*16*384}')
    e(f'  buffer_load_dwordx4 v{MPK}, {RWO}, s{sVO} offen lds')
    e('MK_np1:')
    e(f'  s_sub_u32 s{sPROD}, s2, 72'); e(f'  s_lshr_b32 s{sPROD}, s{sPROD}, 31')
    e(f'  s_xor_b32 s{sT[8]}, s{sW}, 4'); e(f'  s_lshr_b32 s{sPROD}, s{sPROD}, s{sT[8]}')
    e(f'  v_mov_b32 v{vNB}, 0')
    e(f'  s_cmp_eq_u32 s{sPROD}, 0'); e('  s_cbranch_scc1 MK_np3')
    e(f'  s_mul_hi_u32 s{sT[8]}, s2, 0x15555556'); e(f'  s_mul_i32 s{sT[9]}, s{sT[8]}, 12'); e(f'  s_sub_u32 s{sT[9]}, s2, s{sT[9]}')
    e(f'  s_and_b32 s{sT[5]}, s{sT[9]}, 1'); e(f'  s_lshr_b32 s{sT[9]}, s{sT[9]}, 1')
    e(f'  v_lshrrev_b32 v{MPK+2}, 2, v{vn}'); e(f'  v_and_b32 v{MPK+1}, 3, v{vn}')
    e(f'  v_lshl_add_u32 v{vNB}, v{vg}, 3, v{MPK+2}'); e(f'  v_lshlrev_b32 v{vNB}, 6, v{vNB}'); e(f'  v_lshl_add_u32 v{vNB}, v{MPK+1}, 4, v{vNB}')
    e(f'  s_lshl_b32 s{sT[5]}, s{sT[5]}, 3'); e(f'  s_add_u32 s{sT[5]}, s{sT[5]}, {WOL}'); e(f'  v_add_u32 v{vNB}, s{sT[5]}, v{vNB}')
    e(f'  s_lshr_b32 s{sT[8]}, s{sT[9]}, 1'); e(f'  s_lshl_b32 s{sT[8]}, s{sT[8]}, 6')
    e(f'  s_and_b32 s{sT[9]}, s{sT[9]}, 1'); e(f'  s_lshl_b32 s{sT[9]}, s{sT[9]}, 4'); e(f'  s_add_u32 s{sT[8]}, s{sT[8]}, s{sT[9]}')
    e(f'  v_lshrrev_b32 v{MPK}, 1, v{MPK+2}'); e(f'  v_lshlrev_b32 v{MPK}, 5, v{MPK}')
    e(f'  v_and_b32 v{MPK+2}, 1, v{MPK+2}'); e(f'  v_lshl_add_u32 v{MPK}, v{MPK+2}, 2, v{MPK}')
    e(f'  v_add3_u32 v{MPK}, v{MPK}, v{MPK+1}, s{sT[8]}')
    e(f'  v_mul_u32_u24 v{MPK}, 1152, v{MPK}'); e(f'  v_lshl_add_u32 v{vNA}, v{vg}, 4, v{MPK}')
    e(f'  s_movk_i32 s{sVO}, 9216')
    for kk in range(6):
        e(f'  buffer_load_dwordx4 {V(136+4*kk)}, v{vNA}, {RW}, 0 offen offset:{768+64*kk}')
        e(f'  buffer_load_dwordx4 {V(160+4*kk)}, v{vNA}, {RW}, s{sVO} offen offset:{768+64*kk}')
    e('MK_np3:')
def m_reads(kk):
    rb = 184 + 36*(kk % 2); co = (kk // 2) * 49152
    lo = co if co < 49152*2 else 0
    return ([f'  ds_read_b128 {V(rb+24+4*b)}, v{vMB[kk % 2]} offset:{2048*b}' for b in range(3)] +
            [f'  ds_read_b128 {V(rb+4*a)}, v{vMA[kk % 2]} offset:{2048*a}' for a in range(6)])
def chunk_sync(c, lg):
    wo_, wy_ = after('O', f'W{c}'), after('Y', f'W{c}')
    x = ' lgkmcnt(0)' if lg else ''
    if wo_ == wy_: e(f'  s_waitcnt vmcnt({wo_}){x}')
    else: el(role2_lines([f'  s_waitcnt vmcnt({wo_}){x}'], [f'  s_waitcnt vmcnt({wy_}){x}']))
    e('  s_barrier')
    tsp()
FPG = opt('fpg', 4)
assert after('O', 'W0') == after('Y', 'W0')
e(f'  s_waitcnt vmcnt({after("Y", "W0")})')
if opt('npk', 0) == -1: n_loads()
e('  s_barrier'); tsp()
el(m_reads(0))
for kk in range(4):
    landed_all = False
    if kk % 2 == 1:
        chunk_sync(kk // 2 + 1, True); landed_all = True
        for r in vMA + vMB: e(f'  v_add_u32 v{r}, 49152, v{r}')
    if kk == opt('npk', 0): n_loads()
    extra = sched_items(str(kk)); ne = len(extra); cnt = 0
    rb = 184 + 36*(kk % 2)
    nx = m_reads(kk+1)
    issued = 0
    for a in range(6):
        if not landed_all: e(f'  s_waitcnt lgkmcnt({5 - a + issued})')
        for b in range(3):
            acc = MACC + 12*a + 4*b
            e(mfma(acc, rb+4*a, rb+24+4*b, None if kk == 0 else acc))
            slots = FPG
            if nx and b < 2 and (a >= 1 or landed_all):
                e(nx.pop(0)); issued += 1; slots -= 1
            cnt += 1
            while extra and (ne - len(extra)) * 18 < cnt * ne: emit_item(extra.pop(0)); slots = 0
            el(F[:slots]); F = F[slots:]
    assert not nx and not extra
print('leftover F', len(F), file=sys.stderr); el(F); F = []
r5 = m_reads(5)
el(r5[:5]); late = r5[5:]
extra = sched_items('4'); ne = len(extra); cnt = 0
pend = []; nw = 0
for fi in range(9):
    a3, b = fi // 3, fi % 3
    if fi == 0: e('  s_waitcnt lgkmcnt(5)')
    for kk in (4, 5):
        rb = 184 + 36*(kk % 2)
        if fi == 0 and kk == 5: e('  s_waitcnt lgkmcnt(2)')
        if fi == 3 and kk == 5: e(f'  s_waitcnt lgkmcnt({nw})')
        for a in (2*a3, 2*a3+1):
            acc = MACC + 12*a + 4*b
            e(mfma(acc, rb+4*a, rb+24+4*b, acc)); cnt += 1
            if late: e(late.pop(0))
            k = 0
            while pend and pend[0][0] <= cnt and k < 2:
                l = pend.pop(0)[1]; e(l); k += 1
                if 'ds_write' in l: nw += 1
            while extra and (ne - len(extra)) * 36 < cnt * ne: emit_item(extra.pop(0))
    o = MPK + 4*(fi % 6)
    for a in range(2):
        acc = MACC + 12*(2*a3 + a) + 4*b
        for i in range(2): pend.append((cnt + 5, f'  v_cvt_pk_bf16_f32 v{o+2*a+i}, v{acc+2*i}, v{acc+2*i+1}'))
    pend.append((cnt + 5, f'  ds_write_b128 v{vMW[b]}, {V(o)} offset:{2048*(2-a3)}'))
assert not extra
tsp()
e(f'  s_cmp_eq_u32 s{sPROD}, 0'); e('  s_cbranch_scc1 MK_np2')
e('  s_waitcnt lgkmcnt(0)')
for k2 in range(6):
    for hf in range(2):
        e(f'  ds_read_b64_tr_b16 {V(184+4*k2+2*hf, 2)}, v{vNB} offset:{(32*k2 + 4*hf)*64}')
e('MK_np2:')
for i, (_, l) in enumerate(pend):
    if len(pend) - i == 5: e('  s_nop 1')
    e(l)
e('  s_waitcnt lgkmcnt(0)')
e('  s_barrier')
tsp()
NXY = opt('nxy', 2)
XH = (9, 8, 7, 6, 5)
y = [f'  s_cmp_eq_u32 s{sPROD}, 0', '  s_cbranch_scc1 MK_np4', '  s_setprio 3']
for kk in range(6):
    y.append(mfma(104, 136+4*kk, 184+4*kk, None if kk == 0 else 104))
    y.append(mfma(108, 160+4*kk, 184+4*kk, None if kk == 0 else 108))
y.append('MK_np4:')
assert ('O', 'Z') not in PLAN and len(PLAN[('Y', 'Z')]) == 12
for t_, ls in PLAN.get(('Y', 'Z'), []): y += ls
y += [f'  s_cmp_eq_u32 s{sPROD}, 0', '  s_cbranch_scc1 MK_np5']
for r in range(4): y.append(f'  v_cvt_pk_bf16_f32 v{132+r}, v{104+2*r}, v{105+2*r}')
y += [f'  s_lshl_b32 s{sVO}, s2, 10', f'  buffer_store_dwordx4 v[132:135], v{vL0}, {RWS}, s{sVO} offen sc1', '  s_setprio 0', 'MK_np5:']
y += bias_init(QP) + dma_xs(XH[:NXY])
y += [f'  s_cmp_eq_u32 s{sPROD}, 0', '  s_cbranch_scc0 MK_np8', f'  s_waitcnt vmcnt({4*NXY})', 'MK_np8:', f'  s_waitcnt vmcnt({4*NXY+1})']
PUB = [f'  s_cmp_eq_u32 s{sPROD}, 0', '  s_cbranch_scc1 MK_np6', f'  s_waitcnt vmcnt({4*NXY})', '  v_mov_b32 v23, 1', '  s_mov_b64 exec, 1',
       f'  buffer_atomic_add v23, off, {RDB}, 0 sc1', '  s_mov_b64 exec, -1', '  s_nop 3', 'MK_np6:']
PRE_P1 = (['  s_waitcnt vmcnt(0)'], y)

stream = []; frags = []
def add_frag(reads, gate): frags.append(dict(reads=reads, gate=gate, uses=0)); return len(frags) - 1
def use(fid, fn): frags[fid]['uses'] += 1; stream.append(('mfma', fn, fid))
def mf(text): stream.append(('mfma', (lambda buf: text), None))
def raw(*lines):
    for l in lines: stream.append(('raw', l))
def fill(*lines):
    for l in lines: stream.append(('fill', l))
def flush(): stream.append(('flush',))
def need(fid): stream.append(('need', fid))
def gate(name): stream.append(('gate', name))
def role(r, lines): stream.append(('cond', role_lines(r, lines)))
def role2(lo, ly): stream.append(('cond', role2_lines(lo, ly)))
BAR = '  s_barrier'
def m_read(f):
    addr = (71-f)*1024
    if addr < HALF: return [f'  ds_read_b128 {{d4}}, v{vL0} offset:{addr}']
    return [f'  ds_read_b128 {{d4}}, v{vL1} offset:{addr-HALF}']
def n_addr(f): return NHI + 30720 + 1024*f if f < 30 else ((f-30)*1024 if f < 40 else NHI + (f-40)*1024)
def n_read(f):
    if f >= 70: return []
    a = n_addr(f)
    return [f'  ds_read_b128 {{d4}}, v{vL1} offset:{a-NHI}' if a >= NHI else f'  ds_read_b128 {{d4}}, v{vL0} offset:{a}']
def dma_n(a, b):
    out = []
    for f0 in range(a, b, 4):
        lim = (b - 1 - f0) * 1024; src = sW4
        if lim < 3072: out.append(f'  s_min_u32 s{sT[5]}, s{sW4}, {lim}'); src = sT[5]
        out += [f'  s_add_u32 m0, s{src}, {n_addr(f0)}', f'  s_add_u32 s{sVO}, s{src}, {f0*1024}',
                f'  buffer_load_dwordx4 v{vL0}, {RWS}, s{sVO} offen{NSC} lds']
    return out
def proj(B, rd, gate_of, post, hooks):
    for s in range(6):
        for ks in range(6):
            for hh in range(2):
                f = 12*s + 2*ks + hh
                fid = add_frag(rd(f), gate_of(f))
                if f in hooks: hooks[f](fid)
                for t in range(2):
                    acc = ACC + 16*(s % 2) + 8*t + 4*hh
                    fx = None if rd(f) else NREG + 4*(f-70)
                    use(fid, (lambda buf, acc=acc, t=t, ks=ks, fx=fx: mfma(acc, buf if fx is None else fx, B(t, ks), None if ks == 0 else acc)))
        flush()
        fill(*post(s))

role('Y', PRE_P1[1])
gate('G0')
role('O', PRE_P1[0])
def p1_post(s):
    out = []
    for t in range(2):
        acc = ACC + 16*(s % 2) + 8*t
        for r in range(8): out.append(f'  v_mul_f32 v{acc+r}, s{sSC}, v{acc+r}')
        for r in range(4): out.append(f'  v_cvt_pk_bf16_f32 v{QP+24*t+4*s+r}, v{acc+2*r}, v{acc+2*r+1}')
    return out
proj(lambda t, ks: XQ+24*t+4*ks, m_read, lambda f: 'G0', p1_post,
     {31: lambda fid: (need(fid), role('Y', PUB + [BAR])),
      61: lambda fid: (need(fid), role('Y', [f'  s_cmp_eq_u32 s{sPROD}, 0', '  s_cbranch_scc0 MK_np7', '  s_waitcnt vmcnt(0)', 'MK_np7:', '  s_waitcnt vmcnt(1)', BAR]))})
flush()
raw(f'  v_add_u32 v{vL1}, {NHI}, v{vL0}')
for r in range(4): raw(f'  v_mov_b32 v{ONES+r}, 0x3f803f80')
POLL = f'  buffer_load_dword v13, off, {RDB}, 0 sc1'
PMODE = opt('pmode', 1)
role2(dma_xs(XH[NXY:]) + [BAR] + dma_xs((4, 3, 2)) + bias_init(XQ) + ['  s_waitcnt vmcnt(12)', BAR] + dma_xs((1, 0)),
      ([POLL.replace(' sc1', '')] if PMODE == 0 else []) + [BAR])
gate('S')
etn = [0]
def sm_fill(t, jj):
    tmp = ET + 4*(etn[0] % 5); etn[0] += 1
    acc = SACC[t] + 4*jj
    for i in range(4): fill(f'  v_exp_f32 v{tmp+i}, v{acc+i}')
    for i in range(2): fill(f'  v_cvt_pk_bf16_f32 v{PREG[t]+2*jj+i}, v{tmp+2*i}, v{tmp+2*i+1}')
    stream.append(('tag', f'P{t}_{jj}'))
def sum_mfmas(t):
    stream.append(('flushto', f'P{t}_0'))
    for kt in (3, 2, 1, 0): mf(mfma(SUM[t], ONES, PREG[t]+4*kt, None if kt == 3 else SUM[t]))
LO, HI = (127-30) << 23, (127+30) << 23
def check(t):
    raw(f'  v_subrev_u32 v{RI[1]}, {LO}, v{SUM[t]}')
    raw(f'  s_mov_b32 s{sT[6]}, {HI-LO}')
    raw(f'  v_cmp_gt_u32 s[{sT[2]}:{sT[3]}], s{sT[6]}, v{RI[1]}')
    raw(f'  s_or_b64 s[{sT[2]}:{sT[3]}], s[{sT[2]}:{sT[3]}], s[{sINV[t]}:{sINV[t]+1}]')
    raw(f'  s_cmp_eq_u64 s[{sT[2]}:{sT[3]}], -1')
    raw(f'  s_cbranch_scc0 FB{t}')
    raw(f'FBR{t}:')
pollw = [f'  s_mov_b32 s{sT[7]}, 0x400000', 'NPOLL:', '  s_waitcnt vmcnt(0)', f'  v_readfirstlane_b32 s{sT[0]}, v13', f'  s_sub_u32 s{sT[7]}, s{sT[7]}, 1',
         f'  s_cselect_b32 s{sT[0]}, 72, s{sT[0]}', f'  s_cmp_ge_u32 s{sT[0]}, 72', '  s_cbranch_scc1 NPOLLD', POLL, '  s_branch NPOLL', 'NPOLLD:']
if PMODE == 1: pollw = [POLL.replace(' sc1', '')] + pollw
if PMODE == 2: pollw = []
YP = {opt('y5a', 5): [BAR] + pollw + dma_n(0, 30) + dma_n(30, 40),
      opt('y5b', 7): ['  s_waitcnt vmcnt(0)', BAR] + dma_n(40, 70),
      opt('y6', 9): ['  s_waitcnt vmcnt(0)', BAR]}
assert len(YP) == 3
O4B = opt('o4b', 6)
for k, slot in enumerate(range(9, -1, -1)):
    if k == 2:
        role2(['  s_waitcnt vmcnt(8)', BAR], [BAR]); gate('S2')
    if k == O4B: role('O', ['  s_waitcnt vmcnt(0)', BAR])
    if k in YP: role('Y', YP[k])
    for s in range(6):
        if slot == 0 and s == 3: sum_mfmas(1)
        if slot == 0: base, off = SB0[s % 2], 128*(s//2)
        else: base, off = (vSe, vSo)[s % 2], (slot-1)*ROW + 128*(s//2)
        fid = add_frag([f'  ds_read_b128 {{d4}}, v{base} offset:{off}'], 'S' if slot >= 6 else 'S2')
        for t in (1, 0):
            jj = slot - 2*t
            if 0 <= jj < 8:
                acc = SACC[t] + 4*jj
                use(fid, (lambda buf, acc=acc, t=t, s=s: mfma(acc, buf, QP+24*t+4*s, acc)))
    for t in (1, 0):
        jj = slot - 2*t
        if 0 <= jj < 8: sm_fill(t, jj)
check(1)
def ycvt(t, ks):
    return [f'  v_cvt_pk_bf16_f32 v{YB[t][ks]+2*hf+i}, v{YACC[t][2*ks+hf]+2*i}, v{YACC[t][2*ks+hf]+2*i+1}' for hf in range(2) for i in range(2)]
lastf = None
for k, st in enumerate(range(4, -1, -1)):
    if k == 1:
        sum_mfmas(0); check(0)
        for t in range(2): fill(f'  v_rcp_f32 v{RI[t]}, v{SUM[t]}')
    if k == 2: need(lastf); role('O', [BAR])
    if 10 + k in YP: role('Y', YP[10 + k])
    if k == 4:
        for ks in range(6): fill(*ycvt(1, ks))
    for ct in range(12):
        tl = [t for t in (1, 0) if 0 <= st - t < 4]
        b_, e_ = ct // 4, ct % 4
        rd = []
        for hf in range(2):
            slot = 2*st + hf
            if slot == 0: base, off = PB0[e_], 128*b_
            else: base, off = vP[e_], (slot-1)*ROW + 128*b_
            rd.append(f'  ds_read_b64_tr_b16 {{d{"lo" if hf == 0 else "hi"}}}, v{base} offset:{off}')
        fid = add_frag(rd, 'S2'); lastf = fid
        if k == 4 and ct == opt('o5b', 6):
            stream.append(('needall', fid + 11 - ct)); role('O', [BAR]); gate('P4a')
        for t in tl:
            acc = YACC[t][ct]
            use(fid, (lambda buf, acc=acc, t=t, st=st: mfma(acc, buf, PREG[t]+4*(st-t), None if st - t == 3 else acc)))
flush()
for ks in range(6): raw(*ycvt(0, ks))
raw(f'  s_mov_b32 s{sVO}, {70*1024}')
for i in range(2): raw(f'  buffer_load_dwordx4 {V(NREG+4*i)}, v{vL0}, {RWS}, s{sVO} offen offset:{1024*i} sc1')
def p4_post(s):
    out = []
    for t in range(2):
        acc = ACC + 16*(s % 2) + 8*t
        o = OUTR + 8*(s % 2) + 4*t
        for r in range(8): out.append(f'  v_mul_f32 v{acc+r}, v{acc+r}, v{RI[t]}')
        for r in range(4): out.append(f'  v_cvt_pk_bf16_f32 v{o+r}, v{acc+2*r}, v{acc+2*r+1}')
        out.append(f'  buffer_store_dwordx4 {V(o)}, v{vO[t]}, {RO}, 0 offen offset:{64*s}{NTO}')
    return out
proj(lambda t, ks: YB[t][ks], n_read, lambda f: 'P4a' if f < 40 else 'P4b', p4_post,
     {30: lambda fid: (role('O', [BAR]), gate('P4b')),
      60: lambda fid: raw('  s_waitcnt vmcnt(8)')})
flush()

def regs_of(tok):
    m = re.fullmatch(r'v\[(\d+):(\d+)\]', tok)
    if m: return list(range(int(m.group(1)), int(m.group(2)) + 1))
    m = re.fullmatch(r'-?v(\d+)', tok)
    return [int(m.group(1))] if m else []
def parse(line):
    p = line.strip().split(None, 1)
    op = p[0]; args = [a.strip().split()[0] for a in p[1].split(',')] if len(p) > 1 else []
    return op, args
clock = [0]
mf_w = {}; va_w = {}; tr_w = {}; mf_c = {}
def hazard(line):
    op, args = parse(line); need_ = 0
    allr = [r for a in args for r in regs_of(a)]
    if op.startswith('v_mfma'):
        for r in [r for a in args[1:] for r in regs_of(a)]:
            if r in va_w: need_ = max(need_, 2 - (clock[0] - va_w[r] - 1))
        for r in regs_of(args[1]) + regs_of(args[2]):
            if r in mf_w: need_ = max(need_, 8 - (clock[0] - mf_w[r] - 1))
    elif op.startswith('v_') or op.startswith('buffer_') or op.startswith('ds_'):
        for r in allr:
            if r in mf_w: need_ = max(need_, 8 - (clock[0] - mf_w[r] - 1))
        if op.startswith('v_'):
            for r in regs_of(args[0]):
                if r in mf_c: need_ = max(need_, 3 - (clock[0] - mf_c[r] - 1))
            for r in [r for a in args[1:] for r in regs_of(a)]:
                if r in tr_w: need_ = max(need_, 1 - (clock[0] - tr_w[r] - 1))
    return need_
def emit(line):
    if line.endswith(':'):
        e(line); return
    n = hazard(line)
    if n > 0:
        e(f'  s_nop {n-1}'); clock[0] += n
    op, args = parse(line)
    e(line)
    if op.startswith('v_mfma'):
        for r in regs_of(args[0]): mf_w[r] = clock[0]
        for r in regs_of(args[3]): mf_c[r] = clock[0]
    elif op.startswith('v_'):
        for r in regs_of(args[0]):
            va_w[r] = clock[0]; tr_w.pop(r, None)
            if op in ('v_exp_f32', 'v_rcp_f32'): tr_w[r] = clock[0]
    if op == 's_nop': clock[0] += int(args[0])
    clock[0] += 1

gates = set(); nxt = 0; done_uses = [0]*len(frags)
ops = []; landed = -1; half = [None]
fq = []
def buf_of(f): return ABUF + 4*(f % NB)
def issue_one():
    global nxt
    while True:
        if half[0] is not None:
            emit(half[0]); ops.append(nxt); half[0] = None; nxt += 1; return True
        if nxt >= len(frags): return False
        fr = frags[nxt]
        if fr['gate'] not in gates: return False
        if nxt >= NB and done_uses[nxt-NB] < frags[nxt-NB]['uses']: return False
        if not fr['reads']:
            nxt += 1; continue
        if len(ops) + len(fr['reads']) > (13 if TSM else 15): return False
        b = buf_of(nxt)
        rs = [r.format(d4=V(b), dlo=V(b, 2), dhi=V(b+2, 2)) for r in fr['reads']]
        emit(rs[0]); ops.append(nxt)
        if len(rs) == 2: half[0] = rs[1]
        else: nxt += 1
        return True
def wait_for(f, pair=True):
    global landed, ops
    if f is None or f <= landed: return
    while nxt <= f:
        n0 = nxt
        if not issue_one() and nxt == n0: raise RuntimeError(f'cannot issue frag {nxt}')
    if any(o <= f for o in ops):
        if pair and f + 1 < nxt and sum(1 for o in ops if o > f + 1) >= PAIRMIN: f = f + 1
        n = sum(1 for o in ops if o > f)
        emit(f'  s_waitcnt lgkmcnt({n})')
        ops = [o for o in ops if o > f]
    landed = f
nmf = [0]
BACKLOG = opt('backlog', 6); PAIRMIN = opt('pairmin', 5)
STREAM_NEXT = {}
mi = [i for i, x in enumerate(stream) if x[0] == 'mfma']
for a_, b_ in zip(mi, mi[1:]): STREAM_NEXT[a_] = stream[b_][2]
for si, ent in enumerate(stream):
    k = ent[0]
    if k == 'raw': emit(ent[1])
    elif k == 'fill': fq.append(ent[1])
    elif k == 'flush':
        for l in fq:
            if not l.startswith('#'): emit(l)
        fq = []
    elif k == 'tag': fq.append('#' + ent[1])
    elif k == 'flushto':
        if '#' + ent[1] in fq:
            i = fq.index('#' + ent[1])
            for l in fq[:i]:
                if not l.startswith('#'): emit(l)
            fq = fq[i+1:]
    elif k == 'gate':
        gates.add(ent[1])
        while issue_one(): pass
    elif k in ('need', 'needall'): wait_for(ent[1])
    elif k == 'cond':
        emit(ent[1][0]); el(ent[1][1:])
    elif k == 'mfma':
        wait_for(ent[2])
        if nmf[0] in TSM: e(ts_line())
        nmf[0] += 1
        emit(ent[1](buf_of(ent[2]) if ent[2] is not None else None))
        if ent[2] is not None: done_uses[ent[2]] += 1
        slots = 2
        nf = STREAM_NEXT.get(si)
        if nf is not None and nf > landed: slots -= 1
        ahead = nxt - (ent[2] if ent[2] is not None else landed)
        if issue_one(): slots -= 1
        if (half[0] is not None or (slots > 0 and (not fq or ahead < 6))) and issue_one(): slots -= 1
        if sum(1 for l in fq if 'v_exp' in l) > BACKLOG: slots = max(slots, 2)
        while fq:
            if fq[0].startswith('#'): fq.pop(0); continue
            cost = 2 if ('v_exp' in fq[0] or 'v_rcp' in fq[0]) else 1
            if slots < cost or hazard(fq[0]) > 0: break
            emit(fq.pop(0)); slots -= cost
if TS:
    e('  s_waitcnt vmcnt(0)')
    e(ts_line()); e('  s_memrealtime s[98:99]')
    e('  s_waitcnt lgkmcnt(0)')
    e(f'  s_lshl_b32 s{sT[0]}, s2, 3'); e(f'  s_add_u32 s{sT[0]}, s{sT[0]}, s{sW}'); e(f'  s_lshl_b32 s{sT[0]}, s{sT[0]}, 6')
    e(f'  s_add_u32 s{sT[0]}, s{sT[0]}, 0x100000')
    e('  v_mov_b32 v1, 0')
    for i in range(nts[0]):
        if i == 0: e(f'  v_mov_b32 v2, s{sTS}')
        else:
            e(f'  s_sub_u32 s{sT[1]}, s{sTS+2*i}, s{sTS}'); e(f'  v_mov_b32 v2, s{sT[1]}')
        e(f'  buffer_store_dword v2, v1, s[20:23], s{sT[0]} offen offset:{4*i}')
    e('  v_mov_b32 v2, s96'); e('  v_mov_b32 v3, s98')
    e(f'  buffer_store_dwordx2 v[2:3], v1, s[20:23], s{sT[0]} offen offset:56')
    print('timestamps', nts[0]); assert nts[0] <= 12
e('MK_done:')
e('  s_endpgm')
for t in range(2):
    R = SACC[t]; vm, vt = RI[0], RI[1]
    e(f'FB{t}:')
    e('  s_nop 7')
    e(f'  v_max3_f32 v{vm}, v{R}, v{R+1}, v{R+2}')
    for k in range(3, 31, 2): e(f'  v_max3_f32 v{vm}, v{vm}, v{R+k}, v{R+k+1}')
    e(f'  s_mov_b32 s{sT[6]}, 0xff7fffff')
    e(f'  v_max3_f32 v{vm}, v{vm}, v{R+31}, s{sT[6]}')
    for sw in ('v_permlane32_swap_b32', 'v_permlane16_swap_b32'):
        e(f'  v_mov_b32 v{vt}, v{vm}'); e('  s_nop 1'); e(f'  {sw} v{vm}, v{vt}'); e('  s_nop 1')
        e(f'  v_max_f32 v{vm}, v{vm}, v{vt}')
    for k in range(32): e(f'  v_sub_f32 v{R+k}, v{R+k}, v{vm}')
    for k in range(32): e(f'  v_exp_f32 v{R+k}, v{R+k}')
    e('  s_nop 0')
    for k in range(16): e(f'  v_cvt_pk_bf16_f32 v{PREG[t]+k}, v{R+2*k}, v{R+2*k+1}')
    e('  s_nop 1')
    for kt in range(4): e(mfma(SUM[t], ONES, PREG[t]+4*kt, None if kt == 0 else SUM[t]))
    e('  s_nop 7')
    e(f'  s_branch FBR{t}')
e('MK_end:')
e('.section .rodata,"a"')
e('.p2align 6'); e(f'.amdhsa_kernel {KN}')
e('  .amdhsa_next_free_vgpr 256'); e('  .amdhsa_next_free_sgpr 102'); e('  .amdhsa_accum_offset 256')
e('  .amdhsa_group_segment_fixed_size 0'); e('  .amdhsa_kernarg_size 48'); e('  .amdhsa_user_sgpr_count 2')
e('  .amdhsa_user_sgpr_kernarg_segment_ptr 1'); e('  .amdhsa_system_sgpr_workgroup_id_x 1')
e('.end_amdhsa_kernel')
open(OUTF, 'w').write('\n'.join(L) + '\n')
```

```python
import sys, struct, math, re
OPT = dict(a.split('=') if '=' in a else (a, '1') for a in sys.argv[1:])
OUTF = OPT.get('out', 'standalone__neighborhood_nat__vision.s')
TS = 'ts' in OPT
TSM = [int(x) for x in OPT['tsm'].split(',')] if 'tsm' in OPT else []
TSP = 'tsp' in OPT
def opt(k, d): return int(OPT.get(k, d))
L = []
def e(s): L.append(s)
def el(ls):
    for l in ls: L.append(l)

X_BYTES = 19267584
WS_BYTES = 268435456
XB = 10240
ROW = 7680
HALF = 36864
NHI = XB + 12*ROW
WOL = 147456
SCALE = struct.unpack('<I', struct.pack('<f', (192 ** -0.5) * math.log2(math.e)))[0]
NT = ' nt' if 'nt' in OPT else ''
NSC = '' if 'nplain' in OPT else ' sc1'
NTO = ' ' + OPT.get('st', 'nt+sc1').replace('+', ' ')
KN = 'standalone__neighborhood_nat__vision_kernel'

hdr = open('standalone__neighborhood_nat__vision.s.ref').read().split('\n')
for ln in hdr:
    if ln.startswith('; @launch'): break
    e(ln)
e('; @launch grid=(256,1,1) block=(512,1,1) lds=163840')
e('.amdgcn_target "amdgcn-amd-amdhsa--gfx950"')
e('.text')

def srd(d, b, n):
    return [f'  s_mov_b32 s{d}, s{b}', f'  s_and_b32 s{d+1}, s{b+1}, 0xffff', f'  s_mov_b32 s{d+2}, {n}', f'  s_mov_b32 s{d+3}, 0x00020000']
def V(a, n=4): return f'v[{a}:{a+n-1}]'
def mfma(d, a, b, c):
    cs = '0' if c is None else V(c)
    return f'  v_mfma_f32_16x16x32_bf16 {V(d)}, {V(a)}, {V(b)}, {cs}'

vL0, vL1 = 1, 2
vO = (5, 6)
vSe, vSo = 7, 8
vP = (9, 10, 11, 12)
vD = (13, 14, 3, 4)
PB0 = (15, 16, 17, 18)
vCT = 19
SB0 = (20, 0)
vRR = (21, 22)
RI = (22, 23)
SACC = (24, 56); QP = 88; XQ = 136; ACC = 184
ABUF = 216; NB = 10
PREG = (136, 152)
YB = ([136, 140, 144, 148, 168, 172], [152, 156, 160, 164, 176, 180])
YACC = ([24+4*i for i in range(12)], [88+4*i for i in range(12)])
SUM = (184, 188); ONES = 192; ET = 196
OUTR = 24; NREG = 40
MACC = 24; MPK = 104
vWA = 96; vMA, vMB, vMW = (97, 98), (99, 100), (101, 102, 103)
vn, vg, tA, tB, tC, tD = 128, 129, 130, 131, 132, 133
vNB, vNA = 134, 135
sW, sU, sH, sPR, sPC, sKR, sKC, sXB, sGS, sGmin = range(24, 34)
sA2, sR0, sD0, sTR, sM0X, sM0X3, sW4, sWL = range(34, 42)
sINV = (42, 44)
sT = list(range(46, 60))
sMR, sAR, sMC, sAC = sT[10], sT[11], sT[12], sT[13]
sTS = 60
sPROD, sWB, sSC, sVO = 3, 92, 93, 100
RX, RO, RWS, RW, RWO, RDB = 's[12:15]', 's[16:19]', 's[20:23]', 's[88:91]', 's[4:7]', 's[8:11]'
MSK = f's[{sT[6]}:{sT[7]}]'
assert sT[6] % 2 == 0 and sT[2] % 2 == 0

nts = [0]
def ts_line():
    s = f'  s_memtime s[{sTS+2*nts[0]}:{sTS+2*nts[0]+1}]'; nts[0] += 1; return s
def tsp():
    if TSP: e(ts_line())

e(f'.globl {KN}'); e('.p2align 8'); e(f'.type {KN},@function'); e(f'{KN}:')
e('  s_cmp_ge_u32 s2, 256'); e('  s_cbranch_scc1 MK_done')
if TS: e(ts_line()); e('  s_memrealtime s[96:97]')
e('  s_load_dwordx8 s[4:11], s[0:1], 0')
e('  s_load_dwordx4 s[84:87], s[0:1], 32')
if 'nopf' not in OPT:
    e('  s_getpc_b64 s[12:13]'); e('MK_pc:')
    e('  s_and_b32 s13, s13, 0xffff'); e('  s_mov_b32 s14, MK_end-MK_pc'); e('  s_mov_b32 s15, 0x00020000')
    e('  v_lshlrev_b32 v23, 7, v0')
    e('  buffer_load_dword v255, v23, s[12:15], 0 offen')
e(f'  v_lshrrev_b32 v{tA}, 6, v0')
e('  v_and_b32 v0, 63, v0')
e(f'  v_readfirstlane_b32 s{sW}, v{tA}')
e(f'  v_and_b32 v{vn}, 15, v0'); e(f'  v_lshrrev_b32 v{vg}, 4, v0')
e(f'  v_lshrrev_b32 v{tA}, 5, v0'); e(f'  v_bfe_u32 v{tB}, v0, 3, 2'); e(f'  v_lshl_add_u32 v{tA}, v{tA}, 3, v{tB}')
e(f'  v_mul_u32_u24 v{tA}, 1152, v{tA}')
e(f'  s_and_b32 s{sH}, s{sW}, 1')
e(f'  s_lshl_b32 s{sT[0]}, s{sH}, 2')
e(f'  v_add_u32 v{tB}, s{sT[0]}, v{vg}'); e(f'  v_and_b32 v{tC}, 7, v0'); e(f'  v_xor_b32 v{tB}, v{tB}, v{tC}')
e(f'  v_lshl_add_u32 v{vWA}, v{tB}, 4, v{tA}')
e(f'  s_lshr_b32 s{sT[0]}, s{sW}, 2'); e(f'  s_lshl_b32 s{sT[0]}, s{sT[0]}, 5')
e(f'  s_lshl_b32 s{sT[1]}, s{sH}, 4'); e(f'  s_add_u32 s{sT[0]}, s{sT[0]}, s{sT[1]}')
e(f'  s_and_b32 s{sT[1]}, s{sW}, 2'); e(f'  s_lshl_b32 s{sT[1]}, s{sT[1]}, 1'); e(f'  s_add_u32 s{sT[0]}, s{sT[0]}, s{sT[1]}')
e(f'  s_mul_i32 s{sWB}, s{sT[0]}, 1152')
e(f'  s_lshl_b32 s{sWL}, s{sW}, 10')
e(f'  s_cmp_lt_u32 s{sW}, 4'); e('  s_cselect_b64 vcc, -1, 0')
e(f'  s_bfe_u32 s{sPR}, s2, 0x10002')
e(f'  s_bfe_u32 s{sPC}, s2, 0x10001')
e(f'  s_and_b32 s{sKR}, s2, 1'); e(f'  s_lshl_b32 s{sKR}, s{sKR}, 2')
e(f'  s_lshr_b32 s{sT[0]}, s2, 6'); e(f'  s_add_u32 s{sKR}, s{sKR}, s{sT[0]}')
e(f'  s_bfe_u32 s{sKC}, s2, 0x30003')
e(f'  s_mul_i32 s{sTR}, s{sKR}, 14'); e(f'  s_add_i32 s{sTR}, s{sTR}, -6'); e(f'  s_max_i32 s{sKR}, s{sTR}, -4')
e(f'  s_mul_i32 s{sKC}, s{sKC}, 14'); e(f'  s_add_i32 s{sKC}, s{sKC}, -6')
e(f'  s_lshr_b32 s{sU}, s{sW}, 1'); e(f'  s_add_u32 s{sU}, s{sU}, 2'); e(f'  s_and_b32 s{sU}, s{sU}, 3')
e(f'  s_sub_u32 s{sMR}, 0, s{sPR}'); e(f'  s_mul_i32 s{sAR}, s{sPR}, 224')
e(f'  s_sub_u32 s{sMC}, 0, s{sPC}'); e(f'  s_mul_i32 s{sAC}, s{sPC}, 224')
e(f'  v_and_b32 v{tA}, 7, v{vn}')
e(f'  s_mul_i32 s{sT[0]}, s{sH}, 7'); e(f'  s_add_i32 s{sT[0]}, s{sT[0]}, s{sKC}')
e(f'  v_cmp_lt_u32 s[{sT[2]}:{sT[3]}], 6, v{tA}')
e(f'  v_add_u32 v{tA}, s{sT[0]}, v{tA}')
e(f'  v_max_i32 v{vCT}, 0, v{tA}')
e(f'  v_add3_u32 v{tA}, v{tA}, v{vCT}, 6')
e(f'  v_xor_b32 v{tA}, s{sMC}, v{tA}'); e(f'  v_add_u32 v{tA}, s{sAC}, v{tA}')
e(f'  v_subrev_u32 v{vCT}, s{sKC}, v{vCT}')
e(f'  v_mul_u32_u24 v{tA}, 384, v{tA}'); e(f'  v_lshl_add_u32 v{tA}, v{vg}, 4, v{tA}')
e(f'  s_lshl_b32 s{sT[0]}, s{sU}, 2'); e(f'  s_add_i32 s{sT[0]}, s{sT[0]}, -2')
e(f'  s_mov_b32 s{sT[1]}, 86016')
e(f'  v_lshrrev_b32 v{tB}, 3, v{vn}'); e(f'  v_add_u32 v{tB}, s{sT[0]}, v{tB}')
e(f'  v_mov_b32 v{tC}, 0x80000000')
for t in range(2):
    if t: e(f'  v_add_u32 v{tB}, 2, v{tB}')
    e(f'  v_cmp_gt_i32 s[{sINV[t]}:{sINV[t]+1}], 0, v{tB}')
    e(f'  v_add_u32 v{vO[t]}, s{sTR}, v{tB}')
    e(f'  v_max_i32 v{vRR[t]}, 0, v{vO[t]}')
    e(f'  v_add3_u32 v{vO[t]}, v{vO[t]}, v{vRR[t]}, 6')
    e(f'  s_or_b64 s[{sINV[t]}:{sINV[t]+1}], s[{sINV[t]}:{sINV[t]+1}], s[{sT[2]}:{sT[3]}]')
    e(f'  v_xor_b32 v{vO[t]}, s{sMR}, v{vO[t]}'); e(f'  v_add_u32 v{vO[t]}, s{sAR}, v{vO[t]}')
    e(f'  v_subrev_u32 v{vRR[t]}, s{sKR}, v{vRR[t]}')
    e(f'  v_mad_u32_u24 v{vO[t]}, v{vO[t]}, s{sT[1]}, v{tA}')
    e(f'  v_cndmask_b32 v{vRR[t]}, v{vRR[t]}, v{tC}, s[{sINV[t]}:{sINV[t]+1}]')
    e(f'  v_cndmask_b32 v{vO[t]}, v{vO[t]}, v{tC}, s[{sINV[t]}:{sINV[t]+1}]')

e('  s_waitcnt lgkmcnt(0)')
tsp()
el(srd(88, 6, 192*576*2))

def w_pieces(c, partner=0):
    return [[f'  s_add_u32 m0, s{sWL}, {c*49152 + mat*24576 + j*8192 + partner*4096}',
             f'  s_add_u32 s{sVO}, s{sWB}, {(j*64 + partner*32)*1152 + mat*384 + c*128}',
             f'  buffer_load_dwordx4 v{vWA}, {RW}, s{sVO} offen lds'] for mat in range(2) for j in range(3)]
def q_loads():
    return [f'  buffer_load_dwordx4 {V(XQ+24*t+4*s_)}, v{vO[t]}, {RX}, 0 offen offset:{64*s_}{NT}' for t in (1, 0) for s_ in range(6)]
SCH = {'O': OPT.get('so', 'A:W0,C:W1,0:W2,1:q6,2:q6'), 'Y': OPT.get('sy', 'A:W0,C:W1,0:W2,3:q6,4:q6')}
PLAN = {}; ISS = {'O': [], 'Y': []}
for r_, sp in SCH.items():
    qi = 0
    for part in sp.split(','):
        pos, items = part.split(':')
        for it in items.split('+'):
            lst = PLAN.setdefault((r_, pos), [])
            if it[0] == 'W': lst += [(f'W{it[1]}', p) for p in w_pieces(int(it[1]))]
            elif it[0] == 'V': lst += [(f'W{it[1]}', p) for p in w_pieces(int(it[1]), 1)]
            else:
                for _ in range(int(it[1:])): lst.append(('q', [q_loads()[qi]])); qi += 1
    assert qi == 12
lbl = [0]
def role_lines(r_, lines):
    lbl[0] += 1
    return [f'  s_cbranch_vcc{"z" if r_ == "O" else "nz"} SL{lbl[0]}'] + list(lines) + [f'SL{lbl[0]}:']
def role2_lines(lo, ly):
    lbl[0] += 1; n = lbl[0]
    return [f'  s_cbranch_vccz SL{n}'] + list(lo) + [f'  s_branch SM{n}', f'SL{n}:'] + list(ly) + [f'SM{n}:']
def sched_items(pos):
    o, y = list(PLAN.get(('O', pos), [])), list(PLAN.get(('Y', pos), []))
    out = []
    while o or y: out.append((o.pop(0) if o else None, y.pop(0) if y else None))
    return out
def emit_item(it):
    o, y = it
    if o: ISS['O'].append(o[0])
    if y: ISS['Y'].append(y[0])
    if o and y and o == y: el(o[1])
    elif o and y: el(role2_lines(o[1], y[1]))
    elif o: el(role_lines('O', o[1]))
    else: el(role_lines('Y', y[1]))
def emit_pos(pos):
    o, y = PLAN.get(('O', pos), []), PLAN.get(('Y', pos), [])
    k = 0
    while k < len(o) and k < len(y) and o[k] == y[k]: emit_item((o[k], y[k])); k += 1
    for r_, x in (('O', o[k:]), ('Y', y[k:])):
        if x:
            ISS[r_] += [i[0] for i in x]; el(role_lines(r_, sum((i[1] for i in x), [])))
def after(r_, tag):
    l = ISS[r_]
    if tag not in l: return 63
    return min(63, len(l) - 1 - max(i for i, t in enumerate(l) if t == tag))

if 'nowpf' not in OPT:
    e(f'  s_cmp_lt_u32 s{sW}, 6'); e('  s_cbranch_scc1 MK_nwpf')
    e(f'  s_cmp_eq_u32 s{sW}, 6'); e(f'  s_cselect_b32 s{sT[0]}, 54, 18')
    e('  s_cselect_b32 s12, s6, s8'); e('  s_cselect_b32 s13, s7, s9'); e('  s_and_b32 s13, s13, 0xffff')
    e(f'  s_lshr_b32 s{sT[1]}, s2, 3'); e(f'  s_mul_i32 s{sT[1]}, s{sT[1]}, s{sT[0]}'); e(f'  s_lshl_b32 s{sVO}, s{sT[1]}, 7')
    e(f'  s_lshl_b32 s{sT[0]}, s{sT[0]}, 7'); e(f'  s_add_u32 s14, s{sVO}, s{sT[0]}'); e('  s_mov_b32 s15, 0x00020000')
    e('  v_lshlrev_b32 v23, 7, v0')
    e(f'  buffer_load_dword v254, v23, s[12:15], s{sVO} offen')
    e('MK_nwpf:')
el(srd(12, 4, X_BYTES))
emit_pos('A')
emit_pos('B')
tsp()
el(srd(16, 10, X_BYTES)); el(srd(4, 8, 192*192*2)); el(srd(8, 84, 256)); el(srd(20, 86, WS_BYTES if TS else 73728))
e(f'  v_lshlrev_b32 v{vL0}, 4, v0')
e(f'  v_add_u32 v{vL1}, {HALF}, v{vL0}')
e(f'  s_and_b32 s{sW4}, s{sW}, 3'); e(f'  s_lshl_b32 s{sW4}, s{sW4}, 10')
e(f'  v_bfe_u32 v{tA}, v{vn}, 1, 3'); e(f'  v_xor_b32 v{tA}, v{tA}, v{vg}')
e(f'  v_lshlrev_b32 v{tB}, 7, v{vn}'); e(f'  v_lshl_add_u32 v{tB}, v{tA}, 4, v{tB}')
e(f'  s_lshr_b32 s{sT[0]}, s{sW}, 2'); e(f'  s_mul_i32 s{sT[1]}, s{sT[0]}, {6*2048}')
e(f'  v_add_u32 v{vMA[0]}, s{sT[1]}, v{tB}'); e(f'  v_xor_b32 v{vMA[1]}, 64, v{vMA[0]}')
e(f'  s_mul_i32 s{sT[1]}, s{sW4}, 6'); e(f'  s_add_u32 s{sT[1]}, s{sT[1]}, 24576')
e(f'  v_add_u32 v{vMB[0]}, s{sT[1]}, v{tB}'); e(f'  v_xor_b32 v{vMB[1]}, 64, v{vMB[0]}')
F = []; f_ = F.append
f_(f'  s_lshr_b32 s{sT[0]}, s{sW}, 2'); f_(f'  s_mul_i32 s{sT[0]}, s{sT[0]}, 6'); f_(f'  s_sub_u32 s{sT[0]}, 67, s{sT[0]}')
f_(f'  s_and_b32 s{sT[1]}, s{sW}, 3'); f_(f'  s_mul_i32 s{sT[1]}, s{sT[1]}, 3')
for b in range(3):
    f_(f'  s_add_u32 s{sT[2]}, s{sT[1]}, {b}')
    f_(f'  s_lshr_b32 s{sT[3]}, s{sT[2]}, 1'); f_(f'  s_mul_i32 s{sT[3]}, s{sT[3]}, 10')
    f_(f'  s_add_u32 s{sT[2]}, s{sT[2]}, s{sT[3]}')
    f_(f'  s_sub_u32 s{sT[2]}, s{sT[0]}, s{sT[2]}'); f_(f'  s_lshl_b32 s{sT[2]}, s{sT[2]}, 10')
    f_(f'  v_add_u32 v{vMW[b]}, s{sT[2]}, v{vL0}')
f_(f'  s_lshl_b32 s{sT[0]}, s{sKR}, 1'); f_(f'  s_xor_b32 s{sT[0]}, s{sT[0]}, s{sMR}')
f_(f'  s_mul_i32 s{sT[1]}, s{sPR}, 222'); f_(f'  s_add_i32 s{sXB}, s{sT[0]}, s{sT[1]}')
f_(f'  s_mul_i32 s{sXB}, s{sXB}, 86016')
f_(f'  s_mul_i32 s{sGS}, s{sPR}, {-2*344064}'); f_(f'  s_add_i32 s{sGS}, s{sGS}, 344064')
f_(f'  s_lshr_b32 s{sGmin}, s{sKR}, 31'); f_(f'  s_lshl_b32 s{sGmin}, s{sGmin}, 1')
f_(f'  s_lshl_b32 s{sM0X}, s{sW4}, 2')
f_(f'  s_add_u32 s{sM0X3}, s{sM0X}, 3072'); f_(f'  s_min_u32 s{sM0X3}, s{sM0X3}, {14*1024}')
f_(f'  s_mul_i32 s{sT[2]}, s{sPR}, 172032'); f_(f'  s_sub_u32 s{sT[3]}, 172032, s{sT[2]}')
f_(f'  v_mov_b32 v{tC}, s{sT[2]}'); f_(f'  v_mov_b32 v{tD}, s{sT[3]}')
for b in range(960): assert (b * 2731) >> 16 == b // 24
for j in range(4):
    d = vD[j]
    if j < 3:
        f_(f'  s_lshr_b32 s{sT[0]}, s{sM0X}, 4'); f_(f'  s_add_u32 s{sT[0]}, s{sT[0]}, {64*j}')
    else: f_(f'  s_lshr_b32 s{sT[0]}, s{sM0X3}, 4')
    f_(f'  v_add_u32 v{tA}, s{sT[0]}, v0')
    f_(f'  v_mul_u32_u24 v{d}, 2731, v{tA}'); f_(f'  v_lshrrev_b32 v{d}, 16, v{d}')
    f_(f'  v_cmp_le_u32 {MSK}, 20, v{d}')
    f_(f'  v_mul_u32_u24 v{tB}, 24, v{d}'); f_(f'  v_sub_u32 v{tA}, v{tA}, v{tB}')
    f_(f'  v_subrev_u32 v{tB}, 20, v{d}')
    f_(f'  v_cndmask_b32 v{d}, v{d}, v{tB}, {MSK}')
    f_(f'  v_bfe_u32 v{tB}, v{d}, 1, 3'); f_(f'  v_xor_b32 v{tA}, v{tA}, v{tB}')
    f_(f'  v_cndmask_b32 v{tB}, v{tC}, v{tD}, {MSK}')
    f_(f'  v_lshl_add_u32 v{tA}, v{tA}, 4, v{tB}')
    f_(f'  v_add_u32 v{d}, s{sKC}, v{d}'); f_(f'  v_max_i32 v{d}, 0, v{d}'); f_(f'  v_lshlrev_b32 v{d}, 1, v{d}')
    f_(f'  v_xor_b32 v{d}, s{sMC}, v{d}'); f_(f'  v_add_u32 v{d}, s{sAC}, v{d}')
    f_(f'  v_mul_u32_u24 v{d}, 384, v{d}'); f_(f'  v_add_u32 v{d}, v{d}, v{tA}')
f_(f'  s_add_u32 s{sM0X}, s{sM0X}, {XB}'); f_(f'  s_add_u32 s{sM0X3}, s{sM0X3}, {XB}')
for dst, add in ((sT[0], -2), (sA2, 0)):
    f_(f'  s_lshl_b32 s{dst}, s{sU}, 2')
    if add: f_(f'  s_add_i32 s{dst}, s{dst}, {add}'); f_(f'  s_max_i32 s{dst}, s{dst}, 0')
    f_(f'  s_add_i32 s{dst}, s{dst}, s{sTR}'); f_(f'  s_max_i32 s{dst}, s{dst}, 0'); f_(f'  s_sub_i32 s{dst}, s{dst}, s{sKR}')
f_(f'  s_sub_u32 s{sT[0]}, s{sA2}, s{sT[0]}'); f_(f'  s_lshr_b32 s{sT[0]}, s{sT[0]}, 1')
f_(f'  s_mul_i32 s{sD0}, s{sT[0]}, -8'); f_(f'  s_add_i32 s{sD0}, s{sD0}, 7')
f_(f'  s_add_i32 s{sA2}, s{sA2}, -1')
f_(f'  s_add_i32 s{sR0}, s{sA2}, s{sD0}'); f_(f'  s_mul_i32 s{sD0}, s{sD0}, {ROW}')
f_(f'  s_lshl_b32 s{sT[1]}, s{sH}, 2')
f_(f'  s_mul_i32 s{sT[0]}, s{sA2}, {ROW}'); f_(f'  s_add_i32 s{sT[0]}, s{sT[0]}, {XB}')
f_(f'  v_add_u32 v{tA}, s{sT[1]}, v{vn}')
f_(f'  v_bfe_u32 v{tB}, v{tA}, 1, 3'); f_(f'  v_xor_b32 v{tB}, v{tB}, v{vg}')
f_(f'  v_mul_u32_u24 v{tA}, 384, v{tA}'); f_(f'  v_lshl_add_u32 v{tA}, v{tB}, 4, v{tA}')
f_(f'  v_add_u32 v{vSe}, s{sT[0]}, v{tA}'); f_(f'  v_xor_b32 v{vSo}, 64, v{vSe}')
f_(f'  v_lshrrev_b32 v{tA}, 2, v{vn}'); f_(f'  v_lshl_add_u32 v{tA}, v{vg}, 2, v{tA}'); f_(f'  v_add_u32 v{tA}, s{sT[1]}, v{tA}')
f_(f'  v_bfe_u32 v{tB}, v{tA}, 1, 3')
f_(f'  v_and_b32 v{tC}, 2, v{vn}'); f_(f'  v_lshlrev_b32 v{tC}, 1, v{tC}'); f_(f'  v_xor_b32 v{tB}, v{tB}, v{tC}')
f_(f'  v_mul_u32_u24 v{tA}, 384, v{tA}'); f_(f'  v_lshl_add_u32 v{tA}, v{tB}, 4, v{tA}')
f_(f'  v_and_b32 v{tB}, 1, v{vn}'); f_(f'  v_lshl_add_u32 v{tA}, v{tB}, 3, v{tA}')
f_(f'  v_add_u32 v{vP[0]}, s{sT[0]}, v{tA}')
for k in range(1, 4): f_(f'  v_xor_b32 v{vP[k]}, {16*k}, v{vP[0]}')
f_(f'  v_lshl_add_u32 v{tA}, v{vg}, 2, s{sT[1]}'); f_(f'  v_sub_u32 v{vCT}, v{tA}, v{vCT}')
f_(f'  v_add_u32 v{SB0[0]}, s{sD0}, v{vSe}'); f_(f'  v_add_u32 v{SB0[1]}, s{sD0}, v{vSo}')
for k in range(4): f_(f'  v_add_u32 v{PB0[k]}, s{sD0}, v{vP[k]}')
f_(f'  s_mov_b32 s{sSC}, {SCALE}')
NPRE = opt('npre', 999)
el(F[:NPRE]); F = F[NPRE:]

def dma_x(G):
    out = []
    if G < 2: out += [f'  s_max_u32 s{sVO}, s{sGmin}, {G}', f'  s_mul_i32 s{sVO}, s{sVO}, s{sGS}']
    else: out.append(f'  s_mul_i32 s{sVO}, s{sGS}, {G}')
    out.append(f'  s_add_i32 s{sVO}, s{sVO}, s{sXB}')
    for j in range(4):
        out.append(f'  s_add_u32 m0, s{sM0X}, {G*15360 + j*1024}' if j < 3 else f'  s_add_u32 m0, s{sM0X3}, {G*15360}')
        out.append('  s_nop 0')
        out.append(f'  buffer_load_dwordx4 v{vD[j]}, {RX}, s{sVO} offen{NT} lds')
    return out
def dma_xs(Gs): return sum((dma_x(G) for G in Gs), [])
def bias_init(tmp):
    out = []; o = out.append
    cb, ninf, tt = tmp, tmp+4, tmp+5
    o(f'  v_mov_b32 v{ninf}, 0xff800000')
    for i in range(4): o(f'  v_add_u32 v{tt+i}, {i}, v{vCT}')
    for i in range(4): o(f'  v_cmp_gt_u32 s[{sT[2+2*i]}:{sT[3+2*i]}], 7, v{tt+i}')
    for i in range(4): o(f'  v_cndmask_b32 v{cb+i}, v{ninf}, 0, s[{sT[2+2*i]}:{sT[3+2*i]}]')
    for t in range(2):
        for j4 in range(2):
            for jj in range(4*j4, 4*j4+4):
                slot = jj + 2*t; r = tt + jj % 4
                if slot == 0: o(f'  v_sub_u32 v{r}, s{sR0}, v{vRR[t]}')
                else:
                    o(f'  s_add_i32 s{sT[0]}, s{sA2}, {slot-1}'); o(f'  v_sub_u32 v{r}, s{sT[0]}, v{vRR[t]}')
            for q in range(4): o(f'  v_cmp_gt_u32 s[{sT[2+2*q]}:{sT[3+2*q]}], 7, v{tt+q}')
            for jj in range(4*j4, 4*j4+4):
                q = jj % 4
                for i in range(4):
                    o(f'  v_cndmask_b32 v{SACC[t]+4*jj+i}, v{ninf}, v{cb+i}, s[{sT[2+2*q]}:{sT[3+2*q]}]')
    return out

tsp()
emit_pos('C')
tsp()
vLN = 107
def n_loads():
    e(f'  v_lshrrev_b32 v{vLN}, 4, v{vL0}')
    e(f'  s_cmp_lt_u32 s2, 72'); e('  s_cbranch_scc0 MK_np1')
    e(f'  s_mul_hi_u32 s{sT[8]}, s2, 0x15555556'); e(f'  s_lshl_b32 s{sT[8]}, s{sT[8]}, 6')
    e(f'  s_mul_i32 s{sT[9]}, s{sW}, {16*384}'); e(f'  s_add_u32 s{sVO}, s{sT[8]}, s{sT[9]}')
    e(f'  v_lshrrev_b32 v{MPK}, 2, v{vLN}'); e(f'  v_mul_u32_u24 v{MPK}, 384, v{MPK}'); e(f'  v_and_b32 v{MPK+1}, 3, v{vLN}'); e(f'  v_lshl_add_u32 v{MPK}, v{MPK+1}, 4, v{MPK}')
    e(f'  s_add_u32 m0, s{sWL}, {WOL}'); e('  s_nop 0')
    e(f'  buffer_load_dwordx4 v{MPK}, {RWO}, s{sVO} offen lds')
    e(f'  s_mul_i32 s{sT[9]}, s{sW4}, 6'); e(f'  s_add_u32 s{sVO}, s{sT[8]}, s{sT[9]}')
    e(f'  s_add_u32 m0, s{sW4}, {WOL + 8192}'); e(f'  s_add_u32 s{sVO}, s{sVO}, {8*16*384}')
    e(f'  buffer_load_dwordx4 v{MPK}, {RWO}, s{sVO} offen lds')
    e('MK_np1:')
    e(f'  s_sub_u32 s{sPROD}, s2, 72'); e(f'  s_lshr_b32 s{sPROD}, s{sPROD}, 31')
    e(f'  s_lshr_b32 s{sPROD}, s{sPROD}, s{sU}')
    e(f'  v_mov_b32 v{vNB}, 0')
    e(f'  s_cmp_eq_u32 s{sPROD}, 0'); e('  s_cbranch_scc1 MK_np3')
    e(f'  s_mul_hi_u32 s{sT[8]}, s2, 0x15555556'); e(f'  s_mul_i32 s{sT[9]}, s{sT[8]}, 12'); e(f'  s_sub_u32 s{sT[9]}, s2, s{sT[9]}')
    e(f'  s_and_b32 s{sT[5]}, s{sT[9]}, 1'); e(f'  s_lshr_b32 s{sT[9]}, s{sT[9]}, 1')
    e(f'  v_lshrrev_b32 v{MPK+2}, 2, v{vn}'); e(f'  v_and_b32 v{MPK+1}, 3, v{vn}')
    e(f'  v_lshl_add_u32 v{vNB}, v{vg}, 3, v{MPK+2}'); e(f'  v_lshlrev_b32 v{vNB}, 6, v{vNB}'); e(f'  v_lshl_add_u32 v{vNB}, v{MPK+1}, 4, v{vNB}')
    e(f'  s_lshl_b32 s{sT[5]}, s{sT[5]}, 3'); e(f'  s_add_u32 s{sT[5]}, s{sT[5]}, {WOL}'); e(f'  v_add_u32 v{vNB}, s{sT[5]}, v{vNB}')
    e(f'  s_lshr_b32 s{sT[8]}, s{sT[9]}, 1'); e(f'  s_lshl_b32 s{sT[8]}, s{sT[8]}, 6')
    e(f'  s_and_b32 s{sT[9]}, s{sT[9]}, 1'); e(f'  s_lshl_b32 s{sT[9]}, s{sT[9]}, 4'); e(f'  s_add_u32 s{sT[8]}, s{sT[8]}, s{sT[9]}')
    e(f'  v_lshrrev_b32 v{MPK}, 1, v{MPK+2}'); e(f'  v_lshlrev_b32 v{MPK}, 5, v{MPK}')
    e(f'  v_and_b32 v{MPK+2}, 1, v{MPK+2}'); e(f'  v_lshl_add_u32 v{MPK}, v{MPK+2}, 2, v{MPK}')
    e(f'  v_add3_u32 v{MPK}, v{MPK}, v{MPK+1}, s{sT[8]}')
    e(f'  v_mul_u32_u24 v{MPK}, 1152, v{MPK}'); e(f'  v_lshl_add_u32 v{vNA}, v{vg}, 4, v{MPK}')
    e(f'  s_mul_i32 s{sVO}, s{sH}, 9216')
    for kk in range(6):
        e(f'  buffer_load_dwordx4 {V(136+4*kk)}, v{vNA}, {RW}, s{sVO} offen offset:{768+64*kk}')
    e('MK_np3:')
def m_reads(kk):
    rb = 184 + 36*(kk % 2); co = (kk // 2) * 49152
    lo = co if co < 49152*2 else 0
    return ([f'  ds_read_b128 {V(rb+24+4*b)}, v{vMB[kk % 2]} offset:{2048*b}' for b in range(3)] +
            [f'  ds_read_b128 {V(rb+4*a)}, v{vMA[kk % 2]} offset:{2048*a}' for a in range(6)])
def chunk_sync(c, lg):
    wo_, wy_ = after('O', f'W{c}'), after('Y', f'W{c}')
    x = ' lgkmcnt(0)' if lg else ''
    def w(n, prod):
        if c != 1 or n == 63: return [f'  s_waitcnt vmcnt({n}){x}']
        lbl[0] += 1; k = lbl[0]; o = []
        if prod: o += [f'  s_cmp_lg_u32 s{sPROD}, 0', f'  s_cbranch_scc1 CA{k}']
        o += ['  s_cmp_lt_u32 s2, 72', f'  s_cbranch_scc1 CB{k}', f'  s_waitcnt vmcnt({n})', f'CB{k}:']
        if prod: o += [f'  s_waitcnt vmcnt({n+2})', f'CA{k}:', f'  s_waitcnt vmcnt({n+8}){x}']
        else: o += [f'  s_waitcnt vmcnt({n+2}){x}']
        return o
    if c == 2:
        wo_, wy_ = min(wo_, len(ISS['O']) - N_AT['O']), min(wy_, len(ISS['Y']) - N_AT['Y'])
    if wo_ == wy_: el(w(wo_, True))
    else: el(role2_lines(w(wo_, False), w(wy_, True)))
    e('  s_barrier')
    tsp()
N_AT = {}
FPG = opt('fpg', 4)
chunk_sync(0, False)
el(m_reads(0))
for kk in range(4):
    landed_all = False
    if kk % 2 == 1:
        chunk_sync(kk // 2 + 1, True); landed_all = True
        for r in vMA + vMB: e(f'  v_add_u32 v{r}, 49152, v{r}')
    extra = sched_items(str(kk)); ne = len(extra); cnt = 0
    rb = 184 + 36*(kk % 2)
    nx = m_reads(kk+1)
    issued = 0
    for a in range(6):
        if not landed_all: e(f'  s_waitcnt lgkmcnt({5 - a + issued})')
        for b in range(3):
            acc = MACC + 12*a + 4*b
            e(mfma(acc, rb+4*a, rb+24+4*b, None if kk == 0 else acc))
            slots = FPG
            if nx and b < 2 and (a >= 1 or landed_all):
                e(nx.pop(0)); issued += 1; slots -= 1
            cnt += 1
            while extra and (ne - len(extra)) * 18 < cnt * ne: emit_item(extra.pop(0)); slots = 0
            el(F[:slots]); F = F[slots:]
    assert not nx and not extra
    if kk == 0: n_loads(); N_AT.update(O=len(ISS['O']), Y=len(ISS['Y']))
print('leftover F', len(F), file=sys.stderr); el(F); F = []
assert ISS['Y'].count('q') <= 6
e(f'  s_cmp_eq_u32 s{sPROD}, 0'); e('  s_cbranch_scc1 MK_np2')
e('  s_waitcnt lgkmcnt(0)')
for k2 in range(6):
    for hf in range(2):
        e(f'  ds_read_b64_tr_b16 {V(MPK+4*k2+2*hf, 2)}, v{vNB} offset:{(32*k2 + 4*hf)*64}')
e('  s_setprio 3'); e('  s_waitcnt lgkmcnt(0)')
for kk in range(6):
    e(mfma(128, 136+4*kk, MPK+4*kk, None if kk == 0 else 128))
e(f'  s_lshl_b32 s{sVO}, s2, 10'); e(f'  s_lshl_b32 s{sT[8]}, s{sH}, 3'); e(f'  s_add_u32 s{sVO}, s{sVO}, s{sT[8]}')
e('  s_nop 5')
for r in range(2): e(f'  v_cvt_pk_bf16_f32 v{132+r}, v{128+2*r}, v{129+2*r}')
e(f'  buffer_store_dwordx2 v[132:133], v{vL0}, {RWS}, s{sVO} offen sc1')
NY_AT_STORE = len(ISS['Y'])
e('  s_setprio 0')
e('MK_np2:')
r5 = m_reads(5)
el(r5[:5]); late = r5[5:]
extra = sched_items('4'); ne = len(extra); cnt = 0
pend = []; nw = 0
for fi in range(9):
    a3, b = fi // 3, fi % 3
    if fi == 0: e('  s_waitcnt lgkmcnt(5)')
    for kk in (4, 5):
        rb = 184 + 36*(kk % 2)
        if fi == 0 and kk == 5: e('  s_waitcnt lgkmcnt(2)')
        if fi == 3 and kk == 5: e(f'  s_waitcnt lgkmcnt({nw})')
        for a in (2*a3, 2*a3+1):
            acc = MACC + 12*a + 4*b
            e(mfma(acc, rb+4*a, rb+24+4*b, acc)); cnt += 1
            if late: e(late.pop(0))
            k = 0
            while pend and pend[0][0] <= cnt and k < 2:
                l = pend.pop(0)[1]; e(l); k += 1
                if 'ds_write' in l: nw += 1
            while extra and (ne - len(extra)) * 36 < cnt * ne: emit_item(extra.pop(0))
    o = MPK + 4*(fi % 6)
    for a in range(2):
        acc = MACC + 12*(2*a3 + a) + 4*b
        for i in range(2): pend.append((cnt + 5, f'  v_cvt_pk_bf16_f32 v{o+2*a+i}, v{acc+2*i}, v{acc+2*i+1}'))
    pend.append((cnt + 5, f'  ds_write_b128 v{vMW[b]}, {V(o)} offset:{2048*(2-a3)}'))
assert not extra
tsp()
for i, (_, l) in enumerate(pend):
    if len(pend) - i == 5: e('  s_nop 3')
    e(l)
e('  s_waitcnt lgkmcnt(0)')
e('  s_barrier')
tsp()
NXY = opt('nxy', 3)
XH = (9, 8, 7, 6, 5)
y = [f'  s_cmp_eq_u32 s{sPROD}, 0', '  s_cbranch_scc1 MK_np4', f'  s_waitcnt vmcnt({len(ISS["Y"]) - NY_AT_STORE})', '  v_mov_b32 v23, 1', '  s_mov_b64 exec, 1',
     f'  buffer_atomic_add v23, off, {RDB}, 0 sc1', '  s_mov_b64 exec, -1', 'MK_np4:']
assert ('O', 'Z') not in PLAN
for t_, ls in PLAN.get(('Y', 'Z'), []): y += ls
y += dma_xs(XH[:NXY]) + [f'  s_waitcnt vmcnt({4*NXY})']
PRE_P1 = (['  s_waitcnt vmcnt(0)'], y)

stream = []; frags = []
def add_frag(reads, gate): frags.append(dict(reads=reads, gate=gate, uses=0)); return len(frags) - 1
def use(fid, fn): frags[fid]['uses'] += 1; stream.append(('mfma', fn, fid))
def mf(text): stream.append(('mfma', (lambda buf: text), None))
def raw(*lines):
    for l in lines: stream.append(('raw', l))
def fill(*lines):
    for l in lines: stream.append(('fill', l))
def flush(): stream.append(('flush',))
def need(fid): stream.append(('need', fid))
def gate(name): stream.append(('gate', name))
def role(r, lines): stream.append(('cond', role_lines(r, lines)))
def role2(lo, ly): stream.append(('cond', role2_lines(lo, ly)))
BAR = '  s_barrier'
def m_read(f):
    addr = (71-f)*1024
    if addr < HALF: return [f'  ds_read_b128 {{d4}}, v{vL0} offset:{addr}']
    return [f'  ds_read_b128 {{d4}}, v{vL1} offset:{addr-HALF}']
def n_addr(f): return NHI + 30720 + 1024*f if f < 30 else ((f-30)*1024 if f < 40 else NHI + (f-40)*1024)
def n_read(f):
    if f >= 70: return []
    a = n_addr(f)
    return [f'  ds_read_b128 {{d4}}, v{vL1} offset:{a-NHI}' if a >= NHI else f'  ds_read_b128 {{d4}}, v{vL0} offset:{a}']
def dma_n(a, b):
    out = []
    for f0 in range(a, b, 4):
        lim = (b - 1 - f0) * 1024; src = sW4
        if lim < 3072: out.append(f'  s_min_u32 s{sT[5]}, s{sW4}, {lim}'); src = sT[5]
        out += [f'  s_add_u32 m0, s{src}, {n_addr(f0)}', f'  s_add_u32 s{sVO}, s{src}, {f0*1024}',
                f'  buffer_load_dwordx4 v{vL0}, {RWS}, s{sVO} offen{NSC} lds']
    return out
def proj(B, rd, gate_of, post, hooks):
    for s in range(6):
        for ks in range(6):
            for hh in range(2):
                f = 12*s + 2*ks + hh
                fid = add_frag(rd(f), gate_of(f))
                if f in hooks: hooks[f](fid)
                for t in range(2):
                    acc = ACC + 16*(s % 2) + 8*t + 4*hh
                    fx = None if rd(f) else NREG + 4*(f-70)
                    use(fid, (lambda buf, acc=acc, t=t, ks=ks, fx=fx: mfma(acc, buf if fx is None else fx, B(t, ks), None if ks == 0 else acc)))
        flush()
        fill(*post(s))

gate('G0')
role2(PRE_P1[0], PRE_P1[1])
def p1_post(s):
    out = []
    for t in range(2):
        acc = ACC + 16*(s % 2) + 8*t
        for r in range(8): out.append(f'  v_mul_f32 v{acc+r}, s{sSC}, v{acc+r}')
        for r in range(4): out.append(f'  v_cvt_pk_bf16_f32 v{QP+24*t+4*s+r}, v{acc+2*r}, v{acc+2*r+1}')
    return out
proj(lambda t, ks: XQ+24*t+4*ks, m_read, lambda f: 'G0', p1_post,
     {31: lambda fid: (need(fid), role('Y', [BAR])),
      61: lambda fid: (need(fid), role('Y', ['  s_waitcnt vmcnt(0)', BAR]))})
flush()
raw(f'  v_add_u32 v{vL1}, {NHI}, v{vL0}')
for r in range(4): raw(f'  v_mov_b32 v{ONES+r}, 0x3f803f80')
POLL = f'  buffer_load_dword v13, off, {RDB}, 0 sc1'
PMODE = opt('pmode', 1)
role('O', dma_xs(XH[NXY:]) + [BAR] + dma_xs((4, 3, 2)))
raw(*bias_init(XQ))
role2(['  s_waitcnt vmcnt(12)', BAR] + dma_xs((1, 0)), [BAR])
for _ in range(opt('idle', 0)): raw('  s_sleep 8')
gate('S')
etn = [0]
def sm_fill(t, jj):
    tmp = ET + 4*(etn[0] % 5); etn[0] += 1
    acc = SACC[t] + 4*jj
    for i in range(4): fill(f'  v_exp_f32 v{tmp+i}, v{acc+i}')
    for i in range(2): fill(f'  v_cvt_pk_bf16_f32 v{PREG[t]+2*jj+i}, v{tmp+2*i}, v{tmp+2*i+1}')
    stream.append(('tag', f'P{t}_{jj}'))
def sum_mfmas(t):
    stream.append(('flushto', f'P{t}_0'))
    for kt in (3, 2, 1, 0): mf(mfma(SUM[t], ONES, PREG[t]+4*kt, None if kt == 3 else SUM[t]))
LO, HI = (127-30) << 23, (127+30) << 23
def check(t):
    raw(f'  v_subrev_u32 v{RI[1]}, {LO}, v{SUM[t]}')
    raw(f'  s_mov_b32 s{sT[6]}, {HI-LO}')
    raw(f'  v_cmp_gt_u32 s[{sT[2]}:{sT[3]}], s{sT[6]}, v{RI[1]}')
    raw(f'  s_or_b64 s[{sT[2]}:{sT[3]}], s[{sT[2]}:{sT[3]}], s[{sINV[t]}:{sINV[t]+1}]')
    raw(f'  s_cmp_eq_u64 s[{sT[2]}:{sT[3]}], -1')
    raw(f'  s_cbranch_scc0 FB{t}')
    raw(f'FBR{t}:')
pollw = [f'  s_mov_b32 s{sT[7]}, 0x400000', 'NPOLL:', '  s_waitcnt vmcnt(0)', f'  v_readfirstlane_b32 s{sT[0]}, v13', f'  s_sub_u32 s{sT[7]}, s{sT[7]}, 1',
         f'  s_cselect_b32 s{sT[0]}, 144, s{sT[0]}', f'  s_cmp_ge_u32 s{sT[0]}, 144', '  s_cbranch_scc1 NPOLLD', POLL, '  s_branch NPOLL', 'NPOLLD:']
ODMA = 'ydma' not in OPT
if not ODMA: pollw = [POLL.replace(' sc1', '')] + pollw
YP = {opt('y5a', 9): [BAR] + pollw + dma_n(0, 30) + dma_n(30, 40),
      opt('y5b', 12): ['  s_waitcnt vmcnt(0)', BAR] + dma_n(40, 70),
      opt('y6', 14): ['  s_waitcnt vmcnt(0)', BAR]}
assert len(YP) == 3
if ODMA: YP = {k: [BAR] for k in YP}
if 'yhi' in OPT: YP[opt('yhi', 0)] = YP.get(opt('yhi', 0), []) + ['  s_setprio 1']
O4B = opt('o4b', 6)
for k, slot in enumerate(range(9, -1, -1)):
    if k == 2:
        role2(['  s_waitcnt vmcnt(8)', BAR], [BAR]); gate('S2')
    if k == O4B: role('O', ['  s_waitcnt vmcnt(0)', BAR] + ([POLL.replace(' sc1', '')] if ODMA else []))
    if k in YP: role('Y', YP[k])
    for s in range(6):
        if slot == 0 and s == 3: sum_mfmas(1)
        if slot == 0: base, off = SB0[s % 2], 128*(s//2)
        else: base, off = (vSe, vSo)[s % 2], (slot-1)*ROW + 128*(s//2)
        fid = add_frag([f'  ds_read_b128 {{d4}}, v{base} offset:{off}'], 'S' if slot >= 6 else 'S2')
        for t in (1, 0):
            jj = slot - 2*t
            if 0 <= jj < 8:
                acc = SACC[t] + 4*jj
                use(fid, (lambda buf, acc=acc, t=t, s=s: mfma(acc, buf, QP+24*t+4*s, acc)))
    for t in (1, 0):
        jj = slot - 2*t
        if 0 <= jj < 8: sm_fill(t, jj)
check(1)
def ycvt(t, ks):
    return [f'  v_cvt_pk_bf16_f32 v{YB[t][ks]+2*hf+i}, v{YACC[t][2*ks+hf]+2*i}, v{YACC[t][2*ks+hf]+2*i+1}' for hf in range(2) for i in range(2)]
lastf = None
for k, st in enumerate(range(4, -1, -1)):
    if k == 1:
        sum_mfmas(0); check(0)
        for t in range(2): fill(f'  v_rcp_f32 v{RI[t]}, v{SUM[t]}')
    if k == 2: need(lastf); role('O', [BAR] + (pollw + dma_n(30, 40) + dma_n(0, 30) if ODMA else []))
    if 10 + k in YP: role('Y', YP[10 + k])
    if k == 4:
        for ks in range(6): fill(*ycvt(1, ks))
    for ct in range(12):
        tl = [t for t in (1, 0) if 0 <= st - t < 4]
        b_, e_ = ct // 4, ct % 4
        rd = []
        for hf in range(2):
            slot = 2*st + hf
            if slot == 0: base, off = PB0[e_], 128*b_
            else: base, off = vP[e_], (slot-1)*ROW + 128*b_
            rd.append(f'  ds_read_b64_tr_b16 {{d{"lo" if hf == 0 else "hi"}}}, v{base} offset:{off}')
        fid = add_frag(rd, 'S2'); lastf = fid
        if k == 4 and ct == opt('o5b', 6):
            stream.append(('needall', fid + 11 - ct)); role('O', ['  s_waitcnt vmcnt(0)', BAR] + dma_n(40, 70) if ODMA else [BAR]); gate('P4a')
        for t in tl:
            acc = YACC[t][ct]
            use(fid, (lambda buf, acc=acc, t=t, st=st: mfma(acc, buf, PREG[t]+4*(st-t), None if st - t == 3 else acc)))
flush()
for ks in range(6): raw(*ycvt(0, ks))
raw(f'  s_mov_b32 s{sVO}, {70*1024}')
if 15 in YP: role('Y', YP[15])
for i in range(2): raw(f'  buffer_load_dwordx4 {V(NREG+4*i)}, v{vL0}, {RWS}, s{sVO} offen offset:{1024*i} sc1')
def p4_post(s):
    out = []
    for t in range(2):
        acc = ACC + 16*(s % 2) + 8*t
        o = OUTR + 8*(s % 2) + 4*t
        for r in range(8): out.append(f'  v_mul_f32 v{acc+r}, v{acc+r}, v{RI[t]}')
        for r in range(4): out.append(f'  v_cvt_pk_bf16_f32 v{o+r}, v{acc+2*r}, v{acc+2*r+1}')
        out.append(f'  buffer_store_dwordx4 {V(o)}, v{vO[t]}, {RO}, 0 offen offset:{64*s}{NTO}')
    return out
proj(lambda t, ks: YB[t][ks], n_read, lambda f: 'P4a' if f < 40 else 'P4b', p4_post,
     {opt('o6', 24): lambda fid: (role('O', (['  s_waitcnt vmcnt(4)'] if ODMA else []) + [BAR]), gate('P4b')),
      60: lambda fid: raw('  s_waitcnt vmcnt(8)'),
      opt('ylo', 1): lambda fid: raw('  s_setprio 0') if 'yhi' in OPT else None})
flush()

def regs_of(tok):
    m = re.fullmatch(r'v\[(\d+):(\d+)\]', tok)
    if m: return list(range(int(m.group(1)), int(m.group(2)) + 1))
    m = re.fullmatch(r'-?v(\d+)', tok)
    return [int(m.group(1))] if m else []
def parse(line):
    p = line.strip().split(None, 1)
    op = p[0]; args = [a.strip().split()[0] for a in p[1].split(',')] if len(p) > 1 else []
    return op, args
clock = [0]
mf_w = {}; va_w = {}; tr_w = {}; mf_c = {}
def hazard(line):
    op, args = parse(line); need_ = 0
    allr = [r for a in args for r in regs_of(a)]
    if op.startswith('v_mfma'):
        for r in [r for a in args[1:] for r in regs_of(a)]:
            if r in va_w: need_ = max(need_, 2 - (clock[0] - va_w[r] - 1))
        for r in regs_of(args[1]) + regs_of(args[2]):
            if r in mf_w: need_ = max(need_, 8 - (clock[0] - mf_w[r] - 1))
    elif op.startswith('v_') or op.startswith('buffer_') or op.startswith('ds_'):
        for r in allr:
            if r in mf_w: need_ = max(need_, 8 - (clock[0] - mf_w[r] - 1))
        if op.startswith('v_'):
            for r in regs_of(args[0]):
                if r in mf_c: need_ = max(need_, 3 - (clock[0] - mf_c[r] - 1))
            for r in [r for a in args[1:] for r in regs_of(a)]:
                if r in tr_w: need_ = max(need_, 1 - (clock[0] - tr_w[r] - 1))
    return need_
def emit(line):
    if line.endswith(':'):
        e(line); return
    n = hazard(line)
    if n > 0:
        e(f'  s_nop {n-1}'); clock[0] += n
    op, args = parse(line)
    e(line)
    if op.startswith('v_mfma'):
        for r in regs_of(args[0]): mf_w[r] = clock[0]
        for r in regs_of(args[3]): mf_c[r] = clock[0]
    elif op.startswith('v_'):
        for r in regs_of(args[0]):
            va_w[r] = clock[0]; tr_w.pop(r, None)
            if op in ('v_exp_f32', 'v_rcp_f32'): tr_w[r] = clock[0]
    if op == 's_nop': clock[0] += int(args[0])
    clock[0] += 1

gates = set(); nxt = 0; done_uses = [0]*len(frags)
ops = []; landed = -1; half = [None]
fq = []
def buf_of(f): return ABUF + 4*(f % NB)
def issue_one():
    global nxt
    while True:
        if half[0] is not None:
            emit(half[0]); ops.append(nxt); half[0] = None; nxt += 1; return True
        if nxt >= len(frags): return False
        fr = frags[nxt]
        if fr['gate'] not in gates: return False
        if nxt >= NB and done_uses[nxt-NB] < frags[nxt-NB]['uses']: return False
        if not fr['reads']:
            nxt += 1; continue
        if len(ops) + len(fr['reads']) > (13 if TSM else 15): return False
        b = buf_of(nxt)
        rs = [r.format(d4=V(b), dlo=V(b, 2), dhi=V(b+2, 2)) for r in fr['reads']]
        emit(rs[0]); ops.append(nxt)
        if len(rs) == 2: half[0] = rs[1]
        else: nxt += 1
        return True
def wait_for(f, pair=True):
    global landed, ops
    if f is None or f <= landed: return
    while nxt <= f:
        n0 = nxt
        if not issue_one() and nxt == n0: raise RuntimeError(f'cannot issue frag {nxt}')
    if any(o <= f for o in ops):
        if pair and f + 1 < nxt and sum(1 for o in ops if o > f + 1) >= PAIRMIN: f = f + 1
        n = sum(1 for o in ops if o > f)
        emit(f'  s_waitcnt lgkmcnt({n})')
        ops = [o for o in ops if o > f]
    landed = f
nmf = [0]
BACKLOG = opt('backlog', 6); PAIRMIN = opt('pairmin', 5)
STREAM_NEXT = {}
mi = [i for i, x in enumerate(stream) if x[0] == 'mfma']
for a_, b_ in zip(mi, mi[1:]): STREAM_NEXT[a_] = stream[b_][2]
for si, ent in enumerate(stream):
    k = ent[0]
    if k == 'raw': emit(ent[1])
    elif k == 'fill': fq.append(ent[1])
    elif k == 'flush':
        for l in fq:
            if not l.startswith('#'): emit(l)
        fq = []
    elif k == 'tag': fq.append('#' + ent[1])
    elif k == 'flushto':
        if '#' + ent[1] in fq:
            i = fq.index('#' + ent[1])
            for l in fq[:i]:
                if not l.startswith('#'): emit(l)
            fq = fq[i+1:]
    elif k == 'gate':
        gates.add(ent[1])
        while issue_one(): pass
    elif k in ('need', 'needall'): wait_for(ent[1])
    elif k == 'cond':
        emit(ent[1][0]); el(ent[1][1:])
    elif k == 'mfma':
        wait_for(ent[2])
        if nmf[0] in TSM: e(ts_line())
        nmf[0] += 1
        emit(ent[1](buf_of(ent[2]) if ent[2] is not None else None))
        if ent[2] is not None: done_uses[ent[2]] += 1
        slots = 2
        nf = STREAM_NEXT.get(si)
        if nf is not None and nf > landed: slots -= 1
        ahead = nxt - (ent[2] if ent[2] is not None else landed)
        if issue_one(): slots -= 1
        if (half[0] is not None or (slots > 0 and (not fq or ahead < 6))) and issue_one(): slots -= 1
        if sum(1 for l in fq if 'v_exp' in l) > BACKLOG: slots = max(slots, 2)
        while fq:
            if fq[0].startswith('#'): fq.pop(0); continue
            cost = 2 if ('v_exp' in fq[0] or 'v_rcp' in fq[0]) else 1
            if slots < cost or hazard(fq[0]) > 0: break
            emit(fq.pop(0)); slots -= cost
if TS:
    e('  s_waitcnt vmcnt(0)')
    e(ts_line()); e('  s_memrealtime s[98:99]')
    e('  s_waitcnt lgkmcnt(0)')
    e(f'  s_lshl_b32 s{sT[0]}, s2, 3'); e(f'  s_add_u32 s{sT[0]}, s{sT[0]}, s{sW}'); e(f'  s_lshl_b32 s{sT[0]}, s{sT[0]}, 6')
    e(f'  s_add_u32 s{sT[0]}, s{sT[0]}, 0x100000')
    e('  v_mov_b32 v1, 0')
    for i in range(nts[0]):
        if i == 0: e(f'  v_mov_b32 v2, s{sTS}')
        else:
            e(f'  s_sub_u32 s{sT[1]}, s{sTS+2*i}, s{sTS}'); e(f'  v_mov_b32 v2, s{sT[1]}')
        e(f'  buffer_store_dword v2, v1, s[20:23], s{sT[0]} offen offset:{4*i}')
    e('  v_mov_b32 v2, s96'); e('  v_mov_b32 v3, s98')
    e(f'  buffer_store_dwordx2 v[2:3], v1, s[20:23], s{sT[0]} offen offset:56')
    print('timestamps', nts[0]); assert nts[0] <= 12
e('MK_done:')
e('  s_endpgm')
for t in range(2):
    R = SACC[t]; vm, vt = RI[0], RI[1]
    e(f'FB{t}:')
    e('  s_nop 7')
    e(f'  v_max3_f32 v{vm}, v{R}, v{R+1}, v{R+2}')
    for k in range(3, 31, 2): e(f'  v_max3_f32 v{vm}, v{vm}, v{R+k}, v{R+k+1}')
    e(f'  s_mov_b32 s{sT[6]}, 0xff7fffff')
    e(f'  v_max3_f32 v{vm}, v{vm}, v{R+31}, s{sT[6]}')
    for sw in ('v_permlane32_swap_b32', 'v_permlane16_swap_b32'):
        e(f'  v_mov_b32 v{vt}, v{vm}'); e('  s_nop 1'); e(f'  {sw} v{vm}, v{vt}'); e('  s_nop 1')
        e(f'  v_max_f32 v{vm}, v{vm}, v{vt}')
    for k in range(32): e(f'  v_sub_f32 v{R+k}, v{R+k}, v{vm}')
    for k in range(32): e(f'  v_exp_f32 v{R+k}, v{R+k}')
    e('  s_nop 0')
    for k in range(16): e(f'  v_cvt_pk_bf16_f32 v{PREG[t]+k}, v{R+2*k}, v{R+2*k+1}')
    e('  s_nop 1')
    for kt in range(4): e(mfma(SUM[t], ONES, PREG[t]+4*kt, None if kt == 0 else SUM[t]))
    e('  s_nop 7')
    e(f'  s_branch FBR{t}')
e('MK_end:')
e('.section .rodata,"a"')
e('.p2align 6'); e(f'.amdhsa_kernel {KN}')
e('  .amdhsa_next_free_vgpr 256'); e('  .amdhsa_next_free_sgpr 102'); e('  .amdhsa_accum_offset 256')
e('  .amdhsa_group_segment_fixed_size 0'); e('  .amdhsa_kernarg_size 48'); e('  .amdhsa_user_sgpr_count 2')
e('  .amdhsa_user_sgpr_kernarg_segment_ptr 1'); e('  .amdhsa_system_sgpr_workgroup_id_x 1')
e('.end_amdhsa_kernel')
if 'drop' in OPT:
    kinds = OPT['drop'].split(',')
    i0 = next(i for i, l in enumerate(L) if 'MK_np4:' in l)
    out = []; n = 0
    for i, l in enumerate(L):
        body = i > i0
        if 'mM' in kinds and not body and 'v_mfma' in l: l = '  s_nop 3'
        if 'exp' in kinds and 'v_exp' in l: l = l.replace('v_exp_f32', 'v_mov_b32')
        if 'lds' in kinds and body and 'ds_read_b128' in l:
            l = re.sub(r'ds_read_b128 v\[(\d+):\d+\]', lambda m: f'ds_read_b32 v{m.group(1)}', l)
        if 'tr' in kinds and body and 'ds_read_b64_tr' in l:
            l = re.sub(r'ds_read_b64_tr_b16 v\[(\d+):\d+\], v\d+', lambda m: f'ds_read_b32 v{m.group(1)}, v{vL0}', l)
        if 'mfma' in kinds and body and 'v_mfma' in l:
            n += 1
            if n % 2: l = '  s_nop 3'
        if 'nslab' in kinds and RWO in l and 'buffer_load' in l: l = '  s_nop 0'
        if 'nwv' in kinds and f'v{vNA}, {RW}' in l: l = '  s_nop 0'
        if 'ncomp' in kinds and 's_cbranch_scc1 MK_np2' in l: l = '  s_branch MK_np2'
        if 'st' in kinds and 'buffer_store_dwordx4' in l: l = '  s_nop 0'
        out.append(l)
    L = out
open(OUTF, 'w').write('\n'.join(L) + '\n')
```

```python
import sys, struct, math, re
OPT = dict(a.split('=') if '=' in a else (a, '1') for a in sys.argv[1:])
OUTF = OPT.get('out', 'standalone__neighborhood_nat__vision.s')
TS = 'ts' in OPT
TSM = [int(x) for x in OPT['tsm'].split(',')] if 'tsm' in OPT else []
TSP = 'tsp' in OPT
def opt(k, d): return int(OPT.get(k, d))
L = []
def e(s): L.append(s)
def el(ls):
    for l in ls: L.append(l)

X_BYTES = 19267584
WS_BYTES = 268435456
XB = 10240
ROW = 7680
HALF = 36864
NHI = XB + 12*ROW
WOL = 147456
SCALE = struct.unpack('<I', struct.pack('<f', (192 ** -0.5) * math.log2(math.e)))[0]
NT = ' nt' if 'nt' in OPT else ''
NSC = '' if 'nplain' in OPT else ' sc1'
NTO = ' ' + OPT.get('st', 'nt+sc1').replace('+', ' ')
KN = 'standalone__neighborhood_nat__vision_kernel'

hdr = open('standalone__neighborhood_nat__vision.s.ref').read().split('\n')
for ln in hdr:
    if ln.startswith('; @launch'): break
    e(ln)
e('; @launch grid=(256,1,1) block=(512,1,1) lds=163840')
e('.amdgcn_target "amdgcn-amd-amdhsa--gfx950"')
e('.text')

def srd(d, b, n):
    return [f'  s_mov_b32 s{d}, s{b}', f'  s_and_b32 s{d+1}, s{b+1}, 0xffff', f'  s_mov_b32 s{d+2}, {n}', f'  s_mov_b32 s{d+3}, 0x00020000']
def V(a, n=4): return f'v[{a}:{a+n-1}]'
def mfma(d, a, b, c):
    cs = '0' if c is None else V(c)
    return f'  v_mfma_f32_16x16x32_bf16 {V(d)}, {V(a)}, {V(b)}, {cs}'

vL0, vL1 = 1, 2
vO = (5, 6)
vSe, vSo = 7, 8
vP = (9, 10, 11, 12)
vD = (13, 14, 3, 4)
PB0 = (15, 16, 17, 18)
vCT = 19
SB0 = (20, 0)
vRR = (21, 22)
RI = (22, 23)
SACC = (24, 56); QP = 88; XQ = 136; ACC = 184
ABUF = 216; NB = 10
PREG = (136, 152)
YB = ([136, 140, 144, 148, 168, 172], [152, 156, 160, 164, 176, 180])
YACC = ([24+4*i for i in range(12)], [88+4*i for i in range(12)])
SUM = (184, 188); ONES = 192; ET = 196
OUTR = 24; NREG = 40
MACC = 24; MPK = 104
vWA = 96; vMA, vMB, vMW = (97, 98), (99, 100), (101, 102, 103)
vn, vg, tA, tB, tC, tD = 128, 129, 130, 131, 132, 133
vNB, vNA = 134, 135
sW, sU, sH, sPR, sPC, sKR, sKC, sXB, sGS, sGmin = range(24, 34)
sA2, sR0, sD0, sTR, sM0X, sM0X3, sW4, sWL = range(34, 42)
sINV = (42, 44)
sT = list(range(46, 60))
sMR, sAR, sMC, sAC = sT[10], sT[11], sT[12], sT[13]
sTS = 60
sPROD, sWB, sSC, sVO = 3, 92, 93, 100
RX, RO, RWS, RW, RWO, RDB = 's[12:15]', 's[16:19]', 's[20:23]', 's[88:91]', 's[4:7]', 's[8:11]'
MSK = f's[{sT[6]}:{sT[7]}]'
assert sT[6] % 2 == 0 and sT[2] % 2 == 0

nts = [0]
def ts_line():
    s = f'  s_memtime s[{sTS+2*nts[0]}:{sTS+2*nts[0]+1}]'; nts[0] += 1; return s
def tsp():
    if TSP: e(ts_line())

e(f'.globl {KN}'); e('.p2align 8'); e(f'.type {KN},@function'); e(f'{KN}:')
e('  s_cmp_ge_u32 s2, 256'); e('  s_cbranch_scc1 MK_done')
if TS: e(ts_line()); e('  s_memrealtime s[96:97]')
e('  s_load_dwordx8 s[4:11], s[0:1], 0')
e('  s_load_dwordx4 s[84:87], s[0:1], 32')
if 'nopf' not in OPT:
    e('  s_getpc_b64 s[12:13]'); e('MK_pc:')
    e('  s_and_b32 s13, s13, 0xffff'); e('  s_mov_b32 s14, MK_end-MK_pc'); e('  s_mov_b32 s15, 0x00020000')
    e('  v_lshlrev_b32 v23, 7, v0')
    e('  buffer_load_dword v255, v23, s[12:15], 0 offen')
e(f'  v_lshrrev_b32 v{tA}, 6, v0')
e('  v_and_b32 v0, 63, v0')
e(f'  v_readfirstlane_b32 s{sW}, v{tA}')
e(f'  v_and_b32 v{vn}, 15, v0'); e(f'  v_lshrrev_b32 v{vg}, 4, v0')
e(f'  v_lshrrev_b32 v{tA}, 5, v0'); e(f'  v_bfe_u32 v{tB}, v0, 3, 2'); e(f'  v_lshl_add_u32 v{tA}, v{tA}, 3, v{tB}')
e(f'  v_mul_u32_u24 v{tA}, 1152, v{tA}')
e(f'  s_and_b32 s{sH}, s{sW}, 1')
e(f'  s_lshl_b32 s{sT[0]}, s{sH}, 2')
e(f'  v_add_u32 v{tB}, s{sT[0]}, v{vg}'); e(f'  v_and_b32 v{tC}, 7, v0'); e(f'  v_xor_b32 v{tB}, v{tB}, v{tC}')
e(f'  v_lshl_add_u32 v{vWA}, v{tB}, 4, v{tA}')
e(f'  s_lshr_b32 s{sT[0]}, s{sW}, 2'); e(f'  s_lshl_b32 s{sT[0]}, s{sT[0]}, 5')
e(f'  s_lshl_b32 s{sT[1]}, s{sH}, 4'); e(f'  s_add_u32 s{sT[0]}, s{sT[0]}, s{sT[1]}')
e(f'  s_and_b32 s{sT[1]}, s{sW}, 2'); e(f'  s_lshl_b32 s{sT[1]}, s{sT[1]}, 1'); e(f'  s_add_u32 s{sT[0]}, s{sT[0]}, s{sT[1]}')
e(f'  s_mul_i32 s{sWB}, s{sT[0]}, 1152')
e(f'  s_lshl_b32 s{sWL}, s{sW}, 10')
e(f'  s_cmp_lt_u32 s{sW}, 4'); e('  s_cselect_b64 vcc, -1, 0')
e(f'  s_bfe_u32 s{sPR}, s2, 0x10002')
e(f'  s_bfe_u32 s{sPC}, s2, 0x10001')
e(f'  s_and_b32 s{sKR}, s2, 1'); e(f'  s_lshl_b32 s{sKR}, s{sKR}, 2')
e(f'  s_lshr_b32 s{sT[0]}, s2, 6'); e(f'  s_add_u32 s{sKR}, s{sKR}, s{sT[0]}')
e(f'  s_bfe_u32 s{sKC}, s2, 0x30003')
e(f'  s_mul_i32 s{sTR}, s{sKR}, 14'); e(f'  s_add_i32 s{sTR}, s{sTR}, -6'); e(f'  s_max_i32 s{sKR}, s{sTR}, -4')
e(f'  s_mul_i32 s{sKC}, s{sKC}, 14'); e(f'  s_add_i32 s{sKC}, s{sKC}, -6')
e(f'  s_lshr_b32 s{sU}, s{sW}, 1'); e(f'  s_add_u32 s{sU}, s{sU}, 2'); e(f'  s_and_b32 s{sU}, s{sU}, 3')
e(f'  s_sub_u32 s{sMR}, 0, s{sPR}'); e(f'  s_mul_i32 s{sAR}, s{sPR}, 224')
e(f'  s_sub_u32 s{sMC}, 0, s{sPC}'); e(f'  s_mul_i32 s{sAC}, s{sPC}, 224')
e(f'  v_and_b32 v{tA}, 7, v{vn}')
e(f'  s_mul_i32 s{sT[0]}, s{sH}, 7'); e(f'  s_add_i32 s{sT[0]}, s{sT[0]}, s{sKC}')
e(f'  v_cmp_lt_u32 s[{sT[2]}:{sT[3]}], 6, v{tA}')
e(f'  v_add_u32 v{tA}, s{sT[0]}, v{tA}')
e(f'  v_max_i32 v{vCT}, 0, v{tA}')
e(f'  v_add3_u32 v{tA}, v{tA}, v{vCT}, 6')
e(f'  v_xor_b32 v{tA}, s{sMC}, v{tA}'); e(f'  v_add_u32 v{tA}, s{sAC}, v{tA}')
e(f'  v_subrev_u32 v{vCT}, s{sKC}, v{vCT}')
e(f'  v_mul_u32_u24 v{tA}, 384, v{tA}'); e(f'  v_lshl_add_u32 v{tA}, v{vg}, 4, v{tA}')
e(f'  s_lshl_b32 s{sT[0]}, s{sU}, 2'); e(f'  s_add_i32 s{sT[0]}, s{sT[0]}, -2')
e(f'  s_mov_b32 s{sT[1]}, 86016')
e(f'  v_lshrrev_b32 v{tB}, 3, v{vn}'); e(f'  v_add_u32 v{tB}, s{sT[0]}, v{tB}')
e(f'  v_mov_b32 v{tC}, 0x80000000')
for t in range(2):
    if t: e(f'  v_add_u32 v{tB}, 2, v{tB}')
    e(f'  v_cmp_gt_i32 s[{sINV[t]}:{sINV[t]+1}], 0, v{tB}')
    e(f'  v_add_u32 v{vO[t]}, s{sTR}, v{tB}')
    e(f'  v_max_i32 v{vRR[t]}, 0, v{vO[t]}')
    e(f'  v_add3_u32 v{vO[t]}, v{vO[t]}, v{vRR[t]}, 6')
    e(f'  s_or_b64 s[{sINV[t]}:{sINV[t]+1}], s[{sINV[t]}:{sINV[t]+1}], s[{sT[2]}:{sT[3]}]')
    e(f'  v_xor_b32 v{vO[t]}, s{sMR}, v{vO[t]}'); e(f'  v_add_u32 v{vO[t]}, s{sAR}, v{vO[t]}')
    e(f'  v_subrev_u32 v{vRR[t]}, s{sKR}, v{vRR[t]}')
    e(f'  v_mad_u32_u24 v{vO[t]}, v{vO[t]}, s{sT[1]}, v{tA}')
    e(f'  v_cndmask_b32 v{vRR[t]}, v{vRR[t]}, v{tC}, s[{sINV[t]}:{sINV[t]+1}]')
    e(f'  v_cndmask_b32 v{vO[t]}, v{vO[t]}, v{tC}, s[{sINV[t]}:{sINV[t]+1}]')

e('  s_waitcnt lgkmcnt(0)')
tsp()
el(srd(88, 6, 192*576*2))
if 'notlb' not in OPT:
    e(f'  s_cmp_lg_u32 s{sW}, 5'); e('  s_cbranch_scc1 MK_ntlb')
    e(f'  s_max_i32 s{sT[0]}, s{sTR}, 0'); e(f'  s_lshl_b32 s{sT[0]}, s{sT[0]}, 1'); e(f'  s_sub_u32 s{sT[1]}, 184, s{sT[0]}')
    e(f'  s_cmp_eq_u32 s{sPR}, 0'); e(f'  s_cselect_b32 s{sT[0]}, s{sT[0]}, s{sT[1]}'); e(f'  s_mul_i32 s{sT[0]}, s{sT[0]}, 86016')
    for k in range(3):
        e(f'  s_load_dword s94, s[4:5], s{sT[0]}'); e(f'  s_load_dword s95, s[10:11], s{sT[0]}')
        if k < 2: e(f'  s_add_u32 s{sT[0]}, s{sT[0]}, {20*86016 - 64}')
    e(f'  s_load_dword s94, s[84:85], 128'); e(f'  s_load_dword s95, s[86:87], 0x20000')
    e('MK_ntlb:')

def w_pieces(c, partner=0):
    return [[f'  s_add_u32 m0, s{sWL}, {c*49152 + mat*24576 + j*8192 + partner*4096}',
             f'  s_add_u32 s{sVO}, s{sWB}, {(j*64 + partner*32)*1152 + mat*384 + c*128}',
             f'  buffer_load_dwordx4 v{vWA}, {RW}, s{sVO} offen lds'] for mat in range(2) for j in range(3)]
def q_loads():
    return [f'  buffer_load_dwordx4 {V(XQ+24*t+4*s_)}, v{vO[t]}, {RX}, 0 offen offset:{64*s_}{NT}' for t in (1, 0) for s_ in range(6)]
SCH = {'O': OPT.get('so', 'A:W0,C:W1,0:W2,1:q6,2:q6'), 'Y': OPT.get('sy', 'A:W0,C:W1,0:W2,3:q6,4:q6')}
PLAN = {}; ISS = {'O': [], 'Y': []}
for r_, sp in SCH.items():
    qi = 0
    for part in sp.split(','):
        pos, items = part.split(':')
        for it in items.split('+'):
            lst = PLAN.setdefault((r_, pos), [])
            if it[0] == 'W': lst += [(f'W{it[1]}', p) for p in w_pieces(int(it[1]))]
            elif it[0] == 'V': lst += [(f'W{it[1]}', p) for p in w_pieces(int(it[1]), 1)]
            else:
                for _ in range(int(it[1:])): lst.append(('q', [q_loads()[qi]])); qi += 1
    assert qi == 12
lbl = [0]
def role_lines(r_, lines):
    lbl[0] += 1
    return [f'  s_cbranch_vcc{"z" if r_ == "O" else "nz"} SL{lbl[0]}'] + list(lines) + [f'SL{lbl[0]}:']
def role2_lines(lo, ly):
    lbl[0] += 1; n = lbl[0]
    return [f'  s_cbranch_vccz SL{n}'] + list(lo) + [f'  s_branch SM{n}', f'SL{n}:'] + list(ly) + [f'SM{n}:']
def sched_items(pos):
    o, y = list(PLAN.get(('O', pos), [])), list(PLAN.get(('Y', pos), []))
    out = []
    while o or y: out.append((o.pop(0) if o else None, y.pop(0) if y else None))
    return out
def emit_item(it):
    o, y = it
    if o: ISS['O'].append(o[0])
    if y: ISS['Y'].append(y[0])
    if o and y and o == y: el(o[1])
    elif o and y: el(role2_lines(o[1], y[1]))
    elif o: el(role_lines('O', o[1]))
    else: el(role_lines('Y', y[1]))
def emit_pos(pos):
    o, y = PLAN.get(('O', pos), []), PLAN.get(('Y', pos), [])
    k = 0
    while k < len(o) and k < len(y) and o[k] == y[k]: emit_item((o[k], y[k])); k += 1
    for r_, x in (('O', o[k:]), ('Y', y[k:])):
        if x:
            ISS[r_] += [i[0] for i in x]; el(role_lines(r_, sum((i[1] for i in x), [])))
def after(r_, tag):
    l = ISS[r_]
    if tag not in l: return 63
    return min(63, len(l) - 1 - max(i for i, t in enumerate(l) if t == tag))

if 'nowpf' not in OPT:
    e(f'  s_cmp_lt_u32 s{sW}, 6'); e('  s_cbranch_scc1 MK_nwpf')
    e(f'  s_cmp_eq_u32 s{sW}, 6'); e(f'  s_cselect_b32 s{sT[0]}, 54, 18')
    e('  s_cselect_b32 s12, s6, s8'); e('  s_cselect_b32 s13, s7, s9'); e('  s_and_b32 s13, s13, 0xffff')
    e(f'  s_lshr_b32 s{sT[1]}, s2, 3'); e(f'  s_mul_i32 s{sT[1]}, s{sT[1]}, s{sT[0]}'); e(f'  s_lshl_b32 s{sVO}, s{sT[1]}, 7')
    e(f'  s_lshl_b32 s{sT[0]}, s{sT[0]}, 7'); e(f'  s_add_u32 s14, s{sVO}, s{sT[0]}'); e('  s_mov_b32 s15, 0x00020000')
    e('  v_lshlrev_b32 v23, 7, v0')
    e(f'  buffer_load_dword v254, v23, s[12:15], s{sVO} offen')
    e('MK_nwpf:')
el(srd(12, 4, X_BYTES))
emit_pos('A')
emit_pos('B')
tsp()
el(srd(16, 10, X_BYTES)); el(srd(4, 8, 192*192*2)); el(srd(8, 84, 256)); el(srd(20, 86, WS_BYTES if TS else 73728))
e(f'  v_lshlrev_b32 v{vL0}, 4, v0')
e(f'  v_add_u32 v{vL1}, {HALF}, v{vL0}')
e(f'  s_and_b32 s{sW4}, s{sW}, 3'); e(f'  s_lshl_b32 s{sW4}, s{sW4}, 10')
e(f'  v_bfe_u32 v{tA}, v{vn}, 1, 3'); e(f'  v_xor_b32 v{tA}, v{tA}, v{vg}')
e(f'  v_lshlrev_b32 v{tB}, 7, v{vn}'); e(f'  v_lshl_add_u32 v{tB}, v{tA}, 4, v{tB}')
e(f'  s_lshr_b32 s{sT[0]}, s{sW}, 2'); e(f'  s_mul_i32 s{sT[1]}, s{sT[0]}, {6*2048}')
e(f'  v_add_u32 v{vMA[0]}, s{sT[1]}, v{tB}'); e(f'  v_xor_b32 v{vMA[1]}, 64, v{vMA[0]}')
e(f'  s_mul_i32 s{sT[1]}, s{sW4}, 6'); e(f'  s_add_u32 s{sT[1]}, s{sT[1]}, 24576')
e(f'  v_add_u32 v{vMB[0]}, s{sT[1]}, v{tB}'); e(f'  v_xor_b32 v{vMB[1]}, 64, v{vMB[0]}')
F = []; f_ = F.append
f_(f'  s_lshr_b32 s{sT[0]}, s{sW}, 2'); f_(f'  s_mul_i32 s{sT[0]}, s{sT[0]}, 6'); f_(f'  s_sub_u32 s{sT[0]}, 67, s{sT[0]}')
f_(f'  s_and_b32 s{sT[1]}, s{sW}, 3'); f_(f'  s_mul_i32 s{sT[1]}, s{sT[1]}, 3')
for b in range(3):
    f_(f'  s_add_u32 s{sT[2]}, s{sT[1]}, {b}')
    f_(f'  s_lshr_b32 s{sT[3]}, s{sT[2]}, 1'); f_(f'  s_mul_i32 s{sT[3]}, s{sT[3]}, 10')
    f_(f'  s_add_u32 s{sT[2]}, s{sT[2]}, s{sT[3]}')
    f_(f'  s_sub_u32 s{sT[2]}, s{sT[0]}, s{sT[2]}'); f_(f'  s_lshl_b32 s{sT[2]}, s{sT[2]}, 10')
    f_(f'  v_add_u32 v{vMW[b]}, s{sT[2]}, v{vL0}')
f_(f'  s_lshl_b32 s{sT[0]}, s{sKR}, 1'); f_(f'  s_xor_b32 s{sT[0]}, s{sT[0]}, s{sMR}')
f_(f'  s_mul_i32 s{sT[1]}, s{sPR}, 222'); f_(f'  s_add_i32 s{sXB}, s{sT[0]}, s{sT[1]}')
f_(f'  s_mul_i32 s{sXB}, s{sXB}, 86016')
f_(f'  s_mul_i32 s{sGS}, s{sPR}, {-2*344064}'); f_(f'  s_add_i32 s{sGS}, s{sGS}, 344064')
f_(f'  s_lshr_b32 s{sGmin}, s{sKR}, 31'); f_(f'  s_lshl_b32 s{sGmin}, s{sGmin}, 1')
f_(f'  s_lshl_b32 s{sM0X}, s{sW4}, 2')
f_(f'  s_add_u32 s{sM0X3}, s{sM0X}, 3072'); f_(f'  s_min_u32 s{sM0X3}, s{sM0X3}, {14*1024}')
f_(f'  s_mul_i32 s{sT[2]}, s{sPR}, 172032'); f_(f'  s_sub_u32 s{sT[3]}, 172032, s{sT[2]}')
f_(f'  v_mov_b32 v{tC}, s{sT[2]}'); f_(f'  v_mov_b32 v{tD}, s{sT[3]}')
for b in range(960): assert (b * 2731) >> 16 == b // 24
for j in range(4):
    d = vD[j]
    if j < 3:
        f_(f'  s_lshr_b32 s{sT[0]}, s{sM0X}, 4'); f_(f'  s_add_u32 s{sT[0]}, s{sT[0]}, {64*j}')
    else: f_(f'  s_lshr_b32 s{sT[0]}, s{sM0X3}, 4')
    f_(f'  v_add_u32 v{tA}, s{sT[0]}, v0')
    f_(f'  v_mul_u32_u24 v{d}, 2731, v{tA}'); f_(f'  v_lshrrev_b32 v{d}, 16, v{d}')
    f_(f'  v_cmp_le_u32 {MSK}, 20, v{d}')
    f_(f'  v_mul_u32_u24 v{tB}, 24, v{d}'); f_(f'  v_sub_u32 v{tA}, v{tA}, v{tB}')
    f_(f'  v_subrev_u32 v{tB}, 20, v{d}')
    f_(f'  v_cndmask_b32 v{d}, v{d}, v{tB}, {MSK}')
    f_(f'  v_bfe_u32 v{tB}, v{d}, 1, 3'); f_(f'  v_xor_b32 v{tA}, v{tA}, v{tB}')
    f_(f'  v_cndmask_b32 v{tB}, v{tC}, v{tD}, {MSK}')
    f_(f'  v_lshl_add_u32 v{tA}, v{tA}, 4, v{tB}')
    f_(f'  v_add_u32 v{d}, s{sKC}, v{d}'); f_(f'  v_max_i32 v{d}, 0, v{d}'); f_(f'  v_lshlrev_b32 v{d}, 1, v{d}')
    f_(f'  v_xor_b32 v{d}, s{sMC}, v{d}'); f_(f'  v_add_u32 v{d}, s{sAC}, v{d}')
    f_(f'  v_mul_u32_u24 v{d}, 384, v{d}'); f_(f'  v_add_u32 v{d}, v{d}, v{tA}')
f_(f'  s_add_u32 s{sM0X}, s{sM0X}, {XB}'); f_(f'  s_add_u32 s{sM0X3}, s{sM0X3}, {XB}')
for dst, add in ((sT[0], -2), (sA2, 0)):
    f_(f'  s_lshl_b32 s{dst}, s{sU}, 2')
    if add: f_(f'  s_add_i32 s{dst}, s{dst}, {add}'); f_(f'  s_max_i32 s{dst}, s{dst}, 0')
    f_(f'  s_add_i32 s{dst}, s{dst}, s{sTR}'); f_(f'  s_max_i32 s{dst}, s{dst}, 0'); f_(f'  s_sub_i32 s{dst}, s{dst}, s{sKR}')
f_(f'  s_sub_u32 s{sT[0]}, s{sA2}, s{sT[0]}'); f_(f'  s_lshr_b32 s{sT[0]}, s{sT[0]}, 1')
f_(f'  s_mul_i32 s{sD0}, s{sT[0]}, -8'); f_(f'  s_add_i32 s{sD0}, s{sD0}, 7')
f_(f'  s_add_i32 s{sA2}, s{sA2}, -1')
f_(f'  s_add_i32 s{sR0}, s{sA2}, s{sD0}'); f_(f'  s_mul_i32 s{sD0}, s{sD0}, {ROW}')
f_(f'  s_lshl_b32 s{sT[1]}, s{sH}, 2')
f_(f'  s_mul_i32 s{sT[0]}, s{sA2}, {ROW}'); f_(f'  s_add_i32 s{sT[0]}, s{sT[0]}, {XB}')
f_(f'  v_add_u32 v{tA}, s{sT[1]}, v{vn}')
f_(f'  v_bfe_u32 v{tB}, v{tA}, 1, 3'); f_(f'  v_xor_b32 v{tB}, v{tB}, v{vg}')
f_(f'  v_mul_u32_u24 v{tA}, 384, v{tA}'); f_(f'  v_lshl_add_u32 v{tA}, v{tB}, 4, v{tA}')
f_(f'  v_add_u32 v{vSe}, s{sT[0]}, v{tA}'); f_(f'  v_xor_b32 v{vSo}, 64, v{vSe}')
f_(f'  v_lshrrev_b32 v{tA}, 2, v{vn}'); f_(f'  v_lshl_add_u32 v{tA}, v{vg}, 2, v{tA}'); f_(f'  v_add_u32 v{tA}, s{sT[1]}, v{tA}')
f_(f'  v_bfe_u32 v{tB}, v{tA}, 1, 3')
f_(f'  v_and_b32 v{tC}, 2, v{vn}'); f_(f'  v_lshlrev_b32 v{tC}, 1, v{tC}'); f_(f'  v_xor_b32 v{tB}, v{tB}, v{tC}')
f_(f'  v_mul_u32_u24 v{tA}, 384, v{tA}'); f_(f'  v_lshl_add_u32 v{tA}, v{tB}, 4, v{tA}')
f_(f'  v_and_b32 v{tB}, 1, v{vn}'); f_(f'  v_lshl_add_u32 v{tA}, v{tB}, 3, v{tA}')
f_(f'  v_add_u32 v{vP[0]}, s{sT[0]}, v{tA}')
for k in range(1, 4): f_(f'  v_xor_b32 v{vP[k]}, {16*k}, v{vP[0]}')
f_(f'  v_lshl_add_u32 v{tA}, v{vg}, 2, s{sT[1]}'); f_(f'  v_sub_u32 v{vCT}, v{tA}, v{vCT}')
f_(f'  v_add_u32 v{SB0[0]}, s{sD0}, v{vSe}'); f_(f'  v_add_u32 v{SB0[1]}, s{sD0}, v{vSo}')
for k in range(4): f_(f'  v_add_u32 v{PB0[k]}, s{sD0}, v{vP[k]}')
f_(f'  s_mov_b32 s{sSC}, {SCALE}')
NPRE = opt('npre', 999)
el(F[:NPRE]); F = F[NPRE:]

def dma_x(G):
    out = []
    if G < 2: out += [f'  s_max_u32 s{sVO}, s{sGmin}, {G}', f'  s_mul_i32 s{sVO}, s{sVO}, s{sGS}']
    else: out.append(f'  s_mul_i32 s{sVO}, s{sGS}, {G}')
    out.append(f'  s_add_i32 s{sVO}, s{sVO}, s{sXB}')
    for j in range(4):
        out.append(f'  s_add_u32 m0, s{sM0X}, {G*15360 + j*1024}' if j < 3 else f'  s_add_u32 m0, s{sM0X3}, {G*15360}')
        out.append('  s_nop 0')
        out.append(f'  buffer_load_dwordx4 v{vD[j]}, {RX}, s{sVO} offen{NT} lds')
    return out
def dma_xs(Gs): return sum((dma_x(G) for G in Gs), [])
def bias_init(tmp):
    out = []; o = out.append
    cb, ninf, tt = tmp, tmp+4, tmp+5
    o(f'  v_mov_b32 v{ninf}, 0xff800000')
    for i in range(4): o(f'  v_add_u32 v{tt+i}, {i}, v{vCT}')
    for i in range(4): o(f'  v_cmp_gt_u32 s[{sT[2+2*i]}:{sT[3+2*i]}], 7, v{tt+i}')
    for i in range(4): o(f'  v_cndmask_b32 v{cb+i}, v{ninf}, 0, s[{sT[2+2*i]}:{sT[3+2*i]}]')
    for t in range(2):
        for j4 in range(2):
            for jj in range(4*j4, 4*j4+4):
                slot = jj + 2*t; r = tt + jj % 4
                if slot == 0: o(f'  v_sub_u32 v{r}, s{sR0}, v{vRR[t]}')
                else:
                    o(f'  s_add_i32 s{sT[0]}, s{sA2}, {slot-1}'); o(f'  v_sub_u32 v{r}, s{sT[0]}, v{vRR[t]}')
            for q in range(4): o(f'  v_cmp_gt_u32 s[{sT[2+2*q]}:{sT[3+2*q]}], 7, v{tt+q}')
            for jj in range(4*j4, 4*j4+4):
                q = jj % 4
                for i in range(4):
                    o(f'  v_cndmask_b32 v{SACC[t]+4*jj+i}, v{ninf}, v{cb+i}, s[{sT[2+2*q]}:{sT[3+2*q]}]')
    return out

tsp()
emit_pos('C')
tsp()
vLN = 107
def n_loads():
    e(f'  v_lshrrev_b32 v{vLN}, 4, v{vL0}')
    e(f'  s_cmp_lt_u32 s2, 72'); e('  s_cbranch_scc0 MK_np1')
    e(f'  s_mul_hi_u32 s{sT[8]}, s2, 0x15555556'); e(f'  s_lshl_b32 s{sT[8]}, s{sT[8]}, 6')
    e(f'  s_mul_i32 s{sT[9]}, s{sW}, {16*384}'); e(f'  s_add_u32 s{sVO}, s{sT[8]}, s{sT[9]}')
    e(f'  v_lshrrev_b32 v{MPK}, 2, v{vLN}'); e(f'  v_mul_u32_u24 v{MPK}, 384, v{MPK}'); e(f'  v_and_b32 v{MPK+1}, 3, v{vLN}'); e(f'  v_lshl_add_u32 v{MPK}, v{MPK+1}, 4, v{MPK}')
    e(f'  s_add_u32 m0, s{sWL}, {WOL}'); e('  s_nop 0')
    e(f'  buffer_load_dwordx4 v{MPK}, {RWO}, s{sVO} offen lds')
    e(f'  s_mul_i32 s{sT[9]}, s{sW4}, 6'); e(f'  s_add_u32 s{sVO}, s{sT[8]}, s{sT[9]}')
    e(f'  s_add_u32 m0, s{sW4}, {WOL + 8192}'); e(f'  s_add_u32 s{sVO}, s{sVO}, {8*16*384}')
    e(f'  buffer_load_dwordx4 v{MPK}, {RWO}, s{sVO} offen lds')
    e('MK_np1:')
    e(f'  s_sub_u32 s{sPROD}, s2, 72'); e(f'  s_lshr_b32 s{sPROD}, s{sPROD}, 31')
    e(f'  s_lshr_b32 s{sPROD}, s{sPROD}, s{sU}')
    e(f'  v_mov_b32 v{vNB}, 0')
    e(f'  s_cmp_eq_u32 s{sPROD}, 0'); e('  s_cbranch_scc1 MK_np3')
    e(f'  s_mul_hi_u32 s{sT[8]}, s2, 0x15555556'); e(f'  s_mul_i32 s{sT[9]}, s{sT[8]}, 12'); e(f'  s_sub_u32 s{sT[9]}, s2, s{sT[9]}')
    e(f'  s_and_b32 s{sT[5]}, s{sT[9]}, 1'); e(f'  s_lshr_b32 s{sT[9]}, s{sT[9]}, 1')
    e(f'  v_lshrrev_b32 v{MPK+2}, 2, v{vn}'); e(f'  v_and_b32 v{MPK+1}, 3, v{vn}')
    e(f'  v_lshl_add_u32 v{vNB}, v{vg}, 3, v{MPK+2}'); e(f'  v_lshlrev_b32 v{vNB}, 6, v{vNB}'); e(f'  v_lshl_add_u32 v{vNB}, v{MPK+1}, 4, v{vNB}')
    e(f'  s_lshl_b32 s{sT[5]}, s{sT[5]}, 3'); e(f'  s_add_u32 s{sT[5]}, s{sT[5]}, {WOL}'); e(f'  v_add_u32 v{vNB}, s{sT[5]}, v{vNB}')
    e(f'  s_lshr_b32 s{sT[8]}, s{sT[9]}, 1'); e(f'  s_lshl_b32 s{sT[8]}, s{sT[8]}, 6')
    e(f'  s_and_b32 s{sT[9]}, s{sT[9]}, 1'); e(f'  s_lshl_b32 s{sT[9]}, s{sT[9]}, 4'); e(f'  s_add_u32 s{sT[8]}, s{sT[8]}, s{sT[9]}')
    e(f'  v_lshrrev_b32 v{MPK}, 1, v{MPK+2}'); e(f'  v_lshlrev_b32 v{MPK}, 5, v{MPK}')
    e(f'  v_and_b32 v{MPK+2}, 1, v{MPK+2}'); e(f'  v_lshl_add_u32 v{MPK}, v{MPK+2}, 2, v{MPK}')
    e(f'  v_add3_u32 v{MPK}, v{MPK}, v{MPK+1}, s{sT[8]}')
    e(f'  v_mul_u32_u24 v{MPK}, 1152, v{MPK}'); e(f'  v_lshl_add_u32 v{vNA}, v{vg}, 4, v{MPK}')
    e(f'  s_mul_i32 s{sVO}, s{sH}, 9216')
    for kk in range(6):
        e(f'  buffer_load_dwordx4 {V(136+4*kk)}, v{vNA}, {RW}, s{sVO} offen offset:{768+64*kk}')
    e('MK_np3:')
def m_reads(kk):
    rb = 184 + 36*(kk % 2); co = (kk // 2) * 49152
    lo = co if co < 49152*2 else 0
    return ([f'  ds_read_b128 {V(rb+24+4*b)}, v{vMB[kk % 2]} offset:{2048*b}' for b in range(3)] +
            [f'  ds_read_b128 {V(rb+4*a)}, v{vMA[kk % 2]} offset:{2048*a}' for a in range(6)])
def chunk_sync(c, lg):
    wo_, wy_ = after('O', f'W{c}'), after('Y', f'W{c}')
    x = ' lgkmcnt(0)' if lg else ''
    def w(n, prod):
        if c != 1 or n == 63: return [f'  s_waitcnt vmcnt({n}){x}']
        lbl[0] += 1; k = lbl[0]; o = []
        if prod: o += [f'  s_cmp_lg_u32 s{sPROD}, 0', f'  s_cbranch_scc1 CA{k}']
        o += ['  s_cmp_lt_u32 s2, 72', f'  s_cbranch_scc1 CB{k}', f'  s_waitcnt vmcnt({n})', f'CB{k}:']
        if prod: o += [f'  s_waitcnt vmcnt({n+2})', f'CA{k}:', f'  s_waitcnt vmcnt({n+8}){x}']
        else: o += [f'  s_waitcnt vmcnt({n+2}){x}']
        return o
    if c == 2:
        wo_, wy_ = min(wo_, len(ISS['O']) - N_AT['O']), min(wy_, len(ISS['Y']) - N_AT['Y'])
    if wo_ == wy_: el(w(wo_, True))
    else: el(role2_lines(w(wo_, False), w(wy_, True)))
    e('  s_barrier')
    tsp()
N_AT = {}
FPG = opt('fpg', 4)
chunk_sync(0, False)
el(m_reads(0))
for kk in range(4):
    landed_all = False
    if kk % 2 == 1:
        chunk_sync(kk // 2 + 1, True); landed_all = True
        for r in vMA + vMB: e(f'  v_add_u32 v{r}, 49152, v{r}')
    extra = sched_items(str(kk)); ne = len(extra); cnt = 0
    rb = 184 + 36*(kk % 2)
    nx = m_reads(kk+1)
    issued = 0
    for a in range(6):
        if not landed_all: e(f'  s_waitcnt lgkmcnt({5 - a + issued})')
        for b in range(3):
            acc = MACC + 12*a + 4*b
            e(mfma(acc, rb+4*a, rb+24+4*b, None if kk == 0 else acc))
            slots = FPG
            if nx and b < 2 and (a >= 1 or landed_all):
                e(nx.pop(0)); issued += 1; slots -= 1
            cnt += 1
            while extra and (ne - len(extra)) * 18 < cnt * ne: emit_item(extra.pop(0)); slots = 0
            el(F[:slots]); F = F[slots:]
    assert not nx and not extra
    if kk == 0: n_loads(); N_AT.update(O=len(ISS['O']), Y=len(ISS['Y']))
print('leftover F', len(F), file=sys.stderr); el(F); F = []
assert ISS['Y'].count('q') <= 6
e(f'  s_cmp_eq_u32 s{sPROD}, 0'); e('  s_cbranch_scc1 MK_np2')
e('  s_waitcnt lgkmcnt(0)')
for k2 in range(6):
    for hf in range(2):
        e(f'  ds_read_b64_tr_b16 {V(MPK+4*k2+2*hf, 2)}, v{vNB} offset:{(32*k2 + 4*hf)*64}')
e('  s_setprio 3'); e('  s_waitcnt lgkmcnt(0)')
for kk in range(6):
    e(mfma(128, 136+4*kk, MPK+4*kk, None if kk == 0 else 128))
e(f'  s_lshl_b32 s{sVO}, s2, 10'); e(f'  s_lshl_b32 s{sT[8]}, s{sH}, 3'); e(f'  s_add_u32 s{sVO}, s{sVO}, s{sT[8]}')
e('  s_nop 5')
for r in range(2): e(f'  v_cvt_pk_bf16_f32 v{132+r}, v{128+2*r}, v{129+2*r}')
e(f'  buffer_store_dwordx2 v[132:133], v{vL0}, {RWS}, s{sVO} offen sc1')
NY_AT_STORE = len(ISS['Y'])
e('  s_setprio 0')
e('MK_np2:')
r5 = m_reads(5)
el(r5[:5]); late = r5[5:]
extra = sched_items('4'); ne = len(extra); cnt = 0
pend = []; nw = 0
for fi in range(9):
    a3, b = fi // 3, fi % 3
    if fi == 0: e('  s_waitcnt lgkmcnt(5)')
    for kk in (4, 5):
        rb = 184 + 36*(kk % 2)
        if fi == 0 and kk == 5: e('  s_waitcnt lgkmcnt(2)')
        if fi == 3 and kk == 5: e(f'  s_waitcnt lgkmcnt({nw})')
        for a in (2*a3, 2*a3+1):
            acc = MACC + 12*a + 4*b
            e(mfma(acc, rb+4*a, rb+24+4*b, acc)); cnt += 1
            if late: e(late.pop(0))
            k = 0
            while pend and pend[0][0] <= cnt and k < 2:
                l = pend.pop(0)[1]; e(l); k += 1
                if 'ds_write' in l: nw += 1
            while extra and (ne - len(extra)) * 36 < cnt * ne: emit_item(extra.pop(0))
    o = MPK + 4*(fi % 6)
    for a in range(2):
        acc = MACC + 12*(2*a3 + a) + 4*b
        for i in range(2): pend.append((cnt + 5, f'  v_cvt_pk_bf16_f32 v{o+2*a+i}, v{acc+2*i}, v{acc+2*i+1}'))
    pend.append((cnt + 5, f'  ds_write_b128 v{vMW[b]}, {V(o)} offset:{2048*(2-a3)}'))
assert not extra
tsp()
for i, (_, l) in enumerate(pend):
    if len(pend) - i == 5: e('  s_nop 3')
    e(l)
e('  s_waitcnt lgkmcnt(0)')
e('  s_barrier')
tsp()
NXY = opt('nxy', 3)
XH = (9, 8, 7, 6, 5)
y = [f'  s_cmp_eq_u32 s{sPROD}, 0', '  s_cbranch_scc1 MK_np4', f'  s_waitcnt vmcnt({len(ISS["Y"]) - NY_AT_STORE})', '  v_mov_b32 v23, 1', '  s_mov_b64 exec, 1',
     f'  buffer_atomic_add v23, off, {RDB}, 0 sc1', '  s_mov_b64 exec, -1', 'MK_np4:']
assert ('O', 'Z') not in PLAN
for t_, ls in PLAN.get(('Y', 'Z'), []): y += ls
y += dma_xs(XH[:NXY]) + [f'  s_waitcnt vmcnt({4*NXY})']
PRE_P1 = (['  s_waitcnt vmcnt(0)'], y)

stream = []; frags = []
def add_frag(reads, gate): frags.append(dict(reads=reads, gate=gate, uses=0)); return len(frags) - 1
def use(fid, fn): frags[fid]['uses'] += 1; stream.append(('mfma', fn, fid))
def mf(text): stream.append(('mfma', (lambda buf: text), None))
def raw(*lines):
    for l in lines: stream.append(('raw', l))
def fill(*lines):
    for l in lines: stream.append(('fill', l))
def flush(): stream.append(('flush',))
def need(fid): stream.append(('need', fid))
def gate(name): stream.append(('gate', name))
def role(r, lines): stream.append(('cond', role_lines(r, lines)))
def role2(lo, ly): stream.append(('cond', role2_lines(lo, ly)))
BAR = '  s_barrier'
def m_read(f):
    addr = (71-f)*1024
    if addr < HALF: return [f'  ds_read_b128 {{d4}}, v{vL0} offset:{addr}']
    return [f'  ds_read_b128 {{d4}}, v{vL1} offset:{addr-HALF}']
def n_addr(f): return NHI + 30720 + 1024*f if f < 30 else ((f-30)*1024 if f < 40 else NHI + (f-40)*1024)
def n_read(f):
    if f >= 70: return []
    a = n_addr(f)
    return [f'  ds_read_b128 {{d4}}, v{vL1} offset:{a-NHI}' if a >= NHI else f'  ds_read_b128 {{d4}}, v{vL0} offset:{a}']
def dma_n(a, b):
    out = []
    for f0 in range(a, b, 4):
        lim = (b - 1 - f0) * 1024; src = sW4
        if lim < 3072: out.append(f'  s_min_u32 s{sT[5]}, s{sW4}, {lim}'); src = sT[5]
        out += [f'  s_add_u32 m0, s{src}, {n_addr(f0)}', f'  s_add_u32 s{sVO}, s{src}, {f0*1024}',
                f'  buffer_load_dwordx4 v{vL0}, {RWS}, s{sVO} offen{NSC} lds']
    return out
def proj(B, rd, gate_of, post, hooks):
    for s in range(6):
        for ks in range(6):
            for hh in range(2):
                f = 12*s + 2*ks + hh
                fid = add_frag(rd(f), gate_of(f))
                if f in hooks: hooks[f](fid)
                for t in range(2):
                    acc = ACC + 16*(s % 2) + 8*t + 4*hh
                    fx = None if rd(f) else NREG + 4*(f-70)
                    use(fid, (lambda buf, acc=acc, t=t, ks=ks, fx=fx: mfma(acc, buf if fx is None else fx, B(t, ks), None if ks == 0 else acc)))
        flush()
        fill(*post(s))

gate('G0')
role2(PRE_P1[0], PRE_P1[1])
def p1_post(s):
    out = []
    for t in range(2):
        acc = ACC + 16*(s % 2) + 8*t
        for r in range(8): out.append(f'  v_mul_f32 v{acc+r}, s{sSC}, v{acc+r}')
        for r in range(4): out.append(f'  v_cvt_pk_bf16_f32 v{QP+24*t+4*s+r}, v{acc+2*r}, v{acc+2*r+1}')
    return out
proj(lambda t, ks: XQ+24*t+4*ks, m_read, lambda f: 'G0', p1_post,
     {31: lambda fid: (need(fid), role('Y', [BAR])),
      61: lambda fid: (need(fid), role('Y', ['  s_waitcnt vmcnt(0)', BAR]))})
flush()
raw(f'  v_add_u32 v{vL1}, {NHI}, v{vL0}')
for r in range(4): raw(f'  v_mov_b32 v{ONES+r}, 0x3f803f80')
POLL = f'  buffer_load_dword v13, off, {RDB}, 0 sc1'
PMODE = opt('pmode', 1)
role('O', dma_xs(XH[NXY:]) + [BAR] + dma_xs((4, 3, 2)))
raw(*bias_init(XQ))
role2(['  s_waitcnt vmcnt(12)', BAR] + dma_xs((1, 0)), [BAR])
for _ in range(opt('idle', 0)): raw('  s_sleep 8')
gate('S')
etn = [0]
def sm_fill(t, jj):
    tmp = ET + 4*(etn[0] % 5); etn[0] += 1
    acc = SACC[t] + 4*jj
    for i in range(4): fill(f'  v_exp_f32 v{tmp+i}, v{acc+i}')
    for i in range(2): fill(f'  v_cvt_pk_bf16_f32 v{PREG[t]+2*jj+i}, v{tmp+2*i}, v{tmp+2*i+1}')
    stream.append(('tag', f'P{t}_{jj}'))
def sum_mfmas(t):
    stream.append(('flushto', f'P{t}_0'))
    for kt in (3, 2, 1, 0): mf(mfma(SUM[t], ONES, PREG[t]+4*kt, None if kt == 3 else SUM[t]))
LO, HI = (127-30) << 23, (127+30) << 23
def check(t):
    raw(f'  v_subrev_u32 v{RI[1]}, {LO}, v{SUM[t]}')
    raw(f'  s_mov_b32 s{sT[6]}, {HI-LO}')
    raw(f'  v_cmp_gt_u32 s[{sT[2]}:{sT[3]}], s{sT[6]}, v{RI[1]}')
    raw(f'  s_or_b64 s[{sT[2]}:{sT[3]}], s[{sT[2]}:{sT[3]}], s[{sINV[t]}:{sINV[t]+1}]')
    raw(f'  s_cmp_eq_u64 s[{sT[2]}:{sT[3]}], -1')
    raw(f'  s_cbranch_scc0 FB{t}')
    raw(f'FBR{t}:')
pollw = [f'  s_mov_b32 s{sT[7]}, 0x400000', 'NPOLL:', '  s_waitcnt vmcnt(0)', f'  v_readfirstlane_b32 s{sT[0]}, v13', f'  s_sub_u32 s{sT[7]}, s{sT[7]}, 1',
         f'  s_cselect_b32 s{sT[0]}, 144, s{sT[0]}', f'  s_cmp_ge_u32 s{sT[0]}, 144', '  s_cbranch_scc1 NPOLLD', POLL, '  s_branch NPOLL', 'NPOLLD:']
ODMA = 'ydma' not in OPT
if not ODMA: pollw = [POLL.replace(' sc1', '')] + pollw
YP = {opt('y5a', 9): [BAR] + pollw + dma_n(0, 30) + dma_n(30, 40),
      opt('y5b', 12): ['  s_waitcnt vmcnt(0)', BAR] + dma_n(40, 70),
      opt('y6', 14): ['  s_waitcnt vmcnt(0)', BAR]}
assert len(YP) == 3
if ODMA: YP = {k: [BAR] for k in YP}
if 'yhi' in OPT: YP[opt('yhi', 0)] = YP.get(opt('yhi', 0), []) + ['  s_setprio 1']
O4B = opt('o4b', 6)
for k, slot in enumerate(range(9, -1, -1)):
    if k == 2:
        role2(['  s_waitcnt vmcnt(8)', BAR], [BAR]); gate('S2')
    if k == O4B: role('O', ['  s_waitcnt vmcnt(0)', BAR] + ([POLL.replace(' sc1', '')] if ODMA else []))
    if k in YP: role('Y', YP[k])
    for s in range(6):
        if slot == 0 and s == 3: sum_mfmas(1)
        if slot == 0: base, off = SB0[s % 2], 128*(s//2)
        else: base, off = (vSe, vSo)[s % 2], (slot-1)*ROW + 128*(s//2)
        fid = add_frag([f'  ds_read_b128 {{d4}}, v{base} offset:{off}'], 'S' if slot >= 6 else 'S2')
        for t in (1, 0):
            jj = slot - 2*t
            if 0 <= jj < 8:
                acc = SACC[t] + 4*jj
                use(fid, (lambda buf, acc=acc, t=t, s=s: mfma(acc, buf, QP+24*t+4*s, acc)))
    for t in (1, 0):
        jj = slot - 2*t
        if 0 <= jj < 8: sm_fill(t, jj)
check(1)
def ycvt(t, ks):
    return [f'  v_cvt_pk_bf16_f32 v{YB[t][ks]+2*hf+i}, v{YACC[t][2*ks+hf]+2*i}, v{YACC[t][2*ks+hf]+2*i+1}' for hf in range(2) for i in range(2)]
lastf = None
for k, st in enumerate(range(4, -1, -1)):
    if k == 1:
        sum_mfmas(0); check(0)
        for t in range(2): fill(f'  v_rcp_f32 v{RI[t]}, v{SUM[t]}')
    if k == 2: need(lastf); role('O', [BAR] + (pollw + dma_n(30, 40) + dma_n(0, 30) if ODMA else []))
    if 10 + k in YP: role('Y', YP[10 + k])
    if k == 4:
        for ks in range(6): fill(*ycvt(1, ks))
    for ct in range(12):
        tl = [t for t in (1, 0) if 0 <= st - t < 4]
        b_, e_ = ct // 4, ct % 4
        rd = []
        for hf in range(2):
            slot = 2*st + hf
            if slot == 0: base, off = PB0[e_], 128*b_
            else: base, off = vP[e_], (slot-1)*ROW + 128*b_
            rd.append(f'  ds_read_b64_tr_b16 {{d{"lo" if hf == 0 else "hi"}}}, v{base} offset:{off}')
        fid = add_frag(rd, 'S2'); lastf = fid
        if k == 4 and ct == opt('o5b', 6):
            stream.append(('needall', fid + 11 - ct)); role('O', ['  s_waitcnt vmcnt(0)', BAR] + dma_n(40, 70) if ODMA else [BAR]); gate('P4a')
        for t in tl:
            acc = YACC[t][ct]
            use(fid, (lambda buf, acc=acc, t=t, st=st: mfma(acc, buf, PREG[t]+4*(st-t), None if st - t == 3 else acc)))
flush()
for ks in range(6): raw(*ycvt(0, ks))
raw(f'  s_mov_b32 s{sVO}, {70*1024}')
if 15 in YP: role('Y', YP[15])
for i in range(2): raw(f'  buffer_load_dwordx4 {V(NREG+4*i)}, v{vL0}, {RWS}, s{sVO} offen offset:{1024*i} sc1')
def p4_post(s):
    out = []
    for t in range(2):
        acc = ACC + 16*(s % 2) + 8*t
        o = OUTR + 8*(s % 2) + 4*t
        for r in range(8): out.append(f'  v_mul_f32 v{acc+r}, v{acc+r}, v{RI[t]}')
        for r in range(4): out.append(f'  v_cvt_pk_bf16_f32 v{o+r}, v{acc+2*r}, v{acc+2*r+1}')
        out.append(f'  buffer_store_dwordx4 {V(o)}, v{vO[t]}, {RO}, 0 offen offset:{64*s}{NTO}')
    return out
proj(lambda t, ks: YB[t][ks], n_read, lambda f: 'P4a' if f < 40 else 'P4b', p4_post,
     {opt('o6', 24): lambda fid: (role('O', (['  s_waitcnt vmcnt(4)'] if ODMA else []) + [BAR]), gate('P4b')),
      60: lambda fid: raw('  s_waitcnt vmcnt(8)'),
      opt('ylo', 1): lambda fid: raw('  s_setprio 0') if 'yhi' in OPT else None})
flush()

def regs_of(tok):
    m = re.fullmatch(r'v\[(\d+):(\d+)\]', tok)
    if m: return list(range(int(m.group(1)), int(m.group(2)) + 1))
    m = re.fullmatch(r'-?v(\d+)', tok)
    return [int(m.group(1))] if m else []
def parse(line):
    p = line.strip().split(None, 1)
    op = p[0]; args = [a.strip().split()[0] for a in p[1].split(',')] if len(p) > 1 else []
    return op, args
clock = [0]
mf_w = {}; va_w = {}; tr_w = {}; mf_c = {}
def hazard(line):
    op, args = parse(line); need_ = 0
    allr = [r for a in args for r in regs_of(a)]
    if op.startswith('v_mfma'):
        for r in [r for a in args[1:] for r in regs_of(a)]:
            if r in va_w: need_ = max(need_, 2 - (clock[0] - va_w[r] - 1))
        for r in regs_of(args[1]) + regs_of(args[2]):
            if r in mf_w: need_ = max(need_, 8 - (clock[0] - mf_w[r] - 1))
    elif op.startswith('v_') or op.startswith('buffer_') or op.startswith('ds_'):
        for r in allr:
            if r in mf_w: need_ = max(need_, 8 - (clock[0] - mf_w[r] - 1))
        if op.startswith('v_'):
            for r in regs_of(args[0]):
                if r in mf_c: need_ = max(need_, 3 - (clock[0] - mf_c[r] - 1))
            for r in [r for a in args[1:] for r in regs_of(a)]:
                if r in tr_w: need_ = max(need_, 1 - (clock[0] - tr_w[r] - 1))
    return need_
def emit(line):
    if line.endswith(':'):
        e(line); return
    n = hazard(line)
    if n > 0:
        e(f'  s_nop {n-1}'); clock[0] += n
    op, args = parse(line)
    e(line)
    if op.startswith('v_mfma'):
        for r in regs_of(args[0]): mf_w[r] = clock[0]
        for r in regs_of(args[3]): mf_c[r] = clock[0]
    elif op.startswith('v_'):
        for r in regs_of(args[0]):
            va_w[r] = clock[0]; tr_w.pop(r, None)
            if op in ('v_exp_f32', 'v_rcp_f32'): tr_w[r] = clock[0]
    if op == 's_nop': clock[0] += int(args[0])
    clock[0] += 1

gates = set(); nxt = 0; done_uses = [0]*len(frags)
ops = []; landed = -1; half = [None]
fq = []
def buf_of(f): return ABUF + 4*(f % NB)
def issue_one():
    global nxt
    while True:
        if half[0] is not None:
            emit(half[0]); ops.append(nxt); half[0] = None; nxt += 1; return True
        if nxt >= len(frags): return False
        fr = frags[nxt]
        if fr['gate'] not in gates: return False
        if nxt >= NB and done_uses[nxt-NB] < frags[nxt-NB]['uses']: return False
        if not fr['reads']:
            nxt += 1; continue
        if len(ops) + len(fr['reads']) > (13 if TSM else 15): return False
        b = buf_of(nxt)
        rs = [r.format(d4=V(b), dlo=V(b, 2), dhi=V(b+2, 2)) for r in fr['reads']]
        emit(rs[0]); ops.append(nxt)
        if len(rs) == 2: half[0] = rs[1]
        else: nxt += 1
        return True
def wait_for(f, pair=True):
    global landed, ops
    if f is None or f <= landed: return
    while nxt <= f:
        n0 = nxt
        if not issue_one() and nxt == n0: raise RuntimeError(f'cannot issue frag {nxt}')
    if any(o <= f for o in ops):
        if pair and f + 1 < nxt and sum(1 for o in ops if o > f + 1) >= PAIRMIN: f = f + 1
        n = sum(1 for o in ops if o > f)
        emit(f'  s_waitcnt lgkmcnt({n})')
        ops = [o for o in ops if o > f]
    landed = f
nmf = [0]
BACKLOG = opt('backlog', 6); PAIRMIN = opt('pairmin', 5)
STREAM_NEXT = {}
mi = [i for i, x in enumerate(stream) if x[0] == 'mfma']
for a_, b_ in zip(mi, mi[1:]): STREAM_NEXT[a_] = stream[b_][2]
for si, ent in enumerate(stream):
    k = ent[0]
    if k == 'raw': emit(ent[1])
    elif k == 'fill': fq.append(ent[1])
    elif k == 'flush':
        for l in fq:
            if not l.startswith('#'): emit(l)
        fq = []
    elif k == 'tag': fq.append('#' + ent[1])
    elif k == 'flushto':
        if '#' + ent[1] in fq:
            i = fq.index('#' + ent[1])
            for l in fq[:i]:
                if not l.startswith('#'): emit(l)
            fq = fq[i+1:]
    elif k == 'gate':
        gates.add(ent[1])
        while issue_one(): pass
    elif k in ('need', 'needall'): wait_for(ent[1])
    elif k == 'cond':
        emit(ent[1][0]); el(ent[1][1:])
    elif k == 'mfma':
        wait_for(ent[2])
        if nmf[0] in TSM: e(ts_line())
        nmf[0] += 1
        emit(ent[1](buf_of(ent[2]) if ent[2] is not None else None))
        if ent[2] is not None: done_uses[ent[2]] += 1
        slots = 2
        nf = STREAM_NEXT.get(si)
        if nf is not None and nf > landed: slots -= 1
        ahead = nxt - (ent[2] if ent[2] is not None else landed)
        if issue_one(): slots -= 1
        if (half[0] is not None or (slots > 0 and (not fq or ahead < 6))) and issue_one(): slots -= 1
        if sum(1 for l in fq if 'v_exp' in l) > BACKLOG: slots = max(slots, 2)
        while fq:
            if fq[0].startswith('#'): fq.pop(0); continue
            cost = 2 if ('v_exp' in fq[0] or 'v_rcp' in fq[0]) else 1
            if slots < cost or hazard(fq[0]) > 0: break
            emit(fq.pop(0)); slots -= cost
if TS:
    e('  s_waitcnt vmcnt(0)')
    e(ts_line()); e('  s_memrealtime s[98:99]')
    e('  s_waitcnt lgkmcnt(0)')
    e(f'  s_lshl_b32 s{sT[0]}, s2, 3'); e(f'  s_add_u32 s{sT[0]}, s{sT[0]}, s{sW}'); e(f'  s_lshl_b32 s{sT[0]}, s{sT[0]}, 6')
    e(f'  s_add_u32 s{sT[0]}, s{sT[0]}, 0x100000')
    e('  v_mov_b32 v1, 0')
    for i in range(nts[0]):
        if i == 0: e(f'  v_mov_b32 v2, s{sTS}')
        else:
            e(f'  s_sub_u32 s{sT[1]}, s{sTS+2*i}, s{sTS}'); e(f'  v_mov_b32 v2, s{sT[1]}')
        e(f'  buffer_store_dword v2, v1, s[20:23], s{sT[0]} offen offset:{4*i}')
    e('  v_mov_b32 v2, s96'); e('  v_mov_b32 v3, s98')
    e(f'  buffer_store_dwordx2 v[2:3], v1, s[20:23], s{sT[0]} offen offset:56')
    print('timestamps', nts[0]); assert nts[0] <= 12
e('MK_done:')
e('  s_endpgm')
for t in range(2):
    R = SACC[t]; vm, vt = RI[0], RI[1]
    e(f'FB{t}:')
    e('  s_nop 7')
    e(f'  v_max3_f32 v{vm}, v{R}, v{R+1}, v{R+2}')
    for k in range(3, 31, 2): e(f'  v_max3_f32 v{vm}, v{vm}, v{R+k}, v{R+k+1}')
    e(f'  s_mov_b32 s{sT[6]}, 0xff7fffff')
    e(f'  v_max3_f32 v{vm}, v{vm}, v{R+31}, s{sT[6]}')
    for sw in ('v_permlane32_swap_b32', 'v_permlane16_swap_b32'):
        e(f'  v_mov_b32 v{vt}, v{vm}'); e('  s_nop 1'); e(f'  {sw} v{vm}, v{vt}'); e('  s_nop 1')
        e(f'  v_max_f32 v{vm}, v{vm}, v{vt}')
    for k in range(32): e(f'  v_sub_f32 v{R+k}, v{R+k}, v{vm}')
    for k in range(32): e(f'  v_exp_f32 v{R+k}, v{R+k}')
    e('  s_nop 0')
    for k in range(16): e(f'  v_cvt_pk_bf16_f32 v{PREG[t]+k}, v{R+2*k}, v{R+2*k+1}')
    e('  s_nop 1')
    for kt in range(4): e(mfma(SUM[t], ONES, PREG[t]+4*kt, None if kt == 0 else SUM[t]))
    e('  s_nop 7')
    e(f'  s_branch FBR{t}')
e('MK_end:')
e('.section .rodata,"a"')
e('.p2align 6'); e(f'.amdhsa_kernel {KN}')
e('  .amdhsa_next_free_vgpr 256'); e('  .amdhsa_next_free_sgpr 102'); e('  .amdhsa_accum_offset 256')
e('  .amdhsa_group_segment_fixed_size 0'); e('  .amdhsa_kernarg_size 48'); e('  .amdhsa_user_sgpr_count 2')
e('  .amdhsa_user_sgpr_kernarg_segment_ptr 1'); e('  .amdhsa_system_sgpr_workgroup_id_x 1')
e('.end_amdhsa_kernel')
if 'drop' in OPT:
    kinds = OPT['drop'].split(',')
    i0 = next(i for i, l in enumerate(L) if 'MK_np4:' in l)
    out = []; n = 0
    for i, l in enumerate(L):
        body = i > i0
        if 'mM' in kinds and not body and 'v_mfma' in l: l = '  s_nop 3'
        if 'exp' in kinds and 'v_exp' in l: l = l.replace('v_exp_f32', 'v_mov_b32')
        if 'lds' in kinds and body and 'ds_read_b128' in l:
            l = re.sub(r'ds_read_b128 v\[(\d+):\d+\]', lambda m: f'ds_read_b32 v{m.group(1)}', l)
        if 'tr' in kinds and body and 'ds_read_b64_tr' in l:
            l = re.sub(r'ds_read_b64_tr_b16 v\[(\d+):\d+\], v\d+', lambda m: f'ds_read_b32 v{m.group(1)}, v{vL0}', l)
        if 'mfma' in kinds and body and 'v_mfma' in l:
            n += 1
            if n % 2: l = '  s_nop 3'
        if 'nslab' in kinds and RWO in l and 'buffer_load' in l: l = '  s_nop 0'
        if 'nwv' in kinds and f'v{vNA}, {RW}' in l: l = '  s_nop 0'
        if 'ncomp' in kinds and 's_cbranch_scc1 MK_np2' in l: l = '  s_branch MK_np2'
        if 'st' in kinds and 'buffer_store_dwordx4' in l: l = '  s_nop 0'
        out.append(l)
    L = out
open(OUTF, 'w').write('\n'.join(L) + '\n')
```

```python
import sys, struct, math, re
OPT = dict(a.split('=') if '=' in a else (a, '1') for a in sys.argv[1:])
OUTF = OPT.get('out', 'standalone__neighborhood_nat__vision.s')
TS = 'ts' in OPT
TSM = [int(x) for x in OPT['tsm'].split(',')] if 'tsm' in OPT else []
TSP = 'tsp' in OPT
def opt(k, d): return int(OPT.get(k, d))
L = []
def e(s): L.append(s)
def el(ls):
    for l in ls: L.append(l)

X_BYTES = 19267584
WS_BYTES = 268435456
XB = 10240
ROW = 7680
HALF = 36864
NHI = XB + 12*ROW
WOL = 147456
SCALE = struct.unpack('<I', struct.pack('<f', (192 ** -0.5) * math.log2(math.e)))[0]
NT = ' nt' if 'nt' in OPT else ''
NSC = '' if 'nplain' in OPT else ' sc1'
NTO = ' ' + OPT.get('st', 'nt+sc1').replace('+', ' ')
KN = 'standalone__neighborhood_nat__vision_kernel'

hdr = open('standalone__neighborhood_nat__vision.s.ref').read().split('\n')
for ln in hdr:
    if ln.startswith('; @launch'): break
    e(ln)
e('; @launch grid=(256,1,1) block=(512,1,1) lds=163840')
e('.amdgcn_target "amdgcn-amd-amdhsa--gfx950"')
e('.text')

def srd(d, b, n):
    return [f'  s_mov_b32 s{d}, s{b}', f'  s_and_b32 s{d+1}, s{b+1}, 0xffff', f'  s_mov_b32 s{d+2}, {n}', f'  s_mov_b32 s{d+3}, 0x00020000']
def V(a, n=4): return f'v[{a}:{a+n-1}]'
def mfma(d, a, b, c):
    cs = '0' if c is None else V(c)
    return f'  v_mfma_f32_16x16x32_bf16 {V(d)}, {V(a)}, {V(b)}, {cs}'

vL0, vL1 = 1, 2
vO = (5, 6)
vSe, vSo = 7, 8
vP = (9, 10, 11, 12)
vD = (13, 14, 3, 4)
PB0 = (15, 16, 17, 18)
vCT = 19
SB0 = (20, 0)
vRR = (21, 22)
RI = (22, 23)
SACC = (24, 56); QP = 88; XQ = 136; ACC = 184
ABUF = 216; NB = 10
PREG = (136, 152)
YB = ([136, 140, 144, 148, 168, 172], [152, 156, 160, 164, 176, 180])
YACC = ([24+4*i for i in range(12)], [88+4*i for i in range(12)])
SUM = (184, 188); ONES = 192; ET = 196
OUTR = 24; NREG = 40
MACC = 24; MPK = 104
vWA = 96; vMA, vMB, vMW = (97, 98), (99, 100), (101, 102, 103)
vn, vg, tA, tB, tC, tD = 128, 129, 130, 131, 132, 133
vNB, vNA = 134, 135
sW, sU, sH, sPR, sPC, sKR, sKC, sXB, sGS, sGmin = range(24, 34)
sA2, sR0, sD0, sTR, sM0X, sM0X3, sW4, sWL = range(34, 42)
sINV = (42, 44)
sT = list(range(46, 60))
sMR, sAR, sMC, sAC = sT[10], sT[11], sT[12], sT[13]
sTS = 60
sPROD, sWB, sSC, sVO = 3, 92, 93, 100
RX, RO, RWS, RW, RWO, RDB = 's[12:15]', 's[16:19]', 's[20:23]', 's[88:91]', 's[4:7]', 's[8:11]'
MSK = f's[{sT[6]}:{sT[7]}]'
assert sT[6] % 2 == 0 and sT[2] % 2 == 0

nts = [0]
def ts_line():
    s = f'  s_memtime s[{sTS+2*nts[0]}:{sTS+2*nts[0]+1}]'; nts[0] += 1; return s
def tsp():
    if TSP: e(ts_line())

e(f'.globl {KN}'); e('.p2align 8'); e(f'.type {KN},@function'); e(f'{KN}:')
e('  s_cmp_ge_u32 s2, 256'); e('  s_cbranch_scc1 MK_done')
if TS: e(ts_line()); e('  s_memrealtime s[96:97]')
e('  s_load_dwordx8 s[4:11], s[0:1], 0')
e('  s_load_dwordx4 s[84:87], s[0:1], 32')
if 'nopf' not in OPT:
    e('  s_getpc_b64 s[12:13]'); e('MK_pc:')
    e('  s_and_b32 s13, s13, 0xffff'); e('  s_mov_b32 s14, MK_end-MK_pc'); e('  s_mov_b32 s15, 0x00020000')
    e('  v_lshlrev_b32 v23, 7, v0')
    e('  buffer_load_dword v255, v23, s[12:15], 0 offen')
e(f'  v_lshrrev_b32 v{tA}, 6, v0')
e('  v_and_b32 v0, 63, v0')
e(f'  v_readfirstlane_b32 s{sW}, v{tA}')
e(f'  v_and_b32 v{vn}, 15, v0'); e(f'  v_lshrrev_b32 v{vg}, 4, v0')
e(f'  v_lshrrev_b32 v{tA}, 5, v0'); e(f'  v_bfe_u32 v{tB}, v0, 3, 2'); e(f'  v_lshl_add_u32 v{tA}, v{tA}, 3, v{tB}')
e(f'  v_mul_u32_u24 v{tA}, 1152, v{tA}')
e(f'  s_and_b32 s{sH}, s{sW}, 1')
e(f'  s_lshl_b32 s{sT[0]}, s{sH}, 2')
e(f'  v_add_u32 v{tB}, s{sT[0]}, v{vg}'); e(f'  v_and_b32 v{tC}, 7, v0'); e(f'  v_xor_b32 v{tB}, v{tB}, v{tC}')
e(f'  v_lshl_add_u32 v{vWA}, v{tB}, 4, v{tA}')
e(f'  s_lshr_b32 s{sT[0]}, s{sW}, 2'); e(f'  s_lshl_b32 s{sT[0]}, s{sT[0]}, 5')
e(f'  s_lshl_b32 s{sT[1]}, s{sH}, 4'); e(f'  s_add_u32 s{sT[0]}, s{sT[0]}, s{sT[1]}')
e(f'  s_and_b32 s{sT[1]}, s{sW}, 2'); e(f'  s_lshl_b32 s{sT[1]}, s{sT[1]}, 1'); e(f'  s_add_u32 s{sT[0]}, s{sT[0]}, s{sT[1]}')
e(f'  s_mul_i32 s{sWB}, s{sT[0]}, 1152')
e(f'  s_lshl_b32 s{sWL}, s{sW}, 10')
e(f'  s_cmp_lt_u32 s{sW}, 4'); e('  s_cselect_b64 vcc, -1, 0')
e(f'  s_bfe_u32 s{sPR}, s2, 0x10002')
e(f'  s_bfe_u32 s{sPC}, s2, 0x10001')
e(f'  s_and_b32 s{sKR}, s2, 1'); e(f'  s_lshl_b32 s{sKR}, s{sKR}, 2')
e(f'  s_lshr_b32 s{sT[0]}, s2, 6'); e(f'  s_add_u32 s{sKR}, s{sKR}, s{sT[0]}')
e(f'  s_bfe_u32 s{sKC}, s2, 0x30003')
e(f'  s_mul_i32 s{sTR}, s{sKR}, 14'); e(f'  s_add_i32 s{sTR}, s{sTR}, -6'); e(f'  s_max_i32 s{sKR}, s{sTR}, -4')
e(f'  s_mul_i32 s{sKC}, s{sKC}, 14'); e(f'  s_add_i32 s{sKC}, s{sKC}, -6')
e(f'  s_lshr_b32 s{sU}, s{sW}, 1'); e(f'  s_add_u32 s{sU}, s{sU}, 2'); e(f'  s_and_b32 s{sU}, s{sU}, 3')
e(f'  s_sub_u32 s{sMR}, 0, s{sPR}'); e(f'  s_mul_i32 s{sAR}, s{sPR}, 224')
e(f'  s_sub_u32 s{sMC}, 0, s{sPC}'); e(f'  s_mul_i32 s{sAC}, s{sPC}, 224')
e(f'  v_and_b32 v{tA}, 7, v{vn}')
e(f'  s_mul_i32 s{sT[0]}, s{sH}, 7'); e(f'  s_add_i32 s{sT[0]}, s{sT[0]}, s{sKC}')
e(f'  v_cmp_lt_u32 s[{sT[2]}:{sT[3]}], 6, v{tA}')
e(f'  v_add_u32 v{tA}, s{sT[0]}, v{tA}')
e(f'  v_max_i32 v{vCT}, 0, v{tA}')
e(f'  v_add3_u32 v{tA}, v{tA}, v{vCT}, 6')
e(f'  v_xor_b32 v{tA}, s{sMC}, v{tA}'); e(f'  v_add_u32 v{tA}, s{sAC}, v{tA}')
e(f'  v_subrev_u32 v{vCT}, s{sKC}, v{vCT}')
e(f'  v_mul_u32_u24 v{tA}, 384, v{tA}'); e(f'  v_lshl_add_u32 v{tA}, v{vg}, 4, v{tA}')
e(f'  s_lshl_b32 s{sT[0]}, s{sU}, 2'); e(f'  s_add_i32 s{sT[0]}, s{sT[0]}, -2')
e(f'  s_mov_b32 s{sT[1]}, 86016')
e(f'  v_lshrrev_b32 v{tB}, 3, v{vn}'); e(f'  v_add_u32 v{tB}, s{sT[0]}, v{tB}')
e(f'  v_mov_b32 v{tC}, 0x80000000')
for t in range(2):
    if t: e(f'  v_add_u32 v{tB}, 2, v{tB}')
    e(f'  v_cmp_gt_i32 s[{sINV[t]}:{sINV[t]+1}], 0, v{tB}')
    e(f'  v_add_u32 v{vO[t]}, s{sTR}, v{tB}')
    e(f'  v_max_i32 v{vRR[t]}, 0, v{vO[t]}')
    e(f'  v_add3_u32 v{vO[t]}, v{vO[t]}, v{vRR[t]}, 6')
    e(f'  s_or_b64 s[{sINV[t]}:{sINV[t]+1}], s[{sINV[t]}:{sINV[t]+1}], s[{sT[2]}:{sT[3]}]')
    e(f'  v_xor_b32 v{vO[t]}, s{sMR}, v{vO[t]}'); e(f'  v_add_u32 v{vO[t]}, s{sAR}, v{vO[t]}')
    e(f'  v_subrev_u32 v{vRR[t]}, s{sKR}, v{vRR[t]}')
    e(f'  v_mad_u32_u24 v{vO[t]}, v{vO[t]}, s{sT[1]}, v{tA}')
    e(f'  v_cndmask_b32 v{vRR[t]}, v{vRR[t]}, v{tC}, s[{sINV[t]}:{sINV[t]+1}]')
    e(f'  v_cndmask_b32 v{vO[t]}, v{vO[t]}, v{tC}, s[{sINV[t]}:{sINV[t]+1}]')

e('  s_waitcnt lgkmcnt(0)')
tsp()
el(srd(88, 6, 192*576*2))
if 'notlb' not in OPT:
    e(f'  s_cmp_lg_u32 s{sW}, 5'); e('  s_cbranch_scc1 MK_ntlb')
    e(f'  s_max_i32 s{sT[0]}, s{sTR}, 0'); e(f'  s_lshl_b32 s{sT[0]}, s{sT[0]}, 1'); e(f'  s_sub_u32 s{sT[1]}, 184, s{sT[0]}')
    e(f'  s_cmp_eq_u32 s{sPR}, 0'); e(f'  s_cselect_b32 s{sT[0]}, s{sT[0]}, s{sT[1]}'); e(f'  s_mul_i32 s{sT[0]}, s{sT[0]}, 86016')
    for k in range(3):
        e(f'  s_load_dword s94, s[4:5], s{sT[0]}'); e(f'  s_load_dword s95, s[10:11], s{sT[0]}')
        if k < 2: e(f'  s_add_u32 s{sT[0]}, s{sT[0]}, {20*86016 - 64}')
    e(f'  s_load_dword s94, s[84:85], 128'); e(f'  s_load_dword s95, s[86:87], 0x20000')
    e('MK_ntlb:')

def w_pieces(c, partner=0):
    return [[f'  s_add_u32 m0, s{sWL}, {c*49152 + mat*24576 + j*8192 + partner*4096}',
             f'  s_add_u32 s{sVO}, s{sWB}, {(j*64 + partner*32)*1152 + mat*384 + c*128}',
             f'  buffer_load_dwordx4 v{vWA}, {RW}, s{sVO} offen lds'] for mat in range(2) for j in range(3)]
def q_loads():
    return [f'  buffer_load_dwordx4 {V(XQ+24*t+4*s_)}, v{vO[t]}, {RX}, 0 offen offset:{64*s_}{NT}' for t in (1, 0) for s_ in range(6)]
SCH = {'O': OPT.get('so', 'A:W0,C:W1,0:W2,1:q6,2:q6'), 'Y': OPT.get('sy', 'A:W0,C:W1,0:W2,3:q6,4:q6')}
PLAN = {}; ISS = {'O': [], 'Y': []}
for r_, sp in SCH.items():
    qi = 0
    for part in sp.split(','):
        pos, items = part.split(':')
        for it in items.split('+'):
            lst = PLAN.setdefault((r_, pos), [])
            if it[0] == 'W': lst += [(f'W{it[1]}', p) for p in w_pieces(int(it[1]))]
            elif it[0] == 'V': lst += [(f'W{it[1]}', p) for p in w_pieces(int(it[1]), 1)]
            elif it in 'pr':
                assert pos == 'A'
                lst.append(('t', [f'  v_min_u32 v253, 2, v{vg}', f'  v_mad_u32_u24 v253, v253, s{sT[8]}, v{vO[1 if it == "p" else 0]}',
                                  f'  buffer_load_dword v{252 if it == "p" else 251}, v253, {RX}, 0 offen']))
            else:
                for _ in range(int(it[1:])): lst.append(('q', [q_loads()[qi]])); qi += 1
    assert qi == 12
lbl = [0]
def role_lines(r_, lines):
    lbl[0] += 1
    return [f'  s_cbranch_vcc{"z" if r_ == "O" else "nz"} SL{lbl[0]}'] + list(lines) + [f'SL{lbl[0]}:']
def role2_lines(lo, ly):
    lbl[0] += 1; n = lbl[0]
    return [f'  s_cbranch_vccz SL{n}'] + list(lo) + [f'  s_branch SM{n}', f'SL{n}:'] + list(ly) + [f'SM{n}:']
def sched_items(pos):
    o, y = list(PLAN.get(('O', pos), [])), list(PLAN.get(('Y', pos), []))
    out = []
    while o or y: out.append((o.pop(0) if o else None, y.pop(0) if y else None))
    return out
def emit_item(it):
    o, y = it
    if o: ISS['O'].append(o[0])
    if y: ISS['Y'].append(y[0])
    if o and y and o == y: el(o[1])
    elif o and y: el(role2_lines(o[1], y[1]))
    elif o: el(role_lines('O', o[1]))
    else: el(role_lines('Y', y[1]))
def emit_pos(pos):
    o, y = PLAN.get(('O', pos), []), PLAN.get(('Y', pos), [])
    k = 0
    while k < len(o) and k < len(y) and o[k] == y[k]: emit_item((o[k], y[k])); k += 1
    for r_, x in (('O', o[k:]), ('Y', y[k:])):
        if x:
            ISS[r_] += [i[0] for i in x]; el(role_lines(r_, sum((i[1] for i in x), [])))
def after(r_, tag):
    l = ISS[r_]
    if tag not in l: return 63
    return min(63, len(l) - 1 - max(i for i, t in enumerate(l) if t == tag))

if 'nowpf' not in OPT:
    e(f'  s_cmp_lt_u32 s{sW}, 6'); e('  s_cbranch_scc1 MK_nwpf')
    e(f'  s_cmp_eq_u32 s{sW}, 6'); e(f'  s_cselect_b32 s{sT[0]}, 54, 18')
    e('  s_cselect_b32 s12, s6, s8'); e('  s_cselect_b32 s13, s7, s9'); e('  s_and_b32 s13, s13, 0xffff')
    e(f'  s_lshr_b32 s{sT[1]}, s2, 3'); e(f'  s_mul_i32 s{sT[1]}, s{sT[1]}, s{sT[0]}'); e(f'  s_lshl_b32 s{sVO}, s{sT[1]}, 7')
    e(f'  s_lshl_b32 s{sT[0]}, s{sT[0]}, 7'); e(f'  s_add_u32 s14, s{sVO}, s{sT[0]}'); e('  s_mov_b32 s15, 0x00020000')
    e('  v_lshlrev_b32 v23, 7, v0')
    e(f'  buffer_load_dword v254, v23, s[12:15], s{sVO} offen')
    e('MK_nwpf:')
el(srd(12, 4, X_BYTES))
e(f'  s_movk_i32 s{sT[8]}, 112')
emit_pos('A')
emit_pos('B')
tsp()
el(srd(16, 10, X_BYTES)); el(srd(4, 8, 192*192*2)); el(srd(8, 84, 256)); el(srd(20, 86, WS_BYTES if TS else 73728))
e(f'  v_lshlrev_b32 v{vL0}, 4, v0')
e(f'  v_add_u32 v{vL1}, {HALF}, v{vL0}')
e(f'  s_and_b32 s{sW4}, s{sW}, 3'); e(f'  s_lshl_b32 s{sW4}, s{sW4}, 10')
e(f'  v_bfe_u32 v{tA}, v{vn}, 1, 3'); e(f'  v_xor_b32 v{tA}, v{tA}, v{vg}')
e(f'  v_lshlrev_b32 v{tB}, 7, v{vn}'); e(f'  v_lshl_add_u32 v{tB}, v{tA}, 4, v{tB}')
e(f'  s_lshr_b32 s{sT[0]}, s{sW}, 2'); e(f'  s_mul_i32 s{sT[1]}, s{sT[0]}, {6*2048}')
e(f'  v_add_u32 v{vMA[0]}, s{sT[1]}, v{tB}'); e(f'  v_xor_b32 v{vMA[1]}, 64, v{vMA[0]}')
e(f'  s_mul_i32 s{sT[1]}, s{sW4}, 6'); e(f'  s_add_u32 s{sT[1]}, s{sT[1]}, 24576')
e(f'  v_add_u32 v{vMB[0]}, s{sT[1]}, v{tB}'); e(f'  v_xor_b32 v{vMB[1]}, 64, v{vMB[0]}')
F = []; f_ = F.append
f_(f'  s_lshr_b32 s{sT[0]}, s{sW}, 2'); f_(f'  s_mul_i32 s{sT[0]}, s{sT[0]}, 6'); f_(f'  s_sub_u32 s{sT[0]}, 67, s{sT[0]}')
f_(f'  s_and_b32 s{sT[1]}, s{sW}, 3'); f_(f'  s_mul_i32 s{sT[1]}, s{sT[1]}, 3')
for b in range(3):
    f_(f'  s_add_u32 s{sT[2]}, s{sT[1]}, {b}')
    f_(f'  s_lshr_b32 s{sT[3]}, s{sT[2]}, 1'); f_(f'  s_mul_i32 s{sT[3]}, s{sT[3]}, 10')
    f_(f'  s_add_u32 s{sT[2]}, s{sT[2]}, s{sT[3]}')
    f_(f'  s_sub_u32 s{sT[2]}, s{sT[0]}, s{sT[2]}'); f_(f'  s_lshl_b32 s{sT[2]}, s{sT[2]}, 10')
    f_(f'  v_add_u32 v{vMW[b]}, s{sT[2]}, v{vL0}')
f_(f'  s_lshl_b32 s{sT[0]}, s{sKR}, 1'); f_(f'  s_xor_b32 s{sT[0]}, s{sT[0]}, s{sMR}')
f_(f'  s_mul_i32 s{sT[1]}, s{sPR}, 222'); f_(f'  s_add_i32 s{sXB}, s{sT[0]}, s{sT[1]}')
f_(f'  s_mul_i32 s{sXB}, s{sXB}, 86016')
f_(f'  s_mul_i32 s{sGS}, s{sPR}, {-2*344064}'); f_(f'  s_add_i32 s{sGS}, s{sGS}, 344064')
f_(f'  s_lshr_b32 s{sGmin}, s{sKR}, 31'); f_(f'  s_lshl_b32 s{sGmin}, s{sGmin}, 1')
f_(f'  s_lshl_b32 s{sM0X}, s{sW4}, 2')
f_(f'  s_add_u32 s{sM0X3}, s{sM0X}, 3072'); f_(f'  s_min_u32 s{sM0X3}, s{sM0X3}, {14*1024}')
f_(f'  s_mul_i32 s{sT[2]}, s{sPR}, 172032'); f_(f'  s_sub_u32 s{sT[3]}, 172032, s{sT[2]}')
f_(f'  v_mov_b32 v{tC}, s{sT[2]}'); f_(f'  v_mov_b32 v{tD}, s{sT[3]}')
for b in range(960): assert (b * 2731) >> 16 == b // 24
for j in range(4):
    d = vD[j]
    if j < 3:
        f_(f'  s_lshr_b32 s{sT[0]}, s{sM0X}, 4'); f_(f'  s_add_u32 s{sT[0]}, s{sT[0]}, {64*j}')
    else: f_(f'  s_lshr_b32 s{sT[0]}, s{sM0X3}, 4')
    f_(f'  v_add_u32 v{tA}, s{sT[0]}, v0')
    f_(f'  v_mul_u32_u24 v{d}, 2731, v{tA}'); f_(f'  v_lshrrev_b32 v{d}, 16, v{d}')
    f_(f'  v_cmp_le_u32 {MSK}, 20, v{d}')
    f_(f'  v_mul_u32_u24 v{tB}, 24, v{d}'); f_(f'  v_sub_u32 v{tA}, v{tA}, v{tB}')
    f_(f'  v_subrev_u32 v{tB}, 20, v{d}')
    f_(f'  v_cndmask_b32 v{d}, v{d}, v{tB}, {MSK}')
    f_(f'  v_bfe_u32 v{tB}, v{d}, 1, 3'); f_(f'  v_xor_b32 v{tA}, v{tA}, v{tB}')
    f_(f'  v_cndmask_b32 v{tB}, v{tC}, v{tD}, {MSK}')
    f_(f'  v_lshl_add_u32 v{tA}, v{tA}, 4, v{tB}')
    f_(f'  v_add_u32 v{d}, s{sKC}, v{d}'); f_(f'  v_max_i32 v{d}, 0, v{d}'); f_(f'  v_lshlrev_b32 v{d}, 1, v{d}')
    f_(f'  v_xor_b32 v{d}, s{sMC}, v{d}'); f_(f'  v_add_u32 v{d}, s{sAC}, v{d}')
    f_(f'  v_mul_u32_u24 v{d}, 384, v{d}'); f_(f'  v_add_u32 v{d}, v{d}, v{tA}')
f_(f'  s_add_u32 s{sM0X}, s{sM0X}, {XB}'); f_(f'  s_add_u32 s{sM0X3}, s{sM0X3}, {XB}')
for dst, add in ((sT[0], -2), (sA2, 0)):
    f_(f'  s_lshl_b32 s{dst}, s{sU}, 2')
    if add: f_(f'  s_add_i32 s{dst}, s{dst}, {add}'); f_(f'  s_max_i32 s{dst}, s{dst}, 0')
    f_(f'  s_add_i32 s{dst}, s{dst}, s{sTR}'); f_(f'  s_max_i32 s{dst}, s{dst}, 0'); f_(f'  s_sub_i32 s{dst}, s{dst}, s{sKR}')
f_(f'  s_sub_u32 s{sT[0]}, s{sA2}, s{sT[0]}'); f_(f'  s_lshr_b32 s{sT[0]}, s{sT[0]}, 1')
f_(f'  s_mul_i32 s{sD0}, s{sT[0]}, -8'); f_(f'  s_add_i32 s{sD0}, s{sD0}, 7')
f_(f'  s_add_i32 s{sA2}, s{sA2}, -1')
f_(f'  s_add_i32 s{sR0}, s{sA2}, s{sD0}'); f_(f'  s_mul_i32 s{sD0}, s{sD0}, {ROW}')
f_(f'  s_lshl_b32 s{sT[1]}, s{sH}, 2')
f_(f'  s_mul_i32 s{sT[0]}, s{sA2}, {ROW}'); f_(f'  s_add_i32 s{sT[0]}, s{sT[0]}, {XB}')
f_(f'  v_add_u32 v{tA}, s{sT[1]}, v{vn}')
f_(f'  v_bfe_u32 v{tB}, v{tA}, 1, 3'); f_(f'  v_xor_b32 v{tB}, v{tB}, v{vg}')
f_(f'  v_mul_u32_u24 v{tA}, 384, v{tA}'); f_(f'  v_lshl_add_u32 v{tA}, v{tB}, 4, v{tA}')
f_(f'  v_add_u32 v{vSe}, s{sT[0]}, v{tA}'); f_(f'  v_xor_b32 v{vSo}, 64, v{vSe}')
f_(f'  v_lshrrev_b32 v{tA}, 2, v{vn}'); f_(f'  v_lshl_add_u32 v{tA}, v{vg}, 2, v{tA}'); f_(f'  v_add_u32 v{tA}, s{sT[1]}, v{tA}')
f_(f'  v_bfe_u32 v{tB}, v{tA}, 1, 3')
f_(f'  v_and_b32 v{tC}, 2, v{vn}'); f_(f'  v_lshlrev_b32 v{tC}, 1, v{tC}'); f_(f'  v_xor_b32 v{tB}, v{tB}, v{tC}')
f_(f'  v_mul_u32_u24 v{tA}, 384, v{tA}'); f_(f'  v_lshl_add_u32 v{tA}, v{tB}, 4, v{tA}')
f_(f'  v_and_b32 v{tB}, 1, v{vn}'); f_(f'  v_lshl_add_u32 v{tA}, v{tB}, 3, v{tA}')
f_(f'  v_add_u32 v{vP[0]}, s{sT[0]}, v{tA}')
for k in range(1, 4): f_(f'  v_xor_b32 v{vP[k]}, {16*k}, v{vP[0]}')
f_(f'  v_lshl_add_u32 v{tA}, v{vg}, 2, s{sT[1]}'); f_(f'  v_sub_u32 v{vCT}, v{tA}, v{vCT}')
f_(f'  v_add_u32 v{SB0[0]}, s{sD0}, v{vSe}'); f_(f'  v_add_u32 v{SB0[1]}, s{sD0}, v{vSo}')
for k in range(4): f_(f'  v_add_u32 v{PB0[k]}, s{sD0}, v{vP[k]}')
f_(f'  s_mov_b32 s{sSC}, {SCALE}')
NPRE = opt('npre', 999)
el(F[:NPRE]); F = F[NPRE:]

def dma_x(G):
    out = []
    if G < 2: out += [f'  s_max_u32 s{sVO}, s{sGmin}, {G}', f'  s_mul_i32 s{sVO}, s{sVO}, s{sGS}']
    else: out.append(f'  s_mul_i32 s{sVO}, s{sGS}, {G}')
    out.append(f'  s_add_i32 s{sVO}, s{sVO}, s{sXB}')
    for j in range(4):
        out.append(f'  s_add_u32 m0, s{sM0X}, {G*15360 + j*1024}' if j < 3 else f'  s_add_u32 m0, s{sM0X3}, {G*15360}')
        out.append('  s_nop 0')
        out.append(f'  buffer_load_dwordx4 v{vD[j]}, {RX}, s{sVO} offen{NT} lds')
    return out
def dma_xs(Gs): return sum((dma_x(G) for G in Gs), [])
def bias_init(tmp):
    out = []; o = out.append
    cb, ninf, tt = tmp, tmp+4, tmp+5
    o(f'  v_mov_b32 v{ninf}, 0xff800000')
    for i in range(4): o(f'  v_add_u32 v{tt+i}, {i}, v{vCT}')
    for i in range(4): o(f'  v_cmp_gt_u32 s[{sT[2+2*i]}:{sT[3+2*i]}], 7, v{tt+i}')
    for i in range(4): o(f'  v_cndmask_b32 v{cb+i}, v{ninf}, 0, s[{sT[2+2*i]}:{sT[3+2*i]}]')
    for t in range(2):
        for j4 in range(2):
            for jj in range(4*j4, 4*j4+4):
                slot = jj + 2*t; r = tt + jj % 4
                if slot == 0: o(f'  v_sub_u32 v{r}, s{sR0}, v{vRR[t]}')
                else:
                    o(f'  s_add_i32 s{sT[0]}, s{sA2}, {slot-1}'); o(f'  v_sub_u32 v{r}, s{sT[0]}, v{vRR[t]}')
            for q in range(4): o(f'  v_cmp_gt_u32 s[{sT[2+2*q]}:{sT[3+2*q]}], 7, v{tt+q}')
            for jj in range(4*j4, 4*j4+4):
                q = jj % 4
                for i in range(4):
                    o(f'  v_cndmask_b32 v{SACC[t]+4*jj+i}, v{ninf}, v{cb+i}, s[{sT[2+2*q]}:{sT[3+2*q]}]')
    return out

tsp()
emit_pos('C')
tsp()
vLN = 107
def n_loads():
    e(f'  v_lshrrev_b32 v{vLN}, 4, v{vL0}')
    e(f'  s_cmp_lt_u32 s2, 72'); e('  s_cbranch_scc0 MK_np1')
    e(f'  s_mul_hi_u32 s{sT[8]}, s2, 0x15555556'); e(f'  s_lshl_b32 s{sT[8]}, s{sT[8]}, 6')
    e(f'  s_mul_i32 s{sT[9]}, s{sW}, {16*384}'); e(f'  s_add_u32 s{sVO}, s{sT[8]}, s{sT[9]}')
    e(f'  v_lshrrev_b32 v{MPK}, 2, v{vLN}'); e(f'  v_mul_u32_u24 v{MPK}, 384, v{MPK}'); e(f'  v_and_b32 v{MPK+1}, 3, v{vLN}'); e(f'  v_lshl_add_u32 v{MPK}, v{MPK+1}, 4, v{MPK}')
    e(f'  s_add_u32 m0, s{sWL}, {WOL}'); e('  s_nop 0')
    e(f'  buffer_load_dwordx4 v{MPK}, {RWO}, s{sVO} offen lds')
    e(f'  s_mul_i32 s{sT[9]}, s{sW4}, 6'); e(f'  s_add_u32 s{sVO}, s{sT[8]}, s{sT[9]}')
    e(f'  s_add_u32 m0, s{sW4}, {WOL + 8192}'); e(f'  s_add_u32 s{sVO}, s{sVO}, {8*16*384}')
    e(f'  buffer_load_dwordx4 v{MPK}, {RWO}, s{sVO} offen lds')
    e('MK_np1:')
    e(f'  s_sub_u32 s{sPROD}, s2, 72'); e(f'  s_lshr_b32 s{sPROD}, s{sPROD}, 31')
    e(f'  s_lshr_b32 s{sPROD}, s{sPROD}, s{sU}')
    e(f'  v_mov_b32 v{vNB}, 0')
    e(f'  s_cmp_eq_u32 s{sPROD}, 0'); e('  s_cbranch_scc1 MK_np3')
    e(f'  s_mul_hi_u32 s{sT[8]}, s2, 0x15555556'); e(f'  s_mul_i32 s{sT[9]}, s{sT[8]}, 12'); e(f'  s_sub_u32 s{sT[9]}, s2, s{sT[9]}')
    e(f'  s_and_b32 s{sT[5]}, s{sT[9]}, 1'); e(f'  s_lshr_b32 s{sT[9]}, s{sT[9]}, 1')
    e(f'  v_lshrrev_b32 v{MPK+2}, 2, v{vn}'); e(f'  v_and_b32 v{MPK+1}, 3, v{vn}')
    e(f'  v_lshl_add_u32 v{vNB}, v{vg}, 3, v{MPK+2}'); e(f'  v_lshlrev_b32 v{vNB}, 6, v{vNB}'); e(f'  v_lshl_add_u32 v{vNB}, v{MPK+1}, 4, v{vNB}')
    e(f'  s_lshl_b32 s{sT[5]}, s{sT[5]}, 3'); e(f'  s_add_u32 s{sT[5]}, s{sT[5]}, {WOL}'); e(f'  v_add_u32 v{vNB}, s{sT[5]}, v{vNB}')
    e(f'  s_lshr_b32 s{sT[8]}, s{sT[9]}, 1'); e(f'  s_lshl_b32 s{sT[8]}, s{sT[8]}, 6')
    e(f'  s_and_b32 s{sT[9]}, s{sT[9]}, 1'); e(f'  s_lshl_b32 s{sT[9]}, s{sT[9]}, 4'); e(f'  s_add_u32 s{sT[8]}, s{sT[8]}, s{sT[9]}')
    e(f'  v_lshrrev_b32 v{MPK}, 1, v{MPK+2}'); e(f'  v_lshlrev_b32 v{MPK}, 5, v{MPK}')
    e(f'  v_and_b32 v{MPK+2}, 1, v{MPK+2}'); e(f'  v_lshl_add_u32 v{MPK}, v{MPK+2}, 2, v{MPK}')
    e(f'  v_add3_u32 v{MPK}, v{MPK}, v{MPK+1}, s{sT[8]}')
    e(f'  v_mul_u32_u24 v{MPK}, 1152, v{MPK}'); e(f'  v_lshl_add_u32 v{vNA}, v{vg}, 4, v{MPK}')
    e(f'  s_mul_i32 s{sVO}, s{sH}, 9216')
    for kk in range(6):
        e(f'  buffer_load_dwordx4 {V(136+4*kk)}, v{vNA}, {RW}, s{sVO} offen offset:{768+64*kk}')
    e('MK_np3:')
def m_reads(kk):
    rb = 184 + 36*(kk % 2); co = (kk // 2) * 49152
    lo = co if co < 49152*2 else 0
    return ([f'  ds_read_b128 {V(rb+24+4*b)}, v{vMB[kk % 2]} offset:{2048*b}' for b in range(3)] +
            [f'  ds_read_b128 {V(rb+4*a)}, v{vMA[kk % 2]} offset:{2048*a}' for a in range(6)])
def chunk_sync(c, lg):
    wo_, wy_ = after('O', f'W{c}'), after('Y', f'W{c}')
    x = ' lgkmcnt(0)' if lg else ''
    def w(n, prod):
        if c != 1 or n == 63: return [f'  s_waitcnt vmcnt({n}){x}']
        lbl[0] += 1; k = lbl[0]; o = []
        if prod: o += [f'  s_cmp_lg_u32 s{sPROD}, 0', f'  s_cbranch_scc1 CA{k}']
        o += ['  s_cmp_lt_u32 s2, 72', f'  s_cbranch_scc1 CB{k}', f'  s_waitcnt vmcnt({n})', f'CB{k}:']
        if prod: o += [f'  s_waitcnt vmcnt({n+2})', f'CA{k}:', f'  s_waitcnt vmcnt({n+8}){x}']
        else: o += [f'  s_waitcnt vmcnt({n+2}){x}']
        return o
    if c == 2:
        wo_, wy_ = min(wo_, len(ISS['O']) - N_AT['O']), min(wy_, len(ISS['Y']) - N_AT['Y'])
    if wo_ == wy_: el(w(wo_, True))
    else: el(role2_lines(w(wo_, False), w(wy_, True)))
    e('  s_barrier')
    tsp()
N_AT = {}
FPG = opt('fpg', 4)
chunk_sync(0, False)
el(m_reads(0))
for kk in range(4):
    landed_all = False
    if kk % 2 == 1:
        chunk_sync(kk // 2 + 1, True); landed_all = True
        for r in vMA + vMB: e(f'  v_add_u32 v{r}, 49152, v{r}')
    extra = sched_items(str(kk)); ne = len(extra); cnt = 0
    rb = 184 + 36*(kk % 2)
    nx = m_reads(kk+1)
    issued = 0
    for a in range(6):
        if not landed_all: e(f'  s_waitcnt lgkmcnt({5 - a + issued})')
        for b in range(3):
            acc = MACC + 12*a + 4*b
            e(mfma(acc, rb+4*a, rb+24+4*b, None if kk == 0 else acc))
            slots = FPG
            if nx and b < 2 and (a >= 1 or landed_all):
                e(nx.pop(0)); issued += 1; slots -= 1
            cnt += 1
            while extra and (ne - len(extra)) * 18 < cnt * ne: emit_item(extra.pop(0)); slots = 0
            el(F[:slots]); F = F[slots:]
    assert not nx and not extra
    if kk == 0: n_loads(); N_AT.update(O=len(ISS['O']), Y=len(ISS['Y']))
print('leftover F', len(F), file=sys.stderr); el(F); F = []
assert ISS['Y'].count('q') <= 6
e(f'  s_cmp_eq_u32 s{sPROD}, 0'); e('  s_cbranch_scc1 MK_np2')
e('  s_waitcnt lgkmcnt(0)')
for k2 in range(6):
    for hf in range(2):
        e(f'  ds_read_b64_tr_b16 {V(MPK+4*k2+2*hf, 2)}, v{vNB} offset:{(32*k2 + 4*hf)*64}')
e('  s_setprio 3'); e('  s_waitcnt lgkmcnt(0)')
for kk in range(6):
    e(mfma(128, 136+4*kk, MPK+4*kk, None if kk == 0 else 128))
e(f'  s_lshl_b32 s{sVO}, s2, 10'); e(f'  s_lshl_b32 s{sT[8]}, s{sH}, 3'); e(f'  s_add_u32 s{sVO}, s{sVO}, s{sT[8]}')
e('  s_nop 5')
for r in range(2): e(f'  v_cvt_pk_bf16_f32 v{132+r}, v{128+2*r}, v{129+2*r}')
e(f'  buffer_store_dwordx2 v[132:133], v{vL0}, {RWS}, s{sVO} offen sc1')
NY_AT_STORE = len(ISS['Y'])
e('  s_setprio 0')
e('MK_np2:')
r5 = m_reads(5)
el(r5[:5]); late = r5[5:]
extra = sched_items('4'); ne = len(extra); cnt = 0
pend = []; nw = 0
for fi in range(9):
    a3, b = fi // 3, fi % 3
    if fi == 0: e('  s_waitcnt lgkmcnt(5)')
    for kk in (4, 5):
        rb = 184 + 36*(kk % 2)
        if fi == 0 and kk == 5: e('  s_waitcnt lgkmcnt(2)')
        if fi == 3 and kk == 5: e(f'  s_waitcnt lgkmcnt({nw})')
        for a in (2*a3, 2*a3+1):
            acc = MACC + 12*a + 4*b
            e(mfma(acc, rb+4*a, rb+24+4*b, acc)); cnt += 1
            if late: e(late.pop(0))
            k = 0
            while pend and pend[0][0] <= cnt and k < 2:
                l = pend.pop(0)[1]; e(l); k += 1
                if 'ds_write' in l: nw += 1
            while extra and (ne - len(extra)) * 36 < cnt * ne: emit_item(extra.pop(0))
    o = MPK + 4*(fi % 6)
    for a in range(2):
        acc = MACC + 12*(2*a3 + a) + 4*b
        for i in range(2): pend.append((cnt + 5, f'  v_cvt_pk_bf16_f32 v{o+2*a+i}, v{acc+2*i}, v{acc+2*i+1}'))
    pend.append((cnt + 5, f'  ds_write_b128 v{vMW[b]}, {V(o)} offset:{2048*(2-a3)}'))
assert not extra
tsp()
for i, (_, l) in enumerate(pend):
    if len(pend) - i == 5: e('  s_nop 3')
    e(l)
e('  s_waitcnt lgkmcnt(0)')
e('  s_barrier')
tsp()
NXY = opt('nxy', 3)
XH = (9, 8, 7, 6, 5)
y = [f'  s_cmp_eq_u32 s{sPROD}, 0', '  s_cbranch_scc1 MK_np4', f'  s_waitcnt vmcnt({len(ISS["Y"]) - NY_AT_STORE})', '  v_mov_b32 v23, 1', '  s_mov_b64 exec, 1',
     f'  buffer_atomic_add v23, off, {RDB}, 0 sc1', '  s_mov_b64 exec, -1', 'MK_np4:']
assert ('O', 'Z') not in PLAN
for t_, ls in PLAN.get(('Y', 'Z'), []): y += ls
y += dma_xs(XH[:NXY]) + [f'  s_waitcnt vmcnt({4*NXY})']
PRE_P1 = (['  s_waitcnt vmcnt(0)'], y)

stream = []; frags = []
def add_frag(reads, gate): frags.append(dict(reads=reads, gate=gate, uses=0)); return len(frags) - 1
def use(fid, fn): frags[fid]['uses'] += 1; stream.append(('mfma', fn, fid))
def mf(text): stream.append(('mfma', (lambda buf: text), None))
def raw(*lines):
    for l in lines: stream.append(('raw', l))
def fill(*lines):
    for l in lines: stream.append(('fill', l))
def flush(): stream.append(('flush',))
def need(fid): stream.append(('need', fid))
def gate(name): stream.append(('gate', name))
def role(r, lines): stream.append(('cond', role_lines(r, lines)))
def role2(lo, ly): stream.append(('cond', role2_lines(lo, ly)))
BAR = '  s_barrier'
def m_read(f):
    addr = (71-f)*1024
    if addr < HALF: return [f'  ds_read_b128 {{d4}}, v{vL0} offset:{addr}']
    return [f'  ds_read_b128 {{d4}}, v{vL1} offset:{addr-HALF}']
def n_addr(f): return NHI + 30720 + 1024*f if f < 30 else ((f-30)*1024 if f < 40 else NHI + (f-40)*1024)
def n_read(f):
    if f >= 70: return []
    a = n_addr(f)
    return [f'  ds_read_b128 {{d4}}, v{vL1} offset:{a-NHI}' if a >= NHI else f'  ds_read_b128 {{d4}}, v{vL0} offset:{a}']
def dma_n(a, b):
    out = []
    for f0 in range(a, b, 4):
        lim = (b - 1 - f0) * 1024; src = sW4
        if lim < 3072: out.append(f'  s_min_u32 s{sT[5]}, s{sW4}, {lim}'); src = sT[5]
        out += [f'  s_add_u32 m0, s{src}, {n_addr(f0)}', f'  s_add_u32 s{sVO}, s{src}, {f0*1024}',
                f'  buffer_load_dwordx4 v{vL0}, {RWS}, s{sVO} offen{NSC} lds']
    return out
def proj(B, rd, gate_of, post, hooks):
    for s in range(6):
        for ks in range(6):
            for hh in range(2):
                f = 12*s + 2*ks + hh
                fid = add_frag(rd(f), gate_of(f))
                if f in hooks: hooks[f](fid)
                for t in range(2):
                    acc = ACC + 16*(s % 2) + 8*t + 4*hh
                    fx = None if rd(f) else NREG + 4*(f-70)
                    use(fid, (lambda buf, acc=acc, t=t, ks=ks, fx=fx: mfma(acc, buf if fx is None else fx, B(t, ks), None if ks == 0 else acc)))
        flush()
        fill(*post(s))

gate('G0')
role2(PRE_P1[0], PRE_P1[1])
def p1_post(s):
    out = []
    for t in range(2):
        acc = ACC + 16*(s % 2) + 8*t
        for r in range(8): out.append(f'  v_mul_f32 v{acc+r}, s{sSC}, v{acc+r}')
        for r in range(4): out.append(f'  v_cvt_pk_bf16_f32 v{QP+24*t+4*s+r}, v{acc+2*r}, v{acc+2*r+1}')
    return out
proj(lambda t, ks: XQ+24*t+4*ks, m_read, lambda f: 'G0', p1_post,
     {31: lambda fid: (need(fid), role('Y', [BAR])),
      61: lambda fid: (need(fid), role('Y', ['  s_waitcnt vmcnt(0)', BAR]))})
flush()
raw(f'  v_add_u32 v{vL1}, {NHI}, v{vL0}')
for r in range(4): raw(f'  v_mov_b32 v{ONES+r}, 0x3f803f80')
POLL = f'  buffer_load_dword v13, off, {RDB}, 0 sc1'
PMODE = opt('pmode', 1)
role('O', dma_xs(XH[NXY:]) + [BAR] + dma_xs((4, 3, 2)))
raw(*bias_init(XQ))
role2(['  s_waitcnt vmcnt(12)', BAR] + dma_xs((1, 0)), [BAR])
for _ in range(opt('idle', 0)): raw('  s_sleep 8')
gate('S')
etn = [0]
def sm_fill(t, jj):
    tmp = ET + 4*(etn[0] % 5); etn[0] += 1
    acc = SACC[t] + 4*jj
    for i in range(4): fill(f'  v_exp_f32 v{tmp+i}, v{acc+i}')
    for i in range(2): fill(f'  v_cvt_pk_bf16_f32 v{PREG[t]+2*jj+i}, v{tmp+2*i}, v{tmp+2*i+1}')
    stream.append(('tag', f'P{t}_{jj}'))
def sum_mfmas(t):
    stream.append(('flushto', f'P{t}_0'))
    for kt in (3, 2, 1, 0): mf(mfma(SUM[t], ONES, PREG[t]+4*kt, None if kt == 3 else SUM[t]))
LO, HI = (127-30) << 23, (127+30) << 23
def check(t):
    raw(f'  v_subrev_u32 v{RI[1]}, {LO}, v{SUM[t]}')
    raw(f'  s_mov_b32 s{sT[6]}, {HI-LO}')
    raw(f'  v_cmp_gt_u32 s[{sT[2]}:{sT[3]}], s{sT[6]}, v{RI[1]}')
    raw(f'  s_or_b64 s[{sT[2]}:{sT[3]}], s[{sT[2]}:{sT[3]}], s[{sINV[t]}:{sINV[t]+1}]')
    raw(f'  s_cmp_eq_u64 s[{sT[2]}:{sT[3]}], -1')
    raw(f'  s_cbranch_scc0 FB{t}')
    raw(f'FBR{t}:')
pollw = [f'  s_mov_b32 s{sT[7]}, 0x400000', 'NPOLL:', '  s_waitcnt vmcnt(0)', f'  v_readfirstlane_b32 s{sT[0]}, v13', f'  s_sub_u32 s{sT[7]}, s{sT[7]}, 1',
         f'  s_cselect_b32 s{sT[0]}, 144, s{sT[0]}', f'  s_cmp_ge_u32 s{sT[0]}, 144', '  s_cbranch_scc1 NPOLLD', POLL, '  s_branch NPOLL', 'NPOLLD:']
ODMA = 'ydma' not in OPT
if not ODMA: pollw = [POLL.replace(' sc1', '')] + pollw
YP = {opt('y5a', 9): [BAR] + pollw + dma_n(0, 30) + dma_n(30, 40),
      opt('y5b', 12): ['  s_waitcnt vmcnt(0)', BAR] + dma_n(40, 70),
      opt('y6', 14): ['  s_waitcnt vmcnt(0)', BAR]}
assert len(YP) == 3
if ODMA: YP = {k: [BAR] for k in YP}
if 'yhi' in OPT: YP[opt('yhi', 0)] = YP.get(opt('yhi', 0), []) + ['  s_setprio 1']
O4B = opt('o4b', 6)
for k, slot in enumerate(range(9, -1, -1)):
    if k == 2:
        role2(['  s_waitcnt vmcnt(8)', BAR], [BAR]); gate('S2')
    if k == O4B: role('O', ['  s_waitcnt vmcnt(0)', BAR] + ([POLL.replace(' sc1', '')] if ODMA else []))
    if k in YP: role('Y', YP[k])
    for s in range(6):
        if slot == 0 and s == 3: sum_mfmas(1)
        if slot == 0: base, off = SB0[s % 2], 128*(s//2)
        else: base, off = (vSe, vSo)[s % 2], (slot-1)*ROW + 128*(s//2)
        fid = add_frag([f'  ds_read_b128 {{d4}}, v{base} offset:{off}'], 'S' if slot >= 6 else 'S2')
        for t in (1, 0):
            jj = slot - 2*t
            if 0 <= jj < 8:
                acc = SACC[t] + 4*jj
                use(fid, (lambda buf, acc=acc, t=t, s=s: mfma(acc, buf, QP+24*t+4*s, acc)))
    for t in (1, 0):
        jj = slot - 2*t
        if 0 <= jj < 8: sm_fill(t, jj)
check(1)
def ycvt(t, ks):
    return [f'  v_cvt_pk_bf16_f32 v{YB[t][ks]+2*hf+i}, v{YACC[t][2*ks+hf]+2*i}, v{YACC[t][2*ks+hf]+2*i+1}' for hf in range(2) for i in range(2)]
lastf = None
for k, st in enumerate(range(4, -1, -1)):
    if k == 1:
        sum_mfmas(0); check(0)
        for t in range(2): fill(f'  v_rcp_f32 v{RI[t]}, v{SUM[t]}')
    if k == 2: need(lastf); role('O', [BAR] + (pollw + dma_n(30, 40) + dma_n(0, 30) if ODMA else []))
    if 10 + k in YP: role('Y', YP[10 + k])
    if k == 4:
        for ks in range(6): fill(*ycvt(1, ks))
    for ct in range(12):
        tl = [t for t in (1, 0) if 0 <= st - t < 4]
        b_, e_ = ct // 4, ct % 4
        rd = []
        for hf in range(2):
            slot = 2*st + hf
            if slot == 0: base, off = PB0[e_], 128*b_
            else: base, off = vP[e_], (slot-1)*ROW + 128*b_
            rd.append(f'  ds_read_b64_tr_b16 {{d{"lo" if hf == 0 else "hi"}}}, v{base} offset:{off}')
        fid = add_frag(rd, 'S2'); lastf = fid
        if k == 4 and ct == opt('o5b', 6):
            stream.append(('needall', fid + 11 - ct)); role('O', ['  s_waitcnt vmcnt(0)', BAR] + dma_n(40, 70) if ODMA else [BAR]); gate('P4a')
        for t in tl:
            acc = YACC[t][ct]
            use(fid, (lambda buf, acc=acc, t=t, st=st: mfma(acc, buf, PREG[t]+4*(st-t), None if st - t == 3 else acc)))
flush()
for ks in range(6): raw(*ycvt(0, ks))
raw(f'  s_mov_b32 s{sVO}, {70*1024}')
if 15 in YP: role('Y', YP[15])
for i in range(2): raw(f'  buffer_load_dwordx4 {V(NREG+4*i)}, v{vL0}, {RWS}, s{sVO} offen offset:{1024*i} sc1')
def p4_post(s):
    out = []
    for t in range(2):
        acc = ACC + 16*(s % 2) + 8*t
        o = OUTR + 8*(s % 2) + 4*t
        for r in range(8): out.append(f'  v_mul_f32 v{acc+r}, v{acc+r}, v{RI[t]}')
        for r in range(4): out.append(f'  v_cvt_pk_bf16_f32 v{o+r}, v{acc+2*r}, v{acc+2*r+1}')
        out.append(f'  buffer_store_dwordx4 {V(o)}, v{vO[t]}, {RO}, 0 offen offset:{64*s}{NTO}')
    return out
proj(lambda t, ks: YB[t][ks], n_read, lambda f: 'P4a' if f < 40 else 'P4b', p4_post,
     {opt('o6', 24): lambda fid: (role('O', (['  s_waitcnt vmcnt(4)'] if ODMA else []) + [BAR]), gate('P4b')),
      60: lambda fid: raw('  s_waitcnt vmcnt(8)'),
      opt('ylo', 1): lambda fid: raw('  s_setprio 0') if 'yhi' in OPT else None})
flush()

def regs_of(tok):
    m = re.fullmatch(r'v\[(\d+):(\d+)\]', tok)
    if m: return list(range(int(m.group(1)), int(m.group(2)) + 1))
    m = re.fullmatch(r'-?v(\d+)', tok)
    return [int(m.group(1))] if m else []
def parse(line):
    p = line.strip().split(None, 1)
    op = p[0]; args = [a.strip().split()[0] for a in p[1].split(',')] if len(p) > 1 else []
    return op, args
clock = [0]
mf_w = {}; va_w = {}; tr_w = {}; mf_c = {}
def hazard(line):
    op, args = parse(line); need_ = 0
    allr = [r for a in args for r in regs_of(a)]
    if op.startswith('v_mfma'):
        for r in [r for a in args[1:] for r in regs_of(a)]:
            if r in va_w: need_ = max(need_, 2 - (clock[0] - va_w[r] - 1))
        for r in regs_of(args[1]) + regs_of(args[2]):
            if r in mf_w: need_ = max(need_, 8 - (clock[0] - mf_w[r] - 1))
    elif op.startswith('v_') or op.startswith('buffer_') or op.startswith('ds_'):
        for r in allr:
            if r in mf_w: need_ = max(need_, 8 - (clock[0] - mf_w[r] - 1))
        if op.startswith('v_'):
            for r in regs_of(args[0]):
                if r in mf_c: need_ = max(need_, 3 - (clock[0] - mf_c[r] - 1))
            for r in [r for a in args[1:] for r in regs_of(a)]:
                if r in tr_w: need_ = max(need_, 1 - (clock[0] - tr_w[r] - 1))
    return need_
def emit(line):
    if line.endswith(':'):
        e(line); return
    n = hazard(line)
    if n > 0:
        e(f'  s_nop {n-1}'); clock[0] += n
    op, args = parse(line)
    e(line)
    if op.startswith('v_mfma'):
        for r in regs_of(args[0]): mf_w[r] = clock[0]
        for r in regs_of(args[3]): mf_c[r] = clock[0]
    elif op.startswith('v_'):
        for r in regs_of(args[0]):
            va_w[r] = clock[0]; tr_w.pop(r, None)
            if op in ('v_exp_f32', 'v_rcp_f32'): tr_w[r] = clock[0]
    if op == 's_nop': clock[0] += int(args[0])
    clock[0] += 1

gates = set(); nxt = 0; done_uses = [0]*len(frags)
ops = []; landed = -1; half = [None]
fq = []
def buf_of(f): return ABUF + 4*(f % NB)
def issue_one():
    global nxt
    while True:
        if half[0] is not None:
            emit(half[0]); ops.append(nxt); half[0] = None; nxt += 1; return True
        if nxt >= len(frags): return False
        fr = frags[nxt]
        if fr['gate'] not in gates: return False
        if nxt >= NB and done_uses[nxt-NB] < frags[nxt-NB]['uses']: return False
        if not fr['reads']:
            nxt += 1; continue
        if len(ops) + len(fr['reads']) > (13 if TSM else 15): return False
        b = buf_of(nxt)
        rs = [r.format(d4=V(b), dlo=V(b, 2), dhi=V(b+2, 2)) for r in fr['reads']]
        emit(rs[0]); ops.append(nxt)
        if len(rs) == 2: half[0] = rs[1]
        else: nxt += 1
        return True
def wait_for(f, pair=True):
    global landed, ops
    if f is None or f <= landed: return
    while nxt <= f:
        n0 = nxt
        if not issue_one() and nxt == n0: raise RuntimeError(f'cannot issue frag {nxt}')
    if any(o <= f for o in ops):
        if pair and f + 1 < nxt and sum(1 for o in ops if o > f + 1) >= PAIRMIN: f = f + 1
        n = sum(1 for o in ops if o > f)
        emit(f'  s_waitcnt lgkmcnt({n})')
        ops = [o for o in ops if o > f]
    landed = f
nmf = [0]
BACKLOG = opt('backlog', 6); PAIRMIN = opt('pairmin', 5)
STREAM_NEXT = {}
mi = [i for i, x in enumerate(stream) if x[0] == 'mfma']
for a_, b_ in zip(mi, mi[1:]): STREAM_NEXT[a_] = stream[b_][2]
for si, ent in enumerate(stream):
    k = ent[0]
    if k == 'raw': emit(ent[1])
    elif k == 'fill': fq.append(ent[1])
    elif k == 'flush':
        for l in fq:
            if not l.startswith('#'): emit(l)
        fq = []
    elif k == 'tag': fq.append('#' + ent[1])
    elif k == 'flushto':
        if '#' + ent[1] in fq:
            i = fq.index('#' + ent[1])
            for l in fq[:i]:
                if not l.startswith('#'): emit(l)
            fq = fq[i+1:]
    elif k == 'gate':
        gates.add(ent[1])
        while issue_one(): pass
    elif k in ('need', 'needall'): wait_for(ent[1])
    elif k == 'cond':
        emit(ent[1][0]); el(ent[1][1:])
    elif k == 'mfma':
        wait_for(ent[2])
        if nmf[0] in TSM: e(ts_line())
        nmf[0] += 1
        emit(ent[1](buf_of(ent[2]) if ent[2] is not None else None))
        if ent[2] is not None: done_uses[ent[2]] += 1
        slots = 2
        nf = STREAM_NEXT.get(si)
        if nf is not None and nf > landed: slots -= 1
        ahead = nxt - (ent[2] if ent[2] is not None else landed)
        if issue_one(): slots -= 1
        if (half[0] is not None or (slots > 0 and (not fq or ahead < 6))) and issue_one(): slots -= 1
        if sum(1 for l in fq if 'v_exp' in l) > BACKLOG: slots = max(slots, 2)
        while fq:
            if fq[0].startswith('#'): fq.pop(0); continue
            cost = 2 if ('v_exp' in fq[0] or 'v_rcp' in fq[0]) else 1
            if slots < cost or hazard(fq[0]) > 0: break
            emit(fq.pop(0)); slots -= cost
if TS:
    e('  s_waitcnt vmcnt(0)')
    e(ts_line()); e('  s_memrealtime s[98:99]')
    e('  s_waitcnt lgkmcnt(0)')
    e(f'  s_lshl_b32 s{sT[0]}, s2, 3'); e(f'  s_add_u32 s{sT[0]}, s{sT[0]}, s{sW}'); e(f'  s_lshl_b32 s{sT[0]}, s{sT[0]}, 6')
    e(f'  s_add_u32 s{sT[0]}, s{sT[0]}, 0x100000')
    e('  v_mov_b32 v1, 0')
    for i in range(nts[0]):
        if i == 0: e(f'  v_mov_b32 v2, s{sTS}')
        else:
            e(f'  s_sub_u32 s{sT[1]}, s{sTS+2*i}, s{sTS}'); e(f'  v_mov_b32 v2, s{sT[1]}')
        e(f'  buffer_store_dword v2, v1, s[20:23], s{sT[0]} offen offset:{4*i}')
    e('  v_mov_b32 v2, s96'); e('  v_mov_b32 v3, s98')
    e(f'  buffer_store_dwordx2 v[2:3], v1, s[20:23], s{sT[0]} offen offset:56')
    print('timestamps', nts[0]); assert nts[0] <= 12
e('MK_done:')
e('  s_endpgm')
for t in range(2):
    R = SACC[t]; vm, vt = RI[0], RI[1]
    e(f'FB{t}:')
    e('  s_nop 7')
    e(f'  v_max3_f32 v{vm}, v{R}, v{R+1}, v{R+2}')
    for k in range(3, 31, 2): e(f'  v_max3_f32 v{vm}, v{vm}, v{R+k}, v{R+k+1}')
    e(f'  s_mov_b32 s{sT[6]}, 0xff7fffff')
    e(f'  v_max3_f32 v{vm}, v{vm}, v{R+31}, s{sT[6]}')
    for sw in ('v_permlane32_swap_b32', 'v_permlane16_swap_b32'):
        e(f'  v_mov_b32 v{vt}, v{vm}'); e('  s_nop 1'); e(f'  {sw} v{vm}, v{vt}'); e('  s_nop 1')
        e(f'  v_max_f32 v{vm}, v{vm}, v{vt}')
    for k in range(32): e(f'  v_sub_f32 v{R+k}, v{R+k}, v{vm}')
    for k in range(32): e(f'  v_exp_f32 v{R+k}, v{R+k}')
    e('  s_nop 0')
    for k in range(16): e(f'  v_cvt_pk_bf16_f32 v{PREG[t]+k}, v{R+2*k}, v{R+2*k+1}')
    e('  s_nop 1')
    for kt in range(4): e(mfma(SUM[t], ONES, PREG[t]+4*kt, None if kt == 0 else SUM[t]))
    e('  s_nop 7')
    e(f'  s_branch FBR{t}')
e('MK_end:')
e('.section .rodata,"a"')
e('.p2align 6'); e(f'.amdhsa_kernel {KN}')
e('  .amdhsa_next_free_vgpr 256'); e('  .amdhsa_next_free_sgpr 102'); e('  .amdhsa_accum_offset 256')
e('  .amdhsa_group_segment_fixed_size 0'); e('  .amdhsa_kernarg_size 48'); e('  .amdhsa_user_sgpr_count 2')
e('  .amdhsa_user_sgpr_kernarg_segment_ptr 1'); e('  .amdhsa_system_sgpr_workgroup_id_x 1')
e('.end_amdhsa_kernel')
if 'drop' in OPT:
    kinds = OPT['drop'].split(',')
    i0 = next(i for i, l in enumerate(L) if 'MK_np4:' in l)
    out = []; n = 0
    for i, l in enumerate(L):
        body = i > i0
        if 'mM' in kinds and not body and 'v_mfma' in l: l = '  s_nop 3'
        if 'exp' in kinds and 'v_exp' in l: l = l.replace('v_exp_f32', 'v_mov_b32')
        if 'lds' in kinds and body and 'ds_read_b128' in l:
            l = re.sub(r'ds_read_b128 v\[(\d+):\d+\]', lambda m: f'ds_read_b32 v{m.group(1)}', l)
        if 'tr' in kinds and body and 'ds_read_b64_tr' in l:
            l = re.sub(r'ds_read_b64_tr_b16 v\[(\d+):\d+\], v\d+', lambda m: f'ds_read_b32 v{m.group(1)}, v{vL0}', l)
        if 'mfma' in kinds and body and 'v_mfma' in l:
            n += 1
            if n % 2: l = '  s_nop 3'
        if 'nslab' in kinds and RWO in l and 'buffer_load' in l: l = '  s_nop 0'
        if 'nwv' in kinds and f'v{vNA}, {RW}' in l: l = '  s_nop 0'
        if 'ncomp' in kinds and 's_cbranch_scc1 MK_np2' in l: l = '  s_branch MK_np2'
        if 'st' in kinds and 'buffer_store_dwordx4' in l: l = '  s_nop 0'
        out.append(l)
    L = out
open(OUTF, 'w').write('\n'.join(L) + '\n')
```

```python
import sys, struct, math, re
OPT = dict(a.split('=') if '=' in a else (a, '1') for a in sys.argv[1:])
OUTF = OPT.get('out', 'standalone__neighborhood_nat__vision.s')
TS = 'ts' in OPT
TSM = [int(x) for x in OPT['tsm'].split(',')] if 'tsm' in OPT else []
TSP = 'tsp' in OPT
def opt(k, d): return int(OPT.get(k, d))
L = []
def e(s): L.append(s)
def el(ls):
    for l in ls: L.append(l)

X_BYTES = 19267584
WS_BYTES = 268435456
XB = 10240
ROW = 7680
HALF = 36864
NHI = XB + 12*ROW
WOL = 147456
SCALE = struct.unpack('<I', struct.pack('<f', (192 ** -0.5) * math.log2(math.e)))[0]
NT = ' nt' if 'nt' in OPT else ''
NSC = '' if 'nplain' in OPT else ' sc1'
NTO = ' ' + OPT.get('st', 'nt+sc1').replace('+', ' ')
KN = 'standalone__neighborhood_nat__vision_kernel'

hdr = open('standalone__neighborhood_nat__vision.s.ref').read().split('\n')
for ln in hdr:
    if ln.startswith('; @launch'): break
    e(ln)
e('; @launch grid=(256,1,1) block=(512,1,1) lds=163840')
e('.amdgcn_target "amdgcn-amd-amdhsa--gfx950"')
e('.text')

def srd(d, b, n):
    return [f'  s_mov_b32 s{d}, s{b}', f'  s_and_b32 s{d+1}, s{b+1}, 0xffff', f'  s_mov_b32 s{d+2}, {n}', f'  s_mov_b32 s{d+3}, 0x00020000']
def V(a, n=4): return f'v[{a}:{a+n-1}]'
def mfma(d, a, b, c):
    cs = '0' if c is None else V(c)
    return f'  v_mfma_f32_16x16x32_bf16 {V(d)}, {V(a)}, {V(b)}, {cs}'

vL0, vL1 = 1, 2
vO = (5, 6)
vSe, vSo = 7, 8
vP = (9, 10, 11, 12)
vD = (13, 14, 3, 4)
PB0 = (15, 16, 17, 18)
vCT = 19
SB0 = (20, 0)
vRR = (21, 22)
RI = (22, 23)
SACC = (24, 56); QP = 88; XQ = 136; ACC = 184
ABUF = 216; NB = 10
PREG = (136, 152)
YB = ([136, 140, 144, 148, 168, 172], [152, 156, 160, 164, 176, 180])
YACC = ([24+4*i for i in range(12)], [88+4*i for i in range(12)])
SUM = (184, 188); ONES = 192; ET = 196
OUTR = 24; NREG = 40
MACC = 24; MPK = 104
vWA = 96; vMA, vMB, vMW = (97, 98), (99, 100), (101, 102, 103)
vn, vg, tA, tB, tC, tD = 128, 129, 130, 131, 132, 133
vNB, vNA = 134, 135
sW, sU, sH, sPR, sPC, sKR, sKC, sXB, sGS, sGmin = range(24, 34)
sA2, sR0, sD0, sTR, sM0X, sM0X3, sW4, sWL = range(34, 42)
sINV = (42, 44)
sT = list(range(46, 60))
sMR, sAR, sMC, sAC = sT[10], sT[11], sT[12], sT[13]
sTS = 60
sPROD, sWB, sSC, sVO = 3, 92, 93, 100
RX, RO, RWS, RW, RWO, RDB = 's[12:15]', 's[16:19]', 's[20:23]', 's[88:91]', 's[4:7]', 's[8:11]'
MSK = f's[{sT[6]}:{sT[7]}]'
assert sT[6] % 2 == 0 and sT[2] % 2 == 0

nts = [0]
def ts_line():
    s = f'  s_memtime s[{sTS+2*nts[0]}:{sTS+2*nts[0]+1}]'; nts[0] += 1; return s
def tsp():
    if TSP: e(ts_line())

e(f'.globl {KN}'); e('.p2align 8'); e(f'.type {KN},@function'); e(f'{KN}:')
e('  s_cmp_ge_u32 s2, 256'); e('  s_cbranch_scc1 MK_done')
if TS: e(ts_line()); e('  s_memrealtime s[96:97]')
e('  s_load_dwordx8 s[4:11], s[0:1], 0')
e('  s_load_dwordx4 s[84:87], s[0:1], 32')
if 'nopf' not in OPT:
    e('  s_getpc_b64 s[12:13]'); e('MK_pc:')
    e('  s_and_b32 s13, s13, 0xffff'); e('  s_mov_b32 s14, MK_end-MK_pc'); e('  s_mov_b32 s15, 0x00020000')
    e('  v_lshlrev_b32 v23, 7, v0')
    e('  buffer_load_dword v255, v23, s[12:15], 0 offen')
e(f'  v_lshrrev_b32 v{tA}, 6, v0')
e('  v_and_b32 v0, 63, v0')
e(f'  v_readfirstlane_b32 s{sW}, v{tA}')
e(f'  v_and_b32 v{vn}, 15, v0'); e(f'  v_lshrrev_b32 v{vg}, 4, v0')
e(f'  v_lshrrev_b32 v{tA}, 5, v0'); e(f'  v_bfe_u32 v{tB}, v0, 3, 2'); e(f'  v_lshl_add_u32 v{tA}, v{tA}, 3, v{tB}')
e(f'  v_mul_u32_u24 v{tA}, 1152, v{tA}')
e(f'  s_and_b32 s{sH}, s{sW}, 1')
e(f'  s_lshl_b32 s{sT[0]}, s{sH}, 2')
e(f'  v_add_u32 v{tB}, s{sT[0]}, v{vg}'); e(f'  v_and_b32 v{tC}, 7, v0'); e(f'  v_xor_b32 v{tB}, v{tB}, v{tC}')
e(f'  v_lshl_add_u32 v{vWA}, v{tB}, 4, v{tA}')
e(f'  s_lshr_b32 s{sT[0]}, s{sW}, 2'); e(f'  s_lshl_b32 s{sT[0]}, s{sT[0]}, 5')
e(f'  s_lshl_b32 s{sT[1]}, s{sH}, 4'); e(f'  s_add_u32 s{sT[0]}, s{sT[0]}, s{sT[1]}')
e(f'  s_and_b32 s{sT[1]}, s{sW}, 2'); e(f'  s_lshl_b32 s{sT[1]}, s{sT[1]}, 1'); e(f'  s_add_u32 s{sT[0]}, s{sT[0]}, s{sT[1]}')
e(f'  s_mul_i32 s{sWB}, s{sT[0]}, 1152')
e(f'  s_lshl_b32 s{sWL}, s{sW}, 10')
e(f'  s_cmp_lt_u32 s{sW}, 4'); e('  s_cselect_b64 vcc, -1, 0')
e(f'  s_bfe_u32 s{sPR}, s2, 0x10002')
e(f'  s_bfe_u32 s{sPC}, s2, 0x10001')
e(f'  s_and_b32 s{sKR}, s2, 1'); e(f'  s_lshl_b32 s{sKR}, s{sKR}, 2')
e(f'  s_lshr_b32 s{sT[0]}, s2, 6'); e(f'  s_add_u32 s{sKR}, s{sKR}, s{sT[0]}')
e(f'  s_bfe_u32 s{sKC}, s2, 0x30003')
e(f'  s_mul_i32 s{sTR}, s{sKR}, 14'); e(f'  s_add_i32 s{sTR}, s{sTR}, -6'); e(f'  s_max_i32 s{sKR}, s{sTR}, -4')
e(f'  s_mul_i32 s{sKC}, s{sKC}, 14'); e(f'  s_add_i32 s{sKC}, s{sKC}, -6')
e(f'  s_lshr_b32 s{sU}, s{sW}, 1'); e(f'  s_add_u32 s{sU}, s{sU}, 2'); e(f'  s_and_b32 s{sU}, s{sU}, 3')
e(f'  s_sub_u32 s{sMR}, 0, s{sPR}'); e(f'  s_mul_i32 s{sAR}, s{sPR}, 224')
e(f'  s_sub_u32 s{sMC}, 0, s{sPC}'); e(f'  s_mul_i32 s{sAC}, s{sPC}, 224')
e(f'  v_and_b32 v{tA}, 7, v{vn}')
e(f'  s_mul_i32 s{sT[0]}, s{sH}, 7'); e(f'  s_add_i32 s{sT[0]}, s{sT[0]}, s{sKC}')
e(f'  v_cmp_lt_u32 s[{sT[2]}:{sT[3]}], 6, v{tA}')
e(f'  v_add_u32 v{tA}, s{sT[0]}, v{tA}')
e(f'  v_max_i32 v{vCT}, 0, v{tA}')
e(f'  v_add3_u32 v{tA}, v{tA}, v{vCT}, 6')
e(f'  v_xor_b32 v{tA}, s{sMC}, v{tA}'); e(f'  v_add_u32 v{tA}, s{sAC}, v{tA}')
e(f'  v_subrev_u32 v{vCT}, s{sKC}, v{vCT}')
e(f'  v_mul_u32_u24 v{tA}, 384, v{tA}'); e(f'  v_lshl_add_u32 v{tA}, v{vg}, 4, v{tA}')
e(f'  s_lshl_b32 s{sT[0]}, s{sU}, 2'); e(f'  s_add_i32 s{sT[0]}, s{sT[0]}, -2')
e(f'  s_mov_b32 s{sT[1]}, 86016')
e(f'  v_lshrrev_b32 v{tB}, 3, v{vn}'); e(f'  v_add_u32 v{tB}, s{sT[0]}, v{tB}')
e(f'  v_mov_b32 v{tC}, 0x80000000')
for t in range(2):
    if t: e(f'  v_add_u32 v{tB}, 2, v{tB}')
    e(f'  v_cmp_gt_i32 s[{sINV[t]}:{sINV[t]+1}], 0, v{tB}')
    e(f'  v_add_u32 v{vO[t]}, s{sTR}, v{tB}')
    e(f'  v_max_i32 v{vRR[t]}, 0, v{vO[t]}')
    e(f'  v_add3_u32 v{vO[t]}, v{vO[t]}, v{vRR[t]}, 6')
    e(f'  s_or_b64 s[{sINV[t]}:{sINV[t]+1}], s[{sINV[t]}:{sINV[t]+1}], s[{sT[2]}:{sT[3]}]')
    e(f'  v_xor_b32 v{vO[t]}, s{sMR}, v{vO[t]}'); e(f'  v_add_u32 v{vO[t]}, s{sAR}, v{vO[t]}')
    e(f'  v_subrev_u32 v{vRR[t]}, s{sKR}, v{vRR[t]}')
    e(f'  v_mad_u32_u24 v{vO[t]}, v{vO[t]}, s{sT[1]}, v{tA}')
    e(f'  v_cndmask_b32 v{vRR[t]}, v{vRR[t]}, v{tC}, s[{sINV[t]}:{sINV[t]+1}]')
    e(f'  v_cndmask_b32 v{vO[t]}, v{vO[t]}, v{tC}, s[{sINV[t]}:{sINV[t]+1}]')

e('  s_waitcnt lgkmcnt(0)')
tsp()
el(srd(88, 6, 192*576*2))
if 'notlb' not in OPT:
    e(f'  s_cmp_lg_u32 s{sW}, 5'); e('  s_cbranch_scc1 MK_ntlb')
    e(f'  s_max_i32 s{sT[0]}, s{sTR}, 0'); e(f'  s_lshl_b32 s{sT[0]}, s{sT[0]}, 1'); e(f'  s_sub_u32 s{sT[1]}, 184, s{sT[0]}')
    e(f'  s_cmp_eq_u32 s{sPR}, 0'); e(f'  s_cselect_b32 s{sT[0]}, s{sT[0]}, s{sT[1]}'); e(f'  s_mul_i32 s{sT[0]}, s{sT[0]}, 86016')
    for k in range(3):
        e(f'  s_load_dword s94, s[4:5], s{sT[0]}'); e(f'  s_load_dword s95, s[10:11], s{sT[0]}')
        if k < 2: e(f'  s_add_u32 s{sT[0]}, s{sT[0]}, {20*86016 - 64}')
    e(f'  s_load_dword s94, s[84:85], 128'); e(f'  s_load_dword s95, s[86:87], 0x20000')
    e('MK_ntlb:')

def w_pieces(c, partner=0):
    return [[f'  s_add_u32 m0, s{sWL}, {c*49152 + mat*24576 + j*8192 + partner*4096}',
             f'  s_add_u32 s{sVO}, s{sWB}, {(j*64 + partner*32)*1152 + mat*384 + c*128}',
             f'  buffer_load_dwordx4 v{vWA}, {RW}, s{sVO} offen lds'] for mat in range(2) for j in range(3)]
def q_loads():
    return [f'  buffer_load_dwordx4 {V(XQ+24*t+4*s_)}, v{vO[t]}, {RX}, 0 offen offset:{64*s_}{NT}' for t in (1, 0) for s_ in range(6)]
SCH = {'O': OPT.get('so', 'A:W0,C:W1,0:W2,3:q4,4:q8'), 'Y': OPT.get('sy', 'A:W0,C:W1,0:W2,1:q6,2:q6')}
PLAN = {}; ISS = {'O': [], 'Y': []}
for r_, sp in SCH.items():
    qi = 0
    for part in sp.split(','):
        pos, items = part.split(':')
        for it in items.split('+'):
            lst = PLAN.setdefault((r_, pos), [])
            if it[0] == 'W': lst += [(f'W{it[1]}', p) for p in w_pieces(int(it[1]))]
            elif it[0] == 'V': lst += [(f'W{it[1]}', p) for p in w_pieces(int(it[1]), 1)]
            elif it in 'pr':
                assert pos == 'A'
                lst.append(('t', [f'  v_min_u32 v253, 2, v{vg}', f'  v_mad_u32_u24 v253, v253, s{sT[8]}, v{vO[1 if it == "p" else 0]}',
                                  f'  buffer_load_dword v{252 if it == "p" else 251}, v253, {RX}, 0 offen']))
            else:
                for _ in range(int(it[1:])):
                    if r_ == 'Y' and qi >= 6: lst.append(('b', [f'  s_cmp_eq_u32 s{sU}, 0', f'  s_cbranch_scc1 QB{qi}', q_loads()[qi], f'QB{qi}:']))
                    else: lst.append(('q', [q_loads()[qi]]))
                    qi += 1
    assert qi == 12
lbl = [0]
def role_lines(r_, lines):
    lbl[0] += 1
    return [f'  s_cbranch_vcc{"z" if r_ == "O" else "nz"} SL{lbl[0]}'] + list(lines) + [f'SL{lbl[0]}:']
def role2_lines(lo, ly):
    lbl[0] += 1; n = lbl[0]
    return [f'  s_cbranch_vccz SL{n}'] + list(lo) + [f'  s_branch SM{n}', f'SL{n}:'] + list(ly) + [f'SM{n}:']
def sched_items(pos):
    o, y = list(PLAN.get(('O', pos), [])), list(PLAN.get(('Y', pos), []))
    out = []
    while o or y: out.append((o.pop(0) if o else None, y.pop(0) if y else None))
    return out
def emit_item(it):
    o, y = it
    if o: ISS['O'].append(o[0])
    if y: ISS['Y'].append(y[0])
    if o and y and o == y: el(o[1])
    elif o and y: el(role2_lines(o[1], y[1]))
    elif o: el(role_lines('O', o[1]))
    else: el(role_lines('Y', y[1]))
def emit_pos(pos):
    o, y = PLAN.get(('O', pos), []), PLAN.get(('Y', pos), [])
    k = 0
    while k < len(o) and k < len(y) and o[k] == y[k]: emit_item((o[k], y[k])); k += 1
    for r_, x in (('O', o[k:]), ('Y', y[k:])):
        if x:
            ISS[r_] += [i[0] for i in x]; el(role_lines(r_, sum((i[1] for i in x), [])))
def after(r_, tag):
    l = ISS[r_]
    if tag not in l: return 63
    return min(63, len(l) - 1 - max(i for i, t in enumerate(l) if t == tag))

if 'nowpf' not in OPT:
    e(f'  s_cmp_lt_u32 s{sW}, 6'); e('  s_cbranch_scc1 MK_nwpf')
    e(f'  s_cmp_eq_u32 s{sW}, 6'); e(f'  s_cselect_b32 s{sT[0]}, 54, 18')
    e('  s_cselect_b32 s12, s6, s8'); e('  s_cselect_b32 s13, s7, s9'); e('  s_and_b32 s13, s13, 0xffff')
    e(f'  s_lshr_b32 s{sT[1]}, s2, 3'); e(f'  s_mul_i32 s{sT[1]}, s{sT[1]}, s{sT[0]}'); e(f'  s_lshl_b32 s{sVO}, s{sT[1]}, 7')
    e(f'  s_lshl_b32 s{sT[0]}, s{sT[0]}, 7'); e(f'  s_add_u32 s14, s{sVO}, s{sT[0]}'); e('  s_mov_b32 s15, 0x00020000')
    e('  v_lshlrev_b32 v23, 7, v0')
    e(f'  buffer_load_dword v254, v23, s[12:15], s{sVO} offen')
    e('MK_nwpf:')
el(srd(12, 4, X_BYTES))
e(f'  s_movk_i32 s{sT[8]}, 112')
emit_pos('A')
emit_pos('B')
tsp()
el(srd(16, 10, X_BYTES)); el(srd(4, 8, 192*192*2)); el(srd(8, 84, 256)); el(srd(20, 86, WS_BYTES if TS else 73728))
e(f'  v_lshlrev_b32 v{vL0}, 4, v0')
e(f'  v_add_u32 v{vL1}, {HALF}, v{vL0}')
e(f'  s_and_b32 s{sW4}, s{sW}, 3'); e(f'  s_lshl_b32 s{sW4}, s{sW4}, 10')
e(f'  v_bfe_u32 v{tA}, v{vn}, 1, 3'); e(f'  v_xor_b32 v{tA}, v{tA}, v{vg}')
e(f'  v_lshlrev_b32 v{tB}, 7, v{vn}'); e(f'  v_lshl_add_u32 v{tB}, v{tA}, 4, v{tB}')
e(f'  s_lshr_b32 s{sT[0]}, s{sW}, 2'); e(f'  s_mul_i32 s{sT[1]}, s{sT[0]}, {6*2048}')
e(f'  v_add_u32 v{vMA[0]}, s{sT[1]}, v{tB}'); e(f'  v_xor_b32 v{vMA[1]}, 64, v{vMA[0]}')
e(f'  s_mul_i32 s{sT[1]}, s{sW4}, 6'); e(f'  s_add_u32 s{sT[1]}, s{sT[1]}, 24576')
e(f'  v_add_u32 v{vMB[0]}, s{sT[1]}, v{tB}'); e(f'  v_xor_b32 v{vMB[1]}, 64, v{vMB[0]}')
F = []; f_ = F.append
f_(f'  s_lshr_b32 s{sT[0]}, s{sW}, 2'); f_(f'  s_mul_i32 s{sT[0]}, s{sT[0]}, 6'); f_(f'  s_sub_u32 s{sT[0]}, 67, s{sT[0]}')
f_(f'  s_and_b32 s{sT[1]}, s{sW}, 3'); f_(f'  s_mul_i32 s{sT[1]}, s{sT[1]}, 3')
for b in range(3):
    f_(f'  s_add_u32 s{sT[2]}, s{sT[1]}, {b}')
    f_(f'  s_lshr_b32 s{sT[3]}, s{sT[2]}, 1'); f_(f'  s_mul_i32 s{sT[3]}, s{sT[3]}, 10')
    f_(f'  s_add_u32 s{sT[2]}, s{sT[2]}, s{sT[3]}')
    f_(f'  s_sub_u32 s{sT[2]}, s{sT[0]}, s{sT[2]}'); f_(f'  s_lshl_b32 s{sT[2]}, s{sT[2]}, 10')
    f_(f'  v_add_u32 v{vMW[b]}, s{sT[2]}, v{vL0}')
f_(f'  s_lshl_b32 s{sT[0]}, s{sKR}, 1'); f_(f'  s_xor_b32 s{sT[0]}, s{sT[0]}, s{sMR}')
f_(f'  s_mul_i32 s{sT[1]}, s{sPR}, 222'); f_(f'  s_add_i32 s{sXB}, s{sT[0]}, s{sT[1]}')
f_(f'  s_mul_i32 s{sXB}, s{sXB}, 86016')
f_(f'  s_mul_i32 s{sGS}, s{sPR}, {-2*344064}'); f_(f'  s_add_i32 s{sGS}, s{sGS}, 344064')
f_(f'  s_lshr_b32 s{sGmin}, s{sKR}, 31'); f_(f'  s_lshl_b32 s{sGmin}, s{sGmin}, 1')
f_(f'  s_lshl_b32 s{sM0X}, s{sW4}, 2')
f_(f'  s_add_u32 s{sM0X3}, s{sM0X}, 3072'); f_(f'  s_min_u32 s{sM0X3}, s{sM0X3}, {14*1024}')
f_(f'  s_mul_i32 s{sT[2]}, s{sPR}, 172032'); f_(f'  s_sub_u32 s{sT[3]}, 172032, s{sT[2]}')
f_(f'  v_mov_b32 v{tC}, s{sT[2]}'); f_(f'  v_mov_b32 v{tD}, s{sT[3]}')
for b in range(960): assert (b * 2731) >> 16 == b // 24
for j in range(4):
    d = vD[j]
    if j < 3:
        f_(f'  s_lshr_b32 s{sT[0]}, s{sM0X}, 4'); f_(f'  s_add_u32 s{sT[0]}, s{sT[0]}, {64*j}')
    else: f_(f'  s_lshr_b32 s{sT[0]}, s{sM0X3}, 4')
    f_(f'  v_add_u32 v{tA}, s{sT[0]}, v0')
    f_(f'  v_mul_u32_u24 v{d}, 2731, v{tA}'); f_(f'  v_lshrrev_b32 v{d}, 16, v{d}')
    f_(f'  v_cmp_le_u32 {MSK}, 20, v{d}')
    f_(f'  v_mul_u32_u24 v{tB}, 24, v{d}'); f_(f'  v_sub_u32 v{tA}, v{tA}, v{tB}')
    f_(f'  v_subrev_u32 v{tB}, 20, v{d}')
    f_(f'  v_cndmask_b32 v{d}, v{d}, v{tB}, {MSK}')
    f_(f'  v_bfe_u32 v{tB}, v{d}, 1, 3'); f_(f'  v_xor_b32 v{tA}, v{tA}, v{tB}')
    f_(f'  v_cndmask_b32 v{tB}, v{tC}, v{tD}, {MSK}')
    f_(f'  v_lshl_add_u32 v{tA}, v{tA}, 4, v{tB}')
    f_(f'  v_add_u32 v{d}, s{sKC}, v{d}'); f_(f'  v_max_i32 v{d}, 0, v{d}'); f_(f'  v_lshlrev_b32 v{d}, 1, v{d}')
    f_(f'  v_xor_b32 v{d}, s{sMC}, v{d}'); f_(f'  v_add_u32 v{d}, s{sAC}, v{d}')
    f_(f'  v_mul_u32_u24 v{d}, 384, v{d}'); f_(f'  v_add_u32 v{d}, v{d}, v{tA}')
f_(f'  s_add_u32 s{sM0X}, s{sM0X}, {XB}'); f_(f'  s_add_u32 s{sM0X3}, s{sM0X3}, {XB}')
for dst, add in ((sT[0], -2), (sA2, 0)):
    f_(f'  s_lshl_b32 s{dst}, s{sU}, 2')
    if add: f_(f'  s_add_i32 s{dst}, s{dst}, {add}'); f_(f'  s_max_i32 s{dst}, s{dst}, 0')
    f_(f'  s_add_i32 s{dst}, s{dst}, s{sTR}'); f_(f'  s_max_i32 s{dst}, s{dst}, 0'); f_(f'  s_sub_i32 s{dst}, s{dst}, s{sKR}')
f_(f'  s_sub_u32 s{sT[0]}, s{sA2}, s{sT[0]}'); f_(f'  s_lshr_b32 s{sT[0]}, s{sT[0]}, 1')
f_(f'  s_mul_i32 s{sD0}, s{sT[0]}, -8'); f_(f'  s_add_i32 s{sD0}, s{sD0}, 7')
f_(f'  s_add_i32 s{sA2}, s{sA2}, -1')
f_(f'  s_add_i32 s{sR0}, s{sA2}, s{sD0}'); f_(f'  s_mul_i32 s{sD0}, s{sD0}, {ROW}')
f_(f'  s_lshl_b32 s{sT[1]}, s{sH}, 2')
f_(f'  s_mul_i32 s{sT[0]}, s{sA2}, {ROW}'); f_(f'  s_add_i32 s{sT[0]}, s{sT[0]}, {XB}')
f_(f'  v_add_u32 v{tA}, s{sT[1]}, v{vn}')
f_(f'  v_bfe_u32 v{tB}, v{tA}, 1, 3'); f_(f'  v_xor_b32 v{tB}, v{tB}, v{vg}')
f_(f'  v_mul_u32_u24 v{tA}, 384, v{tA}'); f_(f'  v_lshl_add_u32 v{tA}, v{tB}, 4, v{tA}')
f_(f'  v_add_u32 v{vSe}, s{sT[0]}, v{tA}'); f_(f'  v_xor_b32 v{vSo}, 64, v{vSe}')
f_(f'  v_lshrrev_b32 v{tA}, 2, v{vn}'); f_(f'  v_lshl_add_u32 v{tA}, v{vg}, 2, v{tA}'); f_(f'  v_add_u32 v{tA}, s{sT[1]}, v{tA}')
f_(f'  v_bfe_u32 v{tB}, v{tA}, 1, 3')
f_(f'  v_and_b32 v{tC}, 2, v{vn}'); f_(f'  v_lshlrev_b32 v{tC}, 1, v{tC}'); f_(f'  v_xor_b32 v{tB}, v{tB}, v{tC}')
f_(f'  v_mul_u32_u24 v{tA}, 384, v{tA}'); f_(f'  v_lshl_add_u32 v{tA}, v{tB}, 4, v{tA}')
f_(f'  v_and_b32 v{tB}, 1, v{vn}'); f_(f'  v_lshl_add_u32 v{tA}, v{tB}, 3, v{tA}')
f_(f'  v_add_u32 v{vP[0]}, s{sT[0]}, v{tA}')
for k in range(1, 4): f_(f'  v_xor_b32 v{vP[k]}, {16*k}, v{vP[0]}')
f_(f'  v_lshl_add_u32 v{tA}, v{vg}, 2, s{sT[1]}'); f_(f'  v_sub_u32 v{vCT}, v{tA}, v{vCT}')
f_(f'  v_add_u32 v{SB0[0]}, s{sD0}, v{vSe}'); f_(f'  v_add_u32 v{SB0[1]}, s{sD0}, v{vSo}')
for k in range(4): f_(f'  v_add_u32 v{PB0[k]}, s{sD0}, v{vP[k]}')
f_(f'  s_mov_b32 s{sSC}, {SCALE}')
NPRE = opt('npre', 999)
el(F[:NPRE]); F = F[NPRE:]

def dma_x(G):
    out = []
    if G < 2: out += [f'  s_max_u32 s{sVO}, s{sGmin}, {G}', f'  s_mul_i32 s{sVO}, s{sVO}, s{sGS}']
    else: out.append(f'  s_mul_i32 s{sVO}, s{sGS}, {G}')
    out.append(f'  s_add_i32 s{sVO}, s{sVO}, s{sXB}')
    for j in range(4):
        out.append(f'  s_add_u32 m0, s{sM0X}, {G*15360 + j*1024}' if j < 3 else f'  s_add_u32 m0, s{sM0X3}, {G*15360}')
        out.append('  s_nop 0')
        out.append(f'  buffer_load_dwordx4 v{vD[j]}, {RX}, s{sVO} offen{NT} lds')
    return out
def dma_xs(Gs): return sum((dma_x(G) for G in Gs), [])
def bias_init(tmp):
    out = []; o = out.append
    cb, ninf, tt = tmp, tmp+4, tmp+5
    o(f'  v_mov_b32 v{ninf}, 0xff800000')
    for i in range(4): o(f'  v_add_u32 v{tt+i}, {i}, v{vCT}')
    for i in range(4): o(f'  v_cmp_gt_u32 s[{sT[2+2*i]}:{sT[3+2*i]}], 7, v{tt+i}')
    for i in range(4): o(f'  v_cndmask_b32 v{cb+i}, v{ninf}, 0, s[{sT[2+2*i]}:{sT[3+2*i]}]')
    for t in range(2):
        for j4 in range(2):
            for jj in range(4*j4, 4*j4+4):
                slot = jj + 2*t; r = tt + jj % 4
                if slot == 0: o(f'  v_sub_u32 v{r}, s{sR0}, v{vRR[t]}')
                else:
                    o(f'  s_add_i32 s{sT[0]}, s{sA2}, {slot-1}'); o(f'  v_sub_u32 v{r}, s{sT[0]}, v{vRR[t]}')
            for q in range(4): o(f'  v_cmp_gt_u32 s[{sT[2+2*q]}:{sT[3+2*q]}], 7, v{tt+q}')
            for jj in range(4*j4, 4*j4+4):
                q = jj % 4
                for i in range(4):
                    o(f'  v_cndmask_b32 v{SACC[t]+4*jj+i}, v{ninf}, v{cb+i}, s[{sT[2+2*q]}:{sT[3+2*q]}]')
    return out

tsp()
emit_pos('C')
tsp()
vLN = 107
def n_loads():
    e(f'  v_lshrrev_b32 v{vLN}, 4, v{vL0}')
    e(f'  s_cmp_lt_u32 s2, 72'); e('  s_cbranch_scc0 MK_np1')
    e(f'  s_mul_hi_u32 s{sT[8]}, s2, 0x15555556'); e(f'  s_lshl_b32 s{sT[8]}, s{sT[8]}, 6')
    e(f'  s_mul_i32 s{sT[9]}, s{sW}, {16*384}'); e(f'  s_add_u32 s{sVO}, s{sT[8]}, s{sT[9]}')
    e(f'  v_lshrrev_b32 v{MPK}, 2, v{vLN}'); e(f'  v_mul_u32_u24 v{MPK}, 384, v{MPK}'); e(f'  v_and_b32 v{MPK+1}, 3, v{vLN}'); e(f'  v_lshl_add_u32 v{MPK}, v{MPK+1}, 4, v{MPK}')
    e(f'  s_add_u32 m0, s{sWL}, {WOL}'); e('  s_nop 0')
    e(f'  buffer_load_dwordx4 v{MPK}, {RWO}, s{sVO} offen lds')
    e(f'  s_mul_i32 s{sT[9]}, s{sW4}, 6'); e(f'  s_add_u32 s{sVO}, s{sT[8]}, s{sT[9]}')
    e(f'  s_add_u32 m0, s{sW4}, {WOL + 8192}'); e(f'  s_add_u32 s{sVO}, s{sVO}, {8*16*384}')
    e(f'  buffer_load_dwordx4 v{MPK}, {RWO}, s{sVO} offen lds')
    e('MK_np1:')
    e(f'  s_sub_u32 s{sPROD}, s2, 72'); e(f'  s_lshr_b32 s{sPROD}, s{sPROD}, 31')
    e(f'  s_lshr_b32 s{sPROD}, s{sPROD}, s{sU}')
    e(f'  v_mov_b32 v{vNB}, 0')
    e(f'  s_cmp_eq_u32 s{sPROD}, 0'); e('  s_cbranch_scc1 MK_np3')
    e(f'  s_mul_hi_u32 s{sT[8]}, s2, 0x15555556'); e(f'  s_mul_i32 s{sT[9]}, s{sT[8]}, 12'); e(f'  s_sub_u32 s{sT[9]}, s2, s{sT[9]}')
    e(f'  s_and_b32 s{sT[5]}, s{sT[9]}, 1'); e(f'  s_lshr_b32 s{sT[9]}, s{sT[9]}, 1')
    e(f'  v_lshrrev_b32 v{MPK+2}, 2, v{vn}'); e(f'  v_and_b32 v{MPK+1}, 3, v{vn}')
    e(f'  v_lshl_add_u32 v{vNB}, v{vg}, 3, v{MPK+2}'); e(f'  v_lshlrev_b32 v{vNB}, 6, v{vNB}'); e(f'  v_lshl_add_u32 v{vNB}, v{MPK+1}, 4, v{vNB}')
    e(f'  s_lshl_b32 s{sT[5]}, s{sT[5]}, 3'); e(f'  s_add_u32 s{sT[5]}, s{sT[5]}, {WOL}'); e(f'  v_add_u32 v{vNB}, s{sT[5]}, v{vNB}')
    e(f'  s_lshr_b32 s{sT[8]}, s{sT[9]}, 1'); e(f'  s_lshl_b32 s{sT[8]}, s{sT[8]}, 6')
    e(f'  s_and_b32 s{sT[9]}, s{sT[9]}, 1'); e(f'  s_lshl_b32 s{sT[9]}, s{sT[9]}, 4'); e(f'  s_add_u32 s{sT[8]}, s{sT[8]}, s{sT[9]}')
    e(f'  v_lshrrev_b32 v{MPK}, 1, v{MPK+2}'); e(f'  v_lshlrev_b32 v{MPK}, 5, v{MPK}')
    e(f'  v_and_b32 v{MPK+2}, 1, v{MPK+2}'); e(f'  v_lshl_add_u32 v{MPK}, v{MPK+2}, 2, v{MPK}')
    e(f'  v_add3_u32 v{MPK}, v{MPK}, v{MPK+1}, s{sT[8]}')
    e(f'  v_mul_u32_u24 v{MPK}, 1152, v{MPK}'); e(f'  v_lshl_add_u32 v{vNA}, v{vg}, 4, v{MPK}')
    e(f'  s_mul_i32 s{sVO}, s{sH}, 9216')
    for kk in range(6):
        e(f'  buffer_load_dwordx4 {V(136+4*kk)}, v{vNA}, {RW}, s{sVO} offen offset:{768+64*kk}')
    e('MK_np3:')
def m_reads(kk):
    rb = 184 + 36*(kk % 2); co = (kk // 2) * 49152
    lo = co if co < 49152*2 else 0
    return ([f'  ds_read_b128 {V(rb+24+4*b)}, v{vMB[kk % 2]} offset:{2048*b}' for b in range(3)] +
            [f'  ds_read_b128 {V(rb+4*a)}, v{vMA[kk % 2]} offset:{2048*a}' for a in range(6)])
def chunk_sync(c, lg):
    wo_, wy_ = after('O', f'W{c}'), after('Y', f'W{c}')
    x = ' lgkmcnt(0)' if lg else ''
    def w(n, prod):
        if c == 2 and prod and ISS['Y'].count('b'):
            return [f'  s_cmp_lg_u32 s{sU}, 0', '  s_cbranch_scc1 MK_c2', f'  s_waitcnt vmcnt({n - ISS["Y"].count("b")})', 'MK_c2:', f'  s_waitcnt vmcnt({n}){x}']
        if c != 1 or n == 63: return [f'  s_waitcnt vmcnt({n}){x}']
        lbl[0] += 1; k = lbl[0]; o = []
        if prod: o += [f'  s_cmp_lg_u32 s{sPROD}, 0', f'  s_cbranch_scc1 CA{k}']
        o += ['  s_cmp_lt_u32 s2, 72', f'  s_cbranch_scc1 CB{k}', f'  s_waitcnt vmcnt({n})', f'CB{k}:']
        if prod: o += [f'  s_waitcnt vmcnt({n+2})', f'CA{k}:', f'  s_waitcnt vmcnt({n+8}){x}']
        else: o += [f'  s_waitcnt vmcnt({n+2}){x}']
        return o
    if c == 2:
        wo_, wy_ = min(wo_, len(ISS['O']) - N_AT['O']), min(wy_, len(ISS['Y']) - N_AT['Y'])
    if wo_ == wy_ and c != 2: el(w(wo_, True))
    else: el(role2_lines(w(wo_, False), w(wy_, True)))
    e('  s_barrier')
    tsp()
N_AT = {}
FPG = opt('fpg', 4)
chunk_sync(0, False)
el(m_reads(0))
for kk in range(4):
    landed_all = False
    if kk % 2 == 1:
        chunk_sync(kk // 2 + 1, True); landed_all = True
        for r in vMA + vMB: e(f'  v_add_u32 v{r}, 49152, v{r}')
    extra = sched_items(str(kk)); ne = len(extra); cnt = 0
    rb = 184 + 36*(kk % 2)
    nx = m_reads(kk+1)
    issued = 0
    for a in range(6):
        if not landed_all: e(f'  s_waitcnt lgkmcnt({5 - a + issued})')
        for b in range(3):
            acc = MACC + 12*a + 4*b
            e(mfma(acc, rb+4*a, rb+24+4*b, None if kk == 0 else acc))
            slots = FPG
            if nx and b < 2 and (a >= 1 or landed_all):
                e(nx.pop(0)); issued += 1; slots -= 1
            cnt += 1
            while extra and (ne - len(extra)) * 18 < cnt * ne: emit_item(extra.pop(0)); slots = 0
            el(F[:slots]); F = F[slots:]
    assert not nx and not extra
    if kk == 0: n_loads(); N_AT.update(O=len(ISS['O']), Y=len(ISS['Y']))
print('leftover F', len(F), file=sys.stderr); el(F); F = []
assert ISS['Y'].count('q') <= 6
e(f'  s_cmp_eq_u32 s{sPROD}, 0'); e('  s_cbranch_scc1 MK_np2')
e('  s_waitcnt lgkmcnt(0)')
for k2 in range(6):
    for hf in range(2):
        e(f'  ds_read_b64_tr_b16 {V(MPK+4*k2+2*hf, 2)}, v{vNB} offset:{(32*k2 + 4*hf)*64}')
e('  s_setprio 3'); e('  s_waitcnt lgkmcnt(0)')
for kk in range(6):
    e(mfma(128, 136+4*kk, MPK+4*kk, None if kk == 0 else 128))
e(f'  s_lshl_b32 s{sVO}, s2, 10'); e(f'  s_lshl_b32 s{sT[8]}, s{sH}, 3'); e(f'  s_add_u32 s{sVO}, s{sVO}, s{sT[8]}')
e('  s_nop 5')
for r in range(2): e(f'  v_cvt_pk_bf16_f32 v{132+r}, v{128+2*r}, v{129+2*r}')
e(f'  buffer_store_dwordx2 v[132:133], v{vL0}, {RWS}, s{sVO} offen sc1')
NY_AT_STORE = len(ISS['Y'])
e('  s_setprio 0')
e('MK_np2:')
r5 = m_reads(5)
el(r5[:5]); late = r5[5:]
extra = sched_items('4'); ne = len(extra); cnt = 0
pend = []; nw = 0
for fi in range(9):
    a3, b = fi // 3, fi % 3
    if fi == 0: e('  s_waitcnt lgkmcnt(5)')
    for kk in (4, 5):
        rb = 184 + 36*(kk % 2)
        if fi == 0 and kk == 5: e('  s_waitcnt lgkmcnt(2)')
        if fi == 3 and kk == 5: e(f'  s_waitcnt lgkmcnt({nw})')
        for a in (2*a3, 2*a3+1):
            acc = MACC + 12*a + 4*b
            e(mfma(acc, rb+4*a, rb+24+4*b, acc)); cnt += 1
            if late: e(late.pop(0))
            k = 0
            while pend and pend[0][0] <= cnt and k < 2:
                l = pend.pop(0)[1]; e(l); k += 1
                if 'ds_write' in l: nw += 1
            while extra and (ne - len(extra)) * 36 < cnt * ne: emit_item(extra.pop(0))
    o = MPK + 4*(fi % 6)
    for a in range(2):
        acc = MACC + 12*(2*a3 + a) + 4*b
        for i in range(2): pend.append((cnt + 5, f'  v_cvt_pk_bf16_f32 v{o+2*a+i}, v{acc+2*i}, v{acc+2*i+1}'))
    pend.append((cnt + 5, f'  ds_write_b128 v{vMW[b]}, {V(o)} offset:{2048*(2-a3)}'))
assert not extra
tsp()
for i, (_, l) in enumerate(pend):
    if len(pend) - i == 5: e('  s_nop 3')
    e(l)
e('  s_waitcnt lgkmcnt(0)')
e('  s_barrier')
tsp()
NXY = opt('nxy', 3)
XH = (9, 8, 7, 6, 5)
assert ('Y', 'Z') not in PLAN and ('Y', '4') not in PLAN
y = [f'  s_cmp_lg_u32 s{sU}, 0', '  s_cbranch_scc1 MK_z1'] + [f'  v_mov_b32 v{XQ+r}, 0' for r in range(24)] + ['MK_z1:',
     f'  s_cmp_lg_u32 s{sPROD}, 0', '  s_cbranch_scc1 MK_np4', '  s_waitcnt vmcnt(0)', 'MK_np4:', '  s_waitcnt vmcnt(1)', '  s_setprio 1']
o_ = sum((ls for _, ls in PLAN.get(('O', 'Z'), [])), []) + dma_xs(XH[:NXY]) + bias_init(100) + [f'  s_waitcnt vmcnt({4*NXY})']
PRE_P1 = (o_, y)
PUB = [f'  s_cmp_eq_u32 s{sPROD}, 0', '  s_cbranch_scc1 MK_np5', '  s_waitcnt vmcnt(0)', '  v_mov_b32 v23, 1', '  s_mov_b64 exec, 1',
       f'  buffer_atomic_add v23, off, {RDB}, 0 sc1', '  s_mov_b64 exec, -1', '  s_nop 3', 'MK_np5:']

stream = []; frags = []
def add_frag(reads, gate): frags.append(dict(reads=reads, gate=gate, uses=0)); return len(frags) - 1
def use(fid, fn): frags[fid]['uses'] += 1; stream.append(('mfma', fn, fid))
def mf(text): stream.append(('mfma', (lambda buf: text), None))
def raw(*lines):
    for l in lines: stream.append(('raw', l))
def fill(*lines):
    for l in lines: stream.append(('fill', l))
def flush(): stream.append(('flush',))
def need(fid): stream.append(('need', fid))
def gate(name): stream.append(('gate', name))
def role(r, lines): stream.append(('cond', role_lines(r, lines)))
def role2(lo, ly): stream.append(('cond', role2_lines(lo, ly)))
BAR = '  s_barrier'
def m_read(f):
    addr = (71-f)*1024
    if addr < HALF: return [f'  ds_read_b128 {{d4}}, v{vL0} offset:{addr}']
    return [f'  ds_read_b128 {{d4}}, v{vL1} offset:{addr-HALF}']
def n_addr(f): return NHI + 30720 + 1024*f if f < 30 else ((f-30)*1024 if f < 40 else NHI + (f-40)*1024)
def n_read(f):
    if f >= 70: return []
    a = n_addr(f)
    return [f'  ds_read_b128 {{d4}}, v{vL1} offset:{a-NHI}' if a >= NHI else f'  ds_read_b128 {{d4}}, v{vL0} offset:{a}']
def dma_n(a, b):
    out = []
    for f0 in range(a, b, 4):
        lim = (b - 1 - f0) * 1024; src = sW4
        if lim < 3072: out.append(f'  s_min_u32 s{sT[5]}, s{sW4}, {lim}'); src = sT[5]
        out += [f'  s_add_u32 m0, s{src}, {n_addr(f0)}', f'  s_add_u32 s{sVO}, s{src}, {f0*1024}',
                f'  buffer_load_dwordx4 v{vL0}, {RWS}, s{sVO} offen{NSC} lds']
    return out
def proj(B, rd, gate_of, post, hooks):
    for s in range(6):
        for ks in range(6):
            for hh in range(2):
                f = 12*s + 2*ks + hh
                fid = add_frag(rd(f), gate_of(f))
                if f in hooks: hooks[f](fid)
                for t in range(2):
                    acc = ACC + 16*(s % 2) + 8*t + 4*hh
                    fx = None if rd(f) else NREG + 4*(f-70)
                    use(fid, (lambda buf, acc=acc, t=t, ks=ks, fx=fx: mfma(acc, buf if fx is None else fx, B(t, ks), None if ks == 0 else acc)))
        flush()
        fill(*post(s))

gate('G0')
role2(PRE_P1[0], PRE_P1[1])
def p1_post(s):
    out = []
    for t in range(2):
        acc = ACC + 16*(s % 2) + 8*t
        for r in range(8): out.append(f'  v_mul_f32 v{acc+r}, s{sSC}, v{acc+r}')
        for r in range(4): out.append(f'  v_cvt_pk_bf16_f32 v{QP+24*t+4*s+r}, v{acc+2*r}, v{acc+2*r+1}')
    return out
proj(lambda t, ks: XQ+24*t+4*ks, m_read, lambda f: 'G0', p1_post,
     {31: lambda fid: (need(fid), role2([BAR], PUB)),
      61: lambda fid: (need(fid), role('O', ['  s_waitcnt vmcnt(0)', BAR]))})
flush()
raw(f'  v_add_u32 v{vL1}, {NHI}, v{vL0}')
for r in range(4): raw(f'  v_mov_b32 v{ONES+r}, 0x3f803f80')
POLL = f'  buffer_load_dword v13, off, {RDB}, 0 sc1'
PMODE = opt('pmode', 1)
role('Y', ['  s_setprio 0'] + dma_xs(XH[NXY:]) + [BAR] + dma_xs((4, 3, 2)) + bias_init(XQ) +
     ['  s_waitcnt vmcnt(12)', BAR] + dma_xs((1, 0)) + ['  s_waitcnt vmcnt(8)', BAR])
for _ in range(opt('idle', 0)): raw('  s_sleep 8')
gate('S')
etn = [0]
def sm_fill(t, jj):
    tmp = ET + 4*(etn[0] % 5); etn[0] += 1
    acc = SACC[t] + 4*jj
    for i in range(4): fill(f'  v_exp_f32 v{tmp+i}, v{acc+i}')
    for i in range(2): fill(f'  v_cvt_pk_bf16_f32 v{PREG[t]+2*jj+i}, v{tmp+2*i}, v{tmp+2*i+1}')
    stream.append(('tag', f'P{t}_{jj}'))
def sum_mfmas(t):
    stream.append(('flushto', f'P{t}_0'))
    for kt in (3, 2, 1, 0): mf(mfma(SUM[t], ONES, PREG[t]+4*kt, None if kt == 3 else SUM[t]))
LO, HI = (127-30) << 23, (127+30) << 23
def check(t):
    raw(f'  v_subrev_u32 v{RI[1]}, {LO}, v{SUM[t]}')
    raw(f'  s_mov_b32 s{sT[6]}, {HI-LO}')
    raw(f'  v_cmp_gt_u32 s[{sT[2]}:{sT[3]}], s{sT[6]}, v{RI[1]}')
    raw(f'  s_or_b64 s[{sT[2]}:{sT[3]}], s[{sT[2]}:{sT[3]}], s[{sINV[t]}:{sINV[t]+1}]')
    raw(f'  s_cmp_eq_u64 s[{sT[2]}:{sT[3]}], -1')
    raw(f'  s_cbranch_scc0 FB{t}')
    raw(f'FBR{t}:')
pollw = [f'  s_mov_b32 s{sT[7]}, 0x400000', 'NPOLL:', '  s_waitcnt vmcnt(0)', f'  v_readfirstlane_b32 s{sT[0]}, v13', f'  s_sub_u32 s{sT[7]}, s{sT[7]}, 1',
         f'  s_cselect_b32 s{sT[0]}, 144, s{sT[0]}', f'  s_cmp_ge_u32 s{sT[0]}, 144', '  s_cbranch_scc1 NPOLLD', POLL, '  s_branch NPOLL', 'NPOLLD:']
ODMA = 'ydma' not in OPT
if not ODMA: pollw = [POLL.replace(' sc1', '')] + pollw
YP = {opt('y5a', 9): [BAR] + pollw + dma_n(0, 30) + dma_n(30, 40),
      opt('y5b', 12): ['  s_waitcnt vmcnt(0)', BAR] + dma_n(40, 70),
      opt('y6', 14): ['  s_waitcnt vmcnt(0)', BAR]}
assert len(YP) == 3
if ODMA: YP = {k: [BAR] for k in YP}
if 'yhi' in OPT: YP[opt('yhi', 0)] = YP.get(opt('yhi', 0), []) + ['  s_setprio 1']
O4B = opt('o4b', 6)
for k, slot in enumerate(range(9, -1, -1)):
    if k == 2:
        role2([BAR], ['  s_waitcnt vmcnt(0)', BAR]); gate('S2')
    if k == O4B: role('O', [BAR] + ([POLL.replace(' sc1', '')] if ODMA else []))
    if k in YP: role('Y', YP[k])
    for s in range(6):
        if slot == 0 and s == 3: sum_mfmas(1)
        if slot == 0: base, off = SB0[s % 2], 128*(s//2)
        else: base, off = (vSe, vSo)[s % 2], (slot-1)*ROW + 128*(s//2)
        fid = add_frag([f'  ds_read_b128 {{d4}}, v{base} offset:{off}'], 'S' if slot >= 6 else 'S2')
        for t in (1, 0):
            jj = slot - 2*t
            if 0 <= jj < 8:
                acc = SACC[t] + 4*jj
                use(fid, (lambda buf, acc=acc, t=t, s=s: mfma(acc, buf, QP+24*t+4*s, acc)))
    for t in (1, 0):
        jj = slot - 2*t
        if 0 <= jj < 8: sm_fill(t, jj)
check(1)
def ycvt(t, ks):
    return [f'  v_cvt_pk_bf16_f32 v{YB[t][ks]+2*hf+i}, v{YACC[t][2*ks+hf]+2*i}, v{YACC[t][2*ks+hf]+2*i+1}' for hf in range(2) for i in range(2)]
lastf = None
for k, st in enumerate(range(4, -1, -1)):
    if k == 1:
        sum_mfmas(0); check(0)
        for t in range(2): fill(f'  v_rcp_f32 v{RI[t]}, v{SUM[t]}')
    if k == 2: need(lastf); role('O', [BAR] + (pollw + dma_n(30, 40) + dma_n(0, 30) if ODMA else []))
    if 10 + k in YP: role('Y', YP[10 + k])
    if k == 4:
        for ks in range(6): fill(*ycvt(1, ks))
    for ct in range(12):
        tl = [t for t in (1, 0) if 0 <= st - t < 4]
        b_, e_ = ct // 4, ct % 4
        rd = []
        for hf in range(2):
            slot = 2*st + hf
            if slot == 0: base, off = PB0[e_], 128*b_
            else: base, off = vP[e_], (slot-1)*ROW + 128*b_
            rd.append(f'  ds_read_b64_tr_b16 {{d{"lo" if hf == 0 else "hi"}}}, v{base} offset:{off}')
        fid = add_frag(rd, 'S2'); lastf = fid
        if k == 4 and ct == opt('o5b', 6):
            stream.append(('needall', fid + 11 - ct)); role('O', ['  s_waitcnt vmcnt(0)', BAR] + dma_n(40, 70) if ODMA else [BAR]); gate('P4a')
        for t in tl:
            acc = YACC[t][ct]
            use(fid, (lambda buf, acc=acc, t=t, st=st: mfma(acc, buf, PREG[t]+4*(st-t), None if st - t == 3 else acc)))
flush()
for ks in range(6): raw(*ycvt(0, ks))
raw(f'  s_mov_b32 s{sVO}, {70*1024}')
if 15 in YP: role('Y', YP[15])
for i in range(2): raw(f'  buffer_load_dwordx4 {V(NREG+4*i)}, v{vL0}, {RWS}, s{sVO} offen offset:{1024*i} sc1')
def p4_post(s):
    out = []
    for t in range(2):
        acc = ACC + 16*(s % 2) + 8*t
        o = OUTR + 8*(s % 2) + 4*t
        for r in range(8): out.append(f'  v_mul_f32 v{acc+r}, v{acc+r}, v{RI[t]}')
        for r in range(4): out.append(f'  v_cvt_pk_bf16_f32 v{o+r}, v{acc+2*r}, v{acc+2*r+1}')
        out.append(f'  buffer_store_dwordx4 {V(o)}, v{vO[t]}, {RO}, 0 offen offset:{64*s}{NTO}')
    return out
proj(lambda t, ks: YB[t][ks], n_read, lambda f: 'P4a' if f < 40 else 'P4b', p4_post,
     {opt('o6', 24): lambda fid: (role('O', (['  s_waitcnt vmcnt(4)'] if ODMA else []) + [BAR]), gate('P4b')),
      60: lambda fid: raw('  s_waitcnt vmcnt(8)'),
      opt('ylo', 1): lambda fid: raw('  s_setprio 0') if 'yhi' in OPT else None})
flush()

def regs_of(tok):
    m = re.fullmatch(r'v\[(\d+):(\d+)\]', tok)
    if m: return list(range(int(m.group(1)), int(m.group(2)) + 1))
    m = re.fullmatch(r'-?v(\d+)', tok)
    return [int(m.group(1))] if m else []
def parse(line):
    p = line.strip().split(None, 1)
    op = p[0]; args = [a.strip().split()[0] for a in p[1].split(',')] if len(p) > 1 else []
    return op, args
clock = [0]
mf_w = {}; va_w = {}; tr_w = {}; mf_c = {}
def hazard(line):
    op, args = parse(line); need_ = 0
    allr = [r for a in args for r in regs_of(a)]
    if op.startswith('v_mfma'):
        for r in [r for a in args[1:] for r in regs_of(a)]:
            if r in va_w: need_ = max(need_, 2 - (clock[0] - va_w[r] - 1))
        for r in regs_of(args[1]) + regs_of(args[2]):
            if r in mf_w: need_ = max(need_, 8 - (clock[0] - mf_w[r] - 1))
    elif op.startswith('v_') or op.startswith('buffer_') or op.startswith('ds_'):
        for r in allr:
            if r in mf_w: need_ = max(need_, 8 - (clock[0] - mf_w[r] - 1))
        if op.startswith('v_'):
            for r in regs_of(args[0]):
                if r in mf_c: need_ = max(need_, 3 - (clock[0] - mf_c[r] - 1))
            for r in [r for a in args[1:] for r in regs_of(a)]:
                if r in tr_w: need_ = max(need_, 1 - (clock[0] - tr_w[r] - 1))
    return need_
def emit(line):
    if line.endswith(':'):
        e(line); return
    n = hazard(line)
    if n > 0:
        e(f'  s_nop {n-1}'); clock[0] += n
    op, args = parse(line)
    e(line)
    if op.startswith('v_mfma'):
        for r in regs_of(args[0]): mf_w[r] = clock[0]
        for r in regs_of(args[3]): mf_c[r] = clock[0]
    elif op.startswith('v_'):
        for r in regs_of(args[0]):
            va_w[r] = clock[0]; tr_w.pop(r, None)
            if op in ('v_exp_f32', 'v_rcp_f32'): tr_w[r] = clock[0]
    if op == 's_nop': clock[0] += int(args[0])
    clock[0] += 1

gates = set(); nxt = 0; done_uses = [0]*len(frags)
ops = []; landed = -1; half = [None]
fq = []
def buf_of(f): return ABUF + 4*(f % NB)
def issue_one():
    global nxt
    while True:
        if half[0] is not None:
            emit(half[0]); ops.append(nxt); half[0] = None; nxt += 1; return True
        if nxt >= len(frags): return False
        fr = frags[nxt]
        if fr['gate'] not in gates: return False
        if nxt >= NB and done_uses[nxt-NB] < frags[nxt-NB]['uses']: return False
        if not fr['reads']:
            nxt += 1; continue
        if len(ops) + len(fr['reads']) > (13 if TSM else 15): return False
        b = buf_of(nxt)
        rs = [r.format(d4=V(b), dlo=V(b, 2), dhi=V(b+2, 2)) for r in fr['reads']]
        emit(rs[0]); ops.append(nxt)
        if len(rs) == 2: half[0] = rs[1]
        else: nxt += 1
        return True
def wait_for(f, pair=True):
    global landed, ops
    if f is None or f <= landed: return
    while nxt <= f:
        n0 = nxt
        if not issue_one() and nxt == n0: raise RuntimeError(f'cannot issue frag {nxt}')
    if any(o <= f for o in ops):
        if pair and f + 1 < nxt and sum(1 for o in ops if o > f + 1) >= PAIRMIN: f = f + 1
        n = sum(1 for o in ops if o > f)
        emit(f'  s_waitcnt lgkmcnt({n})')
        ops = [o for o in ops if o > f]
    landed = f
nmf = [0]
BACKLOG = opt('backlog', 6); PAIRMIN = opt('pairmin', 5)
STREAM_NEXT = {}
mi = [i for i, x in enumerate(stream) if x[0] == 'mfma']
for a_, b_ in zip(mi, mi[1:]): STREAM_NEXT[a_] = stream[b_][2]
for si, ent in enumerate(stream):
    k = ent[0]
    if k == 'raw': emit(ent[1])
    elif k == 'fill': fq.append(ent[1])
    elif k == 'flush':
        for l in fq:
            if not l.startswith('#'): emit(l)
        fq = []
    elif k == 'tag': fq.append('#' + ent[1])
    elif k == 'flushto':
        if '#' + ent[1] in fq:
            i = fq.index('#' + ent[1])
            for l in fq[:i]:
                if not l.startswith('#'): emit(l)
            fq = fq[i+1:]
    elif k == 'gate':
        gates.add(ent[1])
        while issue_one(): pass
    elif k in ('need', 'needall'): wait_for(ent[1])
    elif k == 'cond':
        emit(ent[1][0]); el(ent[1][1:])
    elif k == 'mfma':
        wait_for(ent[2])
        if nmf[0] in TSM: e(ts_line())
        nmf[0] += 1
        emit(ent[1](buf_of(ent[2]) if ent[2] is not None else None))
        if ent[2] is not None: done_uses[ent[2]] += 1
        slots = 2
        nf = STREAM_NEXT.get(si)
        if nf is not None and nf > landed: slots -= 1
        ahead = nxt - (ent[2] if ent[2] is not None else landed)
        if issue_one(): slots -= 1
        if (half[0] is not None or (slots > 0 and (not fq or ahead < 6))) and issue_one(): slots -= 1
        if sum(1 for l in fq if 'v_exp' in l) > BACKLOG: slots = max(slots, 2)
        while fq:
            if fq[0].startswith('#'): fq.pop(0); continue
            cost = 2 if ('v_exp' in fq[0] or 'v_rcp' in fq[0]) else 1
            if slots < cost or hazard(fq[0]) > 0: break
            emit(fq.pop(0)); slots -= cost
if TS:
    e('  s_waitcnt vmcnt(0)')
    e(ts_line()); e('  s_memrealtime s[98:99]')
    e('  s_waitcnt lgkmcnt(0)')
    e(f'  s_lshl_b32 s{sT[0]}, s2, 3'); e(f'  s_add_u32 s{sT[0]}, s{sT[0]}, s{sW}'); e(f'  s_lshl_b32 s{sT[0]}, s{sT[0]}, 6')
    e(f'  s_add_u32 s{sT[0]}, s{sT[0]}, 0x100000')
    e('  v_mov_b32 v1, 0')
    for i in range(nts[0]):
        if i == 0: e(f'  v_mov_b32 v2, s{sTS}')
        else:
            e(f'  s_sub_u32 s{sT[1]}, s{sTS+2*i}, s{sTS}'); e(f'  v_mov_b32 v2, s{sT[1]}')
        e(f'  buffer_store_dword v2, v1, s[20:23], s{sT[0]} offen offset:{4*i}')
    e('  v_mov_b32 v2, s96'); e('  v_mov_b32 v3, s98')
    e(f'  buffer_store_dwordx2 v[2:3], v1, s[20:23], s{sT[0]} offen offset:56')
    print('timestamps', nts[0]); assert nts[0] <= 12
e('MK_done:')
e('  s_endpgm')
for t in range(2):
    R = SACC[t]; vm, vt = RI[0], RI[1]
    e(f'FB{t}:')
    e('  s_nop 7')
    e(f'  v_max3_f32 v{vm}, v{R}, v{R+1}, v{R+2}')
    for k in range(3, 31, 2): e(f'  v_max3_f32 v{vm}, v{vm}, v{R+k}, v{R+k+1}')
    e(f'  s_mov_b32 s{sT[6]}, 0xff7fffff')
    e(f'  v_max3_f32 v{vm}, v{vm}, v{R+31}, s{sT[6]}')
    for sw in ('v_permlane32_swap_b32', 'v_permlane16_swap_b32'):
        e(f'  v_mov_b32 v{vt}, v{vm}'); e('  s_nop 1'); e(f'  {sw} v{vm}, v{vt}'); e('  s_nop 1')
        e(f'  v_max_f32 v{vm}, v{vm}, v{vt}')
    for k in range(32): e(f'  v_sub_f32 v{R+k}, v{R+k}, v{vm}')
    for k in range(32): e(f'  v_exp_f32 v{R+k}, v{R+k}')
    e('  s_nop 0')
    for k in range(16): e(f'  v_cvt_pk_bf16_f32 v{PREG[t]+k}, v{R+2*k}, v{R+2*k+1}')
    e('  s_nop 1')
    for kt in range(4): e(mfma(SUM[t], ONES, PREG[t]+4*kt, None if kt == 0 else SUM[t]))
    e('  s_nop 7')
    e(f'  s_branch FBR{t}')
e('MK_end:')
e('.section .rodata,"a"')
e('.p2align 6'); e(f'.amdhsa_kernel {KN}')
e('  .amdhsa_next_free_vgpr 256'); e('  .amdhsa_next_free_sgpr 102'); e('  .amdhsa_accum_offset 256')
e('  .amdhsa_group_segment_fixed_size 0'); e('  .amdhsa_kernarg_size 48'); e('  .amdhsa_user_sgpr_count 2')
e('  .amdhsa_user_sgpr_kernarg_segment_ptr 1'); e('  .amdhsa_system_sgpr_workgroup_id_x 1')
e('.end_amdhsa_kernel')
if 'drop' in OPT:
    kinds = OPT['drop'].split(',')
    i0 = next(i for i, l in enumerate(L) if 'MK_np4:' in l)
    out = []; n = 0
    for i, l in enumerate(L):
        body = i > i0
        if 'mM' in kinds and not body and 'v_mfma' in l: l = '  s_nop 3'
        if 'exp' in kinds and 'v_exp' in l: l = l.replace('v_exp_f32', 'v_mov_b32')
        if 'lds' in kinds and body and 'ds_read_b128' in l:
            l = re.sub(r'ds_read_b128 v\[(\d+):\d+\]', lambda m: f'ds_read_b32 v{m.group(1)}', l)
        if 'tr' in kinds and body and 'ds_read_b64_tr' in l:
            l = re.sub(r'ds_read_b64_tr_b16 v\[(\d+):\d+\], v\d+', lambda m: f'ds_read_b32 v{m.group(1)}, v{vL0}', l)
        if 'mfma' in kinds and body and 'v_mfma' in l:
            n += 1
            if n % 2: l = '  s_nop 3'
        if 'nslab' in kinds and RWO in l and 'buffer_load' in l: l = '  s_nop 0'
        if 'nwv' in kinds and f'v{vNA}, {RW}' in l: l = '  s_nop 0'
        if 'ncomp' in kinds and 's_cbranch_scc1 MK_np2' in l: l = '  s_branch MK_np2'
        if 'st' in kinds and 'buffer_store_dwordx4' in l: l = '  s_nop 0'
        out.append(l)
    L = out
open(OUTF, 'w').write('\n'.join(L) + '\n')
```

```python
import sys, struct, math, re
OPT = dict(a.split('=') if '=' in a else (a, '1') for a in sys.argv[1:])
OUTF = OPT.get('out', 'standalone__neighborhood_nat__vision.s')
TS = 'ts' in OPT
TSM = [int(x) for x in OPT['tsm'].split(',')] if 'tsm' in OPT else []
TSP = 'tsp' in OPT
def opt(k, d): return int(OPT.get(k, d))
L = []
def e(s): L.append(s)
def el(ls):
    for l in ls: L.append(l)

X_BYTES = 19267584
WS_BYTES = 268435456
XB = 10240
ROW = 7680
HALF = 36864
NHI = XB + 12*ROW
WOL = 147456
SCALE = struct.unpack('<I', struct.pack('<f', (192 ** -0.5) * math.log2(math.e)))[0]
NT = ' nt' if 'nt' in OPT else ''
NSC = '' if 'nplain' in OPT else ' sc1'
NTO = ' ' + OPT.get('st', 'nt+sc1').replace('+', ' ')
KN = 'standalone__neighborhood_nat__vision_kernel'

hdr = open('standalone__neighborhood_nat__vision.s.ref').read().split('\n')
for ln in hdr:
    if ln.startswith('; @launch'): break
    e(ln)
e('; @launch grid=(256,1,1) block=(512,1,1) lds=163840')
e('.amdgcn_target "amdgcn-amd-amdhsa--gfx950"')
e('.text')

def srd(d, b, n):
    return [f'  s_mov_b32 s{d}, s{b}', f'  s_and_b32 s{d+1}, s{b+1}, 0xffff', f'  s_mov_b32 s{d+2}, {n}', f'  s_mov_b32 s{d+3}, 0x00020000']
def V(a, n=4): return f'v[{a}:{a+n-1}]'
def mfma(d, a, b, c):
    cs = '0' if c is None else V(c)
    return f'  v_mfma_f32_16x16x32_bf16 {V(d)}, {V(a)}, {V(b)}, {cs}'

vL0, vL1 = 1, 2
vO = (5, 6)
vSe, vSo = 7, 8
vP = (9, 10, 11, 12)
vD = (13, 14, 3, 4)
PB0 = (15, 16, 17, 18)
vCT = 19
SB0 = (20, 0)
vRR = (21, 22)
RI = (22, 23)
SACC = (24, 56); QP = 88; XQ = 136; ACC = 184
ABUF = 216; NB = 10
PREG = (136, 152)
YB = ([136, 140, 144, 148, 168, 172], [152, 156, 160, 164, 176, 180])
YACC = ([24+4*i for i in range(12)], [88+4*i for i in range(12)])
SUM = (184, 188); ONES = 192; ET = 196
OUTR = 24; NREG = 40
MACC = 24; MPK = 104
vWA = 96; vMA, vMB, vMW = (97, 98), (99, 100), (101, 102, 103)
vn, vg, tA, tB, tC, tD = 128, 129, 130, 131, 132, 133
vNB, vNA = 134, 135
sW, sU, sH, sPR, sPC, sKR, sKC, sXB, sGS, sGmin = range(24, 34)
sA2, sR0, sD0, sTR, sM0X, sM0X3, sW4, sWL = range(34, 42)
sINV = (42, 44)
sT = list(range(46, 60))
sMR, sAR, sMC, sAC = sT[10], sT[11], sT[12], sT[13]
sTS = 60
sPROD, sWB, sSC, sVO = 3, 92, 93, 100
RX, RO, RWS, RW, RWO, RDB = 's[12:15]', 's[16:19]', 's[20:23]', 's[88:91]', 's[4:7]', 's[8:11]'
MSK = f's[{sT[6]}:{sT[7]}]'
assert sT[6] % 2 == 0 and sT[2] % 2 == 0

nts = [0]
def ts_line():
    s = f'  s_memtime s[{sTS+2*nts[0]}:{sTS+2*nts[0]+1}]'; nts[0] += 1; return s
def tsp():
    if TSP: e(ts_line())

e(f'.globl {KN}'); e('.p2align 8'); e(f'.type {KN},@function'); e(f'{KN}:')
e('  s_cmp_ge_u32 s2, 256'); e('  s_cbranch_scc1 MK_done')
if TS: e(ts_line()); e('  s_memrealtime s[96:97]')
e('  s_load_dwordx8 s[4:11], s[0:1], 0')
e('  s_load_dwordx4 s[84:87], s[0:1], 32')
if 'nopf' not in OPT:
    e('  s_getpc_b64 s[12:13]'); e('MK_pc:')
    e('  s_and_b32 s13, s13, 0xffff'); e('  s_mov_b32 s14, MK_end-MK_pc'); e('  s_mov_b32 s15, 0x00020000')
    e('  v_lshlrev_b32 v23, 7, v0')
    e('  buffer_load_dword v255, v23, s[12:15], 0 offen')
e(f'  v_lshrrev_b32 v{tA}, 6, v0')
e('  v_and_b32 v0, 63, v0')
e(f'  v_readfirstlane_b32 s{sW}, v{tA}')
e(f'  v_and_b32 v{vn}, 15, v0'); e(f'  v_lshrrev_b32 v{vg}, 4, v0')
e(f'  v_lshrrev_b32 v{tA}, 5, v0'); e(f'  v_bfe_u32 v{tB}, v0, 3, 2'); e(f'  v_lshl_add_u32 v{tA}, v{tA}, 3, v{tB}')
e(f'  v_mul_u32_u24 v{tA}, 1152, v{tA}')
e(f'  s_and_b32 s{sH}, s{sW}, 1')
e(f'  s_lshl_b32 s{sT[0]}, s{sH}, 2')
e(f'  v_add_u32 v{tB}, s{sT[0]}, v{vg}'); e(f'  v_and_b32 v{tC}, 7, v0'); e(f'  v_xor_b32 v{tB}, v{tB}, v{tC}')
e(f'  v_lshl_add_u32 v{vWA}, v{tB}, 4, v{tA}')
e(f'  s_lshr_b32 s{sT[0]}, s{sW}, 2'); e(f'  s_lshl_b32 s{sT[0]}, s{sT[0]}, 5')
e(f'  s_lshl_b32 s{sT[1]}, s{sH}, 4'); e(f'  s_add_u32 s{sT[0]}, s{sT[0]}, s{sT[1]}')
e(f'  s_and_b32 s{sT[1]}, s{sW}, 2'); e(f'  s_lshl_b32 s{sT[1]}, s{sT[1]}, 1'); e(f'  s_add_u32 s{sT[0]}, s{sT[0]}, s{sT[1]}')
e(f'  s_mul_i32 s{sWB}, s{sT[0]}, 1152')
e(f'  s_lshl_b32 s{sWL}, s{sW}, 10')
e(f'  s_cmp_lt_u32 s{sW}, 4'); e('  s_cselect_b64 vcc, -1, 0')
e(f'  s_bfe_u32 s{sPR}, s2, 0x10002')
e(f'  s_bfe_u32 s{sPC}, s2, 0x10001')
e(f'  s_and_b32 s{sKR}, s2, 1'); e(f'  s_lshl_b32 s{sKR}, s{sKR}, 2')
e(f'  s_lshr_b32 s{sT[0]}, s2, 6'); e(f'  s_add_u32 s{sKR}, s{sKR}, s{sT[0]}')
e(f'  s_bfe_u32 s{sKC}, s2, 0x30003')
e(f'  s_mul_i32 s{sTR}, s{sKR}, 14'); e(f'  s_add_i32 s{sTR}, s{sTR}, -6'); e(f'  s_max_i32 s{sKR}, s{sTR}, -4')
e(f'  s_mul_i32 s{sKC}, s{sKC}, 14'); e(f'  s_add_i32 s{sKC}, s{sKC}, -6')
e(f'  s_lshr_b32 s{sU}, s{sW}, 1'); e(f'  s_add_u32 s{sU}, s{sU}, 2'); e(f'  s_and_b32 s{sU}, s{sU}, 3')
e(f'  s_sub_u32 s{sMR}, 0, s{sPR}'); e(f'  s_mul_i32 s{sAR}, s{sPR}, 224')
e(f'  s_sub_u32 s{sMC}, 0, s{sPC}'); e(f'  s_mul_i32 s{sAC}, s{sPC}, 224')
e(f'  v_and_b32 v{tA}, 7, v{vn}')
e(f'  s_mul_i32 s{sT[0]}, s{sH}, 7'); e(f'  s_add_i32 s{sT[0]}, s{sT[0]}, s{sKC}')
e(f'  v_cmp_lt_u32 s[{sT[2]}:{sT[3]}], 6, v{tA}')
e(f'  v_add_u32 v{tA}, s{sT[0]}, v{tA}')
e(f'  v_max_i32 v{vCT}, 0, v{tA}')
e(f'  v_add3_u32 v{tA}, v{tA}, v{vCT}, 6')
e(f'  v_xor_b32 v{tA}, s{sMC}, v{tA}'); e(f'  v_add_u32 v{tA}, s{sAC}, v{tA}')
e(f'  v_subrev_u32 v{vCT}, s{sKC}, v{vCT}')
e(f'  v_mul_u32_u24 v{tA}, 384, v{tA}'); e(f'  v_lshl_add_u32 v{tA}, v{vg}, 4, v{tA}')
e(f'  s_lshl_b32 s{sT[0]}, s{sU}, 2'); e(f'  s_add_i32 s{sT[0]}, s{sT[0]}, -2')
e(f'  s_mov_b32 s{sT[1]}, 86016')
e(f'  v_lshrrev_b32 v{tB}, 3, v{vn}'); e(f'  v_add_u32 v{tB}, s{sT[0]}, v{tB}')
e(f'  v_mov_b32 v{tC}, 0x80000000')
for t in range(2):
    if t: e(f'  v_add_u32 v{tB}, 2, v{tB}')
    e(f'  v_cmp_gt_i32 s[{sINV[t]}:{sINV[t]+1}], 0, v{tB}')
    e(f'  v_add_u32 v{vO[t]}, s{sTR}, v{tB}')
    e(f'  v_max_i32 v{vRR[t]}, 0, v{vO[t]}')
    e(f'  v_add3_u32 v{vO[t]}, v{vO[t]}, v{vRR[t]}, 6')
    e(f'  s_or_b64 s[{sINV[t]}:{sINV[t]+1}], s[{sINV[t]}:{sINV[t]+1}], s[{sT[2]}:{sT[3]}]')
    e(f'  v_xor_b32 v{vO[t]}, s{sMR}, v{vO[t]}'); e(f'  v_add_u32 v{vO[t]}, s{sAR}, v{vO[t]}')
    e(f'  v_subrev_u32 v{vRR[t]}, s{sKR}, v{vRR[t]}')
    e(f'  v_mad_u32_u24 v{vO[t]}, v{vO[t]}, s{sT[1]}, v{tA}')
    e(f'  v_cndmask_b32 v{vRR[t]}, v{vRR[t]}, v{tC}, s[{sINV[t]}:{sINV[t]+1}]')
    e(f'  v_cndmask_b32 v{vO[t]}, v{vO[t]}, v{tC}, s[{sINV[t]}:{sINV[t]+1}]')

e('  s_waitcnt lgkmcnt(0)')
tsp()
el(srd(88, 6, 192*576*2))
if 'notlb' not in OPT:
    e(f'  s_cmp_lg_u32 s{sW}, 5'); e('  s_cbranch_scc1 MK_ntlb')
    e(f'  s_max_i32 s{sT[0]}, s{sTR}, 0'); e(f'  s_lshl_b32 s{sT[0]}, s{sT[0]}, 1'); e(f'  s_sub_u32 s{sT[1]}, 184, s{sT[0]}')
    e(f'  s_cmp_eq_u32 s{sPR}, 0'); e(f'  s_cselect_b32 s{sT[0]}, s{sT[0]}, s{sT[1]}'); e(f'  s_mul_i32 s{sT[0]}, s{sT[0]}, 86016')
    for k in range(3):
        e(f'  s_load_dword s94, s[4:5], s{sT[0]}'); e(f'  s_load_dword s95, s[10:11], s{sT[0]}')
        if k < 2: e(f'  s_add_u32 s{sT[0]}, s{sT[0]}, {20*86016 - 64}')
    e(f'  s_load_dword s94, s[84:85], 128'); e(f'  s_load_dword s95, s[86:87], 0x20000')
    e('MK_ntlb:')

def w_pieces(c, partner=0):
    return [[f'  s_add_u32 m0, s{sWL}, {c*49152 + mat*24576 + j*8192 + partner*4096}',
             f'  s_add_u32 s{sVO}, s{sWB}, {(j*64 + partner*32)*1152 + mat*384 + c*128}',
             f'  buffer_load_dwordx4 v{vWA}, {RW}, s{sVO} offen lds'] for mat in range(2) for j in range(3)]
def q_loads():
    return [f'  buffer_load_dwordx4 {V(XQ+24*t+4*s_)}, v{vO[t]}, {RX}, 0 offen offset:{64*s_}{NT}' for t in (1, 0) for s_ in range(6)]
SCH = {'O': OPT.get('so', 'A:W0,C:W1,0:W2,3:q4,4:q8'), 'Y': OPT.get('sy', 'A:W0,C:W1,0:W2,1:q6,2:q6')}
PLAN = {}; ISS = {'O': [], 'Y': []}
for r_, sp in SCH.items():
    qi = 0
    for part in sp.split(','):
        pos, items = part.split(':')
        for it in items.split('+'):
            lst = PLAN.setdefault((r_, pos), [])
            if it[0] == 'W': lst += [(f'W{it[1]}', p) for p in w_pieces(int(it[1]))]
            elif it[0] == 'V': lst += [(f'W{it[1]}', p) for p in w_pieces(int(it[1]), 1)]
            elif it in 'pr':
                assert pos == 'A'
                lst.append(('t', [f'  v_min_u32 v253, 2, v{vg}', f'  v_mad_u32_u24 v253, v253, s{sT[8]}, v{vO[1 if it == "p" else 0]}',
                                  f'  buffer_load_dword v{252 if it == "p" else 251}, v253, {RX}, 0 offen']))
            else:
                for _ in range(int(it[1:])):
                    if r_ == 'Y' and qi >= 6: lst.append(('b', [f'  s_cmp_eq_u32 s{sU}, 0', f'  s_cbranch_scc1 QB{qi}', q_loads()[qi], f'QB{qi}:']))
                    else: lst.append(('q', [q_loads()[qi]]))
                    qi += 1
    assert qi == 12
lbl = [0]
def role_lines(r_, lines):
    lbl[0] += 1
    return [f'  s_cbranch_vcc{"z" if r_ == "O" else "nz"} SL{lbl[0]}'] + list(lines) + [f'SL{lbl[0]}:']
def role2_lines(lo, ly):
    lbl[0] += 1; n = lbl[0]
    return [f'  s_cbranch_vccz SL{n}'] + list(lo) + [f'  s_branch SM{n}', f'SL{n}:'] + list(ly) + [f'SM{n}:']
def sched_items(pos):
    o, y = list(PLAN.get(('O', pos), [])), list(PLAN.get(('Y', pos), []))
    out = []
    while o or y: out.append((o.pop(0) if o else None, y.pop(0) if y else None))
    return out
def emit_item(it):
    o, y = it
    if o: ISS['O'].append(o[0])
    if y: ISS['Y'].append(y[0])
    if o and y and o == y: el(o[1])
    elif o and y: el(role2_lines(o[1], y[1]))
    elif o: el(role_lines('O', o[1]))
    else: el(role_lines('Y', y[1]))
def emit_pos(pos):
    o, y = PLAN.get(('O', pos), []), PLAN.get(('Y', pos), [])
    k = 0
    while k < len(o) and k < len(y) and o[k] == y[k]: emit_item((o[k], y[k])); k += 1
    for r_, x in (('O', o[k:]), ('Y', y[k:])):
        if x:
            ISS[r_] += [i[0] for i in x]; el(role_lines(r_, sum((i[1] for i in x), [])))
def after(r_, tag):
    l = ISS[r_]
    if tag not in l: return 63
    return min(63, len(l) - 1 - max(i for i, t in enumerate(l) if t == tag))

if 'nowpf' not in OPT:
    e(f'  s_cmp_lt_u32 s{sW}, 6'); e('  s_cbranch_scc1 MK_nwpf')
    e(f'  s_cmp_eq_u32 s{sW}, 6'); e(f'  s_cselect_b32 s{sT[0]}, 54, 18')
    e('  s_cselect_b32 s12, s6, s8'); e('  s_cselect_b32 s13, s7, s9'); e('  s_and_b32 s13, s13, 0xffff')
    e(f'  s_lshr_b32 s{sT[1]}, s2, 3'); e(f'  s_mul_i32 s{sT[1]}, s{sT[1]}, s{sT[0]}'); e(f'  s_lshl_b32 s{sVO}, s{sT[1]}, 7')
    e(f'  s_lshl_b32 s{sT[0]}, s{sT[0]}, 7'); e(f'  s_add_u32 s14, s{sVO}, s{sT[0]}'); e('  s_mov_b32 s15, 0x00020000')
    e('  v_lshlrev_b32 v23, 7, v0')
    e(f'  buffer_load_dword v254, v23, s[12:15], s{sVO} offen')
    e('MK_nwpf:')
el(srd(12, 4, X_BYTES))
e(f'  s_movk_i32 s{sT[8]}, 112')
emit_pos('A')
emit_pos('B')
tsp()
el(srd(16, 10, X_BYTES)); el(srd(4, 8, 192*192*2)); el(srd(8, 84, 256)); el(srd(20, 86, WS_BYTES if TS else 73728))
e(f'  v_lshlrev_b32 v{vL0}, 4, v0')
e(f'  v_add_u32 v{vL1}, {HALF}, v{vL0}')
e(f'  s_and_b32 s{sW4}, s{sW}, 3'); e(f'  s_lshl_b32 s{sW4}, s{sW4}, 10')
e(f'  v_bfe_u32 v{tA}, v{vn}, 1, 3'); e(f'  v_xor_b32 v{tA}, v{tA}, v{vg}')
e(f'  v_lshlrev_b32 v{tB}, 7, v{vn}'); e(f'  v_lshl_add_u32 v{tB}, v{tA}, 4, v{tB}')
e(f'  s_lshr_b32 s{sT[0]}, s{sW}, 2'); e(f'  s_mul_i32 s{sT[1]}, s{sT[0]}, {6*2048}')
e(f'  v_add_u32 v{vMA[0]}, s{sT[1]}, v{tB}'); e(f'  v_xor_b32 v{vMA[1]}, 64, v{vMA[0]}')
e(f'  s_mul_i32 s{sT[1]}, s{sW4}, 6'); e(f'  s_add_u32 s{sT[1]}, s{sT[1]}, 24576')
e(f'  v_add_u32 v{vMB[0]}, s{sT[1]}, v{tB}'); e(f'  v_xor_b32 v{vMB[1]}, 64, v{vMB[0]}')
F = []; f_ = F.append
f_(f'  s_lshr_b32 s{sT[0]}, s{sW}, 2'); f_(f'  s_mul_i32 s{sT[0]}, s{sT[0]}, 6'); f_(f'  s_sub_u32 s{sT[0]}, 67, s{sT[0]}')
f_(f'  s_and_b32 s{sT[1]}, s{sW}, 3'); f_(f'  s_mul_i32 s{sT[1]}, s{sT[1]}, 3')
for b in range(3):
    f_(f'  s_add_u32 s{sT[2]}, s{sT[1]}, {b}')
    f_(f'  s_lshr_b32 s{sT[3]}, s{sT[2]}, 1'); f_(f'  s_mul_i32 s{sT[3]}, s{sT[3]}, 10')
    f_(f'  s_add_u32 s{sT[2]}, s{sT[2]}, s{sT[3]}')
    f_(f'  s_sub_u32 s{sT[2]}, s{sT[0]}, s{sT[2]}'); f_(f'  s_lshl_b32 s{sT[2]}, s{sT[2]}, 10')
    f_(f'  v_add_u32 v{vMW[b]}, s{sT[2]}, v{vL0}')
f_(f'  s_lshl_b32 s{sT[0]}, s{sKR}, 1'); f_(f'  s_xor_b32 s{sT[0]}, s{sT[0]}, s{sMR}')
f_(f'  s_mul_i32 s{sT[1]}, s{sPR}, 222'); f_(f'  s_add_i32 s{sXB}, s{sT[0]}, s{sT[1]}')
f_(f'  s_mul_i32 s{sXB}, s{sXB}, 86016')
f_(f'  s_mul_i32 s{sGS}, s{sPR}, {-2*344064}'); f_(f'  s_add_i32 s{sGS}, s{sGS}, 344064')
f_(f'  s_lshr_b32 s{sGmin}, s{sKR}, 31'); f_(f'  s_lshl_b32 s{sGmin}, s{sGmin}, 1')
f_(f'  s_lshl_b32 s{sM0X}, s{sW4}, 2')
f_(f'  s_add_u32 s{sM0X3}, s{sM0X}, 3072'); f_(f'  s_min_u32 s{sM0X3}, s{sM0X3}, {14*1024}')
f_(f'  s_mul_i32 s{sT[2]}, s{sPR}, 172032'); f_(f'  s_sub_u32 s{sT[3]}, 172032, s{sT[2]}')
f_(f'  v_mov_b32 v{tC}, s{sT[2]}'); f_(f'  v_mov_b32 v{tD}, s{sT[3]}')
for b in range(960): assert (b * 2731) >> 16 == b // 24
for j in range(4):
    d = vD[j]
    if j < 3:
        f_(f'  s_lshr_b32 s{sT[0]}, s{sM0X}, 4'); f_(f'  s_add_u32 s{sT[0]}, s{sT[0]}, {64*j}')
    else: f_(f'  s_lshr_b32 s{sT[0]}, s{sM0X3}, 4')
    f_(f'  v_add_u32 v{tA}, s{sT[0]}, v0')
    f_(f'  v_mul_u32_u24 v{d}, 2731, v{tA}'); f_(f'  v_lshrrev_b32 v{d}, 16, v{d}')
    f_(f'  v_cmp_le_u32 {MSK}, 20, v{d}')
    f_(f'  v_mul_u32_u24 v{tB}, 24, v{d}'); f_(f'  v_sub_u32 v{tA}, v{tA}, v{tB}')
    f_(f'  v_subrev_u32 v{tB}, 20, v{d}')
    f_(f'  v_cndmask_b32 v{d}, v{d}, v{tB}, {MSK}')
    f_(f'  v_bfe_u32 v{tB}, v{d}, 1, 3'); f_(f'  v_xor_b32 v{tA}, v{tA}, v{tB}')
    f_(f'  v_cndmask_b32 v{tB}, v{tC}, v{tD}, {MSK}')
    f_(f'  v_lshl_add_u32 v{tA}, v{tA}, 4, v{tB}')
    f_(f'  v_add_u32 v{d}, s{sKC}, v{d}'); f_(f'  v_max_i32 v{d}, 0, v{d}'); f_(f'  v_lshlrev_b32 v{d}, 1, v{d}')
    f_(f'  v_xor_b32 v{d}, s{sMC}, v{d}'); f_(f'  v_add_u32 v{d}, s{sAC}, v{d}')
    f_(f'  v_mul_u32_u24 v{d}, 384, v{d}'); f_(f'  v_add_u32 v{d}, v{d}, v{tA}')
f_(f'  s_add_u32 s{sM0X}, s{sM0X}, {XB}'); f_(f'  s_add_u32 s{sM0X3}, s{sM0X3}, {XB}')
for dst, add in ((sT[0], -2), (sA2, 0)):
    f_(f'  s_lshl_b32 s{dst}, s{sU}, 2')
    if add: f_(f'  s_add_i32 s{dst}, s{dst}, {add}'); f_(f'  s_max_i32 s{dst}, s{dst}, 0')
    f_(f'  s_add_i32 s{dst}, s{dst}, s{sTR}'); f_(f'  s_max_i32 s{dst}, s{dst}, 0'); f_(f'  s_sub_i32 s{dst}, s{dst}, s{sKR}')
f_(f'  s_sub_u32 s{sT[0]}, s{sA2}, s{sT[0]}'); f_(f'  s_lshr_b32 s{sT[0]}, s{sT[0]}, 1')
f_(f'  s_mul_i32 s{sD0}, s{sT[0]}, -8'); f_(f'  s_add_i32 s{sD0}, s{sD0}, 7')
f_(f'  s_add_i32 s{sA2}, s{sA2}, -1')
f_(f'  s_add_i32 s{sR0}, s{sA2}, s{sD0}'); f_(f'  s_mul_i32 s{sD0}, s{sD0}, {ROW}')
f_(f'  s_lshl_b32 s{sT[1]}, s{sH}, 2')
f_(f'  s_mul_i32 s{sT[0]}, s{sA2}, {ROW}'); f_(f'  s_add_i32 s{sT[0]}, s{sT[0]}, {XB}')
f_(f'  v_add_u32 v{tA}, s{sT[1]}, v{vn}')
f_(f'  v_bfe_u32 v{tB}, v{tA}, 1, 3'); f_(f'  v_xor_b32 v{tB}, v{tB}, v{vg}')
f_(f'  v_mul_u32_u24 v{tA}, 384, v{tA}'); f_(f'  v_lshl_add_u32 v{tA}, v{tB}, 4, v{tA}')
f_(f'  v_add_u32 v{vSe}, s{sT[0]}, v{tA}'); f_(f'  v_xor_b32 v{vSo}, 64, v{vSe}')
f_(f'  v_lshrrev_b32 v{tA}, 2, v{vn}'); f_(f'  v_lshl_add_u32 v{tA}, v{vg}, 2, v{tA}'); f_(f'  v_add_u32 v{tA}, s{sT[1]}, v{tA}')
f_(f'  v_bfe_u32 v{tB}, v{tA}, 1, 3')
f_(f'  v_and_b32 v{tC}, 2, v{vn}'); f_(f'  v_lshlrev_b32 v{tC}, 1, v{tC}'); f_(f'  v_xor_b32 v{tB}, v{tB}, v{tC}')
f_(f'  v_mul_u32_u24 v{tA}, 384, v{tA}'); f_(f'  v_lshl_add_u32 v{tA}, v{tB}, 4, v{tA}')
f_(f'  v_and_b32 v{tB}, 1, v{vn}'); f_(f'  v_lshl_add_u32 v{tA}, v{tB}, 3, v{tA}')
f_(f'  v_add_u32 v{vP[0]}, s{sT[0]}, v{tA}')
for k in range(1, 4): f_(f'  v_xor_b32 v{vP[k]}, {16*k}, v{vP[0]}')
f_(f'  v_lshl_add_u32 v{tA}, v{vg}, 2, s{sT[1]}'); f_(f'  v_sub_u32 v{vCT}, v{tA}, v{vCT}')
f_(f'  v_add_u32 v{SB0[0]}, s{sD0}, v{vSe}'); f_(f'  v_add_u32 v{SB0[1]}, s{sD0}, v{vSo}')
for k in range(4): f_(f'  v_add_u32 v{PB0[k]}, s{sD0}, v{vP[k]}')
f_(f'  s_mov_b32 s{sSC}, {SCALE}')
NPRE = opt('npre', 999)
el(F[:NPRE]); F = F[NPRE:]

def dma_x(G):
    out = []
    if G < 2: out += [f'  s_max_u32 s{sVO}, s{sGmin}, {G}', f'  s_mul_i32 s{sVO}, s{sVO}, s{sGS}']
    else: out.append(f'  s_mul_i32 s{sVO}, s{sGS}, {G}')
    out.append(f'  s_add_i32 s{sVO}, s{sVO}, s{sXB}')
    for j in range(4):
        out.append(f'  s_add_u32 m0, s{sM0X}, {G*15360 + j*1024}' if j < 3 else f'  s_add_u32 m0, s{sM0X3}, {G*15360}')
        out.append('  s_nop 0')
        out.append(f'  buffer_load_dwordx4 v{vD[j]}, {RX}, s{sVO} offen{NT} lds')
    return out
def dma_xs(Gs): return sum((dma_x(G) for G in Gs), [])
def bias_init(tmp):
    out = []; o = out.append
    cb, ninf, tt = tmp, tmp+4, tmp+5
    o(f'  v_mov_b32 v{ninf}, 0xff800000')
    for i in range(4): o(f'  v_add_u32 v{tt+i}, {i}, v{vCT}')
    for i in range(4): o(f'  v_cmp_gt_u32 s[{sT[2+2*i]}:{sT[3+2*i]}], 7, v{tt+i}')
    for i in range(4): o(f'  v_cndmask_b32 v{cb+i}, v{ninf}, 0, s[{sT[2+2*i]}:{sT[3+2*i]}]')
    for t in range(2):
        for j4 in range(2):
            for jj in range(4*j4, 4*j4+4):
                slot = jj + 2*t; r = tt + jj % 4
                if slot == 0: o(f'  v_sub_u32 v{r}, s{sR0}, v{vRR[t]}')
                else:
                    o(f'  s_add_i32 s{sT[0]}, s{sA2}, {slot-1}'); o(f'  v_sub_u32 v{r}, s{sT[0]}, v{vRR[t]}')
            for q in range(4): o(f'  v_cmp_gt_u32 s[{sT[2+2*q]}:{sT[3+2*q]}], 7, v{tt+q}')
            for jj in range(4*j4, 4*j4+4):
                q = jj % 4
                for i in range(4):
                    o(f'  v_cndmask_b32 v{SACC[t]+4*jj+i}, v{ninf}, v{cb+i}, s[{sT[2+2*q]}:{sT[3+2*q]}]')
    return out

tsp()
emit_pos('C')
tsp()
vLN = 107
def n_loads():
    e(f'  v_lshrrev_b32 v{vLN}, 4, v{vL0}')
    e(f'  s_cmp_lt_u32 s2, 72'); e('  s_cbranch_scc0 MK_np1')
    e(f'  s_mul_hi_u32 s{sT[8]}, s2, 0x15555556'); e(f'  s_lshl_b32 s{sT[8]}, s{sT[8]}, 6')
    e(f'  s_mul_i32 s{sT[9]}, s{sW}, {16*384}'); e(f'  s_add_u32 s{sVO}, s{sT[8]}, s{sT[9]}')
    e(f'  v_lshrrev_b32 v{MPK}, 2, v{vLN}'); e(f'  v_mul_u32_u24 v{MPK}, 384, v{MPK}'); e(f'  v_and_b32 v{MPK+1}, 3, v{vLN}'); e(f'  v_lshl_add_u32 v{MPK}, v{MPK+1}, 4, v{MPK}')
    e(f'  s_add_u32 m0, s{sWL}, {WOL}'); e('  s_nop 0')
    e(f'  buffer_load_dwordx4 v{MPK}, {RWO}, s{sVO} offen lds')
    e(f'  s_mul_i32 s{sT[9]}, s{sW4}, 6'); e(f'  s_add_u32 s{sVO}, s{sT[8]}, s{sT[9]}')
    e(f'  s_add_u32 m0, s{sW4}, {WOL + 8192}'); e(f'  s_add_u32 s{sVO}, s{sVO}, {8*16*384}')
    e(f'  buffer_load_dwordx4 v{MPK}, {RWO}, s{sVO} offen lds')
    e('MK_np1:')
    e(f'  s_sub_u32 s{sPROD}, s2, 72'); e(f'  s_lshr_b32 s{sPROD}, s{sPROD}, 31')
    e(f'  s_lshr_b32 s{sPROD}, s{sPROD}, s{sU}')
    e(f'  v_mov_b32 v{vNB}, 0')
    e(f'  s_cmp_eq_u32 s{sPROD}, 0'); e('  s_cbranch_scc1 MK_np3')
    e(f'  s_mul_hi_u32 s{sT[8]}, s2, 0x15555556'); e(f'  s_mul_i32 s{sT[9]}, s{sT[8]}, 12'); e(f'  s_sub_u32 s{sT[9]}, s2, s{sT[9]}')
    e(f'  s_and_b32 s{sT[5]}, s{sT[9]}, 1'); e(f'  s_lshr_b32 s{sT[9]}, s{sT[9]}, 1')
    e(f'  v_lshrrev_b32 v{MPK+2}, 2, v{vn}'); e(f'  v_and_b32 v{MPK+1}, 3, v{vn}')
    e(f'  v_lshl_add_u32 v{vNB}, v{vg}, 3, v{MPK+2}'); e(f'  v_lshlrev_b32 v{vNB}, 6, v{vNB}'); e(f'  v_lshl_add_u32 v{vNB}, v{MPK+1}, 4, v{vNB}')
    e(f'  s_lshl_b32 s{sT[5]}, s{sT[5]}, 3'); e(f'  s_add_u32 s{sT[5]}, s{sT[5]}, {WOL}'); e(f'  v_add_u32 v{vNB}, s{sT[5]}, v{vNB}')
    e(f'  s_lshr_b32 s{sT[8]}, s{sT[9]}, 1'); e(f'  s_lshl_b32 s{sT[8]}, s{sT[8]}, 6')
    e(f'  s_and_b32 s{sT[9]}, s{sT[9]}, 1'); e(f'  s_lshl_b32 s{sT[9]}, s{sT[9]}, 4'); e(f'  s_add_u32 s{sT[8]}, s{sT[8]}, s{sT[9]}')
    e(f'  v_lshrrev_b32 v{MPK}, 1, v{MPK+2}'); e(f'  v_lshlrev_b32 v{MPK}, 5, v{MPK}')
    e(f'  v_and_b32 v{MPK+2}, 1, v{MPK+2}'); e(f'  v_lshl_add_u32 v{MPK}, v{MPK+2}, 2, v{MPK}')
    e(f'  v_add3_u32 v{MPK}, v{MPK}, v{MPK+1}, s{sT[8]}')
    e(f'  v_mul_u32_u24 v{MPK}, 1152, v{MPK}'); e(f'  v_lshl_add_u32 v{vNA}, v{vg}, 4, v{MPK}')
    e(f'  s_mul_i32 s{sVO}, s{sH}, 9216')
    for kk in range(6):
        e(f'  buffer_load_dwordx4 {V(136+4*kk)}, v{vNA}, {RW}, s{sVO} offen offset:{768+64*kk}')
    e('MK_np3:')
def m_reads(kk):
    rb = 184 + 36*(kk % 2); co = (kk // 2) * 49152
    lo = co if co < 49152*2 else 0
    return ([f'  ds_read_b128 {V(rb+24+4*b)}, v{vMB[kk % 2]} offset:{2048*b}' for b in range(3)] +
            [f'  ds_read_b128 {V(rb+4*a)}, v{vMA[kk % 2]} offset:{2048*a}' for a in range(6)])
def chunk_sync(c, lg):
    wo_, wy_ = after('O', f'W{c}'), after('Y', f'W{c}')
    x = ' lgkmcnt(0)' if lg else ''
    def w(n, prod):
        if c == 2 and prod and ISS['Y'].count('b'):
            return [f'  s_cmp_lg_u32 s{sU}, 0', '  s_cbranch_scc1 MK_c2', f'  s_waitcnt vmcnt({n - ISS["Y"].count("b")})', 'MK_c2:', f'  s_waitcnt vmcnt({n}){x}']
        if c != 1 or n == 63: return [f'  s_waitcnt vmcnt({n}){x}']
        lbl[0] += 1; k = lbl[0]; o = []
        if prod: o += [f'  s_cmp_lg_u32 s{sPROD}, 0', f'  s_cbranch_scc1 CA{k}']
        o += ['  s_cmp_lt_u32 s2, 72', f'  s_cbranch_scc1 CB{k}', f'  s_waitcnt vmcnt({n})', f'CB{k}:']
        if prod: o += [f'  s_waitcnt vmcnt({n+2})', f'CA{k}:', f'  s_waitcnt vmcnt({n+8}){x}']
        else: o += [f'  s_waitcnt vmcnt({n+2}){x}']
        return o
    if c == 2:
        wo_, wy_ = min(wo_, len(ISS['O']) - N_AT['O']), min(wy_, len(ISS['Y']) - N_AT['Y'])
    if wo_ == wy_ and c != 2: el(w(wo_, True))
    else: el(role2_lines(w(wo_, False), w(wy_, True)))
    e('  s_barrier')
    tsp()
N_AT = {}
FPG = opt('fpg', 4)
chunk_sync(0, False)
el(m_reads(0))
for kk in range(4):
    landed_all = False
    if kk % 2 == 1:
        chunk_sync(kk // 2 + 1, True); landed_all = True
        for r in vMA + vMB: e(f'  v_add_u32 v{r}, 49152, v{r}')
    extra = sched_items(str(kk)); ne = len(extra); cnt = 0
    rb = 184 + 36*(kk % 2)
    nx = m_reads(kk+1)
    issued = 0
    for a in range(6):
        if not landed_all: e(f'  s_waitcnt lgkmcnt({5 - a + issued})')
        for b in range(3):
            acc = MACC + 12*a + 4*b
            e(mfma(acc, rb+4*a, rb+24+4*b, None if kk == 0 else acc))
            slots = FPG
            if nx and b < 2 and (a >= 1 or landed_all):
                e(nx.pop(0)); issued += 1; slots -= 1
            cnt += 1
            while extra and (ne - len(extra)) * 18 < cnt * ne: emit_item(extra.pop(0)); slots = 0
            el(F[:slots]); F = F[slots:]
    assert not nx and not extra
    if kk == 0: n_loads(); N_AT.update(O=len(ISS['O']), Y=len(ISS['Y']))
print('leftover F', len(F), file=sys.stderr); el(F); F = []
assert ISS['Y'].count('q') <= 6
e(f'  s_cmp_eq_u32 s{sPROD}, 0'); e('  s_cbranch_scc1 MK_np2')
e('  s_waitcnt lgkmcnt(0)')
for k2 in range(6):
    for hf in range(2):
        e(f'  ds_read_b64_tr_b16 {V(MPK+4*k2+2*hf, 2)}, v{vNB} offset:{(32*k2 + 4*hf)*64}')
e('  s_setprio 3'); e('  s_waitcnt lgkmcnt(0)')
for kk in range(6):
    e(mfma(128, 136+4*kk, MPK+4*kk, None if kk == 0 else 128))
e(f'  s_lshl_b32 s{sVO}, s2, 10'); e(f'  s_lshl_b32 s{sT[8]}, s{sH}, 3'); e(f'  s_add_u32 s{sVO}, s{sVO}, s{sT[8]}')
e('  s_nop 5')
for r in range(2): e(f'  v_cvt_pk_bf16_f32 v{132+r}, v{128+2*r}, v{129+2*r}')
e(f'  buffer_store_dwordx2 v[132:133], v{vL0}, {RWS}, s{sVO} offen sc1')
NY_AT_STORE = len(ISS['Y'])
e('  s_setprio 0')
e('MK_np2:')
r5 = m_reads(5)
el(r5[:5]); late = r5[5:]
extra = sched_items('4'); ne = len(extra); cnt = 0
pend = []; nw = 0
for fi in range(9):
    a3, b = fi // 3, fi % 3
    if fi == 0: e('  s_waitcnt lgkmcnt(5)')
    for kk in (4, 5):
        rb = 184 + 36*(kk % 2)
        if fi == 0 and kk == 5: e('  s_waitcnt lgkmcnt(2)')
        if fi == 3 and kk == 5: e(f'  s_waitcnt lgkmcnt({nw})')
        for a in (2*a3, 2*a3+1):
            acc = MACC + 12*a + 4*b
            e(mfma(acc, rb+4*a, rb+24+4*b, acc)); cnt += 1
            if late: e(late.pop(0))
            k = 0
            while pend and pend[0][0] <= cnt and k < 2:
                l = pend.pop(0)[1]; e(l); k += 1
                if 'ds_write' in l: nw += 1
            while extra and (ne - len(extra)) * 36 < cnt * ne: emit_item(extra.pop(0))
    o = MPK + 4*(fi % 6)
    for a in range(2):
        acc = MACC + 12*(2*a3 + a) + 4*b
        for i in range(2): pend.append((cnt + 5, f'  v_cvt_pk_bf16_f32 v{o+2*a+i}, v{acc+2*i}, v{acc+2*i+1}'))
    pend.append((cnt + 5, f'  ds_write_b128 v{vMW[b]}, {V(o)} offset:{2048*(2-a3)}'))
assert not extra
tsp()
for i, (_, l) in enumerate(pend):
    if len(pend) - i == 5: e('  s_nop 3')
    e(l)
e('  s_waitcnt lgkmcnt(0)')
e('  s_barrier')
tsp()
NXY = opt('nxy', 2)
XH = (9, 8, 7, 6, 5)
assert ('Y', 'Z') not in PLAN and ('Y', '4') not in PLAN
y = [f'  s_cmp_lg_u32 s{sU}, 0', '  s_cbranch_scc1 MK_z1'] + [f'  v_mov_b32 v{XQ+r}, 0' for r in range(24)] + ['MK_z1:',
     f'  s_cmp_lg_u32 s{sPROD}, 0', '  s_cbranch_scc1 MK_np4', '  s_waitcnt vmcnt(0)', 'MK_np4:', '  s_waitcnt vmcnt(1)', '  s_setprio 1']
o_ = sum((ls for _, ls in PLAN.get(('O', 'Z'), [])), []) + dma_xs(XH[:NXY]) + bias_init(100) + [f'  s_waitcnt vmcnt({4*NXY})']
PRE_P1 = (o_, y)
PUB = [f'  s_cmp_eq_u32 s{sPROD}, 0', '  s_cbranch_scc1 MK_np5', '  s_waitcnt vmcnt(0)', '  v_mov_b32 v23, 1', '  s_mov_b64 exec, 1',
       f'  buffer_atomic_add v23, off, {RDB}, 0 sc1', '  s_mov_b64 exec, -1', '  s_nop 3', 'MK_np5:']

stream = []; frags = []
def add_frag(reads, gate): frags.append(dict(reads=reads, gate=gate, uses=0)); return len(frags) - 1
def use(fid, fn): frags[fid]['uses'] += 1; stream.append(('mfma', fn, fid))
def mf(text): stream.append(('mfma', (lambda buf: text), None))
def raw(*lines):
    for l in lines: stream.append(('raw', l))
def fill(*lines):
    for l in lines: stream.append(('fill', l))
def flush(): stream.append(('flush',))
def need(fid): stream.append(('need', fid))
def gate(name): stream.append(('gate', name))
def role(r, lines): stream.append(('cond', role_lines(r, lines)))
def role2(lo, ly): stream.append(('cond', role2_lines(lo, ly)))
BAR = '  s_barrier'
def m_read(f):
    addr = (71-f)*1024
    if addr < HALF: return [f'  ds_read_b128 {{d4}}, v{vL0} offset:{addr}']
    return [f'  ds_read_b128 {{d4}}, v{vL1} offset:{addr-HALF}']
def n_addr(f): return NHI + 30720 + 1024*f if f < 30 else ((f-30)*1024 if f < 40 else NHI + (f-40)*1024)
def n_read(f):
    if f >= 70: return []
    a = n_addr(f)
    return [f'  ds_read_b128 {{d4}}, v{vL1} offset:{a-NHI}' if a >= NHI else f'  ds_read_b128 {{d4}}, v{vL0} offset:{a}']
def dma_n(a, b):
    out = []
    for f0 in range(a, b, 4):
        lim = (b - 1 - f0) * 1024; src = sW4
        if lim < 3072: out.append(f'  s_min_u32 s{sT[5]}, s{sW4}, {lim}'); src = sT[5]
        out += [f'  s_add_u32 m0, s{src}, {n_addr(f0)}', f'  s_add_u32 s{sVO}, s{src}, {f0*1024}',
                f'  buffer_load_dwordx4 v{vL0}, {RWS}, s{sVO} offen{NSC} lds']
    return out
def proj(B, rd, gate_of, post, hooks):
    for s in range(6):
        for ks in range(6):
            for hh in range(2):
                f = 12*s + 2*ks + hh
                fid = add_frag(rd(f), gate_of(f))
                if f in hooks: hooks[f](fid)
                for t in range(2):
                    acc = ACC + 16*(s % 2) + 8*t + 4*hh
                    fx = None if rd(f) else NREG + 4*(f-70)
                    use(fid, (lambda buf, acc=acc, t=t, ks=ks, fx=fx: mfma(acc, buf if fx is None else fx, B(t, ks), None if ks == 0 else acc)))
        flush()
        fill(*post(s))

gate('G0')
role2(PRE_P1[0], PRE_P1[1])
def p1_post(s):
    out = []
    for t in range(2):
        acc = ACC + 16*(s % 2) + 8*t
        for r in range(8): out.append(f'  v_mul_f32 v{acc+r}, s{sSC}, v{acc+r}')
        for r in range(4): out.append(f'  v_cvt_pk_bf16_f32 v{QP+24*t+4*s+r}, v{acc+2*r}, v{acc+2*r+1}')
    return out
proj(lambda t, ks: XQ+24*t+4*ks, m_read, lambda f: 'G0', p1_post,
     {31: lambda fid: (need(fid), role2([BAR], PUB)),
      61: lambda fid: (need(fid), role('O', ['  s_waitcnt vmcnt(0)', BAR]))})
flush()
raw(f'  v_add_u32 v{vL1}, {NHI}, v{vL0}')
for r in range(4): raw(f'  v_mov_b32 v{ONES+r}, 0x3f803f80')
POLL = f'  buffer_load_dword v13, off, {RDB}, 0 sc1'
PMODE = opt('pmode', 1)
role('Y', ['  s_setprio 0'] + dma_xs(XH[NXY:]) + [BAR] + dma_xs((4, 3, 2)) + bias_init(XQ) +
     ['  s_waitcnt vmcnt(12)', BAR] + dma_xs((1, 0)) + ['  s_waitcnt vmcnt(8)', BAR])
for _ in range(opt('idle', 0)): raw('  s_sleep 8')
gate('S')
etn = [0]
def sm_fill(t, jj):
    tmp = ET + 4*(etn[0] % 5); etn[0] += 1
    acc = SACC[t] + 4*jj
    for i in range(4): fill(f'  v_exp_f32 v{tmp+i}, v{acc+i}')
    for i in range(2): fill(f'  v_cvt_pk_bf16_f32 v{PREG[t]+2*jj+i}, v{tmp+2*i}, v{tmp+2*i+1}')
    stream.append(('tag', f'P{t}_{jj}'))
def sum_mfmas(t):
    stream.append(('flushto', f'P{t}_0'))
    for kt in (3, 2, 1, 0): mf(mfma(SUM[t], ONES, PREG[t]+4*kt, None if kt == 3 else SUM[t]))
LO, HI = (127-30) << 23, (127+30) << 23
def check(t):
    raw(f'  v_subrev_u32 v{RI[1]}, {LO}, v{SUM[t]}')
    raw(f'  s_mov_b32 s{sT[6]}, {HI-LO}')
    raw(f'  v_cmp_gt_u32 s[{sT[2]}:{sT[3]}], s{sT[6]}, v{RI[1]}')
    raw(f'  s_or_b64 s[{sT[2]}:{sT[3]}], s[{sT[2]}:{sT[3]}], s[{sINV[t]}:{sINV[t]+1}]')
    raw(f'  s_cmp_eq_u64 s[{sT[2]}:{sT[3]}], -1')
    raw(f'  s_cbranch_scc0 FB{t}')
    raw(f'FBR{t}:')
pollw = [f'  s_mov_b32 s{sT[7]}, 0x400000', 'NPOLL:', '  s_waitcnt vmcnt(0)', f'  v_readfirstlane_b32 s{sT[0]}, v13', f'  s_sub_u32 s{sT[7]}, s{sT[7]}, 1',
         f'  s_cselect_b32 s{sT[0]}, 144, s{sT[0]}', f'  s_cmp_ge_u32 s{sT[0]}, 144', '  s_cbranch_scc1 NPOLLD', POLL, '  s_branch NPOLL', 'NPOLLD:']
ODMA = 'ydma' not in OPT
if not ODMA: pollw = [POLL.replace(' sc1', '')] + pollw
YP = {opt('y5a', 7): [BAR] + pollw + dma_n(0, 30) + dma_n(30, 40),
      opt('y5b', 10): ['  s_waitcnt vmcnt(0)', BAR] + dma_n(40, 70),
      opt('y6', 12): ['  s_waitcnt vmcnt(0)', BAR]}
assert len(YP) == 3
if ODMA: YP = {k: [BAR] for k in YP}
if 'yhi' in OPT: YP[opt('yhi', 0)] = YP.get(opt('yhi', 0), []) + ['  s_setprio 1']
O4B = opt('o4b', 6)
for k, slot in enumerate(range(9, -1, -1)):
    if k == 2:
        role2([BAR], ['  s_waitcnt vmcnt(0)', BAR]); gate('S2')
    if k == O4B: role('O', [BAR] + ([POLL.replace(' sc1', '')] if ODMA else []))
    if k in YP: role('Y', YP[k])
    for s in range(6):
        if slot == 0 and s == 3: sum_mfmas(1)
        if slot == 0: base, off = SB0[s % 2], 128*(s//2)
        else: base, off = (vSe, vSo)[s % 2], (slot-1)*ROW + 128*(s//2)
        fid = add_frag([f'  ds_read_b128 {{d4}}, v{base} offset:{off}'], 'S' if slot >= 6 else 'S2')
        for t in (1, 0):
            jj = slot - 2*t
            if 0 <= jj < 8:
                acc = SACC[t] + 4*jj
                use(fid, (lambda buf, acc=acc, t=t, s=s: mfma(acc, buf, QP+24*t+4*s, acc)))
    for t in (1, 0):
        jj = slot - 2*t
        if 0 <= jj < 8: sm_fill(t, jj)
check(1)
def ycvt(t, ks):
    return [f'  v_cvt_pk_bf16_f32 v{YB[t][ks]+2*hf+i}, v{YACC[t][2*ks+hf]+2*i}, v{YACC[t][2*ks+hf]+2*i+1}' for hf in range(2) for i in range(2)]
lastf = None
for k, st in enumerate(range(4, -1, -1)):
    if k == 1:
        sum_mfmas(0); check(0)
        for t in range(2): fill(f'  v_rcp_f32 v{RI[t]}, v{SUM[t]}')
    if k == 2: need(lastf); role('O', [BAR] + (pollw + dma_n(30, 40) + dma_n(0, 30) if ODMA else []))
    if 10 + k in YP: role('Y', YP[10 + k])
    if k == 4:
        for ks in range(6): fill(*ycvt(1, ks))
    for ct in range(12):
        tl = [t for t in (1, 0) if 0 <= st - t < 4]
        b_, e_ = ct // 4, ct % 4
        rd = []
        for hf in range(2):
            slot = 2*st + hf
            if slot == 0: base, off = PB0[e_], 128*b_
            else: base, off = vP[e_], (slot-1)*ROW + 128*b_
            rd.append(f'  ds_read_b64_tr_b16 {{d{"lo" if hf == 0 else "hi"}}}, v{base} offset:{off}')
        fid = add_frag(rd, 'S2'); lastf = fid
        if k == 4 and ct == opt('o5b', 6):
            stream.append(('needall', fid + 11 - ct)); role('O', ['  s_waitcnt vmcnt(0)', BAR] + dma_n(40, 70) if ODMA else [BAR]); gate('P4a')
        for t in tl:
            acc = YACC[t][ct]
            use(fid, (lambda buf, acc=acc, t=t, st=st: mfma(acc, buf, PREG[t]+4*(st-t), None if st - t == 3 else acc)))
flush()
for ks in range(6): raw(*ycvt(0, ks))
raw(f'  s_mov_b32 s{sVO}, {70*1024}')
if 15 in YP: role('Y', YP[15])
for i in range(2): raw(f'  buffer_load_dwordx4 {V(NREG+4*i)}, v{vL0}, {RWS}, s{sVO} offen offset:{1024*i} sc1')
def p4_post(s):
    out = []
    for t in range(2):
        acc = ACC + 16*(s % 2) + 8*t
        o = OUTR + 8*(s % 2) + 4*t
        for r in range(8): out.append(f'  v_mul_f32 v{acc+r}, v{acc+r}, v{RI[t]}')
        for r in range(4): out.append(f'  v_cvt_pk_bf16_f32 v{o+r}, v{acc+2*r}, v{acc+2*r+1}')
        if 'pairst' in OPT:
            if s % 2:
                out.append(f'  buffer_store_dwordx4 {V(o-8)}, v{vO[t]}, {RO}, 0 offen offset:{64*s-64}{NTO}')
                out.append(f'  buffer_store_dwordx4 {V(o)}, v{vO[t]}, {RO}, 0 offen offset:{64*s}{NTO}')
        else: out.append(f'  buffer_store_dwordx4 {V(o)}, v{vO[t]}, {RO}, 0 offen offset:{64*s}{NTO}')
    return out
proj(lambda t, ks: YB[t][ks], n_read, lambda f: 'P4a' if f < 40 else 'P4b', p4_post,
     {opt('o6', 24): lambda fid: (role('O', (['  s_waitcnt vmcnt(%d)' % (2 if 'pairst' in OPT else 4)] if ODMA else []) + [BAR]), gate('P4b')),
      60: lambda fid: raw('  s_waitcnt vmcnt(8)'),
      opt('ylo', 1): lambda fid: raw('  s_setprio 0') if 'yhi' in OPT else None})
flush()

def regs_of(tok):
    m = re.fullmatch(r'v\[(\d+):(\d+)\]', tok)
    if m: return list(range(int(m.group(1)), int(m.group(2)) + 1))
    m = re.fullmatch(r'-?v(\d+)', tok)
    return [int(m.group(1))] if m else []
def parse(line):
    p = line.strip().split(None, 1)
    op = p[0]; args = [a.strip().split()[0] for a in p[1].split(',')] if len(p) > 1 else []
    return op, args
clock = [0]
mf_w = {}; va_w = {}; tr_w = {}; mf_c = {}
def hazard(line):
    op, args = parse(line); need_ = 0
    allr = [r for a in args for r in regs_of(a)]
    if op.startswith('v_mfma'):
        for r in [r for a in args[1:] for r in regs_of(a)]:
            if r in va_w: need_ = max(need_, 2 - (clock[0] - va_w[r] - 1))
        for r in regs_of(args[1]) + regs_of(args[2]):
            if r in mf_w: need_ = max(need_, 8 - (clock[0] - mf_w[r] - 1))
    elif op.startswith('v_') or op.startswith('buffer_') or op.startswith('ds_'):
        for r in allr:
            if r in mf_w: need_ = max(need_, 8 - (clock[0] - mf_w[r] - 1))
        if op.startswith('v_'):
            for r in regs_of(args[0]):
                if r in mf_c: need_ = max(need_, 3 - (clock[0] - mf_c[r] - 1))
            for r in [r for a in args[1:] for r in regs_of(a)]:
                if r in tr_w: need_ = max(need_, 1 - (clock[0] - tr_w[r] - 1))
    return need_
def emit(line):
    if line.endswith(':'):
        e(line); return
    n = hazard(line)
    if n > 0:
        e(f'  s_nop {n-1}'); clock[0] += n
    op, args = parse(line)
    e(line)
    if op.startswith('v_mfma'):
        for r in regs_of(args[0]): mf_w[r] = clock[0]
        for r in regs_of(args[3]): mf_c[r] = clock[0]
    elif op.startswith('v_'):
        for r in regs_of(args[0]):
            va_w[r] = clock[0]; tr_w.pop(r, None)
            if op in ('v_exp_f32', 'v_rcp_f32'): tr_w[r] = clock[0]
    if op == 's_nop': clock[0] += int(args[0])
    clock[0] += 1

gates = set(); nxt = 0; done_uses = [0]*len(frags)
ops = []; landed = -1; half = [None]
fq = []
def buf_of(f): return ABUF + 4*(f % NB)
def issue_one():
    global nxt
    while True:
        if half[0] is not None:
            emit(half[0]); ops.append(nxt); half[0] = None; nxt += 1; return True
        if nxt >= len(frags): return False
        fr = frags[nxt]
        if fr['gate'] not in gates: return False
        if nxt >= NB and done_uses[nxt-NB] < frags[nxt-NB]['uses']: return False
        if not fr['reads']:
            nxt += 1; continue
        if len(ops) + len(fr['reads']) > (13 if TSM else 15): return False
        b = buf_of(nxt)
        rs = [r.format(d4=V(b), dlo=V(b, 2), dhi=V(b+2, 2)) for r in fr['reads']]
        emit(rs[0]); ops.append(nxt)
        if len(rs) == 2: half[0] = rs[1]
        else: nxt += 1
        return True
def wait_for(f, pair=True):
    global landed, ops
    if f is None or f <= landed: return
    while nxt <= f:
        n0 = nxt
        if not issue_one() and nxt == n0: raise RuntimeError(f'cannot issue frag {nxt}')
    if any(o <= f for o in ops):
        if pair and f + 1 < nxt and sum(1 for o in ops if o > f + 1) >= PAIRMIN: f = f + 1
        n = sum(1 for o in ops if o > f)
        emit(f'  s_waitcnt lgkmcnt({n})')
        ops = [o for o in ops if o > f]
    landed = f
nmf = [0]
BACKLOG = opt('backlog', 6); PAIRMIN = opt('pairmin', 5)
STREAM_NEXT = {}
mi = [i for i, x in enumerate(stream) if x[0] == 'mfma']
for a_, b_ in zip(mi, mi[1:]): STREAM_NEXT[a_] = stream[b_][2]
for si, ent in enumerate(stream):
    k = ent[0]
    if k == 'raw': emit(ent[1])
    elif k == 'fill': fq.append(ent[1])
    elif k == 'flush':
        for l in fq:
            if not l.startswith('#'): emit(l)
        fq = []
    elif k == 'tag': fq.append('#' + ent[1])
    elif k == 'flushto':
        if '#' + ent[1] in fq:
            i = fq.index('#' + ent[1])
            for l in fq[:i]:
                if not l.startswith('#'): emit(l)
            fq = fq[i+1:]
    elif k == 'gate':
        gates.add(ent[1])
        while issue_one(): pass
    elif k in ('need', 'needall'): wait_for(ent[1])
    elif k == 'cond':
        emit(ent[1][0]); el(ent[1][1:])
    elif k == 'mfma':
        wait_for(ent[2])
        if nmf[0] in TSM: e(ts_line())
        nmf[0] += 1
        emit(ent[1](buf_of(ent[2]) if ent[2] is not None else None))
        if ent[2] is not None: done_uses[ent[2]] += 1
        slots = 2
        nf = STREAM_NEXT.get(si)
        if nf is not None and nf > landed: slots -= 1
        ahead = nxt - (ent[2] if ent[2] is not None else landed)
        if issue_one(): slots -= 1
        if (half[0] is not None or (slots > 0 and (not fq or ahead < 6))) and issue_one(): slots -= 1
        if sum(1 for l in fq if 'v_exp' in l) > BACKLOG: slots = max(slots, 2)
        while fq:
            if fq[0].startswith('#'): fq.pop(0); continue
            cost = 2 if ('v_exp' in fq[0] or 'v_rcp' in fq[0]) else 1
            if slots < cost or hazard(fq[0]) > 0: break
            emit(fq.pop(0)); slots -= cost
if TS:
    e('  s_waitcnt vmcnt(0)')
    e(ts_line()); e('  s_memrealtime s[98:99]')
    e('  s_waitcnt lgkmcnt(0)')
    e(f'  s_lshl_b32 s{sT[0]}, s2, 3'); e(f'  s_add_u32 s{sT[0]}, s{sT[0]}, s{sW}'); e(f'  s_lshl_b32 s{sT[0]}, s{sT[0]}, 6')
    e(f'  s_add_u32 s{sT[0]}, s{sT[0]}, 0x100000')
    e('  v_mov_b32 v1, 0')
    for i in range(nts[0]):
        if i == 0: e(f'  v_mov_b32 v2, s{sTS}')
        else:
            e(f'  s_sub_u32 s{sT[1]}, s{sTS+2*i}, s{sTS}'); e(f'  v_mov_b32 v2, s{sT[1]}')
        e(f'  buffer_store_dword v2, v1, s[20:23], s{sT[0]} offen offset:{4*i}')
    e('  v_mov_b32 v2, s96'); e('  v_mov_b32 v3, s98')
    e(f'  buffer_store_dwordx2 v[2:3], v1, s[20:23], s{sT[0]} offen offset:56')
    print('timestamps', nts[0]); assert nts[0] <= 12
e('MK_done:')
e('  s_endpgm')
for t in range(2):
    R = SACC[t]; vm, vt = RI[0], RI[1]
    e(f'FB{t}:')
    e('  s_nop 7')
    e(f'  v_max3_f32 v{vm}, v{R}, v{R+1}, v{R+2}')
    for k in range(3, 31, 2): e(f'  v_max3_f32 v{vm}, v{vm}, v{R+k}, v{R+k+1}')
    e(f'  s_mov_b32 s{sT[6]}, 0xff7fffff')
    e(f'  v_max3_f32 v{vm}, v{vm}, v{R+31}, s{sT[6]}')
    for sw in ('v_permlane32_swap_b32', 'v_permlane16_swap_b32'):
        e(f'  v_mov_b32 v{vt}, v{vm}'); e('  s_nop 1'); e(f'  {sw} v{vm}, v{vt}'); e('  s_nop 1')
        e(f'  v_max_f32 v{vm}, v{vm}, v{vt}')
    for k in range(32): e(f'  v_sub_f32 v{R+k}, v{R+k}, v{vm}')
    for k in range(32): e(f'  v_exp_f32 v{R+k}, v{R+k}')
    e('  s_nop 0')
    for k in range(16): e(f'  v_cvt_pk_bf16_f32 v{PREG[t]+k}, v{R+2*k}, v{R+2*k+1}')
    e('  s_nop 1')
    for kt in range(4): e(mfma(SUM[t], ONES, PREG[t]+4*kt, None if kt == 0 else SUM[t]))
    e('  s_nop 7')
    e(f'  s_branch FBR{t}')
e('MK_end:')
e('.section .rodata,"a"')
e('.p2align 6'); e(f'.amdhsa_kernel {KN}')
e('  .amdhsa_next_free_vgpr 256'); e('  .amdhsa_next_free_sgpr 102'); e('  .amdhsa_accum_offset 256')
e('  .amdhsa_group_segment_fixed_size 0'); e('  .amdhsa_kernarg_size 48'); e('  .amdhsa_user_sgpr_count 2')
e('  .amdhsa_user_sgpr_kernarg_segment_ptr 1'); e('  .amdhsa_system_sgpr_workgroup_id_x 1')
e('.end_amdhsa_kernel')
if 'drop' in OPT:
    kinds = OPT['drop'].split(',')
    i0 = next(i for i, l in enumerate(L) if 'MK_np4:' in l)
    out = []; n = 0
    for i, l in enumerate(L):
        body = i > i0
        if 'mM' in kinds and not body and 'v_mfma' in l: l = '  s_nop 3'
        if 'exp' in kinds and 'v_exp' in l: l = l.replace('v_exp_f32', 'v_mov_b32')
        if 'lds' in kinds and body and 'ds_read_b128' in l:
            l = re.sub(r'ds_read_b128 v\[(\d+):\d+\]', lambda m: f'ds_read_b32 v{m.group(1)}', l)
        if 'tr' in kinds and body and 'ds_read_b64_tr' in l:
            l = re.sub(r'ds_read_b64_tr_b16 v\[(\d+):\d+\], v\d+', lambda m: f'ds_read_b32 v{m.group(1)}, v{vL0}', l)
        if 'mfma' in kinds and body and 'v_mfma' in l:
            n += 1
            if n % 2: l = '  s_nop 3'
        if 'nslab' in kinds and RWO in l and 'buffer_load' in l: l = '  s_nop 0'
        if 'nwv' in kinds and f'v{vNA}, {RW}' in l: l = '  s_nop 0'
        if 'ncomp' in kinds and 's_cbranch_scc1 MK_np2' in l: l = '  s_branch MK_np2'
        if 'st' in kinds and 'buffer_store_dwordx4' in l: l = '  s_nop 0'
        out.append(l)
    L = out
open(OUTF, 'w').write('\n'.join(L) + '\n')
```

```python
import sys, struct, math, re
OPT = dict(a.split('=') if '=' in a else (a, '1') for a in sys.argv[1:])
OUTF = OPT.get('out', 'standalone__neighborhood_nat__vision.s')
TS = 'ts' in OPT
TSM = [int(x) for x in OPT['tsm'].split(',')] if 'tsm' in OPT else []
TSP = 'tsp' in OPT
def opt(k, d): return int(OPT.get(k, d))
L = []
def e(s): L.append(s)
def el(ls):
    for l in ls: L.append(l)

X_BYTES = 19267584
WS_BYTES = 268435456
XB = 10240
ROW = 7680
HALF = 36864
NHI = XB + 12*ROW
WOL = 147456
SCALE = struct.unpack('<I', struct.pack('<f', (192 ** -0.5) * math.log2(math.e)))[0]
NT = ' nt' if 'nt' in OPT else ''
NSC = '' if 'nplain' in OPT else ' sc1'
NTO = ' ' + OPT.get('st', 'nt+sc1').replace('+', ' ')
KN = 'standalone__neighborhood_nat__vision_kernel'

hdr = open('standalone__neighborhood_nat__vision.s.ref').read().split('\n')
for ln in hdr:
    if ln.startswith('; @launch'): break
    e(ln)
e('; @launch grid=(256,1,1) block=(512,1,1) lds=163840')
e('.amdgcn_target "amdgcn-amd-amdhsa--gfx950"')
e('.text')

def srd(d, b, n):
    return [f'  s_mov_b32 s{d}, s{b}', f'  s_and_b32 s{d+1}, s{b+1}, 0xffff', f'  s_mov_b32 s{d+2}, {n}', f'  s_mov_b32 s{d+3}, 0x00020000']
def V(a, n=4): return f'v[{a}:{a+n-1}]'
def mfma(d, a, b, c):
    cs = '0' if c is None else V(c)
    return f'  v_mfma_f32_16x16x32_bf16 {V(d)}, {V(a)}, {V(b)}, {cs}'

vL0, vL1 = 1, 2
vO = (5, 6)
vSe, vSo = 7, 8
vP = (9, 10, 11, 12)
vD = (13, 14, 3, 4)
PB0 = (15, 16, 17, 18)
vCT = 19
SB0 = (20, 0)
vRR = (21, 22)
RI = (22, 23)
SACC = (24, 56); QP = 88; XQ = 136; ACC = 184
ABUF = 216; NB = 10
PREG = (136, 152)
YB = ([140, 144, 148, 168, 172, 152], [156, 160, 164, 176, 180, 72])
YACC = ([24+4*i for i in range(12)], [88+4*i for i in range(12)])
SUM = (184, 188); ONES = 192; ET = 196
OUTR = 24; NREG = 40
MACC = 24; MPK = 104
vWA = 96; vMA, vMB, vMW = (97, 98), (99, 100), (101, 102, 103)
vn, vg, tA, tB, tC, tD = 128, 129, 130, 131, 132, 133
vNB, vNA = 134, 135
sW, sU, sH, sPR, sPC, sKR, sKC, sXB, sGS, sGmin = range(24, 34)
sA2, sR0, sD0, sTR, sM0X, sM0X3, sW4, sWL = range(34, 42)
sINV = (42, 44)
sT = list(range(46, 60))
sMR, sAR, sMC, sAC = sT[10], sT[11], sT[12], sT[13]
sTS = 60
sPROD, sWB, sSC, sVO = 3, 92, 93, 100
RX, RO, RWS, RW, RWO, RDB = 's[12:15]', 's[16:19]', 's[20:23]', 's[88:91]', 's[4:7]', 's[8:11]'
MSK = f's[{sT[6]}:{sT[7]}]'
assert sT[6] % 2 == 0 and sT[2] % 2 == 0

nts = [0]
def ts_line():
    s = f'  s_memtime s[{sTS+2*nts[0]}:{sTS+2*nts[0]+1}]'; nts[0] += 1; return s
def tsp():
    if TSP: e(ts_line())

e(f'.globl {KN}'); e('.p2align 8'); e(f'.type {KN},@function'); e(f'{KN}:')
e('  s_cmp_ge_u32 s2, 256'); e('  s_cbranch_scc1 MK_done')
if TS: e(ts_line()); e('  s_memrealtime s[96:97]')
e('  s_load_dwordx8 s[4:11], s[0:1], 0')
e('  s_load_dwordx4 s[84:87], s[0:1], 32')
if 'nopf' not in OPT:
    e('  s_getpc_b64 s[12:13]'); e('MK_pc:')
    e('  s_and_b32 s13, s13, 0xffff'); e('  s_mov_b32 s14, MK_end-MK_pc'); e('  s_mov_b32 s15, 0x00020000')
    e('  v_lshlrev_b32 v23, 7, v0')
    e('  buffer_load_dword v255, v23, s[12:15], 0 offen')
e(f'  v_lshrrev_b32 v{tA}, 6, v0')
e('  v_and_b32 v0, 63, v0')
e(f'  v_readfirstlane_b32 s{sW}, v{tA}')
e(f'  v_and_b32 v{vn}, 15, v0'); e(f'  v_lshrrev_b32 v{vg}, 4, v0')
e(f'  v_lshrrev_b32 v{tA}, 5, v0'); e(f'  v_bfe_u32 v{tB}, v0, 3, 2'); e(f'  v_lshl_add_u32 v{tA}, v{tA}, 3, v{tB}')
e(f'  v_mul_u32_u24 v{tA}, 1152, v{tA}')
e(f'  s_and_b32 s{sH}, s{sW}, 1')
e(f'  s_lshl_b32 s{sT[0]}, s{sH}, 2')
e(f'  v_add_u32 v{tB}, s{sT[0]}, v{vg}'); e(f'  v_and_b32 v{tC}, 7, v0'); e(f'  v_xor_b32 v{tB}, v{tB}, v{tC}')
e(f'  v_lshl_add_u32 v{vWA}, v{tB}, 4, v{tA}')
e(f'  s_lshr_b32 s{sT[0]}, s{sW}, 2'); e(f'  s_lshl_b32 s{sT[0]}, s{sT[0]}, 5')
e(f'  s_lshl_b32 s{sT[1]}, s{sH}, 4'); e(f'  s_add_u32 s{sT[0]}, s{sT[0]}, s{sT[1]}')
e(f'  s_and_b32 s{sT[1]}, s{sW}, 2'); e(f'  s_lshl_b32 s{sT[1]}, s{sT[1]}, 1'); e(f'  s_add_u32 s{sT[0]}, s{sT[0]}, s{sT[1]}')
e(f'  s_mul_i32 s{sWB}, s{sT[0]}, 1152')
e(f'  s_lshl_b32 s{sWL}, s{sW}, 10')
e(f'  s_cmp_lt_u32 s{sW}, 4'); e('  s_cselect_b64 vcc, -1, 0')
e(f'  s_bfe_u32 s{sPR}, s2, 0x10002')
e(f'  s_bfe_u32 s{sPC}, s2, 0x10001')
e(f'  s_and_b32 s{sKR}, s2, 1'); e(f'  s_lshl_b32 s{sKR}, s{sKR}, 2')
e(f'  s_lshr_b32 s{sT[0]}, s2, 6'); e(f'  s_add_u32 s{sKR}, s{sKR}, s{sT[0]}')
e(f'  s_bfe_u32 s{sKC}, s2, 0x30003')
e(f'  s_mul_i32 s{sTR}, s{sKR}, 14'); e(f'  s_add_i32 s{sTR}, s{sTR}, -6'); e(f'  s_max_i32 s{sKR}, s{sTR}, -4')
e(f'  s_mul_i32 s{sKC}, s{sKC}, 14'); e(f'  s_add_i32 s{sKC}, s{sKC}, -6')
e(f'  s_lshr_b32 s{sU}, s{sW}, 1'); e(f'  s_add_u32 s{sU}, s{sU}, 2'); e(f'  s_and_b32 s{sU}, s{sU}, 3')
e(f'  s_sub_u32 s{sMR}, 0, s{sPR}'); e(f'  s_mul_i32 s{sAR}, s{sPR}, 224')
e(f'  s_sub_u32 s{sMC}, 0, s{sPC}'); e(f'  s_mul_i32 s{sAC}, s{sPC}, 224')
e(f'  v_and_b32 v{tA}, 7, v{vn}')
e(f'  s_mul_i32 s{sT[0]}, s{sH}, 7'); e(f'  s_add_i32 s{sT[0]}, s{sT[0]}, s{sKC}')
e(f'  v_cmp_lt_u32 s[{sT[2]}:{sT[3]}], 6, v{tA}')
e(f'  v_add_u32 v{tA}, s{sT[0]}, v{tA}')
e(f'  v_max_i32 v{vCT}, 0, v{tA}')
e(f'  v_add3_u32 v{tA}, v{tA}, v{vCT}, 6')
e(f'  v_xor_b32 v{tA}, s{sMC}, v{tA}'); e(f'  v_add_u32 v{tA}, s{sAC}, v{tA}')
e(f'  v_subrev_u32 v{vCT}, s{sKC}, v{vCT}')
e(f'  v_mul_u32_u24 v{tA}, 384, v{tA}'); e(f'  v_lshl_add_u32 v{tA}, v{vg}, 4, v{tA}')
e(f'  s_lshl_b32 s{sT[0]}, s{sU}, 2'); e(f'  s_add_i32 s{sT[0]}, s{sT[0]}, -2')
e(f'  s_mov_b32 s{sT[1]}, 86016')
e(f'  v_lshrrev_b32 v{tB}, 3, v{vn}'); e(f'  v_add_u32 v{tB}, s{sT[0]}, v{tB}')
e(f'  v_mov_b32 v{tC}, 0x80000000')
for t in range(2):
    if t: e(f'  v_add_u32 v{tB}, 2, v{tB}')
    e(f'  v_cmp_gt_i32 s[{sINV[t]}:{sINV[t]+1}], 0, v{tB}')
    e(f'  v_add_u32 v{vO[t]}, s{sTR}, v{tB}')
    e(f'  v_max_i32 v{vRR[t]}, 0, v{vO[t]}')
    e(f'  v_add3_u32 v{vO[t]}, v{vO[t]}, v{vRR[t]}, 6')
    e(f'  s_or_b64 s[{sINV[t]}:{sINV[t]+1}], s[{sINV[t]}:{sINV[t]+1}], s[{sT[2]}:{sT[3]}]')
    e(f'  v_xor_b32 v{vO[t]}, s{sMR}, v{vO[t]}'); e(f'  v_add_u32 v{vO[t]}, s{sAR}, v{vO[t]}')
    e(f'  v_subrev_u32 v{vRR[t]}, s{sKR}, v{vRR[t]}')
    e(f'  v_mad_u32_u24 v{vO[t]}, v{vO[t]}, s{sT[1]}, v{tA}')
    e(f'  v_cndmask_b32 v{vRR[t]}, v{vRR[t]}, v{tC}, s[{sINV[t]}:{sINV[t]+1}]')
    e(f'  v_cndmask_b32 v{vO[t]}, v{vO[t]}, v{tC}, s[{sINV[t]}:{sINV[t]+1}]')

e('  s_waitcnt lgkmcnt(0)')
tsp()
el(srd(88, 6, 192*576*2))
if 'notlb' not in OPT:
    e(f'  s_cmp_lg_u32 s{sW}, 5'); e('  s_cbranch_scc1 MK_ntlb')
    e(f'  s_max_i32 s{sT[0]}, s{sTR}, 0'); e(f'  s_lshl_b32 s{sT[0]}, s{sT[0]}, 1'); e(f'  s_sub_u32 s{sT[1]}, 184, s{sT[0]}')
    e(f'  s_cmp_eq_u32 s{sPR}, 0'); e(f'  s_cselect_b32 s{sT[0]}, s{sT[0]}, s{sT[1]}'); e(f'  s_mul_i32 s{sT[0]}, s{sT[0]}, 86016')
    for k in range(3):
        e(f'  s_load_dword s94, s[4:5], s{sT[0]}'); e(f'  s_load_dword s95, s[10:11], s{sT[0]}')
        if k < 2: e(f'  s_add_u32 s{sT[0]}, s{sT[0]}, {20*86016 - 64}')
    e(f'  s_load_dword s94, s[84:85], 128'); e(f'  s_load_dword s95, s[86:87], 0x20000')
    e('MK_ntlb:')

def w_pieces(c, partner=0):
    return [[f'  s_add_u32 m0, s{sWL}, {c*49152 + mat*24576 + j*8192 + partner*4096}',
             f'  s_add_u32 s{sVO}, s{sWB}, {(j*64 + partner*32)*1152 + mat*384 + c*128}',
             f'  buffer_load_dwordx4 v{vWA}, {RW}, s{sVO} offen lds'] for mat in range(2) for j in range(3)]
def q_loads():
    return [f'  buffer_load_dwordx4 {V(XQ+24*t+4*s_)}, v{vO[t]}, {RX}, 0 offen offset:{64*s_}{NT}' for t in (1, 0) for s_ in range(6)]
SCH = {'O': OPT.get('so', 'A:W0,C:W1,0:W2,3:q4,4:q8'), 'Y': OPT.get('sy', 'A:W0,C:W1,0:W2,1:q6,2:q6')}
PLAN = {}; ISS = {'O': [], 'Y': []}
for r_, sp in SCH.items():
    qi = 0
    for part in sp.split(','):
        pos, items = part.split(':')
        for it in items.split('+'):
            lst = PLAN.setdefault((r_, pos), [])
            if it[0] == 'W': lst += [(f'W{it[1]}', p) for p in w_pieces(int(it[1]))]
            elif it[0] == 'V': lst += [(f'W{it[1]}', p) for p in w_pieces(int(it[1]), 1)]
            elif it in 'pr':
                assert pos == 'A'
                lst.append(('t', [f'  v_min_u32 v253, 2, v{vg}', f'  v_mad_u32_u24 v253, v253, s{sT[8]}, v{vO[1 if it == "p" else 0]}',
                                  f'  buffer_load_dword v{252 if it == "p" else 251}, v253, {RX}, 0 offen']))
            else:
                for _ in range(int(it[1:])):
                    if r_ == 'Y' and qi >= 6: lst.append(('b', [f'  s_cmp_eq_u32 s{sU}, 0', f'  s_cbranch_scc1 QB{qi}', q_loads()[qi], f'QB{qi}:']))
                    else: lst.append(('q', [q_loads()[qi]]))
                    qi += 1
    assert qi == 12
lbl = [0]
def role_lines(r_, lines):
    lbl[0] += 1
    return [f'  s_cbranch_vcc{"z" if r_ == "O" else "nz"} SL{lbl[0]}'] + list(lines) + [f'SL{lbl[0]}:']
def role2_lines(lo, ly):
    lbl[0] += 1; n = lbl[0]
    return [f'  s_cbranch_vccz SL{n}'] + list(lo) + [f'  s_branch SM{n}', f'SL{n}:'] + list(ly) + [f'SM{n}:']
def sched_items(pos):
    o, y = list(PLAN.get(('O', pos), [])), list(PLAN.get(('Y', pos), []))
    out = []
    while o or y: out.append((o.pop(0) if o else None, y.pop(0) if y else None))
    return out
def emit_item(it):
    o, y = it
    if o: ISS['O'].append(o[0])
    if y: ISS['Y'].append(y[0])
    if o and y and o == y: el(o[1])
    elif o and y: el(role2_lines(o[1], y[1]))
    elif o: el(role_lines('O', o[1]))
    else: el(role_lines('Y', y[1]))
def emit_pos(pos):
    o, y = PLAN.get(('O', pos), []), PLAN.get(('Y', pos), [])
    k = 0
    while k < len(o) and k < len(y) and o[k] == y[k]: emit_item((o[k], y[k])); k += 1
    for r_, x in (('O', o[k:]), ('Y', y[k:])):
        if x:
            ISS[r_] += [i[0] for i in x]; el(role_lines(r_, sum((i[1] for i in x), [])))
def after(r_, tag):
    l = ISS[r_]
    if tag not in l: return 63
    return min(63, len(l) - 1 - max(i for i, t in enumerate(l) if t == tag))

if 'nowpf' not in OPT:
    e(f'  s_cmp_lt_u32 s{sW}, 6'); e('  s_cbranch_scc1 MK_nwpf')
    e(f'  s_cmp_eq_u32 s{sW}, 6'); e(f'  s_cselect_b32 s{sT[0]}, 54, 18')
    e('  s_cselect_b32 s12, s6, s8'); e('  s_cselect_b32 s13, s7, s9'); e('  s_and_b32 s13, s13, 0xffff')
    e(f'  s_lshr_b32 s{sT[1]}, s2, 3'); e(f'  s_mul_i32 s{sT[1]}, s{sT[1]}, s{sT[0]}'); e(f'  s_lshl_b32 s{sVO}, s{sT[1]}, 7')
    e(f'  s_lshl_b32 s{sT[0]}, s{sT[0]}, 7'); e(f'  s_add_u32 s14, s{sVO}, s{sT[0]}'); e('  s_mov_b32 s15, 0x00020000')
    e('  v_lshlrev_b32 v23, 7, v0')
    e(f'  buffer_load_dword v254, v23, s[12:15], s{sVO} offen')
    e('MK_nwpf:')
el(srd(12, 4, X_BYTES))
e(f'  s_movk_i32 s{sT[8]}, 112')
emit_pos('A')
emit_pos('B')
tsp()
el(srd(16, 10, X_BYTES)); el(srd(4, 8, 192*192*2)); el(srd(8, 84, 256)); el(srd(20, 86, WS_BYTES if TS else 73728))
e(f'  v_lshlrev_b32 v{vL0}, 4, v0')
e(f'  v_add_u32 v{vL1}, {HALF}, v{vL0}')
e(f'  s_and_b32 s{sW4}, s{sW}, 3'); e(f'  s_lshl_b32 s{sW4}, s{sW4}, 10')
e(f'  v_bfe_u32 v{tA}, v{vn}, 1, 3'); e(f'  v_xor_b32 v{tA}, v{tA}, v{vg}')
e(f'  v_lshlrev_b32 v{tB}, 7, v{vn}'); e(f'  v_lshl_add_u32 v{tB}, v{tA}, 4, v{tB}')
e(f'  s_lshr_b32 s{sT[0]}, s{sW}, 2'); e(f'  s_mul_i32 s{sT[1]}, s{sT[0]}, {6*2048}')
e(f'  v_add_u32 v{vMA[0]}, s{sT[1]}, v{tB}'); e(f'  v_xor_b32 v{vMA[1]}, 64, v{vMA[0]}')
e(f'  s_mul_i32 s{sT[1]}, s{sW4}, 6'); e(f'  s_add_u32 s{sT[1]}, s{sT[1]}, 24576')
e(f'  v_add_u32 v{vMB[0]}, s{sT[1]}, v{tB}'); e(f'  v_xor_b32 v{vMB[1]}, 64, v{vMB[0]}')
F = []; f_ = F.append
f_(f'  s_lshr_b32 s{sT[0]}, s{sW}, 2'); f_(f'  s_mul_i32 s{sT[0]}, s{sT[0]}, 6'); f_(f'  s_sub_u32 s{sT[0]}, 67, s{sT[0]}')
f_(f'  s_and_b32 s{sT[1]}, s{sW}, 3'); f_(f'  s_mul_i32 s{sT[1]}, s{sT[1]}, 3')
for b in range(3):
    f_(f'  s_add_u32 s{sT[2]}, s{sT[1]}, {b}')
    f_(f'  s_lshr_b32 s{sT[3]}, s{sT[2]}, 1'); f_(f'  s_mul_i32 s{sT[3]}, s{sT[3]}, 10')
    f_(f'  s_add_u32 s{sT[2]}, s{sT[2]}, s{sT[3]}')
    f_(f'  s_sub_u32 s{sT[2]}, s{sT[0]}, s{sT[2]}'); f_(f'  s_lshl_b32 s{sT[2]}, s{sT[2]}, 10')
    f_(f'  v_add_u32 v{vMW[b]}, s{sT[2]}, v{vL0}')
f_(f'  s_lshl_b32 s{sT[0]}, s{sKR}, 1'); f_(f'  s_xor_b32 s{sT[0]}, s{sT[0]}, s{sMR}')
f_(f'  s_mul_i32 s{sT[1]}, s{sPR}, 222'); f_(f'  s_add_i32 s{sXB}, s{sT[0]}, s{sT[1]}')
f_(f'  s_mul_i32 s{sXB}, s{sXB}, 86016')
f_(f'  s_mul_i32 s{sGS}, s{sPR}, {-2*344064}'); f_(f'  s_add_i32 s{sGS}, s{sGS}, 344064')
f_(f'  s_lshr_b32 s{sGmin}, s{sKR}, 31'); f_(f'  s_lshl_b32 s{sGmin}, s{sGmin}, 1')
f_(f'  s_lshl_b32 s{sM0X}, s{sW4}, 2')
f_(f'  s_add_u32 s{sM0X3}, s{sM0X}, 3072'); f_(f'  s_min_u32 s{sM0X3}, s{sM0X3}, {14*1024}')
f_(f'  s_mul_i32 s{sT[2]}, s{sPR}, 172032'); f_(f'  s_sub_u32 s{sT[3]}, 172032, s{sT[2]}')
f_(f'  v_mov_b32 v{tC}, s{sT[2]}'); f_(f'  v_mov_b32 v{tD}, s{sT[3]}')
for b in range(960): assert (b * 2731) >> 16 == b // 24
for j in range(4):
    d = vD[j]
    if j < 3:
        f_(f'  s_lshr_b32 s{sT[0]}, s{sM0X}, 4'); f_(f'  s_add_u32 s{sT[0]}, s{sT[0]}, {64*j}')
    else: f_(f'  s_lshr_b32 s{sT[0]}, s{sM0X3}, 4')
    f_(f'  v_add_u32 v{tA}, s{sT[0]}, v0')
    f_(f'  v_mul_u32_u24 v{d}, 2731, v{tA}'); f_(f'  v_lshrrev_b32 v{d}, 16, v{d}')
    f_(f'  v_cmp_le_u32 {MSK}, 20, v{d}')
    f_(f'  v_mul_u32_u24 v{tB}, 24, v{d}'); f_(f'  v_sub_u32 v{tA}, v{tA}, v{tB}')
    f_(f'  v_subrev_u32 v{tB}, 20, v{d}')
    f_(f'  v_cndmask_b32 v{d}, v{d}, v{tB}, {MSK}')
    f_(f'  v_bfe_u32 v{tB}, v{d}, 1, 3'); f_(f'  v_xor_b32 v{tA}, v{tA}, v{tB}')
    f_(f'  v_cndmask_b32 v{tB}, v{tC}, v{tD}, {MSK}')
    f_(f'  v_lshl_add_u32 v{tA}, v{tA}, 4, v{tB}')
    f_(f'  v_add_u32 v{d}, s{sKC}, v{d}'); f_(f'  v_max_i32 v{d}, 0, v{d}'); f_(f'  v_lshlrev_b32 v{d}, 1, v{d}')
    f_(f'  v_xor_b32 v{d}, s{sMC}, v{d}'); f_(f'  v_add_u32 v{d}, s{sAC}, v{d}')
    f_(f'  v_mul_u32_u24 v{d}, 384, v{d}'); f_(f'  v_add_u32 v{d}, v{d}, v{tA}')
f_(f'  s_add_u32 s{sM0X}, s{sM0X}, {XB}'); f_(f'  s_add_u32 s{sM0X3}, s{sM0X3}, {XB}')
for dst, add in ((sT[0], -2), (sA2, 0)):
    f_(f'  s_lshl_b32 s{dst}, s{sU}, 2')
    if add: f_(f'  s_add_i32 s{dst}, s{dst}, {add}'); f_(f'  s_max_i32 s{dst}, s{dst}, 0')
    f_(f'  s_add_i32 s{dst}, s{dst}, s{sTR}'); f_(f'  s_max_i32 s{dst}, s{dst}, 0'); f_(f'  s_sub_i32 s{dst}, s{dst}, s{sKR}')
f_(f'  s_sub_u32 s{sT[0]}, s{sA2}, s{sT[0]}'); f_(f'  s_lshr_b32 s{sT[0]}, s{sT[0]}, 1')
f_(f'  s_mul_i32 s{sD0}, s{sT[0]}, -8'); f_(f'  s_add_i32 s{sD0}, s{sD0}, 7')
f_(f'  s_add_i32 s{sA2}, s{sA2}, -1')
f_(f'  s_add_i32 s{sR0}, s{sA2}, s{sD0}'); f_(f'  s_mul_i32 s{sD0}, s{sD0}, {ROW}')
f_(f'  s_lshl_b32 s{sT[1]}, s{sH}, 2')
f_(f'  s_mul_i32 s{sT[0]}, s{sA2}, {ROW}'); f_(f'  s_add_i32 s{sT[0]}, s{sT[0]}, {XB}')
f_(f'  v_add_u32 v{tA}, s{sT[1]}, v{vn}')
f_(f'  v_bfe_u32 v{tB}, v{tA}, 1, 3'); f_(f'  v_xor_b32 v{tB}, v{tB}, v{vg}')
f_(f'  v_mul_u32_u24 v{tA}, 384, v{tA}'); f_(f'  v_lshl_add_u32 v{tA}, v{tB}, 4, v{tA}')
f_(f'  v_add_u32 v{vSe}, s{sT[0]}, v{tA}'); f_(f'  v_xor_b32 v{vSo}, 64, v{vSe}')
f_(f'  v_lshrrev_b32 v{tA}, 2, v{vn}'); f_(f'  v_lshl_add_u32 v{tA}, v{vg}, 2, v{tA}'); f_(f'  v_add_u32 v{tA}, s{sT[1]}, v{tA}')
f_(f'  v_bfe_u32 v{tB}, v{tA}, 1, 3')
f_(f'  v_and_b32 v{tC}, 2, v{vn}'); f_(f'  v_lshlrev_b32 v{tC}, 1, v{tC}'); f_(f'  v_xor_b32 v{tB}, v{tB}, v{tC}')
f_(f'  v_mul_u32_u24 v{tA}, 384, v{tA}'); f_(f'  v_lshl_add_u32 v{tA}, v{tB}, 4, v{tA}')
f_(f'  v_and_b32 v{tB}, 1, v{vn}'); f_(f'  v_lshl_add_u32 v{tA}, v{tB}, 3, v{tA}')
f_(f'  v_add_u32 v{vP[0]}, s{sT[0]}, v{tA}')
for k in range(1, 4): f_(f'  v_xor_b32 v{vP[k]}, {16*k}, v{vP[0]}')
f_(f'  v_lshl_add_u32 v{tA}, v{vg}, 2, s{sT[1]}'); f_(f'  v_sub_u32 v{vCT}, v{tA}, v{vCT}')
f_(f'  v_add_u32 v{SB0[0]}, s{sD0}, v{vSe}'); f_(f'  v_add_u32 v{SB0[1]}, s{sD0}, v{vSo}')
for k in range(4): f_(f'  v_add_u32 v{PB0[k]}, s{sD0}, v{vP[k]}')
f_(f'  s_mov_b32 s{sSC}, {SCALE}')
NPRE = opt('npre', 999)
el(F[:NPRE]); F = F[NPRE:]

def dma_x(G):
    out = []
    if G < 2: out += [f'  s_max_u32 s{sVO}, s{sGmin}, {G}', f'  s_mul_i32 s{sVO}, s{sVO}, s{sGS}']
    else: out.append(f'  s_mul_i32 s{sVO}, s{sGS}, {G}')
    out.append(f'  s_add_i32 s{sVO}, s{sVO}, s{sXB}')
    for j in range(4):
        out.append(f'  s_add_u32 m0, s{sM0X}, {G*15360 + j*1024}' if j < 3 else f'  s_add_u32 m0, s{sM0X3}, {G*15360}')
        out.append('  s_nop 0')
        out.append(f'  buffer_load_dwordx4 v{vD[j]}, {RX}, s{sVO} offen{NT} lds')
    return out
def dma_xs(Gs): return sum((dma_x(G) for G in Gs), [])
def bias_init(tmp):
    out = []; o = out.append
    cb, ninf, tt = tmp, tmp+4, tmp+5
    o(f'  v_mov_b32 v{ninf}, 0xff800000')
    for i in range(4): o(f'  v_add_u32 v{tt+i}, {i}, v{vCT}')
    for i in range(4): o(f'  v_cmp_gt_u32 s[{sT[2+2*i]}:{sT[3+2*i]}], 7, v{tt+i}')
    for i in range(4): o(f'  v_cndmask_b32 v{cb+i}, v{ninf}, 0, s[{sT[2+2*i]}:{sT[3+2*i]}]')
    for t in range(2):
        for j4 in range(2):
            for jj in range(4*j4, 4*j4+4):
                slot = jj + 2*t; r = tt + jj % 4
                if slot == 0: o(f'  v_sub_u32 v{r}, s{sR0}, v{vRR[t]}')
                else:
                    o(f'  s_add_i32 s{sT[0]}, s{sA2}, {slot-1}'); o(f'  v_sub_u32 v{r}, s{sT[0]}, v{vRR[t]}')
            for q in range(4): o(f'  v_cmp_gt_u32 s[{sT[2+2*q]}:{sT[3+2*q]}], 7, v{tt+q}')
            for jj in range(4*j4, 4*j4+4):
                q = jj % 4
                for i in range(4):
                    o(f'  v_cndmask_b32 v{SACC[t]+4*jj+i}, v{ninf}, v{cb+i}, s[{sT[2+2*q]}:{sT[3+2*q]}]')
    return out

tsp()
emit_pos('C')
tsp()
vLN = 107
def n_loads():
    e(f'  v_lshrrev_b32 v{vLN}, 4, v{vL0}')
    e(f'  s_cmp_lt_u32 s2, 72'); e('  s_cbranch_scc0 MK_np1')
    e(f'  s_mul_hi_u32 s{sT[8]}, s2, 0x15555556'); e(f'  s_lshl_b32 s{sT[8]}, s{sT[8]}, 6')
    e(f'  s_mul_i32 s{sT[9]}, s{sW}, {16*384}'); e(f'  s_add_u32 s{sVO}, s{sT[8]}, s{sT[9]}')
    e(f'  v_lshrrev_b32 v{MPK}, 2, v{vLN}'); e(f'  v_mul_u32_u24 v{MPK}, 384, v{MPK}'); e(f'  v_and_b32 v{MPK+1}, 3, v{vLN}'); e(f'  v_lshl_add_u32 v{MPK}, v{MPK+1}, 4, v{MPK}')
    e(f'  s_add_u32 m0, s{sWL}, {WOL}'); e('  s_nop 0')
    e(f'  buffer_load_dwordx4 v{MPK}, {RWO}, s{sVO} offen lds')
    e(f'  s_mul_i32 s{sT[9]}, s{sW4}, 6'); e(f'  s_add_u32 s{sVO}, s{sT[8]}, s{sT[9]}')
    e(f'  s_add_u32 m0, s{sW4}, {WOL + 8192}'); e(f'  s_add_u32 s{sVO}, s{sVO}, {8*16*384}')
    e(f'  buffer_load_dwordx4 v{MPK}, {RWO}, s{sVO} offen lds')
    e('MK_np1:')
    e(f'  s_sub_u32 s{sPROD}, s2, 72'); e(f'  s_lshr_b32 s{sPROD}, s{sPROD}, 31')
    e(f'  s_lshr_b32 s{sPROD}, s{sPROD}, s{sU}')
    e(f'  v_mov_b32 v{vNB}, 0')
    e(f'  s_cmp_eq_u32 s{sPROD}, 0'); e('  s_cbranch_scc1 MK_np3')
    e(f'  s_mul_hi_u32 s{sT[8]}, s2, 0x15555556'); e(f'  s_mul_i32 s{sT[9]}, s{sT[8]}, 12'); e(f'  s_sub_u32 s{sT[9]}, s2, s{sT[9]}')
    e(f'  s_and_b32 s{sT[5]}, s{sT[9]}, 1'); e(f'  s_lshr_b32 s{sT[9]}, s{sT[9]}, 1')
    e(f'  v_lshrrev_b32 v{MPK+2}, 2, v{vn}'); e(f'  v_and_b32 v{MPK+1}, 3, v{vn}')
    e(f'  v_lshl_add_u32 v{vNB}, v{vg}, 3, v{MPK+2}'); e(f'  v_lshlrev_b32 v{vNB}, 6, v{vNB}'); e(f'  v_lshl_add_u32 v{vNB}, v{MPK+1}, 4, v{vNB}')
    e(f'  s_lshl_b32 s{sT[5]}, s{sT[5]}, 3'); e(f'  s_add_u32 s{sT[5]}, s{sT[5]}, {WOL}'); e(f'  v_add_u32 v{vNB}, s{sT[5]}, v{vNB}')
    e(f'  s_lshr_b32 s{sT[8]}, s{sT[9]}, 1'); e(f'  s_lshl_b32 s{sT[8]}, s{sT[8]}, 6')
    e(f'  s_and_b32 s{sT[9]}, s{sT[9]}, 1'); e(f'  s_lshl_b32 s{sT[9]}, s{sT[9]}, 4'); e(f'  s_add_u32 s{sT[8]}, s{sT[8]}, s{sT[9]}')
    e(f'  v_lshrrev_b32 v{MPK}, 1, v{MPK+2}'); e(f'  v_lshlrev_b32 v{MPK}, 5, v{MPK}')
    e(f'  v_and_b32 v{MPK+2}, 1, v{MPK+2}'); e(f'  v_lshl_add_u32 v{MPK}, v{MPK+2}, 2, v{MPK}')
    e(f'  v_add3_u32 v{MPK}, v{MPK}, v{MPK+1}, s{sT[8]}')
    e(f'  v_mul_u32_u24 v{MPK}, 1152, v{MPK}'); e(f'  v_lshl_add_u32 v{vNA}, v{vg}, 4, v{MPK}')
    e(f'  s_mul_i32 s{sVO}, s{sH}, 9216')
    for kk in range(6):
        e(f'  buffer_load_dwordx4 {V(136+4*kk)}, v{vNA}, {RW}, s{sVO} offen offset:{768+64*kk}')
    e('MK_np3:')
def m_reads(kk):
    rb = 184 + 36*(kk % 2); co = (kk // 2) * 49152
    lo = co if co < 49152*2 else 0
    return ([f'  ds_read_b128 {V(rb+24+4*b)}, v{vMB[kk % 2]} offset:{2048*b}' for b in range(3)] +
            [f'  ds_read_b128 {V(rb+4*a)}, v{vMA[kk % 2]} offset:{2048*a}' for a in range(6)])
def chunk_sync(c, lg):
    wo_, wy_ = after('O', f'W{c}'), after('Y', f'W{c}')
    x = ' lgkmcnt(0)' if lg else ''
    def w(n, prod):
        if c == 2 and prod and ISS['Y'].count('b'):
            return [f'  s_cmp_lg_u32 s{sU}, 0', '  s_cbranch_scc1 MK_c2', f'  s_waitcnt vmcnt({n - ISS["Y"].count("b")})', 'MK_c2:', f'  s_waitcnt vmcnt({n}){x}']
        if c != 1 or n == 63: return [f'  s_waitcnt vmcnt({n}){x}']
        lbl[0] += 1; k = lbl[0]; o = []
        if prod: o += [f'  s_cmp_lg_u32 s{sPROD}, 0', f'  s_cbranch_scc1 CA{k}']
        o += ['  s_cmp_lt_u32 s2, 72', f'  s_cbranch_scc1 CB{k}', f'  s_waitcnt vmcnt({n})', f'CB{k}:']
        if prod: o += [f'  s_waitcnt vmcnt({n+2})', f'CA{k}:', f'  s_waitcnt vmcnt({n+8}){x}']
        else: o += [f'  s_waitcnt vmcnt({n+2}){x}']
        return o
    if c == 2:
        wo_, wy_ = min(wo_, len(ISS['O']) - N_AT['O']), min(wy_, len(ISS['Y']) - N_AT['Y'])
    if wo_ == wy_ and c != 2: el(w(wo_, True))
    else: el(role2_lines(w(wo_, False), w(wy_, True)))
    e('  s_barrier')
    tsp()
N_AT = {}
FPG = opt('fpg', 4)
chunk_sync(0, False)
el(m_reads(0))
for kk in range(4):
    landed_all = False
    if kk % 2 == 1:
        chunk_sync(kk // 2 + 1, True); landed_all = True
        for r in vMA + vMB: e(f'  v_add_u32 v{r}, 49152, v{r}')
    extra = sched_items(str(kk)); ne = len(extra); cnt = 0
    rb = 184 + 36*(kk % 2)
    nx = m_reads(kk+1)
    issued = 0
    for a in range(6):
        if not landed_all: e(f'  s_waitcnt lgkmcnt({5 - a + issued})')
        for b in range(3):
            acc = MACC + 12*a + 4*b
            e(mfma(acc, rb+4*a, rb+24+4*b, None if kk == 0 else acc))
            slots = FPG
            if nx and b < 2 and (a >= 1 or landed_all):
                e(nx.pop(0)); issued += 1; slots -= 1
            cnt += 1
            while extra and (ne - len(extra)) * 18 < cnt * ne: emit_item(extra.pop(0)); slots = 0
            el(F[:slots]); F = F[slots:]
    assert not nx and not extra
    if kk == 0: n_loads(); N_AT.update(O=len(ISS['O']), Y=len(ISS['Y']))
print('leftover F', len(F), file=sys.stderr); el(F); F = []
assert ISS['Y'].count('q') <= 6
e(f'  s_cmp_eq_u32 s{sPROD}, 0'); e('  s_cbranch_scc1 MK_np2')
e('  s_waitcnt lgkmcnt(0)')
for k2 in range(6):
    for hf in range(2):
        e(f'  ds_read_b64_tr_b16 {V(MPK+4*k2+2*hf, 2)}, v{vNB} offset:{(32*k2 + 4*hf)*64}')
e('  s_setprio 3'); e('  s_waitcnt lgkmcnt(0)')
for kk in range(6):
    e(mfma(128, 136+4*kk, MPK+4*kk, None if kk == 0 else 128))
e(f'  s_lshl_b32 s{sVO}, s2, 10'); e(f'  s_lshl_b32 s{sT[8]}, s{sH}, 3'); e(f'  s_add_u32 s{sVO}, s{sVO}, s{sT[8]}')
e('  s_nop 5')
for r in range(2): e(f'  v_cvt_pk_bf16_f32 v{132+r}, v{128+2*r}, v{129+2*r}')
e(f'  buffer_store_dwordx2 v[132:133], v{vL0}, {RWS}, s{sVO} offen sc1')
NY_AT_STORE = len(ISS['Y'])
e('  s_setprio 0')
e('MK_np2:')
r5 = m_reads(5)
el(r5[:5]); late = r5[5:]
extra = sched_items('4'); ne = len(extra); cnt = 0
pend = []; nw = 0
for fi in range(9):
    a3, b = fi // 3, fi % 3
    if fi == 0: e('  s_waitcnt lgkmcnt(5)')
    for kk in (4, 5):
        rb = 184 + 36*(kk % 2)
        if fi == 0 and kk == 5: e('  s_waitcnt lgkmcnt(2)')
        if fi == 3 and kk == 5: e(f'  s_waitcnt lgkmcnt({nw})')
        for a in (2*a3, 2*a3+1):
            acc = MACC + 12*a + 4*b
            e(mfma(acc, rb+4*a, rb+24+4*b, acc)); cnt += 1
            if late: e(late.pop(0))
            k = 0
            while pend and pend[0][0] <= cnt and k < 2:
                l = pend.pop(0)[1]; e(l); k += 1
                if 'ds_write' in l: nw += 1
            while extra and (ne - len(extra)) * 36 < cnt * ne: emit_item(extra.pop(0))
    o = MPK + 4*(fi % 6)
    for a in range(2):
        acc = MACC + 12*(2*a3 + a) + 4*b
        for i in range(2): pend.append((cnt + 5, f'  v_cvt_pk_bf16_f32 v{o+2*a+i}, v{acc+2*i}, v{acc+2*i+1}'))
    pend.append((cnt + 5, f'  ds_write_b128 v{vMW[b]}, {V(o)} offset:{2048*(2-a3)}'))
assert not extra
tsp()
for i, (_, l) in enumerate(pend):
    if len(pend) - i == 5: e('  s_nop 3')
    e(l)
e('  s_waitcnt lgkmcnt(0)')
e('  s_barrier')
tsp()
NXY = opt('nxy', 2)
XH = (9, 8, 7, 6, 5)
assert ('Y', 'Z') not in PLAN and ('Y', '4') not in PLAN
y = [f'  s_cmp_lg_u32 s{sU}, 0', '  s_cbranch_scc1 MK_z1'] + [f'  v_mov_b32 v{XQ+r}, 0' for r in range(24)] + ['MK_z1:',
     f'  s_cmp_lg_u32 s{sPROD}, 0', '  s_cbranch_scc1 MK_np4', '  s_waitcnt vmcnt(0)', 'MK_np4:', '  s_waitcnt vmcnt(1)', '  s_setprio 1']
o_ = sum((ls for _, ls in PLAN.get(('O', 'Z'), [])), []) + dma_xs(XH[:NXY]) + bias_init(100) + [f'  s_waitcnt vmcnt({4*NXY})']
PRE_P1 = (o_, y)
PUB = [f'  s_cmp_eq_u32 s{sPROD}, 0', '  s_cbranch_scc1 MK_np5', '  s_waitcnt vmcnt(0)', '  v_mov_b32 v23, 1', '  s_mov_b64 exec, 1',
       f'  buffer_atomic_add v23, off, {RDB}, 0 sc1', '  s_mov_b64 exec, -1', '  s_nop 3', 'MK_np5:']

stream = []; frags = []
def add_frag(reads, gate): frags.append(dict(reads=reads, gate=gate, uses=0)); return len(frags) - 1
def use(fid, fn): frags[fid]['uses'] += 1; stream.append(('mfma', fn, fid))
def mf(text): stream.append(('mfma', (lambda buf: text), None))
def raw(*lines):
    for l in lines: stream.append(('raw', l))
def fill(*lines):
    for l in lines: stream.append(('fill', l))
def flush(): stream.append(('flush',))
def need(fid): stream.append(('need', fid))
def gate(name): stream.append(('gate', name))
def role(r, lines): stream.append(('cond', role_lines(r, lines)))
def role2(lo, ly): stream.append(('cond', role2_lines(lo, ly)))
BAR = '  s_barrier'
def m_read(f):
    addr = (71-f)*1024
    if addr < HALF: return [f'  ds_read_b128 {{d4}}, v{vL0} offset:{addr}']
    return [f'  ds_read_b128 {{d4}}, v{vL1} offset:{addr-HALF}']
def n_addr(f): return NHI + 30720 + 1024*f if f < 30 else ((f-30)*1024 if f < 40 else NHI + (f-40)*1024)
def n_read(f):
    if f >= 70: return []
    a = n_addr(f)
    return [f'  ds_read_b128 {{d4}}, v{vL1} offset:{a-NHI}' if a >= NHI else f'  ds_read_b128 {{d4}}, v{vL0} offset:{a}']
def dma_n(a, b):
    out = []
    for f0 in range(a, b, 4):
        lim = (b - 1 - f0) * 1024; src = sW4
        if lim < 3072: out.append(f'  s_min_u32 s{sT[5]}, s{sW4}, {lim}'); src = sT[5]
        out += [f'  s_add_u32 m0, s{src}, {n_addr(f0)}', f'  s_add_u32 s{sVO}, s{src}, {f0*1024}',
                f'  buffer_load_dwordx4 v{vL0}, {RWS}, s{sVO} offen{NSC} lds']
    return out
def proj(B, rd, gate_of, post, hooks):
    for s in range(6):
        for ks in range(6):
            for hh in range(2):
                f = 12*s + 2*ks + hh
                fid = add_frag(rd(f), gate_of(f))
                if f in hooks: hooks[f](fid)
                for t in range(2):
                    acc = ACC + 16*(s % 2) + 8*t + 4*hh
                    fx = None if rd(f) else NREG + 4*(f-70)
                    use(fid, (lambda buf, acc=acc, t=t, ks=ks, fx=fx: mfma(acc, buf if fx is None else fx, B(t, ks), None if ks == 0 else acc)))
        flush()
        fill(*post(s))

gate('G0')
role2(PRE_P1[0], PRE_P1[1])
def p1_post(s):
    out = []
    for t in (1, 0):
        if t == 0 and s == 5: out.append('#QP5a')
        acc = ACC + 16*(s % 2) + 8*t
        for r in range(8): out.append(f'  v_mul_f32 v{acc+r}, s{sSC}, v{acc+r}')
        for r in range(4): out.append(f'  v_cvt_pk_bf16_f32 v{QP+24*t+4*s+r}, v{acc+2*r}, v{acc+2*r+1}')
    return out
proj(lambda t, ks: XQ+24*t+4*ks, m_read, lambda f: 'G0', p1_post,
     {31: lambda fid: (need(fid), role2([BAR], PUB)),
      61: lambda fid: (need(fid), role('O', ['  s_waitcnt vmcnt(0)', BAR]))})
if 'p1flush' in OPT: flush()
stream.append(('tag', 'QP5'))
fill(f'  v_add_u32 v{vL1}, {NHI}, v{vL0}')
for r in range(4): fill(f'  v_mov_b32 v{ONES+r}, 0x3f803f80')
POLL = f'  buffer_load_dword v13, off, {RDB}, 0 sc1'
PMODE = opt('pmode', 1)
role('Y', ['  s_setprio 0'] + dma_xs(XH[NXY:]) + [BAR] + dma_xs((4, 3, 2)) + bias_init(XQ) +
     ['  s_waitcnt vmcnt(12)', BAR] + dma_xs((1, 0)) + ['  s_waitcnt vmcnt(8)', BAR])
for _ in range(opt('idle', 0)): raw('  s_sleep 8')
gate('S')
etn = [0]
def sm_fill(t, jj):
    tmp = ET + 4*(etn[0] % 5); etn[0] += 1
    acc = SACC[t] + 4*jj
    for i in range(4): fill(f'  v_exp_f32 v{tmp+i}, v{acc+i}')
    for i in range(2): fill(f'  v_cvt_pk_bf16_f32 v{PREG[t]+2*jj+i}, v{tmp+2*i}, v{tmp+2*i+1}')
    stream.append(('tag', f'P{t}_{jj}'))
def sum_mfmas(t):
    stream.append(('flushto', f'P{t}_0'))
    for kt in (3, 2, 1, 0): mf(mfma(SUM[t], ONES, PREG[t]+4*kt, None if kt == 3 else SUM[t]))
LO, HI = (127-30) << 23, (127+30) << 23
def check(t):
    raw(f'  v_subrev_u32 v{RI[1]}, {LO}, v{SUM[t]}')
    raw(f'  s_mov_b32 s{sT[6]}, {HI-LO}')
    raw(f'  v_cmp_gt_u32 s[{sT[2]}:{sT[3]}], s{sT[6]}, v{RI[1]}')
    raw(f'  s_or_b64 s[{sT[2]}:{sT[3]}], s[{sT[2]}:{sT[3]}], s[{sINV[t]}:{sINV[t]+1}]')
    raw(f'  s_cmp_eq_u64 s[{sT[2]}:{sT[3]}], -1')
    raw(f'  s_cbranch_scc0 FB{t}')
    raw(f'FBR{t}:')
pollw = [f'  s_mov_b32 s{sT[7]}, 0x400000', 'NPOLL:', '  s_waitcnt vmcnt(0)', f'  v_readfirstlane_b32 s{sT[0]}, v13', f'  s_sub_u32 s{sT[7]}, s{sT[7]}, 1',
         f'  s_cselect_b32 s{sT[0]}, 144, s{sT[0]}', f'  s_cmp_ge_u32 s{sT[0]}, 144', '  s_cbranch_scc1 NPOLLD', POLL, '  s_branch NPOLL', 'NPOLLD:']
ODMA = 'ydma' not in OPT
if not ODMA: pollw = [POLL.replace(' sc1', '')] + pollw
YP = {opt('y5a', 7): [BAR] + pollw + dma_n(0, 30) + dma_n(30, 40),
      opt('y5b', 10): ['  s_waitcnt vmcnt(0)', BAR] + dma_n(40, 70),
      opt('y6', 12): ['  s_waitcnt vmcnt(0)', BAR]}
assert len(YP) == 3
if ODMA: YP = {k: [BAR] for k in YP}
if 'yhi' in OPT: YP[opt('yhi', 0)] = YP.get(opt('yhi', 0), []) + ['  s_setprio 1']
O4B = opt('o4b', 6)
for k, slot in enumerate(range(9, -1, -1)):
    if k == 2:
        role2([BAR], ['  s_waitcnt vmcnt(0)', BAR]); gate('S2')
    if k == O4B: role('O', [BAR] + ([POLL.replace(' sc1', '')] if ODMA else []))
    if k in YP: role('Y', YP[k])
    for s in range(6):
        if slot == 0 and s == 3: sum_mfmas(1)
        if slot == 9 and s == 5: stream.append(('flushto', 'QP5a'))
        if slot == 7 and s == 5: stream.append(('flushto', 'QP5'))
        if slot == 0: base, off = SB0[s % 2], 128*(s//2)
        else: base, off = (vSe, vSo)[s % 2], (slot-1)*ROW + 128*(s//2)
        fid = add_frag([f'  ds_read_b128 {{d4}}, v{base} offset:{off}'], 'S' if slot >= 6 else 'S2')
        for t in (1, 0):
            jj = slot - 2*t
            if 0 <= jj < 8:
                acc = SACC[t] + 4*jj
                use(fid, (lambda buf, acc=acc, t=t, s=s: mfma(acc, buf, QP+24*t+4*s, acc)))
    for t in (1, 0):
        jj = slot - 2*t
        if 0 <= jj < 8: sm_fill(t, jj)
check(1)
YC1 = 0
def ycvt(t, ks, _=0):
    return [f'  v_cvt_pk_bf16_f32 v{YB[t][ks]+2*hf+i}, v{YACC[t][2*ks+hf]+2*i}, v{YACC[t][2*ks+hf]+2*i+1}' for hf in range(2) for i in range(2)]
lastf = None
for k, st in enumerate(range(4, -1, -1)):
    if k == 1:
        sum_mfmas(0); check(0)
        for t in range(2): fill(f'  v_rcp_f32 v{RI[t]}, v{SUM[t]}')
    if k == 2: need(lastf); role('O', [BAR] + (pollw + dma_n(30, 40) + dma_n(0, 30) if ODMA else []))
    if 10 + k in YP: role('Y', YP[10 + k])
    for ct in range(12):
        tl = [t for t in (1, 0) if 0 <= st - t < 4]
        b_, e_ = ct // 4, ct % 4
        rd = []
        for hf in range(2):
            slot = 2*st + hf
            if slot == 0: base, off = PB0[e_], 128*b_
            else: base, off = vP[e_], (slot-1)*ROW + 128*b_
            rd.append(f'  ds_read_b64_tr_b16 {{d{"lo" if hf == 0 else "hi"}}}, v{base} offset:{off}')
        fid = add_frag(rd, 'S2'); lastf = fid
        if k == 4 and ct == opt('o5b', 6):
            stream.append(('needall', fid + 11 - ct)); role('O', ['  s_waitcnt vmcnt(0)', BAR] + dma_n(40, 70) if ODMA else [BAR]); gate('P4a')
        for t in tl:
            acc = YACC[t][ct]
            use(fid, (lambda buf, acc=acc, t=t, st=st: mfma(acc, buf, PREG[t]+4*(st-t), None if st - t == 3 else acc)))
        if k == 3 and ct % 2 and ct < 12 - YC1: fill(*ycvt(1, ct // 2, 1))
        if k == 4 and ct % 2: fill(*ycvt(0, ct // 2, 0)); stream.append(('tag', f'YB{ct // 2}'))
    if k == 3:
        for ks in range(6 - YC1 // 2, 6): fill(*ycvt(1, ks, 1))
NLD = [f'  s_mov_b32 s{sVO}, {70*1024}'] + [f'  buffer_load_dwordx4 {V(NREG+4*i)}, v{vL0}, {RWS}, s{sVO} offen offset:{1024*i} sc1' for i in range(2)]
if 15 in YP: role('Y', YP[15])
def p4_post(s):
    out = []
    for t in range(2):
        acc = ACC + 16*(s % 2) + 8*t
        o = OUTR + 8*(s % 2) + 4*t
        for r in range(8): out.append(f'  v_mul_f32 v{acc+r}, v{acc+r}, v{RI[t]}')
        for r in range(4): out.append(f'  v_cvt_pk_bf16_f32 v{o+r}, v{acc+2*r}, v{acc+2*r+1}')
        if 'pairst' in OPT:
            if s % 2:
                out.append(f'  buffer_store_dwordx4 {V(o-8)}, v{vO[t]}, {RO}, 0 offen offset:{64*s-64}{NTO}')
                out.append(f'  buffer_store_dwordx4 {V(o)}, v{vO[t]}, {RO}, 0 offen offset:{64*s}{NTO}')
        else: out.append(f"  buffer_store_dwordx4 {V(o)}, v{vO[t]}, {RO}, 0 offen offset:{64*s}{NTO if s < opt('stn', 6) else ' ' + OPT.get('st2', '')}")
    return out
proj(lambda t, ks: YB[t][ks], n_read, lambda f: 'P4a' if f < 40 else 'P4b', p4_post,
     {**{2*ks: (lambda fid, ks=ks: stream.append(('flushto', f'YB{ks}'))) for ks in range(6)},
      12: lambda fid: raw(*NLD),
      opt('o6', 24): lambda fid: (role('O', (['  s_waitcnt vmcnt(%d)' % (2 if 'pairst' in OPT else 4)] if ODMA else []) + [BAR]), gate('P4b')),
      60: lambda fid: raw('  s_waitcnt vmcnt(8)'),
      opt('ylo', 1): lambda fid: raw('  s_setprio 0') if 'yhi' in OPT else None})
flush()

def regs_of(tok):
    m = re.fullmatch(r'v\[(\d+):(\d+)\]', tok)
    if m: return list(range(int(m.group(1)), int(m.group(2)) + 1))
    m = re.fullmatch(r'-?v(\d+)', tok)
    return [int(m.group(1))] if m else []
def parse(line):
    p = line.strip().split(None, 1)
    op = p[0]; args = [a.strip().split()[0] for a in p[1].split(',')] if len(p) > 1 else []
    return op, args
clock = [0]
mf_w = {}; va_w = {}; tr_w = {}; mf_c = {}
def hazard(line):
    op, args = parse(line); need_ = 0
    allr = [r for a in args for r in regs_of(a)]
    if op.startswith('v_mfma'):
        for r in [r for a in args[1:] for r in regs_of(a)]:
            if r in va_w: need_ = max(need_, 2 - (clock[0] - va_w[r] - 1))
        for r in regs_of(args[1]) + regs_of(args[2]):
            if r in mf_w: need_ = max(need_, 8 - (clock[0] - mf_w[r] - 1))
    elif op.startswith('v_') or op.startswith('buffer_') or op.startswith('ds_'):
        for r in allr:
            if r in mf_w: need_ = max(need_, 8 - (clock[0] - mf_w[r] - 1))
        if op.startswith('v_'):
            for r in regs_of(args[0]):
                if r in mf_c: need_ = max(need_, 3 - (clock[0] - mf_c[r] - 1))
            for r in [r for a in args[1:] for r in regs_of(a)]:
                if r in tr_w: need_ = max(need_, 1 - (clock[0] - tr_w[r] - 1))
    return need_
def emit(line):
    if line.endswith(':'):
        e(line); return
    n = hazard(line)
    if n > 0:
        e(f'  s_nop {n-1}'); clock[0] += n
    op, args = parse(line)
    e(line)
    if op.startswith('v_mfma'):
        for r in regs_of(args[0]): mf_w[r] = clock[0]
        for r in regs_of(args[3]): mf_c[r] = clock[0]
    elif op.startswith('v_'):
        for r in regs_of(args[0]):
            va_w[r] = clock[0]; tr_w.pop(r, None)
            if op in ('v_exp_f32', 'v_rcp_f32'): tr_w[r] = clock[0]
    if op == 's_nop': clock[0] += int(args[0])
    clock[0] += 1

gates = set(); nxt = 0; done_uses = [0]*len(frags)
ops = []; landed = -1; half = [None]
fq = []
def buf_of(f): return ABUF + 4*(f % NB)
def issue_one():
    global nxt
    while True:
        if half[0] is not None:
            emit(half[0]); ops.append(nxt); half[0] = None; nxt += 1; return True
        if nxt >= len(frags): return False
        fr = frags[nxt]
        if fr['gate'] not in gates: return False
        if nxt >= NB and done_uses[nxt-NB] < frags[nxt-NB]['uses']: return False
        if not fr['reads']:
            nxt += 1; continue
        if len(ops) + len(fr['reads']) > (13 if TSM else 15): return False
        b = buf_of(nxt)
        rs = [r.format(d4=V(b), dlo=V(b, 2), dhi=V(b+2, 2)) for r in fr['reads']]
        emit(rs[0]); ops.append(nxt)
        if len(rs) == 2: half[0] = rs[1]
        else: nxt += 1
        return True
def wait_for(f, pair=True):
    global landed, ops
    if f is None or f <= landed: return
    while nxt <= f:
        n0 = nxt
        if not issue_one() and nxt == n0: raise RuntimeError(f'cannot issue frag {nxt}')
    if any(o <= f for o in ops):
        if pair and f + 1 < nxt and sum(1 for o in ops if o > f + 1) >= PAIRMIN: f = f + 1
        n = sum(1 for o in ops if o > f)
        emit(f'  s_waitcnt lgkmcnt({n})')
        ops = [o for o in ops if o > f]
    landed = f
def wr(l):
    op, args = parse(l)
    return set() if op.startswith('buffer_') else set(regs_of(args[0]))
def rdset(l):
    op, args = parse(l)
    return set(r for a in (args if op.startswith('buffer_') else args[1:]) for r in regs_of(a))
def pick(pred):
    W, R = set(), set()
    for i, l in enumerate(fq[:WINDOW]):
        if l.startswith('#'): continue
        if pred(l) and not (rdset(l) & W) and not (wr(l) & (W | R)) and hazard(l) <= 0: return i
        W |= wr(l); R |= rdset(l)
    return None
def is2(l): return 'v_exp' in l or 'v_rcp' in l
def isst(l): return 'buffer_store' in l
def gap(si, ent):
    while fq and fq[0].startswith('#'): fq.pop(0)
    cur = ent[2] if ent[2] is not None else landed
    nf = STREAM_NEXT.get(si)
    wnext = nf is not None and nf > landed
    ahead = nxt - cur
    i = pick(isst)
    if i is not None and half[0] is None and ahead >= MINAHEAD:
        emit(fq.pop(i))
        i = pick(lambda l: not is2(l) and not isst(l))
        if i is not None: emit(fq.pop(i))
        return
    slots = 1 if wnext else 2
    nexp = sum(1 for l in fq if is2(l))
    if not wnext and half[0] is None and ahead >= EXPAHEAD:
        i = pick(is2)
        if i is not None:
            emit(fq.pop(i)); return
    if issue_one(): slots -= 1
    if (half[0] is not None or slots > 0 and (nexp or not fq or ahead < 6)) and issue_one(): slots -= 1
    if nexp > BACKLOG: slots = max(slots, 1 if pick(lambda l: not is2(l) and not isst(l)) is not None else 2)
    while slots > 0:
        i = pick(is2) if slots >= 2 else None
        if i is not None:
            emit(fq.pop(i)); slots -= 2; continue
        i = pick(lambda l: not is2(l) and not isst(l))
        if i is None: break
        emit(fq.pop(i)); slots -= 1
WINDOW = opt('window', 16); MINAHEAD = opt('minahead', 5); EXPAHEAD = opt('expahead', 7)
nmf = [0]
BACKLOG = opt('backlog', 6); PAIRMIN = opt('pairmin', 5)
STREAM_NEXT = {}
mi = [i for i, x in enumerate(stream) if x[0] == 'mfma']
for a_, b_ in zip(mi, mi[1:]): STREAM_NEXT[a_] = stream[b_][2]
for si, ent in enumerate(stream):
    k = ent[0]
    if k == 'raw': emit(ent[1])
    elif k == 'fill': fq.append(ent[1])
    elif k == 'flush':
        for l in fq:
            if not l.startswith('#'): emit(l)
        fq = []
    elif k == 'tag': fq.append('#' + ent[1])
    elif k == 'flushto':
        if '#' + ent[1] in fq:
            i = fq.index('#' + ent[1])
            for l in fq[:i]:
                if not l.startswith('#'): emit(l)
            fq = fq[i+1:]
    elif k == 'gate':
        gates.add(ent[1])
        while issue_one(): pass
    elif k in ('need', 'needall'): wait_for(ent[1])
    elif k == 'cond':
        emit(ent[1][0]); el(ent[1][1:])
    elif k == 'mfma':
        wait_for(ent[2])
        if nmf[0] in TSM: e(ts_line())
        nmf[0] += 1
        emit(ent[1](buf_of(ent[2]) if ent[2] is not None else None))
        if ent[2] is not None: done_uses[ent[2]] += 1
        gap(si, ent)
if TS:
    e('  s_waitcnt vmcnt(0)')
    e(ts_line()); e('  s_memrealtime s[98:99]')
    e('  s_waitcnt lgkmcnt(0)')
    e(f'  s_lshl_b32 s{sT[0]}, s2, 3'); e(f'  s_add_u32 s{sT[0]}, s{sT[0]}, s{sW}'); e(f'  s_lshl_b32 s{sT[0]}, s{sT[0]}, 6')
    e(f'  s_add_u32 s{sT[0]}, s{sT[0]}, 0x100000')
    e('  v_mov_b32 v1, 0')
    for i in range(nts[0]):
        if i == 0: e(f'  v_mov_b32 v2, s{sTS}')
        else:
            e(f'  s_sub_u32 s{sT[1]}, s{sTS+2*i}, s{sTS}'); e(f'  v_mov_b32 v2, s{sT[1]}')
        e(f'  buffer_store_dword v2, v1, s[20:23], s{sT[0]} offen offset:{4*i}')
    e('  v_mov_b32 v2, s96'); e('  v_mov_b32 v3, s98')
    e(f'  buffer_store_dwordx2 v[2:3], v1, s[20:23], s{sT[0]} offen offset:56')
    print('timestamps', nts[0]); assert nts[0] <= 12
e('MK_done:')
e('  s_endpgm')
for t in range(2):
    R = SACC[t]; vm, vt = RI[0], RI[1]
    e(f'FB{t}:')
    e('  s_nop 7')
    e(f'  v_max3_f32 v{vm}, v{R}, v{R+1}, v{R+2}')
    for k in range(3, 31, 2): e(f'  v_max3_f32 v{vm}, v{vm}, v{R+k}, v{R+k+1}')
    e(f'  s_mov_b32 s{sT[6]}, 0xff7fffff')
    e(f'  v_max3_f32 v{vm}, v{vm}, v{R+31}, s{sT[6]}')
    for sw in ('v_permlane32_swap_b32', 'v_permlane16_swap_b32'):
        e(f'  v_mov_b32 v{vt}, v{vm}'); e('  s_nop 1'); e(f'  {sw} v{vm}, v{vt}'); e('  s_nop 1')
        e(f'  v_max_f32 v{vm}, v{vm}, v{vt}')
    for k in range(32): e(f'  v_sub_f32 v{R+k}, v{R+k}, v{vm}')
    for k in range(32): e(f'  v_exp_f32 v{R+k}, v{R+k}')
    e('  s_nop 0')
    for k in range(16): e(f'  v_cvt_pk_bf16_f32 v{PREG[t]+k}, v{R+2*k}, v{R+2*k+1}')
    e('  s_nop 1')
    for kt in range(4): e(mfma(SUM[t], ONES, PREG[t]+4*kt, None if kt == 0 else SUM[t]))
    e('  s_nop 7')
    e(f'  s_branch FBR{t}')
e('MK_end:')
e('.section .rodata,"a"')
e('.p2align 6'); e(f'.amdhsa_kernel {KN}')
e('  .amdhsa_next_free_vgpr 256'); e('  .amdhsa_next_free_sgpr 102'); e('  .amdhsa_accum_offset 256')
e('  .amdhsa_group_segment_fixed_size 0'); e('  .amdhsa_kernarg_size 48'); e('  .amdhsa_user_sgpr_count 2')
e('  .amdhsa_user_sgpr_kernarg_segment_ptr 1'); e('  .amdhsa_system_sgpr_workgroup_id_x 1')
e('.end_amdhsa_kernel')
if 'drop' in OPT:
    kinds = OPT['drop'].split(',')
    i0 = next(i for i, l in enumerate(L) if 'MK_np4:' in l)
    out = []; n = 0
    for i, l in enumerate(L):
        body = i > i0
        if 'mM' in kinds and not body and 'v_mfma' in l: l = '  s_nop 3'
        if 'exp' in kinds and 'v_exp' in l: l = l.replace('v_exp_f32', 'v_mov_b32')
        if 'lds' in kinds and body and 'ds_read_b128' in l:
            l = re.sub(r'ds_read_b128 v\[(\d+):\d+\]', lambda m: f'ds_read_b32 v{m.group(1)}', l)
        if 'tr' in kinds and body and 'ds_read_b64_tr' in l:
            l = re.sub(r'ds_read_b64_tr_b16 v\[(\d+):\d+\], v\d+', lambda m: f'ds_read_b32 v{m.group(1)}, v{vL0}', l)
        if 'mfma' in kinds and body and 'v_mfma' in l:
            n += 1
            if n % 2: l = '  s_nop 3'
        if 'nslab' in kinds and RWO in l and 'buffer_load' in l: l = '  s_nop 0'
        if 'nwv' in kinds and f'v{vNA}, {RW}' in l: l = '  s_nop 0'
        if 'ncomp' in kinds and 's_cbranch_scc1 MK_np2' in l: l = '  s_branch MK_np2'
        if 'st' in kinds and 'buffer_store_dwordx4' in l: l = '  s_nop 0'
        out.append(l)
    L = out
open(OUTF, 'w').write('\n'.join(L) + '\n')
```

```python
import sys, struct, math, re
OPT = dict(a.split('=') if '=' in a else (a, '1') for a in sys.argv[1:])
OUTF = OPT.get('out', 'standalone__neighborhood_nat__vision.s')
TS = 'ts' in OPT
TSM = [int(x) for x in OPT['tsm'].split(',')] if 'tsm' in OPT else []
TSP = 'tsp' in OPT
def opt(k, d): return int(OPT.get(k, d))
L = []
def e(s): L.append(s)
def el(ls):
    for l in ls: L.append(l)

X_BYTES = 19267584
WS_BYTES = 268435456
XB = 10240
ROW = 7680
HALF = 36864
NHI = XB + 12*ROW
WOL = 147456
SCALE = struct.unpack('<I', struct.pack('<f', (192 ** -0.5) * math.log2(math.e)))[0]
NT = ' nt' if 'nt' in OPT else ''
NSC = '' if 'nplain' in OPT else ' sc1'
NTO = ' ' + OPT.get('st', 'nt+sc1').replace('+', ' ')
KN = 'standalone__neighborhood_nat__vision_kernel'

hdr = open('standalone__neighborhood_nat__vision.s.ref').read().split('\n')
for ln in hdr:
    if ln.startswith('; @launch'): break
    e(ln)
e('; @launch grid=(256,1,1) block=(512,1,1) lds=163840')
e('.amdgcn_target "amdgcn-amd-amdhsa--gfx950"')
e('.text')

def srd(d, b, n):
    return [f'  s_mov_b32 s{d}, s{b}', f'  s_and_b32 s{d+1}, s{b+1}, 0xffff', f'  s_mov_b32 s{d+2}, {n}', f'  s_mov_b32 s{d+3}, 0x00020000']
def V(a, n=4): return f'v[{a}:{a+n-1}]'
def mfma(d, a, b, c):
    cs = '0' if c is None else V(c)
    return f'  v_mfma_f32_16x16x32_bf16 {V(d)}, {V(a)}, {V(b)}, {cs}'

vL0, vL1 = 1, 2
vO = (5, 6)
vSe, vSo = 7, 8
vP = (9, 10, 11, 12)
vD = (13, 14, 3, 4)
PB0 = (15, 16, 17, 18)
vCT = 19
SB0 = (20, 0)
vRR = (21, 22)
RI = (22, 23)
SACC = (24, 56); QP = 88; XQ = 136; ACC = 184
ABUF = 216; NB = 10
PREG = (136, 152)
YB = ([140, 144, 148, 168, 172, 152], [156, 160, 164, 176, 180, 72])
YACC = ([24+4*i for i in range(12)], [88+4*i for i in range(12)])
SUM = (184, 188); ONES = 192; ET = 196
OUTR = 24; NREG = 40
MACC = 24; MPK = 104
vWA = 96; vMA, vMB, vMW = (97, 98), (99, 100), (101, 102, 103)
vn, vg, tA, tB, tC, tD = 128, 129, 130, 131, 132, 133
vNB, vNA = 134, 135
sW, sU, sH, sPR, sPC, sKR, sKC, sXB, sGS, sGmin = range(24, 34)
sA2, sR0, sD0, sTR, sM0X, sM0X3, sW4, sWL = range(34, 42)
sINV = (42, 44)
sT = list(range(46, 60))
sMR, sAR, sMC, sAC = sT[10], sT[11], sT[12], sT[13]
sTS = 60
sPROD, sWB, sSC, sVO = 3, 92, 93, 100
RX, RO, RWS, RW, RWO, RDB = 's[12:15]', 's[16:19]', 's[20:23]', 's[88:91]', 's[4:7]', 's[8:11]'
MSK = f's[{sT[6]}:{sT[7]}]'
assert sT[6] % 2 == 0 and sT[2] % 2 == 0

nts = [0]
def ts_line():
    s = f'  s_memtime s[{sTS+2*nts[0]}:{sTS+2*nts[0]+1}]'; nts[0] += 1; return s
def tsp():
    if TSP: e(ts_line())

e(f'.globl {KN}'); e('.p2align 8'); e(f'.type {KN},@function'); e(f'{KN}:')
e('  s_cmp_ge_u32 s2, 256'); e('  s_cbranch_scc1 MK_done')
if TS: e(ts_line()); e('  s_memrealtime s[96:97]')
e('  s_load_dwordx8 s[4:11], s[0:1], 0')
e('  s_load_dwordx4 s[84:87], s[0:1], 32')
if 'nopf' not in OPT:
    e('  s_getpc_b64 s[12:13]'); e('MK_pc:')
    e('  s_and_b32 s13, s13, 0xffff'); e('  s_mov_b32 s14, MK_end-MK_pc'); e('  s_mov_b32 s15, 0x00020000')
    e('  v_lshlrev_b32 v23, 7, v0')
    e('  buffer_load_dword v255, v23, s[12:15], 0 offen')
e(f'  v_lshrrev_b32 v{tA}, 6, v0')
e('  v_and_b32 v0, 63, v0')
e(f'  v_readfirstlane_b32 s{sW}, v{tA}')
e(f'  v_and_b32 v{vn}, 15, v0'); e(f'  v_lshrrev_b32 v{vg}, 4, v0')
e(f'  v_lshrrev_b32 v{tA}, 5, v0'); e(f'  v_bfe_u32 v{tB}, v0, 3, 2'); e(f'  v_lshl_add_u32 v{tA}, v{tA}, 3, v{tB}')
e(f'  v_mul_u32_u24 v{tA}, 1152, v{tA}')
e(f'  s_and_b32 s{sH}, s{sW}, 1')
e(f'  s_lshl_b32 s{sT[0]}, s{sH}, 2')
e(f'  v_add_u32 v{tB}, s{sT[0]}, v{vg}'); e(f'  v_and_b32 v{tC}, 7, v0'); e(f'  v_xor_b32 v{tB}, v{tB}, v{tC}')
e(f'  v_lshl_add_u32 v{vWA}, v{tB}, 4, v{tA}')
e(f'  s_lshr_b32 s{sT[0]}, s{sW}, 2'); e(f'  s_lshl_b32 s{sT[0]}, s{sT[0]}, 5')
e(f'  s_lshl_b32 s{sT[1]}, s{sH}, 4'); e(f'  s_add_u32 s{sT[0]}, s{sT[0]}, s{sT[1]}')
e(f'  s_and_b32 s{sT[1]}, s{sW}, 2'); e(f'  s_lshl_b32 s{sT[1]}, s{sT[1]}, 1'); e(f'  s_add_u32 s{sT[0]}, s{sT[0]}, s{sT[1]}')
e(f'  s_mul_i32 s{sWB}, s{sT[0]}, 1152')
e(f'  s_lshl_b32 s{sWL}, s{sW}, 10')
e(f'  s_cmp_lt_u32 s{sW}, 4'); e('  s_cselect_b64 vcc, -1, 0')
e(f'  s_bfe_u32 s{sPR}, s2, 0x10002')
e(f'  s_bfe_u32 s{sPC}, s2, 0x10001')
e(f'  s_and_b32 s{sKR}, s2, 1'); e(f'  s_lshl_b32 s{sKR}, s{sKR}, 2')
e(f'  s_lshr_b32 s{sT[0]}, s2, 6'); e(f'  s_add_u32 s{sKR}, s{sKR}, s{sT[0]}')
e(f'  s_bfe_u32 s{sKC}, s2, 0x30003')
e(f'  s_mul_i32 s{sTR}, s{sKR}, 14'); e(f'  s_add_i32 s{sTR}, s{sTR}, -6'); e(f'  s_max_i32 s{sKR}, s{sTR}, -4')
e(f'  s_mul_i32 s{sKC}, s{sKC}, 14'); e(f'  s_add_i32 s{sKC}, s{sKC}, -6')
e(f'  s_lshr_b32 s{sU}, s{sW}, 1'); e(f'  s_add_u32 s{sU}, s{sU}, 2'); e(f'  s_and_b32 s{sU}, s{sU}, 3')
e(f'  s_sub_u32 s{sMR}, 0, s{sPR}'); e(f'  s_mul_i32 s{sAR}, s{sPR}, 224')
e(f'  s_sub_u32 s{sMC}, 0, s{sPC}'); e(f'  s_mul_i32 s{sAC}, s{sPC}, 224')
e(f'  v_and_b32 v{tA}, 7, v{vn}')
e(f'  s_mul_i32 s{sT[0]}, s{sH}, 7'); e(f'  s_add_i32 s{sT[0]}, s{sT[0]}, s{sKC}')
e(f'  v_cmp_lt_u32 s[{sT[2]}:{sT[3]}], 6, v{tA}')
e(f'  v_add_u32 v{tA}, s{sT[0]}, v{tA}')
e(f'  v_max_i32 v{vCT}, 0, v{tA}')
e(f'  v_add3_u32 v{tA}, v{tA}, v{vCT}, 6')
e(f'  v_xor_b32 v{tA}, s{sMC}, v{tA}'); e(f'  v_add_u32 v{tA}, s{sAC}, v{tA}')
e(f'  v_subrev_u32 v{vCT}, s{sKC}, v{vCT}')
e(f'  v_mul_u32_u24 v{tA}, 384, v{tA}'); e(f'  v_lshl_add_u32 v{tA}, v{vg}, 4, v{tA}')
e(f'  s_lshl_b32 s{sT[0]}, s{sU}, 2'); e(f'  s_add_i32 s{sT[0]}, s{sT[0]}, -2')
e(f'  s_mov_b32 s{sT[1]}, 86016')
e(f'  v_lshrrev_b32 v{tB}, 3, v{vn}'); e(f'  v_add_u32 v{tB}, s{sT[0]}, v{tB}')
e(f'  v_mov_b32 v{tC}, 0x80000000')
for t in range(2):
    if t: e(f'  v_add_u32 v{tB}, 2, v{tB}')
    e(f'  v_cmp_gt_i32 s[{sINV[t]}:{sINV[t]+1}], 0, v{tB}')
    e(f'  v_add_u32 v{vO[t]}, s{sTR}, v{tB}')
    e(f'  v_max_i32 v{vRR[t]}, 0, v{vO[t]}')
    e(f'  v_add3_u32 v{vO[t]}, v{vO[t]}, v{vRR[t]}, 6')
    e(f'  s_or_b64 s[{sINV[t]}:{sINV[t]+1}], s[{sINV[t]}:{sINV[t]+1}], s[{sT[2]}:{sT[3]}]')
    e(f'  v_xor_b32 v{vO[t]}, s{sMR}, v{vO[t]}'); e(f'  v_add_u32 v{vO[t]}, s{sAR}, v{vO[t]}')
    e(f'  v_subrev_u32 v{vRR[t]}, s{sKR}, v{vRR[t]}')
    e(f'  v_mad_u32_u24 v{vO[t]}, v{vO[t]}, s{sT[1]}, v{tA}')
    e(f'  v_cndmask_b32 v{vRR[t]}, v{vRR[t]}, v{tC}, s[{sINV[t]}:{sINV[t]+1}]')
    e(f'  v_cndmask_b32 v{vO[t]}, v{vO[t]}, v{tC}, s[{sINV[t]}:{sINV[t]+1}]')

e('  s_waitcnt lgkmcnt(0)')
tsp()
el(srd(88, 6, 192*576*2))
if 'notlb' not in OPT:
    e(f'  s_cmp_lg_u32 s{sW}, 5'); e('  s_cbranch_scc1 MK_ntlb')
    e(f'  s_max_i32 s{sT[0]}, s{sTR}, 0'); e(f'  s_lshl_b32 s{sT[0]}, s{sT[0]}, 1'); e(f'  s_sub_u32 s{sT[1]}, 184, s{sT[0]}')
    e(f'  s_cmp_eq_u32 s{sPR}, 0'); e(f'  s_cselect_b32 s{sT[0]}, s{sT[0]}, s{sT[1]}'); e(f'  s_mul_i32 s{sT[0]}, s{sT[0]}, 86016')
    for k in range(3):
        e(f'  s_load_dword s94, s[4:5], s{sT[0]}'); e(f'  s_load_dword s95, s[10:11], s{sT[0]}')
        if k < 2: e(f'  s_add_u32 s{sT[0]}, s{sT[0]}, {20*86016 - 64}')
    e(f'  s_load_dword s94, s[84:85], 128'); e(f'  s_load_dword s95, s[86:87], 0x20000')
    e('MK_ntlb:')

def w_pieces(c, partner=0):
    return [[f'  s_add_i32 m0, s{sWL}, {c*49152 + mat*24576 + j*8192 + partner*4096}',
             f'  s_add_i32 s{sVO}, s{sWB}, {(j*64 + partner*32)*1152 + mat*384 + c*128}',
             f'  buffer_load_dwordx4 v{vWA}, {RW}, s{sVO} offen lds'] for mat in range(2) for j in range(3)]
def q_loads():
    return [f'  buffer_load_dwordx4 {V(XQ+24*t+4*s_)}, v{vO[t]}, {RX}, 0 offen offset:{64*s_}{NT}' for t in (1, 0) for s_ in range(6)]
SCH = {'O': OPT.get('so', 'A:W0,C:W1,0:W2,3:q4,4:q8'), 'Y': OPT.get('sy', 'A:W0,C:W1,0:W2,1:q6,2:q6')}
PLAN = {}; ISS = {'O': [], 'Y': []}
for r_, sp in SCH.items():
    qi = 0
    for part in sp.split(','):
        pos, items = part.split(':')
        for it in items.split('+'):
            lst = PLAN.setdefault((r_, pos), [])
            if it[0] == 'W': lst += [(f'W{it[1]}', p) for p in w_pieces(int(it[1]))]
            elif it[0] == 'V': lst += [(f'W{it[1]}', p) for p in w_pieces(int(it[1]), 1 if r_ == 'O' else -1)]
            elif it in 'pr':
                assert pos == 'A'
                lst.append(('t', [f'  v_min_u32 v253, 2, v{vg}', f'  v_mad_u32_u24 v253, v253, s{sT[8]}, v{vO[1 if it == "p" else 0]}',
                                  f'  buffer_load_dword v{252 if it == "p" else 251}, v253, {RX}, 0 offen']))
            else:
                for _ in range(int(it[1:])):
                    if r_ == 'Y' and qi >= 6: lst.append(('b', [f'  s_cmp_eq_u32 s{sU}, 0', f'  s_cbranch_scc1 QB{qi}', q_loads()[qi], f'QB{qi}:']))
                    else: lst.append(('q', [q_loads()[qi]]))
                    qi += 1
    assert qi == 12
lbl = [0]
def role_lines(r_, lines):
    lbl[0] += 1
    return [f'  s_cbranch_vcc{"z" if r_ == "O" else "nz"} SL{lbl[0]}'] + list(lines) + [f'SL{lbl[0]}:']
def role2_lines(lo, ly):
    lbl[0] += 1; n = lbl[0]
    return [f'  s_cbranch_vccz SL{n}'] + list(lo) + [f'  s_branch SM{n}', f'SL{n}:'] + list(ly) + [f'SM{n}:']
def sched_items(pos):
    o, y = list(PLAN.get(('O', pos), [])), list(PLAN.get(('Y', pos), []))
    out = []
    while o or y: out.append((o.pop(0) if o else None, y.pop(0) if y else None))
    return out
def emit_item(it):
    o, y = it
    if o: ISS['O'].append(o[0])
    if y: ISS['Y'].append(y[0])
    if o and y and o == y: el(o[1])
    elif o and y: el(role2_lines(o[1], y[1]))
    elif o: el(role_lines('O', o[1]))
    else: el(role_lines('Y', y[1]))
def emit_pos(pos):
    o, y = PLAN.get(('O', pos), []), PLAN.get(('Y', pos), [])
    k = 0
    while k < len(o) and k < len(y) and o[k] == y[k]: emit_item((o[k], y[k])); k += 1
    for r_, x in (('O', o[k:]), ('Y', y[k:])):
        if x:
            ISS[r_] += [i[0] for i in x]; el(role_lines(r_, sum((i[1] for i in x), [])))
def after(r_, tag):
    l = ISS[r_]
    if tag not in l: return len(l) if tag == 'W0' else 63
    return min(63, len(l) - 1 - max(i for i, t in enumerate(l) if t == tag))

if 'nowpf' not in OPT:
    WPW = opt('wpw', 6)
    e(f'  s_lshr_b32 s{sT[0]}, s{sW}, 1'); e(f'  s_cmp_lg_u32 s{sT[0]}, {WPW // 2}'); e('  s_cbranch_scc1 MK_nwpf')
    e(f'  s_cmp_eq_u32 s{sW}, {WPW}'); e(f'  s_cselect_b32 s{sT[0]}, 54, 18')
    e('  s_cselect_b32 s12, s6, s8'); e('  s_cselect_b32 s13, s7, s9'); e('  s_and_b32 s13, s13, 0xffff')
    e(f'  s_lshr_b32 s{sT[1]}, s2, 3'); e(f'  s_mul_i32 s{sT[1]}, s{sT[1]}, s{sT[0]}'); e(f'  s_lshl_b32 s{sVO}, s{sT[1]}, 7')
    e(f'  s_lshl_b32 s{sT[0]}, s{sT[0]}, 7'); e(f'  s_add_u32 s14, s{sVO}, s{sT[0]}'); e('  s_mov_b32 s15, 0x00020000')
    e('  v_lshlrev_b32 v23, 7, v0')
    e(f'  buffer_load_dword v254, v23, s[12:15], s{sVO} offen')
    e('MK_nwpf:')
el(srd(12, 4, X_BYTES))
e(f'  s_movk_i32 s{sT[8]}, 112')
emit_pos('A')
tsp()
el(srd(16, 10, X_BYTES)); el(srd(4, 8, 192*192*2)); el(srd(8, 84, 256)); el(srd(20, 86, WS_BYTES if TS else 73728))
e(f'  v_lshlrev_b32 v{vL0}, 4, v0')
e(f'  v_add_u32 v{vL1}, {HALF}, v{vL0}')
e(f'  s_and_b32 s{sW4}, s{sW}, 3'); e(f'  s_lshl_b32 s{sW4}, s{sW4}, 10')
e(f'  v_bfe_u32 v{tA}, v{vn}, 1, 3'); e(f'  v_xor_b32 v{tA}, v{tA}, v{vg}')
e(f'  v_lshlrev_b32 v{tB}, 7, v{vn}'); e(f'  v_lshl_add_u32 v{tB}, v{tA}, 4, v{tB}')
e(f'  s_lshr_b32 s{sT[0]}, s{sW}, 2'); e(f'  s_mul_i32 s{sT[1]}, s{sT[0]}, {6*2048}')
e(f'  v_add_u32 v{vMA[0]}, s{sT[1]}, v{tB}'); e(f'  v_xor_b32 v{vMA[1]}, 64, v{vMA[0]}')
e(f'  s_mul_i32 s{sT[1]}, s{sW4}, 6'); e(f'  s_add_u32 s{sT[1]}, s{sT[1]}, 24576')
e(f'  v_add_u32 v{vMB[0]}, s{sT[1]}, v{tB}'); e(f'  v_xor_b32 v{vMB[1]}, 64, v{vMB[0]}')
F = []; f_ = F.append
f_(f'  s_lshr_b32 s{sT[0]}, s{sW}, 2'); f_(f'  s_mul_i32 s{sT[0]}, s{sT[0]}, 6'); f_(f'  s_sub_u32 s{sT[0]}, 67, s{sT[0]}')
f_(f'  s_and_b32 s{sT[1]}, s{sW}, 3'); f_(f'  s_mul_i32 s{sT[1]}, s{sT[1]}, 3')
for b in range(3):
    f_(f'  s_add_u32 s{sT[2]}, s{sT[1]}, {b}')
    f_(f'  s_lshr_b32 s{sT[3]}, s{sT[2]}, 1'); f_(f'  s_mul_i32 s{sT[3]}, s{sT[3]}, 10')
    f_(f'  s_add_u32 s{sT[2]}, s{sT[2]}, s{sT[3]}')
    f_(f'  s_sub_u32 s{sT[2]}, s{sT[0]}, s{sT[2]}'); f_(f'  s_lshl_b32 s{sT[2]}, s{sT[2]}, 10')
    f_(f'  v_add_u32 v{vMW[b]}, s{sT[2]}, v{vL0}')
f_(f'  s_lshl_b32 s{sT[0]}, s{sKR}, 1'); f_(f'  s_xor_b32 s{sT[0]}, s{sT[0]}, s{sMR}')
f_(f'  s_mul_i32 s{sT[1]}, s{sPR}, 222'); f_(f'  s_add_i32 s{sXB}, s{sT[0]}, s{sT[1]}')
f_(f'  s_mul_i32 s{sXB}, s{sXB}, 86016')
f_(f'  s_mul_i32 s{sGS}, s{sPR}, {-2*344064}'); f_(f'  s_add_i32 s{sGS}, s{sGS}, 344064')
f_(f'  s_lshr_b32 s{sGmin}, s{sKR}, 31'); f_(f'  s_lshl_b32 s{sGmin}, s{sGmin}, 1')
f_(f'  s_lshl_b32 s{sM0X}, s{sW4}, 2')
f_(f'  s_add_u32 s{sM0X3}, s{sM0X}, 3072'); f_(f'  s_min_u32 s{sM0X3}, s{sM0X3}, {14*1024}')
f_(f'  s_mul_i32 s{sT[2]}, s{sPR}, 172032'); f_(f'  s_sub_u32 s{sT[3]}, 172032, s{sT[2]}')
f_(f'  v_mov_b32 v{tC}, s{sT[2]}'); f_(f'  v_mov_b32 v{tD}, s{sT[3]}')
for b in range(960): assert (b * 2731) >> 16 == b // 24
for j in range(4):
    d = vD[j]
    if j < 3:
        f_(f'  s_lshr_b32 s{sT[0]}, s{sM0X}, 4'); f_(f'  s_add_u32 s{sT[0]}, s{sT[0]}, {64*j}')
    else: f_(f'  s_lshr_b32 s{sT[0]}, s{sM0X3}, 4')
    f_(f'  v_add_u32 v{tA}, s{sT[0]}, v0')
    f_(f'  v_mul_u32_u24 v{d}, 2731, v{tA}'); f_(f'  v_lshrrev_b32 v{d}, 16, v{d}')
    f_(f'  v_cmp_le_u32 {MSK}, 20, v{d}')
    f_(f'  v_mul_u32_u24 v{tB}, 24, v{d}'); f_(f'  v_sub_u32 v{tA}, v{tA}, v{tB}')
    f_(f'  v_subrev_u32 v{tB}, 20, v{d}')
    f_(f'  v_cndmask_b32 v{d}, v{d}, v{tB}, {MSK}')
    f_(f'  v_bfe_u32 v{tB}, v{d}, 1, 3'); f_(f'  v_xor_b32 v{tA}, v{tA}, v{tB}')
    f_(f'  v_cndmask_b32 v{tB}, v{tC}, v{tD}, {MSK}')
    f_(f'  v_lshl_add_u32 v{tA}, v{tA}, 4, v{tB}')
    f_(f'  v_add_u32 v{d}, s{sKC}, v{d}'); f_(f'  v_max_i32 v{d}, 0, v{d}'); f_(f'  v_lshlrev_b32 v{d}, 1, v{d}')
    f_(f'  v_xor_b32 v{d}, s{sMC}, v{d}'); f_(f'  v_add_u32 v{d}, s{sAC}, v{d}')
    f_(f'  v_mul_u32_u24 v{d}, 384, v{d}'); f_(f'  v_add_u32 v{d}, v{d}, v{tA}')
f_(f'  s_add_u32 s{sM0X}, s{sM0X}, {XB}'); f_(f'  s_add_u32 s{sM0X3}, s{sM0X3}, {XB}')
for dst, add in ((sT[0], -2), (sA2, 0)):
    f_(f'  s_lshl_b32 s{dst}, s{sU}, 2')
    if add: f_(f'  s_add_i32 s{dst}, s{dst}, {add}'); f_(f'  s_max_i32 s{dst}, s{dst}, 0')
    f_(f'  s_add_i32 s{dst}, s{dst}, s{sTR}'); f_(f'  s_max_i32 s{dst}, s{dst}, 0'); f_(f'  s_sub_i32 s{dst}, s{dst}, s{sKR}')
f_(f'  s_sub_u32 s{sT[0]}, s{sA2}, s{sT[0]}'); f_(f'  s_lshr_b32 s{sT[0]}, s{sT[0]}, 1')
f_(f'  s_mul_i32 s{sD0}, s{sT[0]}, -8'); f_(f'  s_add_i32 s{sD0}, s{sD0}, 7')
f_(f'  s_add_i32 s{sA2}, s{sA2}, -1')
f_(f'  s_add_i32 s{sR0}, s{sA2}, s{sD0}'); f_(f'  s_mul_i32 s{sD0}, s{sD0}, {ROW}')
f_(f'  s_lshl_b32 s{sT[1]}, s{sH}, 2')
f_(f'  s_mul_i32 s{sT[0]}, s{sA2}, {ROW}'); f_(f'  s_add_i32 s{sT[0]}, s{sT[0]}, {XB}')
f_(f'  v_add_u32 v{tA}, s{sT[1]}, v{vn}')
f_(f'  v_bfe_u32 v{tB}, v{tA}, 1, 3'); f_(f'  v_xor_b32 v{tB}, v{tB}, v{vg}')
f_(f'  v_mul_u32_u24 v{tA}, 384, v{tA}'); f_(f'  v_lshl_add_u32 v{tA}, v{tB}, 4, v{tA}')
f_(f'  v_add_u32 v{vSe}, s{sT[0]}, v{tA}'); f_(f'  v_xor_b32 v{vSo}, 64, v{vSe}')
f_(f'  v_lshrrev_b32 v{tA}, 2, v{vn}'); f_(f'  v_lshl_add_u32 v{tA}, v{vg}, 2, v{tA}'); f_(f'  v_add_u32 v{tA}, s{sT[1]}, v{tA}')
f_(f'  v_bfe_u32 v{tB}, v{tA}, 1, 3')
f_(f'  v_and_b32 v{tC}, 2, v{vn}'); f_(f'  v_lshlrev_b32 v{tC}, 1, v{tC}'); f_(f'  v_xor_b32 v{tB}, v{tB}, v{tC}')
f_(f'  v_mul_u32_u24 v{tA}, 384, v{tA}'); f_(f'  v_lshl_add_u32 v{tA}, v{tB}, 4, v{tA}')
f_(f'  v_and_b32 v{tB}, 1, v{vn}'); f_(f'  v_lshl_add_u32 v{tA}, v{tB}, 3, v{tA}')
f_(f'  v_add_u32 v{vP[0]}, s{sT[0]}, v{tA}')
for k in range(1, 4): f_(f'  v_xor_b32 v{vP[k]}, {16*k}, v{vP[0]}')
f_(f'  v_lshl_add_u32 v{tA}, v{vg}, 2, s{sT[1]}'); f_(f'  v_sub_u32 v{vCT}, v{tA}, v{vCT}')
f_(f'  v_cndmask_b32 v{vCT}, v{vCT}, 64, s[{sINV[1]}:{sINV[1]+1}]')
f_(f'  v_add_u32 v{SB0[0]}, s{sD0}, v{vSe}'); f_(f'  v_add_u32 v{SB0[1]}, s{sD0}, v{vSo}')
for k in range(4): f_(f'  v_add_u32 v{PB0[k]}, s{sD0}, v{vP[k]}')
f_(f'  s_mov_b32 s{sSC}, {SCALE}')
NPRE = opt('npre', 999)
NB1 = opt('nb1', 0)
el(F[:NB1]); emit_pos('B'); el(F[NB1:NPRE]); F = F[NPRE:]

def dma_x(G):
    out = []
    if G < 2: out += [f'  s_max_u32 s{sVO}, s{sGmin}, {G}', f'  s_mul_i32 s{sVO}, s{sVO}, s{sGS}']
    else: out.append(f'  s_mul_i32 s{sVO}, s{sGS}, {G}')
    out.append(f'  s_add_i32 s{sVO}, s{sVO}, s{sXB}')
    for j in range(4):
        out.append(f'  s_add_u32 m0, s{sM0X}, {G*15360 + j*1024}' if j < 3 else f'  s_add_u32 m0, s{sM0X3}, {G*15360}')
        out.append('  s_nop 0')
        out.append(f'  buffer_load_dwordx4 v{vD[j]}, {RX}, s{sVO} offen{NT} lds')
    return out
def dma_xs(Gs): return sum((dma_x(G) for G in Gs), [])
MID = SACC[0] + 8
SPECIAL = [(0, 0), (0, 1), (0, 7), (1, 0), (1, 7)]
def bias_init(tmp):
    out = []; o = out.append
    ninf, tt = tmp, tmp+1
    o(f'  v_mov_b32 v{ninf}, 0xff800000')
    for i in range(4): o(f'  v_add_u32 v{tt+i}, {i}, v{vCT}')
    for i in range(4): o(f'  v_cmp_gt_u32 s[{sT[2+2*i]}:{sT[3+2*i]}], 7, v{tt+i}')
    for q, (t, jj) in enumerate(SPECIAL):
        slot = jj + 2*t
        if slot == 0: o(f'  v_sub_u32 v{tt+4+q}, s{sR0}, v{vRR[t]}')
        else:
            o(f'  s_add_i32 s{sT[0]}, s{sA2}, {slot-1}'); o(f'  v_sub_u32 v{tt+4+q}, s{sT[0]}, v{vRR[t]}')
    for i in range(4): o(f'  v_cndmask_b32 v{MID+i}, v{ninf}, 0, s[{sT[2+2*i]}:{sT[3+2*i]}]')
    for q in range(5): o(f'  v_cmp_gt_u32 s[{sT[2*q]}:{sT[2*q+1]}], 7, v{tt+4+q}')
    for q, (t, jj) in enumerate(SPECIAL):
        for i in range(4): o(f'  v_cndmask_b32 v{SACC[t]+4*jj+i}, v{ninf}, v{MID+i}, s[{sT[2*q]}:{sT[2*q+1]}]')
    return out

tsp()
emit_pos('C')
tsp()
vLN = 107
def n_loads():
    e(f'  v_lshrrev_b32 v{vLN}, 4, v{vL0}')
    e(f'  s_cmp_lt_u32 s2, 72'); e('  s_cbranch_scc0 MK_np1')
    e(f'  s_mul_hi_u32 s{sT[8]}, s2, 0x15555556'); e(f'  s_lshl_b32 s{sT[8]}, s{sT[8]}, 6')
    e(f'  s_mul_i32 s{sT[9]}, s{sW}, {16*384}'); e(f'  s_add_u32 s{sVO}, s{sT[8]}, s{sT[9]}')
    e(f'  v_lshrrev_b32 v{MPK}, 2, v{vLN}'); e(f'  v_mul_u32_u24 v{MPK}, 384, v{MPK}'); e(f'  v_and_b32 v{MPK+1}, 3, v{vLN}'); e(f'  v_lshl_add_u32 v{MPK}, v{MPK+1}, 4, v{MPK}')
    e(f'  s_add_u32 m0, s{sWL}, {WOL}'); e('  s_nop 0')
    e(f'  buffer_load_dwordx4 v{MPK}, {RWO}, s{sVO} offen lds')
    e(f'  s_mul_i32 s{sT[9]}, s{sW4}, 6'); e(f'  s_add_u32 s{sVO}, s{sT[8]}, s{sT[9]}')
    e(f'  s_add_u32 m0, s{sW4}, {WOL + 8192}'); e(f'  s_add_u32 s{sVO}, s{sVO}, {8*16*384}')
    e(f'  buffer_load_dwordx4 v{MPK}, {RWO}, s{sVO} offen lds')
    e('MK_np1:')
    e(f'  s_sub_u32 s{sPROD}, s2, 72'); e(f'  s_lshr_b32 s{sPROD}, s{sPROD}, 31')
    e(f'  s_lshr_b32 s{sPROD}, s{sPROD}, s{sU}')
    e(f'  v_mov_b32 v{vNB}, 0')
    e(f'  s_cmp_eq_u32 s{sPROD}, 0'); e('  s_cbranch_scc1 MK_np3')
    e(f'  s_mul_hi_u32 s{sT[8]}, s2, 0x15555556'); e(f'  s_mul_i32 s{sT[9]}, s{sT[8]}, 12'); e(f'  s_sub_u32 s{sT[9]}, s2, s{sT[9]}')
    e(f'  s_and_b32 s{sT[5]}, s{sT[9]}, 1'); e(f'  s_lshr_b32 s{sT[9]}, s{sT[9]}, 1')
    e(f'  v_lshrrev_b32 v{MPK+2}, 2, v{vn}'); e(f'  v_and_b32 v{MPK+1}, 3, v{vn}')
    e(f'  v_lshl_add_u32 v{vNB}, v{vg}, 3, v{MPK+2}'); e(f'  v_lshlrev_b32 v{vNB}, 6, v{vNB}'); e(f'  v_lshl_add_u32 v{vNB}, v{MPK+1}, 4, v{vNB}')
    e(f'  s_lshl_b32 s{sT[5]}, s{sT[5]}, 3'); e(f'  s_add_u32 s{sT[5]}, s{sT[5]}, {WOL}'); e(f'  v_add_u32 v{vNB}, s{sT[5]}, v{vNB}')
    e(f'  s_lshr_b32 s{sT[8]}, s{sT[9]}, 1'); e(f'  s_lshl_b32 s{sT[8]}, s{sT[8]}, 6')
    e(f'  s_and_b32 s{sT[9]}, s{sT[9]}, 1'); e(f'  s_lshl_b32 s{sT[9]}, s{sT[9]}, 4'); e(f'  s_add_u32 s{sT[8]}, s{sT[8]}, s{sT[9]}')
    e(f'  v_lshrrev_b32 v{MPK}, 1, v{MPK+2}'); e(f'  v_lshlrev_b32 v{MPK}, 5, v{MPK}')
    e(f'  v_and_b32 v{MPK+2}, 1, v{MPK+2}'); e(f'  v_lshl_add_u32 v{MPK}, v{MPK+2}, 2, v{MPK}')
    e(f'  v_add3_u32 v{MPK}, v{MPK}, v{MPK+1}, s{sT[8]}')
    e(f'  v_mul_u32_u24 v{MPK}, 1152, v{MPK}'); e(f'  v_lshl_add_u32 v{vNA}, v{vg}, 4, v{MPK}')
    e(f'  s_mul_i32 s{sVO}, s{sH}, 9216')
    for kk in range(6):
        e(f'  buffer_load_dwordx4 {V(136+4*kk)}, v{vNA}, {RW}, s{sVO} offen offset:{768+64*kk}')
    e('MK_np3:')
def m_reads(kk):
    rb = 184 + 36*(kk % 2); co = (kk // 2) * 49152
    lo = co if co < 49152*2 else 0
    return ([f'  ds_read_b128 {V(rb+24+4*b)}, v{vMB[kk % 2]} offset:{2048*b}' for b in range(3)] +
            [f'  ds_read_b128 {V(rb+4*a)}, v{vMA[kk % 2]} offset:{2048*a}' for a in range(6)])
def chunk_sync(c, lg):
    wo_, wy_ = after('O', f'W{c}'), after('Y', f'W{c}')
    x = ' lgkmcnt(0)' if lg else ''
    def w(n, prod):
        if c == 2 and prod and ISS['Y'].count('b'):
            return [f'  s_cmp_lg_u32 s{sU}, 0', '  s_cbranch_scc1 MK_c2', f'  s_waitcnt vmcnt({n - ISS["Y"].count("b")})', 'MK_c2:', f'  s_waitcnt vmcnt({n}){x}']
        if c != 1 or n == 63: return [f'  s_waitcnt vmcnt({n}){x}']
        lbl[0] += 1; k = lbl[0]; o = []
        if prod: o += [f'  s_cmp_lg_u32 s{sPROD}, 0', f'  s_cbranch_scc1 CA{k}']
        o += ['  s_cmp_lt_u32 s2, 72', f'  s_cbranch_scc1 CB{k}', f'  s_waitcnt vmcnt({n})', f'CB{k}:']
        if prod: o += [f'  s_waitcnt vmcnt({n+2})', f'CA{k}:', f'  s_waitcnt vmcnt({n+8}){x}']
        else: o += [f'  s_waitcnt vmcnt({n+2}){x}']
        return o
    if c == 2:
        wo_, wy_ = min(wo_, len(ISS['O']) - N_AT['O']), min(wy_, len(ISS['Y']) - N_AT['Y'])
    assert c != 1 or 'b' not in ISS['Y']
    if wo_ == wy_ and c != 2: el(w(wo_, True))
    else: el(role2_lines(w(wo_, False), w(wy_, True)))
    e('  s_barrier')
    tsp()
N_AT = {}
FPG = opt('fpg', 4)
chunk_sync(0, False)
el(m_reads(0))
SYA = opt('sya', 0)
for kk in range(4):
    odd = kk % 2 == 1
    extra = sched_items(str(kk)); ne = len(extra); cnt = 0
    rb = 184 + 36*(kk % 2)
    nx = m_reads(kk+1)
    issued = 0
    for a in range(6):
        if odd and a == SYA:
            chunk_sync(kk // 2 + 1, True)
            for r in vMA + vMB: e(f'  v_add_u32 v{r}, 49152, v{r}')
        if not (odd and a >= SYA): e(f'  s_waitcnt lgkmcnt({5 - a + issued})')
        for b in range(3):
            acc = MACC + 12*a + 4*b
            e(mfma(acc, rb+4*a, rb+24+4*b, None if kk == 0 else acc))
            slots = FPG
            if odd:
                for _ in range(1 if SYA <= 3 else 2):
                    if nx and a >= SYA and (b < 2 or SYA >= 2): e(nx.pop(0)); slots -= 1
            elif nx and b < 2 and a >= 1:
                e(nx.pop(0)); issued += 1; slots -= 1
            cnt += 1
            while extra and (ne - len(extra)) * 18 < cnt * ne: emit_item(extra.pop(0)); slots = 0
            el(F[:max(slots, 0)]); F = F[max(slots, 0):]
    el(nx)
    assert not extra
    if kk == 0: n_loads(); N_AT.update(O=len(ISS['O']), Y=len(ISS['Y']))
print('leftover F', len(F), file=sys.stderr); el(F); F = []
assert ISS['Y'].count('q') <= 6
e(f'  s_cmp_eq_u32 s{sPROD}, 0'); e('  s_cbranch_scc1 MK_np2')
e('  s_waitcnt lgkmcnt(0)')
for k2 in range(6):
    for hf in range(2):
        e(f'  ds_read_b64_tr_b16 {V(MPK+4*k2+2*hf, 2)}, v{vNB} offset:{(32*k2 + 4*hf)*64}')
e('  s_setprio 3'); e('  s_waitcnt lgkmcnt(0)')
for kk in range(6):
    e(mfma(128, 136+4*kk, MPK+4*kk, None if kk == 0 else 128))
e(f'  s_lshl_b32 s{sVO}, s2, 10'); e(f'  s_lshl_b32 s{sT[8]}, s{sH}, 3'); e(f'  s_add_u32 s{sVO}, s{sVO}, s{sT[8]}')
e('  s_nop 5')
for r in range(2): e(f'  v_cvt_pk_bf16_f32 v{132+r}, v{128+2*r}, v{129+2*r}')
e(f'  buffer_store_dwordx2 v[132:133], v{vL0}, {RWS}, s{sVO} offen sc1')
NY_AT_STORE = len(ISS['Y'])
e('  s_setprio 0')
e('MK_np2:')
r5 = m_reads(5)
el(r5[:5]); late = r5[5:]
extra = sched_items('4'); ne = len(extra); cnt = 0
pend = []; nw = 0
for fi in range(9):
    a3, b = fi // 3, fi % 3
    if fi == 0: e('  s_waitcnt lgkmcnt(5)')
    for kk in (4, 5):
        rb = 184 + 36*(kk % 2)
        if fi == 0 and kk == 5: e('  s_waitcnt lgkmcnt(2)')
        if fi == 3 and kk == 5: e(f'  s_waitcnt lgkmcnt({nw})')
        for a in (2*a3, 2*a3+1):
            acc = MACC + 12*a + 4*b
            e(mfma(acc, rb+4*a, rb+24+4*b, acc)); cnt += 1
            if late: e(late.pop(0))
            k = 0
            while pend and pend[0][0] <= cnt and k < 2:
                l = pend.pop(0)[1]; e(l); k += 1
                if 'ds_write' in l: nw += 1
            while extra and (ne - len(extra)) * 36 < cnt * ne: emit_item(extra.pop(0))
    o = MPK + 4*(fi % 6)
    for a in range(2):
        acc = MACC + 12*(2*a3 + a) + 4*b
        for i in range(2): pend.append((cnt + 5, f'  v_cvt_pk_bf16_f32 v{o+2*a+i}, v{acc+2*i}, v{acc+2*i+1}'))
    pend.append((cnt + 5, f'  ds_write_b128 v{vMW[b]}, {V(o)} offset:{2048*(2-a3)}'))
assert not extra
tsp()
for i, (_, l) in enumerate(pend):
    if len(pend) - i == 5: e('  s_nop 3')
    e(l)
e('  s_waitcnt lgkmcnt(0)')
e('  s_barrier')
tsp()
NXY = opt('nxy', 2)
XH = (9, 8, 7, 6, 5)
assert ('Y', 'Z') not in PLAN and ('Y', '4') not in PLAN
y = [f'  s_cmp_lg_u32 s{sU}, 0', '  s_cbranch_scc1 MK_z1'] + [f'  v_mov_b32 v{XQ+r}, 0' for r in range(24)] + ['MK_z1:',
     f'  s_cmp_lg_u32 s{sPROD}, 0', '  s_cbranch_scc1 MK_np4', '  s_waitcnt vmcnt(0)', 'MK_np4:', '  s_waitcnt vmcnt(1)', '  s_setprio 1']
o_ = sum((ls for _, ls in PLAN.get(('O', 'Z'), [])), []) + dma_xs(XH[:NXY]) + (bias_init(100) if 'nobf' in OPT else []) + [f'  s_waitcnt vmcnt({4*NXY})']
PRE_P1 = (o_, y)
PUB = [f'  s_cmp_eq_u32 s{sPROD}, 0', '  s_cbranch_scc1 MK_np5', '  s_waitcnt vmcnt(0)', '  v_mov_b32 v23, 1', '  s_mov_b64 exec, 1',
       f'  buffer_atomic_add v23, off, {RDB}, 0 sc1', '  s_mov_b64 exec, -1', '  s_nop 3', 'MK_np5:']

stream = []; frags = []
def add_frag(reads, gate): frags.append(dict(reads=reads, gate=gate, uses=0)); return len(frags) - 1
def use(fid, fn): frags[fid]['uses'] += 1; stream.append(('mfma', fn, fid))
def mf(text): stream.append(('mfma', (lambda buf: text), None))
def raw(*lines):
    for l in lines: stream.append(('raw', l))
def fill(*lines):
    for l in lines: stream.append(('fill', l))
def flush(): stream.append(('flush',))
def need(fid): stream.append(('need', fid))
def gate(name): stream.append(('gate', name))
def role(r, lines): stream.append(('cond', role_lines(r, lines)))
def role2(lo, ly): stream.append(('cond', role2_lines(lo, ly)))
BAR = '  s_barrier'
def m_read(f):
    addr = (71-f)*1024
    if addr < HALF: return [f'  ds_read_b128 {{d4}}, v{vL0} offset:{addr}']
    return [f'  ds_read_b128 {{d4}}, v{vL1} offset:{addr-HALF}']
def n_addr(f): return NHI + 30720 + 1024*f if f < 30 else ((f-30)*1024 if f < 40 else NHI + (f-40)*1024)
def n_read(f):
    if f >= 70: return []
    a = n_addr(f)
    return [f'  ds_read_b128 {{d4}}, v{vL1} offset:{a-NHI}' if a >= NHI else f'  ds_read_b128 {{d4}}, v{vL0} offset:{a}']
def dma_n(a, b):
    out = []
    for f0 in range(a, b, 4):
        lim = (b - 1 - f0) * 1024; src = sW4
        if lim < 3072: out.append(f'  s_min_u32 s{sT[5]}, s{sW4}, {lim}'); src = sT[5]
        out += [f'  s_add_u32 m0, s{src}, {n_addr(f0)}', f'  s_add_u32 s{sVO}, s{src}, {f0*1024}',
                f'  buffer_load_dwordx4 v{vL0}, {RWS}, s{sVO} offen{NSC} lds']
    return out
def proj(B, rd, gate_of, post, hooks):
    for s in range(6):
        for ks in range(6):
            for hh in range(2):
                f = 12*s + 2*ks + hh
                fid = add_frag(rd(f), gate_of(f))
                if f in hooks: hooks[f](fid)
                for t in range(2):
                    acc = ACC + 16*(s % 2) + 8*t + 4*hh
                    fx = None if rd(f) else NREG + 4*(f-70)
                    use(fid, (lambda buf, acc=acc, t=t, ks=ks, fx=fx: mfma(acc, buf if fx is None else fx, B(t, ks), None if ks == 0 else acc)))
        flush()
        fill(*post(s))

gate('G0')
role2(PRE_P1[0], PRE_P1[1])
BF = [] if 'nobf' in OPT else bias_init(SACC[1] + 8)
fill(*BF[:30])
def p1_post(s):
    out = []
    for t in (1, 0):
        if t == 0 and s == 5: out.append('#QP5a')
        acc = ACC + 16*(s % 2) + 8*t
        for r in range(8): out.append(f'  v_mul_f32 v{acc+r}, s{sSC}, v{acc+r}')
        for r in range(4): out.append(f'  v_cvt_pk_bf16_f32 v{QP+24*t+4*s+r}, v{acc+2*r}, v{acc+2*r+1}')
    return out
proj(lambda t, ks: XQ+24*t+4*ks, m_read, lambda f: 'G0', p1_post,
     {13: lambda fid: fill(*BF[30:35]), 25: lambda fid: fill(*BF[35:39]), 37: lambda fid: fill(*BF[39:44]), 49: lambda fid: fill(*BF[44:]),
      31: lambda fid: (need(fid), role2([BAR], PUB)),
      61: lambda fid: (need(fid), role('O', ['  s_waitcnt vmcnt(0)', BAR]))})
if 'p1flush' in OPT: flush()
stream.append(('tag', 'QP5'))
fill(f'  v_add_u32 v{vL1}, {NHI}, v{vL0}')
for r in range(4): fill(f'  v_mov_b32 v{ONES+r}, 0x3f803f80')
POLL = f'  buffer_load_dword v13, off, {RDB}, 0 sc1'
PMODE = opt('pmode', 1)
role('Y', ['  s_setprio 0'] + dma_xs(XH[NXY:]) + [BAR] + dma_xs((4, 3, 2)) + (bias_init(XQ) if 'nobf' in OPT else []) +
     ['  s_waitcnt vmcnt(12)', BAR] + dma_xs((1, 0)) + ['  s_waitcnt vmcnt(8)', BAR])
for _ in range(opt('idle', 0)): raw('  s_sleep 8')
gate('S')
etn = [0]
def sm_fill(t, jj):
    tmp = ET + 4*(etn[0] % 5); etn[0] += 1
    acc = SACC[t] + 4*jj
    for i in range(4): fill(f'  v_exp_f32 v{tmp+i}, v{acc+i}')
    for i in range(2): fill(f'  v_cvt_pk_bf16_f32 v{PREG[t]+2*jj+i}, v{tmp+2*i}, v{tmp+2*i+1}')
    stream.append(('tag', f'P{t}_{jj}'))
def sum_mfmas(t):
    stream.append(('flushto', f'P{t}_0'))
    for kt in (3, 2, 1, 0): mf(mfma(SUM[t], ONES, PREG[t]+4*kt, None if kt == 3 else SUM[t]))
LO, HI = (127-30) << 23, (127+30) << 23
def check(t):
    raw(f'  v_subrev_u32 v{RI[1]}, {LO}, v{SUM[t]}')
    raw(f'  s_mov_b32 s{sT[6]}, {HI-LO}')
    raw(f'  v_cmp_gt_u32 s[{sT[2]}:{sT[3]}], s{sT[6]}, v{RI[1]}')
    raw(f'  s_or_b64 s[{sT[2]}:{sT[3]}], s[{sT[2]}:{sT[3]}], s[{sINV[t]}:{sINV[t]+1}]')
    raw(f'  s_cmp_eq_u64 s[{sT[2]}:{sT[3]}], -1')
    raw(f'  s_cbranch_scc0 FB{t}')
    raw(f'FBR{t}:')
pollw = [f'  s_mov_b32 s{sT[7]}, 0x400000', 'NPOLL:', '  s_waitcnt vmcnt(0)', f'  v_readfirstlane_b32 s{sT[0]}, v13', f'  s_sub_u32 s{sT[7]}, s{sT[7]}, 1',
         f'  s_cselect_b32 s{sT[0]}, 144, s{sT[0]}', f'  s_cmp_ge_u32 s{sT[0]}, 144', '  s_cbranch_scc1 NPOLLD', POLL, '  s_branch NPOLL', 'NPOLLD:']
ODMA = 'ydma' not in OPT
if not ODMA: pollw = [POLL.replace(' sc1', '')] + pollw
YP = {opt('y5a', 7): [BAR] + pollw + dma_n(0, 30) + dma_n(30, 40),
      opt('y5b', 10): ['  s_waitcnt vmcnt(0)', BAR] + dma_n(40, 70),
      opt('y6', 12): ['  s_waitcnt vmcnt(0)', BAR]}
assert len(YP) == 3
if ODMA: YP = {k: [BAR] for k in YP}
if 'yhi' in OPT: YP[opt('yhi', 0)] = YP.get(opt('yhi', 0), []) + ['  s_setprio 1']
O4B = opt('o4b', 6)
for k, slot in enumerate(range(9, -1, -1)):
    if k == 2:
        role2([BAR], ['  s_waitcnt vmcnt(0)', BAR]); gate('S2')
    if k == O4B: role('O', [BAR] + ([POLL.replace(' sc1', '')] if ODMA else []))
    if k in YP: role('Y', YP[k])
    for s in range(6):
        if slot == 0 and s == 3: sum_mfmas(1)
        if slot == 9 and s == 5: stream.append(('flushto', 'QP5a'))
        if slot == 7 and s == 5: stream.append(('flushto', 'QP5'))
        if slot == 0: base, off = SB0[s % 2], 128*(s//2)
        else: base, off = (vSe, vSo)[s % 2], (slot-1)*ROW + 128*(s//2)
        fid = add_frag([f'  ds_read_b128 {{d4}}, v{base} offset:{off}'], 'S' if slot >= 6 else 'S2')
        for t in (1, 0):
            jj = slot - 2*t
            if 0 <= jj < 8:
                acc = SACC[t] + 4*jj
                cin = MID if s == 0 and (t, jj) not in SPECIAL else acc
                use(fid, (lambda buf, acc=acc, t=t, s=s, cin=cin: mfma(acc, buf, QP+24*t+4*s, cin)))
    for t in (1, 0):
        jj = slot - 2*t
        if 0 <= jj < 8: sm_fill(t, jj)
check(1)
YC1 = 0
def ycvt(t, ks, _=0):
    return [f'  v_cvt_pk_bf16_f32 v{YB[t][ks]+2*hf+i}, v{YACC[t][2*ks+hf]+2*i}, v{YACC[t][2*ks+hf]+2*i+1}' for hf in range(2) for i in range(2)]
lastf = None
for k, st in enumerate(range(4, -1, -1)):
    if k == 1:
        sum_mfmas(0); check(0)
        for t in range(2): fill(f'  v_rcp_f32 v{RI[t]}, v{SUM[t]}')
    if k == 2: need(lastf); role('O', [BAR] + (pollw + dma_n(30, 40) + dma_n(0, 30) if ODMA else []))
    if 10 + k in YP: role('Y', YP[10 + k])
    for ct in range(12):
        tl = [t for t in (1, 0) if 0 <= st - t < 4]
        b_, e_ = ct // 4, ct % 4
        rd = []
        for hf in range(2):
            slot = 2*st + hf
            if slot == 0: base, off = PB0[e_], 128*b_
            else: base, off = vP[e_], (slot-1)*ROW + 128*b_
            rd.append(f'  ds_read_b64_tr_b16 {{d{"lo" if hf == 0 else "hi"}}}, v{base} offset:{off}')
        fid = add_frag(rd, 'S2'); lastf = fid
        if k == 4 and ct == opt('o5b', 6):
            stream.append(('needall', fid + 11 - ct)); role('O', ['  s_waitcnt vmcnt(0)', BAR] + dma_n(40, 70) if ODMA else [BAR]); gate('P4a')
        for t in tl:
            acc = YACC[t][ct]
            use(fid, (lambda buf, acc=acc, t=t, st=st: mfma(acc, buf, PREG[t]+4*(st-t), None if st - t == 3 else acc)))
        if k == 3 and ct % 2 and ct < 12 - YC1: fill(*ycvt(1, ct // 2, 1))
        if k == 4 and ct % 2: fill(*ycvt(0, ct // 2, 0)); stream.append(('tag', f'YB{ct // 2}'))
    if k == 3:
        for ks in range(6 - YC1 // 2, 6): fill(*ycvt(1, ks, 1))
NLD = [f'  s_mov_b32 s{sVO}, {70*1024}'] + [f'  buffer_load_dwordx4 {V(NREG+4*i)}, v{vL0}, {RWS}, s{sVO} offen offset:{1024*i} sc1' for i in range(2)]
if 15 in YP: role('Y', YP[15])
def p4_post(s):
    out = []
    for t in range(2):
        acc = ACC + 16*(s % 2) + 8*t
        o = OUTR + 8*(s % 2) + 4*t
        for r in range(8): out.append(f'  v_mul_f32 v{acc+r}, v{acc+r}, v{RI[t]}')
        for r in range(4): out.append(f'  v_cvt_pk_bf16_f32 v{o+r}, v{acc+2*r}, v{acc+2*r+1}')
        if 'pairst' in OPT:
            if s % 2:
                out.append(f'  buffer_store_dwordx4 {V(o-8)}, v{vO[t]}, {RO}, 0 offen offset:{64*s-64}{NTO}')
                out.append(f'  buffer_store_dwordx4 {V(o)}, v{vO[t]}, {RO}, 0 offen offset:{64*s}{NTO}')
        else: out.append(f"  buffer_store_dwordx4 {V(o)}, v{vO[t]}, {RO}, 0 offen offset:{64*s}{NTO if s < opt('stn', 6) else ' ' + OPT.get('st2', '')}")
    return out
proj(lambda t, ks: YB[t][ks], n_read, lambda f: 'P4a' if f < 40 else 'P4b', p4_post,
     {**{2*ks: (lambda fid, ks=ks: stream.append(('flushto', f'YB{ks}'))) for ks in range(6)},
      12: lambda fid: raw(*NLD),
      opt('o6', 24): lambda fid: (role('O', (['  s_waitcnt vmcnt(%d)' % (2 if 'pairst' in OPT else 4)] if ODMA else []) + [BAR]), gate('P4b')),
      60: lambda fid: raw('  s_waitcnt vmcnt(8)'),
      opt('ylo', 1): lambda fid: raw('  s_setprio 0') if 'yhi' in OPT else None})
flush()

def regs_of(tok):
    m = re.fullmatch(r'v\[(\d+):(\d+)\]', tok)
    if m: return list(range(int(m.group(1)), int(m.group(2)) + 1))
    m = re.fullmatch(r'-?v(\d+)', tok)
    return [int(m.group(1))] if m else []
def parse(line):
    p = line.strip().split(None, 1)
    op = p[0]; args = [a.strip().split()[0] for a in p[1].split(',')] if len(p) > 1 else []
    return op, args
clock = [0]
mf_w = {}; va_w = {}; tr_w = {}; mf_c = {}; sg_w = {}
def hazard(line):
    op, args = parse(line); need_ = 0
    allr = [r for a in args for r in regs_of(a)]
    if op.startswith('v_mfma'):
        for r in [r for a in args[1:] for r in regs_of(a)]:
            if r in va_w: need_ = max(need_, 2 - (clock[0] - va_w[r] - 1))
        for r in regs_of(args[1]) + regs_of(args[2]):
            if r in mf_w: need_ = max(need_, 8 - (clock[0] - mf_w[r] - 1))
    elif op.startswith('v_') or op.startswith('buffer_') or op.startswith('ds_'):
        for r in allr:
            if r in mf_w: need_ = max(need_, 8 - (clock[0] - mf_w[r] - 1))
        if op.startswith('v_'):
            for r in regs_of(args[0]):
                if r in mf_c: need_ = max(need_, 3 - (clock[0] - mf_c[r] - 1))
            for r in [r for a in args[1:] for r in regs_of(a)]:
                if r in tr_w: need_ = max(need_, 1 - (clock[0] - tr_w[r] - 1))
            for a in args[1:]:
                if a in sg_w: need_ = max(need_, 2 - (clock[0] - sg_w[a] - 1))
    return need_
def emit(line):
    if line.endswith(':'):
        e(line); return
    n = hazard(line)
    if n > 0:
        e(f'  s_nop {n-1}'); clock[0] += n
    op, args = parse(line)
    e(line)
    if op.startswith('v_mfma'):
        for r in regs_of(args[0]): mf_w[r] = clock[0]
        for r in regs_of(args[3]): mf_c[r] = clock[0]
    elif op.startswith('v_'):
        if args[0].startswith('s'): sg_w[args[0]] = clock[0]
        for r in regs_of(args[0]):
            va_w[r] = clock[0]; tr_w.pop(r, None)
            if op in ('v_exp_f32', 'v_rcp_f32'): tr_w[r] = clock[0]
    if op == 's_nop': clock[0] += int(args[0])
    clock[0] += 1

gates = set(); nxt = 0; done_uses = [0]*len(frags)
ops = []; landed = -1; half = [None]
fq = []
def buf_of(f): return ABUF + 4*(f % NB)
def issue_one():
    global nxt
    while True:
        if half[0] is not None:
            emit(half[0]); ops.append(nxt); half[0] = None; nxt += 1; return True
        if nxt >= len(frags): return False
        fr = frags[nxt]
        if fr['gate'] not in gates: return False
        if nxt >= NB and done_uses[nxt-NB] < frags[nxt-NB]['uses']: return False
        if not fr['reads']:
            nxt += 1; continue
        if len(ops) + len(fr['reads']) > (13 if TSM else 15): return False
        b = buf_of(nxt)
        rs = [r.format(d4=V(b), dlo=V(b, 2), dhi=V(b+2, 2)) for r in fr['reads']]
        emit(rs[0]); ops.append(nxt)
        if len(rs) == 2: half[0] = rs[1]
        else: nxt += 1
        return True
def wait_for(f, pair=True):
    global landed, ops
    if f is None or f <= landed: return
    while nxt <= f:
        n0 = nxt
        if not issue_one() and nxt == n0: raise RuntimeError(f'cannot issue frag {nxt}')
    if any(o <= f for o in ops):
        if pair and f + 1 < nxt and sum(1 for o in ops if o > f + 1) >= PAIRMIN: f = f + 1
        n = sum(1 for o in ops if o > f)
        emit(f'  s_waitcnt lgkmcnt({n})')
        ops = [o for o in ops if o > f]
    landed = f
def sregs(tok):
    m = re.fullmatch(r's\[(\d+):(\d+)\]', tok)
    if m: return [-1 - r for r in range(int(m.group(1)), int(m.group(2)) + 1)]
    m = re.fullmatch(r's(\d+)', tok)
    return [-1 - int(m.group(1))] if m else []
def wr(l):
    op, args = parse(l)
    return set() if op.startswith('buffer_') else set(regs_of(args[0]) + sregs(args[0]))
def rdset(l):
    op, args = parse(l)
    return set(r for a in (args if op.startswith('buffer_') else args[1:]) for r in regs_of(a) + sregs(a))
def pick(pred):
    W, R = set(), set()
    for i, l in enumerate(fq[:WINDOW]):
        if l.startswith('#'): continue
        if pred(l) and not (rdset(l) & W) and not (wr(l) & (W | R)) and hazard(l) <= 0: return i
        W |= wr(l); R |= rdset(l)
    return None
def is2(l): return 'v_exp' in l or 'v_rcp' in l
def isst(l): return 'buffer_store' in l
def gap(si, ent):
    while fq and fq[0].startswith('#'): fq.pop(0)
    cur = ent[2] if ent[2] is not None else landed
    nf = STREAM_NEXT.get(si)
    wnext = nf is not None and nf > landed
    ahead = nxt - cur
    i = pick(isst)
    if i is not None and half[0] is None and ahead >= MINAHEAD:
        emit(fq.pop(i))
        i = pick(lambda l: not is2(l) and not isst(l))
        if i is not None: emit(fq.pop(i))
        return
    slots = 1 if wnext else 2
    nexp = sum(1 for l in fq if is2(l))
    if not wnext and half[0] is None and ahead >= EXPAHEAD:
        i = pick(is2)
        if i is not None:
            emit(fq.pop(i)); return
    if issue_one(): slots -= 1
    if (half[0] is not None or slots > 0 and (nexp or not fq or ahead < 6)) and issue_one(): slots -= 1
    if nexp > BACKLOG: slots = max(slots, 1 if pick(lambda l: not is2(l) and not isst(l)) is not None else 2)
    while slots > 0:
        i = pick(is2) if slots >= 2 else None
        if i is not None:
            emit(fq.pop(i)); slots -= 2; continue
        i = pick(lambda l: not is2(l) and not isst(l))
        if i is None: break
        emit(fq.pop(i)); slots -= 1
WINDOW = opt('window', 16); MINAHEAD = opt('minahead', 5); EXPAHEAD = opt('expahead', 7)
nmf = [0]
BACKLOG = opt('backlog', 6); PAIRMIN = opt('pairmin', 5)
STREAM_NEXT = {}
mi = [i for i, x in enumerate(stream) if x[0] == 'mfma']
for a_, b_ in zip(mi, mi[1:]): STREAM_NEXT[a_] = stream[b_][2]
for si, ent in enumerate(stream):
    k = ent[0]
    if k == 'raw': emit(ent[1])
    elif k == 'fill': fq.append(ent[1])
    elif k == 'flush':
        for l in fq:
            if not l.startswith('#'): emit(l)
        fq = []
    elif k == 'tag': fq.append('#' + ent[1])
    elif k == 'flushto':
        if '#' + ent[1] in fq:
            i = fq.index('#' + ent[1])
            for l in fq[:i]:
                if not l.startswith('#'): emit(l)
            fq = fq[i+1:]
    elif k == 'gate':
        gates.add(ent[1])
        while issue_one(): pass
    elif k in ('need', 'needall'): wait_for(ent[1])
    elif k == 'cond':
        emit(ent[1][0]); el(ent[1][1:])
    elif k == 'mfma':
        wait_for(ent[2])
        if nmf[0] in TSM: e(ts_line())
        nmf[0] += 1
        emit(ent[1](buf_of(ent[2]) if ent[2] is not None else None))
        if ent[2] is not None: done_uses[ent[2]] += 1
        gap(si, ent)
if TS:
    e('  s_waitcnt vmcnt(0)')
    e(ts_line()); e('  s_memrealtime s[98:99]')
    e('  s_waitcnt lgkmcnt(0)')
    e(f'  s_lshl_b32 s{sT[0]}, s2, 3'); e(f'  s_add_u32 s{sT[0]}, s{sT[0]}, s{sW}'); e(f'  s_lshl_b32 s{sT[0]}, s{sT[0]}, 6')
    e(f'  s_add_u32 s{sT[0]}, s{sT[0]}, 0x100000')
    e('  v_mov_b32 v1, 0')
    for i in range(nts[0]):
        if i == 0: e(f'  v_mov_b32 v2, s{sTS}')
        else:
            e(f'  s_sub_u32 s{sT[1]}, s{sTS+2*i}, s{sTS}'); e(f'  v_mov_b32 v2, s{sT[1]}')
        e(f'  buffer_store_dword v2, v1, s[20:23], s{sT[0]} offen offset:{4*i}')
    e('  v_mov_b32 v2, s96'); e('  v_mov_b32 v3, s98')
    e(f'  buffer_store_dwordx2 v[2:3], v1, s[20:23], s{sT[0]} offen offset:56')
    print('timestamps', nts[0]); assert nts[0] <= 12
e('MK_done:')
e('  s_endpgm')
for t in range(2):
    R = SACC[t]; vm, vt = RI[0], RI[1]
    e(f'FB{t}:')
    e('  s_nop 7')
    e(f'  v_max3_f32 v{vm}, v{R}, v{R+1}, v{R+2}')
    for k in range(3, 31, 2): e(f'  v_max3_f32 v{vm}, v{vm}, v{R+k}, v{R+k+1}')
    e(f'  s_mov_b32 s{sT[6]}, 0xff7fffff')
    e(f'  v_max3_f32 v{vm}, v{vm}, v{R+31}, s{sT[6]}')
    for sw in ('v_permlane32_swap_b32', 'v_permlane16_swap_b32'):
        e(f'  v_mov_b32 v{vt}, v{vm}'); e('  s_nop 1'); e(f'  {sw} v{vm}, v{vt}'); e('  s_nop 1')
        e(f'  v_max_f32 v{vm}, v{vm}, v{vt}')
    for k in range(32): e(f'  v_sub_f32 v{R+k}, v{R+k}, v{vm}')
    for k in range(32): e(f'  v_exp_f32 v{R+k}, v{R+k}')
    e('  s_nop 0')
    for k in range(16): e(f'  v_cvt_pk_bf16_f32 v{PREG[t]+k}, v{R+2*k}, v{R+2*k+1}')
    e('  s_nop 1')
    for kt in range(4): e(mfma(SUM[t], ONES, PREG[t]+4*kt, None if kt == 0 else SUM[t]))
    e('  s_nop 7')
    e(f'  s_branch FBR{t}')
e('MK_end:')
e('.section .rodata,"a"')
e('.p2align 6'); e(f'.amdhsa_kernel {KN}')
e('  .amdhsa_next_free_vgpr 256'); e('  .amdhsa_next_free_sgpr 102'); e('  .amdhsa_accum_offset 256')
e('  .amdhsa_group_segment_fixed_size 0'); e('  .amdhsa_kernarg_size 48'); e('  .amdhsa_user_sgpr_count 2')
e('  .amdhsa_user_sgpr_kernarg_segment_ptr 1'); e('  .amdhsa_system_sgpr_workgroup_id_x 1')
e('.end_amdhsa_kernel')
if 'drop' in OPT:
    kinds = OPT['drop'].split(',')
    i0 = next(i for i, l in enumerate(L) if 'MK_np4:' in l)
    out = []; n = 0
    for i, l in enumerate(L):
        body = i > i0
        if 'mM' in kinds and not body and 'v_mfma' in l: l = '  s_nop 3'
        if 'exp' in kinds and 'v_exp' in l: l = l.replace('v_exp_f32', 'v_mov_b32')
        if 'lds' in kinds and body and 'ds_read_b128' in l:
            l = re.sub(r'ds_read_b128 v\[(\d+):\d+\]', lambda m: f'ds_read_b32 v{m.group(1)}', l)
        if 'tr' in kinds and body and 'ds_read_b64_tr' in l:
            l = re.sub(r'ds_read_b64_tr_b16 v\[(\d+):\d+\], v\d+', lambda m: f'ds_read_b32 v{m.group(1)}, v{vL0}', l)
        if 'mfma' in kinds and body and 'v_mfma' in l:
            n += 1
            if n % 2: l = '  s_nop 3'
        if 'nslab' in kinds and RWO in l and 'buffer_load' in l: l = '  s_nop 0'
        if 'nwv' in kinds and f'v{vNA}, {RW}' in l: l = '  s_nop 0'
        if 'ncomp' in kinds and 's_cbranch_scc1 MK_np2' in l: l = '  s_branch MK_np2'
        if 'st' in kinds and 'buffer_store_dwordx4' in l: l = '  s_nop 0'
        out.append(l)
    L = out
open(OUTF, 'w').write('\n'.join(L) + '\n')
```

```python
import sys, struct, math, re
OPT = dict(a.split('=') if '=' in a else (a, '1') for a in sys.argv[1:])
OUTF = OPT.get('out', 'standalone__neighborhood_nat__vision.s')
TS = 'ts' in OPT
TSM = [int(x) for x in OPT['tsm'].split(',')] if 'tsm' in OPT else []
TSP = 'tsp' in OPT
def opt(k, d): return int(OPT.get(k, d))
L = []
def e(s): L.append(s)
def el(ls):
    for l in ls: L.append(l)

X_BYTES = 19267584
WS_BYTES = 268435456
XB = 10240
ROW = 7680
HALF = 36864
NHI = XB + 12*ROW
WOL = 147456
SCALE = struct.unpack('<I', struct.pack('<f', (192 ** -0.5) * math.log2(math.e)))[0]
NT = ' nt' if 'nt' in OPT else ''
NCT = 2
NSC = '' if 'nplain' in OPT else ' sc1'
NTO = ' ' + OPT.get('st', 'nt+sc1').replace('+', ' ')
KN = 'standalone__neighborhood_nat__vision_kernel'

hdr = open('standalone__neighborhood_nat__vision.s.ref').read().split('\n')
for ln in hdr:
    if ln.startswith('; @launch'): break
    e(ln)
e('; @launch grid=(256,1,1) block=(512,1,1) lds=163840')
e('.amdgcn_target "amdgcn-amd-amdhsa--gfx950"')
e('.text')

def srd(d, b, n):
    return [f'  s_mov_b32 s{d}, s{b}', f'  s_and_b32 s{d+1}, s{b+1}, 0xffff', f'  s_mov_b32 s{d+2}, {n}', f'  s_mov_b32 s{d+3}, 0x00020000']
def V(a, n=4): return f'v[{a}:{a+n-1}]'
def mfma(d, a, b, c):
    cs = '0' if c is None else V(c)
    return f'  v_mfma_f32_16x16x32_bf16 {V(d)}, {V(a)}, {V(b)}, {cs}'

vL0, vL1 = 1, 2
vO = (5, 6)
vSe, vSo = 7, 8
vP = (9, 10, 11, 12)
vD = (13, 14, 3, 4)
PB0 = (15, 16, 17, 18)
vCT = 19
SB0 = (20, 0)
vRR = (21, 22)
RI = (22, 23)
SACC = (24, 56); QP = 88; XQ = 136; ACC = 184
ABUF = 216; NB = 10
PREG = (136, 152)
YB = ([140, 144, 148, 168, 172, 152], [156, 160, 164, 176, 180, 72])
YACC = ([24+4*i for i in range(12)], [88+4*i for i in range(12)])
SUM = (184, 188); ONES = 192; ET = 196
OUTR = 24; NREG = 40
MACC = 24; MPK = 104
vWA = 96; vMA, vMB, vMW = (97, 98), (99, 100), (101, 102, 103)
vn, vg, tA, tB, tC, tD = 128, 129, 130, 131, 132, 133
vNB, vNA = 134, 135
sW, sU, sH, sPR, sPC, sKR, sKC, sXB, sGS, sGmin = range(24, 34)
sA2, sR0, sD0, sTR, sM0X, sM0X3, sW4, sWL = range(34, 42)
sINV = (42, 44)
sT = list(range(46, 60))
sMR, sAR, sMC, sAC = sT[10], sT[11], sT[12], sT[13]
sTS = 60
sPROD, sWB, sSC, sVO = 3, 92, 93, 100
RX, RO, RWS, RW, RWO, RDB = 's[12:15]', 's[16:19]', 's[20:23]', 's[88:91]', 's[4:7]', 's[8:11]'
MSK = f's[{sT[6]}:{sT[7]}]'
assert sT[6] % 2 == 0 and sT[2] % 2 == 0

nts = [0]
def ts_line():
    s = f'  s_memtime s[{sTS+2*nts[0]}:{sTS+2*nts[0]+1}]'; nts[0] += 1; return s
def tsp():
    if TSP: e(ts_line())

e(f'.globl {KN}'); e('.p2align 8'); e(f'.type {KN},@function'); e(f'{KN}:')
e('  s_cmp_ge_u32 s2, 256'); e('  s_cbranch_scc1 MK_done')
if TS: e(ts_line()); e('  s_memrealtime s[96:97]')
e('  s_load_dwordx8 s[4:11], s[0:1], 0')
e('  s_load_dwordx4 s[84:87], s[0:1], 32')
if 'nopf' not in OPT:
    e('  s_getpc_b64 s[12:13]'); e('MK_pc:')
    e('  s_and_b32 s13, s13, 0xffff'); e('  s_mov_b32 s14, MK_end-MK_pc'); e('  s_mov_b32 s15, 0x00020000')
    e('  v_lshlrev_b32 v23, 7, v0')
    e('  buffer_load_dword v255, v23, s[12:15], 0 offen')
e(f'  v_lshrrev_b32 v{tA}, 6, v0')
e('  v_and_b32 v0, 63, v0')
e(f'  v_readfirstlane_b32 s{sW}, v{tA}')
e(f'  v_and_b32 v{vn}, 15, v0'); e(f'  v_lshrrev_b32 v{vg}, 4, v0')
e(f'  v_lshrrev_b32 v{tA}, 5, v0'); e(f'  v_bfe_u32 v{tB}, v0, 3, 2'); e(f'  v_lshl_add_u32 v{tA}, v{tA}, 3, v{tB}')
e(f'  v_mul_u32_u24 v{tA}, 1152, v{tA}')
e(f'  s_and_b32 s{sH}, s{sW}, 1')
e(f'  s_lshl_b32 s{sT[0]}, s{sH}, 2')
e(f'  v_add_u32 v{tB}, s{sT[0]}, v{vg}'); e(f'  v_and_b32 v{tC}, 7, v0'); e(f'  v_xor_b32 v{tB}, v{tB}, v{tC}')
e(f'  v_lshl_add_u32 v{vWA}, v{tB}, 4, v{tA}')
e(f'  s_lshr_b32 s{sT[0]}, s{sW}, 2'); e(f'  s_lshl_b32 s{sT[0]}, s{sT[0]}, 5')
e(f'  s_lshl_b32 s{sT[1]}, s{sH}, 4'); e(f'  s_add_u32 s{sT[0]}, s{sT[0]}, s{sT[1]}')
e(f'  s_and_b32 s{sT[1]}, s{sW}, 2'); e(f'  s_lshl_b32 s{sT[1]}, s{sT[1]}, 1'); e(f'  s_add_u32 s{sT[0]}, s{sT[0]}, s{sT[1]}')
e(f'  s_mul_i32 s{sWB}, s{sT[0]}, 1152')
e(f'  s_lshl_b32 s{sWL}, s{sW}, 10')
e(f'  s_cmp_lt_u32 s{sW}, 4'); e('  s_cselect_b64 vcc, -1, 0')
e(f'  s_bfe_u32 s{sPR}, s2, 0x10002')
e(f'  s_bfe_u32 s{sPC}, s2, 0x10001')
e(f'  s_and_b32 s{sKR}, s2, 1'); e(f'  s_lshl_b32 s{sKR}, s{sKR}, 2')
e(f'  s_lshr_b32 s{sT[0]}, s2, 6'); e(f'  s_add_u32 s{sKR}, s{sKR}, s{sT[0]}')
e(f'  s_bfe_u32 s{sKC}, s2, 0x30003')
e(f'  s_mul_i32 s{sTR}, s{sKR}, 14'); e(f'  s_add_i32 s{sTR}, s{sTR}, -6'); e(f'  s_max_i32 s{sKR}, s{sTR}, -4')
e(f'  s_mul_i32 s{sKC}, s{sKC}, 14'); e(f'  s_add_i32 s{sKC}, s{sKC}, -6')
e(f'  s_lshr_b32 s{sU}, s{sW}, 1'); e(f'  s_add_u32 s{sU}, s{sU}, 2'); e(f'  s_and_b32 s{sU}, s{sU}, 3')
e(f'  s_sub_u32 s{sMR}, 0, s{sPR}'); e(f'  s_mul_i32 s{sAR}, s{sPR}, 224')
e(f'  s_sub_u32 s{sMC}, 0, s{sPC}'); e(f'  s_mul_i32 s{sAC}, s{sPC}, 224')
e(f'  v_and_b32 v{tA}, 7, v{vn}')
e(f'  s_mul_i32 s{sT[0]}, s{sH}, 7'); e(f'  s_add_i32 s{sT[0]}, s{sT[0]}, s{sKC}')
e(f'  v_cmp_lt_u32 s[{sT[2]}:{sT[3]}], 6, v{tA}')
e(f'  v_add_u32 v{tA}, s{sT[0]}, v{tA}')
e(f'  v_max_i32 v{vCT}, 0, v{tA}')
e(f'  v_add3_u32 v{tA}, v{tA}, v{vCT}, 6')
e(f'  v_xor_b32 v{tA}, s{sMC}, v{tA}'); e(f'  v_add_u32 v{tA}, s{sAC}, v{tA}')
e(f'  v_subrev_u32 v{vCT}, s{sKC}, v{vCT}')
e(f'  v_mul_u32_u24 v{tA}, 384, v{tA}'); e(f'  v_lshl_add_u32 v{tA}, v{vg}, 4, v{tA}')
e(f'  s_lshl_b32 s{sT[0]}, s{sU}, 2'); e(f'  s_add_i32 s{sT[0]}, s{sT[0]}, -2')
e(f'  s_mov_b32 s{sT[1]}, 86016')
e(f'  v_lshrrev_b32 v{tB}, 3, v{vn}'); e(f'  v_add_u32 v{tB}, s{sT[0]}, v{tB}')
e(f'  v_mov_b32 v{tC}, 0x80000000')
for t in range(2):
    if t: e(f'  v_add_u32 v{tB}, 2, v{tB}')
    e(f'  v_cmp_gt_i32 s[{sINV[t]}:{sINV[t]+1}], 0, v{tB}')
    e(f'  v_add_u32 v{vO[t]}, s{sTR}, v{tB}')
    e(f'  v_max_i32 v{vRR[t]}, 0, v{vO[t]}')
    e(f'  v_add3_u32 v{vO[t]}, v{vO[t]}, v{vRR[t]}, 6')
    e(f'  s_or_b64 s[{sINV[t]}:{sINV[t]+1}], s[{sINV[t]}:{sINV[t]+1}], s[{sT[2]}:{sT[3]}]')
    e(f'  v_xor_b32 v{vO[t]}, s{sMR}, v{vO[t]}'); e(f'  v_add_u32 v{vO[t]}, s{sAR}, v{vO[t]}')
    e(f'  v_subrev_u32 v{vRR[t]}, s{sKR}, v{vRR[t]}')
    e(f'  v_mad_u32_u24 v{vO[t]}, v{vO[t]}, s{sT[1]}, v{tA}')
    e(f'  v_cndmask_b32 v{vRR[t]}, v{vRR[t]}, v{tC}, s[{sINV[t]}:{sINV[t]+1}]')
    e(f'  v_cndmask_b32 v{vO[t]}, v{vO[t]}, v{tC}, s[{sINV[t]}:{sINV[t]+1}]')

e('  s_waitcnt lgkmcnt(0)')
tsp()
el(srd(88, 6, 192*576*2))
if 'notlb' not in OPT:
    e(f'  s_cmp_lg_u32 s{sW}, 5'); e('  s_cbranch_scc1 MK_ntlb')
    e(f'  s_max_i32 s{sT[0]}, s{sTR}, 0'); e(f'  s_lshl_b32 s{sT[0]}, s{sT[0]}, 1'); e(f'  s_sub_u32 s{sT[1]}, 184, s{sT[0]}')
    e(f'  s_cmp_eq_u32 s{sPR}, 0'); e(f'  s_cselect_b32 s{sT[0]}, s{sT[0]}, s{sT[1]}'); e(f'  s_mul_i32 s{sT[0]}, s{sT[0]}, 86016')
    for k in range(3):
        e(f'  s_load_dword s94, s[4:5], s{sT[0]}'); e(f'  s_load_dword s95, s[10:11], s{sT[0]}')
        if k < 2: e(f'  s_add_u32 s{sT[0]}, s{sT[0]}, {20*86016 - 64}')
    e(f'  s_load_dword s94, s[84:85], 128'); e(f'  s_load_dword s95, s[86:87], 0x20000')
    e('MK_ntlb:')

def w_pieces(c, partner=0):
    return [[f'  s_add_i32 m0, s{sWL}, {c*49152 + mat*24576 + j*8192 + partner*4096}',
             f'  s_add_i32 s{sVO}, s{sWB}, {(j*64 + partner*32)*1152 + mat*384 + c*128}',
             f'  buffer_load_dwordx4 v{vWA}, {RW}, s{sVO} offen lds'] for mat in range(2) for j in range(3)]
def q_loads():
    return [f'  buffer_load_dwordx4 {V(XQ+24*t+4*s_)}, v{vO[t]}, {RX}, 0 offen offset:{64*s_}{NT}' for t in (1, 0) for s_ in range(6)]
SCH = {'O': OPT.get('so', 'A:W0,B:V0,0:W2+V2,3:q4,4:q8'), 'Y': OPT.get('sy', 'C:W1+V1,1:q6,2:q6')}
PLAN = {}; ISS = {'O': [], 'Y': []}
for r_, sp in SCH.items():
    qi = 0
    for part in sp.split(','):
        pos, items = part.split(':')
        for it in items.split('+'):
            lst = PLAN.setdefault((r_, pos), [])
            if it[0] == 'W': lst += [(f'W{it[1]}', p) for p in w_pieces(int(it[1]))]
            elif it[0] == 'V': lst += [(f'W{it[1]}', p) for p in w_pieces(int(it[1]), 1 if r_ == 'O' else -1)]
            elif it in 'pr':
                assert pos == 'A'
                lst.append(('t', [f'  v_min_u32 v253, 2, v{vg}', f'  v_mad_u32_u24 v253, v253, s{sT[8]}, v{vO[1 if it == "p" else 0]}',
                                  f'  buffer_load_dword v{252 if it == "p" else 251}, v253, {RX}, 0 offen']))
            else:
                for _ in range(int(it[1:])):
                    if r_ == 'Y' and qi >= 6: lst.append(('b', [f'  s_cmp_eq_u32 s{sU}, 0', f'  s_cbranch_scc1 QB{qi}', q_loads()[qi], f'QB{qi}:']))
                    else: lst.append(('q', [q_loads()[qi]]))
                    qi += 1
    assert qi == 12
lbl = [0]
def role_lines(r_, lines):
    lbl[0] += 1
    return [f'  s_cbranch_vcc{"z" if r_ == "O" else "nz"} SL{lbl[0]}'] + list(lines) + [f'SL{lbl[0]}:']
def role2_lines(lo, ly):
    lbl[0] += 1; n = lbl[0]
    return [f'  s_cbranch_vccz SL{n}'] + list(lo) + [f'  s_branch SM{n}', f'SL{n}:'] + list(ly) + [f'SM{n}:']
def sched_items(pos):
    o, y = list(PLAN.get(('O', pos), [])), list(PLAN.get(('Y', pos), []))
    out = []
    while o or y: out.append((o.pop(0) if o else None, y.pop(0) if y else None))
    return out
def emit_item(it):
    o, y = it
    if o: ISS['O'].append(o[0])
    if y: ISS['Y'].append(y[0])
    if o and y and o == y: el(o[1])
    elif o and y: el(role2_lines(o[1], y[1]))
    elif o: el(role_lines('O', o[1]))
    else: el(role_lines('Y', y[1]))
def emit_pos(pos):
    o, y = PLAN.get(('O', pos), []), PLAN.get(('Y', pos), [])
    k = 0
    while k < len(o) and k < len(y) and o[k] == y[k]: emit_item((o[k], y[k])); k += 1
    for r_, x in (('O', o[k:]), ('Y', y[k:])):
        if x:
            ISS[r_] += [i[0] for i in x]; el(role_lines(r_, sum((i[1] for i in x), [])))
def after(r_, tag):
    l = ISS[r_]
    if tag not in l: return len(l) if tag == 'W0' else 63
    return min(63, len(l) - 1 - max(i for i, t in enumerate(l) if t == tag))

if 'nowpf' not in OPT:
    WPW = opt('wpw', 2)
    e(f'  s_lshr_b32 s{sT[0]}, s{sW}, 1'); e(f'  s_cmp_lg_u32 s{sT[0]}, {WPW // 2}'); e('  s_cbranch_scc1 MK_nwpf')
    e(f'  s_cmp_eq_u32 s{sW}, {WPW}'); e(f'  s_cselect_b32 s{sT[0]}, 54, 18')
    e('  s_cselect_b32 s12, s6, s8'); e('  s_cselect_b32 s13, s7, s9'); e('  s_and_b32 s13, s13, 0xffff')
    e(f'  s_lshr_b32 s{sT[1]}, s2, 3'); e(f'  s_mul_i32 s{sT[1]}, s{sT[1]}, s{sT[0]}'); e(f'  s_lshl_b32 s{sVO}, s{sT[1]}, 7')
    e(f'  s_lshl_b32 s{sT[0]}, s{sT[0]}, 7'); e(f'  s_add_u32 s14, s{sVO}, s{sT[0]}'); e('  s_mov_b32 s15, 0x00020000')
    e('  v_lshlrev_b32 v23, 7, v0')
    e(f'  buffer_load_dword v254, v23, s[12:15], s{sVO} offen')
    e('MK_nwpf:')
el(srd(12, 4, X_BYTES))
e(f'  s_movk_i32 s{sT[8]}, 112')
emit_pos('A')
tsp()
el(srd(16, 10, X_BYTES)); el(srd(4, 8, 192*192*2)); el(srd(8, 84, 256)); el(srd(20, 86, WS_BYTES if TS else 73728))
e(f'  v_lshlrev_b32 v{vL0}, 4, v0')
e(f'  v_add_u32 v{vL1}, {HALF}, v{vL0}')
e(f'  s_and_b32 s{sW4}, s{sW}, 3'); e(f'  s_lshl_b32 s{sW4}, s{sW4}, 10')
e(f'  v_bfe_u32 v{tA}, v{vn}, 1, 3'); e(f'  v_xor_b32 v{tA}, v{tA}, v{vg}')
e(f'  v_lshlrev_b32 v{tB}, 7, v{vn}'); e(f'  v_lshl_add_u32 v{tB}, v{tA}, 4, v{tB}')
e(f'  s_lshr_b32 s{sT[0]}, s{sW}, 2'); e(f'  s_mul_i32 s{sT[1]}, s{sT[0]}, {6*2048}')
e(f'  v_add_u32 v{vMA[0]}, s{sT[1]}, v{tB}'); e(f'  v_xor_b32 v{vMA[1]}, 64, v{vMA[0]}')
e(f'  s_mul_i32 s{sT[1]}, s{sW4}, 6'); e(f'  s_add_u32 s{sT[1]}, s{sT[1]}, 24576')
e(f'  v_add_u32 v{vMB[0]}, s{sT[1]}, v{tB}'); e(f'  v_xor_b32 v{vMB[1]}, 64, v{vMB[0]}')
F = []; f_ = F.append
f_(f'  s_lshr_b32 s{sT[0]}, s{sW}, 2'); f_(f'  s_mul_i32 s{sT[0]}, s{sT[0]}, 6'); f_(f'  s_sub_u32 s{sT[0]}, 67, s{sT[0]}')
f_(f'  s_and_b32 s{sT[1]}, s{sW}, 3'); f_(f'  s_mul_i32 s{sT[1]}, s{sT[1]}, 3')
for b in range(3):
    f_(f'  s_add_u32 s{sT[2]}, s{sT[1]}, {b}')
    f_(f'  s_lshr_b32 s{sT[3]}, s{sT[2]}, 1'); f_(f'  s_mul_i32 s{sT[3]}, s{sT[3]}, 10')
    f_(f'  s_add_u32 s{sT[2]}, s{sT[2]}, s{sT[3]}')
    f_(f'  s_sub_u32 s{sT[2]}, s{sT[0]}, s{sT[2]}'); f_(f'  s_lshl_b32 s{sT[2]}, s{sT[2]}, 10')
    f_(f'  v_add_u32 v{vMW[b]}, s{sT[2]}, v{vL0}')
f_(f'  s_lshl_b32 s{sT[0]}, s{sKR}, 1'); f_(f'  s_xor_b32 s{sT[0]}, s{sT[0]}, s{sMR}')
f_(f'  s_mul_i32 s{sT[1]}, s{sPR}, 222'); f_(f'  s_add_i32 s{sXB}, s{sT[0]}, s{sT[1]}')
f_(f'  s_mul_i32 s{sXB}, s{sXB}, 86016')
f_(f'  s_mul_i32 s{sGS}, s{sPR}, {-2*344064}'); f_(f'  s_add_i32 s{sGS}, s{sGS}, 344064')
f_(f'  s_lshr_b32 s{sGmin}, s{sKR}, 31'); f_(f'  s_lshl_b32 s{sGmin}, s{sGmin}, 1')
f_(f'  s_lshl_b32 s{sM0X}, s{sW4}, 2')
f_(f'  s_add_u32 s{sM0X3}, s{sM0X}, 3072'); f_(f'  s_min_u32 s{sM0X3}, s{sM0X3}, {14*1024}')
f_(f'  s_mul_i32 s{sT[2]}, s{sPR}, 172032'); f_(f'  s_sub_u32 s{sT[3]}, 172032, s{sT[2]}')
f_(f'  v_mov_b32 v{tC}, s{sT[2]}'); f_(f'  v_mov_b32 v{tD}, s{sT[3]}')
for b in range(960): assert (b * 2731) >> 16 == b // 24
for j in range(4):
    d = vD[j]
    if j < 3:
        f_(f'  s_lshr_b32 s{sT[0]}, s{sM0X}, 4'); f_(f'  s_add_u32 s{sT[0]}, s{sT[0]}, {64*j}')
    else: f_(f'  s_lshr_b32 s{sT[0]}, s{sM0X3}, 4')
    f_(f'  v_add_u32 v{tA}, s{sT[0]}, v0')
    f_(f'  v_mul_u32_u24 v{d}, 2731, v{tA}'); f_(f'  v_lshrrev_b32 v{d}, 16, v{d}')
    f_(f'  v_cmp_le_u32 {MSK}, 20, v{d}')
    f_(f'  v_mul_u32_u24 v{tB}, 24, v{d}'); f_(f'  v_sub_u32 v{tA}, v{tA}, v{tB}')
    f_(f'  v_subrev_u32 v{tB}, 20, v{d}')
    f_(f'  v_cndmask_b32 v{d}, v{d}, v{tB}, {MSK}')
    f_(f'  v_bfe_u32 v{tB}, v{d}, 1, 3'); f_(f'  v_xor_b32 v{tA}, v{tA}, v{tB}')
    f_(f'  v_cndmask_b32 v{tB}, v{tC}, v{tD}, {MSK}')
    f_(f'  v_lshl_add_u32 v{tA}, v{tA}, 4, v{tB}')
    f_(f'  v_add_u32 v{d}, s{sKC}, v{d}'); f_(f'  v_max_i32 v{d}, 0, v{d}'); f_(f'  v_lshlrev_b32 v{d}, 1, v{d}')
    f_(f'  v_xor_b32 v{d}, s{sMC}, v{d}'); f_(f'  v_add_u32 v{d}, s{sAC}, v{d}')
    f_(f'  v_mul_u32_u24 v{d}, 384, v{d}'); f_(f'  v_add_u32 v{d}, v{d}, v{tA}')
f_(f'  s_add_u32 s{sM0X}, s{sM0X}, {XB}'); f_(f'  s_add_u32 s{sM0X3}, s{sM0X3}, {XB}')
for dst, add in ((sT[0], -2), (sA2, 0)):
    f_(f'  s_lshl_b32 s{dst}, s{sU}, 2')
    if add: f_(f'  s_add_i32 s{dst}, s{dst}, {add}'); f_(f'  s_max_i32 s{dst}, s{dst}, 0')
    f_(f'  s_add_i32 s{dst}, s{dst}, s{sTR}'); f_(f'  s_max_i32 s{dst}, s{dst}, 0'); f_(f'  s_sub_i32 s{dst}, s{dst}, s{sKR}')
f_(f'  s_sub_u32 s{sT[0]}, s{sA2}, s{sT[0]}'); f_(f'  s_lshr_b32 s{sT[0]}, s{sT[0]}, 1')
f_(f'  s_mul_i32 s{sD0}, s{sT[0]}, -8'); f_(f'  s_add_i32 s{sD0}, s{sD0}, 7')
f_(f'  s_add_i32 s{sA2}, s{sA2}, -1')
f_(f'  s_add_i32 s{sR0}, s{sA2}, s{sD0}'); f_(f'  s_mul_i32 s{sD0}, s{sD0}, {ROW}')
f_(f'  s_lshl_b32 s{sT[1]}, s{sH}, 2')
f_(f'  s_mul_i32 s{sT[0]}, s{sA2}, {ROW}'); f_(f'  s_add_i32 s{sT[0]}, s{sT[0]}, {XB}')
f_(f'  v_add_u32 v{tA}, s{sT[1]}, v{vn}')
f_(f'  v_bfe_u32 v{tB}, v{tA}, 1, 3'); f_(f'  v_xor_b32 v{tB}, v{tB}, v{vg}')
f_(f'  v_mul_u32_u24 v{tA}, 384, v{tA}'); f_(f'  v_lshl_add_u32 v{tA}, v{tB}, 4, v{tA}')
f_(f'  v_add_u32 v{vSe}, s{sT[0]}, v{tA}'); f_(f'  v_xor_b32 v{vSo}, 64, v{vSe}')
f_(f'  v_lshrrev_b32 v{tA}, 2, v{vn}'); f_(f'  v_lshl_add_u32 v{tA}, v{vg}, 2, v{tA}'); f_(f'  v_add_u32 v{tA}, s{sT[1]}, v{tA}')
f_(f'  v_bfe_u32 v{tB}, v{tA}, 1, 3')
f_(f'  v_and_b32 v{tC}, 2, v{vn}'); f_(f'  v_lshlrev_b32 v{tC}, 1, v{tC}'); f_(f'  v_xor_b32 v{tB}, v{tB}, v{tC}')
f_(f'  v_mul_u32_u24 v{tA}, 384, v{tA}'); f_(f'  v_lshl_add_u32 v{tA}, v{tB}, 4, v{tA}')
f_(f'  v_and_b32 v{tB}, 1, v{vn}'); f_(f'  v_lshl_add_u32 v{tA}, v{tB}, 3, v{tA}')
f_(f'  v_add_u32 v{vP[0]}, s{sT[0]}, v{tA}')
for k in range(1, 4): f_(f'  v_xor_b32 v{vP[k]}, {16*k}, v{vP[0]}')
f_(f'  v_lshl_add_u32 v{tA}, v{vg}, 2, s{sT[1]}'); f_(f'  v_sub_u32 v{vCT}, v{tA}, v{vCT}')
f_(f'  v_cndmask_b32 v{vCT}, v{vCT}, 64, s[{sINV[1]}:{sINV[1]+1}]')
f_(f'  v_add_u32 v{SB0[0]}, s{sD0}, v{vSe}'); f_(f'  v_add_u32 v{SB0[1]}, s{sD0}, v{vSo}')
for k in range(4): f_(f'  v_add_u32 v{PB0[k]}, s{sD0}, v{vP[k]}')
f_(f'  s_mov_b32 s{sSC}, {SCALE}')
NPRE = opt('npre', 999)
NB1 = opt('nb1', 90)
el(F[:NB1]); emit_pos('B'); el(F[NB1:NPRE]); F = F[NPRE:]

def dma_x(G):
    out = []
    if G < 2: out += [f'  s_max_u32 s{sVO}, s{sGmin}, {G}', f'  s_mul_i32 s{sVO}, s{sVO}, s{sGS}']
    else: out.append(f'  s_mul_i32 s{sVO}, s{sGS}, {G}')
    out.append(f'  s_add_i32 s{sVO}, s{sVO}, s{sXB}')
    for j in range(4):
        out.append(f'  s_add_u32 m0, s{sM0X}, {G*15360 + j*1024}' if j < 3 else f'  s_add_u32 m0, s{sM0X3}, {G*15360}')
        out.append('  s_nop 0')
        out.append(f'  buffer_load_dwordx4 v{vD[j]}, {RX}, s{sVO} offen{NT} lds')
    return out
def dma_xs(Gs): return sum((dma_x(G) for G in Gs), [])
MID = SACC[0] + 8
SPECIAL = [(0, 0), (0, 1), (0, 7), (1, 0), (1, 7)]
def bias_init(tmp):
    out = []; o = out.append
    ninf, tt = tmp, tmp+1
    o(f'  v_mov_b32 v{ninf}, 0xff800000')
    for i in range(4): o(f'  v_add_u32 v{tt+i}, {i}, v{vCT}')
    for i in range(4): o(f'  v_cmp_gt_u32 s[{sT[2+2*i]}:{sT[3+2*i]}], 7, v{tt+i}')
    for q, (t, jj) in enumerate(SPECIAL):
        slot = jj + 2*t
        if slot == 0: o(f'  v_sub_u32 v{tt+4+q}, s{sR0}, v{vRR[t]}')
        else:
            o(f'  s_add_i32 s{sT[0]}, s{sA2}, {slot-1}'); o(f'  v_sub_u32 v{tt+4+q}, s{sT[0]}, v{vRR[t]}')
    for i in range(4): o(f'  v_cndmask_b32 v{MID+i}, v{ninf}, 0, s[{sT[2+2*i]}:{sT[3+2*i]}]')
    for q in range(5): o(f'  v_cmp_gt_u32 s[{sT[2*q]}:{sT[2*q+1]}], 7, v{tt+4+q}')
    for q, (t, jj) in enumerate(SPECIAL):
        for i in range(4): o(f'  v_cndmask_b32 v{SACC[t]+4*jj+i}, v{ninf}, v{MID+i}, s[{sT[2*q]}:{sT[2*q+1]}]')
    return out

tsp()
emit_pos('C')
tsp()
vLN = 107
def n_loads():
    e(f'  v_lshrrev_b32 v{vLN}, 4, v{vL0}')
    e(f'  s_cmp_lt_u32 s2, 72'); e('  s_cbranch_scc0 MK_np1')
    e(f'  s_mul_hi_u32 s{sT[8]}, s2, 0x15555556'); e(f'  s_lshl_b32 s{sT[8]}, s{sT[8]}, 6')
    e(f'  s_mul_i32 s{sT[9]}, s{sW}, {16*384}'); e(f'  s_add_u32 s{sVO}, s{sT[8]}, s{sT[9]}')
    e(f'  v_lshrrev_b32 v{MPK}, 2, v{vLN}'); e(f'  v_mul_u32_u24 v{MPK}, 384, v{MPK}'); e(f'  v_and_b32 v{MPK+1}, 3, v{vLN}'); e(f'  v_lshl_add_u32 v{MPK}, v{MPK+1}, 4, v{MPK}')
    e(f'  s_add_u32 m0, s{sWL}, {WOL}'); e('  s_nop 0')
    e(f'  buffer_load_dwordx4 v{MPK}, {RWO}, s{sVO} offen lds')
    e(f'  s_mul_i32 s{sT[9]}, s{sW4}, 6'); e(f'  s_add_u32 s{sVO}, s{sT[8]}, s{sT[9]}')
    e(f'  s_add_u32 m0, s{sW4}, {WOL + 8192}'); e(f'  s_add_u32 s{sVO}, s{sVO}, {8*16*384}')
    e(f'  buffer_load_dwordx4 v{MPK}, {RWO}, s{sVO} offen lds')
    e('MK_np1:')
    e(f'  s_sub_u32 s{sPROD}, s2, 72'); e(f'  s_lshr_b32 s{sPROD}, s{sPROD}, 31')
    e(f'  s_lshr_b32 s{sPROD}, s{sPROD}, s{sU}')
    e(f'  v_mov_b32 v{vNB}, 0')
    e(f'  s_cmp_eq_u32 s{sPROD}, 0'); e('  s_cbranch_scc1 MK_np3')
    e(f'  s_mul_hi_u32 s{sT[8]}, s2, 0x15555556'); e(f'  s_mul_i32 s{sT[9]}, s{sT[8]}, 12'); e(f'  s_sub_u32 s{sT[9]}, s2, s{sT[9]}')
    e(f'  s_and_b32 s{sT[5]}, s{sT[9]}, 1'); e(f'  s_lshr_b32 s{sT[9]}, s{sT[9]}, 1')
    e(f'  v_lshrrev_b32 v{MPK+2}, 2, v{vn}'); e(f'  v_and_b32 v{MPK+1}, 3, v{vn}')
    e(f'  v_lshl_add_u32 v{vNB}, v{vg}, 3, v{MPK+2}'); e(f'  v_lshlrev_b32 v{vNB}, 6, v{vNB}'); e(f'  v_lshl_add_u32 v{vNB}, v{MPK+1}, 4, v{vNB}')
    e(f'  s_lshl_b32 s{sT[5]}, s{sT[5]}, 3'); e(f'  s_add_u32 s{sT[5]}, s{sT[5]}, {WOL}'); e(f'  v_add_u32 v{vNB}, s{sT[5]}, v{vNB}')
    e(f'  s_lshr_b32 s{sT[8]}, s{sT[9]}, 1'); e(f'  s_lshl_b32 s{sT[8]}, s{sT[8]}, 6')
    e(f'  s_and_b32 s{sT[9]}, s{sT[9]}, 1'); e(f'  s_lshl_b32 s{sT[9]}, s{sT[9]}, 4'); e(f'  s_add_u32 s{sT[8]}, s{sT[8]}, s{sT[9]}')
    e(f'  v_lshrrev_b32 v{MPK}, 1, v{MPK+2}'); e(f'  v_lshlrev_b32 v{MPK}, 5, v{MPK}')
    e(f'  v_and_b32 v{MPK+2}, 1, v{MPK+2}'); e(f'  v_lshl_add_u32 v{MPK}, v{MPK+2}, 2, v{MPK}')
    e(f'  v_add3_u32 v{MPK}, v{MPK}, v{MPK+1}, s{sT[8]}')
    e(f'  v_mul_u32_u24 v{MPK}, 1152, v{MPK}'); e(f'  v_lshl_add_u32 v{vNA}, v{vg}, 4, v{MPK}')
    e(f'  s_mul_i32 s{sVO}, s{sH}, 9216')
    for kk in range(6):
        e(f'  buffer_load_dwordx4 {V(136+4*kk)}, v{vNA}, {RW}, s{sVO} offen offset:{768+64*kk}')
    e('MK_np3:')
def m_reads(kk):
    rb = 184 + 36*(kk % 2); co = (kk // 2) * 49152
    lo = co if co < 49152*2 else 0
    return ([f'  ds_read_b128 {V(rb+24+4*b)}, v{vMB[kk % 2]} offset:{2048*b}' for b in range(3)] +
            [f'  ds_read_b128 {V(rb+4*a)}, v{vMA[kk % 2]} offset:{2048*a}' for a in range(6)])
def chunk_sync(c, lg):
    wo_, wy_ = after('O', f'W{c}'), after('Y', f'W{c}')
    x = ' lgkmcnt(0)' if lg else ''
    def w(n, prod):
        if c == 2 and prod and ISS['Y'].count('b'):
            return [f'  s_cmp_lg_u32 s{sU}, 0', '  s_cbranch_scc1 MK_c2', f'  s_waitcnt vmcnt({n - ISS["Y"].count("b")})', 'MK_c2:', f'  s_waitcnt vmcnt({n}){x}']
        if c != 1 or n == 63: return [f'  s_waitcnt vmcnt({n}){x}']
        lbl[0] += 1; k = lbl[0]; o = []
        if prod: o += [f'  s_cmp_lg_u32 s{sPROD}, 0', f'  s_cbranch_scc1 CA{k}']
        o += ['  s_cmp_lt_u32 s2, 72', f'  s_cbranch_scc1 CB{k}', f'  s_waitcnt vmcnt({n})', f'CB{k}:']
        if prod: o += [f'  s_waitcnt vmcnt({n+2})', f'CA{k}:', f'  s_waitcnt vmcnt({n+8}){x}']
        else: o += [f'  s_waitcnt vmcnt({n+2}){x}']
        return o
    if c == 2:
        wo_, wy_ = min(wo_, len(ISS['O']) - N_AT['O']), min(wy_, len(ISS['Y']) - N_AT['Y'])
    assert c != 1 or 'b' not in ISS['Y']
    if wo_ == wy_ and c != 2: el(w(wo_, True))
    else: el(role2_lines(w(wo_, False), w(wy_, True)))
    e('  s_barrier')
    tsp()
N_AT = {}
FPG = opt('fpg', 4)
chunk_sync(0, False)
el(m_reads(0))
SYA = opt('sya', 0)
for kk in range(4):
    odd = kk % 2 == 1
    extra = sched_items(str(kk)); ne = len(extra); cnt = 0
    rb = 184 + 36*(kk % 2)
    nx = m_reads(kk+1)
    issued = 0
    for a in range(6):
        if odd and a == SYA:
            chunk_sync(kk // 2 + 1, True)
            for r in vMA + vMB: e(f'  v_add_u32 v{r}, 49152, v{r}')
        if not (odd and a >= SYA): e(f'  s_waitcnt lgkmcnt({5 - a + issued})')
        for b in range(3):
            acc = MACC + 12*a + 4*b
            e(mfma(acc, rb+4*a, rb+24+4*b, None if kk == 0 else acc))
            slots = FPG
            if odd:
                for _ in range(1 if SYA <= 3 else 2):
                    if nx and a >= SYA and (b < 2 or SYA >= 2): e(nx.pop(0)); slots -= 1
            elif nx and b < 2 and a >= 1:
                e(nx.pop(0)); issued += 1; slots -= 1
            cnt += 1
            while extra and (ne - len(extra)) * 18 < cnt * ne: emit_item(extra.pop(0)); slots = 0
            el(F[:max(slots, 0)]); F = F[max(slots, 0):]
    el(nx)
    assert not extra
    if kk == 0: n_loads(); N_AT.update(O=len(ISS['O']), Y=len(ISS['Y']))
print('leftover F', len(F), file=sys.stderr); el(F); F = []
assert ISS['Y'].count('q') <= 6
e(f'  s_cmp_eq_u32 s{sPROD}, 0'); e('  s_cbranch_scc1 MK_np2')
e('  s_waitcnt lgkmcnt(0)')
for k2 in range(6):
    for hf in range(2):
        e(f'  ds_read_b64_tr_b16 {V(MPK+4*k2+2*hf, 2)}, v{vNB} offset:{(32*k2 + 4*hf)*64}')
e('  s_setprio 3'); e('  s_waitcnt lgkmcnt(0)')
for kk in range(6):
    e(mfma(128, 136+4*kk, MPK+4*kk, None if kk == 0 else 128))
e(f'  s_lshl_b32 s{sVO}, s2, 10'); e(f'  s_lshl_b32 s{sT[8]}, s{sH}, 3'); e(f'  s_add_u32 s{sVO}, s{sVO}, s{sT[8]}')
e('  s_nop 5')
for r in range(2): e(f'  v_cvt_pk_bf16_f32 v{132+r}, v{128+2*r}, v{129+2*r}')
e(f'  buffer_store_dwordx2 v[132:133], v{vL0}, {RWS}, s{sVO} offen sc1')
NY_AT_STORE = len(ISS['Y'])
e('  s_setprio 0')
e('MK_np2:')
r5 = m_reads(5)
el(r5[:5]); late = r5[5:]
extra = sched_items('4'); ne = len(extra); cnt = 0
pend = []; nw = 0
for fi in range(9):
    a3, b = fi // 3, fi % 3
    if fi == 0: e('  s_waitcnt lgkmcnt(5)')
    for kk in (4, 5):
        rb = 184 + 36*(kk % 2)
        if fi == 0 and kk == 5: e('  s_waitcnt lgkmcnt(2)')
        if fi == 3 and kk == 5: e(f'  s_waitcnt lgkmcnt({nw})')
        for a in (2*a3, 2*a3+1):
            acc = MACC + 12*a + 4*b
            e(mfma(acc, rb+4*a, rb+24+4*b, acc)); cnt += 1
            if late: e(late.pop(0))
            k = 0
            while pend and pend[0][0] <= cnt and k < 2:
                l = pend.pop(0)[1]; e(l); k += 1
                if 'ds_write' in l: nw += 1
            while extra and (ne - len(extra)) * 36 < cnt * ne: emit_item(extra.pop(0))
    o = MPK + 4*(fi % 6)
    for a in range(2):
        acc = MACC + 12*(2*a3 + a) + 4*b
        for i in range(2): pend.append((cnt + 5, f'  v_cvt_pk_bf16_f32 v{o+2*a+i}, v{acc+2*i}, v{acc+2*i+1}'))
    pend.append((cnt + 5, f'  ds_write_b128 v{vMW[b]}, {V(o)} offset:{2048*(2-a3)}'))
assert not extra
tsp()
for i, (_, l) in enumerate(pend):
    if len(pend) - i == 5: e('  s_nop 3')
    e(l)
e('  s_waitcnt lgkmcnt(0)')
e('  s_barrier')
tsp()
NXY = opt('nxy', 2)
XH = (9, 8, 7, 6, 5)
assert ('Y', 'Z') not in PLAN and ('Y', '4') not in PLAN
y = [f'  s_cmp_lg_u32 s{sU}, 0', '  s_cbranch_scc1 MK_z1'] + [f'  v_mov_b32 v{XQ+r}, 0' for r in range(24)] + ['MK_z1:',
     f'  s_cmp_lg_u32 s{sPROD}, 0', '  s_cbranch_scc1 MK_np4', '  s_waitcnt vmcnt(0)', 'MK_np4:', '  s_waitcnt vmcnt(1)', '  s_setprio 1']
o_ = sum((ls for _, ls in PLAN.get(('O', 'Z'), [])), []) + dma_xs(XH[:NXY]) + (bias_init(100) if 'nobf' in OPT else []) + [f'  s_waitcnt vmcnt({4*NXY})']
PRE_P1 = (o_, y)
PUB = [f'  s_cmp_eq_u32 s{sPROD}, 0', '  s_cbranch_scc1 MK_np5', '  s_waitcnt vmcnt(0)', '  v_mov_b32 v23, 1', '  s_mov_b64 exec, 1',
       *([f'  buffer_atomic_add v23, off, {RDB}, 0 sc1'] if 'atom' in OPT else
         [f'  s_lshl_b32 s{sVO}, s{sH}, 7', f'  buffer_atomic_add v23, off, {RDB}, s{sVO} sc1']), '  s_mov_b64 exec, -1', '  s_nop 3', 'MK_np5:']

stream = []; frags = []
def add_frag(reads, gate): frags.append(dict(reads=reads, gate=gate, uses=0)); return len(frags) - 1
def use(fid, fn): frags[fid]['uses'] += 1; stream.append(('mfma', fn, fid))
def mf(text): stream.append(('mfma', (lambda buf: text), None))
def raw(*lines):
    for l in lines: stream.append(('raw', l))
def fill(*lines):
    for l in lines: stream.append(('fill', l))
def flush(): stream.append(('flush',))
def need(fid): stream.append(('need', fid))
def gate(name): stream.append(('gate', name))
def role(r, lines): stream.append(('cond', role_lines(r, lines)))
def role2(lo, ly): stream.append(('cond', role2_lines(lo, ly)))
BAR = '  s_barrier'
def m_read(f):
    addr = (71-f)*1024
    if addr < HALF: return [f'  ds_read_b128 {{d4}}, v{vL0} offset:{addr}']
    return [f'  ds_read_b128 {{d4}}, v{vL1} offset:{addr-HALF}']
def n_addr(f): return NHI + 30720 + 1024*f if f < 30 else ((f-30)*1024 if f < 40 else NHI + (f-40)*1024)
def n_read(f):
    if f >= 70: return []
    a = n_addr(f)
    return [f'  ds_read_b128 {{d4}}, v{vL1} offset:{a-NHI}' if a >= NHI else f'  ds_read_b128 {{d4}}, v{vL0} offset:{a}']
def dma_n(a, b):
    out = []
    for f0 in range(a, b, 4):
        lim = (b - 1 - f0) * 1024; src = sW4
        if lim < 3072: out.append(f'  s_min_u32 s{sT[5]}, s{sW4}, {lim}'); src = sT[5]
        out += [f'  s_add_u32 m0, s{src}, {n_addr(f0)}', f'  s_add_u32 s{sVO}, s{src}, {f0*1024}',
                f'  buffer_load_dwordx4 v{vL0}, {RWS}, s{sVO} offen{NSC} lds']
    return out
def proj(B, rd, gate_of, post, hooks):
    for s in range(6):
        for ks in range(6):
            for hh in range(2):
                f = 12*s + 2*ks + hh
                fid = add_frag(rd(f), gate_of(f))
                if f in hooks: hooks[f](fid)
                for t in range(2):
                    acc = ACC + 16*(s % 2) + 8*t + 4*hh
                    fx = None if rd(f) else NREG + 4*(f-70)
                    use(fid, (lambda buf, acc=acc, t=t, ks=ks, fx=fx: mfma(acc, buf if fx is None else fx, B(t, ks), None if ks == 0 else acc)))
        flush()
        fill(*post(s))

gate('G0')
role2(PRE_P1[0], PRE_P1[1])
BF = [] if 'nobf' in OPT else bias_init(SACC[1] + 8)
fill(*BF[:30])
def p1_post(s):
    out = []
    for t in (1, 0):
        if t == 0 and s == 5: out.append('#QP5a')
        acc = ACC + 16*(s % 2) + 8*t
        for r in range(8): out.append(f'  v_mul_f32 v{acc+r}, s{sSC}, v{acc+r}')
        for r in range(4): out.append(f'  v_cvt_pk_bf16_f32 v{QP+24*t+4*s+r}, v{acc+2*r}, v{acc+2*r+1}')
    return out
proj(lambda t, ks: XQ+24*t+4*ks, m_read, lambda f: 'G0', p1_post,
     {13: lambda fid: fill(*BF[30:35]), 25: lambda fid: fill(*BF[35:39]), 37: lambda fid: fill(*BF[39:44]), 49: lambda fid: fill(*BF[44:]),
      31: lambda fid: (need(fid), role2([BAR], PUB)),
      61: lambda fid: (need(fid), role('O', ['  s_waitcnt vmcnt(0)', BAR]))})
if 'p1flush' in OPT: flush()
stream.append(('tag', 'QP5'))
fill(f'  v_add_u32 v{vL1}, {NHI}, v{vL0}')
for r in range(4): fill(f'  v_mov_b32 v{ONES+r}, 0x3f803f80')
POLL = f'  buffer_load_dword v13, off, {RDB}, 0 sc1' if 'atom' in OPT else f'  buffer_load_dword v13, v14, {RDB}, 0 offen sc1'
PSET = [] if 'atom' in OPT else [f'  v_and_b32 v14, {128 if NCT == 2 else 192}, v{vL0}']
PMODE = opt('pmode', 1)
role('Y', ['  s_setprio 0'] + dma_xs(XH[NXY:]) + [BAR] + dma_xs((4, 3, 2)) + (bias_init(XQ) if 'nobf' in OPT else []) +
     ['  s_waitcnt vmcnt(12)', BAR] + dma_xs((1, 0)) + ['  s_waitcnt vmcnt(8)', BAR])
for _ in range(opt('idle', 0)): raw('  s_sleep 8')
gate('S')
etn = [0]
def sm_fill(t, jj):
    tmp = ET + 4*(etn[0] % 5); etn[0] += 1
    acc = SACC[t] + 4*jj
    for i in range(4): fill(f'  v_exp_f32 v{tmp+i}, v{acc+i}')
    for i in range(2): fill(f'  v_cvt_pk_bf16_f32 v{PREG[t]+2*jj+i}, v{tmp+2*i}, v{tmp+2*i+1}')
    stream.append(('tag', f'P{t}_{jj}'))
def sum_mfmas(t):
    stream.append(('flushto', f'P{t}_0'))
    for kt in (3, 2, 1, 0): mf(mfma(SUM[t], ONES, PREG[t]+4*kt, None if kt == 3 else SUM[t]))
LO, HI = (127-30) << 23, (127+30) << 23
def check(t):
    raw(f'  v_subrev_u32 v{RI[1]}, {LO}, v{SUM[t]}')
    raw(f'  s_mov_b32 s{sT[6]}, {HI-LO}')
    raw(f'  v_cmp_gt_u32 s[{sT[2]}:{sT[3]}], s{sT[6]}, v{RI[1]}')
    raw(f'  s_or_b64 s[{sT[2]}:{sT[3]}], s[{sT[2]}:{sT[3]}], s[{sINV[t]}:{sINV[t]+1}]')
    raw(f'  s_cmp_eq_u64 s[{sT[2]}:{sT[3]}], -1')
    raw(f'  s_cbranch_scc0 FB{t}')
    raw(f'FBR{t}:')
if 'atom' in OPT:
    pollw = [f'  s_mov_b32 s{sT[7]}, 0x400000', 'NPOLL:', '  s_waitcnt vmcnt(0)', f'  v_readfirstlane_b32 s{sT[0]}, v13', f'  s_sub_u32 s{sT[7]}, s{sT[7]}, 1',
             f'  s_cselect_b32 s{sT[0]}, 144, s{sT[0]}', f'  s_cmp_ge_u32 s{sT[0]}, 144', '  s_cbranch_scc1 NPOLLD', POLL, '  s_branch NPOLL', 'NPOLLD:']
else:
    pollw = [f'  s_mov_b32 s{sT[7]}, 0x400000', f'  s_mov_b32 s{sT[0]}, {144 // NCT}', 'NPOLL:', '  s_waitcnt vmcnt(0)', f'  v_cmp_eq_u32 s[{sT[2]}:{sT[3]}], s{sT[0]}, v13',
             f'  s_sub_u32 s{sT[7]}, s{sT[7]}, 1', '  s_cbranch_scc1 NPOLLD', f'  s_cmp_eq_u64 s[{sT[2]}:{sT[3]}], -1', '  s_cbranch_scc1 NPOLLD', POLL, '  s_branch NPOLL', 'NPOLLD:']
ODMA = 'ydma' not in OPT
if not ODMA: pollw = [POLL.replace(' sc1', '')] + pollw
YP = {opt('y5a', 7): [BAR] + pollw + dma_n(0, 30) + dma_n(30, 40),
      opt('y5b', 10): ['  s_waitcnt vmcnt(0)', BAR] + dma_n(40, 70),
      opt('y6', 12): ['  s_waitcnt vmcnt(0)', BAR]}
assert len(YP) == 3
if ODMA: YP = {k: [BAR] for k in YP}
if 'yhi' in OPT: YP[opt('yhi', 0)] = YP.get(opt('yhi', 0), []) + ['  s_setprio 1']
O4B = opt('o4b', 6)
for k, slot in enumerate(range(9, -1, -1)):
    if k == 2:
        role2([BAR], ['  s_waitcnt vmcnt(0)', BAR]); gate('S2')
    if k == O4B: role('O', [BAR] + (PSET + [POLL.replace(' sc1', '')] if ODMA else []))
    if k in YP: role('Y', YP[k])
    for s in range(6):
        if slot == 0 and s == 3: sum_mfmas(1)
        if slot == 9 and s == 5: stream.append(('flushto', 'QP5a'))
        if slot == 7 and s == 5: stream.append(('flushto', 'QP5'))
        if slot == 0: base, off = SB0[s % 2], 128*(s//2)
        else: base, off = (vSe, vSo)[s % 2], (slot-1)*ROW + 128*(s//2)
        fid = add_frag([f'  ds_read_b128 {{d4}}, v{base} offset:{off}'], 'S' if slot >= 6 else 'S2')
        for t in (1, 0):
            jj = slot - 2*t
            if 0 <= jj < 8:
                acc = SACC[t] + 4*jj
                cin = MID if s == 0 and (t, jj) not in SPECIAL else acc
                use(fid, (lambda buf, acc=acc, t=t, s=s, cin=cin: mfma(acc, buf, QP+24*t+4*s, cin)))
    for t in (1, 0):
        jj = slot - 2*t
        if 0 <= jj < 8: sm_fill(t, jj)
check(1)
YC1 = 0
def ycvt(t, ks, _=0):
    return [f'  v_cvt_pk_bf16_f32 v{YB[t][ks]+2*hf+i}, v{YACC[t][2*ks+hf]+2*i}, v{YACC[t][2*ks+hf]+2*i+1}' for hf in range(2) for i in range(2)]
lastf = None
for k, st in enumerate(range(4, -1, -1)):
    if k == 1:
        sum_mfmas(0); check(0)
        for t in range(2): fill(f'  v_rcp_f32 v{RI[t]}, v{SUM[t]}')
    if k == 2: need(lastf); role('O', [BAR] + (pollw + dma_n(30, 40) + dma_n(0, 30) if ODMA else []))
    if 10 + k in YP: role('Y', YP[10 + k])
    for ct in range(12):
        tl = [t for t in (1, 0) if 0 <= st - t < 4]
        b_, e_ = ct // 4, ct % 4
        rd = []
        for hf in range(2):
            slot = 2*st + hf
            if slot == 0: base, off = PB0[e_], 128*b_
            else: base, off = vP[e_], (slot-1)*ROW + 128*b_
            rd.append(f'  ds_read_b64_tr_b16 {{d{"lo" if hf == 0 else "hi"}}}, v{base} offset:{off}')
        fid = add_frag(rd, 'S2'); lastf = fid
        if k == 4 and ct == opt('o5b', 6):
            stream.append(('needall', fid + 11 - ct)); role('O', ['  s_waitcnt vmcnt(0)', BAR] + dma_n(40, 70) if ODMA else [BAR]); gate('P4a')
        for t in tl:
            acc = YACC[t][ct]
            use(fid, (lambda buf, acc=acc, t=t, st=st: mfma(acc, buf, PREG[t]+4*(st-t), None if st - t == 3 else acc)))
        if k == 3 and ct % 2 and ct < 12 - YC1: fill(*ycvt(1, ct // 2, 1))
        if k == 4 and ct % 2: fill(*ycvt(0, ct // 2, 0)); stream.append(('tag', f'YB{ct // 2}'))
    if k == 3:
        for ks in range(6 - YC1 // 2, 6): fill(*ycvt(1, ks, 1))
NLD = [f'  s_mov_b32 s{sVO}, {70*1024}'] + [f'  buffer_load_dwordx4 {V(NREG+4*i)}, v{vL0}, {RWS}, s{sVO} offen offset:{1024*i} sc1' for i in range(2)]
if 15 in YP: role('Y', YP[15])
def p4_post(s):
    out = []
    for t in range(2):
        acc = ACC + 16*(s % 2) + 8*t
        o = OUTR + 8*(s % 2) + 4*t
        for r in range(8): out.append(f'  v_mul_f32 v{acc+r}, v{acc+r}, v{RI[t]}')
        for r in range(4): out.append(f'  v_cvt_pk_bf16_f32 v{o+r}, v{acc+2*r}, v{acc+2*r+1}')
        if 'pairst' in OPT:
            if s % 2:
                out.append(f'  buffer_store_dwordx4 {V(o-8)}, v{vO[t]}, {RO}, 0 offen offset:{64*s-64}{NTO}')
                out.append(f'  buffer_store_dwordx4 {V(o)}, v{vO[t]}, {RO}, 0 offen offset:{64*s}{NTO}')
        else: out.append(f"  buffer_store_dwordx4 {V(o)}, v{vO[t]}, {RO}, 0 offen offset:{64*s}{NTO if s < opt('stn', 6) else ' ' + OPT.get('st2', '')}")
    return out
proj(lambda t, ks: YB[t][ks], n_read, lambda f: 'P4a' if f < 40 else 'P4b', p4_post,
     {**{2*ks: (lambda fid, ks=ks: stream.append(('flushto', f'YB{ks}'))) for ks in range(6)},
      12: lambda fid: raw(*NLD),
      opt('o6', 24): lambda fid: (role('O', (['  s_waitcnt vmcnt(%d)' % (2 if 'pairst' in OPT else 4)] if ODMA else []) + [BAR]), gate('P4b')),
      60: lambda fid: raw('  s_waitcnt vmcnt(8)'),
      opt('ylo', 1): lambda fid: raw('  s_setprio 0') if 'yhi' in OPT else None})
flush()

def regs_of(tok):
    m = re.fullmatch(r'v\[(\d+):(\d+)\]', tok)
    if m: return list(range(int(m.group(1)), int(m.group(2)) + 1))
    m = re.fullmatch(r'-?v(\d+)', tok)
    return [int(m.group(1))] if m else []
def parse(line):
    p = line.strip().split(None, 1)
    op = p[0]; args = [a.strip().split()[0] for a in p[1].split(',')] if len(p) > 1 else []
    return op, args
clock = [0]
mf_w = {}; va_w = {}; tr_w = {}; mf_c = {}; sg_w = {}
def hazard(line):
    op, args = parse(line); need_ = 0
    allr = [r for a in args for r in regs_of(a)]
    if op.startswith('v_mfma'):
        for r in [r for a in args[1:] for r in regs_of(a)]:
            if r in va_w: need_ = max(need_, 2 - (clock[0] - va_w[r] - 1))
        for r in regs_of(args[1]) + regs_of(args[2]):
            if r in mf_w: need_ = max(need_, 8 - (clock[0] - mf_w[r] - 1))
    elif op.startswith('v_') or op.startswith('buffer_') or op.startswith('ds_'):
        for r in allr:
            if r in mf_w: need_ = max(need_, 8 - (clock[0] - mf_w[r] - 1))
        if op.startswith('v_'):
            for r in regs_of(args[0]):
                if r in mf_c: need_ = max(need_, 3 - (clock[0] - mf_c[r] - 1))
            for r in [r for a in args[1:] for r in regs_of(a)]:
                if r in tr_w: need_ = max(need_, 1 - (clock[0] - tr_w[r] - 1))
            for a in args[1:]:
                if a in sg_w: need_ = max(need_, 2 - (clock[0] - sg_w[a] - 1))
    return need_
def emit(line):
    if line.endswith(':'):
        e(line); return
    n = hazard(line)
    if n > 0:
        e(f'  s_nop {n-1}'); clock[0] += n
    op, args = parse(line)
    e(line)
    if op.startswith('v_mfma'):
        for r in regs_of(args[0]): mf_w[r] = clock[0]
        for r in regs_of(args[3]): mf_c[r] = clock[0]
    elif op.startswith('v_'):
        if args[0].startswith('s'): sg_w[args[0]] = clock[0]
        for r in regs_of(args[0]):
            va_w[r] = clock[0]; tr_w.pop(r, None)
            if op in ('v_exp_f32', 'v_rcp_f32'): tr_w[r] = clock[0]
    if op == 's_nop': clock[0] += int(args[0])
    clock[0] += 1

gates = set(); nxt = 0; done_uses = [0]*len(frags)
ops = []; landed = -1; half = [None]
fq = []
def buf_of(f): return ABUF + 4*(f % NB)
def issue_one():
    global nxt
    while True:
        if half[0] is not None:
            emit(half[0]); ops.append(nxt); half[0] = None; nxt += 1; return True
        if nxt >= len(frags): return False
        fr = frags[nxt]
        if fr['gate'] not in gates: return False
        if nxt >= NB and done_uses[nxt-NB] < frags[nxt-NB]['uses']: return False
        if not fr['reads']:
            nxt += 1; continue
        if len(ops) + len(fr['reads']) > (13 if TSM else 15): return False
        b = buf_of(nxt)
        rs = [r.format(d4=V(b), dlo=V(b, 2), dhi=V(b+2, 2)) for r in fr['reads']]
        emit(rs[0]); ops.append(nxt)
        if len(rs) == 2: half[0] = rs[1]
        else: nxt += 1
        return True
def wait_for(f, pair=True):
    global landed, ops
    if f is None or f <= landed: return
    while nxt <= f:
        n0 = nxt
        if not issue_one() and nxt == n0: raise RuntimeError(f'cannot issue frag {nxt}')
    if any(o <= f for o in ops):
        if pair and f + 1 < nxt and sum(1 for o in ops if o > f + 1) >= PAIRMIN: f = f + 1
        n = sum(1 for o in ops if o > f)
        emit(f'  s_waitcnt lgkmcnt({n})')
        ops = [o for o in ops if o > f]
    landed = f
def sregs(tok):
    m = re.fullmatch(r's\[(\d+):(\d+)\]', tok)
    if m: return [-1 - r for r in range(int(m.group(1)), int(m.group(2)) + 1)]
    m = re.fullmatch(r's(\d+)', tok)
    return [-1 - int(m.group(1))] if m else []
def wr(l):
    op, args = parse(l)
    return set() if op.startswith('buffer_') else set(regs_of(args[0]) + sregs(args[0]))
def rdset(l):
    op, args = parse(l)
    return set(r for a in (args if op.startswith('buffer_') else args[1:]) for r in regs_of(a) + sregs(a))
def pick(pred):
    W, R = set(), set()
    for i, l in enumerate(fq[:WINDOW]):
        if l.startswith('#'): continue
        if pred(l) and not (rdset(l) & W) and not (wr(l) & (W | R)) and hazard(l) <= 0: return i
        W |= wr(l); R |= rdset(l)
    return None
def is2(l): return 'v_exp' in l or 'v_rcp' in l
def isst(l): return 'buffer_store' in l
def gap(si, ent):
    while fq and fq[0].startswith('#'): fq.pop(0)
    cur = ent[2] if ent[2] is not None else landed
    nf = STREAM_NEXT.get(si)
    wnext = nf is not None and nf > landed
    ahead = nxt - cur
    i = pick(isst)
    if i is not None and half[0] is None and ahead >= MINAHEAD:
        emit(fq.pop(i))
        i = pick(lambda l: not is2(l) and not isst(l))
        if i is not None: emit(fq.pop(i))
        return
    slots = 1 if wnext else 2
    nexp = sum(1 for l in fq if is2(l))
    if not wnext and half[0] is None and ahead >= EXPAHEAD:
        i = pick(is2)
        if i is not None:
            emit(fq.pop(i)); return
    if issue_one(): slots -= 1
    if (half[0] is not None or slots > 0 and (nexp or not fq or ahead < 6)) and issue_one(): slots -= 1
    if nexp > BACKLOG: slots = max(slots, 1 if pick(lambda l: not is2(l) and not isst(l)) is not None else 2)
    while slots > 0:
        i = pick(is2) if slots >= 2 else None
        if i is not None:
            emit(fq.pop(i)); slots -= 2; continue
        i = pick(lambda l: not is2(l) and not isst(l))
        if i is None: break
        emit(fq.pop(i)); slots -= 1
WINDOW = opt('window', 16); MINAHEAD = opt('minahead', 5); EXPAHEAD = opt('expahead', 7)
nmf = [0]
BACKLOG = opt('backlog', 6); PAIRMIN = opt('pairmin', 5)
STREAM_NEXT = {}
mi = [i for i, x in enumerate(stream) if x[0] == 'mfma']
for a_, b_ in zip(mi, mi[1:]): STREAM_NEXT[a_] = stream[b_][2]
for si, ent in enumerate(stream):
    k = ent[0]
    if k == 'raw': emit(ent[1])
    elif k == 'fill': fq.append(ent[1])
    elif k == 'flush':
        for l in fq:
            if not l.startswith('#'): emit(l)
        fq = []
    elif k == 'tag': fq.append('#' + ent[1])
    elif k == 'flushto':
        if '#' + ent[1] in fq:
            i = fq.index('#' + ent[1])
            for l in fq[:i]:
                if not l.startswith('#'): emit(l)
            fq = fq[i+1:]
    elif k == 'gate':
        gates.add(ent[1])
        while issue_one(): pass
    elif k in ('need', 'needall'): wait_for(ent[1])
    elif k == 'cond':
        emit(ent[1][0]); el(ent[1][1:])
    elif k == 'mfma':
        wait_for(ent[2])
        if nmf[0] in TSM: e(ts_line())
        nmf[0] += 1
        emit(ent[1](buf_of(ent[2]) if ent[2] is not None else None))
        if ent[2] is not None: done_uses[ent[2]] += 1
        gap(si, ent)
if TS:
    e('  s_waitcnt vmcnt(0)')
    e(ts_line()); e('  s_memrealtime s[98:99]')
    e('  s_waitcnt lgkmcnt(0)')
    e(f'  s_lshl_b32 s{sT[0]}, s2, 3'); e(f'  s_add_u32 s{sT[0]}, s{sT[0]}, s{sW}'); e(f'  s_lshl_b32 s{sT[0]}, s{sT[0]}, 6')
    e(f'  s_add_u32 s{sT[0]}, s{sT[0]}, 0x100000')
    e('  v_mov_b32 v1, 0')
    for i in range(nts[0]):
        if i == 0: e(f'  v_mov_b32 v2, s{sTS}')
        else:
            e(f'  s_sub_u32 s{sT[1]}, s{sTS+2*i}, s{sTS}'); e(f'  v_mov_b32 v2, s{sT[1]}')
        e(f'  buffer_store_dword v2, v1, s[20:23], s{sT[0]} offen offset:{4*i}')
    e('  v_mov_b32 v2, s96'); e('  v_mov_b32 v3, s98')
    e(f'  buffer_store_dwordx2 v[2:3], v1, s[20:23], s{sT[0]} offen offset:56')
    print('timestamps', nts[0]); assert nts[0] <= 12
e('MK_done:')
e('  s_endpgm')
for t in range(2):
    R = SACC[t]; vm, vt = RI[0], RI[1]
    e(f'FB{t}:')
    e('  s_nop 7')
    e(f'  v_max3_f32 v{vm}, v{R}, v{R+1}, v{R+2}')
    for k in range(3, 31, 2): e(f'  v_max3_f32 v{vm}, v{vm}, v{R+k}, v{R+k+1}')
    e(f'  s_mov_b32 s{sT[6]}, 0xff7fffff')
    e(f'  v_max3_f32 v{vm}, v{vm}, v{R+31}, s{sT[6]}')
    for sw in ('v_permlane32_swap_b32', 'v_permlane16_swap_b32'):
        e(f'  v_mov_b32 v{vt}, v{vm}'); e('  s_nop 1'); e(f'  {sw} v{vm}, v{vt}'); e('  s_nop 1')
        e(f'  v_max_f32 v{vm}, v{vm}, v{vt}')
    for k in range(32): e(f'  v_sub_f32 v{R+k}, v{R+k}, v{vm}')
    for k in range(32): e(f'  v_exp_f32 v{R+k}, v{R+k}')
    e('  s_nop 0')
    for k in range(16): e(f'  v_cvt_pk_bf16_f32 v{PREG[t]+k}, v{R+2*k}, v{R+2*k+1}')
    e('  s_nop 1')
    for kt in range(4): e(mfma(SUM[t], ONES, PREG[t]+4*kt, None if kt == 0 else SUM[t]))
    e('  s_nop 7')
    e(f'  s_branch FBR{t}')
e('MK_end:')
e('.section .rodata,"a"')
e('.p2align 6'); e(f'.amdhsa_kernel {KN}')
e('  .amdhsa_next_free_vgpr 256'); e('  .amdhsa_next_free_sgpr 102'); e('  .amdhsa_accum_offset 256')
e('  .amdhsa_group_segment_fixed_size 0'); e('  .amdhsa_kernarg_size 48'); e('  .amdhsa_user_sgpr_count 2')
e('  .amdhsa_user_sgpr_kernarg_segment_ptr 1'); e('  .amdhsa_system_sgpr_workgroup_id_x 1')
e('.end_amdhsa_kernel')
if 'drop' in OPT:
    kinds = OPT['drop'].split(',')
    i0 = next(i for i, l in enumerate(L) if 'MK_np4:' in l)
    out = []; n = 0
    for i, l in enumerate(L):
        body = i > i0
        if 'mM' in kinds and not body and 'v_mfma' in l: l = '  s_nop 3'
        if 'exp' in kinds and 'v_exp' in l: l = l.replace('v_exp_f32', 'v_mov_b32')
        if 'lds' in kinds and body and 'ds_read_b128' in l:
            l = re.sub(r'ds_read_b128 v\[(\d+):\d+\]', lambda m: f'ds_read_b32 v{m.group(1)}', l)
        if 'tr' in kinds and body and 'ds_read_b64_tr' in l:
            l = re.sub(r'ds_read_b64_tr_b16 v\[(\d+):\d+\], v\d+', lambda m: f'ds_read_b32 v{m.group(1)}, v{vL0}', l)
        if 'mfma' in kinds and body and 'v_mfma' in l:
            n += 1
            if n % 2: l = '  s_nop 3'
        if 'nslab' in kinds and RWO in l and 'buffer_load' in l: l = '  s_nop 0'
        if 'nwv' in kinds and f'v{vNA}, {RW}' in l: l = '  s_nop 0'
        if 'ncomp' in kinds and 's_cbranch_scc1 MK_np2' in l: l = '  s_branch MK_np2'
        if 'st' in kinds and 'buffer_store_dwordx4' in l: l = '  s_nop 0'
        out.append(l)
    L = out
open(OUTF, 'w').write('\n'.join(L) + '\n')
```

```python
import sys, struct, math, re
OPT = dict(a.split('=') if '=' in a else (a, '1') for a in sys.argv[1:])
OUTF = OPT.get('out', 'standalone__neighborhood_nat__vision.s')
TS = 'ts' in OPT
TSM = [int(x) for x in OPT['tsm'].split(',')] if 'tsm' in OPT else []
TSP = 'tsp' in OPT
def opt(k, d): return int(OPT.get(k, d))
L = []
def e(s): L.append(s)
def el(ls):
    for l in ls: L.append(l)

X_BYTES = 19267584
WS_BYTES = 268435456
XB = 10240
ROW = 7680
HALF = 36864
NHI = XB + 12*ROW
WOL = 147456
SCALE = struct.unpack('<I', struct.pack('<f', (192 ** -0.5) * math.log2(math.e)))[0]
NT = ' nt' if 'nt' in OPT else ''
NCT = 2
NSC = '' if 'nplain' in OPT else ' sc1'
NTO = ' ' + OPT.get('st', 'nt+sc1').replace('+', ' ')
KN = 'standalone__neighborhood_nat__vision_kernel'

hdr = open('standalone__neighborhood_nat__vision.s.ref').read().split('\n')
for ln in hdr:
    if ln.startswith('; @launch'): break
    e(ln)
e('; @launch grid=(256,1,1) block=(512,1,1) lds=163840')
e('.amdgcn_target "amdgcn-amd-amdhsa--gfx950"')
e('.text')

def srd(d, b, n):
    return [f'  s_mov_b32 s{d}, s{b}', f'  s_and_b32 s{d+1}, s{b+1}, 0xffff', f'  s_mov_b32 s{d+2}, {n}', f'  s_mov_b32 s{d+3}, 0x00020000']
def V(a, n=4): return f'v[{a}:{a+n-1}]'
def mfma(d, a, b, c):
    cs = '0' if c is None else V(c)
    return f'  v_mfma_f32_16x16x32_bf16 {V(d)}, {V(a)}, {V(b)}, {cs}'

vL0, vL1 = 1, 2
vO = (5, 6)
vSe, vSo = 7, 8
vP = (9, 10, 11, 12)
vD = (13, 14, 3, 4)
PB0 = (15, 16, 17, 18)
vCT = 19
SB0 = (20, 0)
vRR = (21, 22)
RI = (22, 23)
SACC = (24, 56); QP = 88; XQ = 136; ACC = 184
ABUF = 216; NB = 10
PREG = (136, 152)
YB = ([140, 144, 148, 168, 172, 152], [156, 160, 164, 176, 180, 72])
YACC = ([24+4*i for i in range(12)], [88+4*i for i in range(12)])
SUM = (184, 188); ONES = 192; ET = 196
OUTR = 24; NREG = 40
MACC = 24; MPK = 104
vWA = 96; vMA, vMB, vMW = (97, 98), (99, 100), (101, 102, 103)
vn, vg, tA, tB, tC, tD = 128, 129, 130, 131, 132, 133
vNB, vNA = 134, 135
QA = (134, 135); vQR = 23
CH = (98304, 49152, 0)
SO = 98304
sQR = (84, 85, 86, 87); sST = 101
sW, sU, sH, sPR, sPC, sKR, sKC, sXB, sGS, sGmin = range(24, 34)
sA2, sR0, sD0, sTR, sM0X, sM0X3, sW4, sWL = range(34, 42)
sINV = (42, 44)
sT = list(range(46, 60))
sMR, sAR, sMC, sAC = sT[10], sT[11], sT[12], sT[13]
sTS = 60
sPROD, sWB, sSC, sVO = 3, 92, 93, 100
RX, RO, RWS, RW, RWO, RDB = 's[12:15]', 's[16:19]', 's[20:23]', 's[88:91]', 's[4:7]', 's[8:11]'
MSK = f's[{sT[6]}:{sT[7]}]'
assert sT[6] % 2 == 0 and sT[2] % 2 == 0

nts = [0]
def ts_line():
    s = f'  s_memtime s[{sTS+2*nts[0]}:{sTS+2*nts[0]+1}]'; nts[0] += 1; return s
def tsp():
    if TSP: e(ts_line())

e(f'.globl {KN}'); e('.p2align 8'); e(f'.type {KN},@function'); e(f'{KN}:')
e('  s_cmp_ge_u32 s2, 256'); e('  s_cbranch_scc1 MK_done')
if TS: e(ts_line()); e('  s_memrealtime s[96:97]')
e('  s_load_dwordx8 s[4:11], s[0:1], 0')
e('  s_load_dwordx4 s[84:87], s[0:1], 32')
if 'nopf' not in OPT:
    e('  s_getpc_b64 s[12:13]'); e('MK_pc:')
    e('  s_and_b32 s13, s13, 0xffff'); e('  s_mov_b32 s14, MK_end-MK_pc'); e('  s_mov_b32 s15, 0x00020000')
    e('  v_lshlrev_b32 v23, 7, v0')
    e('  buffer_load_dword v255, v23, s[12:15], 0 offen')
e(f'  v_lshrrev_b32 v{tA}, 6, v0')
e('  v_and_b32 v0, 63, v0')
e(f'  v_readfirstlane_b32 s{sW}, v{tA}')
e(f'  v_and_b32 v{vn}, 15, v0'); e(f'  v_lshrrev_b32 v{vg}, 4, v0')
e(f'  v_lshrrev_b32 v{tA}, 5, v0'); e(f'  v_bfe_u32 v{tB}, v0, 3, 2'); e(f'  v_lshl_add_u32 v{tA}, v{tA}, 3, v{tB}')
e(f'  v_mul_u32_u24 v{tA}, 1152, v{tA}')
e(f'  s_and_b32 s{sH}, s{sW}, 1')
e(f'  s_lshl_b32 s{sT[0]}, s{sH}, 2')
e(f'  v_add_u32 v{tB}, s{sT[0]}, v{vg}'); e(f'  v_and_b32 v{tC}, 7, v0'); e(f'  v_xor_b32 v{tB}, v{tB}, v{tC}')
e(f'  v_lshl_add_u32 v{vWA}, v{tB}, 4, v{tA}')
e(f'  s_lshr_b32 s{sT[0]}, s{sW}, 2'); e(f'  s_lshl_b32 s{sT[0]}, s{sT[0]}, 5')
e(f'  s_lshl_b32 s{sT[1]}, s{sH}, 4'); e(f'  s_add_u32 s{sT[0]}, s{sT[0]}, s{sT[1]}')
e(f'  s_and_b32 s{sT[1]}, s{sW}, 2'); e(f'  s_lshl_b32 s{sT[1]}, s{sT[1]}, 1'); e(f'  s_add_u32 s{sT[0]}, s{sT[0]}, s{sT[1]}')
e(f'  s_mul_i32 s{sWB}, s{sT[0]}, 1152')
e(f'  s_lshl_b32 s{sWL}, s{sW}, 10')
e(f'  s_cmp_lt_u32 s{sW}, 4'); e('  s_cselect_b64 vcc, -1, 0')
EARLY_AT = len(L)
e(f'  s_bfe_u32 s{sPR}, s2, 0x10002')
e(f'  s_bfe_u32 s{sPC}, s2, 0x10001')
e(f'  s_and_b32 s{sKR}, s2, 1'); e(f'  s_lshl_b32 s{sKR}, s{sKR}, 2')
e(f'  s_lshr_b32 s{sT[0]}, s2, 6'); e(f'  s_add_u32 s{sKR}, s{sKR}, s{sT[0]}')
e(f'  s_bfe_u32 s{sKC}, s2, 0x30003')
e(f'  s_mul_i32 s{sTR}, s{sKR}, 14'); e(f'  s_add_i32 s{sTR}, s{sTR}, -6'); e(f'  s_max_i32 s{sKR}, s{sTR}, -4')
e(f'  s_mul_i32 s{sKC}, s{sKC}, 14'); e(f'  s_add_i32 s{sKC}, s{sKC}, -6')
e(f'  s_lshr_b32 s{sU}, s{sW}, 1'); e(f'  s_add_u32 s{sU}, s{sU}, 2'); e(f'  s_and_b32 s{sU}, s{sU}, 3')
e(f'  s_sub_u32 s{sMR}, 0, s{sPR}'); e(f'  s_mul_i32 s{sAR}, s{sPR}, 224')
e(f'  s_sub_u32 s{sMC}, 0, s{sPC}'); e(f'  s_mul_i32 s{sAC}, s{sPC}, 224')
e(f'  v_and_b32 v{tA}, 7, v{vn}')
e(f'  s_mul_i32 s{sT[0]}, s{sH}, 7'); e(f'  s_add_i32 s{sT[0]}, s{sT[0]}, s{sKC}')
e(f'  v_cmp_lt_u32 s[{sT[2]}:{sT[3]}], 6, v{tA}')
e(f'  v_add_u32 v{tA}, s{sT[0]}, v{tA}')
e(f'  v_max_i32 v{vCT}, 0, v{tA}')
e(f'  v_add3_u32 v{tA}, v{tA}, v{vCT}, 6')
e(f'  v_xor_b32 v{tA}, s{sMC}, v{tA}'); e(f'  v_add_u32 v{tA}, s{sAC}, v{tA}')
e(f'  v_subrev_u32 v{vCT}, s{sKC}, v{vCT}')
e(f'  v_mul_u32_u24 v{tA}, 384, v{tA}'); e(f'  v_lshl_add_u32 v{tA}, v{vg}, 4, v{tA}')
e(f'  s_lshl_b32 s{sT[0]}, s{sU}, 2'); e(f'  s_add_i32 s{sT[0]}, s{sT[0]}, -2')
e(f'  s_mov_b32 s{sT[1]}, 86016')
e(f'  v_lshrrev_b32 v{tB}, 3, v{vn}'); e(f'  v_add_u32 v{tB}, s{sT[0]}, v{tB}')
e(f'  v_mov_b32 v{tC}, 0x80000000')
for t in range(2):
    if t: e(f'  v_add_u32 v{tB}, 2, v{tB}')
    e(f'  v_cmp_gt_i32 s[{sINV[t]}:{sINV[t]+1}], 0, v{tB}')
    e(f'  v_add_u32 v{vO[t]}, s{sTR}, v{tB}')
    e(f'  v_max_i32 v{vRR[t]}, 0, v{vO[t]}')
    e(f'  v_add3_u32 v{vO[t]}, v{vO[t]}, v{vRR[t]}, 6')
    e(f'  s_or_b64 s[{sINV[t]}:{sINV[t]+1}], s[{sINV[t]}:{sINV[t]+1}], s[{sT[2]}:{sT[3]}]')
    e(f'  v_xor_b32 v{vO[t]}, s{sMR}, v{vO[t]}'); e(f'  v_add_u32 v{vO[t]}, s{sAR}, v{vO[t]}')
    e(f'  v_subrev_u32 v{vRR[t]}, s{sKR}, v{vRR[t]}')
    e(f'  v_mad_u32_u24 v{vO[t]}, v{vO[t]}, s{sT[1]}, v{tA}')
    e(f'  v_cndmask_b32 v{vRR[t]}, v{vRR[t]}, v{tC}, s[{sINV[t]}:{sINV[t]+1}]')
    e(f'  v_cndmask_b32 v{vO[t]}, v{vO[t]}, v{tC}, s[{sINV[t]}:{sINV[t]+1}]')

e('  s_waitcnt lgkmcnt(0)')
tsp()
el(srd(88, 6, 192*576*2))
if 'notlb' not in OPT:
    e(f'  s_cmp_lg_u32 s{sW}, 5'); e('  s_cbranch_scc1 MK_ntlb')
    e(f'  s_max_i32 s{sT[0]}, s{sTR}, 0'); e(f'  s_lshl_b32 s{sT[0]}, s{sT[0]}, 1'); e(f'  s_sub_u32 s{sT[1]}, 184, s{sT[0]}')
    e(f'  s_cmp_eq_u32 s{sPR}, 0'); e(f'  s_cselect_b32 s{sT[0]}, s{sT[0]}, s{sT[1]}'); e(f'  s_mul_i32 s{sT[0]}, s{sT[0]}, 86016')
    for k in range(3):
        e(f'  s_load_dword s94, s[4:5], s{sT[0]}'); e(f'  s_load_dword s95, s[10:11], s{sT[0]}')
        if k < 2: e(f'  s_add_u32 s{sT[0]}, s{sT[0]}, {20*86016 - 64}')
    e(f'  s_load_dword s94, s[84:85], 128'); e(f'  s_load_dword s95, s[86:87], 0x20000')
    e('MK_ntlb:')

def w_pieces(c, partner=0):
    return [[f'  s_add_i32 m0, s{sWL}, {CH[c] + mat*24576 + j*8192 + partner*4096}',
             f'  s_add_i32 s{sVO}, s{sWB}, {(j*64 + partner*32)*1152 + mat*384 + c*128}',
             f'  buffer_load_dwordx4 v{vWA}, {RW}, s{sVO} offen lds'] for mat in range(2) for j in range(3)]
def q_loads():
    return [f'  buffer_load_dwordx4 {V(XQ+24*t+4*s_)}, v{vO[t]}, {RX}, 0 offen offset:{64*s_}{NT}' for t in (1, 0) for s_ in range(6)]
def q_stage():
    return [[f'  s_add_u32 m0, s{sST}, {t*6144 + (3*qr + l)*1024 - 128*l}', '  s_nop 0',
             f'  buffer_load_dwordx4 v{QA[qr]}, {RX}, s{sQR[2*t+qr]} offen offset:{128*l}{NT} lds'] for t in (1, 0) for qr in range(2) for l in range(3)]
def q_reads():
    return ([f'  v_xor_b32 v{tA}, 64, v{vQR}'] +
            [f'  ds_read_b128 {V(XQ+24*t+4*s_)}, v{(vQR, tA)[s_ % 2]} offset:{t*6144 + 1024*(s_//2)}' for t in range(2) for s_ in range(6)])
SCH = {'O': OPT.get('so', 'A:W0,B:V0,0:W2+V2,3:q6,4:q6'), 'Y': OPT.get('sy', 'C:W1+V1,1:q6,2:q6')}
PLAN = {}; ISS = {'O': [], 'Y': []}
for r_, sp in SCH.items():
    qi = 0
    for part in sp.split(','):
        pos, items = part.split(':')
        for it in items.split('+'):
            lst = PLAN.setdefault((r_, pos), [])
            if it[0] == 'W': lst += [(f'W{it[1]}', p) for p in w_pieces(int(it[1]))]
            elif it[0] == 'V': lst += [(f'W{it[1]}', p) for p in w_pieces(int(it[1]), 1 if r_ == 'O' else -1)]
            elif it in 'pr':
                assert pos == 'A'
                lst.append(('t', [f'  v_min_u32 v253, 2, v{vg}', f'  v_mad_u32_u24 v253, v253, s{sT[8]}, v{vO[1 if it == "p" else 0]}',
                                  f'  buffer_load_dword v{252 if it == "p" else 251}, v253, {RX}, 0 offen']))
            else:
                for _ in range(int(it[1:])):
                    if r_ == 'Y' and qi >= 6: lst.append(('b', [f'  s_cmp_eq_u32 s{sU}, 0', f'  s_cbranch_scc1 QB{qi}', q_loads()[qi], f'QB{qi}:']))
                    elif r_ == 'O': lst.append(('q', q_stage()[qi])); assert pos in '1234Z'
                    else: lst.append(('q', [q_loads()[qi]]))
                    qi += 1
    assert qi == 12
lbl = [0]
def role_lines(r_, lines):
    lbl[0] += 1
    return [f'  s_cbranch_vcc{"z" if r_ == "O" else "nz"} SL{lbl[0]}'] + list(lines) + [f'SL{lbl[0]}:']
def role2_lines(lo, ly):
    lbl[0] += 1; n = lbl[0]
    return [f'  s_cbranch_vccz SL{n}'] + list(lo) + [f'  s_branch SM{n}', f'SL{n}:'] + list(ly) + [f'SM{n}:']
def sched_items(pos):
    o, y = list(PLAN.get(('O', pos), [])), list(PLAN.get(('Y', pos), []))
    out = []
    while o or y: out.append((o.pop(0) if o else None, y.pop(0) if y else None))
    return out
def emit_item(it):
    o, y = it
    if o: ISS['O'].append(o[0])
    if y: ISS['Y'].append(y[0])
    if o and y and o == y: el(o[1])
    elif o and y: el(role2_lines(o[1], y[1]))
    elif o: el(role_lines('O', o[1]))
    else: el(role_lines('Y', y[1]))
def emit_pos(pos):
    o, y = PLAN.get(('O', pos), []), PLAN.get(('Y', pos), [])
    k = 0
    while k < len(o) and k < len(y) and o[k] == y[k]: emit_item((o[k], y[k])); k += 1
    for r_, x in (('O', o[k:]), ('Y', y[k:])):
        if x:
            ISS[r_] += [i[0] for i in x]; el(role_lines(r_, sum((i[1] for i in x), [])))
def after(r_, tag):
    l = ISS[r_]
    if tag not in l: return len(l) if tag == 'W0' else 63
    return min(63, len(l) - 1 - max(i for i, t in enumerate(l) if t == tag))

if 'nowpf' not in OPT:
    WPW = opt('wpw', 4)
    e(f'  s_lshr_b32 s{sT[0]}, s{sW}, 1'); e(f'  s_cmp_lg_u32 s{sT[0]}, {WPW // 2}'); e('  s_cbranch_scc1 MK_nwpf')
    e(f'  s_cmp_eq_u32 s{sW}, {WPW}'); e(f'  s_cselect_b32 s{sT[0]}, 54, 18')
    e('  s_cselect_b32 s12, s6, s8'); e('  s_cselect_b32 s13, s7, s9'); e('  s_and_b32 s13, s13, 0xffff')
    e(f'  s_lshr_b32 s{sT[1]}, s2, 3'); e(f'  s_mul_i32 s{sT[1]}, s{sT[1]}, s{sT[0]}'); e(f'  s_lshl_b32 s{sVO}, s{sT[1]}, 7')
    e(f'  s_lshl_b32 s{sT[0]}, s{sT[0]}, 7'); e(f'  s_add_u32 s14, s{sVO}, s{sT[0]}'); e('  s_mov_b32 s15, 0x00020000')
    e('  v_lshlrev_b32 v23, 7, v0')
    e(f'  buffer_load_dword v254, v23, s[12:15], s{sVO} offen')
    e('MK_nwpf:')
el(srd(12, 4, X_BYTES))
e(f'  s_movk_i32 s{sT[8]}, 112')
if 'noearly' in OPT: emit_pos('A')
else:
    assert ('Y', 'A') not in PLAN
    it = PLAN[('O', 'A')]; ISS['O'] += [i[0] for i in it]
    L[EARLY_AT:EARLY_AT] = role_lines('O', ['  s_waitcnt lgkmcnt(0)'] + srd(88, 6, 192*576*2) + sum((i[1] for i in it), []))
tsp()
el(srd(16, 10, X_BYTES)); el(srd(4, 8, 192*192*2)); el(srd(8, 84, 256)); el(srd(20, 86, WS_BYTES if TS else 73728))
e(f'  v_lshlrev_b32 v{vL0}, 4, v0')
e(f'  v_add_u32 v{vL1}, {HALF}, v{vL0}')
e(f'  s_and_b32 s{sW4}, s{sW}, 3'); e(f'  s_lshl_b32 s{sW4}, s{sW4}, 10')
e(f'  v_bfe_u32 v{tA}, v{vn}, 1, 3'); e(f'  v_xor_b32 v{tA}, v{tA}, v{vg}')
e(f'  v_lshlrev_b32 v{tB}, 7, v{vn}'); e(f'  v_lshl_add_u32 v{tB}, v{tA}, 4, v{tB}')
e(f'  s_lshr_b32 s{sT[0]}, s{sW}, 2'); e(f'  s_mul_i32 s{sT[1]}, s{sT[0]}, {6*2048}'); e(f'  s_add_u32 s{sT[1]}, s{sT[1]}, {CH[0]}')
e(f'  v_add_u32 v{vMA[0]}, s{sT[1]}, v{tB}'); e(f'  v_xor_b32 v{vMA[1]}, 64, v{vMA[0]}')
e(f'  s_mul_i32 s{sT[1]}, s{sW4}, 6'); e(f'  s_add_u32 s{sT[1]}, s{sT[1]}, {24576 + CH[0]}')
e(f'  v_add_u32 v{vMB[0]}, s{sT[1]}, v{tB}'); e(f'  v_xor_b32 v{vMB[1]}, 64, v{vMB[0]}')
F = []; f_ = F.append
f_(f'  s_lshr_b32 s{sT[0]}, s{sW}, 2'); f_(f'  s_mul_i32 s{sT[0]}, s{sT[0]}, 6'); f_(f'  s_sub_u32 s{sT[0]}, 67, s{sT[0]}')
f_(f'  s_and_b32 s{sT[1]}, s{sW}, 3'); f_(f'  s_mul_i32 s{sT[1]}, s{sT[1]}, 3')
for b in range(3):
    f_(f'  s_add_u32 s{sT[2]}, s{sT[1]}, {b}')
    f_(f'  s_lshr_b32 s{sT[3]}, s{sT[2]}, 1'); f_(f'  s_mul_i32 s{sT[3]}, s{sT[3]}, 10')
    f_(f'  s_add_u32 s{sT[2]}, s{sT[2]}, s{sT[3]}')
    f_(f'  s_sub_u32 s{sT[2]}, s{sT[0]}, s{sT[2]}'); f_(f'  s_lshl_b32 s{sT[2]}, s{sT[2]}, 10')
    f_(f'  v_add_u32 v{vMW[b]}, s{sT[2]}, v{vL0}')
f_(f'  s_lshl_b32 s{sT[0]}, s{sKR}, 1'); f_(f'  s_xor_b32 s{sT[0]}, s{sT[0]}, s{sMR}')
f_(f'  s_mul_i32 s{sT[1]}, s{sPR}, 222'); f_(f'  s_add_i32 s{sXB}, s{sT[0]}, s{sT[1]}')
f_(f'  s_mul_i32 s{sXB}, s{sXB}, 86016')
f_(f'  s_mul_i32 s{sGS}, s{sPR}, {-2*344064}'); f_(f'  s_add_i32 s{sGS}, s{sGS}, 344064')
f_(f'  s_lshr_b32 s{sGmin}, s{sKR}, 31'); f_(f'  s_lshl_b32 s{sGmin}, s{sGmin}, 1')
f_(f'  s_lshl_b32 s{sM0X}, s{sW4}, 2')
f_(f'  s_add_u32 s{sM0X3}, s{sM0X}, 3072'); f_(f'  s_min_u32 s{sM0X3}, s{sM0X3}, {14*1024}')
f_(f'  s_mul_i32 s{sT[2]}, s{sPR}, 172032'); f_(f'  s_sub_u32 s{sT[3]}, 172032, s{sT[2]}')
f_(f'  v_mov_b32 v{tC}, s{sT[2]}'); f_(f'  v_mov_b32 v{tD}, s{sT[3]}')
for b in range(960): assert (b * 2731) >> 16 == b // 24
for j in range(4):
    d = vD[j]
    if j < 3:
        f_(f'  s_lshr_b32 s{sT[0]}, s{sM0X}, 4'); f_(f'  s_add_u32 s{sT[0]}, s{sT[0]}, {64*j}')
    else: f_(f'  s_lshr_b32 s{sT[0]}, s{sM0X3}, 4')
    f_(f'  v_add_u32 v{tA}, s{sT[0]}, v0')
    f_(f'  v_mul_u32_u24 v{d}, 2731, v{tA}'); f_(f'  v_lshrrev_b32 v{d}, 16, v{d}')
    f_(f'  v_cmp_le_u32 {MSK}, 20, v{d}')
    f_(f'  v_mul_u32_u24 v{tB}, 24, v{d}'); f_(f'  v_sub_u32 v{tA}, v{tA}, v{tB}')
    f_(f'  v_subrev_u32 v{tB}, 20, v{d}')
    f_(f'  v_cndmask_b32 v{d}, v{d}, v{tB}, {MSK}')
    f_(f'  v_bfe_u32 v{tB}, v{d}, 1, 3'); f_(f'  v_xor_b32 v{tA}, v{tA}, v{tB}')
    f_(f'  v_cndmask_b32 v{tB}, v{tC}, v{tD}, {MSK}')
    f_(f'  v_lshl_add_u32 v{tA}, v{tA}, 4, v{tB}')
    f_(f'  v_add_u32 v{d}, s{sKC}, v{d}'); f_(f'  v_max_i32 v{d}, 0, v{d}'); f_(f'  v_lshlrev_b32 v{d}, 1, v{d}')
    f_(f'  v_xor_b32 v{d}, s{sMC}, v{d}'); f_(f'  v_add_u32 v{d}, s{sAC}, v{d}')
    f_(f'  v_mul_u32_u24 v{d}, 384, v{d}'); f_(f'  v_add_u32 v{d}, v{d}, v{tA}')
f_(f'  s_add_u32 s{sM0X}, s{sM0X}, {XB}'); f_(f'  s_add_u32 s{sM0X3}, s{sM0X3}, {XB}')
for dst, add in ((sT[0], -2), (sA2, 0)):
    f_(f'  s_lshl_b32 s{dst}, s{sU}, 2')
    if add: f_(f'  s_add_i32 s{dst}, s{dst}, {add}'); f_(f'  s_max_i32 s{dst}, s{dst}, 0')
    f_(f'  s_add_i32 s{dst}, s{dst}, s{sTR}'); f_(f'  s_max_i32 s{dst}, s{dst}, 0'); f_(f'  s_sub_i32 s{dst}, s{dst}, s{sKR}')
f_(f'  s_sub_u32 s{sT[0]}, s{sA2}, s{sT[0]}'); f_(f'  s_lshr_b32 s{sT[0]}, s{sT[0]}, 1')
f_(f'  s_mul_i32 s{sD0}, s{sT[0]}, -8'); f_(f'  s_add_i32 s{sD0}, s{sD0}, 7')
f_(f'  s_add_i32 s{sA2}, s{sA2}, -1')
f_(f'  s_add_i32 s{sR0}, s{sA2}, s{sD0}'); f_(f'  s_mul_i32 s{sD0}, s{sD0}, {ROW}')
f_(f'  s_lshl_b32 s{sT[1]}, s{sH}, 2')
f_(f'  s_mul_i32 s{sT[0]}, s{sA2}, {ROW}'); f_(f'  s_add_i32 s{sT[0]}, s{sT[0]}, {XB}')
f_(f'  v_add_u32 v{tA}, s{sT[1]}, v{vn}')
f_(f'  v_bfe_u32 v{tB}, v{tA}, 1, 3'); f_(f'  v_xor_b32 v{tB}, v{tB}, v{vg}')
f_(f'  v_mul_u32_u24 v{tA}, 384, v{tA}'); f_(f'  v_lshl_add_u32 v{tA}, v{tB}, 4, v{tA}')
f_(f'  v_add_u32 v{vSe}, s{sT[0]}, v{tA}'); f_(f'  v_xor_b32 v{vSo}, 64, v{vSe}')
f_(f'  v_lshrrev_b32 v{tA}, 2, v{vn}'); f_(f'  v_lshl_add_u32 v{tA}, v{vg}, 2, v{tA}'); f_(f'  v_add_u32 v{tA}, s{sT[1]}, v{tA}')
f_(f'  v_bfe_u32 v{tB}, v{tA}, 1, 3')
f_(f'  v_and_b32 v{tC}, 2, v{vn}'); f_(f'  v_lshlrev_b32 v{tC}, 1, v{tC}'); f_(f'  v_xor_b32 v{tB}, v{tB}, v{tC}')
f_(f'  v_mul_u32_u24 v{tA}, 384, v{tA}'); f_(f'  v_lshl_add_u32 v{tA}, v{tB}, 4, v{tA}')
f_(f'  v_and_b32 v{tB}, 1, v{vn}'); f_(f'  v_lshl_add_u32 v{tA}, v{tB}, 3, v{tA}')
f_(f'  v_add_u32 v{vP[0]}, s{sT[0]}, v{tA}')
for k in range(1, 4): f_(f'  v_xor_b32 v{vP[k]}, {16*k}, v{vP[0]}')
f_(f'  v_lshl_add_u32 v{tA}, v{vg}, 2, s{sT[1]}'); f_(f'  v_sub_u32 v{vCT}, v{tA}, v{vCT}')
f_(f'  v_cndmask_b32 v{vCT}, v{vCT}, 64, s[{sINV[1]}:{sINV[1]+1}]')
f_(f'  v_add_u32 v{SB0[0]}, s{sD0}, v{vSe}'); f_(f'  v_add_u32 v{SB0[1]}, s{sD0}, v{vSo}')
for k in range(4): f_(f'  v_add_u32 v{PB0[k]}, s{sD0}, v{vP[k]}')
f_(f'  s_mov_b32 s{sSC}, {SCALE}')
o2 = [f'  v_lshrrev_b32 v{tD}, 4, v{vL0}', f'  v_lshrrev_b32 v{tA}, 3, v{tD}', f'  s_mul_i32 s{sT[4]}, s{sH}, 7', f'  s_add_i32 s{sT[4]}, s{sT[4]}, s{sKC}',
      f'  v_cmp_lt_u32 {MSK}, 6, v{tA}', f'  v_add_u32 v{tA}, s{sT[4]}, v{tA}', f'  v_max_i32 v{tB}, 0, v{tA}', f'  v_add3_u32 v{tA}, v{tA}, v{tB}, 6',
      f'  v_xor_b32 v{tA}, s{sMC}, v{tA}', f'  v_add_u32 v{tA}, s{sAC}, v{tA}', f'  v_mul_u32_u24 v{tA}, 384, v{tA}',
      f'  v_and_b32 v{tB}, 7, v{tD}', f'  v_xor_b32 v{tB}, v{tB}, v{vg}', f'  v_lshl_add_u32 v{tA}, v{tB}, 4, v{tA}', f'  v_mov_b32 v{tB}, 0x80000000',
      f'  v_cndmask_b32 v{QA[0]}, v{tA}, v{tB}, {MSK}', f'  v_xor_b32 v{QA[1]}, 64, v{QA[0]}',
      f'  s_lshl_b32 s{sT[0]}, s{sU}, 2', f'  s_add_i32 s{sT[0]}, s{sT[0]}, s{sTR}']
for k in range(4):
    d = sQR[k]
    o2 += [f'  s_lshl_b32 s{d}, s{sT[0]}, 1', f'  s_add_i32 s{d}, s{d}, {2*(k-2) + 6}', f'  s_xor_b32 s{d}, s{d}, s{sMR}', f'  s_add_i32 s{d}, s{d}, s{sAR}', f'  s_mul_i32 s{d}, s{d}, 86016']
o2 += [f'  s_mul_i32 s{sST}, s{sW4}, 12', f'  s_add_u32 s{sST}, s{sST}, {SO}',
       f'  v_bfe_u32 v{tA}, v{vn}, 1, 3', f'  v_xor_b32 v{tA}, v{tA}, v{vg}', f'  v_lshlrev_b32 v{tB}, 7, v{vn}', f'  v_lshl_add_u32 v{tB}, v{tA}, 4, v{tB}',
       f'  v_lshrrev_b32 v{tA}, 3, v{vn}', f'  v_lshl_add_u32 v{tA}, v{tA}, 11, v{tB}', f'  v_add_u32 v{vQR}, s{sST}, v{tA}']
F += role2_lines(o2, [f'  v_mov_b32 v{vNB}, 0', f'  v_mov_b32 v{vNA}, 0'])
NPRE = opt('npre', 999)
NB1 = opt('nb1', 40)
el(F[:NB1]); emit_pos('B'); el(F[NB1:NPRE]); F = F[NPRE:]

def dma_x(G):
    out = []
    if G < 2: out += [f'  s_max_u32 s{sVO}, s{sGmin}, {G}', f'  s_mul_i32 s{sVO}, s{sVO}, s{sGS}']
    else: out.append(f'  s_mul_i32 s{sVO}, s{sGS}, {G}')
    out.append(f'  s_add_i32 s{sVO}, s{sVO}, s{sXB}')
    for j in range(4):
        out.append(f'  s_add_u32 m0, s{sM0X}, {G*15360 + j*1024}' if j < 3 else f'  s_add_u32 m0, s{sM0X3}, {G*15360}')
        out.append('  s_nop 0')
        out.append(f'  buffer_load_dwordx4 v{vD[j]}, {RX}, s{sVO} offen{NT} lds')
    return out
def dma_xs(Gs): return sum((dma_x(G) for G in Gs), [])
MID = SACC[0] + 8
SPECIAL = [(0, 0), (0, 1), (0, 7), (1, 0), (1, 7)]
def bias_init(tmp):
    out = []; o = out.append
    ninf, tt = tmp, tmp+1
    o(f'  v_mov_b32 v{ninf}, 0xff800000')
    for i in range(4): o(f'  v_add_u32 v{tt+i}, {i}, v{vCT}')
    for i in range(4): o(f'  v_cmp_gt_u32 s[{sT[2+2*i]}:{sT[3+2*i]}], 7, v{tt+i}')
    for q, (t, jj) in enumerate(SPECIAL):
        slot = jj + 2*t
        if slot == 0: o(f'  v_sub_u32 v{tt+4+q}, s{sR0}, v{vRR[t]}')
        else:
            o(f'  s_add_i32 s{sT[0]}, s{sA2}, {slot-1}'); o(f'  v_sub_u32 v{tt+4+q}, s{sT[0]}, v{vRR[t]}')
    for i in range(4): o(f'  v_cndmask_b32 v{MID+i}, v{ninf}, 0, s[{sT[2+2*i]}:{sT[3+2*i]}]')
    for q in range(5): o(f'  v_cmp_gt_u32 s[{sT[2*q]}:{sT[2*q+1]}], 7, v{tt+4+q}')
    for q, (t, jj) in enumerate(SPECIAL):
        for i in range(4): o(f'  v_cndmask_b32 v{SACC[t]+4*jj+i}, v{ninf}, v{MID+i}, s[{sT[2*q]}:{sT[2*q+1]}]')
    return out

tsp()
emit_pos('C')
tsp()
vLN = 107
def n_loads():
    e(f'  v_lshrrev_b32 v{vLN}, 4, v{vL0}')
    e(f'  s_cmp_lt_u32 s2, 72'); e('  s_cbranch_scc0 MK_np1')
    e(f'  s_mul_hi_u32 s{sT[8]}, s2, 0x15555556'); e(f'  s_lshl_b32 s{sT[8]}, s{sT[8]}, 6')
    e(f'  s_mul_i32 s{sT[9]}, s{sW}, {16*384}'); e(f'  s_add_u32 s{sVO}, s{sT[8]}, s{sT[9]}')
    e(f'  v_lshrrev_b32 v{MPK}, 2, v{vLN}'); e(f'  v_mul_u32_u24 v{MPK}, 384, v{MPK}'); e(f'  v_and_b32 v{MPK+1}, 3, v{vLN}'); e(f'  v_lshl_add_u32 v{MPK}, v{MPK+1}, 4, v{MPK}')
    e(f'  s_add_u32 m0, s{sWL}, {WOL}'); e('  s_nop 0')
    e(f'  buffer_load_dwordx4 v{MPK}, {RWO}, s{sVO} offen lds')
    e(f'  s_mul_i32 s{sT[9]}, s{sW4}, 6'); e(f'  s_add_u32 s{sVO}, s{sT[8]}, s{sT[9]}')
    e(f'  s_add_u32 m0, s{sW4}, {WOL + 8192}'); e(f'  s_add_u32 s{sVO}, s{sVO}, {8*16*384}')
    e(f'  buffer_load_dwordx4 v{MPK}, {RWO}, s{sVO} offen lds')
    e('MK_np1:')
    e(f'  s_sub_u32 s{sPROD}, s2, 72'); e(f'  s_lshr_b32 s{sPROD}, s{sPROD}, 31')
    e(f'  s_lshr_b32 s{sPROD}, s{sPROD}, s{sU}')
    e(f'  s_cmp_eq_u32 s{sPROD}, 0'); e('  s_cbranch_scc1 MK_np3')
    e(f'  s_mul_hi_u32 s{sT[8]}, s2, 0x15555556'); e(f'  s_mul_i32 s{sT[9]}, s{sT[8]}, 12'); e(f'  s_sub_u32 s{sT[9]}, s2, s{sT[9]}')
    e(f'  s_and_b32 s{sT[5]}, s{sT[9]}, 1'); e(f'  s_lshr_b32 s{sT[9]}, s{sT[9]}, 1')
    e(f'  v_lshrrev_b32 v{MPK+2}, 2, v{vn}'); e(f'  v_and_b32 v{MPK+1}, 3, v{vn}')
    e(f'  v_lshl_add_u32 v{vNB}, v{vg}, 3, v{MPK+2}'); e(f'  v_lshlrev_b32 v{vNB}, 6, v{vNB}'); e(f'  v_lshl_add_u32 v{vNB}, v{MPK+1}, 4, v{vNB}')
    e(f'  s_lshl_b32 s{sT[5]}, s{sT[5]}, 3'); e(f'  s_add_u32 s{sT[5]}, s{sT[5]}, {WOL}'); e(f'  v_add_u32 v{vNB}, s{sT[5]}, v{vNB}')
    e(f'  s_lshr_b32 s{sT[8]}, s{sT[9]}, 1'); e(f'  s_lshl_b32 s{sT[8]}, s{sT[8]}, 6')
    e(f'  s_and_b32 s{sT[9]}, s{sT[9]}, 1'); e(f'  s_lshl_b32 s{sT[9]}, s{sT[9]}, 4'); e(f'  s_add_u32 s{sT[8]}, s{sT[8]}, s{sT[9]}')
    e(f'  v_lshrrev_b32 v{MPK}, 1, v{MPK+2}'); e(f'  v_lshlrev_b32 v{MPK}, 5, v{MPK}')
    e(f'  v_and_b32 v{MPK+2}, 1, v{MPK+2}'); e(f'  v_lshl_add_u32 v{MPK}, v{MPK+2}, 2, v{MPK}')
    e(f'  v_add3_u32 v{MPK}, v{MPK}, v{MPK+1}, s{sT[8]}')
    e(f'  v_mul_u32_u24 v{MPK}, 1152, v{MPK}'); e(f'  v_lshl_add_u32 v{vNA}, v{vg}, 4, v{MPK}')
    e(f'  s_mul_i32 s{sVO}, s{sH}, 9216')
    for kk in range(6):
        e(f'  buffer_load_dwordx4 {V(136+4*kk)}, v{vNA}, {RW}, s{sVO} offen offset:{768+64*kk}')
    e('MK_np3:')
def m_reads(kk):
    rb = 184 + 36*(kk % 2); co = (kk // 2) * 49152
    lo = co if co < 49152*2 else 0
    return ([f'  ds_read_b128 {V(rb+24+4*b)}, v{vMB[kk % 2]} offset:{2048*b}' for b in range(3)] +
            [f'  ds_read_b128 {V(rb+4*a)}, v{vMA[kk % 2]} offset:{2048*a}' for a in range(6)])
def chunk_sync(c, lg):
    wo_, wy_ = after('O', f'W{c}'), after('Y', f'W{c}')
    x = ' lgkmcnt(0)' if lg else ''
    def w(n, prod):
        if c == 2 and prod and ISS['Y'].count('b'):
            return [f'  s_cmp_lg_u32 s{sU}, 0', '  s_cbranch_scc1 MK_c2', f'  s_waitcnt vmcnt({n - ISS["Y"].count("b")})', 'MK_c2:', f'  s_waitcnt vmcnt({n}){x}']
        if c != 1 or n == 63: return [f'  s_waitcnt vmcnt({n}){x}']
        lbl[0] += 1; k = lbl[0]; o = []
        if prod: o += [f'  s_cmp_lg_u32 s{sPROD}, 0', f'  s_cbranch_scc1 CA{k}']
        o += ['  s_cmp_lt_u32 s2, 72', f'  s_cbranch_scc1 CB{k}', f'  s_waitcnt vmcnt({n})', f'CB{k}:']
        if prod: o += [f'  s_waitcnt vmcnt({n+2})', f'CA{k}:', f'  s_waitcnt vmcnt({n+8}){x}']
        else: o += [f'  s_waitcnt vmcnt({n+2}){x}']
        return o
    if c == 2:
        wo_, wy_ = min(wo_, len(ISS['O']) - N_AT['O']), min(wy_, len(ISS['Y']) - N_AT['Y'])
    assert c != 1 or 'b' not in ISS['Y']
    if wo_ == wy_ and c != 2: el(w(wo_, True))
    else: el(role2_lines(w(wo_, False), w(wy_, True)))
    e('  s_barrier')
    tsp()
N_AT = {}
FPG = opt('fpg', 4)
chunk_sync(0, False)
el(m_reads(0))
SYA = opt('sya', 0)
for kk in range(4):
    odd = kk % 2 == 1
    extra = sched_items(str(kk)); ne = len(extra); cnt = 0
    rb = 184 + 36*(kk % 2)
    nx = m_reads(kk+1)
    issued = 0
    for a in range(6):
        if odd and a == SYA:
            chunk_sync(kk // 2 + 1, True)
            for r in vMA + vMB: e(f'  v_subrev_u32 v{r}, 49152, v{r}')
        if not (odd and a >= SYA): e(f'  s_waitcnt lgkmcnt({5 - a + issued})')
        for b in range(3):
            acc = MACC + 12*a + 4*b
            e(mfma(acc, rb+4*a, rb+24+4*b, None if kk == 0 else acc))
            slots = FPG
            if odd:
                for _ in range(1 if SYA <= 3 else 2):
                    if nx and a >= SYA and (b < 2 or SYA >= 2): e(nx.pop(0)); slots -= 1
            elif nx and b < 2 and a >= 1:
                e(nx.pop(0)); issued += 1; slots -= 1
            cnt += 1
            while extra and (ne - len(extra)) * 18 < cnt * ne: emit_item(extra.pop(0)); slots = 0
            el(F[:max(slots, 0)]); F = F[max(slots, 0):]
    el(nx)
    assert not extra
    if kk == 0: n_loads(); N_AT.update(O=len(ISS['O']), Y=len(ISS['Y']))
print('leftover F', len(F), file=sys.stderr); el(F); F = []
assert ISS['Y'].count('q') <= 6
e(f'  s_cmp_eq_u32 s{sPROD}, 0'); e('  s_cbranch_scc1 MK_np2')
e('  s_waitcnt lgkmcnt(0)')
for k2 in range(6):
    for hf in range(2):
        e(f'  ds_read_b64_tr_b16 {V(MPK+4*k2+2*hf, 2)}, v{vNB} offset:{(32*k2 + 4*hf)*64}')
e('  s_setprio 3'); e('  s_waitcnt lgkmcnt(0)')
for kk in range(6):
    e(mfma(128, 136+4*kk, MPK+4*kk, None if kk == 0 else 128))
e(f'  s_lshl_b32 s{sVO}, s2, 10'); e(f'  s_lshl_b32 s{sT[8]}, s{sH}, 3'); e(f'  s_add_u32 s{sVO}, s{sVO}, s{sT[8]}')
e('  s_nop 5')
for r in range(2): e(f'  v_cvt_pk_bf16_f32 v{132+r}, v{128+2*r}, v{129+2*r}')
e(f'  buffer_store_dwordx2 v[132:133], v{vL0}, {RWS}, s{sVO} offen sc1')
NY_AT_STORE = len(ISS['Y'])
e('  s_setprio 0')
e('MK_np2:')
e(f'  s_cmp_lg_u32 s{sU}, 0'); e('  s_cbranch_scc1 MK_z1')
for r in range(24): e(f'  v_mov_b32 v{XQ+r}, 0')
e('MK_z1:')
r5 = m_reads(5)
el(r5[:5]); late = r5[5:]
extra = sched_items('4'); ne = len(extra); cnt = 0
pend = []; nw = 0; wq = []
BWF = opt('bwf', 3); assert 2 <= BWF <= 3
for fi in range(9):
    a3, b = fi // 3, fi % 3
    if fi == 0: e('  s_waitcnt lgkmcnt(5)')
    if fi == BWF: e('  s_waitcnt lgkmcnt(0)'); e('  s_barrier')
    for kk in (4, 5):
        rb = 184 + 36*(kk % 2)
        if fi == 0 and kk == 5: e('  s_waitcnt lgkmcnt(2)')
        for a in (2*a3, 2*a3+1):
            acc = MACC + 12*a + 4*b
            e(mfma(acc, rb+4*a, rb+24+4*b, acc)); cnt += 1
            if late: e(late.pop(0))
            k = 0
            while wq and fi >= BWF and k < 1: e(wq.pop(0)); k += 1
            while pend and pend[0][0] <= cnt and k < 2:
                l = pend.pop(0)[1]
                if 'ds_write' in l and (fi < BWF or wq): wq.append(l)
                else: e(l); k += 1
            while extra and (ne - len(extra)) * 36 < cnt * ne: emit_item(extra.pop(0))
    o = MPK + 4*(fi % 6)
    for a in range(2):
        acc = MACC + 12*(2*a3 + a) + 4*b
        for i in range(2): pend.append((cnt + 5, f'  v_cvt_pk_bf16_f32 v{o+2*a+i}, v{acc+2*i}, v{acc+2*i+1}'))
    pend.append((cnt + 5, f'  ds_write_b128 v{vMW[b]}, {V(o)} offset:{2048*(2-a3)}'))
assert not extra
tsp()
assert not wq
for i, (_, l) in enumerate(pend):
    if len(pend) - i == 5: e('  s_nop 3')
    e(l)
e('  s_waitcnt lgkmcnt(0)')
e('  s_barrier')
tsp()
NXY = opt('nxy', 2)
XH = (9, 8, 7, 6, 5)
assert ('Y', 'Z') not in PLAN and ('Y', '4') not in PLAN
y = [f'  s_cmp_lg_u32 s{sPROD}, 0', '  s_cbranch_scc1 MK_np4', '  s_waitcnt vmcnt(0)', 'MK_np4:', '  s_waitcnt vmcnt(1)', '  s_setprio 1']
o_ = sum((ls for _, ls in PLAN.get(('O', 'Z'), [])), []) + dma_xs((9,)) + ['  s_waitcnt vmcnt(4) lgkmcnt(0)'] + q_reads() + ['  s_waitcnt lgkmcnt(0)', '  s_barrier'] + dma_xs(XH[1:NXY])
PRE_P1 = (o_, y)
PUB = [f'  s_cmp_eq_u32 s{sPROD}, 0', '  s_cbranch_scc1 MK_np5', '  s_waitcnt vmcnt(0)', '  v_mov_b32 v23, 1', '  s_mov_b64 exec, 1',
       *([f'  buffer_atomic_add v23, off, {RDB}, 0 sc1'] if 'atom' in OPT else
         [f'  s_lshl_b32 s{sVO}, s{sH}, 7', f'  buffer_atomic_add v23, off, {RDB}, s{sVO} sc1']), '  s_mov_b64 exec, -1', '  s_nop 3', 'MK_np5:']

stream = []; frags = []
def add_frag(reads, gate): frags.append(dict(reads=reads, gate=gate, uses=0)); return len(frags) - 1
def use(fid, fn): frags[fid]['uses'] += 1; stream.append(('mfma', fn, fid))
def mf(text): stream.append(('mfma', (lambda buf: text), None))
def raw(*lines):
    for l in lines: stream.append(('raw', l))
def fill(*lines):
    for l in lines: stream.append(('fill', l))
def flush(): stream.append(('flush',))
def need(fid): stream.append(('need', fid))
def gate(name): stream.append(('gate', name))
def role(r, lines): stream.append(('cond', role_lines(r, lines)))
def role2(lo, ly): stream.append(('cond', role2_lines(lo, ly)))
BAR = '  s_barrier'
def m_read(f):
    addr = (71-f)*1024
    if addr < HALF: return [f'  ds_read_b128 {{d4}}, v{vL0} offset:{addr}']
    return [f'  ds_read_b128 {{d4}}, v{vL1} offset:{addr-HALF}']
def n_addr(f): return NHI + 30720 + 1024*f if f < 30 else ((f-30)*1024 if f < 40 else NHI + (f-40)*1024)
def n_read(f):
    if f >= 70: return []
    a = n_addr(f)
    return [f'  ds_read_b128 {{d4}}, v{vL1} offset:{a-NHI}' if a >= NHI else f'  ds_read_b128 {{d4}}, v{vL0} offset:{a}']
def dma_n(a, b):
    out = []
    for f0 in range(a, b, 4):
        lim = (b - 1 - f0) * 1024; src = sW4
        if lim < 3072: out.append(f'  s_min_u32 s{sT[5]}, s{sW4}, {lim}'); src = sT[5]
        out += [f'  s_add_u32 m0, s{src}, {n_addr(f0)}', f'  s_add_u32 s{sVO}, s{src}, {f0*1024}',
                f'  buffer_load_dwordx4 v{vL0}, {RWS}, s{sVO} offen{NSC} lds']
    return out
def proj(B, rd, gate_of, post, hooks):
    for s in range(6):
        for ks in range(6):
            for hh in range(2):
                f = 12*s + 2*ks + hh
                fid = add_frag(rd(f), gate_of(f))
                if f in hooks: hooks[f](fid)
                for t in range(2):
                    acc = ACC + 16*(s % 2) + 8*t + 4*hh
                    fx = None if rd(f) else NREG + 4*(f-70)
                    use(fid, (lambda buf, acc=acc, t=t, ks=ks, fx=fx: mfma(acc, buf if fx is None else fx, B(t, ks), None if ks == 0 else acc)))
        flush()
        fill(*post(s))

gate('G0')
role2(PRE_P1[0], PRE_P1[1])
BF = [] if 'nobf' in OPT else bias_init(SACC[1] + 8)
fill(*BF[:30])
def p1_post(s):
    out = []
    for t in (1, 0):
        if t == 0 and s == 5: out.append('#QP5a')
        acc = ACC + 16*(s % 2) + 8*t
        for r in range(8): out.append(f'  v_mul_f32 v{acc+r}, s{sSC}, v{acc+r}')
        for r in range(4): out.append(f'  v_cvt_pk_bf16_f32 v{QP+24*t+4*s+r}, v{acc+2*r}, v{acc+2*r+1}')
    return out
proj(lambda t, ks: XQ+24*t+4*ks, m_read, lambda f: 'G0', p1_post,
     {13: lambda fid: fill(*BF[30:35]), 25: lambda fid: fill(*BF[35:39]), 37: lambda fid: fill(*BF[39:44]), 49: lambda fid: fill(*BF[44:]),
      opt('yb1', 56): lambda fid: role('Y', [BAR]),
      31: lambda fid: (need(fid), role2([BAR], PUB)),
      61: lambda fid: (need(fid), role('O', ['  s_waitcnt vmcnt(0)', BAR]))})
if 'p1flush' in OPT: flush()
stream.append(('tag', 'QP5'))
fill(f'  v_add_u32 v{vL1}, {NHI}, v{vL0}')
for r in range(4): fill(f'  v_mov_b32 v{ONES+r}, 0x3f803f80')
POLL = f'  buffer_load_dword v13, off, {RDB}, 0 sc1' if 'atom' in OPT else f'  buffer_load_dword v13, v14, {RDB}, 0 offen sc1'
PSET = [] if 'atom' in OPT else [f'  v_and_b32 v14, {128 if NCT == 2 else 192}, v{vL0}']
PMODE = opt('pmode', 1)
role('Y', ['  s_setprio 0'] + dma_xs(XH[NXY:]) + [BAR] + dma_xs((4, 3, 2)) + (bias_init(XQ) if 'nobf' in OPT else []) +
     ['  s_waitcnt vmcnt(12)', BAR] + dma_xs((1, 0)) + ['  s_waitcnt vmcnt(8)', BAR])
for _ in range(opt('idle', 0)): raw('  s_sleep 8')
gate('S')
etn = [0]
def sm_fill(t, jj):
    tmp = ET + 4*(etn[0] % 5); etn[0] += 1
    acc = SACC[t] + 4*jj
    for i in range(4): fill(f'  v_exp_f32 v{tmp+i}, v{acc+i}')
    for i in range(2): fill(f'  v_cvt_pk_bf16_f32 v{PREG[t]+2*jj+i}, v{tmp+2*i}, v{tmp+2*i+1}')
    stream.append(('tag', f'P{t}_{jj}'))
def sum_mfmas(t):
    stream.append(('flushto', f'P{t}_0'))
    for kt in (3, 2, 1, 0): mf(mfma(SUM[t], ONES, PREG[t]+4*kt, None if kt == 3 else SUM[t]))
LO, HI = (127-30) << 23, (127+30) << 23
def check(t):
    raw(f'  v_subrev_u32 v{RI[1]}, {LO}, v{SUM[t]}')
    raw(f'  s_mov_b32 s{sT[6]}, {HI-LO}')
    raw(f'  v_cmp_gt_u32 s[{sT[2]}:{sT[3]}], s{sT[6]}, v{RI[1]}')
    raw(f'  s_or_b64 s[{sT[2]}:{sT[3]}], s[{sT[2]}:{sT[3]}], s[{sINV[t]}:{sINV[t]+1}]')
    raw(f'  s_cmp_eq_u64 s[{sT[2]}:{sT[3]}], -1')
    raw(f'  s_cbranch_scc0 FB{t}')
    raw(f'FBR{t}:')
if 'atom' in OPT:
    pollw = [f'  s_mov_b32 s{sT[7]}, 0x40000', 'NPOLL:', '  s_waitcnt vmcnt(0)', f'  v_readfirstlane_b32 s{sT[0]}, v13', f'  s_sub_u32 s{sT[7]}, s{sT[7]}, 1',
             f'  s_cselect_b32 s{sT[0]}, 144, s{sT[0]}', f'  s_cmp_ge_u32 s{sT[0]}, 144', '  s_cbranch_scc1 NPOLLD', POLL, '  s_branch NPOLL', 'NPOLLD:']
else:
    pollw = [f'  s_mov_b32 s{sT[7]}, 0x40000', f'  s_mov_b32 s{sT[0]}, {144 // NCT}', 'NPOLL:', '  s_waitcnt vmcnt(0)', f'  v_cmp_le_u32 s[{sT[2]}:{sT[3]}], s{sT[0]}, v13',
             f'  s_sub_u32 s{sT[7]}, s{sT[7]}, 1', '  s_cbranch_scc1 NPOLLD', f'  s_cmp_eq_u64 s[{sT[2]}:{sT[3]}], -1', '  s_cbranch_scc1 NPOLLD', POLL, '  s_branch NPOLL', 'NPOLLD:']
ODMA = 'ydma' not in OPT
if not ODMA: pollw = [POLL.replace(' sc1', '')] + pollw
YP = {opt('y5a', 7): [BAR] + pollw + dma_n(0, 30) + dma_n(30, 40),
      opt('y5b', 10): ['  s_waitcnt vmcnt(0)', BAR] + dma_n(40, 70),
      opt('y6', 12): ['  s_waitcnt vmcnt(0)', BAR]}
assert len(YP) == 3
if ODMA: YP = {k: [BAR] for k in YP}
if 'yhi' in OPT: YP[opt('yhi', 0)] = YP.get(opt('yhi', 0), []) + ['  s_setprio 1']
O4B = opt('o4b', 6)
for k, slot in enumerate(range(9, -1, -1)):
    if k == 2:
        role2([BAR], ['  s_waitcnt vmcnt(0)', BAR]); gate('S2')
    if k == O4B: role('O', [BAR] + (PSET + [POLL.replace(' sc1', '')] if ODMA else []))
    if k in YP: role('Y', YP[k])
    for s in range(6):
        if slot == 0 and s == 3: sum_mfmas(1)
        if slot == 9 and s == 5: stream.append(('flushto', 'QP5a'))
        if slot == 7 and s == 5: stream.append(('flushto', 'QP5'))
        if slot == 0: base, off = SB0[s % 2], 128*(s//2)
        else: base, off = (vSe, vSo)[s % 2], (slot-1)*ROW + 128*(s//2)
        fid = add_frag([f'  ds_read_b128 {{d4}}, v{base} offset:{off}'], 'S' if slot >= 6 else 'S2')
        for t in (1, 0):
            jj = slot - 2*t
            if 0 <= jj < 8:
                acc = SACC[t] + 4*jj
                cin = MID if s == 0 and (t, jj) not in SPECIAL else acc
                use(fid, (lambda buf, acc=acc, t=t, s=s, cin=cin: mfma(acc, buf, QP+24*t+4*s, cin)))
    for t in (1, 0):
        jj = slot - 2*t
        if 0 <= jj < 8: sm_fill(t, jj)
check(1)
YC1 = 0
def ycvt(t, ks, _=0):
    return [f'  v_cvt_pk_bf16_f32 v{YB[t][ks]+2*hf+i}, v{YACC[t][2*ks+hf]+2*i}, v{YACC[t][2*ks+hf]+2*i+1}' for hf in range(2) for i in range(2)]
lastf = None
for k, st in enumerate(range(4, -1, -1)):
    if k == 1:
        sum_mfmas(0); check(0)
        for t in range(2): fill(f'  v_rcp_f32 v{RI[t]}, v{SUM[t]}')
    if k == 2: need(lastf); role('O', [BAR] + (pollw + dma_n(30, 40) + dma_n(0, 30) if ODMA else []))
    if 10 + k in YP: role('Y', YP[10 + k])
    for ct in range(12):
        tl = [t for t in (1, 0) if 0 <= st - t < 4]
        b_, e_ = ct // 4, ct % 4
        rd = []
        for hf in range(2):
            slot = 2*st + hf
            if slot == 0: base, off = PB0[e_], 128*b_
            else: base, off = vP[e_], (slot-1)*ROW + 128*b_
            rd.append(f'  ds_read_b64_tr_b16 {{d{"lo" if hf == 0 else "hi"}}}, v{base} offset:{off}')
        fid = add_frag(rd, 'S2'); lastf = fid
        if k == 4 and ct == opt('o5b', 6):
            stream.append(('needall', fid + 11 - ct)); role('O', ['  s_waitcnt vmcnt(0)', BAR] + dma_n(40, 70) if ODMA else [BAR]); gate('P4a')
        for t in tl:
            acc = YACC[t][ct]
            use(fid, (lambda buf, acc=acc, t=t, st=st: mfma(acc, buf, PREG[t]+4*(st-t), None if st - t == 3 else acc)))
        if k == 3 and ct % 2 and ct < 12 - YC1: fill(*ycvt(1, ct // 2, 1))
        if k == 4 and ct % 2: fill(*ycvt(0, ct // 2, 0)); stream.append(('tag', f'YB{ct // 2}'))
    if k == 3:
        for ks in range(6 - YC1 // 2, 6): fill(*ycvt(1, ks, 1))
NLD = [f'  s_mov_b32 s{sVO}, {70*1024}'] + [f'  buffer_load_dwordx4 {V(NREG+4*i)}, v{vL0}, {RWS}, s{sVO} offen offset:{1024*i} sc1' for i in range(2)]
if 15 in YP: role('Y', YP[15])
def p4_post(s):
    out = []
    for t in range(2):
        acc = ACC + 16*(s % 2) + 8*t
        o = OUTR + 8*(s % 2) + 4*t
        for r in range(8): out.append(f'  v_mul_f32 v{acc+r}, v{acc+r}, v{RI[t]}')
        for r in range(4): out.append(f'  v_cvt_pk_bf16_f32 v{o+r}, v{acc+2*r}, v{acc+2*r+1}')
        if 'pairst' in OPT:
            if s % 2:
                out.append(f'  buffer_store_dwordx4 {V(o-8)}, v{vO[t]}, {RO}, 0 offen offset:{64*s-64}{NTO}')
                out.append(f'  buffer_store_dwordx4 {V(o)}, v{vO[t]}, {RO}, 0 offen offset:{64*s}{NTO}')
        else: out.append(f"  buffer_store_dwordx4 {V(o)}, v{vO[t]}, {RO}, 0 offen offset:{64*s}{NTO if s < opt('stn', 6) else ' ' + OPT.get('st2', '')}")
    return out
proj(lambda t, ks: YB[t][ks], n_read, lambda f: 'P4a' if f < 40 else 'P4b', p4_post,
     {**{2*ks: (lambda fid, ks=ks: stream.append(('flushto', f'YB{ks}'))) for ks in range(6)},
      12: lambda fid: raw(*NLD),
      opt('o6', 24): lambda fid: (role('O', (['  s_waitcnt vmcnt(%d)' % (2 if 'pairst' in OPT else 4)] if ODMA else []) + [BAR]), gate('P4b')),
      60: lambda fid: raw('  s_waitcnt vmcnt(8)'),
      opt('ylo', 1): lambda fid: raw('  s_setprio 0') if 'yhi' in OPT else None})
flush()

def regs_of(tok):
    m = re.fullmatch(r'v\[(\d+):(\d+)\]', tok)
    if m: return list(range(int(m.group(1)), int(m.group(2)) + 1))
    m = re.fullmatch(r'-?v(\d+)', tok)
    return [int(m.group(1))] if m else []
def parse(line):
    p = line.strip().split(None, 1)
    op = p[0]; args = [a.strip().split()[0] for a in p[1].split(',')] if len(p) > 1 else []
    return op, args
clock = [0]
mf_w = {}; va_w = {}; tr_w = {}; mf_c = {}; sg_w = {}
def hazard(line):
    op, args = parse(line); need_ = 0
    allr = [r for a in args for r in regs_of(a)]
    if op.startswith('v_mfma'):
        for r in [r for a in args[1:] for r in regs_of(a)]:
            if r in va_w: need_ = max(need_, 2 - (clock[0] - va_w[r] - 1))
        for r in regs_of(args[1]) + regs_of(args[2]):
            if r in mf_w: need_ = max(need_, 8 - (clock[0] - mf_w[r] - 1))
    elif op.startswith('v_') or op.startswith('buffer_') or op.startswith('ds_'):
        for r in allr:
            if r in mf_w: need_ = max(need_, 8 - (clock[0] - mf_w[r] - 1))
        if op.startswith('v_'):
            for r in regs_of(args[0]):
                if r in mf_c: need_ = max(need_, 3 - (clock[0] - mf_c[r] - 1))
            for r in [r for a in args[1:] for r in regs_of(a)]:
                if r in tr_w: need_ = max(need_, 1 - (clock[0] - tr_w[r] - 1))
            for a in args[1:]:
                if a in sg_w: need_ = max(need_, 2 - (clock[0] - sg_w[a] - 1))
    return need_
def emit(line):
    if line.endswith(':'):
        e(line); return
    n = hazard(line)
    if n > 0:
        e(f'  s_nop {n-1}'); clock[0] += n
    op, args = parse(line)
    e(line)
    if op.startswith('v_mfma'):
        for r in regs_of(args[0]): mf_w[r] = clock[0]
        for r in regs_of(args[3]): mf_c[r] = clock[0]
    elif op.startswith('v_'):
        if args[0].startswith('s'): sg_w[args[0]] = clock[0]
        for r in regs_of(args[0]):
            va_w[r] = clock[0]; tr_w.pop(r, None)
            if op in ('v_exp_f32', 'v_rcp_f32'): tr_w[r] = clock[0]
    if op == 's_nop': clock[0] += int(args[0])
    clock[0] += 1

gates = set(); nxt = 0; done_uses = [0]*len(frags)
ops = []; landed = -1; half = [None]
fq = []
def buf_of(f): return ABUF + 4*(f % NB)
def issue_one():
    global nxt
    while True:
        if half[0] is not None:
            emit(half[0]); ops.append(nxt); half[0] = None; nxt += 1; return True
        if nxt >= len(frags): return False
        fr = frags[nxt]
        if fr['gate'] not in gates: return False
        if nxt >= NB and done_uses[nxt-NB] < frags[nxt-NB]['uses']: return False
        if not fr['reads']:
            nxt += 1; continue
        if len(ops) + len(fr['reads']) > (13 if TSM else 15): return False
        b = buf_of(nxt)
        rs = [r.format(d4=V(b), dlo=V(b, 2), dhi=V(b+2, 2)) for r in fr['reads']]
        emit(rs[0]); ops.append(nxt)
        if len(rs) == 2: half[0] = rs[1]
        else: nxt += 1
        return True
def wait_for(f, pair=True):
    global landed, ops
    if f is None or f <= landed: return
    while nxt <= f:
        n0 = nxt
        if not issue_one() and nxt == n0: raise RuntimeError(f'cannot issue frag {nxt}')
    if any(o <= f for o in ops):
        if pair and f + 1 < nxt and sum(1 for o in ops if o > f + 1) >= PAIRMIN: f = f + 1
        n = sum(1 for o in ops if o > f)
        emit(f'  s_waitcnt lgkmcnt({n})')
        ops = [o for o in ops if o > f]
    landed = f
def sregs(tok):
    m = re.fullmatch(r's\[(\d+):(\d+)\]', tok)
    if m: return [-1 - r for r in range(int(m.group(1)), int(m.group(2)) + 1)]
    m = re.fullmatch(r's(\d+)', tok)
    return [-1 - int(m.group(1))] if m else []
def wr(l):
    op, args = parse(l)
    return set() if op.startswith('buffer_') else set(regs_of(args[0]) + sregs(args[0]))
def rdset(l):
    op, args = parse(l)
    return set(r for a in (args if op.startswith('buffer_') else args[1:]) for r in regs_of(a) + sregs(a))
def pick(pred):
    W, R = set(), set()
    for i, l in enumerate(fq[:WINDOW]):
        if l.startswith('#'): continue
        if pred(l) and not (rdset(l) & W) and not (wr(l) & (W | R)) and hazard(l) <= 0: return i
        W |= wr(l); R |= rdset(l)
    return None
def is2(l): return 'v_exp' in l or 'v_rcp' in l
def isst(l): return 'buffer_store' in l
def gap(si, ent):
    while fq and fq[0].startswith('#'): fq.pop(0)
    cur = ent[2] if ent[2] is not None else landed
    nf = STREAM_NEXT.get(si)
    wnext = nf is not None and nf > landed
    ahead = nxt - cur
    i = pick(isst)
    if i is not None and half[0] is None and ahead >= MINAHEAD:
        emit(fq.pop(i))
        i = pick(lambda l: not is2(l) and not isst(l))
        if i is not None: emit(fq.pop(i))
        return
    slots = 1 if wnext else 2
    nexp = sum(1 for l in fq if is2(l))
    if not wnext and half[0] is None and ahead >= EXPAHEAD:
        i = pick(is2)
        if i is not None:
            emit(fq.pop(i)); return
    if issue_one(): slots -= 1
    if (half[0] is not None or slots > 0 and (nexp or not fq or ahead < 6)) and issue_one(): slots -= 1
    if nexp > BACKLOG: slots = max(slots, 1 if pick(lambda l: not is2(l) and not isst(l)) is not None else 2)
    while slots > 0:
        i = pick(is2) if slots >= 2 else None
        if i is not None:
            emit(fq.pop(i)); slots -= 2; continue
        i = pick(lambda l: not is2(l) and not isst(l))
        if i is None: break
        emit(fq.pop(i)); slots -= 1
WINDOW = opt('window', 16); MINAHEAD = opt('minahead', 5); EXPAHEAD = opt('expahead', 7)
nmf = [0]
BACKLOG = opt('backlog', 6); PAIRMIN = opt('pairmin', 5)
STREAM_NEXT = {}
mi = [i for i, x in enumerate(stream) if x[0] == 'mfma']
for a_, b_ in zip(mi, mi[1:]): STREAM_NEXT[a_] = stream[b_][2]
for si, ent in enumerate(stream):
    k = ent[0]
    if k == 'raw': emit(ent[1])
    elif k == 'fill': fq.append(ent[1])
    elif k == 'flush':
        for l in fq:
            if not l.startswith('#'): emit(l)
        fq = []
    elif k == 'tag': fq.append('#' + ent[1])
    elif k == 'flushto':
        if '#' + ent[1] in fq:
            i = fq.index('#' + ent[1])
            for l in fq[:i]:
                if not l.startswith('#'): emit(l)
            fq = fq[i+1:]
    elif k == 'gate':
        gates.add(ent[1])
        while issue_one(): pass
    elif k in ('need', 'needall'): wait_for(ent[1])
    elif k == 'cond':
        emit(ent[1][0]); el(ent[1][1:])
    elif k == 'mfma':
        wait_for(ent[2])
        if nmf[0] in TSM: e(ts_line())
        nmf[0] += 1
        emit(ent[1](buf_of(ent[2]) if ent[2] is not None else None))
        if ent[2] is not None: done_uses[ent[2]] += 1
        gap(si, ent)
if TS:
    e('  s_waitcnt vmcnt(0)')
    e(ts_line()); e('  s_memrealtime s[98:99]')
    e('  s_waitcnt lgkmcnt(0)')
    e(f'  s_lshl_b32 s{sT[0]}, s2, 3'); e(f'  s_add_u32 s{sT[0]}, s{sT[0]}, s{sW}'); e(f'  s_lshl_b32 s{sT[0]}, s{sT[0]}, 6')
    e(f'  s_add_u32 s{sT[0]}, s{sT[0]}, 0x100000')
    e('  v_mov_b32 v1, 0')
    for i in range(nts[0]):
        if i == 0: e(f'  v_mov_b32 v2, s{sTS}')
        else:
            e(f'  s_sub_u32 s{sT[1]}, s{sTS+2*i}, s{sTS}'); e(f'  v_mov_b32 v2, s{sT[1]}')
        e(f'  buffer_store_dword v2, v1, s[20:23], s{sT[0]} offen offset:{4*i}')
    e('  v_mov_b32 v2, s96'); e('  v_mov_b32 v3, s98')
    e(f'  buffer_store_dwordx2 v[2:3], v1, s[20:23], s{sT[0]} offen offset:56')
    print('timestamps', nts[0]); assert nts[0] <= 12
e('MK_done:')
e('  s_endpgm')
for t in range(2):
    R = SACC[t]; vm, vt = RI[0], RI[1]
    e(f'FB{t}:')
    e('  s_nop 7')
    e(f'  v_max3_f32 v{vm}, v{R}, v{R+1}, v{R+2}')
    for k in range(3, 31, 2): e(f'  v_max3_f32 v{vm}, v{vm}, v{R+k}, v{R+k+1}')
    e(f'  s_mov_b32 s{sT[6]}, 0xff7fffff')
    e(f'  v_max3_f32 v{vm}, v{vm}, v{R+31}, s{sT[6]}')
    for sw in ('v_permlane32_swap_b32', 'v_permlane16_swap_b32'):
        e(f'  v_mov_b32 v{vt}, v{vm}'); e('  s_nop 1'); e(f'  {sw} v{vm}, v{vt}'); e('  s_nop 1')
        e(f'  v_max_f32 v{vm}, v{vm}, v{vt}')
    for k in range(32): e(f'  v_sub_f32 v{R+k}, v{R+k}, v{vm}')
    for k in range(32): e(f'  v_exp_f32 v{R+k}, v{R+k}')
    e('  s_nop 0')
    for k in range(16): e(f'  v_cvt_pk_bf16_f32 v{PREG[t]+k}, v{R+2*k}, v{R+2*k+1}')
    e('  s_nop 1')
    for kt in range(4): e(mfma(SUM[t], ONES, PREG[t]+4*kt, None if kt == 0 else SUM[t]))
    e('  s_nop 7')
    e(f'  s_branch FBR{t}')
e('MK_end:')
e('.section .rodata,"a"')
e('.p2align 6'); e(f'.amdhsa_kernel {KN}')
e('  .amdhsa_next_free_vgpr 256'); e('  .amdhsa_next_free_sgpr 102'); e('  .amdhsa_accum_offset 256')
e('  .amdhsa_group_segment_fixed_size 0'); e('  .amdhsa_kernarg_size 48'); e('  .amdhsa_user_sgpr_count 2')
e('  .amdhsa_user_sgpr_kernarg_segment_ptr 1'); e('  .amdhsa_system_sgpr_workgroup_id_x 1')
e('.end_amdhsa_kernel')
if 'drop' in OPT:
    kinds = OPT['drop'].split(',')
    i0 = next(i for i, l in enumerate(L) if 'MK_np4:' in l)
    out = []; n = 0
    for i, l in enumerate(L):
        body = i > i0
        if 'mM' in kinds and not body and 'v_mfma' in l: l = '  s_nop 3'
        if 'exp' in kinds and 'v_exp' in l: l = l.replace('v_exp_f32', 'v_mov_b32')
        if 'lds' in kinds and body and 'ds_read_b128' in l:
            l = re.sub(r'ds_read_b128 v\[(\d+):\d+\]', lambda m: f'ds_read_b32 v{m.group(1)}', l)
        if 'tr' in kinds and body and 'ds_read_b64_tr' in l:
            l = re.sub(r'ds_read_b64_tr_b16 v\[(\d+):\d+\], v\d+', lambda m: f'ds_read_b32 v{m.group(1)}, v{vL0}', l)
        if 'mfma' in kinds and body and 'v_mfma' in l:
            n += 1
            if n % 2: l = '  s_nop 3'
        if 'nslab' in kinds and RWO in l and 'buffer_load' in l: l = '  s_nop 0'
        if 'nwv' in kinds and f'v{vNA}, {RW}' in l: l = '  s_nop 0'
        if 'ncomp' in kinds and 's_cbranch_scc1 MK_np2' in l: l = '  s_branch MK_np2'
        if 'st' in kinds and 'buffer_store_dwordx4' in l: l = '  s_nop 0'
        out.append(l)
    L = out
open(OUTF, 'w').write('\n'.join(L) + '\n')
```

```python
import sys, struct, math, re
OPT = dict(a.split('=') if '=' in a else (a, '1') for a in sys.argv[1:])
OUTF = OPT.get('out', 'standalone__neighborhood_nat__vision.s')
TS = 'ts' in OPT
TSM = [int(x) for x in OPT['tsm'].split(',')] if 'tsm' in OPT else []
TSP = 'tsp' in OPT
def opt(k, d): return int(OPT.get(k, d))
L = []
def e(s): L.append(s)
def el(ls):
    for l in ls: L.append(l)

X_BYTES = 19267584
WS_BYTES = 268435456
XB = 10240
ROW = 7680
HALF = 36864
NHI = XB + 12*ROW
WOL = 147456
SCALE = struct.unpack('<I', struct.pack('<f', (192 ** -0.5) * math.log2(math.e)))[0]
NT = ' nt' if 'nt' in OPT else ''
NCT = 2
NSC = '' if 'nplain' in OPT else ' sc1'
NTO = ' ' + OPT.get('st', 'nt+sc1').replace('+', ' ')
KN = 'standalone__neighborhood_nat__vision_kernel'

hdr = open('standalone__neighborhood_nat__vision.s.ref').read().split('\n')
for ln in hdr:
    if ln.startswith('; @launch'): break
    e(ln)
e('; @launch grid=(256,1,1) block=(512,1,1) lds=163840')
e('.amdgcn_target "amdgcn-amd-amdhsa--gfx950"')
e('.text')

def srd(d, b, n):
    return [f'  s_mov_b32 s{d}, s{b}', f'  s_and_b32 s{d+1}, s{b+1}, 0xffff', f'  s_mov_b32 s{d+2}, {n}', f'  s_mov_b32 s{d+3}, 0x00020000']
def V(a, n=4): return f'v[{a}:{a+n-1}]'
def mfma(d, a, b, c):
    cs = '0' if c is None else V(c)
    return f'  v_mfma_f32_16x16x32_bf16 {V(d)}, {V(a)}, {V(b)}, {cs}'

vL0, vL1 = 1, 2
vO = (5, 6)
vSe, vSo = 7, 8
vP = (9, 10, 11, 12)
vD = (13, 14, 3, 4)
PB0 = (15, 16, 17, 18)
vCT = 19
SB0 = (20, 0)
vRR = (21, 22)
RI = (22, 23)
SACC = (24, 56); QP = 88; XQ = 136; ACC = 184
ABUF = 216; NB = 10
PREG = (136, 152)
YB = ([140, 144, 148, 168, 172, 152], [156, 160, 164, 176, 180, 72])
YACC = ([24+4*i for i in range(12)], [88+4*i for i in range(12)])
SUM = (184, 188); ONES = 192; ET = 196
OUTR = 24; NREG = 40
MACC = 24; MPK = 104
vWA = 96; vMA, vMB, vMW = (97, 98), (99, 100), (101, 102, 103)
vn, vg, tA, tB, tC, tD = 128, 129, 130, 131, 132, 133
vNB, vNA = 134, 135
QA = (134, 135); vQR = 23
CH = (0, 49152, 98304)
SO = 73728
sQR = (84, 85, 86, 87); sST = 101
sW, sU, sH, sPR, sPC, sKR, sKC, sXB, sGS, sGmin = range(24, 34)
sA2, sR0, sD0, sTR, sM0X, sM0X3, sW4, sWL = range(34, 42)
sINV = (42, 44)
sT = list(range(46, 60))
sMR, sAR, sMC, sAC = sT[10], sT[11], sT[12], sT[13]
sTS = 60
sPROD, sWB, sSC, sVO = 3, 92, 93, 100
RX, RO, RWS, RW, RWO, RDB = 's[12:15]', 's[16:19]', 's[20:23]', 's[88:91]', 's[4:7]', 's[8:11]'
MSK = f's[{sT[6]}:{sT[7]}]'
assert sT[6] % 2 == 0 and sT[2] % 2 == 0

nts = [0]
def ts_line():
    s = f'  s_memtime s[{sTS+2*nts[0]}:{sTS+2*nts[0]+1}]'; nts[0] += 1; return s
def tsp():
    if TSP: e(ts_line())

e(f'.globl {KN}'); e('.p2align 8'); e(f'.type {KN},@function'); e(f'{KN}:')
e('  s_cmp_ge_u32 s2, 256'); e('  s_cbranch_scc1 MK_done')
if TS: e(ts_line()); e('  s_memrealtime s[96:97]')
e('  s_load_dwordx8 s[4:11], s[0:1], 0')
e('  s_load_dwordx4 s[84:87], s[0:1], 32')
if 'nopf' not in OPT:
    e('  s_getpc_b64 s[12:13]'); e('MK_pc:')
    e('  s_and_b32 s13, s13, 0xffff'); e('  s_mov_b32 s14, MK_end-MK_pc'); e('  s_mov_b32 s15, 0x00020000')
    e('  v_lshlrev_b32 v23, 7, v0')
    e('  buffer_load_dword v255, v23, s[12:15], 0 offen')
e(f'  v_lshrrev_b32 v{tA}, 6, v0')
e('  v_and_b32 v0, 63, v0')
e(f'  v_readfirstlane_b32 s{sW}, v{tA}')
e(f'  v_and_b32 v{vn}, 15, v0'); e(f'  v_lshrrev_b32 v{vg}, 4, v0')
e(f'  v_lshrrev_b32 v{tA}, 5, v0'); e(f'  v_bfe_u32 v{tB}, v0, 3, 2'); e(f'  v_lshl_add_u32 v{tA}, v{tA}, 3, v{tB}')
e(f'  v_mul_u32_u24 v{tA}, 1152, v{tA}')
e(f'  s_and_b32 s{sH}, s{sW}, 1')
e(f'  s_lshl_b32 s{sT[0]}, s{sH}, 2')
e(f'  v_add_u32 v{tB}, s{sT[0]}, v{vg}'); e(f'  v_and_b32 v{tC}, 7, v0'); e(f'  v_xor_b32 v{tB}, v{tB}, v{tC}')
e(f'  v_lshl_add_u32 v{vWA}, v{tB}, 4, v{tA}')
e(f'  s_lshr_b32 s{sT[0]}, s{sW}, 2'); e(f'  s_lshl_b32 s{sT[0]}, s{sT[0]}, 5')
e(f'  s_lshl_b32 s{sT[1]}, s{sH}, 4'); e(f'  s_add_u32 s{sT[0]}, s{sT[0]}, s{sT[1]}')
e(f'  s_and_b32 s{sT[1]}, s{sW}, 2'); e(f'  s_lshl_b32 s{sT[1]}, s{sT[1]}, 1'); e(f'  s_add_u32 s{sT[0]}, s{sT[0]}, s{sT[1]}')
e(f'  s_mul_i32 s{sWB}, s{sT[0]}, 1152')
e(f'  s_lshl_b32 s{sWL}, s{sW}, 10')
e(f'  s_cmp_lt_u32 s{sW}, 4'); e('  s_cselect_b64 vcc, -1, 0')
EARLY_AT = len(L)
e(f'  s_bfe_u32 s{sPR}, s2, 0x10002')
e(f'  s_bfe_u32 s{sPC}, s2, 0x10001')
e(f'  s_and_b32 s{sKR}, s2, 1'); e(f'  s_lshl_b32 s{sKR}, s{sKR}, 2')
e(f'  s_lshr_b32 s{sT[0]}, s2, 6'); e(f'  s_add_u32 s{sKR}, s{sKR}, s{sT[0]}')
e(f'  s_bfe_u32 s{sKC}, s2, 0x30003')
e(f'  s_mul_i32 s{sTR}, s{sKR}, 14'); e(f'  s_add_i32 s{sTR}, s{sTR}, -6'); e(f'  s_max_i32 s{sKR}, s{sTR}, -4')
e(f'  s_mul_i32 s{sKC}, s{sKC}, 14'); e(f'  s_add_i32 s{sKC}, s{sKC}, -6')
e(f'  s_lshr_b32 s{sU}, s{sW}, 1'); e(f'  s_add_u32 s{sU}, s{sU}, 2'); e(f'  s_and_b32 s{sU}, s{sU}, 3')
e(f'  s_sub_u32 s{sMR}, 0, s{sPR}'); e(f'  s_mul_i32 s{sAR}, s{sPR}, 224')
e(f'  s_sub_u32 s{sMC}, 0, s{sPC}'); e(f'  s_mul_i32 s{sAC}, s{sPC}, 224')
e(f'  v_and_b32 v{tA}, 7, v{vn}')
e(f'  s_mul_i32 s{sT[0]}, s{sH}, 7'); e(f'  s_add_i32 s{sT[0]}, s{sT[0]}, s{sKC}')
e(f'  v_cmp_lt_u32 s[{sT[2]}:{sT[3]}], 6, v{tA}')
e(f'  v_add_u32 v{tA}, s{sT[0]}, v{tA}')
e(f'  v_max_i32 v{vCT}, 0, v{tA}')
e(f'  v_add3_u32 v{tA}, v{tA}, v{vCT}, 6')
e(f'  v_xor_b32 v{tA}, s{sMC}, v{tA}'); e(f'  v_add_u32 v{tA}, s{sAC}, v{tA}')
e(f'  v_subrev_u32 v{vCT}, s{sKC}, v{vCT}')
e(f'  v_mul_u32_u24 v{tA}, 384, v{tA}'); e(f'  v_lshl_add_u32 v{tA}, v{vg}, 4, v{tA}')
e(f'  s_lshl_b32 s{sT[0]}, s{sU}, 2'); e(f'  s_add_i32 s{sT[0]}, s{sT[0]}, -2')
e(f'  s_mov_b32 s{sT[1]}, 86016')
e(f'  v_lshrrev_b32 v{tB}, 3, v{vn}'); e(f'  v_add_u32 v{tB}, s{sT[0]}, v{tB}')
e(f'  v_mov_b32 v{tC}, 0x80000000')
for t in range(2):
    if t: e(f'  v_add_u32 v{tB}, 2, v{tB}')
    e(f'  v_cmp_gt_i32 s[{sINV[t]}:{sINV[t]+1}], 0, v{tB}')
    e(f'  v_add_u32 v{vO[t]}, s{sTR}, v{tB}')
    e(f'  v_max_i32 v{vRR[t]}, 0, v{vO[t]}')
    e(f'  v_add3_u32 v{vO[t]}, v{vO[t]}, v{vRR[t]}, 6')
    e(f'  s_or_b64 s[{sINV[t]}:{sINV[t]+1}], s[{sINV[t]}:{sINV[t]+1}], s[{sT[2]}:{sT[3]}]')
    e(f'  v_xor_b32 v{vO[t]}, s{sMR}, v{vO[t]}'); e(f'  v_add_u32 v{vO[t]}, s{sAR}, v{vO[t]}')
    e(f'  v_subrev_u32 v{vRR[t]}, s{sKR}, v{vRR[t]}')
    e(f'  v_mad_u32_u24 v{vO[t]}, v{vO[t]}, s{sT[1]}, v{tA}')
    e(f'  v_cndmask_b32 v{vRR[t]}, v{vRR[t]}, v{tC}, s[{sINV[t]}:{sINV[t]+1}]')
    e(f'  v_cndmask_b32 v{vO[t]}, v{vO[t]}, v{tC}, s[{sINV[t]}:{sINV[t]+1}]')

e('  s_waitcnt lgkmcnt(0)')
tsp()
el(srd(88, 6, 192*576*2))
if 'notlb' not in OPT:
    e(f'  s_cmp_lg_u32 s{sW}, 5'); e('  s_cbranch_scc1 MK_ntlb')
    e(f'  s_max_i32 s{sT[0]}, s{sTR}, 0'); e(f'  s_lshl_b32 s{sT[0]}, s{sT[0]}, 1'); e(f'  s_sub_u32 s{sT[1]}, 184, s{sT[0]}')
    e(f'  s_cmp_eq_u32 s{sPR}, 0'); e(f'  s_cselect_b32 s{sT[0]}, s{sT[0]}, s{sT[1]}'); e(f'  s_mul_i32 s{sT[0]}, s{sT[0]}, 86016')
    for k in range(3):
        e(f'  s_load_dword s94, s[4:5], s{sT[0]}'); e(f'  s_load_dword s95, s[10:11], s{sT[0]}')
        if k < 2: e(f'  s_add_u32 s{sT[0]}, s{sT[0]}, {20*86016 - 64}')
    e(f'  s_load_dword s94, s[84:85], 128'); e(f'  s_load_dword s95, s[86:87], 0x20000')
    e('MK_ntlb:')

def w_pieces(c, partner=0):
    return [[f'  s_add_i32 m0, s{sWL}, {CH[c] + mat*24576 + j*8192 + partner*4096}',
             f'  s_add_i32 s{sVO}, s{sWB}, {(j*64 + partner*32)*1152 + mat*384 + c*128}',
             f'  buffer_load_dwordx4 v{vWA}, {RW}, s{sVO} offen lds'] for mat in range(2) for j in range(3)]
def q_loads():
    return [f'  buffer_load_dwordx4 {V(XQ+24*t+4*s_)}, v{vO[t]}, {RX}, 0 offen offset:{64*s_}{NT}' for t in (1, 0) for s_ in range(6)]
def q_stage():
    return [[f'  s_add_u32 m0, s{sST}, {(1-t)*24576 + (3*qr + l)*1024 - 128*l}', '  s_nop 0',
             f'  buffer_load_dwordx4 v{QA[qr]}, {RX}, s{sQR[2*t+qr]} offen offset:{128*l}{NT} lds'] for t in (1, 0) for qr in range(2) for l in range(3)]
def q_reads():
    return ([f'  v_xor_b32 v{tA}, 64, v{vQR}'] +
            [f'  ds_read_b128 {V(XQ+24*t+4*s_)}, v{(vQR, tA)[s_ % 2]} offset:{(1-t)*24576 + 1024*(s_//2)}' for t in range(2) for s_ in range(6)])
SCH = {'O': OPT.get('so', 'A:W0,B:V0,0:W2+V2,4:q6,Z:q6'), 'Y': OPT.get('sy', 'C:W1+V1,1:q6,2:q6')}
PLAN = {}; ISS = {'O': [], 'Y': []}
for r_, sp in SCH.items():
    qi = 0
    for part in sp.split(','):
        pos, items = part.split(':')
        for it in items.split('+'):
            lst = PLAN.setdefault((r_, pos), [])
            if it[0] == 'W': lst += [(f'W{it[1]}', p) for p in w_pieces(int(it[1]))]
            elif it[0] == 'V': lst += [(f'W{it[1]}', p) for p in w_pieces(int(it[1]), 1 if r_ == 'O' else -1)]
            elif it in 'pr':
                assert pos == 'A'
                lst.append(('t', [f'  v_min_u32 v253, 2, v{vg}', f'  v_mad_u32_u24 v253, v253, s{sT[8]}, v{vO[1 if it == "p" else 0]}',
                                  f'  buffer_load_dword v{252 if it == "p" else 251}, v253, {RX}, 0 offen']))
            else:
                for _ in range(int(it[1:])):
                    if r_ == 'Y' and qi >= 6: lst.append(('b', [f'  s_cmp_eq_u32 s{sU}, 0', f'  s_cbranch_scc1 QB{qi}', q_loads()[qi], f'QB{qi}:']))
                    elif r_ == 'O': lst.append(('q', q_stage()[qi])); assert pos in ('34Z' if qi < 6 else 'Z') and opt('sya', 0) == 0
                    else: lst.append(('q', [q_loads()[qi]]))
                    qi += 1
    assert qi == 12
lbl = [0]
def role_lines(r_, lines):
    lbl[0] += 1
    return [f'  s_cbranch_vcc{"z" if r_ == "O" else "nz"} SL{lbl[0]}'] + list(lines) + [f'SL{lbl[0]}:']
def role2_lines(lo, ly):
    lbl[0] += 1; n = lbl[0]
    return [f'  s_cbranch_vccz SL{n}'] + list(lo) + [f'  s_branch SM{n}', f'SL{n}:'] + list(ly) + [f'SM{n}:']
def sched_items(pos):
    o, y = list(PLAN.get(('O', pos), [])), list(PLAN.get(('Y', pos), []))
    out = []
    while o or y: out.append((o.pop(0) if o else None, y.pop(0) if y else None))
    return out
def emit_item(it):
    o, y = it
    if o: ISS['O'].append(o[0])
    if y: ISS['Y'].append(y[0])
    if o and y and o == y: el(o[1])
    elif o and y: el(role2_lines(o[1], y[1]))
    elif o: el(role_lines('O', o[1]))
    else: el(role_lines('Y', y[1]))
def emit_pos(pos):
    o, y = PLAN.get(('O', pos), []), PLAN.get(('Y', pos), [])
    k = 0
    while k < len(o) and k < len(y) and o[k] == y[k]: emit_item((o[k], y[k])); k += 1
    for r_, x in (('O', o[k:]), ('Y', y[k:])):
        if x:
            ISS[r_] += [i[0] for i in x]; el(role_lines(r_, sum((i[1] for i in x), [])))
def after(r_, tag):
    l = ISS[r_]
    if tag not in l: return len(l) if tag == 'W0' else 63
    return min(63, len(l) - 1 - max(i for i, t in enumerate(l) if t == tag))

if 'nowpf' not in OPT:
    WPW = opt('wpw', 4)
    e(f'  s_lshr_b32 s{sT[0]}, s{sW}, 1'); e(f'  s_cmp_lg_u32 s{sT[0]}, {WPW // 2}'); e('  s_cbranch_scc1 MK_nwpf')
    e(f'  s_cmp_eq_u32 s{sW}, {WPW}'); e(f'  s_cselect_b32 s{sT[0]}, 54, 18')
    e('  s_cselect_b32 s12, s6, s8'); e('  s_cselect_b32 s13, s7, s9'); e('  s_and_b32 s13, s13, 0xffff')
    e(f'  s_lshr_b32 s{sT[1]}, s2, 3'); e(f'  s_mul_i32 s{sT[1]}, s{sT[1]}, s{sT[0]}'); e(f'  s_lshl_b32 s{sVO}, s{sT[1]}, 7')
    e(f'  s_lshl_b32 s{sT[0]}, s{sT[0]}, 7'); e(f'  s_add_u32 s14, s{sVO}, s{sT[0]}'); e('  s_mov_b32 s15, 0x00020000')
    e('  v_lshlrev_b32 v23, 7, v0')
    e(f'  buffer_load_dword v254, v23, s[12:15], s{sVO} offen')
    e('MK_nwpf:')
el(srd(12, 4, X_BYTES))
e(f'  s_movk_i32 s{sT[8]}, 112')
if 'noearly' in OPT: emit_pos('A')
else:
    assert ('Y', 'A') not in PLAN
    it = PLAN[('O', 'A')]; ISS['O'] += [i[0] for i in it]
    L[EARLY_AT:EARLY_AT] = role_lines('O', ['  s_waitcnt lgkmcnt(0)'] + srd(88, 6, 192*576*2) + sum((i[1] for i in it), []))
tsp()
el(srd(16, 10, X_BYTES)); el(srd(4, 8, 192*192*2)); el(srd(8, 84, 256)); el(srd(20, 86, WS_BYTES if TS else 73728))
e(f'  v_lshlrev_b32 v{vL0}, 4, v0')
e(f'  v_add_u32 v{vL1}, {HALF}, v{vL0}')
e(f'  s_and_b32 s{sW4}, s{sW}, 3'); e(f'  s_lshl_b32 s{sW4}, s{sW4}, 10')
e(f'  v_bfe_u32 v{tA}, v{vn}, 1, 3'); e(f'  v_xor_b32 v{tA}, v{tA}, v{vg}')
e(f'  v_lshlrev_b32 v{tB}, 7, v{vn}'); e(f'  v_lshl_add_u32 v{tB}, v{tA}, 4, v{tB}')
e(f'  s_lshr_b32 s{sT[0]}, s{sW}, 2'); e(f'  s_mul_i32 s{sT[1]}, s{sT[0]}, {6*2048}'); e(f'  s_add_u32 s{sT[1]}, s{sT[1]}, {CH[0]}')
e(f'  v_add_u32 v{vMA[0]}, s{sT[1]}, v{tB}'); e(f'  v_xor_b32 v{vMA[1]}, 64, v{vMA[0]}')
e(f'  s_mul_i32 s{sT[1]}, s{sW4}, 6'); e(f'  s_add_u32 s{sT[1]}, s{sT[1]}, {24576 + CH[0]}')
e(f'  v_add_u32 v{vMB[0]}, s{sT[1]}, v{tB}'); e(f'  v_xor_b32 v{vMB[1]}, 64, v{vMB[0]}')
F = []; f_ = F.append
f_(f'  s_lshr_b32 s{sT[0]}, s{sW}, 2'); f_(f'  s_mul_i32 s{sT[0]}, s{sT[0]}, 3072'); f_(f'  s_mul_i32 s{sT[1]}, s{sW4}, 18')
f_(f'  s_add_u32 s{sT[0]}, s{sT[0]}, s{sT[1]}'); f_(f'  s_sub_u32 s{sT[0]}, {(71-14)*1024}, s{sT[0]}')
f_(f'  v_add_u32 v{vMW[0]}, s{sT[0]}, v{vL0}')
f_(f'  s_lshl_b32 s{sT[0]}, s{sKR}, 1'); f_(f'  s_xor_b32 s{sT[0]}, s{sT[0]}, s{sMR}')
f_(f'  s_mul_i32 s{sT[1]}, s{sPR}, 222'); f_(f'  s_add_i32 s{sXB}, s{sT[0]}, s{sT[1]}')
f_(f'  s_mul_i32 s{sXB}, s{sXB}, 86016')
f_(f'  s_mul_i32 s{sGS}, s{sPR}, {-2*344064}'); f_(f'  s_add_i32 s{sGS}, s{sGS}, 344064')
f_(f'  s_lshr_b32 s{sGmin}, s{sKR}, 31'); f_(f'  s_lshl_b32 s{sGmin}, s{sGmin}, 1')
f_(f'  s_lshl_b32 s{sM0X}, s{sW4}, 2')
f_(f'  s_add_u32 s{sM0X3}, s{sM0X}, 3072'); f_(f'  s_min_u32 s{sM0X3}, s{sM0X3}, {14*1024}')
f_(f'  s_mul_i32 s{sT[2]}, s{sPR}, 172032'); f_(f'  s_sub_u32 s{sT[3]}, 172032, s{sT[2]}')
f_(f'  v_mov_b32 v{tC}, s{sT[2]}'); f_(f'  v_mov_b32 v{tD}, s{sT[3]}')
for b in range(960): assert (b * 2731) >> 16 == b // 24
for j in range(4):
    d = vD[j]
    if j < 3:
        f_(f'  s_lshr_b32 s{sT[0]}, s{sM0X}, 4'); f_(f'  s_add_u32 s{sT[0]}, s{sT[0]}, {64*j}')
    else: f_(f'  s_lshr_b32 s{sT[0]}, s{sM0X3}, 4')
    f_(f'  v_add_u32 v{tA}, s{sT[0]}, v0')
    f_(f'  v_mul_u32_u24 v{d}, 2731, v{tA}'); f_(f'  v_lshrrev_b32 v{d}, 16, v{d}')
    f_(f'  v_cmp_le_u32 {MSK}, 20, v{d}')
    f_(f'  v_mul_u32_u24 v{tB}, 24, v{d}'); f_(f'  v_sub_u32 v{tA}, v{tA}, v{tB}')
    f_(f'  v_subrev_u32 v{tB}, 20, v{d}')
    f_(f'  v_cndmask_b32 v{d}, v{d}, v{tB}, {MSK}')
    f_(f'  v_bfe_u32 v{tB}, v{d}, 1, 3'); f_(f'  v_xor_b32 v{tA}, v{tA}, v{tB}')
    f_(f'  v_cndmask_b32 v{tB}, v{tC}, v{tD}, {MSK}')
    f_(f'  v_lshl_add_u32 v{tA}, v{tA}, 4, v{tB}')
    f_(f'  v_add_u32 v{d}, s{sKC}, v{d}'); f_(f'  v_max_i32 v{d}, 0, v{d}'); f_(f'  v_lshlrev_b32 v{d}, 1, v{d}')
    f_(f'  v_xor_b32 v{d}, s{sMC}, v{d}'); f_(f'  v_add_u32 v{d}, s{sAC}, v{d}')
    f_(f'  v_mul_u32_u24 v{d}, 384, v{d}'); f_(f'  v_add_u32 v{d}, v{d}, v{tA}')
f_(f'  s_add_u32 s{sM0X}, s{sM0X}, {XB}'); f_(f'  s_add_u32 s{sM0X3}, s{sM0X3}, {XB}')
for dst, add in ((sT[0], -2), (sA2, 0)):
    f_(f'  s_lshl_b32 s{dst}, s{sU}, 2')
    if add: f_(f'  s_add_i32 s{dst}, s{dst}, {add}'); f_(f'  s_max_i32 s{dst}, s{dst}, 0')
    f_(f'  s_add_i32 s{dst}, s{dst}, s{sTR}'); f_(f'  s_max_i32 s{dst}, s{dst}, 0'); f_(f'  s_sub_i32 s{dst}, s{dst}, s{sKR}')
f_(f'  s_sub_u32 s{sT[0]}, s{sA2}, s{sT[0]}'); f_(f'  s_lshr_b32 s{sT[0]}, s{sT[0]}, 1')
f_(f'  s_mul_i32 s{sD0}, s{sT[0]}, -8'); f_(f'  s_add_i32 s{sD0}, s{sD0}, 7')
f_(f'  s_add_i32 s{sA2}, s{sA2}, -1')
f_(f'  s_add_i32 s{sR0}, s{sA2}, s{sD0}'); f_(f'  s_mul_i32 s{sD0}, s{sD0}, {ROW}')
f_(f'  s_lshl_b32 s{sT[1]}, s{sH}, 2')
f_(f'  s_mul_i32 s{sT[0]}, s{sA2}, {ROW}'); f_(f'  s_add_i32 s{sT[0]}, s{sT[0]}, {XB}')
f_(f'  v_add_u32 v{tA}, s{sT[1]}, v{vn}')
f_(f'  v_bfe_u32 v{tB}, v{tA}, 1, 3'); f_(f'  v_xor_b32 v{tB}, v{tB}, v{vg}')
f_(f'  v_mul_u32_u24 v{tA}, 384, v{tA}'); f_(f'  v_lshl_add_u32 v{tA}, v{tB}, 4, v{tA}')
f_(f'  v_add_u32 v{vSe}, s{sT[0]}, v{tA}'); f_(f'  v_xor_b32 v{vSo}, 64, v{vSe}')
f_(f'  v_lshrrev_b32 v{tA}, 2, v{vn}'); f_(f'  v_lshl_add_u32 v{tA}, v{vg}, 2, v{tA}'); f_(f'  v_add_u32 v{tA}, s{sT[1]}, v{tA}')
f_(f'  v_bfe_u32 v{tB}, v{tA}, 1, 3')
f_(f'  v_and_b32 v{tC}, 2, v{vn}'); f_(f'  v_lshlrev_b32 v{tC}, 1, v{tC}'); f_(f'  v_xor_b32 v{tB}, v{tB}, v{tC}')
f_(f'  v_mul_u32_u24 v{tA}, 384, v{tA}'); f_(f'  v_lshl_add_u32 v{tA}, v{tB}, 4, v{tA}')
f_(f'  v_and_b32 v{tB}, 1, v{vn}'); f_(f'  v_lshl_add_u32 v{tA}, v{tB}, 3, v{tA}')
f_(f'  v_add_u32 v{vP[0]}, s{sT[0]}, v{tA}')
for k in range(1, 4): f_(f'  v_xor_b32 v{vP[k]}, {16*k}, v{vP[0]}')
f_(f'  v_lshl_add_u32 v{tA}, v{vg}, 2, s{sT[1]}'); f_(f'  v_sub_u32 v{vCT}, v{tA}, v{vCT}')
f_(f'  v_cndmask_b32 v{vCT}, v{vCT}, 64, s[{sINV[1]}:{sINV[1]+1}]')
f_(f'  v_add_u32 v{SB0[0]}, s{sD0}, v{vSe}'); f_(f'  v_add_u32 v{SB0[1]}, s{sD0}, v{vSo}')
for k in range(4): f_(f'  v_add_u32 v{PB0[k]}, s{sD0}, v{vP[k]}')
f_(f'  s_mov_b32 s{sSC}, {SCALE}')
o2 = [f'  v_lshrrev_b32 v{tD}, 4, v{vL0}', f'  v_lshrrev_b32 v{tA}, 3, v{tD}', f'  s_mul_i32 s{sT[4]}, s{sH}, 7', f'  s_add_i32 s{sT[4]}, s{sT[4]}, s{sKC}',
      f'  v_cmp_lt_u32 {MSK}, 6, v{tA}', f'  v_add_u32 v{tA}, s{sT[4]}, v{tA}', f'  v_max_i32 v{tB}, 0, v{tA}', f'  v_add3_u32 v{tA}, v{tA}, v{tB}, 6',
      f'  v_xor_b32 v{tA}, s{sMC}, v{tA}', f'  v_add_u32 v{tA}, s{sAC}, v{tA}', f'  v_mul_u32_u24 v{tA}, 384, v{tA}',
      f'  v_and_b32 v{tB}, 7, v{tD}', f'  v_xor_b32 v{tB}, v{tB}, v{vg}', f'  v_lshl_add_u32 v{tA}, v{tB}, 4, v{tA}', f'  v_mov_b32 v{tB}, 0x80000000',
      f'  v_cndmask_b32 v{QA[0]}, v{tA}, v{tB}, {MSK}', f'  v_xor_b32 v{QA[1]}, 64, v{QA[0]}',
      f'  s_lshl_b32 s{sT[0]}, s{sU}, 2', f'  s_add_i32 s{sT[0]}, s{sT[0]}, s{sTR}']
for k in range(4):
    d = sQR[k]
    o2 += [f'  s_lshl_b32 s{d}, s{sT[0]}, 1', f'  s_add_i32 s{d}, s{d}, {2*(k-2) + 6}', f'  s_xor_b32 s{d}, s{d}, s{sMR}', f'  s_add_i32 s{d}, s{d}, s{sAR}', f'  s_mul_i32 s{d}, s{d}, 86016']
o2 += [f'  s_mul_i32 s{sST}, s{sW4}, 6', f'  s_add_u32 s{sST}, s{sST}, {SO}',
       f'  v_bfe_u32 v{tA}, v{vn}, 1, 3', f'  v_xor_b32 v{tA}, v{tA}, v{vg}', f'  v_lshlrev_b32 v{tB}, 7, v{vn}', f'  v_lshl_add_u32 v{tB}, v{tA}, 4, v{tB}',
       f'  v_lshrrev_b32 v{tA}, 3, v{vn}', f'  v_lshl_add_u32 v{tA}, v{tA}, 11, v{tB}', f'  v_add_u32 v{vQR}, s{sST}, v{tA}']
OLATE = opt('olate', 1)
F.insert(0, f'  v_mov_b32 v{vNB}, 0'); F.insert(0, f'  v_mov_b32 v{vNA}, 0')
if OLATE == 0: F += role_lines('O', o2); o2 = []
NPRE = opt('npre', 999)
NB1 = opt('nb1', 40)
el(F[:NB1]); emit_pos('B')
if OLATE == 2:
    assert NB1 in (2, 8)
    el(role_lines('Y', F[NB1:])); o2 = F[NB1:] + o2
else: el(F[NB1:])
F = []

def dma_x(G):
    out = []
    if G < 2: out += [f'  s_max_u32 s{sVO}, s{sGmin}, {G}', f'  s_mul_i32 s{sVO}, s{sVO}, s{sGS}']
    else: out.append(f'  s_mul_i32 s{sVO}, s{sGS}, {G}')
    out.append(f'  s_add_i32 s{sVO}, s{sVO}, s{sXB}')
    for j in range(4):
        out.append(f'  s_add_u32 m0, s{sM0X}, {G*15360 + j*1024}' if j < 3 else f'  s_add_u32 m0, s{sM0X3}, {G*15360}')
        out.append('  s_nop 0')
        out.append(f'  buffer_load_dwordx4 v{vD[j]}, {RX}, s{sVO} offen{NT} lds')
    return out
def dma_xs(Gs): return sum((dma_x(G) for G in Gs), [])
MID = SACC[1] + 4; MIDT = (SACC[0] + 8, MID)
SPECIAL = [(0, 0), (0, 1), (0, 7), (1, 0), (1, 7)]
def bias_init(tmp):
    out = []; o = out.append
    ninf, tt = tmp, tmp+1
    o(f'  v_mov_b32 v{ninf}, 0xff800000')
    for i in range(4): o(f'  v_add_u32 v{tt+i}, {i}, v{vCT}')
    for i in range(4): o(f'  v_cmp_gt_u32 s[{sT[2+2*i]}:{sT[3+2*i]}], 7, v{tt+i}')
    for q, (t, jj) in enumerate(SPECIAL):
        slot = jj + 2*t
        if slot == 0: o(f'  v_sub_u32 v{tt+4+q}, s{sR0}, v{vRR[t]}')
        else:
            o(f'  s_add_i32 s{sT[0]}, s{sA2}, {slot-1}'); o(f'  v_sub_u32 v{tt+4+q}, s{sT[0]}, v{vRR[t]}')
    for i in range(4): o(f'  v_cndmask_b32 v{MID+i}, v{ninf}, 0, s[{sT[2+2*i]}:{sT[3+2*i]}]')
    for q in range(5): o(f'  v_cmp_gt_u32 s[{sT[2*q]}:{sT[2*q+1]}], 7, v{tt+4+q}')
    for i in range(4): o(f'  v_cndmask_b32 v{MIDT[0]+i}, v{MID+i}, v{ninf}, s[{sINV[0]}:{sINV[0]+1}]')
    for q, (t, jj) in enumerate(SPECIAL):
        for i in range(4): o(f'  v_cndmask_b32 v{SACC[t]+4*jj+i}, v{ninf}, v{MID+i}, s[{sT[2*q]}:{sT[2*q+1]}]')
    return out

tsp()
emit_pos('C')
tsp()
vLN = 107
def n_loads():
    e(f'  v_lshrrev_b32 v{vLN}, 4, v{vL0}')
    e(f'  s_cmp_lt_u32 s2, 72'); e('  s_cbranch_scc0 MK_np1')
    e(f'  s_mul_hi_u32 s{sT[8]}, s2, 0x15555556'); e(f'  s_lshl_b32 s{sT[8]}, s{sT[8]}, 6')
    e(f'  s_mul_i32 s{sT[9]}, s{sW}, {16*384}'); e(f'  s_add_u32 s{sVO}, s{sT[8]}, s{sT[9]}')
    e(f'  v_lshrrev_b32 v{MPK}, 2, v{vLN}'); e(f'  v_mul_u32_u24 v{MPK}, 384, v{MPK}'); e(f'  v_and_b32 v{MPK+1}, 3, v{vLN}'); e(f'  v_lshl_add_u32 v{MPK}, v{MPK+1}, 4, v{MPK}')
    e(f'  s_add_u32 m0, s{sWL}, {WOL}'); e('  s_nop 0')
    e(f'  buffer_load_dwordx4 v{MPK}, {RWO}, s{sVO} offen lds')
    e(f'  s_mul_i32 s{sT[9]}, s{sW4}, 6'); e(f'  s_add_u32 s{sVO}, s{sT[8]}, s{sT[9]}')
    e(f'  s_add_u32 m0, s{sW4}, {WOL + 8192}'); e(f'  s_add_u32 s{sVO}, s{sVO}, {8*16*384}')
    e(f'  buffer_load_dwordx4 v{MPK}, {RWO}, s{sVO} offen lds')
    e('MK_np1:')
    e(f'  s_sub_u32 s{sPROD}, s2, 72'); e(f'  s_lshr_b32 s{sPROD}, s{sPROD}, 31')
    e(f'  s_lshr_b32 s{sPROD}, s{sPROD}, s{sU}')
    e(f'  s_cmp_eq_u32 s{sPROD}, 0'); e('  s_cbranch_scc1 MK_np3')
    e(f'  s_mul_hi_u32 s{sT[8]}, s2, 0x15555556'); e(f'  s_mul_i32 s{sT[9]}, s{sT[8]}, 12'); e(f'  s_sub_u32 s{sT[9]}, s2, s{sT[9]}')
    e(f'  s_cmp_ge_u32 s{sT[9]}, 6'); e(f'  s_cselect_b32 s{sT[5]}, 1, 0'); e(f'  s_mul_i32 s{sVO}, s{sT[5]}, 6'); e(f'  s_sub_u32 s{sT[9]}, s{sT[9]}, s{sVO}')
    e(f'  v_lshrrev_b32 v{MPK+2}, 2, v{vn}'); e(f'  v_and_b32 v{MPK+1}, 3, v{vn}')
    e(f'  v_lshl_add_u32 v{vNB}, v{vg}, 3, v{MPK+2}'); e(f'  v_lshlrev_b32 v{vNB}, 6, v{vNB}'); e(f'  v_lshl_add_u32 v{vNB}, v{MPK+1}, 4, v{vNB}')
    e(f'  s_lshl_b32 s{sT[5]}, s{sT[5]}, 3'); e(f'  s_add_u32 s{sT[5]}, s{sT[5]}, {WOL}'); e(f'  v_add_u32 v{vNB}, s{sT[5]}, v{vNB}')
    e(f'  s_lshr_b32 s{sT[8]}, s{sT[9]}, 1'); e(f'  s_lshl_b32 s{sT[8]}, s{sT[8]}, 6')
    e(f'  s_and_b32 s{sT[9]}, s{sT[9]}, 1'); e(f'  s_lshl_b32 s{sT[9]}, s{sT[9]}, 4'); e(f'  s_add_u32 s{sT[8]}, s{sT[8]}, s{sT[9]}')
    e(f'  v_lshrrev_b32 v{MPK}, 1, v{MPK+2}'); e(f'  v_lshlrev_b32 v{MPK}, 5, v{MPK}')
    e(f'  v_and_b32 v{MPK+2}, 1, v{MPK+2}'); e(f'  v_lshl_add_u32 v{MPK}, v{MPK+2}, 2, v{MPK}')
    e(f'  v_add3_u32 v{MPK}, v{MPK}, v{MPK+1}, s{sT[8]}')
    e(f'  v_mul_u32_u24 v{MPK}, 1152, v{MPK}'); e(f'  v_lshl_add_u32 v{vNA}, v{vg}, 4, v{MPK}')
    e(f'  s_mul_i32 s{sVO}, s{sH}, 9216')
    for kk in range(6):
        e(f'  buffer_load_dwordx4 {V(136+4*kk)}, v{vNA}, {RW}, s{sVO} offen offset:{768+64*kk}')
    e('MK_np3:')
def m_reads(kk):
    rb = 184 + 36*(kk % 2); co = (kk // 2) * 49152
    lo = co if co < 49152*2 else 0
    return ([f'  ds_read_b128 {V(rb+24+4*b)}, v{vMB[kk % 2]} offset:{2048*b}' for b in range(3)] +
            [f'  ds_read_b128 {V(rb+4*a)}, v{vMA[kk % 2]} offset:{2048*a}' for a in range(6)])
def chunk_sync(c, lg):
    wo_, wy_ = after('O', f'W{c}'), after('Y', f'W{c}')
    x = ' lgkmcnt(0)' if lg else ''
    def w(n, prod):
        if c == 2 and prod and ISS['Y'].count('b'):
            return [f'  s_cmp_lg_u32 s{sU}, 0', '  s_cbranch_scc1 MK_c2', f'  s_waitcnt vmcnt({n - ISS["Y"].count("b")})', 'MK_c2:', f'  s_waitcnt vmcnt({n}){x}']
        if c != 1 or n == 63: return [f'  s_waitcnt vmcnt({n}){x}']
        lbl[0] += 1; k = lbl[0]; o = []
        if prod: o += [f'  s_cmp_lg_u32 s{sPROD}, 0', f'  s_cbranch_scc1 CA{k}']
        o += ['  s_cmp_lt_u32 s2, 72', f'  s_cbranch_scc1 CB{k}', f'  s_waitcnt vmcnt({n})', f'CB{k}:']
        if prod: o += [f'  s_waitcnt vmcnt({n+2})', f'CA{k}:', f'  s_waitcnt vmcnt({n+8}){x}']
        else: o += [f'  s_waitcnt vmcnt({n+2}){x}']
        return o
    if c == 2:
        wo_, wy_ = min(wo_, len(ISS['O']) - N_AT['O']), min(wy_, len(ISS['Y']) - N_AT['Y'])
    assert c != 1 or 'b' not in ISS['Y']
    if wo_ == wy_ and c != 2: el(w(wo_, True))
    else: el(role2_lines(w(wo_, False), w(wy_, True)))
    e('  s_barrier')
    tsp()
N_AT = {}
FPG = opt('fpg', 4)
chunk_sync(0, False)
el(m_reads(0))
SYA = opt('sya', 0)
for kk in range(4):
    odd = kk % 2 == 1
    extra = sched_items(str(kk)); ne = len(extra); cnt = 0
    rb = 184 + 36*(kk % 2)
    nx = m_reads(kk+1)
    issued = 0
    for a in range(6):
        if odd and a == SYA:
            chunk_sync(kk // 2 + 1, True)
            for r in vMA + vMB: e(f'  v_add_u32 v{r}, 49152, v{r}')
        if not (odd and a >= SYA): e(f'  s_waitcnt lgkmcnt({5 - a + issued})')
        for b in range(3):
            acc = MACC + 12*a + 4*b
            e(mfma(acc, rb+4*a, rb+24+4*b, None if kk == 0 else acc))
            slots = FPG
            if odd:
                for _ in range(1 if SYA <= 3 else 2):
                    if nx and a >= SYA and (b < 2 or SYA >= 2): e(nx.pop(0)); slots -= 1
            elif nx and b < 2 and a >= 1:
                e(nx.pop(0)); issued += 1; slots -= 1
            cnt += 1
            while extra and (ne - len(extra)) * 18 < cnt * ne: emit_item(extra.pop(0)); slots = 0
            el(F[:max(slots, 0)]); F = F[max(slots, 0):]
    el(nx)
    assert not extra
    if kk == opt('olk', 2) and o2: el(role_lines('O', o2))
    if kk == 0: n_loads(); N_AT.update(O=len(ISS['O']), Y=len(ISS['Y']))
print('leftover F', len(F), file=sys.stderr); el(F); F = []
assert ISS['Y'].count('q') <= 6
e(f'  s_cmp_eq_u32 s{sPROD}, 0'); e('  s_cbranch_scc1 MK_np2')
e('  s_waitcnt lgkmcnt(0)')
for k2 in range(6):
    for hf in range(2):
        e(f'  ds_read_b64_tr_b16 {V(MPK+4*k2+2*hf, 2)}, v{vNB} offset:{(32*k2 + 4*hf)*64}')
e('  s_setprio 3'); e('  s_waitcnt lgkmcnt(0)')
for kk in range(6):
    e(mfma(128, 136+4*kk, MPK+4*kk, None if kk == 0 else 128))
e(f'  s_lshl_b32 s{sVO}, s2, 10'); e(f'  s_lshl_b32 s{sT[8]}, s{sH}, 3'); e(f'  s_add_u32 s{sVO}, s{sVO}, s{sT[8]}')
e('  s_nop 5')
for r in range(2): e(f'  v_cvt_pk_bf16_f32 v{132+r}, v{128+2*r}, v{129+2*r}')
e(f'  buffer_store_dwordx2 v[132:133], v{vL0}, {RWS}, s{sVO} offen sc1')
NY_AT_STORE = len(ISS['Y'])
e('  s_setprio 0')
e('MK_np2:')
e(f'  s_cmp_lg_u32 s{sU}, 0'); e('  s_cbranch_scc1 MK_z1')
for r in range(24): e(f'  v_mov_b32 v{XQ+r}, 0')
e('MK_z1:')
r5 = m_reads(5)
el(r5[:5]); late = r5[5:]
extra = sched_items('4'); ne = len(extra); cnt = 0
pend = []; nw = 0; wq = []
BWF = 0
for fi in range(9):
    a3, b = fi // 3, fi % 3
    if fi == 0: e('  s_waitcnt lgkmcnt(5)')
    if fi == 2: e('  s_waitcnt lgkmcnt(0)')
    for kk in (4, 5):
        rb = 184 + 36*(kk % 2)
        if fi == 0 and kk == 5: e('  s_waitcnt lgkmcnt(2)')
        for a in (2*a3, 2*a3+1):
            acc = MACC + 12*a + 4*b
            e(mfma(acc, rb+4*a, rb+24+4*b, acc)); cnt += 1
            if late: e(late.pop(0))
            k = 0
            while wq and fi >= BWF and k < 1: e(wq.pop(0)); k += 1
            while pend and pend[0][0] <= cnt and k < 2:
                l = pend.pop(0)[1]
                if 'ds_write' in l and (fi < BWF or wq): wq.append(l)
                else: e(l); k += 1
            while extra and (ne - len(extra)) * 36 < cnt * ne: emit_item(extra.pop(0))
    o = MPK + 4*(fi % 6)
    for a in range(2):
        acc = MACC + 12*(2*a3 + a) + 4*b
        for i in range(2): pend.append((cnt + 5, f'  v_cvt_pk_bf16_f32 v{o+2*a+i}, v{acc+2*i}, v{acc+2*i+1}'))
    pend.append((cnt + 5, f'  ds_write_b128 v{vMW[0]}, {V(o)} offset:{1024*(2-a3) + 6144*(2-b)}'))
assert not extra
tsp()
assert not wq
for i, (_, l) in enumerate(pend):
    if len(pend) - i == 5: e('  s_nop 3')
    e(l)
e('  s_waitcnt lgkmcnt(0)')
e('  s_barrier')
tsp()
NXY = opt('nxy', 2)
XH = (9, 8, 7, 6, 5)
assert ('Y', 'Z') not in PLAN and ('Y', '4') not in PLAN
y = [f'  s_cmp_lg_u32 s{sPROD}, 0', '  s_cbranch_scc1 MK_np4', '  s_waitcnt vmcnt(0)', 'MK_np4:', '  s_waitcnt vmcnt(1)', '  s_setprio 1']
o_ = sum((ls for _, ls in PLAN.get(('O', 'Z'), [])), []) + dma_xs(XH[:min(NXY, 2)]) + [f'  s_waitcnt vmcnt({4*min(NXY, 2)}) lgkmcnt(0)'] + q_reads() + ['  s_waitcnt lgkmcnt(0)', '  s_barrier'] + dma_xs(XH[2:max(NXY, 2)])
PRE_P1 = (o_, y)
PUB = [f'  s_cmp_eq_u32 s{sPROD}, 0', '  s_cbranch_scc1 MK_np5', '  s_waitcnt vmcnt(0)', '  v_mov_b32 v23, 1', '  s_mov_b64 exec, 1',
       *([f'  buffer_atomic_add v23, off, {RDB}, 0 sc1'] if 'atom' in OPT else
         [f'  s_lshl_b32 s{sVO}, s{sH}, 7', f'  buffer_atomic_add v23, off, {RDB}, s{sVO} sc1']), '  s_mov_b64 exec, -1', '  s_nop 3', 'MK_np5:']

stream = []; frags = []
def add_frag(reads, gate): frags.append(dict(reads=reads, gate=gate, uses=0)); return len(frags) - 1
def use(fid, fn): frags[fid]['uses'] += 1; stream.append(('mfma', fn, fid))
def mf(text): stream.append(('mfma', (lambda buf: text), None))
def raw(*lines):
    for l in lines: stream.append(('raw', l))
def fill(*lines):
    for l in lines: stream.append(('fill', l))
def flush(): stream.append(('flush',))
def need(fid): stream.append(('need', fid))
def gate(name): stream.append(('gate', name))
def role(r, lines): stream.append(('cond', role_lines(r, lines)))
def role2(lo, ly): stream.append(('cond', role2_lines(lo, ly)))
BAR = '  s_barrier'
def m_read(f):
    addr = (71-f)*1024
    if addr < HALF: return [f'  ds_read_b128 {{d4}}, v{vL0} offset:{addr}']
    return [f'  ds_read_b128 {{d4}}, v{vL1} offset:{addr-HALF}']
def n_addr(f): return NHI + 30720 + 1024*f if f < 30 else ((f-30)*1024 if f < 40 else NHI + (f-40)*1024)
def n_read(f):
    if f >= 70: return []
    a = n_addr(f)
    return [f'  ds_read_b128 {{d4}}, v{vL1} offset:{a-NHI}' if a >= NHI else f'  ds_read_b128 {{d4}}, v{vL0} offset:{a}']
def dma_n(a, b):
    out = []
    for f0 in range(a, b, 4):
        lim = (b - 1 - f0) * 1024; src = sW4
        if lim < 3072: out.append(f'  s_min_u32 s{sT[5]}, s{sW4}, {lim}'); src = sT[5]
        out += [f'  s_add_u32 m0, s{src}, {n_addr(f0)}', f'  s_add_u32 s{sVO}, s{src}, {f0*1024}',
                f'  buffer_load_dwordx4 v{vL0}, {RWS}, s{sVO} offen{NSC} lds']
    return out
CHAIN = [(0,0),(0,1),(0,2),(1,0),(1,1),(1,2),(1,3),(1,4),(1,5),(0,3),(0,4),(0,5)] if 'nochain' not in OPT else [(t, k) for k in range(6) for t in range(2)]
def proj(B, rd, gate_of, post, hooks):
    for s in range(6):
        for hh in range(2):
            f0 = 12*s + 6*hh
            fid = [add_frag(rd(f0+ks), gate_of(f0+ks)) for ks in range(6)]
            seen = set()
            for t, ks in CHAIN:
                f = f0 + ks
                if ks not in seen:
                    seen.add(ks)
                    if f in hooks: hooks[f](fid[ks])
                acc = ACC + 16*(s % 2) + 8*t + 4*hh
                fx = None if rd(f) else NREG + 4*(f-70)
                use(fid[ks], (lambda buf, acc=acc, t=t, ks=ks, fx=fx: mfma(acc, buf if fx is None else fx, B(t, ks), None if ks == 0 else acc)))
            if hh == 1: stream.append(('flushto', f'post{s-1}'))
            fill(*post(s, hh))
        stream.append(('tag', f'post{s}'))

gate('G0')
role2(PRE_P1[0], PRE_P1[1])
BF = [] if 'nobf' in OPT else bias_init(SACC[1] + 8)
fill(*BF[:30])
def p1_post(s, hh):
    out = []
    for t in (1, 0):
        if t == 0 and s == 5 and hh == 1: out.append('#QP5a')
        acc = ACC + 16*(s % 2) + 8*t + 4*hh
        for r in range(4): out.append(f'  v_mul_f32 v{acc+r}, s{sSC}, v{acc+r}')
        for r in range(2): out.append(f'  v_cvt_pk_bf16_f32 v{QP+24*t+4*s+2*hh+r}, v{acc+2*r}, v{acc+2*r+1}')
    return out
proj(lambda t, ks: XQ+24*t+4*ks, m_read, lambda f: 'G0', p1_post,
     {13: lambda fid: fill(*BF[30:35]), 25: lambda fid: fill(*BF[35:39]), 37: lambda fid: fill(*BF[39:44]), 49: lambda fid: fill(*BF[44:48]), 60: lambda fid: (fill(*BF[48:]), stream.append(('tag', 'BIAS'))),
      opt('yb1', 58): lambda fid: role('Y', [BAR]),
      31: lambda fid: (need(fid), role2([BAR], PUB)),
      61: lambda fid: (need(fid), role('O', ['  s_waitcnt vmcnt(0)', BAR]))})
if 'p1flush' in OPT: flush()
stream.append(('tag', 'QP5'))
fill(f'  v_add_u32 v{vL1}, {NHI}, v{vL0}')
for r in range(4): fill(f'  v_mov_b32 v{ONES+r}, 0x3f803f80')
POLL = f'  buffer_load_dword v13, off, {RDB}, 0 sc1' if 'atom' in OPT else f'  buffer_load_dword v13, v14, {RDB}, 0 offen sc1'
PSET = [] if 'atom' in OPT else [f'  v_and_b32 v14, {128 if NCT == 2 else 192}, v{vL0}']
PMODE = opt('pmode', 1)
role('Y', ['  s_setprio 0'] + dma_xs(XH[NXY:]) + [BAR] + dma_xs((4, 3, 2)) + (bias_init(XQ) if 'nobf' in OPT else []) +
     ['  s_waitcnt vmcnt(12)', BAR] + dma_xs((1, 0)) + ['  s_waitcnt vmcnt(8)', BAR])
for _ in range(opt('idle', 0)): raw('  s_sleep 8')
gate('S')
etn = [0]
def sm_fill(t, jj):
    tmp = ET + 4*(etn[0] % 5); etn[0] += 1
    acc = SACC[t] + 4*jj
    for i in range(4): fill(f'  v_exp_f32 v{tmp+i}, v{acc+i}')
    for i in range(2): fill(f'  v_cvt_pk_bf16_f32 v{PREG[t]+2*jj+i}, v{tmp+2*i}, v{tmp+2*i+1}')
    stream.append(('tag', f'P{t}_{jj}'))
def sum_mfmas(t):
    stream.append(('flushto', f'P{t}_0'))
    for kt in (3, 2, 1, 0): mf(mfma(SUM[t], ONES, PREG[t]+4*kt, None if kt == 3 else SUM[t]))
LO, HI = (127-30) << 23, (127+30) << 23
def check(t):
    raw(f'  v_subrev_u32 v{RI[1]}, {LO}, v{SUM[t]}')
    raw(f'  s_mov_b32 s{sT[6]}, {HI-LO}')
    raw(f'  v_cmp_gt_u32 s[{sT[2]}:{sT[3]}], s{sT[6]}, v{RI[1]}')
    raw(f'  s_or_b64 s[{sT[2]}:{sT[3]}], s[{sT[2]}:{sT[3]}], s[{sINV[t]}:{sINV[t]+1}]')
    raw(f'  s_cmp_eq_u64 s[{sT[2]}:{sT[3]}], -1')
    raw(f'  s_cbranch_scc0 FB{t}')
    raw(f'FBR{t}:')
if 'atom' in OPT:
    pollw = [f'  s_mov_b32 s{sT[7]}, 0x40000', 'NPOLL:', '  s_waitcnt vmcnt(0)', f'  v_readfirstlane_b32 s{sT[0]}, v13', f'  s_sub_u32 s{sT[7]}, s{sT[7]}, 1',
             f'  s_cselect_b32 s{sT[0]}, 144, s{sT[0]}', f'  s_cmp_ge_u32 s{sT[0]}, 144', '  s_cbranch_scc1 NPOLLD', POLL, '  s_branch NPOLL', 'NPOLLD:']
else:
    pollw = [f'  s_mov_b32 s{sT[7]}, 0x40000', f'  s_mov_b32 s{sT[0]}, {144 // NCT}', 'NPOLL:', '  s_waitcnt vmcnt(0)', f'  v_cmp_le_u32 s[{sT[2]}:{sT[3]}], s{sT[0]}, v13',
             f'  s_sub_u32 s{sT[7]}, s{sT[7]}, 1', '  s_cbranch_scc1 NPOLLD', f'  s_cmp_eq_u64 s[{sT[2]}:{sT[3]}], -1', '  s_cbranch_scc1 NPOLLD', POLL, '  s_branch NPOLL', 'NPOLLD:']
ODMA = 'ydma' not in OPT
if not ODMA: pollw = [POLL.replace(' sc1', '')] + pollw
YP = {opt('y5a', 7): [BAR] + pollw + dma_n(0, 30) + dma_n(30, 40),
      opt('y5b', 10): ['  s_waitcnt vmcnt(0)', BAR] + dma_n(40, 70),
      opt('y6', 12): ['  s_waitcnt vmcnt(0)', BAR]}
assert len(YP) == 3
if ODMA: YP = {k: [BAR] for k in YP}
if 'yhi' in OPT: YP[opt('yhi', 0)] = YP.get(opt('yhi', 0), []) + ['  s_setprio 1']
O4B = opt('o4b', 6)
for k, slot in enumerate(range(9, -1, -1)):
    if k == 2:
        role2([BAR], ['  s_waitcnt vmcnt(0)', BAR]); gate('S2')
    if k == O4B: role('O', [BAR] + (PSET + [POLL.replace(' sc1', '')] if ODMA else []))
    if k in YP: role('Y', YP[k])
    fid = []
    for s in range(6):
        if slot == 0: base, off = SB0[s % 2], 128*(s//2)
        else: base, off = (vSe, vSo)[s % 2], (slot-1)*ROW + 128*(s//2)
        fid.append(add_frag([f'  ds_read_b128 {{d4}}, v{base} offset:{off}'], 'S' if slot >= 6 else 'S2'))
    for t, s in CHAIN:
        jj = slot - 2*t
        if 0 <= jj < 8:
            if slot == 0 and s == 3: sum_mfmas(1)
            if slot == 9 and s == 0: stream.append(('flushto', 'BIAS'))
            if slot == 9 and s == 5: stream.append(('flushto', 'QP5a'))
            if slot == 7 and s == 5: stream.append(('flushto', 'QP5'))
            acc = SACC[t] + 4*jj
            cin = MIDT[t] if s == 0 and (t, jj) not in SPECIAL else acc
            use(fid[s], (lambda buf, acc=acc, t=t, s=s, cin=cin: mfma(acc, buf, QP+24*t+4*s, cin)))
    for t in (1, 0):
        jj = slot - 2*t
        if 0 <= jj < 8: sm_fill(t, jj)
check(1)
YC1 = 0
def ycvt(t, ks, _=0):
    return [f'  v_cvt_pk_bf16_f32 v{YB[t][ks]+2*hf+i}, v{YACC[t][2*ks+hf]+2*i}, v{YACC[t][2*ks+hf]+2*i+1}' for hf in range(2) for i in range(2)]
lastf = None
for k, st in enumerate(range(4, -1, -1)):
    if k == 1:
        sum_mfmas(0); check(0)
        for t in range(2): fill(f'  v_rcp_f32 v{RI[t]}, v{SUM[t]}')
    if k == 2: need(lastf); role('O', [BAR] + (pollw + dma_n(30, 40) + dma_n(0, 30) if ODMA else []))
    if 10 + k in YP: role('Y', YP[10 + k])
    for ct in range(12):
        tl = [t for t in (1, 0) if 0 <= st - t < 4]
        b_, e_ = ct // 4, ct % 4
        rd = []
        for hf in range(2):
            slot = 2*st + hf
            if slot == 0: base, off = PB0[e_], 128*b_
            else: base, off = vP[e_], (slot-1)*ROW + 128*b_
            rd.append(f'  ds_read_b64_tr_b16 {{d{"lo" if hf == 0 else "hi"}}}, v{base} offset:{off}')
        fid = add_frag(rd, 'S2'); lastf = fid
        if k == 4 and ct == opt('o5b', 6):
            stream.append(('needall', fid + 11 - ct)); role('O', ['  s_waitcnt vmcnt(0)', BAR] + dma_n(40, 70) if ODMA else [BAR]); gate('P4a')
        for t in tl:
            acc = YACC[t][ct]
            use(fid, (lambda buf, acc=acc, t=t, st=st: mfma(acc, buf, PREG[t]+4*(st-t), None if st - t == 3 else acc)))
        if k == 3 and ct % 2 and ct < 12 - YC1: fill(*ycvt(1, ct // 2, 1))
        if k == 4 and ct % 2: fill(*ycvt(0, ct // 2, 0)); stream.append(('tag', f'YB{ct // 2}'))
    if k == 3:
        for ks in range(6 - YC1 // 2, 6): fill(*ycvt(1, ks, 1))
NLD = [f'  s_mov_b32 s{sVO}, {70*1024}'] + [f'  buffer_load_dwordx4 {V(NREG+4*i)}, v{vL0}, {RWS}, s{sVO} offen offset:{1024*i} sc1' for i in range(2)]
if 15 in YP: role('Y', YP[15])
def p4_post(s, hh):
    out = []
    for t in (1, 0):
        acc = ACC + 16*(s % 2) + 8*t + 4*hh
        o = OUTR + 8*(s % 2) + 4*t
        for r in range(4): out.append(f'  v_mul_f32 v{acc+r}, v{acc+r}, v{RI[t]}')
        for r in range(2): out.append(f'  v_cvt_pk_bf16_f32 v{o+2*hh+r}, v{acc+2*r}, v{acc+2*r+1}')
        if hh: out.append(f'  buffer_store_dwordx4 {V(o)}, v{vO[t]}, {RO}, 0 offen offset:{64*s}{NTO}')
    return out
proj(lambda t, ks: YB[t][ks], n_read, lambda f: 'P4a' if f < 40 else 'P4b', p4_post,
     {**{ks: (lambda fid, ks=ks: stream.append(('flushto', f'YB{ks}'))) for ks in range(6)},
      12: lambda fid: raw(*NLD),
      opt('o6', 24): lambda fid: (role('O', (['  s_waitcnt vmcnt(%d)' % (2 if 'pairst' in OPT else 4)] if ODMA else []) + [BAR]), gate('P4b')),
      60: lambda fid: raw('  s_waitcnt vmcnt(8)'),
      })
flush()

def regs_of(tok):
    m = re.fullmatch(r'v\[(\d+):(\d+)\]', tok)
    if m: return list(range(int(m.group(1)), int(m.group(2)) + 1))
    m = re.fullmatch(r'-?v(\d+)', tok)
    return [int(m.group(1))] if m else []
def parse(line):
    p = line.strip().split(None, 1)
    op = p[0]; args = [a.strip().split()[0] for a in p[1].split(',')] if len(p) > 1 else []
    return op, args
clock = [0]
mf_w = {}; va_w = {}; tr_w = {}; mf_c = {}; sg_w = {}
def hazard(line):
    op, args = parse(line); need_ = 0
    allr = [r for a in args for r in regs_of(a)]
    if op.startswith('v_mfma'):
        for r in [r for a in args[1:] for r in regs_of(a)]:
            if r in va_w: need_ = max(need_, 2 - (clock[0] - va_w[r] - 1))
        for r in regs_of(args[1]) + regs_of(args[2]):
            if r in mf_w: need_ = max(need_, 8 - (clock[0] - mf_w[r] - 1))
    elif op.startswith('v_') or op.startswith('buffer_') or op.startswith('ds_'):
        for r in allr:
            if r in mf_w: need_ = max(need_, 8 - (clock[0] - mf_w[r] - 1))
        if op.startswith('v_'):
            for r in regs_of(args[0]):
                if r in mf_c: need_ = max(need_, 3 - (clock[0] - mf_c[r] - 1))
            for r in [r for a in args[1:] for r in regs_of(a)]:
                if r in tr_w: need_ = max(need_, 1 - (clock[0] - tr_w[r] - 1))
            for a in args[1:]:
                if a in sg_w: need_ = max(need_, 2 - (clock[0] - sg_w[a] - 1))
    return need_
def emit(line):
    if line.endswith(':'):
        e(line); return
    n = hazard(line)
    if n > 0:
        e(f'  s_nop {n-1}'); clock[0] += n
    op, args = parse(line)
    e(line)
    if op.startswith('v_mfma'):
        for r in regs_of(args[0]): mf_w[r] = clock[0]
        for r in regs_of(args[3]): mf_c[r] = clock[0]
    elif op.startswith('v_'):
        if args[0].startswith('s'): sg_w[args[0]] = clock[0]
        for r in regs_of(args[0]):
            va_w[r] = clock[0]; tr_w.pop(r, None)
            if op in ('v_exp_f32', 'v_rcp_f32'): tr_w[r] = clock[0]
    if op == 's_nop': clock[0] += int(args[0])
    clock[0] += 1

gates = set(); nxt = 0; done_uses = [0]*len(frags)
ops = []; landed = -1; half = [None]
fq = []
def buf_of(f): return ABUF + 4*(f % NB)
def issue_one():
    global nxt
    while True:
        if half[0] is not None:
            emit(half[0]); ops.append(nxt); half[0] = None; nxt += 1; return True
        if nxt >= len(frags): return False
        fr = frags[nxt]
        if fr['gate'] not in gates: return False
        if nxt >= NB and done_uses[nxt-NB] < frags[nxt-NB]['uses']: return False
        if not fr['reads']:
            nxt += 1; continue
        if len(ops) + len(fr['reads']) > (13 if TSM else 15): return False
        b = buf_of(nxt)
        rs = [r.format(d4=V(b), dlo=V(b, 2), dhi=V(b+2, 2)) for r in fr['reads']]
        emit(rs[0]); ops.append(nxt)
        if len(rs) == 2: half[0] = rs[1]
        else: nxt += 1
        return True
def wait_for(f, pair=True):
    global landed, ops
    if f is None or f <= landed: return
    while nxt <= f:
        n0 = nxt
        if not issue_one() and nxt == n0: raise RuntimeError(f'cannot issue frag {nxt}')
    if any(o <= f for o in ops):
        if pair and f + 1 < nxt and sum(1 for o in ops if o > f + 1) >= PAIRMIN: f = f + 1
        n = sum(1 for o in ops if o > f)
        emit(f'  s_waitcnt lgkmcnt({n})')
        ops = [o for o in ops if o > f]
    landed = f
def sregs(tok):
    m = re.fullmatch(r's\[(\d+):(\d+)\]', tok)
    if m: return [-1 - r for r in range(int(m.group(1)), int(m.group(2)) + 1)]
    m = re.fullmatch(r's(\d+)', tok)
    return [-1 - int(m.group(1))] if m else []
def wr(l):
    op, args = parse(l)
    return set() if op.startswith('buffer_') else set(regs_of(args[0]) + sregs(args[0]))
def rdset(l):
    op, args = parse(l)
    return set(r for a in (args if op.startswith('buffer_') else args[1:]) for r in regs_of(a) + sregs(a))
def pick(pred):
    W, R = set(), set()
    for i, l in enumerate(fq[:WINDOW]):
        if l.startswith('#'): continue
        if pred(l) and not (rdset(l) & W) and not (wr(l) & (W | R)) and hazard(l) <= 0: return i
        W |= wr(l); R |= rdset(l)
    return None
def is2(l): return 'v_exp' in l or 'v_rcp' in l
def isst(l): return 'buffer_store' in l
def gap(si, ent):
    while fq and fq[0].startswith('#'): fq.pop(0)
    cur = ent[2] if ent[2] is not None else landed
    nf = STREAM_NEXT.get(si)
    wnext = nf is not None and nf > landed
    ahead = nxt - cur
    i = pick(isst)
    if i is not None and half[0] is None and ahead >= MINAHEAD:
        emit(fq.pop(i))
        i = pick(lambda l: not is2(l) and not isst(l))
        if i is not None: emit(fq.pop(i))
        return
    slots = 1 if wnext else 2
    nexp = sum(1 for l in fq if is2(l))
    if not wnext and half[0] is None and ahead >= EXPAHEAD:
        i = pick(is2)
        if i is not None:
            emit(fq.pop(i)); return
    if issue_one(): slots -= 1
    if (half[0] is not None or slots > 0 and (nexp or not fq or ahead < 6)) and issue_one(): slots -= 1
    if nexp > BACKLOG: slots = max(slots, 1 if pick(lambda l: not is2(l) and not isst(l)) is not None else 2)
    while slots > 0:
        i = pick(is2) if slots >= 2 else None
        if i is not None:
            emit(fq.pop(i)); slots -= 2; continue
        i = pick(lambda l: not is2(l) and not isst(l))
        if i is None: break
        emit(fq.pop(i)); slots -= 1
WINDOW = opt('window', 16); MINAHEAD = opt('minahead', 5); EXPAHEAD = opt('expahead', 7)
nmf = [0]
BACKLOG = opt('backlog', 6); PAIRMIN = opt('pairmin', 5)
STREAM_NEXT = {}
mi = [i for i, x in enumerate(stream) if x[0] == 'mfma']
for a_, b_ in zip(mi, mi[1:]): STREAM_NEXT[a_] = stream[b_][2]
for si, ent in enumerate(stream):
    k = ent[0]
    if k == 'raw': emit(ent[1])
    elif k == 'fill': fq.append(ent[1])
    elif k == 'flush':
        for l in fq:
            if not l.startswith('#'): emit(l)
        fq = []
    elif k == 'tag': fq.append('#' + ent[1])
    elif k == 'flushto':
        if '#' + ent[1] in fq:
            i = fq.index('#' + ent[1])
            for l in fq[:i]:
                if not l.startswith('#'): emit(l)
            fq = fq[i+1:]
    elif k == 'gate':
        gates.add(ent[1])
        while issue_one(): pass
    elif k in ('need', 'needall'): wait_for(ent[1])
    elif k == 'cond':
        emit(ent[1][0]); el(ent[1][1:])
    elif k == 'mfma':
        wait_for(ent[2])
        if nmf[0] in TSM: e(ts_line())
        nmf[0] += 1
        emit(ent[1](buf_of(ent[2]) if ent[2] is not None else None))
        if ent[2] is not None: done_uses[ent[2]] += 1
        gap(si, ent)
if TS:
    e('  s_waitcnt vmcnt(0)')
    e(ts_line()); e('  s_memrealtime s[98:99]')
    e('  s_waitcnt lgkmcnt(0)')
    e(f'  s_lshl_b32 s{sT[0]}, s2, 3'); e(f'  s_add_u32 s{sT[0]}, s{sT[0]}, s{sW}'); e(f'  s_lshl_b32 s{sT[0]}, s{sT[0]}, 6')
    e(f'  s_add_u32 s{sT[0]}, s{sT[0]}, 0x100000')
    e('  v_mov_b32 v1, 0')
    for i in range(nts[0]):
        if i == 0: e(f'  v_mov_b32 v2, s{sTS}')
        else:
            e(f'  s_sub_u32 s{sT[1]}, s{sTS+2*i}, s{sTS}'); e(f'  v_mov_b32 v2, s{sT[1]}')
        e(f'  buffer_store_dword v2, v1, s[20:23], s{sT[0]} offen offset:{4*i}')
    e('  v_mov_b32 v2, s96'); e('  v_mov_b32 v3, s98')
    e(f'  buffer_store_dwordx2 v[2:3], v1, s[20:23], s{sT[0]} offen offset:56')
    print('timestamps', nts[0]); assert nts[0] <= 12
e('MK_done:')
e('  s_endpgm')
for t in range(2):
    R = SACC[t]; vm, vt = RI[0], RI[1]
    e(f'FB{t}:')
    e('  s_nop 7')
    e(f'  v_max3_f32 v{vm}, v{R}, v{R+1}, v{R+2}')
    for k in range(3, 31, 2): e(f'  v_max3_f32 v{vm}, v{vm}, v{R+k}, v{R+k+1}')
    e(f'  s_mov_b32 s{sT[6]}, 0xff7fffff')
    e(f'  v_max3_f32 v{vm}, v{vm}, v{R+31}, s{sT[6]}')
    for sw in ('v_permlane32_swap_b32', 'v_permlane16_swap_b32'):
        e(f'  v_mov_b32 v{vt}, v{vm}'); e('  s_nop 1'); e(f'  {sw} v{vm}, v{vt}'); e('  s_nop 1')
        e(f'  v_max_f32 v{vm}, v{vm}, v{vt}')
    for k in range(32): e(f'  v_sub_f32 v{R+k}, v{R+k}, v{vm}')
    for k in range(32): e(f'  v_exp_f32 v{R+k}, v{R+k}')
    e('  s_nop 0')
    for k in range(16): e(f'  v_cvt_pk_bf16_f32 v{PREG[t]+k}, v{R+2*k}, v{R+2*k+1}')
    e('  s_nop 1')
    for kt in range(4): e(mfma(SUM[t], ONES, PREG[t]+4*kt, None if kt == 0 else SUM[t]))
    e('  s_nop 7')
    e(f'  s_branch FBR{t}')
e('MK_end:')
e('.section .rodata,"a"')
e('.p2align 6'); e(f'.amdhsa_kernel {KN}')
e('  .amdhsa_next_free_vgpr 256'); e('  .amdhsa_next_free_sgpr 102'); e('  .amdhsa_accum_offset 256')
e('  .amdhsa_group_segment_fixed_size 0'); e('  .amdhsa_kernarg_size 48'); e('  .amdhsa_user_sgpr_count 2')
e('  .amdhsa_user_sgpr_kernarg_segment_ptr 1'); e('  .amdhsa_system_sgpr_workgroup_id_x 1')
e('.end_amdhsa_kernel')
if 'drop' in OPT:
    kinds = OPT['drop'].split(',')
    i0 = next(i for i, l in enumerate(L) if 'MK_np4:' in l)
    out = []; n = 0
    for i, l in enumerate(L):
        body = i > i0
        if 'mM' in kinds and not body and 'v_mfma' in l: l = '  s_nop 3'
        if 'exp' in kinds and 'v_exp' in l: l = l.replace('v_exp_f32', 'v_mov_b32')
        if 'lds' in kinds and body and 'ds_read_b128' in l:
            l = re.sub(r'ds_read_b128 v\[(\d+):\d+\]', lambda m: f'ds_read_b32 v{m.group(1)}', l)
        if 'tr' in kinds and body and 'ds_read_b64_tr' in l:
            l = re.sub(r'ds_read_b64_tr_b16 v\[(\d+):\d+\], v\d+', lambda m: f'ds_read_b32 v{m.group(1)}, v{vL0}', l)
        if 'mfma' in kinds and body and 'v_mfma' in l:
            n += 1
            if n % 2: l = '  s_nop 3'
        if 'nslab' in kinds and RWO in l and 'buffer_load' in l: l = '  s_nop 0'
        if 'nwv' in kinds and f'v{vNA}, {RW}' in l: l = '  s_nop 0'
        if 'ncomp' in kinds and 's_cbranch_scc1 MK_np2' in l: l = '  s_branch MK_np2'
        if 'st' in kinds and 'buffer_store_dwordx4' in l: l = '  s_nop 0'
        out.append(l)
    L = out
open(OUTF, 'w').write('\n'.join(L) + '\n')
```

```python
import sys, struct, math, re
OPT = dict(a.split('=') if '=' in a else (a, '1') for a in sys.argv[1:])
OUTF = OPT.get('out', 'standalone__neighborhood_nat__vision.s')
TS = 'ts' in OPT
TSM = [int(x) for x in OPT['tsm'].split(',')] if 'tsm' in OPT else []
TSP = 'tsp' in OPT
def opt(k, d): return int(OPT.get(k, d))
L = []
def e(s): L.append(s)
def el(ls):
    for l in ls: L.append(l)

X_BYTES = 19267584
WS_BYTES = 268435456
XB = 10240
ROW = 7680
HALF = 36864
NHI = XB + 12*ROW
WOL = 147456
SCALE = struct.unpack('<I', struct.pack('<f', (192 ** -0.5) * math.log2(math.e)))[0]
NT = ' nt' if 'nt' in OPT else ''
NCT = 2
NSC = '' if 'nplain' in OPT else ' sc1'
NTO = ' ' + OPT.get('st', 'nt+sc1').replace('+', ' ')
KN = 'standalone__neighborhood_nat__vision_kernel'

hdr = open('standalone__neighborhood_nat__vision.s.ref').read().split('\n')
for ln in hdr:
    if ln.startswith('; @launch'): break
    e(ln)
e('; @launch grid=(256,1,1) block=(512,1,1) lds=163840')
e('.amdgcn_target "amdgcn-amd-amdhsa--gfx950"')
e('.text')

def srd(d, b, n):
    return [f'  s_mov_b32 s{d}, s{b}', f'  s_and_b32 s{d+1}, s{b+1}, 0xffff', f'  s_mov_b32 s{d+2}, {n}', f'  s_mov_b32 s{d+3}, 0x00020000']
def V(a, n=4): return f'v[{a}:{a+n-1}]'
def mfma(d, a, b, c):
    cs = '0' if c is None else V(c)
    return f'  v_mfma_f32_16x16x32_bf16 {V(d)}, {V(a)}, {V(b)}, {cs}'

vL0, vL1 = 1, 2
vO = (5, 6)
vSe, vSo = 7, 8
vP = (9, 10, 11, 12)
vD = (13, 14, 3, 4)
PB0 = (15, 16, 17, 18)
vCT = 19
SB0 = (20, 0)
vRR = (21, 22)
RI = (22, 23)
SACC = (24, 56); QP = 88; XQ = 136; ACC = 184
ABUF = 216; NB = 10
PREG = (136, 152)
YB = ([140, 144, 148, 168, 172, 152], [156, 160, 164, 176, 180, 72])
YACC = ([24+4*i for i in range(12)], [88+4*i for i in range(12)])
SUM = (184, 188); ONES = 192; ET = 196
OUTR = 24; NREG = 40
MACC = 24; MPK = 104
vWA = 96; vMA, vMB, vMW = (97, 98), (99, 100), (101, 102, 103)
vn, vg, tA, tB, tC, tD = 128, 129, 130, 131, 132, 133
vNB, vNA = 134, 135
QA = (134, 135); vQR = 23
CH = (0, 49152, 98304)
SO = 73728
sQR = (84, 85, 86, 87); sST = 101
sW, sU, sH, sPR, sPC, sKR, sKC, sXB, sGS, sGmin = range(24, 34)
sA2, sR0, sD0, sTR, sM0X, sM0X3, sW4, sWL = range(34, 42)
sINV = (42, 44)
sT = list(range(46, 60))
sMR, sAR, sMC, sAC = sT[10], sT[11], sT[12], sT[13]
sTS = 60
sPROD, sWB, sSC, sVO = 3, 92, 93, 100
RX, RO, RWS, RW, RWO, RDB = 's[12:15]', 's[16:19]', 's[20:23]', 's[88:91]', 's[4:7]', 's[8:11]'
MSK = f's[{sT[6]}:{sT[7]}]'
assert sT[6] % 2 == 0 and sT[2] % 2 == 0

nts = [0]
def ts_line():
    s = f'  s_memtime s[{sTS+2*nts[0]}:{sTS+2*nts[0]+1}]'; nts[0] += 1; return s
def tsp():
    if TSP: e(ts_line())

e(f'.globl {KN}'); e('.p2align 8'); e(f'.type {KN},@function'); e(f'{KN}:')
e('  s_cmp_ge_u32 s2, 256'); e('  s_cbranch_scc1 MK_done')
if TS: e(ts_line()); e('  s_memrealtime s[96:97]')
e('  s_load_dwordx8 s[4:11], s[0:1], 0')
e('  s_load_dwordx4 s[84:87], s[0:1], 32')
if 'nopf' not in OPT:
    e('  s_getpc_b64 s[12:13]'); e('MK_pc:')
    e('  s_and_b32 s13, s13, 0xffff'); e('  s_mov_b32 s14, MK_end-MK_pc'); e('  s_mov_b32 s15, 0x00020000')
    e('  v_lshlrev_b32 v23, 7, v0')
    e('  buffer_load_dword v255, v23, s[12:15], 0 offen')
e(f'  v_lshrrev_b32 v{tA}, 6, v0')
e('  v_and_b32 v0, 63, v0')
e(f'  v_readfirstlane_b32 s{sW}, v{tA}')
e(f'  v_and_b32 v{vn}, 15, v0'); e(f'  v_lshrrev_b32 v{vg}, 4, v0')
e(f'  v_lshrrev_b32 v{tA}, 5, v0'); e(f'  v_bfe_u32 v{tB}, v0, 3, 2'); e(f'  v_lshl_add_u32 v{tA}, v{tA}, 3, v{tB}')
e(f'  v_mul_u32_u24 v{tA}, 1152, v{tA}')
e(f'  s_and_b32 s{sH}, s{sW}, 1')
e(f'  s_lshl_b32 s{sT[0]}, s{sH}, 2')
e(f'  v_add_u32 v{tB}, s{sT[0]}, v{vg}'); e(f'  v_and_b32 v{tC}, 7, v0'); e(f'  v_xor_b32 v{tB}, v{tB}, v{tC}')
e(f'  v_lshl_add_u32 v{vWA}, v{tB}, 4, v{tA}')
e(f'  s_lshr_b32 s{sT[0]}, s{sW}, 2'); e(f'  s_lshl_b32 s{sT[0]}, s{sT[0]}, 5')
e(f'  s_lshl_b32 s{sT[1]}, s{sH}, 4'); e(f'  s_add_u32 s{sT[0]}, s{sT[0]}, s{sT[1]}')
e(f'  s_and_b32 s{sT[1]}, s{sW}, 2'); e(f'  s_lshl_b32 s{sT[1]}, s{sT[1]}, 1'); e(f'  s_add_u32 s{sT[0]}, s{sT[0]}, s{sT[1]}')
e(f'  s_mul_i32 s{sWB}, s{sT[0]}, 1152')
e(f'  s_lshl_b32 s{sWL}, s{sW}, 10')
e(f'  s_cmp_lt_u32 s{sW}, 4'); e('  s_cselect_b64 vcc, -1, 0')
EARLY_AT = len(L)
e(f'  s_bfe_u32 s{sPR}, s2, 0x10002')
e(f'  s_bfe_u32 s{sPC}, s2, 0x10001')
e(f'  s_and_b32 s{sKR}, s2, 1'); e(f'  s_lshl_b32 s{sKR}, s{sKR}, 2')
e(f'  s_lshr_b32 s{sT[0]}, s2, 6'); e(f'  s_add_u32 s{sKR}, s{sKR}, s{sT[0]}')
e(f'  s_bfe_u32 s{sKC}, s2, 0x30003')
e(f'  s_mul_i32 s{sTR}, s{sKR}, 14'); e(f'  s_add_i32 s{sTR}, s{sTR}, -6'); e(f'  s_max_i32 s{sKR}, s{sTR}, -4')
e(f'  s_mul_i32 s{sKC}, s{sKC}, 14'); e(f'  s_add_i32 s{sKC}, s{sKC}, -6')
e(f'  s_lshr_b32 s{sU}, s{sW}, 1'); e(f'  s_add_u32 s{sU}, s{sU}, 2'); e(f'  s_and_b32 s{sU}, s{sU}, 3')
e(f'  s_sub_u32 s{sMR}, 0, s{sPR}'); e(f'  s_mul_i32 s{sAR}, s{sPR}, 224')
e(f'  s_sub_u32 s{sMC}, 0, s{sPC}'); e(f'  s_mul_i32 s{sAC}, s{sPC}, 224')
e(f'  v_and_b32 v{tA}, 7, v{vn}')
e(f'  s_mul_i32 s{sT[0]}, s{sH}, 7'); e(f'  s_add_i32 s{sT[0]}, s{sT[0]}, s{sKC}')
e(f'  v_cmp_lt_u32 s[{sT[2]}:{sT[3]}], 6, v{tA}')
e(f'  v_add_u32 v{tA}, s{sT[0]}, v{tA}')
e(f'  v_max_i32 v{vCT}, 0, v{tA}')
e(f'  v_add3_u32 v{tA}, v{tA}, v{vCT}, 6')
e(f'  v_xor_b32 v{tA}, s{sMC}, v{tA}'); e(f'  v_add_u32 v{tA}, s{sAC}, v{tA}')
e(f'  v_subrev_u32 v{vCT}, s{sKC}, v{vCT}')
e(f'  v_mul_u32_u24 v{tA}, 384, v{tA}'); e(f'  v_lshl_add_u32 v{tA}, v{vg}, 4, v{tA}')
e(f'  s_lshl_b32 s{sT[0]}, s{sU}, 2'); e(f'  s_add_i32 s{sT[0]}, s{sT[0]}, -2')
e(f'  s_mov_b32 s{sT[1]}, 86016')
e(f'  v_lshrrev_b32 v{tB}, 3, v{vn}'); e(f'  v_add_u32 v{tB}, s{sT[0]}, v{tB}')
e(f'  v_mov_b32 v{tC}, 0x80000000')
for t in range(2):
    if t: e(f'  v_add_u32 v{tB}, 2, v{tB}')
    e(f'  v_cmp_gt_i32 s[{sINV[t]}:{sINV[t]+1}], 0, v{tB}')
    e(f'  v_add_u32 v{vO[t]}, s{sTR}, v{tB}')
    e(f'  v_max_i32 v{vRR[t]}, 0, v{vO[t]}')
    e(f'  v_add3_u32 v{vO[t]}, v{vO[t]}, v{vRR[t]}, 6')
    e(f'  s_or_b64 s[{sINV[t]}:{sINV[t]+1}], s[{sINV[t]}:{sINV[t]+1}], s[{sT[2]}:{sT[3]}]')
    e(f'  v_xor_b32 v{vO[t]}, s{sMR}, v{vO[t]}'); e(f'  v_add_u32 v{vO[t]}, s{sAR}, v{vO[t]}')
    e(f'  v_subrev_u32 v{vRR[t]}, s{sKR}, v{vRR[t]}')
    e(f'  v_mad_u32_u24 v{vO[t]}, v{vO[t]}, s{sT[1]}, v{tA}')
    e(f'  v_cndmask_b32 v{vRR[t]}, v{vRR[t]}, v{tC}, s[{sINV[t]}:{sINV[t]+1}]')
    e(f'  v_cndmask_b32 v{vO[t]}, v{vO[t]}, v{tC}, s[{sINV[t]}:{sINV[t]+1}]')

e('  s_waitcnt lgkmcnt(0)')
tsp()
el(srd(88, 6, 192*576*2))
if 'notlb' not in OPT:
    e(f'  s_cmp_lg_u32 s{sW}, 5'); e('  s_cbranch_scc1 MK_ntlb')
    e(f'  s_max_i32 s{sT[0]}, s{sTR}, 0'); e(f'  s_lshl_b32 s{sT[0]}, s{sT[0]}, 1'); e(f'  s_sub_u32 s{sT[1]}, 184, s{sT[0]}')
    e(f'  s_cmp_eq_u32 s{sPR}, 0'); e(f'  s_cselect_b32 s{sT[0]}, s{sT[0]}, s{sT[1]}'); e(f'  s_mul_i32 s{sT[0]}, s{sT[0]}, 86016')
    for k in range(3):
        e(f'  s_load_dword s94, s[4:5], s{sT[0]}'); e(f'  s_load_dword s95, s[10:11], s{sT[0]}')
        if k < 2: e(f'  s_add_u32 s{sT[0]}, s{sT[0]}, {20*86016 - 64}')
    e(f'  s_load_dword s94, s[84:85], 128'); e(f'  s_load_dword s95, s[86:87], 0x20000')
    e('MK_ntlb:')

def w_pieces(c, partner=0):
    return [[f'  s_add_i32 m0, s{sWL}, {CH[c] + mat*24576 + j*8192 + partner*4096}',
             f'  s_add_i32 s{sVO}, s{sWB}, {(j*64 + partner*32)*1152 + mat*384 + c*128}',
             f'  buffer_load_dwordx4 v{vWA}, {RW}, s{sVO} offen lds'] for mat in range(2) for j in range(3)]
def q_loads():
    return [f'  buffer_load_dwordx4 {V(XQ+24*t+4*s_)}, v{vO[t]}, {RX}, 0 offen offset:{64*s_}{NT}' for t in (1, 0) for s_ in range(6)]
def q_stage():
    return [[f'  s_add_u32 m0, s{sST}, {(1-t)*24576 + (3*qr + l)*1024 - 128*l}', '  s_nop 0',
             f'  buffer_load_dwordx4 v{QA[qr]}, {RX}, s{sQR[2*t+qr]} offen offset:{128*l}{NT} lds'] for t in (1, 0) for qr in range(2) for l in range(3)]
def q_reads():
    return ([f'  v_xor_b32 v{tA}, 64, v{vQR}'] +
            [f'  ds_read_b128 {V(XQ+24*t+4*s_)}, v{(vQR, tA)[s_ % 2]} offset:{(1-t)*24576 + 1024*(s_//2)}' for t in range(2) for s_ in range(6)])
SCH = {'O': OPT.get('so', 'A:W0,B:V0,0:W2+V2,4:q6,Z:q6'), 'Y': OPT.get('sy', 'C:W1+V1,1:q6,2:q6')}
PLAN = {}; ISS = {'O': [], 'Y': []}
for r_, sp in SCH.items():
    qi = 0
    for part in sp.split(','):
        pos, items = part.split(':')
        for it in items.split('+'):
            lst = PLAN.setdefault((r_, pos), [])
            if it[0] == 'W': lst += [(f'W{it[1]}', p) for p in w_pieces(int(it[1]))]
            elif it[0] == 'V': lst += [(f'W{it[1]}', p) for p in w_pieces(int(it[1]), 1 if r_ == 'O' else -1)]
            elif it in 'pr':
                assert pos == 'A'
                lst.append(('t', [f'  v_min_u32 v253, 2, v{vg}', f'  v_mad_u32_u24 v253, v253, s{sT[8]}, v{vO[1 if it == "p" else 0]}',
                                  f'  buffer_load_dword v{252 if it == "p" else 251}, v253, {RX}, 0 offen']))
            else:
                for _ in range(int(it[1:])):
                    if r_ == 'Y' and qi >= 6: lst.append(('b', [f'  s_cmp_eq_u32 s{sU}, 0', f'  s_cbranch_scc1 QB{qi}', q_loads()[qi], f'QB{qi}:']))
                    elif r_ == 'O': lst.append(('q', q_stage()[qi])); assert pos in ('34Z' if qi < 6 else 'Z') and opt('sya', 0) == 0
                    else: lst.append(('q', [q_loads()[qi]]))
                    qi += 1
    assert qi == 12
lbl = [0]
def role_lines(r_, lines):
    lbl[0] += 1
    return [f'  s_cbranch_vcc{"z" if r_ == "O" else "nz"} SL{lbl[0]}'] + list(lines) + [f'SL{lbl[0]}:']
def role2_lines(lo, ly):
    lbl[0] += 1; n = lbl[0]
    return [f'  s_cbranch_vccz SL{n}'] + list(lo) + [f'  s_branch SM{n}', f'SL{n}:'] + list(ly) + [f'SM{n}:']
def sched_items(pos):
    o, y = list(PLAN.get(('O', pos), [])), list(PLAN.get(('Y', pos), []))
    out = []
    while o or y: out.append((o.pop(0) if o else None, y.pop(0) if y else None))
    return out
def emit_item(it):
    o, y = it
    if o: ISS['O'].append(o[0])
    if y: ISS['Y'].append(y[0])
    if o and y and o == y: el(o[1])
    elif o and y: el(role2_lines(o[1], y[1]))
    elif o: el(role_lines('O', o[1]))
    else: el(role_lines('Y', y[1]))
def emit_pos(pos):
    o, y = PLAN.get(('O', pos), []), PLAN.get(('Y', pos), [])
    k = 0
    while k < len(o) and k < len(y) and o[k] == y[k]: emit_item((o[k], y[k])); k += 1
    for r_, x in (('O', o[k:]), ('Y', y[k:])):
        if x:
            ISS[r_] += [i[0] for i in x]; el(role_lines(r_, sum((i[1] for i in x), [])))
def after(r_, tag):
    l = ISS[r_]
    if tag not in l: return len(l) if tag == 'W0' else 63
    return min(63, len(l) - 1 - max(i for i, t in enumerate(l) if t == tag))

if 'nowpf' not in OPT:
    WPW = opt('wpw', 4)
    e(f'  s_lshr_b32 s{sT[0]}, s{sW}, 1'); e(f'  s_cmp_lg_u32 s{sT[0]}, {WPW // 2}'); e('  s_cbranch_scc1 MK_nwpf')
    e(f'  s_cmp_eq_u32 s{sW}, {WPW}'); e(f'  s_cselect_b32 s{sT[0]}, 54, 18')
    e('  s_cselect_b32 s12, s6, s8'); e('  s_cselect_b32 s13, s7, s9'); e('  s_and_b32 s13, s13, 0xffff')
    e(f'  s_lshr_b32 s{sT[1]}, s2, 3'); e(f'  s_mul_i32 s{sT[1]}, s{sT[1]}, s{sT[0]}'); e(f'  s_lshl_b32 s{sVO}, s{sT[1]}, 7')
    e(f'  s_lshl_b32 s{sT[0]}, s{sT[0]}, 7'); e(f'  s_add_u32 s14, s{sVO}, s{sT[0]}'); e('  s_mov_b32 s15, 0x00020000')
    e('  v_lshlrev_b32 v23, 7, v0')
    e(f'  buffer_load_dword v254, v23, s[12:15], s{sVO} offen')
    e('MK_nwpf:')
el(srd(12, 4, X_BYTES))
e(f'  s_movk_i32 s{sT[8]}, 112')
if 'noearly' in OPT: emit_pos('A')
else:
    assert ('Y', 'A') not in PLAN
    it = PLAN[('O', 'A')]; ISS['O'] += [i[0] for i in it]
    L[EARLY_AT:EARLY_AT] = role_lines('O', ['  s_waitcnt lgkmcnt(0)'] + srd(88, 6, 192*576*2) + sum((i[1] for i in it), []))
tsp()
el(srd(16, 10, X_BYTES)); el(srd(4, 8, 192*192*2)); el(srd(8, 84, 256)); el(srd(20, 86, WS_BYTES if TS else 73728))
e(f'  v_lshlrev_b32 v{vL0}, 4, v0')
e(f'  v_add_u32 v{vL1}, {HALF}, v{vL0}')
e(f'  s_and_b32 s{sW4}, s{sW}, 3'); e(f'  s_lshl_b32 s{sW4}, s{sW4}, 10')
e(f'  v_bfe_u32 v{tA}, v{vn}, 1, 3'); e(f'  v_xor_b32 v{tA}, v{tA}, v{vg}')
e(f'  v_lshlrev_b32 v{tB}, 7, v{vn}'); e(f'  v_lshl_add_u32 v{tB}, v{tA}, 4, v{tB}')
e(f'  s_lshr_b32 s{sT[0]}, s{sW}, 2'); e(f'  s_mul_i32 s{sT[1]}, s{sT[0]}, {6*2048}'); e(f'  s_add_u32 s{sT[1]}, s{sT[1]}, {CH[0]}')
e(f'  v_add_u32 v{vMA[0]}, s{sT[1]}, v{tB}'); e(f'  v_xor_b32 v{vMA[1]}, 64, v{vMA[0]}')
e(f'  s_mul_i32 s{sT[1]}, s{sW4}, 6'); e(f'  s_add_u32 s{sT[1]}, s{sT[1]}, {24576 + CH[0]}')
e(f'  v_add_u32 v{vMB[0]}, s{sT[1]}, v{tB}'); e(f'  v_xor_b32 v{vMB[1]}, 64, v{vMB[0]}')
F = []; f_ = F.append
f_(f'  s_lshr_b32 s{sT[0]}, s{sW}, 2'); f_(f'  s_mul_i32 s{sT[0]}, s{sT[0]}, 3072'); f_(f'  s_mul_i32 s{sT[1]}, s{sW4}, 18')
f_(f'  s_add_u32 s{sT[0]}, s{sT[0]}, s{sT[1]}'); f_(f'  s_sub_u32 s{sT[0]}, {(71-14)*1024}, s{sT[0]}')
f_(f'  v_add_u32 v{vMW[0]}, s{sT[0]}, v{vL0}')
f_(f'  s_lshl_b32 s{sT[0]}, s{sKR}, 1'); f_(f'  s_xor_b32 s{sT[0]}, s{sT[0]}, s{sMR}')
f_(f'  s_mul_i32 s{sT[1]}, s{sPR}, 222'); f_(f'  s_add_i32 s{sXB}, s{sT[0]}, s{sT[1]}')
f_(f'  s_mul_i32 s{sXB}, s{sXB}, 86016')
f_(f'  s_mul_i32 s{sGS}, s{sPR}, {-2*344064}'); f_(f'  s_add_i32 s{sGS}, s{sGS}, 344064')
f_(f'  s_lshr_b32 s{sGmin}, s{sKR}, 31'); f_(f'  s_lshl_b32 s{sGmin}, s{sGmin}, 1')
f_(f'  s_lshl_b32 s{sM0X}, s{sW4}, 2')
f_(f'  s_add_u32 s{sM0X3}, s{sM0X}, 3072'); f_(f'  s_min_u32 s{sM0X3}, s{sM0X3}, {14*1024}')
f_(f'  s_mul_i32 s{sT[2]}, s{sPR}, 172032'); f_(f'  s_sub_u32 s{sT[3]}, 172032, s{sT[2]}')
f_(f'  v_mov_b32 v{tC}, s{sT[2]}'); f_(f'  v_mov_b32 v{tD}, s{sT[3]}')
for b in range(960): assert (b * 2731) >> 16 == b // 24
for j in range(4):
    d = vD[j]
    if j < 3:
        f_(f'  s_lshr_b32 s{sT[0]}, s{sM0X}, 4'); f_(f'  s_add_u32 s{sT[0]}, s{sT[0]}, {64*j}')
    else: f_(f'  s_lshr_b32 s{sT[0]}, s{sM0X3}, 4')
    f_(f'  v_add_u32 v{tA}, s{sT[0]}, v0')
    f_(f'  v_mul_u32_u24 v{d}, 2731, v{tA}'); f_(f'  v_lshrrev_b32 v{d}, 16, v{d}')
    f_(f'  v_cmp_le_u32 {MSK}, 20, v{d}')
    f_(f'  v_mul_u32_u24 v{tB}, 24, v{d}'); f_(f'  v_sub_u32 v{tA}, v{tA}, v{tB}')
    f_(f'  v_subrev_u32 v{tB}, 20, v{d}')
    f_(f'  v_cndmask_b32 v{d}, v{d}, v{tB}, {MSK}')
    f_(f'  v_bfe_u32 v{tB}, v{d}, 1, 3'); f_(f'  v_xor_b32 v{tA}, v{tA}, v{tB}')
    f_(f'  v_cndmask_b32 v{tB}, v{tC}, v{tD}, {MSK}')
    f_(f'  v_lshl_add_u32 v{tA}, v{tA}, 4, v{tB}')
    f_(f'  v_add_u32 v{d}, s{sKC}, v{d}'); f_(f'  v_max_i32 v{d}, 0, v{d}'); f_(f'  v_lshlrev_b32 v{d}, 1, v{d}')
    f_(f'  v_xor_b32 v{d}, s{sMC}, v{d}'); f_(f'  v_add_u32 v{d}, s{sAC}, v{d}')
    f_(f'  v_mul_u32_u24 v{d}, 384, v{d}'); f_(f'  v_add_u32 v{d}, v{d}, v{tA}')
f_(f'  s_add_u32 s{sM0X}, s{sM0X}, {XB}'); f_(f'  s_add_u32 s{sM0X3}, s{sM0X3}, {XB}')
for dst, add in ((sT[0], -2), (sA2, 0)):
    f_(f'  s_lshl_b32 s{dst}, s{sU}, 2')
    if add: f_(f'  s_add_i32 s{dst}, s{dst}, {add}'); f_(f'  s_max_i32 s{dst}, s{dst}, 0')
    f_(f'  s_add_i32 s{dst}, s{dst}, s{sTR}'); f_(f'  s_max_i32 s{dst}, s{dst}, 0'); f_(f'  s_sub_i32 s{dst}, s{dst}, s{sKR}')
f_(f'  s_sub_u32 s{sT[0]}, s{sA2}, s{sT[0]}'); f_(f'  s_lshr_b32 s{sT[0]}, s{sT[0]}, 1')
f_(f'  s_mul_i32 s{sD0}, s{sT[0]}, -8'); f_(f'  s_add_i32 s{sD0}, s{sD0}, 7')
f_(f'  s_add_i32 s{sA2}, s{sA2}, -1')
f_(f'  s_add_i32 s{sR0}, s{sA2}, s{sD0}'); f_(f'  s_mul_i32 s{sD0}, s{sD0}, {ROW}')
f_(f'  s_lshl_b32 s{sT[1]}, s{sH}, 2')
f_(f'  s_mul_i32 s{sT[0]}, s{sA2}, {ROW}'); f_(f'  s_add_i32 s{sT[0]}, s{sT[0]}, {XB}')
f_(f'  v_add_u32 v{tA}, s{sT[1]}, v{vn}')
f_(f'  v_bfe_u32 v{tB}, v{tA}, 1, 3'); f_(f'  v_xor_b32 v{tB}, v{tB}, v{vg}')
f_(f'  v_mul_u32_u24 v{tA}, 384, v{tA}'); f_(f'  v_lshl_add_u32 v{tA}, v{tB}, 4, v{tA}')
f_(f'  v_add_u32 v{vSe}, s{sT[0]}, v{tA}'); f_(f'  v_xor_b32 v{vSo}, 64, v{vSe}')
f_(f'  v_lshrrev_b32 v{tA}, 2, v{vn}'); f_(f'  v_lshl_add_u32 v{tA}, v{vg}, 2, v{tA}'); f_(f'  v_add_u32 v{tA}, s{sT[1]}, v{tA}')
f_(f'  v_bfe_u32 v{tB}, v{tA}, 1, 3')
f_(f'  v_and_b32 v{tC}, 2, v{vn}'); f_(f'  v_lshlrev_b32 v{tC}, 1, v{tC}'); f_(f'  v_xor_b32 v{tB}, v{tB}, v{tC}')
f_(f'  v_mul_u32_u24 v{tA}, 384, v{tA}'); f_(f'  v_lshl_add_u32 v{tA}, v{tB}, 4, v{tA}')
f_(f'  v_and_b32 v{tB}, 1, v{vn}'); f_(f'  v_lshl_add_u32 v{tA}, v{tB}, 3, v{tA}')
f_(f'  v_add_u32 v{vP[0]}, s{sT[0]}, v{tA}')
for k in range(1, 4): f_(f'  v_xor_b32 v{vP[k]}, {16*k}, v{vP[0]}')
f_(f'  v_lshl_add_u32 v{tA}, v{vg}, 2, s{sT[1]}'); f_(f'  v_sub_u32 v{vCT}, v{tA}, v{vCT}')
f_(f'  v_cndmask_b32 v{vCT}, v{vCT}, 64, s[{sINV[1]}:{sINV[1]+1}]')
f_(f'  v_add_u32 v{SB0[0]}, s{sD0}, v{vSe}'); f_(f'  v_add_u32 v{SB0[1]}, s{sD0}, v{vSo}')
for k in range(4): f_(f'  v_add_u32 v{PB0[k]}, s{sD0}, v{vP[k]}')
f_(f'  s_mov_b32 s{sSC}, {SCALE}')
o2 = [f'  v_lshrrev_b32 v{tD}, 4, v{vL0}', f'  v_lshrrev_b32 v{tA}, 3, v{tD}', f'  s_mul_i32 s{sT[4]}, s{sH}, 7', f'  s_add_i32 s{sT[4]}, s{sT[4]}, s{sKC}',
      f'  v_cmp_lt_u32 {MSK}, 6, v{tA}', f'  v_add_u32 v{tA}, s{sT[4]}, v{tA}', f'  v_max_i32 v{tB}, 0, v{tA}', f'  v_add3_u32 v{tA}, v{tA}, v{tB}, 6',
      f'  v_xor_b32 v{tA}, s{sMC}, v{tA}', f'  v_add_u32 v{tA}, s{sAC}, v{tA}', f'  v_mul_u32_u24 v{tA}, 384, v{tA}',
      f'  v_and_b32 v{tB}, 7, v{tD}', f'  v_xor_b32 v{tB}, v{tB}, v{vg}', f'  v_lshl_add_u32 v{tA}, v{tB}, 4, v{tA}', f'  v_mov_b32 v{tB}, 0x80000000',
      f'  v_cndmask_b32 v{QA[0]}, v{tA}, v{tB}, {MSK}', f'  v_xor_b32 v{QA[1]}, 64, v{QA[0]}',
      f'  s_lshl_b32 s{sT[0]}, s{sU}, 2', f'  s_add_i32 s{sT[0]}, s{sT[0]}, s{sTR}']
for k in range(4):
    d = sQR[k]
    o2 += [f'  s_lshl_b32 s{d}, s{sT[0]}, 1', f'  s_add_i32 s{d}, s{d}, {2*(k-2) + 6}', f'  s_xor_b32 s{d}, s{d}, s{sMR}', f'  s_add_i32 s{d}, s{d}, s{sAR}', f'  s_mul_i32 s{d}, s{d}, 86016']
o2 += [f'  s_mul_i32 s{sST}, s{sW4}, 6', f'  s_add_u32 s{sST}, s{sST}, {SO}',
       f'  v_bfe_u32 v{tA}, v{vn}, 1, 3', f'  v_xor_b32 v{tA}, v{tA}, v{vg}', f'  v_lshlrev_b32 v{tB}, 7, v{vn}', f'  v_lshl_add_u32 v{tB}, v{tA}, 4, v{tB}',
       f'  v_lshrrev_b32 v{tA}, 3, v{vn}', f'  v_lshl_add_u32 v{tA}, v{tA}, 11, v{tB}', f'  v_add_u32 v{vQR}, s{sST}, v{tA}']
OLATE = opt('olate', 1)
F.insert(0, f'  v_mov_b32 v{vNB}, 0'); F.insert(0, f'  v_mov_b32 v{vNA}, 0')
if OLATE == 0: F += role_lines('O', o2); o2 = []
NPRE = opt('npre', 999)
NB1 = opt('nb1', 40)
el(F[:NB1]); emit_pos('B')
if OLATE == 2:
    assert NB1 in (2, 8)
    el(role_lines('Y', F[NB1:])); o2 = F[NB1:] + o2
else: el(F[NB1:])
F = []

def dma_x(G):
    out = []
    if G < 2: out += [f'  s_max_u32 s{sVO}, s{sGmin}, {G}', f'  s_mul_i32 s{sVO}, s{sVO}, s{sGS}']
    else: out.append(f'  s_mul_i32 s{sVO}, s{sGS}, {G}')
    out.append(f'  s_add_i32 s{sVO}, s{sVO}, s{sXB}')
    for j in range(4):
        out.append(f'  s_add_u32 m0, s{sM0X}, {G*15360 + j*1024}' if j < 3 else f'  s_add_u32 m0, s{sM0X3}, {G*15360}')
        out.append('  s_nop 0')
        out.append(f'  buffer_load_dwordx4 v{vD[j]}, {RX}, s{sVO} offen{NT} lds')
    return out
def dma_xs(Gs): return sum((dma_x(G) for G in Gs), [])
SPECIAL = [(1, 7), (1, 0), (0, 7), (0, 1), (0, 0)]
def bias_init(tmp, MID, TL):
    out = []; o = out.append
    ninf, tt = tmp, tmp+1
    sp = [x for x in SPECIAL if x[0] in TL]
    o(f'  v_mov_b32 v{ninf}, 0xff800000')
    for i in range(4): o(f'  v_add_u32 v{tt+i}, {i}, v{vCT}')
    for i in range(4): o(f'  v_cmp_gt_u32 s[{sT[2+2*i]}:{sT[3+2*i]}], 7, v{tt+i}')
    for q, (t, jj) in enumerate(sp):
        slot = jj + 2*t
        if slot == 0: o(f'  v_sub_u32 v{tt+4+q}, s{sR0}, v{vRR[t]}')
        else:
            o(f'  s_add_i32 s{sT[0]}, s{sA2}, {slot-1}'); o(f'  v_sub_u32 v{tt+4+q}, s{sT[0]}, v{vRR[t]}')
    for i in range(4): o(f'  v_cndmask_b32 v{MID+i}, v{ninf}, 0, s[{sT[2+2*i]}:{sT[3+2*i]}]')
    for q in range(len(sp)): o(f'  v_cmp_gt_u32 s[{sT[2*q]}:{sT[2*q+1]}], 7, v{tt+4+q}')
    for q, (t, jj) in enumerate(sp):
        for i in range(4): o(f'  v_cndmask_b32 v{SACC[t]+4*jj+i}, v{ninf}, v{MID+i}, s[{sT[2*q]}:{sT[2*q+1]}]')
    return out

tsp()
emit_pos('C')
tsp()
vLN = 107
def n_loads():
    e(f'  v_lshrrev_b32 v{vLN}, 4, v{vL0}')
    e(f'  s_cmp_lt_u32 s2, 72'); e('  s_cbranch_scc0 MK_np1')
    e(f'  s_mul_hi_u32 s{sT[8]}, s2, 0x15555556'); e(f'  s_lshl_b32 s{sT[8]}, s{sT[8]}, 6')
    e(f'  s_mul_i32 s{sT[9]}, s{sW}, {16*384}'); e(f'  s_add_u32 s{sVO}, s{sT[8]}, s{sT[9]}')
    e(f'  v_lshrrev_b32 v{MPK}, 2, v{vLN}'); e(f'  v_mul_u32_u24 v{MPK}, 384, v{MPK}'); e(f'  v_and_b32 v{MPK+1}, 3, v{vLN}'); e(f'  v_lshl_add_u32 v{MPK}, v{MPK+1}, 4, v{MPK}')
    e(f'  s_add_u32 m0, s{sWL}, {WOL}'); e('  s_nop 0')
    e(f'  buffer_load_dwordx4 v{MPK}, {RWO}, s{sVO} offen lds')
    e(f'  s_mul_i32 s{sT[9]}, s{sW4}, 6'); e(f'  s_add_u32 s{sVO}, s{sT[8]}, s{sT[9]}')
    e(f'  s_add_u32 m0, s{sW4}, {WOL + 8192}'); e(f'  s_add_u32 s{sVO}, s{sVO}, {8*16*384}')
    e(f'  buffer_load_dwordx4 v{MPK}, {RWO}, s{sVO} offen lds')
    e('MK_np1:')
    e(f'  s_sub_u32 s{sPROD}, s2, 72'); e(f'  s_lshr_b32 s{sPROD}, s{sPROD}, 31')
    e(f'  s_lshr_b32 s{sPROD}, s{sPROD}, s{sU}')
    e(f'  s_cmp_eq_u32 s{sPROD}, 0'); e('  s_cbranch_scc1 MK_np3')
    e(f'  s_mul_hi_u32 s{sT[8]}, s2, 0x15555556'); e(f'  s_mul_i32 s{sT[9]}, s{sT[8]}, 12'); e(f'  s_sub_u32 s{sT[9]}, s2, s{sT[9]}')
    e(f'  s_cmp_ge_u32 s{sT[9]}, 6'); e(f'  s_cselect_b32 s{sT[5]}, 1, 0'); e(f'  s_mul_i32 s{sVO}, s{sT[5]}, 6'); e(f'  s_sub_u32 s{sT[9]}, s{sT[9]}, s{sVO}')
    e(f'  v_lshrrev_b32 v{MPK+2}, 2, v{vn}'); e(f'  v_and_b32 v{MPK+1}, 3, v{vn}')
    e(f'  v_lshl_add_u32 v{vNB}, v{vg}, 3, v{MPK+2}'); e(f'  v_lshlrev_b32 v{vNB}, 6, v{vNB}'); e(f'  v_lshl_add_u32 v{vNB}, v{MPK+1}, 4, v{vNB}')
    e(f'  s_lshl_b32 s{sT[5]}, s{sT[5]}, 3'); e(f'  s_add_u32 s{sT[5]}, s{sT[5]}, {WOL}'); e(f'  v_add_u32 v{vNB}, s{sT[5]}, v{vNB}')
    e(f'  s_lshr_b32 s{sT[8]}, s{sT[9]}, 1'); e(f'  s_lshl_b32 s{sT[8]}, s{sT[8]}, 6')
    e(f'  s_and_b32 s{sT[9]}, s{sT[9]}, 1'); e(f'  s_lshl_b32 s{sT[9]}, s{sT[9]}, 4'); e(f'  s_add_u32 s{sT[8]}, s{sT[8]}, s{sT[9]}')
    e(f'  v_lshrrev_b32 v{MPK}, 1, v{MPK+2}'); e(f'  v_lshlrev_b32 v{MPK}, 5, v{MPK}')
    e(f'  v_and_b32 v{MPK+2}, 1, v{MPK+2}'); e(f'  v_lshl_add_u32 v{MPK}, v{MPK+2}, 2, v{MPK}')
    e(f'  v_add3_u32 v{MPK}, v{MPK}, v{MPK+1}, s{sT[8]}')
    e(f'  v_mul_u32_u24 v{MPK}, 1152, v{MPK}'); e(f'  v_lshl_add_u32 v{vNA}, v{vg}, 4, v{MPK}')
    e(f'  s_mul_i32 s{sVO}, s{sH}, 9216')
    for kk in range(6):
        e(f'  buffer_load_dwordx4 {V(136+4*kk)}, v{vNA}, {RW}, s{sVO} offen offset:{768+64*kk}')
    e('MK_np3:')
def m_reads(kk):
    rb = 184 + 36*(kk % 2); co = (kk // 2) * 49152
    lo = co if co < 49152*2 else 0
    return ([f'  ds_read_b128 {V(rb+24+4*b)}, v{vMB[kk % 2]} offset:{2048*b}' for b in range(3)] +
            [f'  ds_read_b128 {V(rb+4*a)}, v{vMA[kk % 2]} offset:{2048*a}' for a in range(6)])
def chunk_sync(c, lg):
    wo_, wy_ = after('O', f'W{c}'), after('Y', f'W{c}')
    x = ' lgkmcnt(0)' if lg else ''
    def w(n, prod):
        if c == 2 and prod and ISS['Y'].count('b'):
            return [f'  s_cmp_lg_u32 s{sU}, 0', '  s_cbranch_scc1 MK_c2', f'  s_waitcnt vmcnt({n - ISS["Y"].count("b")})', 'MK_c2:', f'  s_waitcnt vmcnt({n}){x}']
        if c != 1 or n == 63: return [f'  s_waitcnt vmcnt({n}){x}']
        lbl[0] += 1; k = lbl[0]; o = []
        if prod: o += [f'  s_cmp_lg_u32 s{sPROD}, 0', f'  s_cbranch_scc1 CA{k}']
        o += ['  s_cmp_lt_u32 s2, 72', f'  s_cbranch_scc1 CB{k}', f'  s_waitcnt vmcnt({n})', f'CB{k}:']
        if prod: o += [f'  s_waitcnt vmcnt({n+2})', f'CA{k}:', f'  s_waitcnt vmcnt({n+8}){x}']
        else: o += [f'  s_waitcnt vmcnt({n+2}){x}']
        return o
    if c == 2:
        wo_, wy_ = min(wo_, len(ISS['O']) - N_AT['O']), min(wy_, len(ISS['Y']) - N_AT['Y'])
    assert c != 1 or 'b' not in ISS['Y']
    if wo_ == wy_ and c != 2: el(w(wo_, True))
    else: el(role2_lines(w(wo_, False), w(wy_, True)))
    e('  s_barrier')
    tsp()
N_AT = {}
FPG = opt('fpg', 4)
chunk_sync(0, False)
el(m_reads(0))
SYA = opt('sya', 0)
for kk in range(4):
    odd = kk % 2 == 1
    extra = sched_items(str(kk)); ne = len(extra); cnt = 0
    rb = 184 + 36*(kk % 2)
    nx = m_reads(kk+1)
    issued = 0
    for a in range(6):
        if odd and a == SYA:
            chunk_sync(kk // 2 + 1, True)
            for r in vMA + vMB: e(f'  v_add_u32 v{r}, 49152, v{r}')
        if not (odd and a >= SYA): e(f'  s_waitcnt lgkmcnt({5 - a + issued})')
        for b in range(3):
            acc = MACC + 12*a + 4*b
            e(mfma(acc, rb+4*a, rb+24+4*b, None if kk == 0 else acc))
            slots = FPG
            if odd:
                for _ in range(1 if SYA <= 3 else 2):
                    if nx and a >= SYA and (b < 2 or SYA >= 2): e(nx.pop(0)); slots -= 1
            elif nx and b < 2 and a >= 1:
                e(nx.pop(0)); issued += 1; slots -= 1
            cnt += 1
            while extra and (ne - len(extra)) * 18 < cnt * ne: emit_item(extra.pop(0)); slots = 0
            el(F[:max(slots, 0)]); F = F[max(slots, 0):]
    el(nx)
    assert not extra
    if kk == opt('olk', 2) and o2: el(role_lines('O', o2))
    if kk == 0: n_loads(); N_AT.update(O=len(ISS['O']), Y=len(ISS['Y']))
print('leftover F', len(F), file=sys.stderr); el(F); F = []
assert ISS['Y'].count('q') <= 6
e(f'  s_cmp_eq_u32 s{sPROD}, 0'); e('  s_cbranch_scc1 MK_np2')
e('  s_waitcnt lgkmcnt(0)')
for k2 in range(6):
    for hf in range(2):
        e(f'  ds_read_b64_tr_b16 {V(MPK+4*k2+2*hf, 2)}, v{vNB} offset:{(32*k2 + 4*hf)*64}')
e('  s_setprio 3'); e('  s_waitcnt lgkmcnt(0)')
for kk in range(6):
    e(mfma(128, 136+4*kk, MPK+4*kk, None if kk == 0 else 128))
e(f'  s_lshl_b32 s{sVO}, s2, 10'); e(f'  s_lshl_b32 s{sT[8]}, s{sH}, 3'); e(f'  s_add_u32 s{sVO}, s{sVO}, s{sT[8]}')
e('  s_nop 5')
for r in range(2): e(f'  v_cvt_pk_bf16_f32 v{132+r}, v{128+2*r}, v{129+2*r}')
e(f'  buffer_store_dwordx2 v[132:133], v{vL0}, {RWS}, s{sVO} offen sc1')
NY_AT_STORE = len(ISS['Y'])
e('  s_setprio 0')
e('MK_np2:')
r5 = m_reads(5)
el(r5[:5]); late = r5[5:]
extra = sched_items('4'); ne = len(extra); cnt = 0
pend = []; nw = 0; wq = []
BWF = 0
for fi in range(9):
    a3, b = fi // 3, fi % 3
    if fi == 0: e('  s_waitcnt lgkmcnt(5)')
    if fi == 2: e('  s_waitcnt lgkmcnt(0)')
    for kk in (4, 5):
        rb = 184 + 36*(kk % 2)
        if fi == 0 and kk == 5: e('  s_waitcnt lgkmcnt(2)')
        for a in (2*a3, 2*a3+1):
            acc = MACC + 12*a + 4*b
            e(mfma(acc, rb+4*a, rb+24+4*b, acc)); cnt += 1
            if late: e(late.pop(0))
            k = 0
            while wq and fi >= BWF and k < 1: e(wq.pop(0)); k += 1
            while pend and pend[0][0] <= cnt and k < 2:
                l = pend.pop(0)[1]
                if 'ds_write' in l and (fi < BWF or wq): wq.append(l)
                else: e(l); k += 1
            while extra and (ne - len(extra)) * 36 < cnt * ne: emit_item(extra.pop(0))
    o = MPK + 4*(fi % 6)
    for a in range(2):
        acc = MACC + 12*(2*a3 + a) + 4*b
        for i in range(2): pend.append((cnt + 5, f'  v_cvt_pk_bf16_f32 v{o+2*a+i}, v{acc+2*i}, v{acc+2*i+1}'))
    pend.append((cnt + 5, f'  ds_write_b128 v{vMW[0]}, {V(o)} offset:{1024*(2-a3) + 6144*(2-b)}'))
assert not extra
tsp()
assert not wq
for i, (_, l) in enumerate(pend):
    if len(pend) - i == 5: e('  s_nop 3')
    e(l)
e('  s_waitcnt lgkmcnt(0)')
e('  s_barrier')
tsp()
NXY = opt('nxy', 2)
XH = (9, 8, 7, 6, 5)
assert ('Y', 'Z') not in PLAN and ('Y', '4') not in PLAN
y = [f'  s_cmp_lg_u32 s{sPROD}, 0', '  s_cbranch_scc1 MK_np4', '  s_waitcnt vmcnt(0)', 'MK_np4:', '  s_waitcnt vmcnt(1)', '  s_setprio 1']
o_ = sum((ls for _, ls in PLAN.get(('O', 'Z'), [])), []) + dma_xs(XH[:min(NXY, 2)]) + [f'  s_waitcnt vmcnt({4*min(NXY, 2)}) lgkmcnt(0)'] + q_reads() + ['  s_waitcnt lgkmcnt(0)', '  s_barrier'] + dma_xs(XH[2:max(NXY, 2)])
PRE_P1 = (o_, y)
PUB = [f'  s_cmp_eq_u32 s{sPROD}, 0', '  s_cbranch_scc1 MK_np5', '  s_waitcnt vmcnt(0)', '  v_mov_b32 v23, 1', '  s_mov_b64 exec, 1',
       *([f'  buffer_atomic_add v23, off, {RDB}, 0 sc1'] if 'atom' in OPT else
         [f'  s_lshl_b32 s{sVO}, s{sH}, 7', f'  buffer_atomic_add v23, off, {RDB}, s{sVO} sc1']), '  s_mov_b64 exec, -1', '  s_nop 3', 'MK_np5:']

BODY = r'''# ---------------- pipelined body
stream = []; frags = []
def add_frag(reads, gate): frags.append(dict(reads=reads, gate=gate, uses=0)); return len(frags) - 1
def use(fid, fn): frags[fid]['uses'] += 1; stream.append(('mfma', fn, fid))
def mf(text): stream.append(('mfma', (lambda buf: text), None))
def raw(*lines):
    for l in lines: stream.append(('raw', l))
def fill(*lines):
    for l in lines: stream.append(('fill', l))
def flush(): stream.append(('flush',))
def need(fid): stream.append(('need', fid))
def gate(name): stream.append(('gate', name))
def role(r, lines):
    if not lines: return
    if not SINGLE: stream.append(('cond', role_lines(r, lines)))
    elif r == 'Y': stream.append(('plain', lines))
def role2(lo, ly):
    if SINGLE or not lo: role('Y', ly)
    elif not ly: role('O', lo)
    else: stream.append(('cond', role2_lines(lo, ly)))
MID = SACC[1] + 4 if SINGLE else SACC[0] + 8
BAR = '  s_barrier'
def m_read(f):
    addr = (71-f)*1024
    if addr < HALF: return [f'  ds_read_b128 {{d4}}, v{vL0} offset:{addr}']
    return [f'  ds_read_b128 {{d4}}, v{vL1} offset:{addr-HALF}']
def n_addr(f): return NHI + 30720 + 1024*f if f < 30 else ((f-30)*1024 if f < 40 else NHI + (f-40)*1024)
def n_read(f):
    if f >= 70: return []
    a = n_addr(f)
    return [f'  ds_read_b128 {{d4}}, v{vL1} offset:{a-NHI}' if a >= NHI else f'  ds_read_b128 {{d4}}, v{vL0} offset:{a}']
def dma_n(a, b):          # fragments a..b-1 (one address region), four waves
    out = []
    for f0 in range(a, b, 4):
        lim = (b - 1 - f0) * 1024; src = sW4
        if lim < 3072: out.append(f'  s_min_u32 s{sT[5]}, s{sW4}, {lim}'); src = sT[5]
        out += [f'  s_add_u32 m0, s{src}, {n_addr(f0)}', f'  s_add_u32 s{sVO}, s{src}, {f0*1024}',
                f'  buffer_load_dwordx4 v{vL0}, {RWS}, s{sVO} offen{NSC} lds']
    return out
CHAIN = [(0,0),(0,1),(0,2),(1,0),(1,1),(1,2),(1,3),(1,4),(1,5),(0,3),(0,4),(0,5)] if 'nochain' not in OPT else [(t, k) for k in range(6) for t in range(2)]
CHAIN = [x for x in CHAIN if x[0] in TL]
def proj(B, rd, gate_of, post, hooks):
    for s in range(6):
        for hh in range(2):
            f0 = 12*s + 6*hh
            fid = [add_frag(rd(f0+ks), gate_of(f0+ks)) for ks in range(6)]
            seen = set()
            for t, ks in CHAIN:
                f = f0 + ks
                if ks not in seen:
                    seen.add(ks)
                    if f in hooks: hooks[f](fid[ks])
                acc = ACC + 16*(s % 2) + 8*t + 4*hh
                fx = None if rd(f) else NREG + 4*(f-70)
                use(fid[ks], (lambda buf, acc=acc, t=t, ks=ks, fx=fx: mfma(acc, buf if fx is None else fx, B(t, ks), None if ks == 0 else acc)))
            if hh == 1: stream.append(('flushto', f'post{s-1}'))
            fill(*post(s, hh))
        stream.append(('tag', f'post{s}'))

gate('G0')
role2(PRE_P1[0], PRE_P1[1] if SINGLE else ['  s_waitcnt vmcnt(0)', '  s_setprio 1'])
raw('BODY:' if not SINGLE else 'BODYS:')
BF = bias_init(SACC[1] + 8, MID, TL)
fill(*BF[:30])
def p1_post(s, hh):
    out = []
    for t in (1, 0):
        if t == 0 and s == 5 and hh == 1: out.append('#QP5a')
        if t not in TL: continue
        acc = ACC + 16*(s % 2) + 8*t + 4*hh
        for r in range(4): out.append(f'  v_mul_f32 v{acc+r}, s{sSC}, v{acc+r}')
        for r in range(2): out.append(f'  v_cvt_pk_bf16_f32 v{QP+24*t+4*s+2*hh+r}, v{acc+2*r}, v{acc+2*r+1}')
    return out
proj(lambda t, ks: XQ+24*t+4*ks, m_read, lambda f: 'G0', p1_post,
     {13: lambda fid: fill(*BF[30:35]), 25: lambda fid: fill(*BF[35:39]), 37: lambda fid: fill(*BF[39:44]), 49: lambda fid: fill(*BF[44:48]), 60: lambda fid: (fill(*BF[48:]), stream.append(('tag', 'BIAS'))),
      opt('yb1', 58): lambda fid: role('Y', [BAR]),
      31: lambda fid: (need(fid), role2([BAR], PUB if SINGLE else [])),                                  # B2
      61: lambda fid: (need(fid), role('O', ['  s_waitcnt vmcnt(0)', BAR]))})         # B3
if 'p1flush' in OPT: flush()
stream.append(('tag', 'QP5'))
fill(f'  v_add_u32 v{vL1}, {NHI}, v{vL0}')
for r in range(4): fill(f'  v_mov_b32 v{ONES+r}, 0x3f803f80')
POLL = f'  buffer_load_dword v13, off, {RDB}, 0 sc1' if 'atom' in OPT else f'  buffer_load_dword v13, v14, {RDB}, 0 offen sc1'
PSET = [] if 'atom' in OPT else [f'  v_and_b32 v14, {128 if NCT == 2 else 192}, v{vL0}']
PMODE = opt('pmode', 1)      # 0 early plain poll, 1 late plain poll, 2 none (diagnostic only)
role('Y', ['  s_setprio 0'] + dma_xs(XH[NXY:]) + [BAR] + dma_xs((4, 3, 2)) + 
     ['  s_waitcnt vmcnt(12)', BAR] + dma_xs((1, 0)) + ['  s_waitcnt vmcnt(8)', BAR])        # B2 B3 B4a
for _ in range(opt('idle', 0)): raw('  s_sleep 8')      # diagnostic only
gate('S')
etn = [0]
def sm_fill(t, jj):
    tmp = ET + 4*(etn[0] % 5); etn[0] += 1
    acc = SACC[t] + 4*jj
    for i in range(4): fill(f'  v_exp_f32 v{tmp+i}, v{acc+i}')
    for i in range(2): fill(f'  v_cvt_pk_bf16_f32 v{PREG[t]+2*jj+i}, v{tmp+2*i}, v{tmp+2*i+1}')
    stream.append(('tag', f'P{t}_{jj}'))
def sum_mfmas(t):
    stream.append(('flushto', f'P{t}_0'))
    for kt in (3, 2, 1, 0): mf(mfma(SUM[t], ONES, PREG[t]+4*kt, None if kt == 3 else SUM[t]))
LO, HI = (127-30) << 23, (127+30) << 23
def check(t):
    raw(f'  v_subrev_u32 v{RI[1]}, {LO}, v{SUM[t]}')
    raw(f'  s_mov_b32 s{sT[6]}, {HI-LO}')
    raw(f'  v_cmp_gt_u32 s[{sT[2]}:{sT[3]}], s{sT[6]}, v{RI[1]}')
    raw(f'  s_or_b64 s[{sT[2]}:{sT[3]}], s[{sT[2]}:{sT[3]}], s[{sINV[t]}:{sINV[t]+1}]')
    raw(f'  s_cmp_eq_u64 s[{sT[2]}:{sT[3]}], -1')
    raw(f'  s_cbranch_scc0 FB{t}{SFX}')
    raw(f'FBR{t}{SFX}:')
if 'atom' in OPT:
    pollw = [f'  s_mov_b32 s{sT[7]}, 0x40000', 'NPOLL:', '  s_waitcnt vmcnt(0)', f'  v_readfirstlane_b32 s{sT[0]}, v13', f'  s_sub_u32 s{sT[7]}, s{sT[7]}, 1',
             f'  s_cselect_b32 s{sT[0]}, 144, s{sT[0]}', f'  s_cmp_ge_u32 s{sT[0]}, 144', '  s_cbranch_scc1 NPOLLD', POLL, '  s_branch NPOLL', 'NPOLLD:']
else:
    pollw = [f'  s_mov_b32 s{sT[7]}, 0x40000', f'  s_mov_b32 s{sT[0]}, {144 // NCT}', 'NPOLL:', '  s_waitcnt vmcnt(0)', f'  v_cmp_le_u32 s[{sT[2]}:{sT[3]}], s{sT[0]}, v13',
             f'  s_sub_u32 s{sT[7]}, s{sT[7]}, 1', '  s_cbranch_scc1 NPOLLD', f'  s_cmp_eq_u64 s[{sT[2]}:{sT[3]}], -1', '  s_cbranch_scc1 NPOLLD', POLL, '  s_branch NPOLL', 'NPOLLD:']
ODMA = 'ydma' not in OPT
if not ODMA: pollw = [POLL.replace(' sc1', '')] + pollw
# Y's positions of B5a / B5b / B6 in units of "S slot or PV step index": 0..9 = before the k-th S slot, 10..14 = before the k-th PV step
YP = {opt('y5a', 7): [BAR] + pollw + dma_n(0, 30) + dma_n(30, 40),
      opt('y5b', 10): ['  s_waitcnt vmcnt(0)', BAR] + dma_n(40, 70),
      opt('y6', 12): ['  s_waitcnt vmcnt(0)', BAR]}
assert len(YP) == 3
if ODMA: YP = {k: [BAR] for k in YP}
if 'yhi' in OPT: YP[opt('yhi', 0)] = YP.get(opt('yhi', 0), []) + ['  s_setprio 1']
O4B = opt('o4b', 6)
for k, slot in enumerate(range(9, -1, -1)):
    if k == 2:
        role2([BAR], ['  s_waitcnt vmcnt(0)', BAR]); gate('S2')       # O: B4a ; Y: B4b
    if k == O4B: role('O', [BAR] + (PSET + [POLL.replace(' sc1', '')] if ODMA else []))             # B4b
    if k in YP: role('Y', YP[k])
    if SINGLE and slot < 2:
        if slot == 0: sum_mfmas(1)
        continue
    fid = []
    for s in range(6):
        if slot == 0: base, off = SB0[s % 2], 128*(s//2)
        else: base, off = (vSe, vSo)[s % 2], (slot-1)*ROW + 128*(s//2)
        fid.append(add_frag([f'  ds_read_b128 {{d4}}, v{base} offset:{off}'], 'S' if slot >= 6 else 'S2'))
    for t, s in CHAIN:
        jj = slot - 2*t
        if 0 <= jj < 8:
            if slot == 0 and s == 3: sum_mfmas(1)
            if slot == 9 and s == 0: stream.append(('flushto', 'BIAS'))
            if slot == 9 and s == 5: stream.append(('flushto', 'QP5a'))
            if slot == 7 and s == 5: stream.append(('flushto', 'QP5'))
            acc = SACC[t] + 4*jj
            cin = MID if s == 0 and (t, jj) not in SPECIAL else acc
            use(fid[s], (lambda buf, acc=acc, t=t, s=s, cin=cin: mfma(acc, buf, QP+24*t+4*s, cin)))
    for t in TL:
        jj = slot - 2*t
        if 0 <= jj < 8: sm_fill(t, jj)
check(1)
YC1 = 0
def ycvt(t, ks, _=0):
    return [f'  v_cvt_pk_bf16_f32 v{YB[t][ks]+2*hf+i}, v{YACC[t][2*ks+hf]+2*i}, v{YACC[t][2*ks+hf]+2*i+1}' for hf in range(2) for i in range(2)]
lastf = None
for k, st in enumerate(range(4, -1, -1)):
    if k == 1:
        if not SINGLE: sum_mfmas(0); check(0)
        for t in TL: fill(f'  v_rcp_f32 v{RI[t]}, v{SUM[t]}')
    if k == 2: need(lastf); role('O', [BAR] + (pollw + dma_n(30, 40) + dma_n(0, 30) if ODMA else []))     # B5a
    if 10 + k in YP: role('Y', YP[10 + k])
    if SINGLE and k == 4:
        gate('P4a'); continue
    for ct in range(12):
        tl = [t for t in TL if 0 <= st - t < 4]
        b_, e_ = ct // 4, ct % 4
        rd = []
        for hf in range(2):
            slot = 2*st + hf
            if slot == 0: base, off = PB0[e_], 128*b_
            else: base, off = vP[e_], (slot-1)*ROW + 128*b_
            rd.append(f'  ds_read_b64_tr_b16 {{d{"lo" if hf == 0 else "hi"}}}, v{base} offset:{off}')
        fid = add_frag(rd, 'S2'); lastf = fid
        if k == 4 and ct == opt('o5b', 6):
            stream.append(('needall', fid + 11 - ct)); role('O', ['  s_waitcnt vmcnt(0)', BAR] + dma_n(40, 70) if ODMA else [BAR]); gate('P4a')         # B5b: every X read of this wave has landed
        for t in tl:
            acc = YACC[t][ct]
            use(fid, (lambda buf, acc=acc, t=t, st=st: mfma(acc, buf, PREG[t]+4*(st-t), None if st - t == 3 else acc)))
        if k == 3 and ct % 2 and ct < 12 - YC1:
            fill(*ycvt(1, ct // 2, 1))
            if SINGLE: stream.append(('tag', f'YB{ct // 2}'))
        if k == 4 and ct % 2: fill(*ycvt(0, ct // 2, 0)); stream.append(('tag', f'YB{ct // 2}'))
    if k == 3:
        for ks in range(6 - YC1 // 2, 6): fill(*ycvt(1, ks, 1))
NLD = [f'  s_mov_b32 s{sVO}, {70*1024}'] + [f'  buffer_load_dwordx4 {V(NREG+4*i)}, v{vL0}, {RWS}, s{sVO} offen offset:{1024*i} sc1' for i in range(2)]
if 15 in YP: role('Y', YP[15])
def p4_post(s, hh):
    out = []
    for t in TL:
        acc = ACC + 16*(s % 2) + 8*t + 4*hh
        o = OUTR + 8*(s % 2) + 4*t
        for r in range(4): out.append(f'  v_mul_f32 v{acc+r}, v{acc+r}, v{RI[t]}')
        for r in range(2): out.append(f'  v_cvt_pk_bf16_f32 v{o+2*hh+r}, v{acc+2*r}, v{acc+2*r+1}')
        if hh: out.append(f'  buffer_store_dwordx4 {V(o)}, v{vO[t]}, {RO}, 0 offen offset:{64*s}{NTO}')
    return out
proj(lambda t, ks: YB[t][ks], n_read, lambda f: 'P4a' if f < 40 else 'P4b', p4_post,
     {**{ks: (lambda fid, ks=ks: stream.append(('flushto', f'YB{ks}'))) for ks in range(6)},
      12: lambda fid: raw(*NLD),
      opt('o6', 24): lambda fid: (role('O', (['  s_waitcnt vmcnt(%d)' % (2 if 'pairst' in OPT else 4)] if ODMA else []) + [BAR]), gate('P4b')),                 # B6
      60: lambda fid: raw(f'  s_waitcnt vmcnt({4*len(TL)})'),
      })
flush()

# ---------------- emitter: read scheduling, gap filling, hazard padding
def regs_of(tok):
    m = re.fullmatch(r'v\[(\d+):(\d+)\]', tok)
    if m: return list(range(int(m.group(1)), int(m.group(2)) + 1))
    m = re.fullmatch(r'-?v(\d+)', tok)
    return [int(m.group(1))] if m else []
def parse(line):
    p = line.strip().split(None, 1)
    op = p[0]; args = [a.strip().split()[0] for a in p[1].split(',')] if len(p) > 1 else []
    return op, args
clock = [0]
mf_w = {}; va_w = {}; tr_w = {}; mf_c = {}; sg_w = {}
def hazard(line):
    """wait states still required before `line` may issue"""
    op, args = parse(line); need_ = 0
    allr = [r for a in args for r in regs_of(a)]
    if op.startswith('v_mfma'):
        for r in [r for a in args[1:] for r in regs_of(a)]:
            if r in va_w: need_ = max(need_, 2 - (clock[0] - va_w[r] - 1))
        for r in regs_of(args[1]) + regs_of(args[2]):
            if r in mf_w: need_ = max(need_, 8 - (clock[0] - mf_w[r] - 1))
    elif op.startswith('v_') or op.startswith('buffer_') or op.startswith('ds_'):
        for r in allr:
            if r in mf_w: need_ = max(need_, 8 - (clock[0] - mf_w[r] - 1))
        if op.startswith('v_'):
            for r in regs_of(args[0]):
                if r in mf_c: need_ = max(need_, 3 - (clock[0] - mf_c[r] - 1))
            for r in [r for a in args[1:] for r in regs_of(a)]:
                if r in tr_w: need_ = max(need_, 1 - (clock[0] - tr_w[r] - 1))
            for a in args[1:]:
                if a in sg_w: need_ = max(need_, 2 - (clock[0] - sg_w[a] - 1))
    return need_
def emit(line):
    if line.endswith(':'):
        e(line); return
    n = hazard(line)
    if n > 0:
        e(f'  s_nop {n-1}'); clock[0] += n
    op, args = parse(line)
    e(line)
    if op.startswith('v_mfma'):
        for r in regs_of(args[0]): mf_w[r] = clock[0]
        for r in regs_of(args[3]): mf_c[r] = clock[0]
    elif op.startswith('v_'):
        if args[0].startswith('s'): sg_w[args[0]] = clock[0]
        for r in regs_of(args[0]):
            va_w[r] = clock[0]; tr_w.pop(r, None)
            if op in ('v_exp_f32', 'v_rcp_f32'): tr_w[r] = clock[0]
    if op == 's_nop': clock[0] += int(args[0])
    clock[0] += 1

gates = set(); nxt = 0; done_uses = [0]*len(frags)
ops = []; landed = -1; half = [None]
fq = []
def buf_of(f): return ABUF + 4*(f % NB)
def issue_one():
    global nxt
    while True:
        if half[0] is not None:
            emit(half[0]); ops.append(nxt); half[0] = None; nxt += 1; return True
        if nxt >= len(frags): return False
        fr = frags[nxt]
        if fr['gate'] not in gates: return False
        if nxt >= NB and done_uses[nxt-NB] < frags[nxt-NB]['uses']: return False
        if not fr['reads']:
            nxt += 1; continue
        if len(ops) + len(fr['reads']) > (13 if TSM else 15): return False
        b = buf_of(nxt)
        rs = [r.format(d4=V(b), dlo=V(b, 2), dhi=V(b+2, 2)) for r in fr['reads']]
        emit(rs[0]); ops.append(nxt)
        if len(rs) == 2: half[0] = rs[1]
        else: nxt += 1
        return True
def wait_for(f, pair=True):
    global landed, ops
    if f is None or f <= landed: return
    while nxt <= f:
        n0 = nxt
        if not issue_one() and nxt == n0: raise RuntimeError(f'cannot issue frag {nxt}')
    if any(o <= f for o in ops):
        if pair and f + 1 < nxt and sum(1 for o in ops if o > f + 1) >= PAIRMIN: f = f + 1
        n = sum(1 for o in ops if o > f)
        emit(f'  s_waitcnt lgkmcnt({n})')
        ops = [o for o in ops if o > f]
    landed = f
def sregs(tok):
    m = re.fullmatch(r's\[(\d+):(\d+)\]', tok)
    if m: return [-1 - r for r in range(int(m.group(1)), int(m.group(2)) + 1)]
    m = re.fullmatch(r's(\d+)', tok)
    return [-1 - int(m.group(1))] if m else []
def wr(l):
    op, args = parse(l)
    return set() if op.startswith('buffer_') else set(regs_of(args[0]) + sregs(args[0]))
def rdset(l):
    op, args = parse(l)
    return set(r for a in (args if op.startswith('buffer_') else args[1:]) for r in regs_of(a) + sregs(a))
def pick(pred):
    """first filler satisfying pred that does not depend on an earlier pending filler (window limited)"""
    W, R = set(), set()
    for i, l in enumerate(fq[:WINDOW]):
        if l.startswith('#'): continue
        if pred(l) and not (rdset(l) & W) and not (wr(l) & (W | R)) and hazard(l) <= 0: return i
        W |= wr(l); R |= rdset(l)
    return None
def is2(l): return 'v_exp' in l or 'v_rcp' in l
def isst(l): return 'buffer_store' in l
def gap(si, ent):
    while fq and fq[0].startswith('#'): fq.pop(0)
    cur = ent[2] if ent[2] is not None else landed
    nf = STREAM_NEXT.get(si)
    wnext = nf is not None and nf > landed                     # a wait will precede the next MFMA
    ahead = nxt - cur
    i = pick(isst)
    if i is not None and half[0] is None and ahead >= MINAHEAD:
        emit(fq.pop(i))
        i = pick(lambda l: not is2(l) and not isst(l))
        if i is not None: emit(fq.pop(i))
        return
    slots = 1 if wnext else 2
    nexp = sum(1 for l in fq if is2(l))
    # an exp takes a whole gap: while the ring is deep enough leave this gap to it
    if not wnext and half[0] is None and ahead >= EXPAHEAD:
        i = pick(is2)
        if i is not None:
            emit(fq.pop(i)); return
    if issue_one(): slots -= 1
    if (half[0] is not None or slots > 0 and (nexp or not fq or ahead < 6)) and issue_one(): slots -= 1
    if nexp > BACKLOG: slots = max(slots, 1 if pick(lambda l: not is2(l) and not isst(l)) is not None else 2)
    while slots > 0:
        i = pick(is2) if slots >= 2 else None
        if i is not None:
            emit(fq.pop(i)); slots -= 2; continue
        i = pick(lambda l: not is2(l) and not isst(l))
        if i is None: break
        emit(fq.pop(i)); slots -= 1
WINDOW = opt('window', 16); MINAHEAD = opt('minahead', 5); EXPAHEAD = opt('expahead', 7)
nmf = [0]
BACKLOG = opt('backlog', 6); PAIRMIN = opt('pairmin', 5)
STREAM_NEXT = {}
mi = [i for i, x in enumerate(stream) if x[0] == 'mfma']
for a_, b_ in zip(mi, mi[1:]): STREAM_NEXT[a_] = stream[b_][2]
for si, ent in enumerate(stream):
    k = ent[0]
    if k == 'raw': emit(ent[1])
    elif k == 'fill': fq.append(ent[1])
    elif k == 'flush':
        for l in fq:
            if not l.startswith('#'): emit(l)
        fq = []
    elif k == 'tag': fq.append('#' + ent[1])
    elif k == 'flushto':
        if '#' + ent[1] in fq:
            i = fq.index('#' + ent[1])
            for l in fq[:i]:
                if not l.startswith('#'): emit(l)
            fq = fq[i+1:]
    elif k == 'gate':
        gates.add(ent[1])
        while issue_one(): pass
    elif k in ('need', 'needall'): wait_for(ent[1])
    elif k == 'plain': el(ent[1])
    elif k == 'cond':
        emit(ent[1][0]); el(ent[1][1:])          # only the branch itself counts as distance
    elif k == 'mfma':
        wait_for(ent[2])
        if nmf[0] in TSM and not SINGLE: e(ts_line())
        nmf[0] += 1
        emit(ent[1](buf_of(ent[2]) if ent[2] is not None else None))
        if ent[2] is not None: done_uses[ent[2]] += 1
        gap(si, ent)
'''
e(f'  s_cmp_eq_u32 s{sU}, 0'); e('  s_cbranch_scc1 MK_single')
SINGLE, TL, SFX = False, (1, 0), ''
exec(BODY)
e('MK_fin:')
if TS:
    e('  s_waitcnt vmcnt(0)')
    e(ts_line()); e('  s_memrealtime s[98:99]')
    e('  s_waitcnt lgkmcnt(0)')
    e(f'  s_lshl_b32 s{sT[0]}, s2, 3'); e(f'  s_add_u32 s{sT[0]}, s{sT[0]}, s{sW}'); e(f'  s_lshl_b32 s{sT[0]}, s{sT[0]}, 6')
    e(f'  s_add_u32 s{sT[0]}, s{sT[0]}, 0x100000')
    e('  v_mov_b32 v1, 0')
    for i in range(nts[0]):
        if i == 0: e(f'  v_mov_b32 v2, s{sTS}')
        else:
            e(f'  s_sub_u32 s{sT[1]}, s{sTS+2*i}, s{sTS}'); e(f'  v_mov_b32 v2, s{sT[1]}')
        e(f'  buffer_store_dword v2, v1, s[20:23], s{sT[0]} offen offset:{4*i}')
    e('  v_mov_b32 v2, s96'); e('  v_mov_b32 v3, s98')
    e(f'  buffer_store_dwordx2 v[2:3], v1, s[20:23], s{sT[0]} offen offset:56')
    print('timestamps', nts[0]); assert nts[0] <= 12
e('MK_done:')
e('  s_endpgm')
e('MK_single:')
SINGLE, TL, SFX = True, (1,), 's'
exec(BODY)
e('  s_branch MK_fin' if TS else '  s_endpgm')
for t, sfx in ((0, ''), (1, ''), (1, 's')):
    R = SACC[t]; vm, vt = RI[0], RI[1]
    e(f'FB{t}{sfx}:')
    e('  s_nop 7')
    e(f'  v_max3_f32 v{vm}, v{R}, v{R+1}, v{R+2}')
    for k in range(3, 31, 2): e(f'  v_max3_f32 v{vm}, v{vm}, v{R+k}, v{R+k+1}')
    e(f'  s_mov_b32 s{sT[6]}, 0xff7fffff')
    e(f'  v_max3_f32 v{vm}, v{vm}, v{R+31}, s{sT[6]}')
    for sw in ('v_permlane32_swap_b32', 'v_permlane16_swap_b32'):
        e(f'  v_mov_b32 v{vt}, v{vm}'); e('  s_nop 1'); e(f'  {sw} v{vm}, v{vt}'); e('  s_nop 1')
        e(f'  v_max_f32 v{vm}, v{vm}, v{vt}')
    for k in range(32): e(f'  v_sub_f32 v{R+k}, v{R+k}, v{vm}')
    for k in range(32): e(f'  v_exp_f32 v{R+k}, v{R+k}')
    e('  s_nop 0')
    for k in range(16): e(f'  v_cvt_pk_bf16_f32 v{PREG[t]+k}, v{R+2*k}, v{R+2*k+1}')
    e('  s_nop 1')
    for kt in range(4): e(mfma(SUM[t], ONES, PREG[t]+4*kt, None if kt == 0 else SUM[t]))
    e('  s_nop 7')
    e(f'  s_branch FBR{t}{sfx}')
e('MK_end:')
e('.section .rodata,"a"')
e('.p2align 6'); e(f'.amdhsa_kernel {KN}')
e('  .amdhsa_next_free_vgpr 256'); e('  .amdhsa_next_free_sgpr 102'); e('  .amdhsa_accum_offset 256')
e('  .amdhsa_group_segment_fixed_size 0'); e('  .amdhsa_kernarg_size 48'); e('  .amdhsa_user_sgpr_count 2')
e('  .amdhsa_user_sgpr_kernarg_segment_ptr 1'); e('  .amdhsa_system_sgpr_workgroup_id_x 1')
e('.end_amdhsa_kernel')
if 'drop' in OPT:
    kinds = OPT['drop'].split(',')
    i0 = next(i for i, l in enumerate(L) if 'MK_np4:' in l)
    out = []; n = 0
    for i, l in enumerate(L):
        body = i > i0
        if 'mM' in kinds and not body and 'v_mfma' in l: l = '  s_nop 3'
        if 'exp' in kinds and 'v_exp' in l: l = l.replace('v_exp_f32', 'v_mov_b32')
        if 'lds' in kinds and body and 'ds_read_b128' in l:
            l = re.sub(r'ds_read_b128 v\[(\d+):\d+\]', lambda m: f'ds_read_b32 v{m.group(1)}', l)
        if 'tr' in kinds and body and 'ds_read_b64_tr' in l:
            l = re.sub(r'ds_read_b64_tr_b16 v\[(\d+):\d+\], v\d+', lambda m: f'ds_read_b32 v{m.group(1)}, v{vL0}', l)
        if 'mfma' in kinds and body and 'v_mfma' in l:
            n += 1
            if n % 2: l = '  s_nop 3'
        if 'nslab' in kinds and RWO in l and 'buffer_load' in l: l = '  s_nop 0'
        if 'nwv' in kinds and f'v{vNA}, {RW}' in l: l = '  s_nop 0'
        if 'ncomp' in kinds and 's_cbranch_scc1 MK_np2' in l: l = '  s_branch MK_np2'
        if 'st' in kinds and 'buffer_store_dwordx4' in l: l = '  s_nop 0'
        out.append(l)
    L = out
open(OUTF, 'w').write('\n'.join(L) + '\n')
```

```python
import sys, struct, math, re
OPT = dict(a.split('=') if '=' in a else (a, '1') for a in sys.argv[1:])
OUTF = OPT.get('out', 'standalone__neighborhood_nat__vision.s')
TS = 'ts' in OPT
TSM = [int(x) for x in OPT['tsm'].split(',')] if 'tsm' in OPT else []
TSP = 'tsp' in OPT
def opt(k, d): return int(OPT.get(k, d))
L = []
def e(s): L.append(s)
def el(ls):
    for l in ls: L.append(l)

X_BYTES = 19267584
WS_BYTES = 268435456
XB = 10240
ROW = 7680
HALF = 36864
NHI = XB + 12*ROW
WOL = 147456
SCALE = struct.unpack('<I', struct.pack('<f', (192 ** -0.5) * math.log2(math.e)))[0]
NT = ' nt' if 'nt' in OPT else ''
NCT = 2
NSC = '' if 'nplain' in OPT else ' sc1'
NTO = ' ' + OPT.get('st', 'nt+sc1').replace('+', ' ')
KN = 'standalone__neighborhood_nat__vision_kernel'

hdr = open('standalone__neighborhood_nat__vision.s.ref').read().split('\n')
for ln in hdr:
    if ln.startswith('; @launch'): break
    e(ln)
e('; @launch grid=(256,1,1) block=(512,1,1) lds=163840')
e('.amdgcn_target "amdgcn-amd-amdhsa--gfx950"')
e('.text')

def srd(d, b, n):
    return [f'  s_mov_b32 s{d}, s{b}', f'  s_and_b32 s{d+1}, s{b+1}, 0xffff', f'  s_mov_b32 s{d+2}, {n}', f'  s_mov_b32 s{d+3}, 0x00020000']
def V(a, n=4): return f'v[{a}:{a+n-1}]'
def mfma(d, a, b, c):
    cs = '0' if c is None else V(c)
    return f'  v_mfma_f32_16x16x32_bf16 {V(d)}, {V(a)}, {V(b)}, {cs}'

vL0, vL1 = 1, 2
vO = (5, 6)
vSe, vSo = 7, 8
vP = (9, 10, 11, 12)
vD = (13, 14, 3, 4)
PB0 = (15, 16, 17, 18)
vCT = 19
SB0 = (20, 0)
vRR = (21, 22)
RI = (22, 23)
SACC = (24, 56); QP = 88; XQ = 136; ACC = 184
ABUF = 216; NB = 10
PREG = (136, 152)
YB = ([140, 144, 148, 168, 172, 152], [156, 160, 164, 176, 180, 72])
YACC = ([24+4*i for i in range(12)], [88+4*i for i in range(12)])
SUM = (184, 188); ONES = 192; ET = 196
OUTR = 24; NREG = 40
MACC = 24; MPK = 104
vWA = 96; vMA, vMB, vMW = (97, 98), (99, 100), (101, 102, 103)
vn, vg, tA, tB, tC, tD = 128, 129, 130, 131, 132, 133
vNB, vNA = 134, 135
QA = (134, 135); vQR = 23
CH = (0, 49152, 98304)
SO = 73728
sQR = (84, 85, 86, 87); sST = 101
sW, sU, sH, sPR, sPC, sKR, sKC, sXB, sGS, sGmin = range(24, 34)
sA2, sR0, sD0, sTR, sM0X, sM0X3, sW4, sWL = range(34, 42)
sINV = (42, 44)
sT = list(range(46, 60))
sMR, sAR, sMC, sAC = sT[10], sT[11], sT[12], sT[13]
sTS = 60
sPROD, sWB, sSC, sVO = 3, 92, 93, 100
RX, RO, RWS, RW, RWO, RDB = 's[12:15]', 's[16:19]', 's[20:23]', 's[88:91]', 's[4:7]', 's[8:11]'
MSK = f's[{sT[6]}:{sT[7]}]'
assert sT[6] % 2 == 0 and sT[2] % 2 == 0

nts = [0]
def ts_line():
    s = f'  s_memtime s[{sTS+2*nts[0]}:{sTS+2*nts[0]+1}]'; nts[0] += 1; return s
def tsp():
    if TSP: e(ts_line())

e(f'.globl {KN}'); e('.p2align 8'); e(f'.type {KN},@function'); e(f'{KN}:')
e('  s_cmp_ge_u32 s2, 256'); e('  s_cbranch_scc1 MK_done')
if TS: e(ts_line()); e('  s_memrealtime s[96:97]')
e('  s_load_dwordx8 s[4:11], s[0:1], 0')
e('  s_load_dwordx4 s[84:87], s[0:1], 32')
if 'nopf' not in OPT:
    e('  s_getpc_b64 s[12:13]'); e('MK_pc:')
    e('  s_and_b32 s13, s13, 0xffff'); e('  s_mov_b32 s14, MK_end-MK_pc'); e('  s_mov_b32 s15, 0x00020000')
    e('  v_lshlrev_b32 v23, 7, v0')
    e('  buffer_load_dword v255, v23, s[12:15], 0 offen')
e(f'  v_lshrrev_b32 v{tA}, 6, v0')
e('  v_and_b32 v0, 63, v0')
e(f'  v_readfirstlane_b32 s{sW}, v{tA}')
e(f'  v_and_b32 v{vn}, 15, v0'); e(f'  v_lshrrev_b32 v{vg}, 4, v0')
e(f'  v_lshrrev_b32 v{tA}, 5, v0'); e(f'  v_bfe_u32 v{tB}, v0, 3, 2'); e(f'  v_lshl_add_u32 v{tA}, v{tA}, 3, v{tB}')
e(f'  v_mul_u32_u24 v{tA}, 1152, v{tA}')
e(f'  s_and_b32 s{sH}, s{sW}, 1')
e(f'  s_lshl_b32 s{sT[0]}, s{sH}, 2')
e(f'  v_add_u32 v{tB}, s{sT[0]}, v{vg}'); e(f'  v_and_b32 v{tC}, 7, v0'); e(f'  v_xor_b32 v{tB}, v{tB}, v{tC}')
e(f'  v_lshl_add_u32 v{vWA}, v{tB}, 4, v{tA}')
e(f'  s_lshr_b32 s{sT[0]}, s{sW}, 2'); e(f'  s_lshl_b32 s{sT[0]}, s{sT[0]}, 5')
e(f'  s_lshl_b32 s{sT[1]}, s{sH}, 4'); e(f'  s_add_u32 s{sT[0]}, s{sT[0]}, s{sT[1]}')
e(f'  s_and_b32 s{sT[1]}, s{sW}, 2'); e(f'  s_lshl_b32 s{sT[1]}, s{sT[1]}, 1'); e(f'  s_add_u32 s{sT[0]}, s{sT[0]}, s{sT[1]}')
e(f'  s_mul_i32 s{sWB}, s{sT[0]}, 1152')
e(f'  s_lshl_b32 s{sWL}, s{sW}, 10')
e(f'  s_cmp_lt_u32 s{sW}, 4'); e('  s_cselect_b64 vcc, -1, 0')
EARLY_AT = len(L)
e(f'  s_bfe_u32 s{sPR}, s2, 0x10002')
e(f'  s_bfe_u32 s{sPC}, s2, 0x10001')
e(f'  s_and_b32 s{sKR}, s2, 1'); e(f'  s_lshl_b32 s{sKR}, s{sKR}, 2')
e(f'  s_lshr_b32 s{sT[0]}, s2, 6'); e(f'  s_add_u32 s{sKR}, s{sKR}, s{sT[0]}')
e(f'  s_bfe_u32 s{sKC}, s2, 0x30003')
e(f'  s_mul_i32 s{sTR}, s{sKR}, 14'); e(f'  s_add_i32 s{sTR}, s{sTR}, -6'); e(f'  s_max_i32 s{sKR}, s{sTR}, -4')
e(f'  s_mul_i32 s{sKC}, s{sKC}, 14'); e(f'  s_add_i32 s{sKC}, s{sKC}, -6')
e(f'  s_lshr_b32 s{sU}, s{sW}, 1'); e(f'  s_add_u32 s{sU}, s{sU}, 2'); e(f'  s_and_b32 s{sU}, s{sU}, 3')
e(f'  s_sub_u32 s{sMR}, 0, s{sPR}'); e(f'  s_mul_i32 s{sAR}, s{sPR}, 224')
e(f'  s_sub_u32 s{sMC}, 0, s{sPC}'); e(f'  s_mul_i32 s{sAC}, s{sPC}, 224')
e(f'  v_and_b32 v{tA}, 7, v{vn}')
e(f'  s_mul_i32 s{sT[0]}, s{sH}, 7'); e(f'  s_add_i32 s{sT[0]}, s{sT[0]}, s{sKC}')
e(f'  v_cmp_lt_u32 s[{sT[2]}:{sT[3]}], 6, v{tA}')
e(f'  v_add_u32 v{tA}, s{sT[0]}, v{tA}')
e(f'  v_max_i32 v{vCT}, 0, v{tA}')
e(f'  v_add3_u32 v{tA}, v{tA}, v{vCT}, 6')
e(f'  v_xor_b32 v{tA}, s{sMC}, v{tA}'); e(f'  v_add_u32 v{tA}, s{sAC}, v{tA}')
e(f'  v_subrev_u32 v{vCT}, s{sKC}, v{vCT}')
e(f'  v_mul_u32_u24 v{tA}, 384, v{tA}'); e(f'  v_lshl_add_u32 v{tA}, v{vg}, 4, v{tA}')
e(f'  s_lshl_b32 s{sT[0]}, s{sU}, 2'); e(f'  s_add_i32 s{sT[0]}, s{sT[0]}, -2')
e(f'  s_mov_b32 s{sT[1]}, 86016')
e(f'  v_lshrrev_b32 v{tB}, 3, v{vn}'); e(f'  v_add_u32 v{tB}, s{sT[0]}, v{tB}')
e(f'  v_mov_b32 v{tC}, 0x80000000')
for t in range(2):
    if t: e(f'  v_add_u32 v{tB}, 2, v{tB}')
    e(f'  v_cmp_gt_i32 s[{sINV[t]}:{sINV[t]+1}], 0, v{tB}')
    e(f'  v_add_u32 v{vO[t]}, s{sTR}, v{tB}')
    e(f'  v_max_i32 v{vRR[t]}, 0, v{vO[t]}')
    e(f'  v_add3_u32 v{vO[t]}, v{vO[t]}, v{vRR[t]}, 6')
    e(f'  s_or_b64 s[{sINV[t]}:{sINV[t]+1}], s[{sINV[t]}:{sINV[t]+1}], s[{sT[2]}:{sT[3]}]')
    e(f'  v_xor_b32 v{vO[t]}, s{sMR}, v{vO[t]}'); e(f'  v_add_u32 v{vO[t]}, s{sAR}, v{vO[t]}')
    e(f'  v_subrev_u32 v{vRR[t]}, s{sKR}, v{vRR[t]}')
    e(f'  v_mad_u32_u24 v{vO[t]}, v{vO[t]}, s{sT[1]}, v{tA}')
    e(f'  v_cndmask_b32 v{vRR[t]}, v{vRR[t]}, v{tC}, s[{sINV[t]}:{sINV[t]+1}]')
    e(f'  v_cndmask_b32 v{vO[t]}, v{vO[t]}, v{tC}, s[{sINV[t]}:{sINV[t]+1}]')

e('  s_waitcnt lgkmcnt(0)')
tsp()
el(srd(88, 6, 192*576*2))
if 'notlb' not in OPT:
    e(f'  s_cmp_lg_u32 s{sW}, 5'); e('  s_cbranch_scc1 MK_ntlb')
    e(f'  s_max_i32 s{sT[0]}, s{sTR}, 0'); e(f'  s_lshl_b32 s{sT[0]}, s{sT[0]}, 1'); e(f'  s_sub_u32 s{sT[1]}, 184, s{sT[0]}')
    e(f'  s_cmp_eq_u32 s{sPR}, 0'); e(f'  s_cselect_b32 s{sT[0]}, s{sT[0]}, s{sT[1]}'); e(f'  s_mul_i32 s{sT[0]}, s{sT[0]}, 86016')
    for k in range(3):
        e(f'  s_load_dword s94, s[4:5], s{sT[0]}'); e(f'  s_load_dword s95, s[10:11], s{sT[0]}')
        if k < 2: e(f'  s_add_u32 s{sT[0]}, s{sT[0]}, {20*86016 - 64}')
    e(f'  s_load_dword s94, s[84:85], 128'); e(f'  s_load_dword s95, s[86:87], 0x20000')
    e('MK_ntlb:')

def w_pieces(c, partner=0):
    return [[f'  s_add_i32 m0, s{sWL}, {CH[c] + mat*24576 + j*8192 + partner*4096}',
             f'  s_add_i32 s{sVO}, s{sWB}, {(j*64 + partner*32)*1152 + mat*384 + c*128}',
             f'  buffer_load_dwordx4 v{vWA}, {RW}, s{sVO} offen lds'] for mat in range(2) for j in range(3)]
def q_loads():
    return [f'  buffer_load_dwordx4 {V(XQ+24*t+4*s_)}, v{vO[t]}, {RX}, 0 offen offset:{64*s_}{NT}' for t in (1, 0) for s_ in range(6)]
def q_stage():
    return [[f'  s_add_u32 m0, s{sST}, {(1-t)*24576 + (3*qr + l)*1024 - 128*l}', '  s_nop 0',
             f'  buffer_load_dwordx4 v{QA[qr]}, {RX}, s{sQR[2*t+qr]} offen offset:{128*l}{NT} lds'] for t in (1, 0) for qr in range(2) for l in range(3)]
def q_reads():
    return ([f'  v_xor_b32 v{tA}, 64, v{vQR}'] +
            [f'  ds_read_b128 {V(XQ+24*t+4*s_)}, v{(vQR, tA)[s_ % 2]} offset:{(1-t)*24576 + 1024*(s_//2)}' for t in range(2) for s_ in range(6)])
SCH = {'O': OPT.get('so', 'A:W0,B:V0,0:W2+V2,4:q6,Z:q6'), 'Y': OPT.get('sy', 'C:W1+V1,1:q6,2:q6')}
PLAN = {}; ISS = {'O': [], 'Y': []}
for r_, sp in SCH.items():
    qi = 0
    for part in sp.split(','):
        pos, items = part.split(':')
        for it in items.split('+'):
            lst = PLAN.setdefault((r_, pos), [])
            if it[0] == 'W': lst += [(f'W{it[1]}', p) for p in w_pieces(int(it[1]))]
            elif it[0] == 'V': lst += [(f'W{it[1]}', p) for p in w_pieces(int(it[1]), 1 if r_ == 'O' else -1)]
            elif it in 'pr':
                assert pos == 'A'
                lst.append(('t', [f'  v_min_u32 v253, 2, v{vg}', f'  v_mad_u32_u24 v253, v253, s{sT[8]}, v{vO[1 if it == "p" else 0]}',
                                  f'  buffer_load_dword v{252 if it == "p" else 251}, v253, {RX}, 0 offen']))
            else:
                for _ in range(int(it[1:])):
                    if r_ == 'Y' and qi >= 6: lst.append(('b', [f'  s_cmp_eq_u32 s{sU}, 0', f'  s_cbranch_scc1 QB{qi}', q_loads()[qi], f'QB{qi}:']))
                    elif r_ == 'O': lst.append(('q', q_stage()[qi])); assert pos in ('34Z' if qi < 6 else 'Z') and opt('sya', 0) == 0
                    else: lst.append(('q', [q_loads()[qi]]))
                    qi += 1
    assert qi == 12
lbl = [0]
def role_lines(r_, lines):
    lbl[0] += 1
    return [f'  s_cbranch_vcc{"z" if r_ == "O" else "nz"} SL{lbl[0]}'] + list(lines) + [f'SL{lbl[0]}:']
def role2_lines(lo, ly):
    lbl[0] += 1; n = lbl[0]
    return [f'  s_cbranch_vccz SL{n}'] + list(lo) + [f'  s_branch SM{n}', f'SL{n}:'] + list(ly) + [f'SM{n}:']
def sched_items(pos):
    o, y = list(PLAN.get(('O', pos), [])), list(PLAN.get(('Y', pos), []))
    out = []
    while o or y: out.append((o.pop(0) if o else None, y.pop(0) if y else None))
    return out
def emit_item(it):
    o, y = it
    if o: ISS['O'].append(o[0])
    if y: ISS['Y'].append(y[0])
    if o and y and o == y: el(o[1])
    elif o and y: el(role2_lines(o[1], y[1]))
    elif o: el(role_lines('O', o[1]))
    else: el(role_lines('Y', y[1]))
def emit_pos(pos):
    o, y = PLAN.get(('O', pos), []), PLAN.get(('Y', pos), [])
    k = 0
    while k < len(o) and k < len(y) and o[k] == y[k]: emit_item((o[k], y[k])); k += 1
    for r_, x in (('O', o[k:]), ('Y', y[k:])):
        if x:
            ISS[r_] += [i[0] for i in x]; el(role_lines(r_, sum((i[1] for i in x), [])))
def after(r_, tag):
    l = ISS[r_]
    if tag not in l: return len(l) if tag == 'W0' else 63
    return min(63, len(l) - 1 - max(i for i, t in enumerate(l) if t == tag))

if 'nowpf' not in OPT:
    WPW = opt('wpw', 4)
    e(f'  s_lshr_b32 s{sT[0]}, s{sW}, 1'); e(f'  s_cmp_lg_u32 s{sT[0]}, {WPW // 2}'); e('  s_cbranch_scc1 MK_nwpf')
    e(f'  s_cmp_eq_u32 s{sW}, {WPW}'); e(f'  s_cselect_b32 s{sT[0]}, 54, 18')
    e('  s_cselect_b32 s12, s6, s8'); e('  s_cselect_b32 s13, s7, s9'); e('  s_and_b32 s13, s13, 0xffff')
    e(f'  s_lshr_b32 s{sT[1]}, s2, 3'); e(f'  s_mul_i32 s{sT[1]}, s{sT[1]}, s{sT[0]}'); e(f'  s_lshl_b32 s{sVO}, s{sT[1]}, 7')
    e(f'  s_lshl_b32 s{sT[0]}, s{sT[0]}, 7'); e(f'  s_add_u32 s14, s{sVO}, s{sT[0]}'); e('  s_mov_b32 s15, 0x00020000')
    e('  v_lshlrev_b32 v23, 7, v0')
    e(f'  buffer_load_dword v254, v23, s[12:15], s{sVO} offen')
    e('MK_nwpf:')
el(srd(12, 4, X_BYTES))
e(f'  s_movk_i32 s{sT[8]}, 112')
if 'noearly' in OPT: emit_pos('A')
else:
    assert ('Y', 'A') not in PLAN
    it = PLAN[('O', 'A')]; ISS['O'] += [i[0] for i in it]
    L[EARLY_AT:EARLY_AT] = role_lines('O', ['  s_waitcnt lgkmcnt(0)'] + srd(88, 6, 192*576*2) + sum((i[1] for i in it), []))
tsp()
el(srd(16, 10, X_BYTES)); el(srd(4, 8, 192*192*2)); el(srd(8, 84, 256)); el(srd(20, 86, WS_BYTES if TS else 73728))
e(f'  v_lshlrev_b32 v{vL0}, 4, v0')
e(f'  v_add_u32 v{vL1}, {HALF}, v{vL0}')
e(f'  s_and_b32 s{sW4}, s{sW}, 3'); e(f'  s_lshl_b32 s{sW4}, s{sW4}, 10')
e(f'  v_bfe_u32 v{tA}, v{vn}, 1, 3'); e(f'  v_xor_b32 v{tA}, v{tA}, v{vg}')
e(f'  v_lshlrev_b32 v{tB}, 7, v{vn}'); e(f'  v_lshl_add_u32 v{tB}, v{tA}, 4, v{tB}')
e(f'  s_lshr_b32 s{sT[0]}, s{sW}, 2'); e(f'  s_mul_i32 s{sT[1]}, s{sT[0]}, {6*2048}'); e(f'  s_add_u32 s{sT[1]}, s{sT[1]}, {CH[0]}')
e(f'  v_add_u32 v{vMA[0]}, s{sT[1]}, v{tB}'); e(f'  v_xor_b32 v{vMA[1]}, 64, v{vMA[0]}')
e(f'  s_mul_i32 s{sT[1]}, s{sW4}, 6'); e(f'  s_add_u32 s{sT[1]}, s{sT[1]}, {24576 + CH[0]}')
e(f'  v_add_u32 v{vMB[0]}, s{sT[1]}, v{tB}'); e(f'  v_xor_b32 v{vMB[1]}, 64, v{vMB[0]}')
F = []; f_ = F.append
f_(f'  s_lshr_b32 s{sT[0]}, s{sW}, 2'); f_(f'  s_mul_i32 s{sT[0]}, s{sT[0]}, 3072'); f_(f'  s_mul_i32 s{sT[1]}, s{sW4}, 18')
f_(f'  s_add_u32 s{sT[0]}, s{sT[0]}, s{sT[1]}'); f_(f'  s_sub_u32 s{sT[0]}, {(71-14)*1024}, s{sT[0]}')
f_(f'  v_add_u32 v{vMW[0]}, s{sT[0]}, v{vL0}')
f_(f'  s_lshl_b32 s{sT[0]}, s{sKR}, 1'); f_(f'  s_xor_b32 s{sT[0]}, s{sT[0]}, s{sMR}')
f_(f'  s_mul_i32 s{sT[1]}, s{sPR}, 222'); f_(f'  s_add_i32 s{sXB}, s{sT[0]}, s{sT[1]}')
f_(f'  s_mul_i32 s{sXB}, s{sXB}, 86016')
f_(f'  s_mul_i32 s{sGS}, s{sPR}, {-2*344064}'); f_(f'  s_add_i32 s{sGS}, s{sGS}, 344064')
f_(f'  s_lshr_b32 s{sGmin}, s{sKR}, 31'); f_(f'  s_lshl_b32 s{sGmin}, s{sGmin}, 1')
f_(f'  s_lshl_b32 s{sM0X}, s{sW4}, 2')
f_(f'  s_add_u32 s{sM0X3}, s{sM0X}, 3072'); f_(f'  s_min_u32 s{sM0X3}, s{sM0X3}, {14*1024}')
f_(f'  s_mul_i32 s{sT[2]}, s{sPR}, 172032'); f_(f'  s_sub_u32 s{sT[3]}, 172032, s{sT[2]}')
f_(f'  v_mov_b32 v{tC}, s{sT[2]}'); f_(f'  v_mov_b32 v{tD}, s{sT[3]}')
for b in range(960): assert (b * 2731) >> 16 == b // 24
for j in range(4):
    d = vD[j]
    if j < 3:
        f_(f'  s_lshr_b32 s{sT[0]}, s{sM0X}, 4'); f_(f'  s_add_u32 s{sT[0]}, s{sT[0]}, {64*j}')
    else: f_(f'  s_lshr_b32 s{sT[0]}, s{sM0X3}, 4')
    f_(f'  v_add_u32 v{tA}, s{sT[0]}, v0')
    f_(f'  v_mul_u32_u24 v{d}, 2731, v{tA}'); f_(f'  v_lshrrev_b32 v{d}, 16, v{d}')
    f_(f'  v_cmp_le_u32 {MSK}, 20, v{d}')
    f_(f'  v_mul_u32_u24 v{tB}, 24, v{d}'); f_(f'  v_sub_u32 v{tA}, v{tA}, v{tB}')
    f_(f'  v_subrev_u32 v{tB}, 20, v{d}')
    f_(f'  v_cndmask_b32 v{d}, v{d}, v{tB}, {MSK}')
    f_(f'  v_bfe_u32 v{tB}, v{d}, 1, 3'); f_(f'  v_xor_b32 v{tA}, v{tA}, v{tB}')
    f_(f'  v_cndmask_b32 v{tB}, v{tC}, v{tD}, {MSK}')
    f_(f'  v_lshl_add_u32 v{tA}, v{tA}, 4, v{tB}')
    f_(f'  v_add_u32 v{d}, s{sKC}, v{d}'); f_(f'  v_max_i32 v{d}, 0, v{d}'); f_(f'  v_lshlrev_b32 v{d}, 1, v{d}')
    f_(f'  v_xor_b32 v{d}, s{sMC}, v{d}'); f_(f'  v_add_u32 v{d}, s{sAC}, v{d}')
    f_(f'  v_mul_u32_u24 v{d}, 384, v{d}'); f_(f'  v_add_u32 v{d}, v{d}, v{tA}')
f_(f'  s_add_u32 s{sM0X}, s{sM0X}, {XB}'); f_(f'  s_add_u32 s{sM0X3}, s{sM0X3}, {XB}')
for dst, add in ((sT[0], -2), (sA2, 0)):
    f_(f'  s_lshl_b32 s{dst}, s{sU}, 2')
    if add: f_(f'  s_add_i32 s{dst}, s{dst}, {add}'); f_(f'  s_max_i32 s{dst}, s{dst}, 0')
    f_(f'  s_add_i32 s{dst}, s{dst}, s{sTR}'); f_(f'  s_max_i32 s{dst}, s{dst}, 0'); f_(f'  s_sub_i32 s{dst}, s{dst}, s{sKR}')
f_(f'  s_sub_u32 s{sT[0]}, s{sA2}, s{sT[0]}'); f_(f'  s_lshr_b32 s{sT[0]}, s{sT[0]}, 1')
f_(f'  s_mul_i32 s{sD0}, s{sT[0]}, -8'); f_(f'  s_add_i32 s{sD0}, s{sD0}, 7')
f_(f'  s_add_i32 s{sA2}, s{sA2}, -1')
f_(f'  s_add_i32 s{sR0}, s{sA2}, s{sD0}'); f_(f'  s_mul_i32 s{sD0}, s{sD0}, {ROW}')
f_(f'  s_lshl_b32 s{sT[1]}, s{sH}, 2')
f_(f'  s_mul_i32 s{sT[0]}, s{sA2}, {ROW}'); f_(f'  s_add_i32 s{sT[0]}, s{sT[0]}, {XB}')
f_(f'  v_add_u32 v{tA}, s{sT[1]}, v{vn}')
f_(f'  v_bfe_u32 v{tB}, v{tA}, 1, 3'); f_(f'  v_xor_b32 v{tB}, v{tB}, v{vg}')
f_(f'  v_mul_u32_u24 v{tA}, 384, v{tA}'); f_(f'  v_lshl_add_u32 v{tA}, v{tB}, 4, v{tA}')
f_(f'  v_add_u32 v{vSe}, s{sT[0]}, v{tA}'); f_(f'  v_xor_b32 v{vSo}, 64, v{vSe}')
f_(f'  v_lshrrev_b32 v{tA}, 2, v{vn}'); f_(f'  v_lshl_add_u32 v{tA}, v{vg}, 2, v{tA}'); f_(f'  v_add_u32 v{tA}, s{sT[1]}, v{tA}')
f_(f'  v_bfe_u32 v{tB}, v{tA}, 1, 3')
f_(f'  v_and_b32 v{tC}, 2, v{vn}'); f_(f'  v_lshlrev_b32 v{tC}, 1, v{tC}'); f_(f'  v_xor_b32 v{tB}, v{tB}, v{tC}')
f_(f'  v_mul_u32_u24 v{tA}, 384, v{tA}'); f_(f'  v_lshl_add_u32 v{tA}, v{tB}, 4, v{tA}')
f_(f'  v_and_b32 v{tB}, 1, v{vn}'); f_(f'  v_lshl_add_u32 v{tA}, v{tB}, 3, v{tA}')
f_(f'  v_add_u32 v{vP[0]}, s{sT[0]}, v{tA}')
for k in range(1, 4): f_(f'  v_xor_b32 v{vP[k]}, {16*k}, v{vP[0]}')
f_(f'  v_lshl_add_u32 v{tA}, v{vg}, 2, s{sT[1]}'); f_(f'  v_sub_u32 v{vCT}, v{tA}, v{vCT}')
f_(f'  v_cndmask_b32 v{vCT}, v{vCT}, 64, s[{sINV[1]}:{sINV[1]+1}]')
f_(f'  v_add_u32 v{SB0[0]}, s{sD0}, v{vSe}'); f_(f'  v_add_u32 v{SB0[1]}, s{sD0}, v{vSo}')
for k in range(4): f_(f'  v_add_u32 v{PB0[k]}, s{sD0}, v{vP[k]}')
f_(f'  s_mov_b32 s{sSC}, {SCALE}')
o2 = [f'  v_lshrrev_b32 v{tD}, 4, v{vL0}', f'  v_lshrrev_b32 v{tA}, 3, v{tD}', f'  s_mul_i32 s{sT[4]}, s{sH}, 7', f'  s_add_i32 s{sT[4]}, s{sT[4]}, s{sKC}',
      f'  v_cmp_lt_u32 {MSK}, 6, v{tA}', f'  v_add_u32 v{tA}, s{sT[4]}, v{tA}', f'  v_max_i32 v{tB}, 0, v{tA}', f'  v_add3_u32 v{tA}, v{tA}, v{tB}, 6',
      f'  v_xor_b32 v{tA}, s{sMC}, v{tA}', f'  v_add_u32 v{tA}, s{sAC}, v{tA}', f'  v_mul_u32_u24 v{tA}, 384, v{tA}',
      f'  v_and_b32 v{tB}, 7, v{tD}', f'  v_xor_b32 v{tB}, v{tB}, v{vg}', f'  v_lshl_add_u32 v{tA}, v{tB}, 4, v{tA}', f'  v_mov_b32 v{tB}, 0x80000000',
      f'  v_cndmask_b32 v{QA[0]}, v{tA}, v{tB}, {MSK}', f'  v_xor_b32 v{QA[1]}, 64, v{QA[0]}',
      f'  s_lshl_b32 s{sT[0]}, s{sU}, 2', f'  s_add_i32 s{sT[0]}, s{sT[0]}, s{sTR}']
for k in range(4):
    d = sQR[k]
    o2 += [f'  s_lshl_b32 s{d}, s{sT[0]}, 1', f'  s_add_i32 s{d}, s{d}, {2*(k-2) + 6}', f'  s_xor_b32 s{d}, s{d}, s{sMR}', f'  s_add_i32 s{d}, s{d}, s{sAR}', f'  s_mul_i32 s{d}, s{d}, 86016']
o2 += [f'  s_mul_i32 s{sST}, s{sW4}, 6', f'  s_add_u32 s{sST}, s{sST}, {SO}',
       f'  v_bfe_u32 v{tA}, v{vn}, 1, 3', f'  v_xor_b32 v{tA}, v{tA}, v{vg}', f'  v_lshlrev_b32 v{tB}, 7, v{vn}', f'  v_lshl_add_u32 v{tB}, v{tA}, 4, v{tB}',
       f'  v_lshrrev_b32 v{tA}, 3, v{vn}', f'  v_lshl_add_u32 v{tA}, v{tA}, 11, v{tB}', f'  v_add_u32 v{vQR}, s{sST}, v{tA}']
OLATE = opt('olate', 1)
F.insert(0, f'  v_mov_b32 v{vNB}, 0'); F.insert(0, f'  v_mov_b32 v{vNA}, 0')
if OLATE == 0: F += role_lines('O', o2); o2 = []
NPRE = opt('npre', 999)
NB1 = opt('nb1', 40)
el(F[:NB1]); emit_pos('B')
if OLATE == 2:
    assert NB1 in (2, 8)
    el(role_lines('Y', F[NB1:])); o2 = F[NB1:] + o2
else: el(F[NB1:])
F = []

def dma_x(G):
    out = []
    if G < 2: out += [f'  s_max_u32 s{sVO}, s{sGmin}, {G}', f'  s_mul_i32 s{sVO}, s{sVO}, s{sGS}']
    else: out.append(f'  s_mul_i32 s{sVO}, s{sGS}, {G}')
    out.append(f'  s_add_i32 s{sVO}, s{sVO}, s{sXB}')
    for j in range(4):
        out.append(f'  s_add_u32 m0, s{sM0X}, {G*15360 + j*1024}' if j < 3 else f'  s_add_u32 m0, s{sM0X3}, {G*15360}')
        out.append('  s_nop 0')
        out.append(f'  buffer_load_dwordx4 v{vD[j]}, {RX}, s{sVO} offen{NT} lds')
    return out
def dma_xs(Gs): return sum((dma_x(G) for G in Gs), [])
SPECIAL = [(1, 7), (1, 0), (0, 7), (0, 1), (0, 0)]
def bias_init(tmp, MID, TL):
    out = []; o = out.append
    ninf, tt = tmp, tmp+1
    sp = [x for x in SPECIAL if x[0] in TL]
    o(f'  v_mov_b32 v{ninf}, 0xff800000')
    for i in range(4): o(f'  v_add_u32 v{tt+i}, {i}, v{vCT}')
    for i in range(4): o(f'  v_cmp_gt_u32 s[{sT[2+2*i]}:{sT[3+2*i]}], 7, v{tt+i}')
    for q, (t, jj) in enumerate(sp):
        slot = jj + 2*t
        if slot == 0: o(f'  v_sub_u32 v{tt+4+q}, s{sR0}, v{vRR[t]}')
        else:
            o(f'  s_add_i32 s{sT[0]}, s{sA2}, {slot-1}'); o(f'  v_sub_u32 v{tt+4+q}, s{sT[0]}, v{vRR[t]}')
    for i in range(4): o(f'  v_cndmask_b32 v{MID+i}, v{ninf}, 0, s[{sT[2+2*i]}:{sT[3+2*i]}]')
    for q in range(len(sp)): o(f'  v_cmp_gt_u32 s[{sT[2*q]}:{sT[2*q+1]}], 7, v{tt+4+q}')
    for q, (t, jj) in enumerate(sp):
        for i in range(4): o(f'  v_cndmask_b32 v{SACC[t]+4*jj+i}, v{ninf}, v{MID+i}, s[{sT[2*q]}:{sT[2*q+1]}]')
    return out

tsp()
emit_pos('C')
tsp()
vLN = 107
def n_loads():
    e(f'  v_lshrrev_b32 v{vLN}, 4, v{vL0}')
    e(f'  s_cmp_lt_u32 s2, 72'); e('  s_cbranch_scc0 MK_np1')
    e(f'  s_mul_hi_u32 s{sT[8]}, s2, 0x15555556'); e(f'  s_lshl_b32 s{sT[8]}, s{sT[8]}, 6')
    e(f'  s_mul_i32 s{sT[9]}, s{sW}, {16*384}'); e(f'  s_add_u32 s{sVO}, s{sT[8]}, s{sT[9]}')
    e(f'  v_lshrrev_b32 v{MPK}, 2, v{vLN}'); e(f'  v_mul_u32_u24 v{MPK}, 384, v{MPK}'); e(f'  v_and_b32 v{MPK+1}, 3, v{vLN}'); e(f'  v_lshl_add_u32 v{MPK}, v{MPK+1}, 4, v{MPK}')
    e(f'  s_add_u32 m0, s{sWL}, {WOL}'); e('  s_nop 0')
    e(f'  buffer_load_dwordx4 v{MPK}, {RWO}, s{sVO} offen lds')
    e(f'  s_mul_i32 s{sT[9]}, s{sW4}, 6'); e(f'  s_add_u32 s{sVO}, s{sT[8]}, s{sT[9]}')
    e(f'  s_add_u32 m0, s{sW4}, {WOL + 8192}'); e(f'  s_add_u32 s{sVO}, s{sVO}, {8*16*384}')
    e(f'  buffer_load_dwordx4 v{MPK}, {RWO}, s{sVO} offen lds')
    e('MK_np1:')
    e(f'  s_sub_u32 s{sPROD}, s2, 72'); e(f'  s_lshr_b32 s{sPROD}, s{sPROD}, 31')
    e(f'  s_lshr_b32 s{sPROD}, s{sPROD}, s{sU}')
    e(f'  s_cmp_eq_u32 s{sPROD}, 0'); e('  s_cbranch_scc1 MK_np3')
    e(f'  s_mul_hi_u32 s{sT[8]}, s2, 0x15555556'); e(f'  s_mul_i32 s{sT[9]}, s{sT[8]}, 12'); e(f'  s_sub_u32 s{sT[9]}, s2, s{sT[9]}')
    e(f'  s_cmp_ge_u32 s{sT[9]}, 6'); e(f'  s_cselect_b32 s{sT[5]}, 1, 0'); e(f'  s_mul_i32 s{sVO}, s{sT[5]}, 6'); e(f'  s_sub_u32 s{sT[9]}, s{sT[9]}, s{sVO}')
    e(f'  v_lshrrev_b32 v{MPK+2}, 2, v{vn}'); e(f'  v_and_b32 v{MPK+1}, 3, v{vn}')
    e(f'  v_lshl_add_u32 v{vNB}, v{vg}, 3, v{MPK+2}'); e(f'  v_lshlrev_b32 v{vNB}, 6, v{vNB}'); e(f'  v_lshl_add_u32 v{vNB}, v{MPK+1}, 4, v{vNB}')
    e(f'  s_lshl_b32 s{sT[5]}, s{sT[5]}, 3'); e(f'  s_add_u32 s{sT[5]}, s{sT[5]}, {WOL}'); e(f'  v_add_u32 v{vNB}, s{sT[5]}, v{vNB}')
    e(f'  s_lshr_b32 s{sT[8]}, s{sT[9]}, 1'); e(f'  s_lshl_b32 s{sT[8]}, s{sT[8]}, 6')
    e(f'  s_and_b32 s{sT[9]}, s{sT[9]}, 1'); e(f'  s_lshl_b32 s{sT[9]}, s{sT[9]}, 4'); e(f'  s_add_u32 s{sT[8]}, s{sT[8]}, s{sT[9]}')
    e(f'  v_lshrrev_b32 v{MPK}, 1, v{MPK+2}'); e(f'  v_lshlrev_b32 v{MPK}, 5, v{MPK}')
    e(f'  v_and_b32 v{MPK+2}, 1, v{MPK+2}'); e(f'  v_lshl_add_u32 v{MPK}, v{MPK+2}, 2, v{MPK}')
    e(f'  v_add3_u32 v{MPK}, v{MPK}, v{MPK+1}, s{sT[8]}')
    e(f'  v_mul_u32_u24 v{MPK}, 1152, v{MPK}'); e(f'  v_lshl_add_u32 v{vNA}, v{vg}, 4, v{MPK}')
    e(f'  s_mul_i32 s{sVO}, s{sH}, 9216')
    for kk in range(6):
        e(f'  buffer_load_dwordx4 {V(136+4*kk)}, v{vNA}, {RW}, s{sVO} offen offset:{768+64*kk}')
    e('MK_np3:')
def m_reads(kk):
    rb = 184 + 36*(kk % 2); co = (kk // 2) * 49152
    lo = co if co < 49152*2 else 0
    return ([f'  ds_read_b128 {V(rb+24+4*b)}, v{vMB[kk % 2]} offset:{2048*b}' for b in range(3)] +
            [f'  ds_read_b128 {V(rb+4*a)}, v{vMA[kk % 2]} offset:{2048*a}' for a in range(6)])
def chunk_sync(c, lg):
    wo_, wy_ = after('O', f'W{c}'), after('Y', f'W{c}')
    x = ' lgkmcnt(0)' if lg else ''
    def w(n, prod):
        if c == 2 and prod and ISS['Y'].count('b'):
            return [f'  s_cmp_lg_u32 s{sU}, 0', '  s_cbranch_scc1 MK_c2', f'  s_waitcnt vmcnt({n - ISS["Y"].count("b")})', 'MK_c2:', f'  s_waitcnt vmcnt({n}){x}']
        if c != 1 or n == 63: return [f'  s_waitcnt vmcnt({n}){x}']
        lbl[0] += 1; k = lbl[0]; o = []
        if prod: o += [f'  s_cmp_lg_u32 s{sPROD}, 0', f'  s_cbranch_scc1 CA{k}']
        o += ['  s_cmp_lt_u32 s2, 72', f'  s_cbranch_scc1 CB{k}', f'  s_waitcnt vmcnt({n})', f'CB{k}:']
        if prod: o += [f'  s_waitcnt vmcnt({n+2})', f'CA{k}:', f'  s_waitcnt vmcnt({n+8}){x}']
        else: o += [f'  s_waitcnt vmcnt({n+2}){x}']
        return o
    if c == 2:
        wo_, wy_ = min(wo_, len(ISS['O']) - N_AT['O']), min(wy_, len(ISS['Y']) - N_AT['Y'])
    assert c != 1 or 'b' not in ISS['Y']
    if wo_ == wy_ and c != 2: el(w(wo_, True))
    else: el(role2_lines(w(wo_, False), w(wy_, True)))
    e('  s_barrier')
    tsp()
N_AT = {}
FPG = opt('fpg', 4)
chunk_sync(0, False)
el(m_reads(0))
SYA = opt('sya', 0)
for kk in range(4):
    odd = kk % 2 == 1
    extra = sched_items(str(kk)); ne = len(extra); cnt = 0
    rb = 184 + 36*(kk % 2)
    nx = m_reads(kk+1)
    issued = 0
    for a in range(6):
        if odd and a == SYA:
            chunk_sync(kk // 2 + 1, True)
            for r in vMA + vMB: e(f'  v_add_u32 v{r}, 49152, v{r}')
        if not (odd and a >= SYA): e(f'  s_waitcnt lgkmcnt({5 - a + issued})')
        for b in range(3):
            acc = MACC + 12*a + 4*b
            e(mfma(acc, rb+4*a, rb+24+4*b, None if kk == 0 else acc))
            slots = FPG
            if odd:
                for _ in range(1 if SYA <= 3 else 2):
                    if nx and a >= SYA and (b < 2 or SYA >= 2): e(nx.pop(0)); slots -= 1
            elif nx and b < 2 and a >= 1:
                e(nx.pop(0)); issued += 1; slots -= 1
            cnt += 1
            while extra and (ne - len(extra)) * 18 < cnt * ne: emit_item(extra.pop(0)); slots = 0
            el(F[:max(slots, 0)]); F = F[max(slots, 0):]
    el(nx)
    assert not extra
    if kk == opt('olk', 2) and o2: el(role_lines('O', o2))
    if kk == 0: n_loads(); N_AT.update(O=len(ISS['O']), Y=len(ISS['Y']))
print('leftover F', len(F), file=sys.stderr); el(F); F = []
assert ISS['Y'].count('q') <= 6
e(f'  s_cmp_eq_u32 s{sPROD}, 0'); e('  s_cbranch_scc1 MK_np2')
e('  s_waitcnt lgkmcnt(0)')
for k2 in range(6):
    for hf in range(2):
        e(f'  ds_read_b64_tr_b16 {V(MPK+4*k2+2*hf, 2)}, v{vNB} offset:{(32*k2 + 4*hf)*64}')
e('  s_setprio 3'); e('  s_waitcnt lgkmcnt(0)')
for kk in range(6):
    e(mfma(128, 136+4*kk, MPK+4*kk, None if kk == 0 else 128))
e(f'  s_lshl_b32 s{sVO}, s2, 10'); e(f'  s_lshl_b32 s{sT[8]}, s{sH}, 3'); e(f'  s_add_u32 s{sVO}, s{sVO}, s{sT[8]}')
e('  s_nop 5')
for r in range(2): e(f'  v_cvt_pk_bf16_f32 v{132+r}, v{128+2*r}, v{129+2*r}')
e(f'  buffer_store_dwordx2 v[132:133], v{vL0}, {RWS}, s{sVO} offen sc1')
NY_AT_STORE = len(ISS['Y'])
e('  s_setprio 0')
e('MK_np2:')
r5 = m_reads(5)
el(r5[:5]); late = r5[5:]
extra = sched_items('4'); ne = len(extra); cnt = 0
pend = []; nw = 0; wq = []
BWF = 0
for fi in range(9):
    a3, b = fi // 3, fi % 3
    if fi == 0: e('  s_waitcnt lgkmcnt(5)')
    if fi == 2: e('  s_waitcnt lgkmcnt(0)')
    for kk in (4, 5):
        rb = 184 + 36*(kk % 2)
        if fi == 0 and kk == 5: e('  s_waitcnt lgkmcnt(2)')
        for a in (2*a3, 2*a3+1):
            acc = MACC + 12*a + 4*b
            e(mfma(acc, rb+4*a, rb+24+4*b, acc)); cnt += 1
            if late: e(late.pop(0))
            k = 0
            while wq and fi >= BWF and k < 1: e(wq.pop(0)); k += 1
            while pend and pend[0][0] <= cnt and k < 2:
                l = pend.pop(0)[1]
                if 'ds_write' in l and (fi < BWF or wq): wq.append(l)
                else: e(l); k += 1
            while extra and (ne - len(extra)) * 36 < cnt * ne: emit_item(extra.pop(0))
    o = MPK + 4*(fi % 6)
    for a in range(2):
        acc = MACC + 12*(2*a3 + a) + 4*b
        for i in range(2): pend.append((cnt + 5, f'  v_cvt_pk_bf16_f32 v{o+2*a+i}, v{acc+2*i}, v{acc+2*i+1}'))
    pend.append((cnt + 5, f'  ds_write_b128 v{vMW[0]}, {V(o)} offset:{1024*(2-a3) + 6144*(2-b)}'))
assert not extra
tsp()
assert not wq
for i, (_, l) in enumerate(pend):
    if len(pend) - i == 5: e('  s_nop 3')
    e(l)
e('  s_waitcnt lgkmcnt(0)')
e('  s_barrier')
tsp()
NXY = opt('nxy', 2)
XH = (9, 8, 7, 6, 5)
assert ('Y', 'Z') not in PLAN and ('Y', '4') not in PLAN
y = [f'  s_cmp_lg_u32 s{sPROD}, 0', '  s_cbranch_scc1 MK_np4', '  s_waitcnt vmcnt(0)', 'MK_np4:', '  s_waitcnt vmcnt(1)', '  s_setprio 1']
o_ = sum((ls for _, ls in PLAN.get(('O', 'Z'), [])), []) + dma_xs(XH[:min(NXY, 2)]) + [f'  s_waitcnt vmcnt({4*min(NXY, 2)}) lgkmcnt(0)'] + q_reads() + ['  s_waitcnt lgkmcnt(0)', '  s_barrier'] + dma_xs(XH[2:max(NXY, 2)])
PRE_P1 = (o_, y)
PUB = [f'  s_cmp_eq_u32 s{sPROD}, 0', '  s_cbranch_scc1 MK_np5', '  s_waitcnt vmcnt(0)', '  v_mov_b32 v23, 1', '  s_mov_b64 exec, 1',
       *([f'  buffer_atomic_add v23, off, {RDB}, 0 sc1'] if 'atom' in OPT else
         [f'  s_lshl_b32 s{sVO}, s{sH}, 7', f'  buffer_atomic_add v23, off, {RDB}, s{sVO} sc1']), '  s_mov_b64 exec, -1', '  s_nop 3', 'MK_np5:']

BODY = r'''# ---------------- pipelined body
stream = []; frags = []
def add_frag(reads, gate): frags.append(dict(reads=reads, gate=gate, uses=0)); return len(frags) - 1
def use(fid, fn): frags[fid]['uses'] += 1; stream.append(('mfma', fn, fid))
def mf(text): stream.append(('mfma', (lambda buf: text), None))
def raw(*lines):
    for l in lines: stream.append(('raw', l))
def fill(*lines):
    for l in lines: stream.append(('fill', l))
def flush(): stream.append(('flush',))
def need(fid): stream.append(('need', fid))
def gate(name): stream.append(('gate', name))
def role(r, lines):
    if not lines: return
    if not SINGLE: stream.append(('cond', role_lines(r, lines)))
    elif r == 'Y': stream.append(('plain', lines))
def role2(lo, ly):
    if SINGLE or not lo: role('Y', ly)
    elif not ly: role('O', lo)
    else: stream.append(('cond', role2_lines(lo, ly)))
MID = SACC[1] + 4 if SINGLE else SACC[0] + 8
BAR = '  s_barrier'
SDMA = 'odma' not in OPT       # the single-tile waves load N
def m_read(f):
    addr = (71-f)*1024
    if addr < HALF: return [f'  ds_read_b128 {{d4}}, v{vL0} offset:{addr}']
    return [f'  ds_read_b128 {{d4}}, v{vL1} offset:{addr-HALF}']
def n_addr(f): return NHI + 30720 + 1024*f if f < 30 else ((f-30)*1024 if f < 40 else NHI + (f-40)*1024)
def n_read(f):
    if f >= 70: return []
    a = n_addr(f)
    return [f'  ds_read_b128 {{d4}}, v{vL1} offset:{a-NHI}' if a >= NHI else f'  ds_read_b128 {{d4}}, v{vL0} offset:{a}']
def dma_n(a, b):          # fragments a..b-1 (one address region), four waves
    out = []
    nw_ = 2 if SDMA else 4
    for f0 in range(a, b, nw_):
        lim = (b - 1 - f0) * 1024; src = sW4
        if lim < 1024*(nw_ - 1): out.append(f'  s_min_u32 s{sT[5]}, s{sW4}, {lim}'); src = sT[5]
        out += [f'  s_add_u32 m0, s{src}, {n_addr(f0)}', f'  s_add_u32 s{sVO}, s{src}, {f0*1024}',
                f'  buffer_load_dwordx4 v{vL0}, {RWS}, s{sVO} offen{NSC} lds']
    return out
CHAIN = [(0,0),(0,1),(0,2),(1,0),(1,1),(1,2),(1,3),(1,4),(1,5),(0,3),(0,4),(0,5)] if 'nochain' not in OPT else [(t, k) for k in range(6) for t in range(2)]
CHAIN = [x for x in CHAIN if x[0] in TL]
def proj(B, rd, gate_of, post, hooks):
    for s in range(6):
        for hh in range(2):
            f0 = 12*s + 6*hh
            fid = [add_frag(rd(f0+ks), gate_of(f0+ks)) for ks in range(6)]
            seen = set()
            for t, ks in CHAIN:
                f = f0 + ks
                if ks not in seen:
                    seen.add(ks)
                    if f in hooks: hooks[f](fid[ks])
                acc = ACC + 16*(s % 2) + 8*t + 4*hh
                fx = None if rd(f) else NREG + 4*(f-70)
                use(fid[ks], (lambda buf, acc=acc, t=t, ks=ks, fx=fx: mfma(acc, buf if fx is None else fx, B(t, ks), None if ks == 0 else acc)))
            if hh == 1: stream.append(('flushto', f'post{s-1}'))
            fill(*post(s, hh))
        stream.append(('tag', f'post{s}'))

gate('G0')
role2(PRE_P1[0], PRE_P1[1] if SINGLE else ['  s_waitcnt vmcnt(0)', '  s_setprio 1'])
raw('BODY:' if not SINGLE else 'BODYS:')
BF = bias_init(SACC[1] + 8, MID, TL)
fill(*BF[:30])
def p1_post(s, hh):
    out = []
    for t in (1, 0):
        if t == 0 and s == 5 and hh == 1: out.append('#QP5a')
        if t not in TL: continue
        acc = ACC + 16*(s % 2) + 8*t + 4*hh
        for r in range(4): out.append(f'  v_mul_f32 v{acc+r}, s{sSC}, v{acc+r}')
        for r in range(2): out.append(f'  v_cvt_pk_bf16_f32 v{QP+24*t+4*s+2*hh+r}, v{acc+2*r}, v{acc+2*r+1}')
    return out
proj(lambda t, ks: XQ+24*t+4*ks, m_read, lambda f: 'G0', p1_post,
     {13: lambda fid: fill(*BF[30:35]), 25: lambda fid: fill(*BF[35:39]), 37: lambda fid: fill(*BF[39:44]), 49: lambda fid: fill(*BF[44:48]), 60: lambda fid: (fill(*BF[48:]), stream.append(('tag', 'BIAS'))),
      opt('yb1', 58): lambda fid: role('Y', [BAR]),
      31: lambda fid: (need(fid), role2([BAR], PUB if SINGLE else [])),                                  # B2
      61: lambda fid: (need(fid), role('O', ['  s_waitcnt vmcnt(0)', BAR]))})         # B3
if 'p1flush' in OPT: flush()
stream.append(('tag', 'QP5'))
fill(f'  v_add_u32 v{vL1}, {NHI}, v{vL0}')
for r in range(4): fill(f'  v_mov_b32 v{ONES+r}, 0x3f803f80')
POLL = f'  buffer_load_dword v13, off, {RDB}, 0 sc1' if 'atom' in OPT else f'  buffer_load_dword v13, v14, {RDB}, 0 offen sc1'
PSET = [] if 'atom' in OPT else [f'  v_and_b32 v14, {128 if NCT == 2 else 192}, v{vL0}']
PMODE = opt('pmode', 1)      # 0 early plain poll, 1 late plain poll, 2 none (diagnostic only)
role('Y', ['  s_setprio 0'] + dma_xs(XH[NXY:]) + [BAR] + dma_xs((4, 3, 2)) + 
     ['  s_waitcnt vmcnt(12)', BAR] + dma_xs((1, 0)) + ['  s_waitcnt vmcnt(8)', BAR])        # B2 B3 B4a
for _ in range(opt('idle', 0)): raw('  s_sleep 8')      # diagnostic only
gate('S')
etn = [0]
def sm_fill(t, jj):
    tmp = ET + 4*(etn[0] % 5); etn[0] += 1
    acc = SACC[t] + 4*jj
    for i in range(4): fill(f'  v_exp_f32 v{tmp+i}, v{acc+i}')
    for i in range(2): fill(f'  v_cvt_pk_bf16_f32 v{PREG[t]+2*jj+i}, v{tmp+2*i}, v{tmp+2*i+1}')
    stream.append(('tag', f'P{t}_{jj}'))
def sum_mfmas(t):
    stream.append(('flushto', f'P{t}_0'))
    for kt in (3, 2, 1, 0): mf(mfma(SUM[t], ONES, PREG[t]+4*kt, None if kt == 3 else SUM[t]))
LO, HI = (127-30) << 23, (127+30) << 23
def check(t):
    raw(f'  v_subrev_u32 v{RI[1]}, {LO}, v{SUM[t]}')
    raw(f'  s_mov_b32 s{sT[6]}, {HI-LO}')
    raw(f'  v_cmp_gt_u32 s[{sT[2]}:{sT[3]}], s{sT[6]}, v{RI[1]}')
    raw(f'  s_or_b64 s[{sT[2]}:{sT[3]}], s[{sT[2]}:{sT[3]}], s[{sINV[t]}:{sINV[t]+1}]')
    raw(f'  s_cmp_eq_u64 s[{sT[2]}:{sT[3]}], -1')
    raw(f'  s_cbranch_scc0 FB{t}{SFX}')
    raw(f'FBR{t}{SFX}:')
if 'atom' in OPT:
    pollw = [f'  s_mov_b32 s{sT[7]}, 0x40000', 'NPOLL:', '  s_waitcnt vmcnt(0)', f'  v_readfirstlane_b32 s{sT[0]}, v13', f'  s_sub_u32 s{sT[7]}, s{sT[7]}, 1',
             f'  s_cselect_b32 s{sT[0]}, 144, s{sT[0]}', f'  s_cmp_ge_u32 s{sT[0]}, 144', '  s_cbranch_scc1 NPOLLD', POLL, '  s_branch NPOLL', 'NPOLLD:']
else:
    pollw = [f'  s_mov_b32 s{sT[7]}, 0x40000', f'  s_mov_b32 s{sT[0]}, {144 // NCT}', 'NPOLL:', '  s_waitcnt vmcnt(0)', f'  v_cmp_le_u32 s[{sT[2]}:{sT[3]}], s{sT[0]}, v13',
             f'  s_sub_u32 s{sT[7]}, s{sT[7]}, 1', '  s_cbranch_scc1 NPOLLD', f'  s_cmp_eq_u64 s[{sT[2]}:{sT[3]}], -1', '  s_cbranch_scc1 NPOLLD', POLL, '  s_branch NPOLL', 'NPOLLD:']
ODMA = not SDMA
# Y's positions of B5a / B5b / B6 in units of "S slot or PV step index": 0..9 = before the k-th S slot, 10..14 = before the k-th PV step
YP = {opt('y5a', 7): [BAR] + pollw + dma_n(0, 30) + dma_n(30, 40),
      opt('y5b', 10): ['  s_waitcnt vmcnt(0)', BAR] + dma_n(40, 70),
      opt('y6', 12): ['  s_waitcnt vmcnt(0)', BAR]}
assert len(YP) == 3
if ODMA or not SINGLE: YP = {k: [BAR] for k in YP}
else:
    YP = {opt('s5a', 9): pollw + dma_n(30, 40) + [BAR] + dma_n(0, 30), opt('s5b', 11): ['  s_waitcnt vmcnt(0)', BAR] + dma_n(40, 70),
          opt('s6', 13): ['  s_waitcnt vmcnt(0)', BAR], opt('spoll', 5): PSET + [POLL.replace(' sc1', '')]}
    assert len(YP) == 4
if 'yhi' in OPT: YP[opt('yhi', 0)] = YP.get(opt('yhi', 0), []) + ['  s_setprio 1']
O4B = opt('o4b', 6)
for k, slot in enumerate(range(9, -1, -1)):
    if k == 2:
        role2([BAR], ['  s_waitcnt vmcnt(0)', BAR]); gate('S2')       # O: B4a ; Y: B4b
    if k == O4B: role('O', [BAR] + (PSET + [POLL.replace(' sc1', '')] if ODMA else []))             # B4b
    if k in YP: role('Y', YP[k])
    if SINGLE and slot < 2:
        if slot == 0: sum_mfmas(1)
        continue
    fid = []
    for s in range(6):
        if slot == 0: base, off = SB0[s % 2], 128*(s//2)
        else: base, off = (vSe, vSo)[s % 2], (slot-1)*ROW + 128*(s//2)
        fid.append(add_frag([f'  ds_read_b128 {{d4}}, v{base} offset:{off}'], 'S' if slot >= 6 else 'S2'))
    for t, s in CHAIN:
        jj = slot - 2*t
        if 0 <= jj < 8:
            if slot == 0 and s == 3: sum_mfmas(1)
            if slot == 9 and s == 0: stream.append(('flushto', 'BIAS'))
            if slot == 9 and s == 5: stream.append(('flushto', 'QP5a'))
            if slot == 7 and s == 5: stream.append(('flushto', 'QP5'))
            acc = SACC[t] + 4*jj
            cin = MID if s == 0 and (t, jj) not in SPECIAL else acc
            use(fid[s], (lambda buf, acc=acc, t=t, s=s, cin=cin: mfma(acc, buf, QP+24*t+4*s, cin)))
    for t in TL:
        jj = slot - 2*t
        if 0 <= jj < 8: sm_fill(t, jj)
check(1)
YC1 = 0
def ycvt(t, ks, _=0):
    return [f'  v_cvt_pk_bf16_f32 v{YB[t][ks]+2*hf+i}, v{YACC[t][2*ks+hf]+2*i}, v{YACC[t][2*ks+hf]+2*i+1}' for hf in range(2) for i in range(2)]
lastf = None
for k, st in enumerate(range(4, -1, -1)):
    if k == 1:
        if not SINGLE: sum_mfmas(0); check(0)
        for t in TL: fill(f'  v_rcp_f32 v{RI[t]}, v{SUM[t]}')
    if k == 2: need(lastf); role('O', [BAR] + (pollw + dma_n(30, 40) + dma_n(0, 30) if ODMA else []))     # B5a
    if 10 + k in YP: role('Y', YP[10 + k])
    if SINGLE and k == 4:
        gate('P4a'); continue
    for ct in range(12):
        tl = [t for t in TL if 0 <= st - t < 4]
        b_, e_ = ct // 4, ct % 4
        rd = []
        for hf in range(2):
            slot = 2*st + hf
            if slot == 0: base, off = PB0[e_], 128*b_
            else: base, off = vP[e_], (slot-1)*ROW + 128*b_
            rd.append(f'  ds_read_b64_tr_b16 {{d{"lo" if hf == 0 else "hi"}}}, v{base} offset:{off}')
        fid = add_frag(rd, 'S2'); lastf = fid
        if k == 4 and ct == opt('o5b', 6):
            stream.append(('needall', fid + 11 - ct)); role('O', ['  s_waitcnt vmcnt(0)', BAR] + dma_n(40, 70) if ODMA else [BAR]); gate('P4a')         # B5b: every X read of this wave has landed
        for t in tl:
            acc = YACC[t][ct]
            use(fid, (lambda buf, acc=acc, t=t, st=st: mfma(acc, buf, PREG[t]+4*(st-t), None if st - t == 3 else acc)))
        if k == 3 and ct % 2 and ct < 12 - YC1:
            fill(*ycvt(1, ct // 2, 1))
            if SINGLE: stream.append(('tag', f'YB{ct // 2}'))
        if k == 4 and ct % 2: fill(*ycvt(0, ct // 2, 0)); stream.append(('tag', f'YB{ct // 2}'))
    if k == 3:
        for ks in range(6 - YC1 // 2, 6): fill(*ycvt(1, ks, 1))
NLD = [f'  s_mov_b32 s{sVO}, {70*1024}'] + [f'  buffer_load_dwordx4 {V(NREG+4*i)}, v{vL0}, {RWS}, s{sVO} offen offset:{1024*i} sc1' for i in range(2)]
if 15 in YP: role('Y', YP[15])
def p4_post(s, hh):
    out = []
    for t in TL:
        acc = ACC + 16*(s % 2) + 8*t + 4*hh
        o = OUTR + 8*(s % 2) + 4*t
        for r in range(4): out.append(f'  v_mul_f32 v{acc+r}, v{acc+r}, v{RI[t]}')
        for r in range(2): out.append(f'  v_cvt_pk_bf16_f32 v{o+2*hh+r}, v{acc+2*r}, v{acc+2*r+1}')
        if hh: out.append(f'  buffer_store_dwordx4 {V(o)}, v{vO[t]}, {RO}, 0 offen offset:{64*s}{NTO}')
    return out
proj(lambda t, ks: YB[t][ks], n_read, lambda f: 'P4a' if f < 40 else 'P4b', p4_post,
     {**{ks: (lambda fid, ks=ks: stream.append(('flushto', f'YB{ks}'))) for ks in range(6)},
      12: lambda fid: raw(*NLD),
      opt('o6', 24): lambda fid: (role('O', (['  s_waitcnt vmcnt(%d)' % (2 if 'pairst' in OPT else 4)] if ODMA else []) + [BAR]), gate('P4b')),                 # B6
      60: lambda fid: raw(f'  s_waitcnt vmcnt({4*len(TL)})'),
      })
flush()

# ---------------- emitter: read scheduling, gap filling, hazard padding
def regs_of(tok):
    m = re.fullmatch(r'v\[(\d+):(\d+)\]', tok)
    if m: return list(range(int(m.group(1)), int(m.group(2)) + 1))
    m = re.fullmatch(r'-?v(\d+)', tok)
    return [int(m.group(1))] if m else []
def parse(line):
    p = line.strip().split(None, 1)
    op = p[0]; args = [a.strip().split()[0] for a in p[1].split(',')] if len(p) > 1 else []
    return op, args
clock = [0]
mf_w = {}; va_w = {}; tr_w = {}; mf_c = {}; sg_w = {}
def hazard(line):
    """wait states still required before `line` may issue"""
    op, args = parse(line); need_ = 0
    allr = [r for a in args for r in regs_of(a)]
    if op.startswith('v_mfma'):
        for r in [r for a in args[1:] for r in regs_of(a)]:
            if r in va_w: need_ = max(need_, 2 - (clock[0] - va_w[r] - 1))
        for r in regs_of(args[1]) + regs_of(args[2]):
            if r in mf_w: need_ = max(need_, 8 - (clock[0] - mf_w[r] - 1))
    elif op.startswith('v_') or op.startswith('buffer_') or op.startswith('ds_'):
        for r in allr:
            if r in mf_w: need_ = max(need_, 8 - (clock[0] - mf_w[r] - 1))
        if op.startswith('v_'):
            for r in regs_of(args[0]):
                if r in mf_c: need_ = max(need_, 3 - (clock[0] - mf_c[r] - 1))
            for r in [r for a in args[1:] for r in regs_of(a)]:
                if r in tr_w: need_ = max(need_, 1 - (clock[0] - tr_w[r] - 1))
            for a in args[1:]:
                if a in sg_w: need_ = max(need_, 2 - (clock[0] - sg_w[a] - 1))
    return need_
def emit(line):
    if line.endswith(':'):
        e(line); return
    n = hazard(line)
    if n > 0:
        e(f'  s_nop {n-1}'); clock[0] += n
    op, args = parse(line)
    e(line)
    if op.startswith('v_mfma'):
        for r in regs_of(args[0]): mf_w[r] = clock[0]
        for r in regs_of(args[3]): mf_c[r] = clock[0]
    elif op.startswith('v_'):
        if args[0].startswith('s'): sg_w[args[0]] = clock[0]
        for r in regs_of(args[0]):
            va_w[r] = clock[0]; tr_w.pop(r, None)
            if op in ('v_exp_f32', 'v_rcp_f32'): tr_w[r] = clock[0]
    if op == 's_nop': clock[0] += int(args[0])
    clock[0] += 1

gates = set(); nxt = 0; done_uses = [0]*len(frags)
ops = []; landed = -1; half = [None]
fq = []
def buf_of(f): return ABUF + 4*(f % NB)
def issue_one():
    global nxt
    while True:
        if half[0] is not None:
            emit(half[0]); ops.append(nxt); half[0] = None; nxt += 1; return True
        if nxt >= len(frags): return False
        fr = frags[nxt]
        if fr['gate'] not in gates: return False
        if nxt >= NB and done_uses[nxt-NB] < frags[nxt-NB]['uses']: return False
        if not fr['reads']:
            nxt += 1; continue
        if len(ops) + len(fr['reads']) > (13 if TSM else 15): return False
        b = buf_of(nxt)
        rs = [r.format(d4=V(b), dlo=V(b, 2), dhi=V(b+2, 2)) for r in fr['reads']]
        emit(rs[0]); ops.append(nxt)
        if len(rs) == 2: half[0] = rs[1]
        else: nxt += 1
        return True
def wait_for(f, pair=True):
    global landed, ops
    if f is None or f <= landed: return
    while nxt <= f:
        n0 = nxt
        if not issue_one() and nxt == n0: raise RuntimeError(f'cannot issue frag {nxt}')
    if any(o <= f for o in ops):
        if pair and f + 1 < nxt and sum(1 for o in ops if o > f + 1) >= PAIRMIN: f = f + 1
        n = sum(1 for o in ops if o > f)
        emit(f'  s_waitcnt lgkmcnt({n})')
        ops = [o for o in ops if o > f]
    landed = f
def sregs(tok):
    m = re.fullmatch(r's\[(\d+):(\d+)\]', tok)
    if m: return [-1 - r for r in range(int(m.group(1)), int(m.group(2)) + 1)]
    m = re.fullmatch(r's(\d+)', tok)
    return [-1 - int(m.group(1))] if m else []
def wr(l):
    op, args = parse(l)
    return set() if op.startswith('buffer_') else set(regs_of(args[0]) + sregs(args[0]))
def rdset(l):
    op, args = parse(l)
    return set(r for a in (args if op.startswith('buffer_') else args[1:]) for r in regs_of(a) + sregs(a))
def pick(pred):
    """first filler satisfying pred that does not depend on an earlier pending filler (window limited)"""
    W, R = set(), set()
    for i, l in enumerate(fq[:WINDOW]):
        if l.startswith('#'): continue
        if pred(l) and not (rdset(l) & W) and not (wr(l) & (W | R)) and hazard(l) <= 0: return i
        W |= wr(l); R |= rdset(l)
    return None
def is2(l): return 'v_exp' in l or 'v_rcp' in l
def isst(l): return 'buffer_store' in l
def gap(si, ent):
    while fq and fq[0].startswith('#'): fq.pop(0)
    cur = ent[2] if ent[2] is not None else landed
    nf = STREAM_NEXT.get(si)
    wnext = nf is not None and nf > landed                     # a wait will precede the next MFMA
    ahead = nxt - cur
    i = pick(isst)
    if i is not None and half[0] is None and ahead >= MINAHEAD:
        emit(fq.pop(i))
        i = pick(lambda l: not is2(l) and not isst(l))
        if i is not None: emit(fq.pop(i))
        return
    slots = 1 if wnext else 2
    nexp = sum(1 for l in fq if is2(l))
    # an exp takes a whole gap: while the ring is deep enough leave this gap to it
    if not wnext and half[0] is None and ahead >= EXPAHEAD:
        i = pick(is2)
        if i is not None:
            emit(fq.pop(i)); return
    if issue_one(): slots -= 1
    if (half[0] is not None or slots > 0 and (nexp or not fq or ahead < 6)) and issue_one(): slots -= 1
    if nexp > BACKLOG: slots = max(slots, 1 if pick(lambda l: not is2(l) and not isst(l)) is not None else 2)
    while slots > 0:
        i = pick(is2) if slots >= 2 else None
        if i is not None:
            emit(fq.pop(i)); slots -= 2; continue
        i = pick(lambda l: not is2(l) and not isst(l))
        if i is None: break
        emit(fq.pop(i)); slots -= 1
WINDOW = opt('window', 16); MINAHEAD = opt('minahead', 5); EXPAHEAD = opt('expahead', 7)
nmf = [0]
BACKLOG = opt('backlog', 6); PAIRMIN = opt('pairmin', 5)
STREAM_NEXT = {}
mi = [i for i, x in enumerate(stream) if x[0] == 'mfma']
for a_, b_ in zip(mi, mi[1:]): STREAM_NEXT[a_] = stream[b_][2]
for si, ent in enumerate(stream):
    k = ent[0]
    if k == 'raw': emit(ent[1])
    elif k == 'fill': fq.append(ent[1])
    elif k == 'flush':
        for l in fq:
            if not l.startswith('#'): emit(l)
        fq = []
    elif k == 'tag': fq.append('#' + ent[1])
    elif k == 'flushto':
        if '#' + ent[1] in fq:
            i = fq.index('#' + ent[1])
            for l in fq[:i]:
                if not l.startswith('#'): emit(l)
            fq = fq[i+1:]
    elif k == 'gate':
        gates.add(ent[1])
        while issue_one(): pass
    elif k in ('need', 'needall'): wait_for(ent[1])
    elif k == 'plain': el(ent[1])
    elif k == 'cond':
        emit(ent[1][0]); el(ent[1][1:])          # only the branch itself counts as distance
    elif k == 'mfma':
        wait_for(ent[2])
        if nmf[0] in TSM and not SINGLE: e(ts_line())
        nmf[0] += 1
        emit(ent[1](buf_of(ent[2]) if ent[2] is not None else None))
        if ent[2] is not None: done_uses[ent[2]] += 1
        gap(si, ent)
'''
e(f'  s_cmp_eq_u32 s{sU}, 0'); e('  s_cbranch_scc1 MK_single')
SINGLE, TL, SFX = False, (1, 0), ''
exec(BODY)
e('MK_fin:')
if TS:
    e('  s_waitcnt vmcnt(0)')
    e(ts_line()); e('  s_memrealtime s[98:99]')
    e('  s_waitcnt lgkmcnt(0)')
    e(f'  s_lshl_b32 s{sT[0]}, s2, 3'); e(f'  s_add_u32 s{sT[0]}, s{sT[0]}, s{sW}'); e(f'  s_lshl_b32 s{sT[0]}, s{sT[0]}, 6')
    e(f'  s_add_u32 s{sT[0]}, s{sT[0]}, 0x100000')
    e('  v_mov_b32 v1, 0')
    for i in range(nts[0]):
        if i == 0: e(f'  v_mov_b32 v2, s{sTS}')
        else:
            e(f'  s_sub_u32 s{sT[1]}, s{sTS+2*i}, s{sTS}'); e(f'  v_mov_b32 v2, s{sT[1]}')
        e(f'  buffer_store_dword v2, v1, s[20:23], s{sT[0]} offen offset:{4*i}')
    e('  v_mov_b32 v2, s96'); e('  v_mov_b32 v3, s98')
    e(f'  buffer_store_dwordx2 v[2:3], v1, s[20:23], s{sT[0]} offen offset:56')
    print('timestamps', nts[0]); assert nts[0] <= 12
e('MK_done:')
e('  s_endpgm')
e('MK_single:')
SINGLE, TL, SFX = True, (1,), 's'
exec(BODY)
e('  s_branch MK_fin' if TS else '  s_endpgm')
for t, sfx in ((0, ''), (1, ''), (1, 's')):
    R = SACC[t]; vm, vt = RI[0], RI[1]
    e(f'FB{t}{sfx}:')
    e('  s_nop 7')
    e(f'  v_max3_f32 v{vm}, v{R}, v{R+1}, v{R+2}')
    for k in range(3, 31, 2): e(f'  v_max3_f32 v{vm}, v{vm}, v{R+k}, v{R+k+1}')
    e(f'  s_mov_b32 s{sT[6]}, 0xff7fffff')
    e(f'  v_max3_f32 v{vm}, v{vm}, v{R+31}, s{sT[6]}')
    for sw in ('v_permlane32_swap_b32', 'v_permlane16_swap_b32'):
        e(f'  v_mov_b32 v{vt}, v{vm}'); e('  s_nop 1'); e(f'  {sw} v{vm}, v{vt}'); e('  s_nop 1')
        e(f'  v_max_f32 v{vm}, v{vm}, v{vt}')
    for k in range(32): e(f'  v_sub_f32 v{R+k}, v{R+k}, v{vm}')
    for k in range(32): e(f'  v_exp_f32 v{R+k}, v{R+k}')
    e('  s_nop 0')
    for k in range(16): e(f'  v_cvt_pk_bf16_f32 v{PREG[t]+k}, v{R+2*k}, v{R+2*k+1}')
    e('  s_nop 1')
    for kt in range(4): e(mfma(SUM[t], ONES, PREG[t]+4*kt, None if kt == 0 else SUM[t]))
    e('  s_nop 7')
    e(f'  s_branch FBR{t}{sfx}')
e('MK_end:')
e('.section .rodata,"a"')
e('.p2align 6'); e(f'.amdhsa_kernel {KN}')
e('  .amdhsa_next_free_vgpr 256'); e('  .amdhsa_next_free_sgpr 102'); e('  .amdhsa_accum_offset 256')
e('  .amdhsa_group_segment_fixed_size 0'); e('  .amdhsa_kernarg_size 48'); e('  .amdhsa_user_sgpr_count 2')
e('  .amdhsa_user_sgpr_kernarg_segment_ptr 1'); e('  .amdhsa_system_sgpr_workgroup_id_x 1')
e('.end_amdhsa_kernel')
if 'drop' in OPT:
    kinds = OPT['drop'].split(',')
    i0 = next(i for i, l in enumerate(L) if 'MK_np4:' in l)
    out = []; n = 0
    for i, l in enumerate(L):
        body = i > i0
        if 'mM' in kinds and not body and 'v_mfma' in l: l = '  s_nop 3'
        if 'exp' in kinds and 'v_exp' in l: l = l.replace('v_exp_f32', 'v_mov_b32')
        if 'lds' in kinds and body and 'ds_read_b128' in l:
            l = re.sub(r'ds_read_b128 v\[(\d+):\d+\]', lambda m: f'ds_read_b32 v{m.group(1)}', l)
        if 'tr' in kinds and body and 'ds_read_b64_tr' in l:
            l = re.sub(r'ds_read_b64_tr_b16 v\[(\d+):\d+\], v\d+', lambda m: f'ds_read_b32 v{m.group(1)}, v{vL0}', l)
        if 'mfma' in kinds and body and 'v_mfma' in l:
            n += 1
            if n % 2: l = '  s_nop 3'
        if 'nslab' in kinds and RWO in l and 'buffer_load' in l: l = '  s_nop 0'
        if 'nwv' in kinds and f'v{vNA}, {RW}' in l: l = '  s_nop 0'
        if 'ncomp' in kinds and 's_cbranch_scc1 MK_np2' in l: l = '  s_branch MK_np2'
        if 'st' in kinds and 'buffer_store_dwordx4' in l: l = '  s_nop 0'
        out.append(l)
    L = out
open(OUTF, 'w').write('\n'.join(L) + '\n')
```

```python
import sys, struct, math, re
OPT = dict(a.split('=') if '=' in a else (a, '1') for a in sys.argv[1:])
OUTF = OPT.get('out', 'standalone__neighborhood_nat__vision.s')
TS = 'ts' in OPT
TSM = [int(x) for x in OPT['tsm'].split(',')] if 'tsm' in OPT else []
TSP = 'tsp' in OPT
def opt(k, d): return int(OPT.get(k, d))
L = []
def e(s): L.append(s)
def el(ls):
    for l in ls: L.append(l)

X_BYTES = 19267584
WS_BYTES = 268435456
XB = 10240
ROW = 7680
HALF = 36864
NHI = XB + 12*ROW
WOL = 147456
SCALE = struct.unpack('<I', struct.pack('<f', (192 ** -0.5) * math.log2(math.e)))[0]
NT = ' nt' if 'nt' in OPT else ''
NCT = 2
NSC = '' if 'nplain' in OPT else ' sc1'
NTO = ' ' + OPT.get('st', 'nt+sc1').replace('+', ' ')
KN = 'standalone__neighborhood_nat__vision_kernel'

hdr = open('standalone__neighborhood_nat__vision.s.ref').read().split('\n')
for ln in hdr:
    if ln.startswith('; @launch'): break
    e(ln)
e('; @launch grid=(256,1,1) block=(512,1,1) lds=163840')
e('.amdgcn_target "amdgcn-amd-amdhsa--gfx950"')
e('.text')

def srd(d, b, n):
    return [f'  s_mov_b32 s{d}, s{b}', f'  s_and_b32 s{d+1}, s{b+1}, 0xffff', f'  s_mov_b32 s{d+2}, {n}', f'  s_mov_b32 s{d+3}, 0x00020000']
def V(a, n=4): return f'v[{a}:{a+n-1}]'
def mfma(d, a, b, c):
    cs = '0' if c is None else V(c)
    return f'  v_mfma_f32_16x16x32_bf16 {V(d)}, {V(a)}, {V(b)}, {cs}'

vL0, vL1 = 1, 2
vO = (5, 6)
vSe, vSo = 7, 8
vP = (9, 10, 11, 12)
vD = (13, 14, 3, 4)
PB0 = (15, 16, 17, 18)
vCT = 19
SB0 = (20, 0)
vRR = (21, 22)
RI = (22, 23)
SACC = (24, 56); QP = 88; XQ = 136; ACC = 184
ABUF = 216; NB = 10
PREG = (136, 152)
YB = ([140, 144, 148, 168, 172, 152], [156, 160, 164, 176, 180, 72])
YACC = ([24+4*i for i in range(12)], [88+4*i for i in range(12)])
SUM = (184, 188); ONES = 192; ET = 196
OUTR = 24; NREG = 40
MACC = 24; MPK = 104
vWA = 96; vMA, vMB, vMW = (97, 98), (99, 100), (101, 102, 103)
vn, vg, tA, tB, tC, tD = 128, 129, 130, 131, 132, 133
vNB, vNA = 134, 135
QA = (134, 135); vQR = 23
CH = (0, 49152, 98304)
SO = 73728
sQR = (84, 85, 86, 87); sST = 101
sW, sU, sH, sPR, sPC, sKR, sKC, sXB, sGS, sGmin = range(24, 34)
sA2, sR0, sD0, sTR, sM0X, sM0X3, sW4, sWL = range(34, 42)
sINV = (42, 44)
sT = list(range(46, 60))
sMR, sAR, sMC, sAC = sT[10], sT[11], sT[12], sT[13]
sTS = 60
sPROD, sWB, sSC, sVO = 3, 92, 93, 100
RX, RO, RWS, RW, RWO, RDB = 's[12:15]', 's[16:19]', 's[20:23]', 's[88:91]', 's[4:7]', 's[8:11]'
MSK = f's[{sT[6]}:{sT[7]}]'
assert sT[6] % 2 == 0 and sT[2] % 2 == 0

nts = [0]
def ts_line():
    s = f'  s_memtime s[{sTS+2*nts[0]}:{sTS+2*nts[0]+1}]'; nts[0] += 1; return s
def tsp():
    if TSP: e(ts_line())

e(f'.globl {KN}'); e('.p2align 8'); e(f'.type {KN},@function'); e(f'{KN}:')
e('  s_cmp_ge_u32 s2, 256'); e('  s_cbranch_scc1 MK_done')
if TS: e(ts_line()); e('  s_memrealtime s[96:97]')
e('  s_load_dwordx8 s[4:11], s[0:1], 0')
e('  s_load_dwordx4 s[84:87], s[0:1], 32')
if 'nopf' not in OPT:
    e('  s_getpc_b64 s[12:13]'); e('MK_pc:')
    e('  s_and_b32 s13, s13, 0xffff'); e('  s_mov_b32 s14, MK_end-MK_pc'); e('  s_mov_b32 s15, 0x00020000')
    e('  v_lshlrev_b32 v23, 7, v0')
    e('  buffer_load_dword v255, v23, s[12:15], 0 offen')
e(f'  v_lshrrev_b32 v{tA}, 6, v0')
e('  v_and_b32 v0, 63, v0')
e(f'  v_readfirstlane_b32 s{sW}, v{tA}')
e(f'  v_and_b32 v{vn}, 15, v0'); e(f'  v_lshrrev_b32 v{vg}, 4, v0')
e(f'  v_lshrrev_b32 v{tA}, 5, v0'); e(f'  v_bfe_u32 v{tB}, v0, 3, 2'); e(f'  v_lshl_add_u32 v{tA}, v{tA}, 3, v{tB}')
e(f'  v_mul_u32_u24 v{tA}, 1152, v{tA}')
e(f'  s_and_b32 s{sH}, s{sW}, 1')
e(f'  s_lshl_b32 s{sT[0]}, s{sH}, 2')
e(f'  v_add_u32 v{tB}, s{sT[0]}, v{vg}'); e(f'  v_and_b32 v{tC}, 7, v0'); e(f'  v_xor_b32 v{tB}, v{tB}, v{tC}')
e(f'  v_lshl_add_u32 v{vWA}, v{tB}, 4, v{tA}')
e(f'  s_lshr_b32 s{sT[0]}, s{sW}, 2'); e(f'  s_lshl_b32 s{sT[0]}, s{sT[0]}, 5')
e(f'  s_lshl_b32 s{sT[1]}, s{sH}, 4'); e(f'  s_add_u32 s{sT[0]}, s{sT[0]}, s{sT[1]}')
e(f'  s_and_b32 s{sT[1]}, s{sW}, 2'); e(f'  s_lshl_b32 s{sT[1]}, s{sT[1]}, 1'); e(f'  s_add_u32 s{sT[0]}, s{sT[0]}, s{sT[1]}')
e(f'  s_mul_i32 s{sWB}, s{sT[0]}, 1152')
e(f'  s_lshl_b32 s{sWL}, s{sW}, 10')
e(f'  s_cmp_lt_u32 s{sW}, 4'); e('  s_cselect_b64 vcc, -1, 0')
EARLY_AT = len(L)
e(f'  s_bfe_u32 s{sPR}, s2, 0x10002')
e(f'  s_bfe_u32 s{sPC}, s2, 0x10001')
e(f'  s_and_b32 s{sKR}, s2, 1'); e(f'  s_lshl_b32 s{sKR}, s{sKR}, 2')
e(f'  s_lshr_b32 s{sT[0]}, s2, 6'); e(f'  s_add_u32 s{sKR}, s{sKR}, s{sT[0]}')
e(f'  s_bfe_u32 s{sKC}, s2, 0x30003')
e(f'  s_mul_i32 s{sTR}, s{sKR}, 14'); e(f'  s_add_i32 s{sTR}, s{sTR}, -6'); e(f'  s_max_i32 s{sKR}, s{sTR}, -4')
e(f'  s_mul_i32 s{sKC}, s{sKC}, 14'); e(f'  s_add_i32 s{sKC}, s{sKC}, -6')
e(f'  s_lshr_b32 s{sU}, s{sW}, 1'); e(f'  s_add_u32 s{sU}, s{sU}, 2'); e(f'  s_and_b32 s{sU}, s{sU}, 3')
e(f'  s_sub_u32 s{sMR}, 0, s{sPR}'); e(f'  s_mul_i32 s{sAR}, s{sPR}, 224')
e(f'  s_sub_u32 s{sMC}, 0, s{sPC}'); e(f'  s_mul_i32 s{sAC}, s{sPC}, 224')
e(f'  v_and_b32 v{tA}, 7, v{vn}')
e(f'  s_mul_i32 s{sT[0]}, s{sH}, 7'); e(f'  s_add_i32 s{sT[0]}, s{sT[0]}, s{sKC}')
e(f'  v_cmp_lt_u32 s[{sT[2]}:{sT[3]}], 6, v{tA}')
e(f'  v_add_u32 v{tA}, s{sT[0]}, v{tA}')
e(f'  v_max_i32 v{vCT}, 0, v{tA}')
e(f'  v_add3_u32 v{tA}, v{tA}, v{vCT}, 6')
e(f'  v_xor_b32 v{tA}, s{sMC}, v{tA}'); e(f'  v_add_u32 v{tA}, s{sAC}, v{tA}')
e(f'  v_subrev_u32 v{vCT}, s{sKC}, v{vCT}')
e(f'  v_mul_u32_u24 v{tA}, 384, v{tA}'); e(f'  v_lshl_add_u32 v{tA}, v{vg}, 4, v{tA}')
e(f'  s_lshl_b32 s{sT[0]}, s{sU}, 2'); e(f'  s_add_i32 s{sT[0]}, s{sT[0]}, -2')
e(f'  s_mov_b32 s{sT[1]}, 86016')
e(f'  v_lshrrev_b32 v{tB}, 3, v{vn}'); e(f'  v_add_u32 v{tB}, s{sT[0]}, v{tB}')
e(f'  v_mov_b32 v{tC}, 0x80000000')
for t in range(2):
    if t: e(f'  v_add_u32 v{tB}, 2, v{tB}')
    e(f'  v_cmp_gt_i32 s[{sINV[t]}:{sINV[t]+1}], 0, v{tB}')
    e(f'  v_add_u32 v{vO[t]}, s{sTR}, v{tB}')
    e(f'  v_max_i32 v{vRR[t]}, 0, v{vO[t]}')
    e(f'  v_add3_u32 v{vO[t]}, v{vO[t]}, v{vRR[t]}, 6')
    e(f'  s_or_b64 s[{sINV[t]}:{sINV[t]+1}], s[{sINV[t]}:{sINV[t]+1}], s[{sT[2]}:{sT[3]}]')
    e(f'  v_xor_b32 v{vO[t]}, s{sMR}, v{vO[t]}'); e(f'  v_add_u32 v{vO[t]}, s{sAR}, v{vO[t]}')
    e(f'  v_subrev_u32 v{vRR[t]}, s{sKR}, v{vRR[t]}')
    e(f'  v_mad_u32_u24 v{vO[t]}, v{vO[t]}, s{sT[1]}, v{tA}')
    e(f'  v_cndmask_b32 v{vRR[t]}, v{vRR[t]}, v{tC}, s[{sINV[t]}:{sINV[t]+1}]')
    e(f'  v_cndmask_b32 v{vO[t]}, v{vO[t]}, v{tC}, s[{sINV[t]}:{sINV[t]+1}]')

e('  s_waitcnt lgkmcnt(0)')
tsp()
el(srd(88, 6, 192*576*2))
if 'notlb' not in OPT:
    e(f'  s_cmp_lg_u32 s{sW}, 5'); e('  s_cbranch_scc1 MK_ntlb')
    e(f'  s_max_i32 s{sT[0]}, s{sTR}, 0'); e(f'  s_lshl_b32 s{sT[0]}, s{sT[0]}, 1'); e(f'  s_sub_u32 s{sT[1]}, 184, s{sT[0]}')
    e(f'  s_cmp_eq_u32 s{sPR}, 0'); e(f'  s_cselect_b32 s{sT[0]}, s{sT[0]}, s{sT[1]}'); e(f'  s_mul_i32 s{sT[0]}, s{sT[0]}, 86016')
    for k in range(3):
        e(f'  s_load_dword s94, s[4:5], s{sT[0]}'); e(f'  s_load_dword s95, s[10:11], s{sT[0]}')
        if k < 2: e(f'  s_add_u32 s{sT[0]}, s{sT[0]}, {20*86016 - 64}')
    e(f'  s_load_dword s94, s[84:85], 128'); e(f'  s_load_dword s95, s[86:87], 0x20000')
    e('MK_ntlb:')

def w_pieces(c, partner=0):
    return [[f'  s_add_i32 m0, s{sWL}, {CH[c] + mat*24576 + j*8192 + partner*4096}',
             f'  s_add_i32 s{sVO}, s{sWB}, {(j*64 + partner*32)*1152 + mat*384 + c*128}',
             f'  buffer_load_dwordx4 v{vWA}, {RW}, s{sVO} offen lds'] for mat in range(2) for j in range(3)]
def q_loads():
    return [f'  buffer_load_dwordx4 {V(XQ+24*t+4*s_)}, v{vO[t]}, {RX}, 0 offen offset:{64*s_}{NT}' for t in (1, 0) for s_ in range(6)]
def q_stage():
    return [[f'  s_add_u32 m0, s{sST}, {(1-t)*24576 + (3*qr + l)*1024 - 128*l}', '  s_nop 0',
             f'  buffer_load_dwordx4 v{QA[qr]}, {RX}, s{sQR[2*t+qr]} offen offset:{128*l}{NT} lds'] for t in (1, 0) for qr in range(2) for l in range(3)]
def q_reads():
    return ([f'  v_xor_b32 v{tA}, 64, v{vQR}'] +
            [f'  ds_read_b128 {V(XQ+24*t+4*s_)}, v{(vQR, tA)[s_ % 2]} offset:{(1-t)*24576 + 1024*(s_//2)}' for t in range(2) for s_ in range(6)])
SCH = {'O': OPT.get('so', 'A:W0,B:V0,0:W2+V2,4:q6,Z:q6'), 'Y': OPT.get('sy', 'C:W1+V1,1:q6,2:q6')}
PLAN = {}; ISS = {'O': [], 'Y': []}
for r_, sp in SCH.items():
    qi = 0
    for part in sp.split(','):
        pos, items = part.split(':')
        for it in items.split('+'):
            lst = PLAN.setdefault((r_, pos), [])
            if it[0] == 'W': lst += [(f'W{it[1]}', p) for p in w_pieces(int(it[1]))]
            elif it[0] == 'V': lst += [(f'W{it[1]}', p) for p in w_pieces(int(it[1]), 1 if r_ == 'O' else -1)]
            elif it in 'pr':
                assert pos == 'A'
                lst.append(('t', [f'  v_min_u32 v253, 2, v{vg}', f'  v_mad_u32_u24 v253, v253, s{sT[8]}, v{vO[1 if it == "p" else 0]}',
                                  f'  buffer_load_dword v{252 if it == "p" else 251}, v253, {RX}, 0 offen']))
            else:
                for _ in range(int(it[1:])):
                    if r_ == 'Y' and qi >= 6: lst.append(('b', [f'  s_cmp_eq_u32 s{sU}, 0', f'  s_cbranch_scc1 QB{qi}', q_loads()[qi], f'QB{qi}:']))
                    elif r_ == 'O': lst.append(('q', q_stage()[qi])); assert pos in ('34Z' if qi < 6 else 'Z') and opt('sya', 0) == 0
                    else: lst.append(('q', [q_loads()[qi]]))
                    qi += 1
    assert qi == 12
lbl = [0]
def role_lines(r_, lines):
    lbl[0] += 1
    return [f'  s_cbranch_vcc{"z" if r_ == "O" else "nz"} SL{lbl[0]}'] + list(lines) + [f'SL{lbl[0]}:']
def role2_lines(lo, ly):
    lbl[0] += 1; n = lbl[0]
    return [f'  s_cbranch_vccz SL{n}'] + list(lo) + [f'  s_branch SM{n}', f'SL{n}:'] + list(ly) + [f'SM{n}:']
def sched_items(pos):
    o, y = list(PLAN.get(('O', pos), [])), list(PLAN.get(('Y', pos), []))
    out = []
    while o or y: out.append((o.pop(0) if o else None, y.pop(0) if y else None))
    return out
def emit_item(it):
    o, y = it
    if o: ISS['O'].append(o[0])
    if y: ISS['Y'].append(y[0])
    if o and y and o == y: el(o[1])
    elif o and y: el(role2_lines(o[1], y[1]))
    elif o: el(role_lines('O', o[1]))
    else: el(role_lines('Y', y[1]))
def emit_pos(pos):
    o, y = PLAN.get(('O', pos), []), PLAN.get(('Y', pos), [])
    k = 0
    while k < len(o) and k < len(y) and o[k] == y[k]: emit_item((o[k], y[k])); k += 1
    for r_, x in (('O', o[k:]), ('Y', y[k:])):
        if x:
            ISS[r_] += [i[0] for i in x]; el(role_lines(r_, sum((i[1] for i in x), [])))
def after(r_, tag):
    l = ISS[r_]
    if tag not in l: return len(l) if tag == 'W0' else 63
    return min(63, len(l) - 1 - max(i for i, t in enumerate(l) if t == tag))

if 'nowpf' not in OPT:
    WPW = opt('wpw', 4)
    e(f'  s_lshr_b32 s{sT[0]}, s{sW}, 1'); e(f'  s_cmp_lg_u32 s{sT[0]}, {WPW // 2}'); e('  s_cbranch_scc1 MK_nwpf')
    e(f'  s_cmp_eq_u32 s{sW}, {WPW}'); e(f'  s_cselect_b32 s{sT[0]}, 54, 18')
    e('  s_cselect_b32 s12, s6, s8'); e('  s_cselect_b32 s13, s7, s9'); e('  s_and_b32 s13, s13, 0xffff')
    e(f'  s_lshr_b32 s{sT[1]}, s2, 3'); e(f'  s_mul_i32 s{sT[1]}, s{sT[1]}, s{sT[0]}'); e(f'  s_lshl_b32 s{sVO}, s{sT[1]}, 7')
    e(f'  s_lshl_b32 s{sT[0]}, s{sT[0]}, 7'); e(f'  s_add_u32 s14, s{sVO}, s{sT[0]}'); e('  s_mov_b32 s15, 0x00020000')
    e('  v_lshlrev_b32 v23, 7, v0')
    e(f'  buffer_load_dword v254, v23, s[12:15], s{sVO} offen')
    e('MK_nwpf:')
el(srd(12, 4, X_BYTES))
e(f'  s_movk_i32 s{sT[8]}, 112')
if 'noearly' in OPT: emit_pos('A')
else:
    assert ('Y', 'A') not in PLAN
    it = PLAN[('O', 'A')]; ISS['O'] += [i[0] for i in it]
    L[EARLY_AT:EARLY_AT] = role_lines('O', ['  s_waitcnt lgkmcnt(0)'] + srd(88, 6, 192*576*2) + sum((i[1] for i in it), []))
tsp()
el(srd(16, 10, X_BYTES)); el(srd(4, 8, 192*192*2)); el(srd(8, 84, 256)); el(srd(20, 86, WS_BYTES if TS else 73728))
e(f'  v_lshlrev_b32 v{vL0}, 4, v0')
e(f'  v_add_u32 v{vL1}, {HALF}, v{vL0}')
e(f'  s_and_b32 s{sW4}, s{sW}, 3'); e(f'  s_lshl_b32 s{sW4}, s{sW4}, 10')
e(f'  v_bfe_u32 v{tA}, v{vn}, 1, 3'); e(f'  v_xor_b32 v{tA}, v{tA}, v{vg}')
e(f'  v_lshlrev_b32 v{tB}, 7, v{vn}'); e(f'  v_lshl_add_u32 v{tB}, v{tA}, 4, v{tB}')
e(f'  s_lshr_b32 s{sT[0]}, s{sW}, 2'); e(f'  s_mul_i32 s{sT[1]}, s{sT[0]}, {6*2048}'); e(f'  s_add_u32 s{sT[1]}, s{sT[1]}, {CH[0]}')
e(f'  v_add_u32 v{vMA[0]}, s{sT[1]}, v{tB}'); e(f'  v_xor_b32 v{vMA[1]}, 64, v{vMA[0]}')
e(f'  s_mul_i32 s{sT[1]}, s{sW4}, 6'); e(f'  s_add_u32 s{sT[1]}, s{sT[1]}, {24576 + CH[0]}')
e(f'  v_add_u32 v{vMB[0]}, s{sT[1]}, v{tB}'); e(f'  v_xor_b32 v{vMB[1]}, 64, v{vMB[0]}')
F = []; f_ = F.append
f_(f'  s_lshr_b32 s{sT[0]}, s{sW}, 2'); f_(f'  s_mul_i32 s{sT[0]}, s{sT[0]}, 3072'); f_(f'  s_mul_i32 s{sT[1]}, s{sW4}, 18')
f_(f'  s_add_u32 s{sT[0]}, s{sT[0]}, s{sT[1]}'); f_(f'  s_sub_u32 s{sT[0]}, {(71-14)*1024}, s{sT[0]}')
f_(f'  v_add_u32 v{vMW[0]}, s{sT[0]}, v{vL0}')
f_(f'  s_lshl_b32 s{sT[0]}, s{sKR}, 1'); f_(f'  s_xor_b32 s{sT[0]}, s{sT[0]}, s{sMR}')
f_(f'  s_mul_i32 s{sT[1]}, s{sPR}, 222'); f_(f'  s_add_i32 s{sXB}, s{sT[0]}, s{sT[1]}')
f_(f'  s_mul_i32 s{sXB}, s{sXB}, 86016')
f_(f'  s_mul_i32 s{sGS}, s{sPR}, {-2*344064}'); f_(f'  s_add_i32 s{sGS}, s{sGS}, 344064')
f_(f'  s_lshr_b32 s{sGmin}, s{sKR}, 31'); f_(f'  s_lshl_b32 s{sGmin}, s{sGmin}, 1')
f_(f'  s_lshl_b32 s{sM0X}, s{sW4}, 2')
f_(f'  s_add_u32 s{sM0X3}, s{sM0X}, 3072'); f_(f'  s_min_u32 s{sM0X3}, s{sM0X3}, {14*1024}')
f_(f'  s_mul_i32 s{sT[2]}, s{sPR}, 172032'); f_(f'  s_sub_u32 s{sT[3]}, 172032, s{sT[2]}')
f_(f'  v_mov_b32 v{tC}, s{sT[2]}'); f_(f'  v_mov_b32 v{tD}, s{sT[3]}')
for b in range(960): assert (b * 2731) >> 16 == b // 24
for j in range(4):
    d = vD[j]
    if j < 3:
        f_(f'  s_lshr_b32 s{sT[0]}, s{sM0X}, 4'); f_(f'  s_add_u32 s{sT[0]}, s{sT[0]}, {64*j}')
    else: f_(f'  s_lshr_b32 s{sT[0]}, s{sM0X3}, 4')
    f_(f'  v_add_u32 v{tA}, s{sT[0]}, v0')
    f_(f'  v_mul_u32_u24 v{d}, 2731, v{tA}'); f_(f'  v_lshrrev_b32 v{d}, 16, v{d}')
    f_(f'  v_cmp_le_u32 {MSK}, 20, v{d}')
    f_(f'  v_mul_u32_u24 v{tB}, 24, v{d}'); f_(f'  v_sub_u32 v{tA}, v{tA}, v{tB}')
    f_(f'  v_subrev_u32 v{tB}, 20, v{d}')
    f_(f'  v_cndmask_b32 v{d}, v{d}, v{tB}, {MSK}')
    f_(f'  v_bfe_u32 v{tB}, v{d}, 1, 3'); f_(f'  v_xor_b32 v{tA}, v{tA}, v{tB}')
    f_(f'  v_cndmask_b32 v{tB}, v{tC}, v{tD}, {MSK}')
    f_(f'  v_lshl_add_u32 v{tA}, v{tA}, 4, v{tB}')
    f_(f'  v_add_u32 v{d}, s{sKC}, v{d}'); f_(f'  v_max_i32 v{d}, 0, v{d}'); f_(f'  v_lshlrev_b32 v{d}, 1, v{d}')
    f_(f'  v_xor_b32 v{d}, s{sMC}, v{d}'); f_(f'  v_add_u32 v{d}, s{sAC}, v{d}')
    f_(f'  v_mul_u32_u24 v{d}, 384, v{d}'); f_(f'  v_add_u32 v{d}, v{d}, v{tA}')
f_(f'  s_add_u32 s{sM0X}, s{sM0X}, {XB}'); f_(f'  s_add_u32 s{sM0X3}, s{sM0X3}, {XB}')
for dst, add in ((sT[0], -2), (sA2, 0)):
    f_(f'  s_lshl_b32 s{dst}, s{sU}, 2')
    if add: f_(f'  s_add_i32 s{dst}, s{dst}, {add}'); f_(f'  s_max_i32 s{dst}, s{dst}, 0')
    f_(f'  s_add_i32 s{dst}, s{dst}, s{sTR}'); f_(f'  s_max_i32 s{dst}, s{dst}, 0'); f_(f'  s_sub_i32 s{dst}, s{dst}, s{sKR}')
f_(f'  s_sub_u32 s{sT[0]}, s{sA2}, s{sT[0]}'); f_(f'  s_lshr_b32 s{sT[0]}, s{sT[0]}, 1')
f_(f'  s_mul_i32 s{sD0}, s{sT[0]}, -8'); f_(f'  s_add_i32 s{sD0}, s{sD0}, 7')
f_(f'  s_add_i32 s{sA2}, s{sA2}, -1')
f_(f'  s_add_i32 s{sR0}, s{sA2}, s{sD0}'); f_(f'  s_mul_i32 s{sD0}, s{sD0}, {ROW}')
f_(f'  s_lshl_b32 s{sT[1]}, s{sH}, 2')
f_(f'  s_mul_i32 s{sT[0]}, s{sA2}, {ROW}'); f_(f'  s_add_i32 s{sT[0]}, s{sT[0]}, {XB}')
f_(f'  v_add_u32 v{tA}, s{sT[1]}, v{vn}')
f_(f'  v_bfe_u32 v{tB}, v{tA}, 1, 3'); f_(f'  v_xor_b32 v{tB}, v{tB}, v{vg}')
f_(f'  v_mul_u32_u24 v{tA}, 384, v{tA}'); f_(f'  v_lshl_add_u32 v{tA}, v{tB}, 4, v{tA}')
f_(f'  v_add_u32 v{vSe}, s{sT[0]}, v{tA}'); f_(f'  v_xor_b32 v{vSo}, 64, v{vSe}')
f_(f'  v_lshrrev_b32 v{tA}, 2, v{vn}'); f_(f'  v_lshl_add_u32 v{tA}, v{vg}, 2, v{tA}'); f_(f'  v_add_u32 v{tA}, s{sT[1]}, v{tA}')
f_(f'  v_bfe_u32 v{tB}, v{tA}, 1, 3')
f_(f'  v_and_b32 v{tC}, 2, v{vn}'); f_(f'  v_lshlrev_b32 v{tC}, 1, v{tC}'); f_(f'  v_xor_b32 v{tB}, v{tB}, v{tC}')
f_(f'  v_mul_u32_u24 v{tA}, 384, v{tA}'); f_(f'  v_lshl_add_u32 v{tA}, v{tB}, 4, v{tA}')
f_(f'  v_and_b32 v{tB}, 1, v{vn}'); f_(f'  v_lshl_add_u32 v{tA}, v{tB}, 3, v{tA}')
f_(f'  v_add_u32 v{vP[0]}, s{sT[0]}, v{tA}')
for k in range(1, 4): f_(f'  v_xor_b32 v{vP[k]}, {16*k}, v{vP[0]}')
f_(f'  v_lshl_add_u32 v{tA}, v{vg}, 2, s{sT[1]}'); f_(f'  v_sub_u32 v{vCT}, v{tA}, v{vCT}')
f_(f'  v_cndmask_b32 v{vCT}, v{vCT}, 64, s[{sINV[1]}:{sINV[1]+1}]')
f_(f'  v_add_u32 v{SB0[0]}, s{sD0}, v{vSe}'); f_(f'  v_add_u32 v{SB0[1]}, s{sD0}, v{vSo}')
for k in range(4): f_(f'  v_add_u32 v{PB0[k]}, s{sD0}, v{vP[k]}')
f_(f'  s_mov_b32 s{sSC}, {SCALE}')
o2 = [f'  v_lshrrev_b32 v{tD}, 4, v{vL0}', f'  v_lshrrev_b32 v{tA}, 3, v{tD}', f'  s_mul_i32 s{sT[4]}, s{sH}, 7', f'  s_add_i32 s{sT[4]}, s{sT[4]}, s{sKC}',
      f'  v_cmp_lt_u32 {MSK}, 6, v{tA}', f'  v_add_u32 v{tA}, s{sT[4]}, v{tA}', f'  v_max_i32 v{tB}, 0, v{tA}', f'  v_add3_u32 v{tA}, v{tA}, v{tB}, 6',
      f'  v_xor_b32 v{tA}, s{sMC}, v{tA}', f'  v_add_u32 v{tA}, s{sAC}, v{tA}', f'  v_mul_u32_u24 v{tA}, 384, v{tA}',
      f'  v_and_b32 v{tB}, 7, v{tD}', f'  v_xor_b32 v{tB}, v{tB}, v{vg}', f'  v_lshl_add_u32 v{tA}, v{tB}, 4, v{tA}', f'  v_mov_b32 v{tB}, 0x80000000',
      f'  v_cndmask_b32 v{QA[0]}, v{tA}, v{tB}, {MSK}', f'  v_xor_b32 v{QA[1]}, 64, v{QA[0]}',
      f'  s_lshl_b32 s{sT[0]}, s{sU}, 2', f'  s_add_i32 s{sT[0]}, s{sT[0]}, s{sTR}']
for k in range(4):
    d = sQR[k]
    o2 += [f'  s_lshl_b32 s{d}, s{sT[0]}, 1', f'  s_add_i32 s{d}, s{d}, {2*(k-2) + 6}', f'  s_xor_b32 s{d}, s{d}, s{sMR}', f'  s_add_i32 s{d}, s{d}, s{sAR}', f'  s_mul_i32 s{d}, s{d}, 86016']
o2 += [f'  s_mul_i32 s{sST}, s{sW4}, 6', f'  s_add_u32 s{sST}, s{sST}, {SO}',
       f'  v_bfe_u32 v{tA}, v{vn}, 1, 3', f'  v_xor_b32 v{tA}, v{tA}, v{vg}', f'  v_lshlrev_b32 v{tB}, 7, v{vn}', f'  v_lshl_add_u32 v{tB}, v{tA}, 4, v{tB}',
       f'  v_lshrrev_b32 v{tA}, 3, v{vn}', f'  v_lshl_add_u32 v{tA}, v{tA}, 11, v{tB}', f'  v_add_u32 v{vQR}, s{sST}, v{tA}']
OLATE = opt('olate', 1)
F.insert(0, f'  v_mov_b32 v{vNB}, 0'); F.insert(0, f'  v_mov_b32 v{vNA}, 0')
if OLATE == 0: F += role_lines('O', o2); o2 = []
NPRE = opt('npre', 999)
NB1 = opt('nb1', 40)
el(F[:NB1]); emit_pos('B')
if OLATE == 2:
    assert NB1 in (2, 8)
    el(role_lines('Y', F[NB1:])); o2 = F[NB1:] + o2
else: el(F[NB1:])
F = []

def dma_x(G):
    out = []
    if G < 2: out += [f'  s_max_u32 s{sVO}, s{sGmin}, {G}', f'  s_mul_i32 s{sVO}, s{sVO}, s{sGS}']
    else: out.append(f'  s_mul_i32 s{sVO}, s{sGS}, {G}')
    out.append(f'  s_add_i32 s{sVO}, s{sVO}, s{sXB}')
    for j in range(4):
        out.append(f'  s_add_u32 m0, s{sM0X}, {G*15360 + j*1024}' if j < 3 else f'  s_add_u32 m0, s{sM0X3}, {G*15360}')
        out.append('  s_nop 0')
        out.append(f'  buffer_load_dwordx4 v{vD[j]}, {RX}, s{sVO} offen{NT} lds')
    return out
def dma_xs(Gs): return sum((dma_x(G) for G in Gs), [])
SPECIAL = [(1, 7), (1, 0), (0, 7), (0, 1), (0, 0)]
def bias_init(tmp, MID, TL):
    out = []; o = out.append
    ninf, tt = tmp, tmp+1
    sp = [x for x in SPECIAL if x[0] in TL]
    o(f'  v_mov_b32 v{ninf}, 0xff800000')
    for i in range(4): o(f'  v_add_u32 v{tt+i}, {i}, v{vCT}')
    for i in range(4): o(f'  v_cmp_gt_u32 s[{sT[2+2*i]}:{sT[3+2*i]}], 7, v{tt+i}')
    for q, (t, jj) in enumerate(sp):
        slot = jj + 2*t
        if slot == 0: o(f'  v_sub_u32 v{tt+4+q}, s{sR0}, v{vRR[t]}')
        else:
            o(f'  s_add_i32 s{sT[0]}, s{sA2}, {slot-1}'); o(f'  v_sub_u32 v{tt+4+q}, s{sT[0]}, v{vRR[t]}')
    for i in range(4): o(f'  v_cndmask_b32 v{MID+i}, v{ninf}, 0, s[{sT[2+2*i]}:{sT[3+2*i]}]')
    for q in range(len(sp)): o(f'  v_cmp_gt_u32 s[{sT[2*q]}:{sT[2*q+1]}], 7, v{tt+4+q}')
    for q, (t, jj) in enumerate(sp):
        for i in range(4): o(f'  v_cndmask_b32 v{SACC[t]+4*jj+i}, v{ninf}, v{MID+i}, s[{sT[2*q]}:{sT[2*q+1]}]')
    return out

tsp()
emit_pos('C')
tsp()
vLN = 107
def n_loads():
    e(f'  v_lshrrev_b32 v{vLN}, 4, v{vL0}')
    e(f'  s_cmp_lt_u32 s2, 72'); e('  s_cbranch_scc0 MK_np1')
    e(f'  s_mul_hi_u32 s{sT[8]}, s2, 0x15555556'); e(f'  s_lshl_b32 s{sT[8]}, s{sT[8]}, 6')
    e(f'  s_mul_i32 s{sT[9]}, s{sW}, {16*384}'); e(f'  s_add_u32 s{sVO}, s{sT[8]}, s{sT[9]}')
    e(f'  v_lshrrev_b32 v{MPK}, 2, v{vLN}'); e(f'  v_mul_u32_u24 v{MPK}, 384, v{MPK}'); e(f'  v_and_b32 v{MPK+1}, 3, v{vLN}'); e(f'  v_lshl_add_u32 v{MPK}, v{MPK+1}, 4, v{MPK}')
    e(f'  s_add_u32 m0, s{sWL}, {WOL}'); e('  s_nop 0')
    e(f'  buffer_load_dwordx4 v{MPK}, {RWO}, s{sVO} offen lds')
    e(f'  s_mul_i32 s{sT[9]}, s{sW4}, 6'); e(f'  s_add_u32 s{sVO}, s{sT[8]}, s{sT[9]}')
    e(f'  s_add_u32 m0, s{sW4}, {WOL + 8192}'); e(f'  s_add_u32 s{sVO}, s{sVO}, {8*16*384}')
    e(f'  buffer_load_dwordx4 v{MPK}, {RWO}, s{sVO} offen lds')
    e('MK_np1:')
    e(f'  s_sub_u32 s{sPROD}, s2, 72'); e(f'  s_lshr_b32 s{sPROD}, s{sPROD}, 31')
    e(f'  s_lshr_b32 s{sPROD}, s{sPROD}, s{sU}')
    e(f'  s_cmp_eq_u32 s{sPROD}, 0'); e('  s_cbranch_scc1 MK_np3')
    e(f'  s_mul_hi_u32 s{sT[8]}, s2, 0x15555556'); e(f'  s_mul_i32 s{sT[9]}, s{sT[8]}, 12'); e(f'  s_sub_u32 s{sT[9]}, s2, s{sT[9]}')
    e(f'  s_cmp_ge_u32 s{sT[9]}, 6'); e(f'  s_cselect_b32 s{sT[5]}, 1, 0'); e(f'  s_mul_i32 s{sVO}, s{sT[5]}, 6'); e(f'  s_sub_u32 s{sT[9]}, s{sT[9]}, s{sVO}')
    e(f'  v_lshrrev_b32 v{MPK+2}, 2, v{vn}'); e(f'  v_and_b32 v{MPK+1}, 3, v{vn}')
    e(f'  v_lshl_add_u32 v{vNB}, v{vg}, 3, v{MPK+2}'); e(f'  v_lshlrev_b32 v{vNB}, 6, v{vNB}'); e(f'  v_lshl_add_u32 v{vNB}, v{MPK+1}, 4, v{vNB}')
    e(f'  s_lshl_b32 s{sT[5]}, s{sT[5]}, 3'); e(f'  s_add_u32 s{sT[5]}, s{sT[5]}, {WOL}'); e(f'  v_add_u32 v{vNB}, s{sT[5]}, v{vNB}')
    e(f'  s_lshr_b32 s{sT[8]}, s{sT[9]}, 1'); e(f'  s_lshl_b32 s{sT[8]}, s{sT[8]}, 6')
    e(f'  s_and_b32 s{sT[9]}, s{sT[9]}, 1'); e(f'  s_lshl_b32 s{sT[9]}, s{sT[9]}, 4'); e(f'  s_add_u32 s{sT[8]}, s{sT[8]}, s{sT[9]}')
    e(f'  v_lshrrev_b32 v{MPK}, 1, v{MPK+2}'); e(f'  v_lshlrev_b32 v{MPK}, 5, v{MPK}')
    e(f'  v_and_b32 v{MPK+2}, 1, v{MPK+2}'); e(f'  v_lshl_add_u32 v{MPK}, v{MPK+2}, 2, v{MPK}')
    e(f'  v_add3_u32 v{MPK}, v{MPK}, v{MPK+1}, s{sT[8]}')
    e(f'  v_mul_u32_u24 v{MPK}, 1152, v{MPK}'); e(f'  v_lshl_add_u32 v{vNA}, v{vg}, 4, v{MPK}')
    e(f'  s_mul_i32 s{sVO}, s{sH}, 9216')
    for kk in range(6):
        e(f'  buffer_load_dwordx4 {V(136+4*kk)}, v{vNA}, {RW}, s{sVO} offen offset:{768+64*kk}')
    e('MK_np3:')
def m_reads(kk):
    rb = 184 + 36*(kk % 2); co = (kk // 2) * 49152
    lo = co if co < 49152*2 else 0
    return ([f'  ds_read_b128 {V(rb+24+4*b)}, v{vMB[kk % 2]} offset:{2048*b}' for b in range(3)] +
            [f'  ds_read_b128 {V(rb+4*a)}, v{vMA[kk % 2]} offset:{2048*a}' for a in range(6)])
def chunk_sync(c, lg):
    wo_, wy_ = after('O', f'W{c}'), after('Y', f'W{c}')
    x = ' lgkmcnt(0)' if lg else ''
    def w(n, prod):
        if c == 2 and prod and ISS['Y'].count('b'):
            return [f'  s_cmp_lg_u32 s{sU}, 0', '  s_cbranch_scc1 MK_c2', f'  s_waitcnt vmcnt({n - ISS["Y"].count("b")})', 'MK_c2:', f'  s_waitcnt vmcnt({n}){x}']
        if c != 1 or n == 63: return [f'  s_waitcnt vmcnt({n}){x}']
        lbl[0] += 1; k = lbl[0]; o = []
        if prod: o += [f'  s_cmp_lg_u32 s{sPROD}, 0', f'  s_cbranch_scc1 CA{k}']
        o += ['  s_cmp_lt_u32 s2, 72', f'  s_cbranch_scc1 CB{k}', f'  s_waitcnt vmcnt({n})', f'CB{k}:']
        if prod: o += [f'  s_waitcnt vmcnt({n+2})', f'CA{k}:', f'  s_waitcnt vmcnt({n+8}){x}']
        else: o += [f'  s_waitcnt vmcnt({n+2}){x}']
        return o
    if c == 2:
        wo_, wy_ = min(wo_, len(ISS['O']) - N_AT['O']), min(wy_, len(ISS['Y']) - N_AT['Y'])
    assert c != 1 or 'b' not in ISS['Y']
    if wo_ == wy_ and c != 2: el(w(wo_, True))
    else: el(role2_lines(w(wo_, False), w(wy_, True)))
    e('  s_barrier')
    tsp()
N_AT = {}
FPG = opt('fpg', 4)
chunk_sync(0, False)
el(m_reads(0))
SYA = opt('sya', 0)
for kk in range(4):
    odd = kk % 2 == 1
    extra = sched_items(str(kk)); ne = len(extra); cnt = 0
    rb = 184 + 36*(kk % 2)
    nx = m_reads(kk+1)
    issued = 0
    for a in range(6):
        if odd and a == SYA:
            chunk_sync(kk // 2 + 1, True)
            for r in vMA + vMB: e(f'  v_add_u32 v{r}, 49152, v{r}')
        if not (odd and a >= SYA): e(f'  s_waitcnt lgkmcnt({5 - a + issued})')
        for b in range(3):
            acc = MACC + 12*a + 4*b
            e(mfma(acc, rb+4*a, rb+24+4*b, None if kk == 0 else acc))
            slots = FPG
            if odd:
                for _ in range(1 if SYA <= 3 else 2):
                    if nx and a >= SYA and (b < 2 or SYA >= 2): e(nx.pop(0)); slots -= 1
            elif nx and b < 2 and a >= 1:
                e(nx.pop(0)); issued += 1; slots -= 1
            cnt += 1
            while extra and (ne - len(extra)) * 18 < cnt * ne: emit_item(extra.pop(0)); slots = 0
            el(F[:max(slots, 0)]); F = F[max(slots, 0):]
    el(nx)
    assert not extra
    if kk == opt('olk', 2) and o2: el(role_lines('O', o2))
    if kk == 0: n_loads(); N_AT.update(O=len(ISS['O']), Y=len(ISS['Y']))
print('leftover F', len(F), file=sys.stderr); el(F); F = []
assert ISS['Y'].count('q') <= 6
e(f'  s_cmp_eq_u32 s{sPROD}, 0'); e('  s_cbranch_scc1 MK_np2')
e('  s_waitcnt lgkmcnt(0)')
for k2 in range(6):
    for hf in range(2):
        e(f'  ds_read_b64_tr_b16 {V(MPK+4*k2+2*hf, 2)}, v{vNB} offset:{(32*k2 + 4*hf)*64}')
e('  s_setprio 3'); e('  s_waitcnt lgkmcnt(0)')
for kk in range(6):
    e(mfma(128, 136+4*kk, MPK+4*kk, None if kk == 0 else 128))
e(f'  s_lshl_b32 s{sVO}, s2, 10'); e(f'  s_lshl_b32 s{sT[8]}, s{sH}, 3'); e(f'  s_add_u32 s{sVO}, s{sVO}, s{sT[8]}')
e('  s_nop 5')
for r in range(2): e(f'  v_cvt_pk_bf16_f32 v{132+r}, v{128+2*r}, v{129+2*r}')
e(f'  buffer_store_dwordx2 v[132:133], v{vL0}, {RWS}, s{sVO} offen sc1')
NY_AT_STORE = len(ISS['Y'])
e('  s_setprio 0')
e('MK_np2:')
r5 = m_reads(5)
el(r5[:5]); late = r5[5:]
extra = sched_items('4'); ne = len(extra); cnt = 0
pend = []; nw = 0; wq = []
BWF = 0
for fi in range(9):
    a3, b = fi // 3, fi % 3
    if fi == 0: e('  s_waitcnt lgkmcnt(5)')
    if fi == 2: e('  s_waitcnt lgkmcnt(0)')
    for kk in (4, 5):
        rb = 184 + 36*(kk % 2)
        if fi == 0 and kk == 5: e('  s_waitcnt lgkmcnt(2)')
        for a in (2*a3, 2*a3+1):
            acc = MACC + 12*a + 4*b
            e(mfma(acc, rb+4*a, rb+24+4*b, acc)); cnt += 1
            if late: e(late.pop(0))
            k = 0
            while wq and fi >= BWF and k < 1: e(wq.pop(0)); k += 1
            while pend and pend[0][0] <= cnt and k < 2:
                l = pend.pop(0)[1]
                if 'ds_write' in l and (fi < BWF or wq): wq.append(l)
                else: e(l); k += 1
            while extra and (ne - len(extra)) * 36 < cnt * ne: emit_item(extra.pop(0))
    o = MPK + 4*(fi % 6)
    for a in range(2):
        acc = MACC + 12*(2*a3 + a) + 4*b
        for i in range(2): pend.append((cnt + 5, f'  v_cvt_pk_bf16_f32 v{o+2*a+i}, v{acc+2*i}, v{acc+2*i+1}'))
    pend.append((cnt + 5, f'  ds_write_b128 v{vMW[0]}, {V(o)} offset:{1024*(2-a3) + 6144*(2-b)}'))
assert not extra
tsp()
assert not wq
for i, (_, l) in enumerate(pend):
    if len(pend) - i == 5: e('  s_nop 3')
    e(l)
e('  s_waitcnt lgkmcnt(0)')
e('  s_barrier')
tsp()
NXY = opt('nxy', 2)
XH = (9, 8, 7, 6, 5)
assert ('Y', 'Z') not in PLAN and ('Y', '4') not in PLAN
y = [f'  s_cmp_lg_u32 s{sPROD}, 0', '  s_cbranch_scc1 MK_np4', '  s_waitcnt vmcnt(0)', 'MK_np4:', '  s_waitcnt vmcnt(1)', '  s_setprio 1']
o_ = sum((ls for _, ls in PLAN.get(('O', 'Z'), [])), []) + dma_xs(XH[:min(NXY, 2)]) + [f'  s_waitcnt vmcnt({4*min(NXY, 2)}) lgkmcnt(0)'] + q_reads() + ['  s_waitcnt lgkmcnt(0)', '  s_barrier'] + dma_xs(XH[2:max(NXY, 2)])
PRE_P1 = (o_, y)
PUB = [f'  s_cmp_eq_u32 s{sPROD}, 0', '  s_cbranch_scc1 MK_np5', '  s_waitcnt vmcnt(0)', '  v_mov_b32 v23, 1', '  s_mov_b64 exec, 1',
       *([f'  buffer_atomic_add v23, off, {RDB}, 0 sc1'] if 'atom' in OPT else
         [f'  s_lshl_b32 s{sVO}, s{sH}, 7', f'  buffer_atomic_add v23, off, {RDB}, s{sVO} sc1']), '  s_mov_b64 exec, -1', '  s_nop 3', 'MK_np5:']

BODY = r'''# ---------------- pipelined body
stream = []; frags = []
def add_frag(reads, gate): frags.append(dict(reads=reads, gate=gate, uses=0)); return len(frags) - 1
def use(fid, fn): frags[fid]['uses'] += 1; stream.append(('mfma', fn, fid))
def mf(text): stream.append(('mfma', (lambda buf: text), None))
def raw(*lines):
    for l in lines: stream.append(('raw', l))
def fill(*lines):
    for l in lines: stream.append(('fill', l))
def flush(): stream.append(('flush',))
def need(fid): stream.append(('need', fid))
def gate(name): stream.append(('gate', name))
def role(r, lines):
    if not lines: return
    if not SINGLE: stream.append(('cond', role_lines(r, lines)))
    elif r == 'Y': stream.append(('plain', lines))
def role2(lo, ly):
    if SINGLE or not lo: role('Y', ly)
    elif not ly: role('O', lo)
    else: stream.append(('cond', role2_lines(lo, ly)))
MID = SACC[1] + 4 if SINGLE else SACC[0] + 8
BAR = '  s_barrier'
SDMA = 'odma' not in OPT       # the single-tile waves load N
def m_read(f):
    addr = (71-f)*1024
    if addr < HALF: return [f'  ds_read_b128 {{d4}}, v{vL0} offset:{addr}']
    return [f'  ds_read_b128 {{d4}}, v{vL1} offset:{addr-HALF}']
def n_addr(f): return NHI + 30720 + 1024*f if f < 30 else ((f-30)*1024 if f < 40 else NHI + (f-40)*1024)
def n_read(f):
    if f >= 70: return []
    a = n_addr(f)
    return [f'  ds_read_b128 {{d4}}, v{vL1} offset:{a-NHI}' if a >= NHI else f'  ds_read_b128 {{d4}}, v{vL0} offset:{a}']
def dma_n(a, b):          # fragments a..b-1 (one address region), four waves
    out = []
    nw_ = 2 if SDMA else 4
    for f0 in range(a, b, nw_):
        lim = (b - 1 - f0) * 1024; src = sW4
        if lim < 1024*(nw_ - 1): out.append(f'  s_min_u32 s{sT[5]}, s{sW4}, {lim}'); src = sT[5]
        out += [f'  s_add_u32 m0, s{src}, {n_addr(f0)}', f'  s_add_u32 s{sVO}, s{src}, {f0*1024}',
                f'  buffer_load_dwordx4 v{vL0}, {RWS}, s{sVO} offen{NSC} lds']
    return out
CHAIN = [(0,0),(0,1),(0,2),(1,0),(1,1),(1,2),(1,3),(1,4),(1,5),(0,3),(0,4),(0,5)] if 'nochain' not in OPT else [(t, k) for k in range(6) for t in range(2)]
CHAIN = [x for x in CHAIN if x[0] in TL]
def proj(B, rd, gate_of, post, hooks):
    for s in range(6):
        for hh in range(2):
            f0 = 12*s + 6*hh
            fid = [add_frag(rd(f0+ks), gate_of(f0+ks)) for ks in range(6)]
            seen = set()
            for t, ks in CHAIN:
                f = f0 + ks
                if ks not in seen:
                    seen.add(ks)
                    if f in hooks: hooks[f](fid[ks])
                acc = ACC + 16*(s % 2) + 8*t + 4*hh
                fx = None if rd(f) else NREG + 4*(f-70)
                use(fid[ks], (lambda buf, acc=acc, t=t, ks=ks, fx=fx: mfma(acc, buf if fx is None else fx, B(t, ks), None if ks == 0 else acc)))
            if hh == 1: stream.append(('flushto', f'post{s-1}'))
            fill(*post(s, hh))
        stream.append(('tag', f'post{s}'))

gate('G0')
role2(PRE_P1[0], PRE_P1[1] if SINGLE else ['  s_waitcnt vmcnt(0)', '  s_setprio 1'])
raw('BODY:' if not SINGLE else 'BODYS:')
BF = bias_init(SACC[1] + 8, MID, TL)
fill(*BF[:30])
def p1_post(s, hh):
    out = []
    for t in (1, 0):
        if t == 0 and s == 5 and hh == 1: out.append('#QP5a')
        if t not in TL: continue
        acc = ACC + 16*(s % 2) + 8*t + 4*hh
        for r in range(4): out.append(f'  v_mul_f32 v{acc+r}, s{sSC}, v{acc+r}')
        for r in range(2): out.append(f'  v_cvt_pk_bf16_f32 v{QP+24*t+4*s+2*hh+r}, v{acc+2*r}, v{acc+2*r+1}')
    return out
proj(lambda t, ks: XQ+24*t+4*ks, m_read, lambda f: 'G0', p1_post,
     {13: lambda fid: fill(*BF[30:35]), 25: lambda fid: fill(*BF[35:39]), 37: lambda fid: fill(*BF[39:44]), 49: lambda fid: fill(*BF[44:48]), 60: lambda fid: (fill(*BF[48:]), stream.append(('tag', 'BIAS'))),
      opt('yb1', 58): lambda fid: role('Y', [BAR]),
      31: lambda fid: (need(fid), role2([BAR], PUB if SINGLE else [])),                                  # B2
      61: lambda fid: (need(fid), role('O', ['  s_waitcnt vmcnt(0)', BAR]))})         # B3
if 'p1flush' in OPT: flush()
stream.append(('tag', 'QP5'))
fill(f'  v_add_u32 v{vL1}, {NHI}, v{vL0}')
for r in range(4): fill(f'  v_mov_b32 v{ONES+r}, 0x3f803f80')
POLL = f'  buffer_load_dword v13, off, {RDB}, 0 sc1' if 'atom' in OPT else f'  buffer_load_dword v13, v14, {RDB}, 0 offen sc1'
PSET = [] if 'atom' in OPT else [f'  v_and_b32 v14, {128 if NCT == 2 else 192}, v{vL0}']
PMODE = opt('pmode', 1)      # 0 early plain poll, 1 late plain poll, 2 none (diagnostic only)
role('Y', ['  s_setprio 0'] + dma_xs(XH[NXY:]) + [BAR] + dma_xs((4, 3, 2)) + 
     ['  s_waitcnt vmcnt(12)', BAR] + dma_xs((1, 0)) + ['  s_waitcnt vmcnt(8)', BAR])        # B2 B3 B4a
for _ in range(opt('idle', 0)): raw('  s_sleep 8')      # diagnostic only
gate('S')
etn = [0]
def sm_fill(t, jj):
    tmp = ET + 4*(etn[0] % 5); etn[0] += 1
    acc = SACC[t] + 4*jj
    for i in range(4): fill(f'  v_exp_f32 v{tmp+i}, v{acc+i}')
    for i in range(2): fill(f'  v_cvt_pk_bf16_f32 v{PREG[t]+2*jj+i}, v{tmp+2*i}, v{tmp+2*i+1}')
    stream.append(('tag', f'P{t}_{jj}'))
def sum_mfmas(t):
    stream.append(('flushto', f'P{t}_0'))
    for kt in (3, 2, 1, 0): mf(mfma(SUM[t], ONES, PREG[t]+4*kt, None if kt == 3 else SUM[t]))
LO, HI = (127-30) << 23, (127+30) << 23
def check(t):
    raw(f'  v_subrev_u32 v{RI[1]}, {LO}, v{SUM[t]}')
    raw(f'  s_mov_b32 s{sT[6]}, {HI-LO}')
    raw(f'  v_cmp_gt_u32 s[{sT[2]}:{sT[3]}], s{sT[6]}, v{RI[1]}')
    raw(f'  s_or_b64 s[{sT[2]}:{sT[3]}], s[{sT[2]}:{sT[3]}], s[{sINV[t]}:{sINV[t]+1}]')
    raw(f'  s_cmp_eq_u64 s[{sT[2]}:{sT[3]}], -1')
    raw(f'  s_cbranch_scc0 FB{t}{SFX}')
    raw(f'FBR{t}{SFX}:')
if 'atom' in OPT:
    pollw = [f'  s_mov_b32 s{sT[7]}, 0x40000', 'NPOLL:', '  s_waitcnt vmcnt(0)', f'  v_readfirstlane_b32 s{sT[0]}, v13', f'  s_sub_u32 s{sT[7]}, s{sT[7]}, 1',
             f'  s_cselect_b32 s{sT[0]}, 144, s{sT[0]}', f'  s_cmp_ge_u32 s{sT[0]}, 144', '  s_cbranch_scc1 NPOLLD', POLL, '  s_branch NPOLL', 'NPOLLD:']
else:
    pollw = [f'  s_mov_b32 s{sT[7]}, 0x40000', f'  s_mov_b32 s{sT[0]}, {144 // NCT}', 'NPOLL:', '  s_waitcnt vmcnt(0)', f'  v_cmp_le_u32 s[{sT[2]}:{sT[3]}], s{sT[0]}, v13',
             f'  s_sub_u32 s{sT[7]}, s{sT[7]}, 1', '  s_cbranch_scc1 NPOLLD', f'  s_cmp_eq_u64 s[{sT[2]}:{sT[3]}], -1', '  s_cbranch_scc1 NPOLLD', POLL, '  s_branch NPOLL', 'NPOLLD:']
ODMA = not SDMA
# Y's positions of B5a / B5b / B6 in units of "S slot or PV step index": 0..9 = before the k-th S slot, 10..14 = before the k-th PV step
YP = {opt('y5a', 6): [BAR] + pollw + dma_n(0, 30) + dma_n(30, 40),
      opt('y5b', 8): ['  s_waitcnt vmcnt(0)', BAR] + dma_n(40, 70),
      opt('y6', 10): ['  s_waitcnt vmcnt(0)', BAR]}
assert len(YP) == 3
if ODMA or not SINGLE: YP = {k: [BAR] for k in YP}
else:
    YP = {opt('s5a', 7): pollw + dma_n(30, 40) + [BAR] + dma_n(0, 30), opt('s5b', 8): ['  s_waitcnt vmcnt(0)', BAR] + dma_n(40, 70),
          opt('s6', 9): ['  s_waitcnt vmcnt(0)', BAR], opt('spoll', 5): PSET + [POLL.replace(' sc1', '')]}
    assert len(YP) == 4
if 'yhi' in OPT: YP[opt('yhi', 0)] = YP.get(opt('yhi', 0), []) + ['  s_setprio 1']
O4B = opt('o4b', 6)
for k, slot in enumerate(range(9, -1, -1)):
    if k == 2:
        role2([BAR], ['  s_waitcnt vmcnt(0)', BAR]); gate('S2')       # O: B4a ; Y: B4b
    if k == O4B: role('O', [BAR] + (PSET + [POLL.replace(' sc1', '')] if ODMA else []))             # B4b
    if k in YP: role('Y', YP[k])
    if SINGLE and slot < 2:
        if slot == 0: sum_mfmas(1)
        continue
    fid = []
    for s in range(6):
        if slot == 0: base, off = SB0[s % 2], 128*(s//2)
        else: base, off = (vSe, vSo)[s % 2], (slot-1)*ROW + 128*(s//2)
        fid.append(add_frag([f'  ds_read_b128 {{d4}}, v{base} offset:{off}'], 'S' if slot >= 6 else 'S2'))
    for t, s in CHAIN:
        jj = slot - 2*t
        if 0 <= jj < 8:
            if slot == 0 and s == 3: sum_mfmas(1)
            if slot == 9 and s == 0: stream.append(('flushto', 'BIAS'))
            if slot == 9 and s == 5: stream.append(('flushto', 'QP5a'))
            if slot == 7 and s == 5: stream.append(('flushto', 'QP5'))
            acc = SACC[t] + 4*jj
            cin = MID if s == 0 and (t, jj) not in SPECIAL else acc
            use(fid[s], (lambda buf, acc=acc, t=t, s=s, cin=cin: mfma(acc, buf, QP+24*t+4*s, cin)))
    for t in TL:
        jj = slot - 2*t
        if 0 <= jj < 8: sm_fill(t, jj)
check(1)
YC1 = 0
def ycvt(t, ks, _=0):
    return [f'  v_cvt_pk_bf16_f32 v{YB[t][ks]+2*hf+i}, v{YACC[t][2*ks+hf]+2*i}, v{YACC[t][2*ks+hf]+2*i+1}' for hf in range(2) for i in range(2)]
lastf = None
for k, st in enumerate(range(4, -1, -1)):
    if k == 1:
        if not SINGLE: sum_mfmas(0); check(0)
        for t in TL: fill(f'  v_rcp_f32 v{RI[t]}, v{SUM[t]}')
    if k == 2: need(lastf); role('O', [BAR] + (pollw + dma_n(30, 40) + dma_n(0, 30) if ODMA else []))     # B5a
    if 10 + k in YP: role('Y', YP[10 + k])
    if SINGLE and k == 4:
        gate('P4a'); continue
    for ct in range(12):
        tl = [t for t in TL if 0 <= st - t < 4]
        b_, e_ = ct // 4, ct % 4
        rd = []
        for hf in range(2):
            slot = 2*st + hf
            if slot == 0: base, off = PB0[e_], 128*b_
            else: base, off = vP[e_], (slot-1)*ROW + 128*b_
            rd.append(f'  ds_read_b64_tr_b16 {{d{"lo" if hf == 0 else "hi"}}}, v{base} offset:{off}')
        fid = add_frag(rd, 'S2'); lastf = fid
        if k == 4 and ct == opt('o5b', 6):
            stream.append(('needall', fid + 11 - ct)); role('O', ['  s_waitcnt vmcnt(0)', BAR] + dma_n(40, 70) if ODMA else [BAR]); gate('P4a')         # B5b: every X read of this wave has landed
        for t in tl:
            acc = YACC[t][ct]
            use(fid, (lambda buf, acc=acc, t=t, st=st: mfma(acc, buf, PREG[t]+4*(st-t), None if st - t == 3 else acc)))
        if k == 3 and ct % 2 and ct < 12 - YC1:
            fill(*ycvt(1, ct // 2, 1))
            if SINGLE: stream.append(('tag', f'YB{ct // 2}'))
        if k == 4 and ct % 2: fill(*ycvt(0, ct // 2, 0)); stream.append(('tag', f'YB{ct // 2}'))
    if k == 3:
        for ks in range(6 - YC1 // 2, 6): fill(*ycvt(1, ks, 1))
NLD = [f'  s_mov_b32 s{sVO}, {70*1024}'] + [f'  buffer_load_dwordx4 {V(NREG+4*i)}, v{vL0}, {RWS}, s{sVO} offen offset:{1024*i} sc1' for i in range(2)]
if 15 in YP: role('Y', YP[15])
def p4_post(s, hh):
    out = []
    for t in TL:
        acc = ACC + 16*(s % 2) + 8*t + 4*hh
        o = OUTR + 8*(s % 2) + 4*t
        for r in range(4): out.append(f'  v_mul_f32 v{acc+r}, v{acc+r}, v{RI[t]}')
        for r in range(2): out.append(f'  v_cvt_pk_bf16_f32 v{o+2*hh+r}, v{acc+2*r}, v{acc+2*r+1}')
        if hh: out.append(f'  buffer_store_dwordx4 {V(o)}, v{vO[t]}, {RO}, 0 offen offset:{64*s}{NTO}')
    return out
proj(lambda t, ks: YB[t][ks], n_read, lambda f: 'P4a' if f < 40 else 'P4b', p4_post,
     {**{ks: (lambda fid, ks=ks: stream.append(('flushto', f'YB{ks}'))) for ks in range(6)},
      12: lambda fid: raw(*NLD),
      opt('o6', 24): lambda fid: (role('O', (['  s_waitcnt vmcnt(%d)' % (2 if 'pairst' in OPT else 4)] if ODMA else []) + [BAR]), gate('P4b')),                 # B6
      60: lambda fid: raw(f'  s_waitcnt vmcnt({4*len(TL)})'),
      })
flush()

# ---------------- emitter: read scheduling, gap filling, hazard padding
def regs_of(tok):
    m = re.fullmatch(r'v\[(\d+):(\d+)\]', tok)
    if m: return list(range(int(m.group(1)), int(m.group(2)) + 1))
    m = re.fullmatch(r'-?v(\d+)', tok)
    return [int(m.group(1))] if m else []
def parse(line):
    p = line.strip().split(None, 1)
    op = p[0]; args = [a.strip().split()[0] for a in p[1].split(',')] if len(p) > 1 else []
    return op, args
clock = [0]
mf_w = {}; va_w = {}; tr_w = {}; mf_c = {}; sg_w = {}
def hazard(line):
    """wait states still required before `line` may issue"""
    op, args = parse(line); need_ = 0
    allr = [r for a in args for r in regs_of(a)]
    if op.startswith('v_mfma'):
        for r in [r for a in args[1:] for r in regs_of(a)]:
            if r in va_w: need_ = max(need_, 2 - (clock[0] - va_w[r] - 1))
        for r in regs_of(args[1]) + regs_of(args[2]):
            if r in mf_w: need_ = max(need_, 8 - (clock[0] - mf_w[r] - 1))
    elif op.startswith('v_') or op.startswith('buffer_') or op.startswith('ds_'):
        for r in allr:
            if r in mf_w: need_ = max(need_, 8 - (clock[0] - mf_w[r] - 1))
        if op.startswith('v_'):
            for r in regs_of(args[0]):
                if r in mf_c: need_ = max(need_, 3 - (clock[0] - mf_c[r] - 1))
            for r in [r for a in args[1:] for r in regs_of(a)]:
                if r in tr_w: need_ = max(need_, 1 - (clock[0] - tr_w[r] - 1))
            for a in args[1:]:
                if a in sg_w: need_ = max(need_, 2 - (clock[0] - sg_w[a] - 1))
    return need_
def emit(line):
    if line.endswith(':'):
        e(line); return
    n = hazard(line)
    if n > 0:
        e(f'  s_nop {n-1}'); clock[0] += n
    op, args = parse(line)
    e(line)
    if op.startswith('v_mfma'):
        for r in regs_of(args[0]): mf_w[r] = clock[0]
        for r in regs_of(args[3]): mf_c[r] = clock[0]
    elif op.startswith('v_'):
        if args[0].startswith('s'): sg_w[args[0]] = clock[0]
        for r in regs_of(args[0]):
            va_w[r] = clock[0]; tr_w.pop(r, None)
            if op in ('v_exp_f32', 'v_rcp_f32'): tr_w[r] = clock[0]
    if op == 's_nop': clock[0] += int(args[0])
    clock[0] += 1

gates = set(); nxt = 0; done_uses = [0]*len(frags)
ops = []; landed = -1; half = [None]
fq = []
def buf_of(f): return ABUF + 4*(f % NB)
def issue_one():
    global nxt
    while True:
        if half[0] is not None:
            emit(half[0]); ops.append(nxt); half[0] = None; nxt += 1; return True
        if nxt >= len(frags): return False
        fr = frags[nxt]
        if fr['gate'] not in gates: return False
        if nxt >= NB and done_uses[nxt-NB] < frags[nxt-NB]['uses']: return False
        if not fr['reads']:
            nxt += 1; continue
        if len(ops) + len(fr['reads']) > (13 if TSM else 15): return False
        b = buf_of(nxt)
        rs = [r.format(d4=V(b), dlo=V(b, 2), dhi=V(b+2, 2)) for r in fr['reads']]
        emit(rs[0]); ops.append(nxt)
        if len(rs) == 2: half[0] = rs[1]
        else: nxt += 1
        return True
def wait_for(f, pair=True):
    global landed, ops
    if f is None or f <= landed: return
    while nxt <= f:
        n0 = nxt
        if not issue_one() and nxt == n0: raise RuntimeError(f'cannot issue frag {nxt}')
    if any(o <= f for o in ops):
        if pair and f + 1 < nxt and sum(1 for o in ops if o > f + 1) >= PAIRMIN: f = f + 1
        n = sum(1 for o in ops if o > f)
        emit(f'  s_waitcnt lgkmcnt({n})')
        ops = [o for o in ops if o > f]
    landed = f
def sregs(tok):
    m = re.fullmatch(r's\[(\d+):(\d+)\]', tok)
    if m: return [-1 - r for r in range(int(m.group(1)), int(m.group(2)) + 1)]
    m = re.fullmatch(r's(\d+)', tok)
    return [-1 - int(m.group(1))] if m else []
def wr(l):
    op, args = parse(l)
    return set() if op.startswith('buffer_') else set(regs_of(args[0]) + sregs(args[0]))
def rdset(l):
    op, args = parse(l)
    return set(r for a in (args if op.startswith('buffer_') else args[1:]) for r in regs_of(a) + sregs(a))
def pick(pred):
    """first filler satisfying pred that does not depend on an earlier pending filler (window limited)"""
    W, R = set(), set()
    for i, l in enumerate(fq[:WINDOW]):
        if l.startswith('#'): continue
        if pred(l) and not (rdset(l) & W) and not (wr(l) & (W | R)) and hazard(l) <= 0: return i
        W |= wr(l); R |= rdset(l)
    return None
def is2(l): return 'v_exp' in l or 'v_rcp' in l
def isst(l): return 'buffer_store' in l
def gap(si, ent):
    while fq and fq[0].startswith('#'): fq.pop(0)
    cur = ent[2] if ent[2] is not None else landed
    nf = STREAM_NEXT.get(si)
    wnext = nf is not None and nf > landed                     # a wait will precede the next MFMA
    ahead = nxt - cur
    i = pick(isst)
    if i is not None and half[0] is None and ahead >= MINAHEAD:
        emit(fq.pop(i))
        i = pick(lambda l: not is2(l) and not isst(l))
        if i is not None: emit(fq.pop(i))
        return
    slots = 1 if wnext else 2
    nexp = sum(1 for l in fq if is2(l))
    # an exp takes a whole gap: while the ring is deep enough leave this gap to it
    if not wnext and half[0] is None and ahead >= EXPAHEAD:
        i = pick(is2)
        if i is not None:
            emit(fq.pop(i)); return
    if issue_one(): slots -= 1
    if (half[0] is not None or slots > 0 and (nexp or not fq or ahead < 6)) and issue_one(): slots -= 1
    if nexp > BACKLOG: slots = max(slots, 1 if pick(lambda l: not is2(l) and not isst(l)) is not None else 2)
    while slots > 0:
        i = pick(is2) if slots >= 2 else None
        if i is not None:
            emit(fq.pop(i)); slots -= 2; continue
        i = pick(lambda l: not is2(l) and not isst(l))
        if i is None: break
        emit(fq.pop(i)); slots -= 1
WINDOW = opt('window', 16); MINAHEAD = opt('minahead', 5); EXPAHEAD = opt('expahead', 7)
nmf = [0]
BACKLOG = opt('backlog', 6); PAIRMIN = opt('pairmin', 5)
STREAM_NEXT = {}
mi = [i for i, x in enumerate(stream) if x[0] == 'mfma']
for a_, b_ in zip(mi, mi[1:]): STREAM_NEXT[a_] = stream[b_][2]
for si, ent in enumerate(stream):
    k = ent[0]
    if k == 'raw': emit(ent[1])
    elif k == 'fill': fq.append(ent[1])
    elif k == 'flush':
        for l in fq:
            if not l.startswith('#'): emit(l)
        fq = []
    elif k == 'tag': fq.append('#' + ent[1])
    elif k == 'flushto':
        if '#' + ent[1] in fq:
            i = fq.index('#' + ent[1])
            for l in fq[:i]:
                if not l.startswith('#'): emit(l)
            fq = fq[i+1:]
    elif k == 'gate':
        gates.add(ent[1])
        while issue_one(): pass
    elif k in ('need', 'needall'): wait_for(ent[1])
    elif k == 'plain': el(ent[1])
    elif k == 'cond':
        emit(ent[1][0]); el(ent[1][1:])          # only the branch itself counts as distance
    elif k == 'mfma':
        wait_for(ent[2])
        if nmf[0] in TSM and not SINGLE: e(ts_line())
        nmf[0] += 1
        emit(ent[1](buf_of(ent[2]) if ent[2] is not None else None))
        if ent[2] is not None: done_uses[ent[2]] += 1
        gap(si, ent)
'''
e(f'  s_cmp_eq_u32 s{sU}, 0'); e('  s_cbranch_scc1 MK_single')
SINGLE, TL, SFX = False, (1, 0), ''
exec(BODY)
e('MK_fin:')
if TS:
    e('  s_waitcnt vmcnt(0)')
    e(ts_line()); e('  s_memrealtime s[98:99]')
    e('  s_waitcnt lgkmcnt(0)')
    e(f'  s_lshl_b32 s{sT[0]}, s2, 3'); e(f'  s_add_u32 s{sT[0]}, s{sT[0]}, s{sW}'); e(f'  s_lshl_b32 s{sT[0]}, s{sT[0]}, 6')
    e(f'  s_add_u32 s{sT[0]}, s{sT[0]}, 0x100000')
    e('  v_mov_b32 v1, 0')
    for i in range(nts[0]):
        if i == 0: e(f'  v_mov_b32 v2, s{sTS}')
        else:
            e(f'  s_sub_u32 s{sT[1]}, s{sTS+2*i}, s{sTS}'); e(f'  v_mov_b32 v2, s{sT[1]}')
        e(f'  buffer_store_dword v2, v1, s[20:23], s{sT[0]} offen offset:{4*i}')
    e('  v_mov_b32 v2, s96'); e('  v_mov_b32 v3, s98')
    e(f'  buffer_store_dwordx2 v[2:3], v1, s[20:23], s{sT[0]} offen offset:56')
    print('timestamps', nts[0]); assert nts[0] <= 12
e('MK_done:')
e('  s_endpgm')
e('MK_single:')
SINGLE, TL, SFX = True, (1,), 's'
exec(BODY)
e('  s_branch MK_fin' if TS else '  s_endpgm')
for t, sfx in ((0, ''), (1, ''), (1, 's')):
    R = SACC[t]; vm, vt = RI[0], RI[1]
    e(f'FB{t}{sfx}:')
    e('  s_nop 7')
    e(f'  v_max3_f32 v{vm}, v{R}, v{R+1}, v{R+2}')
    for k in range(3, 31, 2): e(f'  v_max3_f32 v{vm}, v{vm}, v{R+k}, v{R+k+1}')
    e(f'  s_mov_b32 s{sT[6]}, 0xff7fffff')
    e(f'  v_max3_f32 v{vm}, v{vm}, v{R+31}, s{sT[6]}')
    for sw in ('v_permlane32_swap_b32', 'v_permlane16_swap_b32'):
        e(f'  v_mov_b32 v{vt}, v{vm}'); e('  s_nop 1'); e(f'  {sw} v{vm}, v{vt}'); e('  s_nop 1')
        e(f'  v_max_f32 v{vm}, v{vm}, v{vt}')
    for k in range(32): e(f'  v_sub_f32 v{R+k}, v{R+k}, v{vm}')
    for k in range(32): e(f'  v_exp_f32 v{R+k}, v{R+k}')
    e('  s_nop 0')
    for k in range(16): e(f'  v_cvt_pk_bf16_f32 v{PREG[t]+k}, v{R+2*k}, v{R+2*k+1}')
    e('  s_nop 1')
    for kt in range(4): e(mfma(SUM[t], ONES, PREG[t]+4*kt, None if kt == 0 else SUM[t]))
    e('  s_nop 7')
    e(f'  s_branch FBR{t}{sfx}')
e('MK_end:')
e('.section .rodata,"a"')
e('.p2align 6'); e(f'.amdhsa_kernel {KN}')
e('  .amdhsa_next_free_vgpr 256'); e('  .amdhsa_next_free_sgpr 102'); e('  .amdhsa_accum_offset 256')
e('  .amdhsa_group_segment_fixed_size 0'); e('  .amdhsa_kernarg_size 48'); e('  .amdhsa_user_sgpr_count 2')
e('  .amdhsa_user_sgpr_kernarg_segment_ptr 1'); e('  .amdhsa_system_sgpr_workgroup_id_x 1')
e('.end_amdhsa_kernel')
if 'drop' in OPT:
    kinds = OPT['drop'].split(',')
    i0 = next(i for i, l in enumerate(L) if 'MK_np4:' in l)
    out = []; n = 0
    for i, l in enumerate(L):
        body = i > i0
        if 'mM' in kinds and not body and 'v_mfma' in l: l = '  s_nop 3'
        if 'exp' in kinds and 'v_exp' in l: l = l.replace('v_exp_f32', 'v_mov_b32')
        if 'lds' in kinds and body and 'ds_read_b128' in l:
            l = re.sub(r'ds_read_b128 v\[(\d+):\d+\]', lambda m: f'ds_read_b32 v{m.group(1)}', l)
        if 'tr' in kinds and body and 'ds_read_b64_tr' in l:
            l = re.sub(r'ds_read_b64_tr_b16 v\[(\d+):\d+\], v\d+', lambda m: f'ds_read_b32 v{m.group(1)}, v{vL0}', l)
        if 'mfma' in kinds and body and 'v_mfma' in l:
            n += 1
            if n % 2: l = '  s_nop 3'
        if 'nslab' in kinds and RWO in l and 'buffer_load' in l: l = '  s_nop 0'
        if 'nwv' in kinds and f'v{vNA}, {RW}' in l: l = '  s_nop 0'
        if 'ncomp' in kinds and 's_cbranch_scc1 MK_np2' in l: l = '  s_branch MK_np2'
        if 'st' in kinds and 'buffer_store_dwordx4' in l: l = '  s_nop 0'
        out.append(l)
    L = out
open(OUTF, 'w').write('\n'.join(L) + '\n')
```

```python
import sys, struct, math, re
OPT = dict(a.split('=') if '=' in a else (a, '1') for a in sys.argv[1:])
OUTF = OPT.get('out', 'standalone__neighborhood_nat__vision.s')
TS = 'ts' in OPT
TSM = [int(x) for x in OPT['tsm'].split(',')] if 'tsm' in OPT else []
TSP = 'tsp' in OPT
def opt(k, d): return int(OPT.get(k, d))
L = []
def e(s): L.append(s)
def el(ls):
    for l in ls: L.append(l)

X_BYTES = 19267584
WS_BYTES = 268435456
XB = 10240
ROW = 7680
HALF = 36864
NHI = XB + 12*ROW
WOL = 147456
SCALE = struct.unpack('<I', struct.pack('<f', (192 ** -0.5) * math.log2(math.e)))[0]
NT = ' nt' if 'nt' in OPT else ''
NCT = 2
NSC = '' if 'nplain' in OPT else ' sc1'
NTO = ' ' + OPT.get('st', 'nt+sc1').replace('+', ' ')
KN = 'standalone__neighborhood_nat__vision_kernel'

hdr = open('standalone__neighborhood_nat__vision.s.ref').read().split('\n')
for ln in hdr:
    if ln.startswith('; @launch'): break
    e(ln)
e('; @launch grid=(256,1,1) block=(512,1,1) lds=163840')
e('.amdgcn_target "amdgcn-amd-amdhsa--gfx950"')
e('.text')

def srd(d, b, n):
    return [f'  s_mov_b32 s{d}, s{b}', f'  s_and_b32 s{d+1}, s{b+1}, 0xffff', f'  s_mov_b32 s{d+2}, {n}', f'  s_mov_b32 s{d+3}, 0x00020000']
def V(a, n=4): return f'v[{a}:{a+n-1}]'
def mfma(d, a, b, c):
    cs = '0' if c is None else V(c)
    return f'  v_mfma_f32_16x16x32_bf16 {V(d)}, {V(a)}, {V(b)}, {cs}'

vL0, vL1 = 1, 2
vO = (5, 6)
vSe, vSo = 7, 8
vP = (9, 10, 11, 12)
vD = (13, 14, 3, 4)
PB0 = (15, 16, 17, 18)
vCT = 19
SB0 = (20, 0)
vRR = (21, 22)
RI = (22, 23)
SACC = (24, 56); QP = 88; XQ = 136; ACC = 184
ABUF = 216; NB = 10
PREG = (136, 152)
YB = ([140, 144, 148, 152, 36, 40], [156, 160, 164, 24, 28, 32])
YACC = ([56+4*i for i in range(8)] + [168+4*i for i in range(4)], [88+4*i for i in range(12)])
SUM = (184, 188); ONES = 192; ET = 196
OUTR = 88; NREG = 104
MACC = 24; MPK = 104
vWA = 96; vMA, vMB, vMW = (97, 98), (99, 100), (101, 102, 103)
vn, vg, tA, tB, tC, tD = 128, 129, 130, 131, 132, 133
vNB, vNA = 134, 135
QA = (134, 135); vQR = 23
CH = (0, 49152, 98304)
SO = 73728
sQR = (84, 85, 86, 87); sST = 101
sW, sU, sH, sPR, sPC, sKR, sKC, sXB, sGS, sGmin = range(24, 34)
sA2, sR0, sD0, sTR, sM0X, sM0X3, sW4, sWL = range(34, 42)
sINV = (42, 44)
sT = list(range(46, 60))
sMR, sAR, sMC, sAC = sT[10], sT[11], sT[12], sT[13]
sTS = 60
sPROD, sWB, sSC, sVO = 3, 92, 93, 100
RX, RO, RWS, RW, RWO, RDB = 's[12:15]', 's[16:19]', 's[20:23]', 's[88:91]', 's[4:7]', 's[8:11]'
MSK = f's[{sT[6]}:{sT[7]}]'
assert sT[6] % 2 == 0 and sT[2] % 2 == 0

nts = [0]
def ts_line():
    s = f'  s_memtime s[{sTS+2*nts[0]}:{sTS+2*nts[0]+1}]'; nts[0] += 1; return s
def tsp():
    if TSP: e(ts_line())

e(f'.globl {KN}'); e('.p2align 8'); e(f'.type {KN},@function'); e(f'{KN}:')
e('  s_cmp_ge_u32 s2, 256'); e('  s_cbranch_scc1 MK_done')
if TS: e(ts_line()); e('  s_memrealtime s[96:97]')
e('  s_load_dwordx8 s[4:11], s[0:1], 0')
e('  s_load_dwordx4 s[84:87], s[0:1], 32')
if 'nopf' not in OPT:
    e('  s_getpc_b64 s[12:13]'); e('MK_pc:')
    e('  s_and_b32 s13, s13, 0xffff'); e('  s_mov_b32 s14, MK_end-MK_pc'); e('  s_mov_b32 s15, 0x00020000')
    e('  v_lshlrev_b32 v23, 7, v0')
    e('  buffer_load_dword v255, v23, s[12:15], 0 offen')
e(f'  v_lshrrev_b32 v{tA}, 6, v0')
e('  v_and_b32 v0, 63, v0')
e(f'  v_readfirstlane_b32 s{sW}, v{tA}')
e(f'  v_and_b32 v{vn}, 15, v0'); e(f'  v_lshrrev_b32 v{vg}, 4, v0')
e(f'  v_lshrrev_b32 v{tA}, 5, v0'); e(f'  v_bfe_u32 v{tB}, v0, 3, 2'); e(f'  v_lshl_add_u32 v{tA}, v{tA}, 3, v{tB}')
e(f'  v_mul_u32_u24 v{tA}, 1152, v{tA}')
e(f'  s_and_b32 s{sH}, s{sW}, 1')
e(f'  s_lshl_b32 s{sT[0]}, s{sH}, 2')
e(f'  v_add_u32 v{tB}, s{sT[0]}, v{vg}'); e(f'  v_and_b32 v{tC}, 7, v0'); e(f'  v_xor_b32 v{tB}, v{tB}, v{tC}')
e(f'  v_lshl_add_u32 v{vWA}, v{tB}, 4, v{tA}')
e(f'  s_lshr_b32 s{sT[0]}, s{sW}, 2'); e(f'  s_lshl_b32 s{sT[0]}, s{sT[0]}, 5')
e(f'  s_lshl_b32 s{sT[1]}, s{sH}, 4'); e(f'  s_add_u32 s{sT[0]}, s{sT[0]}, s{sT[1]}')
e(f'  s_and_b32 s{sT[1]}, s{sW}, 2'); e(f'  s_lshl_b32 s{sT[1]}, s{sT[1]}, 1'); e(f'  s_add_u32 s{sT[0]}, s{sT[0]}, s{sT[1]}')
e(f'  s_mul_i32 s{sWB}, s{sT[0]}, 1152')
e(f'  s_lshl_b32 s{sWL}, s{sW}, 10')
e(f'  s_cmp_lt_u32 s{sW}, 4'); e('  s_cselect_b64 vcc, -1, 0')
EARLY_AT = len(L)
e(f'  s_bfe_u32 s{sPR}, s2, 0x10002')
e(f'  s_bfe_u32 s{sPC}, s2, 0x10001')
e(f'  s_and_b32 s{sKR}, s2, 1'); e(f'  s_lshl_b32 s{sKR}, s{sKR}, 2')
e(f'  s_lshr_b32 s{sT[0]}, s2, 6'); e(f'  s_add_u32 s{sKR}, s{sKR}, s{sT[0]}')
e(f'  s_bfe_u32 s{sKC}, s2, 0x30003')
e(f'  s_mul_i32 s{sTR}, s{sKR}, 14'); e(f'  s_add_i32 s{sTR}, s{sTR}, -6'); e(f'  s_max_i32 s{sKR}, s{sTR}, -4')
e(f'  s_mul_i32 s{sKC}, s{sKC}, 14'); e(f'  s_add_i32 s{sKC}, s{sKC}, -6')
e(f'  s_lshr_b32 s{sU}, s{sW}, 1'); e(f'  s_add_u32 s{sU}, s{sU}, 2'); e(f'  s_and_b32 s{sU}, s{sU}, 3')
e(f'  s_sub_u32 s{sMR}, 0, s{sPR}'); e(f'  s_mul_i32 s{sAR}, s{sPR}, 224')
e(f'  s_sub_u32 s{sMC}, 0, s{sPC}'); e(f'  s_mul_i32 s{sAC}, s{sPC}, 224')
e(f'  v_and_b32 v{tA}, 7, v{vn}')
e(f'  s_mul_i32 s{sT[0]}, s{sH}, 7'); e(f'  s_add_i32 s{sT[0]}, s{sT[0]}, s{sKC}')
e(f'  v_cmp_lt_u32 s[{sT[2]}:{sT[3]}], 6, v{tA}')
e(f'  v_add_u32 v{tA}, s{sT[0]}, v{tA}')
e(f'  v_max_i32 v{vCT}, 0, v{tA}')
e(f'  v_add3_u32 v{tA}, v{tA}, v{vCT}, 6')
e(f'  v_xor_b32 v{tA}, s{sMC}, v{tA}'); e(f'  v_add_u32 v{tA}, s{sAC}, v{tA}')
e(f'  v_subrev_u32 v{vCT}, s{sKC}, v{vCT}')
e(f'  v_mul_u32_u24 v{tA}, 384, v{tA}'); e(f'  v_lshl_add_u32 v{tA}, v{vg}, 4, v{tA}')
e(f'  s_lshl_b32 s{sT[0]}, s{sU}, 2'); e(f'  s_add_i32 s{sT[0]}, s{sT[0]}, -2')
e(f'  s_mov_b32 s{sT[1]}, 86016')
e(f'  v_lshrrev_b32 v{tB}, 3, v{vn}'); e(f'  v_add_u32 v{tB}, s{sT[0]}, v{tB}')
e(f'  v_mov_b32 v{tC}, 0x80000000')
for t in range(2):
    if t: e(f'  v_add_u32 v{tB}, 2, v{tB}')
    e(f'  v_cmp_gt_i32 s[{sINV[t]}:{sINV[t]+1}], 0, v{tB}')
    e(f'  v_add_u32 v{vO[t]}, s{sTR}, v{tB}')
    e(f'  v_max_i32 v{vRR[t]}, 0, v{vO[t]}')
    e(f'  v_add3_u32 v{vO[t]}, v{vO[t]}, v{vRR[t]}, 6')
    e(f'  s_or_b64 s[{sINV[t]}:{sINV[t]+1}], s[{sINV[t]}:{sINV[t]+1}], s[{sT[2]}:{sT[3]}]')
    e(f'  v_xor_b32 v{vO[t]}, s{sMR}, v{vO[t]}'); e(f'  v_add_u32 v{vO[t]}, s{sAR}, v{vO[t]}')
    e(f'  v_subrev_u32 v{vRR[t]}, s{sKR}, v{vRR[t]}')
    e(f'  v_mad_u32_u24 v{vO[t]}, v{vO[t]}, s{sT[1]}, v{tA}')
    e(f'  v_cndmask_b32 v{vRR[t]}, v{vRR[t]}, v{tC}, s[{sINV[t]}:{sINV[t]+1}]')
    e(f'  v_cndmask_b32 v{vO[t]}, v{vO[t]}, v{tC}, s[{sINV[t]}:{sINV[t]+1}]')

e('  s_waitcnt lgkmcnt(0)')
tsp()
el(srd(88, 6, 192*576*2))
if 'notlb' not in OPT:
    e(f'  s_cmp_lg_u32 s{sW}, 5'); e('  s_cbranch_scc1 MK_ntlb')
    e(f'  s_max_i32 s{sT[0]}, s{sTR}, 0'); e(f'  s_lshl_b32 s{sT[0]}, s{sT[0]}, 1'); e(f'  s_sub_u32 s{sT[1]}, 184, s{sT[0]}')
    e(f'  s_cmp_eq_u32 s{sPR}, 0'); e(f'  s_cselect_b32 s{sT[0]}, s{sT[0]}, s{sT[1]}'); e(f'  s_mul_i32 s{sT[0]}, s{sT[0]}, 86016')
    for k in range(3):
        e(f'  s_load_dword s94, s[4:5], s{sT[0]}'); e(f'  s_load_dword s95, s[10:11], s{sT[0]}')
        if k < 2: e(f'  s_add_u32 s{sT[0]}, s{sT[0]}, {20*86016 - 64}')
    e(f'  s_load_dword s94, s[84:85], 128'); e(f'  s_load_dword s95, s[86:87], 0x20000')
    e('MK_ntlb:')

def w_pieces(c, partner=0):
    return [[f'  s_add_i32 m0, s{sWL}, {CH[c] + mat*24576 + j*8192 + partner*4096}',
             f'  s_add_i32 s{sVO}, s{sWB}, {(j*64 + partner*32)*1152 + mat*384 + c*128}',
             f'  buffer_load_dwordx4 v{vWA}, {RW}, s{sVO} offen lds'] for mat in range(2) for j in range(3)]
def q_loads():
    return [f'  buffer_load_dwordx4 {V(XQ+24*t+4*s_)}, v{vO[t]}, {RX}, 0 offen offset:{64*s_}{NT}' for t in (1, 0) for s_ in range(6)]
def q_stage():
    return [[f'  s_add_u32 m0, s{sST}, {(1-t)*24576 + (3*qr + l)*1024 - 128*l}', '  s_nop 0',
             f'  buffer_load_dwordx4 v{QA[qr]}, {RX}, s{sQR[2*t+qr]} offen offset:{128*l}{NT} lds'] for t in (1, 0) for qr in range(2) for l in range(3)]
def q_reads():
    return ([f'  v_xor_b32 v{tA}, 64, v{vQR}'] +
            [f'  ds_read_b128 {V(XQ+24*t+4*s_)}, v{(vQR, tA)[s_ % 2]} offset:{(1-t)*24576 + 1024*(s_//2)}' for t in range(2) for s_ in range(6)])
SCH = {'O': OPT.get('so', 'A:W0,B:V0,0:W2+V2,4:q6,Z:q6'), 'Y': OPT.get('sy', 'C:W1+V1,1:q6,2:q6')}
PLAN = {}; ISS = {'O': [], 'Y': []}
for r_, sp in SCH.items():
    qi = 0
    for part in sp.split(','):
        pos, items = part.split(':')
        for it in items.split('+'):
            lst = PLAN.setdefault((r_, pos), [])
            if it[0] == 'W': lst += [(f'W{it[1]}', p) for p in w_pieces(int(it[1]))]
            elif it[0] == 'V': lst += [(f'W{it[1]}', p) for p in w_pieces(int(it[1]), 1 if r_ == 'O' else -1)]
            elif it in 'pr':
                assert pos == 'A'
                lst.append(('t', [f'  v_min_u32 v253, 2, v{vg}', f'  v_mad_u32_u24 v253, v253, s{sT[8]}, v{vO[1 if it == "p" else 0]}',
                                  f'  buffer_load_dword v{252 if it == "p" else 251}, v253, {RX}, 0 offen']))
            else:
                for _ in range(int(it[1:])):
                    if r_ == 'Y' and qi >= 6: lst.append(('b', [f'  s_cmp_eq_u32 s{sU}, 0', f'  s_cbranch_scc1 QB{qi}', q_loads()[qi], f'QB{qi}:']))
                    elif r_ == 'O': lst.append(('q', q_stage()[qi])); assert pos in ('34Z' if qi < 6 else 'Z') and opt('sya', 0) == 0
                    else: lst.append(('q', [q_loads()[qi]]))
                    qi += 1
    assert qi == 12
lbl = [0]
def role_lines(r_, lines):
    lbl[0] += 1
    return [f'  s_cbranch_vcc{"z" if r_ == "O" else "nz"} SL{lbl[0]}'] + list(lines) + [f'SL{lbl[0]}:']
def role2_lines(lo, ly):
    lbl[0] += 1; n = lbl[0]
    return [f'  s_cbranch_vccz SL{n}'] + list(lo) + [f'  s_branch SM{n}', f'SL{n}:'] + list(ly) + [f'SM{n}:']
def sched_items(pos):
    o, y = list(PLAN.get(('O', pos), [])), list(PLAN.get(('Y', pos), []))
    out = []
    while o or y: out.append((o.pop(0) if o else None, y.pop(0) if y else None))
    return out
def emit_item(it):
    o, y = it
    if o: ISS['O'].append(o[0])
    if y: ISS['Y'].append(y[0])
    if o and y and o == y: el(o[1])
    elif o and y: el(role2_lines(o[1], y[1]))
    elif o: el(role_lines('O', o[1]))
    else: el(role_lines('Y', y[1]))
def emit_pos(pos):
    o, y = PLAN.get(('O', pos), []), PLAN.get(('Y', pos), [])
    k = 0
    while k < len(o) and k < len(y) and o[k] == y[k]: emit_item((o[k], y[k])); k += 1
    for r_, x in (('O', o[k:]), ('Y', y[k:])):
        if x:
            ISS[r_] += [i[0] for i in x]; el(role_lines(r_, sum((i[1] for i in x), [])))
def after(r_, tag):
    l = ISS[r_]
    if tag not in l: return len(l) if tag == 'W0' else 63
    return min(63, len(l) - 1 - max(i for i, t in enumerate(l) if t == tag))

if 'nowpf' not in OPT:
    WPW = opt('wpw', 4)
    e(f'  s_lshr_b32 s{sT[0]}, s{sW}, 1'); e(f'  s_cmp_lg_u32 s{sT[0]}, {WPW // 2}'); e('  s_cbranch_scc1 MK_nwpf')
    e(f'  s_cmp_eq_u32 s{sW}, {WPW}'); e(f'  s_cselect_b32 s{sT[0]}, 54, 18')
    e('  s_cselect_b32 s12, s6, s8'); e('  s_cselect_b32 s13, s7, s9'); e('  s_and_b32 s13, s13, 0xffff')
    e(f'  s_lshr_b32 s{sT[1]}, s2, 3'); e(f'  s_mul_i32 s{sT[1]}, s{sT[1]}, s{sT[0]}'); e(f'  s_lshl_b32 s{sVO}, s{sT[1]}, 7')
    e(f'  s_lshl_b32 s{sT[0]}, s{sT[0]}, 7'); e(f'  s_add_u32 s14, s{sVO}, s{sT[0]}'); e('  s_mov_b32 s15, 0x00020000')
    e('  v_lshlrev_b32 v23, 7, v0')
    e(f'  buffer_load_dword v254, v23, s[12:15], s{sVO} offen')
    e('MK_nwpf:')
el(srd(12, 4, X_BYTES))
e(f'  s_movk_i32 s{sT[8]}, 112')
if 'noearly' in OPT: emit_pos('A')
else:
    assert ('Y', 'A') not in PLAN
    it = PLAN[('O', 'A')]; ISS['O'] += [i[0] for i in it]
    L[EARLY_AT:EARLY_AT] = role_lines('O', ['  s_waitcnt lgkmcnt(0)'] + srd(88, 6, 192*576*2) + sum((i[1] for i in it), []))
tsp()
el(srd(16, 10, X_BYTES)); el(srd(4, 8, 192*192*2)); el(srd(8, 84, 256)); el(srd(20, 86, WS_BYTES if TS else 73728))
e(f'  v_lshlrev_b32 v{vL0}, 4, v0')
e(f'  v_add_u32 v{vL1}, {HALF}, v{vL0}')
e(f'  s_and_b32 s{sW4}, s{sW}, 3'); e(f'  s_lshl_b32 s{sW4}, s{sW4}, 10')
e(f'  v_bfe_u32 v{tA}, v{vn}, 1, 3'); e(f'  v_xor_b32 v{tA}, v{tA}, v{vg}')
e(f'  v_lshlrev_b32 v{tB}, 7, v{vn}'); e(f'  v_lshl_add_u32 v{tB}, v{tA}, 4, v{tB}')
e(f'  s_lshr_b32 s{sT[0]}, s{sW}, 2'); e(f'  s_mul_i32 s{sT[1]}, s{sT[0]}, {6*2048}'); e(f'  s_add_u32 s{sT[1]}, s{sT[1]}, {CH[0]}')
e(f'  v_add_u32 v{vMA[0]}, s{sT[1]}, v{tB}'); e(f'  v_xor_b32 v{vMA[1]}, 64, v{vMA[0]}')
e(f'  s_mul_i32 s{sT[1]}, s{sW4}, 6'); e(f'  s_add_u32 s{sT[1]}, s{sT[1]}, {24576 + CH[0]}')
e(f'  v_add_u32 v{vMB[0]}, s{sT[1]}, v{tB}'); e(f'  v_xor_b32 v{vMB[1]}, 64, v{vMB[0]}')
F = []; f_ = F.append
f_(f'  s_lshr_b32 s{sT[0]}, s{sW}, 2'); f_(f'  s_mul_i32 s{sT[0]}, s{sT[0]}, 3072'); f_(f'  s_mul_i32 s{sT[1]}, s{sW4}, 18')
f_(f'  s_add_u32 s{sT[0]}, s{sT[0]}, s{sT[1]}'); f_(f'  s_sub_u32 s{sT[0]}, {(71-14)*1024}, s{sT[0]}')
f_(f'  v_add_u32 v{vMW[0]}, s{sT[0]}, v{vL0}')
f_(f'  s_lshl_b32 s{sT[0]}, s{sKR}, 1'); f_(f'  s_xor_b32 s{sT[0]}, s{sT[0]}, s{sMR}')
f_(f'  s_mul_i32 s{sT[1]}, s{sPR}, 222'); f_(f'  s_add_i32 s{sXB}, s{sT[0]}, s{sT[1]}')
f_(f'  s_mul_i32 s{sXB}, s{sXB}, 86016')
f_(f'  s_mul_i32 s{sGS}, s{sPR}, {-2*344064}'); f_(f'  s_add_i32 s{sGS}, s{sGS}, 344064')
f_(f'  s_lshr_b32 s{sGmin}, s{sKR}, 31'); f_(f'  s_lshl_b32 s{sGmin}, s{sGmin}, 1')
f_(f'  s_lshl_b32 s{sM0X}, s{sW4}, 2')
f_(f'  s_add_u32 s{sM0X3}, s{sM0X}, 3072'); f_(f'  s_min_u32 s{sM0X3}, s{sM0X3}, {14*1024}')
f_(f'  s_mul_i32 s{sT[2]}, s{sPR}, 172032'); f_(f'  s_sub_u32 s{sT[3]}, 172032, s{sT[2]}')
f_(f'  v_mov_b32 v{tC}, s{sT[2]}'); f_(f'  v_mov_b32 v{tD}, s{sT[3]}')
for b in range(960): assert (b * 2731) >> 16 == b // 24
for j in range(4):
    d = vD[j]
    if j < 3:
        f_(f'  s_lshr_b32 s{sT[0]}, s{sM0X}, 4'); f_(f'  s_add_u32 s{sT[0]}, s{sT[0]}, {64*j}')
    else: f_(f'  s_lshr_b32 s{sT[0]}, s{sM0X3}, 4')
    f_(f'  v_add_u32 v{tA}, s{sT[0]}, v0')
    f_(f'  v_mul_u32_u24 v{d}, 2731, v{tA}'); f_(f'  v_lshrrev_b32 v{d}, 16, v{d}')
    f_(f'  v_cmp_le_u32 {MSK}, 20, v{d}')
    f_(f'  v_mul_u32_u24 v{tB}, 24, v{d}'); f_(f'  v_sub_u32 v{tA}, v{tA}, v{tB}')
    f_(f'  v_subrev_u32 v{tB}, 20, v{d}')
    f_(f'  v_cndmask_b32 v{d}, v{d}, v{tB}, {MSK}')
    f_(f'  v_bfe_u32 v{tB}, v{d}, 1, 3'); f_(f'  v_xor_b32 v{tA}, v{tA}, v{tB}')
    f_(f'  v_cndmask_b32 v{tB}, v{tC}, v{tD}, {MSK}')
    f_(f'  v_lshl_add_u32 v{tA}, v{tA}, 4, v{tB}')
    f_(f'  v_add_u32 v{d}, s{sKC}, v{d}'); f_(f'  v_max_i32 v{d}, 0, v{d}'); f_(f'  v_lshlrev_b32 v{d}, 1, v{d}')
    f_(f'  v_xor_b32 v{d}, s{sMC}, v{d}'); f_(f'  v_add_u32 v{d}, s{sAC}, v{d}')
    f_(f'  v_mul_u32_u24 v{d}, 384, v{d}'); f_(f'  v_add_u32 v{d}, v{d}, v{tA}')
f_(f'  s_add_u32 s{sM0X}, s{sM0X}, {XB}'); f_(f'  s_add_u32 s{sM0X3}, s{sM0X3}, {XB}')
for dst, add in ((sT[0], -2), (sA2, 0)):
    f_(f'  s_lshl_b32 s{dst}, s{sU}, 2')
    if add: f_(f'  s_add_i32 s{dst}, s{dst}, {add}'); f_(f'  s_max_i32 s{dst}, s{dst}, 0')
    f_(f'  s_add_i32 s{dst}, s{dst}, s{sTR}'); f_(f'  s_max_i32 s{dst}, s{dst}, 0'); f_(f'  s_sub_i32 s{dst}, s{dst}, s{sKR}')
f_(f'  s_sub_u32 s{sT[0]}, s{sA2}, s{sT[0]}'); f_(f'  s_lshr_b32 s{sT[0]}, s{sT[0]}, 1')
f_(f'  s_mul_i32 s{sD0}, s{sT[0]}, -8'); f_(f'  s_add_i32 s{sD0}, s{sD0}, 7')
f_(f'  s_add_i32 s{sA2}, s{sA2}, -1')
f_(f'  s_add_i32 s{sR0}, s{sA2}, s{sD0}'); f_(f'  s_mul_i32 s{sD0}, s{sD0}, {ROW}')
f_(f'  s_lshl_b32 s{sT[1]}, s{sH}, 2')
f_(f'  s_mul_i32 s{sT[0]}, s{sA2}, {ROW}'); f_(f'  s_add_i32 s{sT[0]}, s{sT[0]}, {XB}')
f_(f'  v_add_u32 v{tA}, s{sT[1]}, v{vn}')
f_(f'  v_bfe_u32 v{tB}, v{tA}, 1, 3'); f_(f'  v_xor_b32 v{tB}, v{tB}, v{vg}')
f_(f'  v_mul_u32_u24 v{tA}, 384, v{tA}'); f_(f'  v_lshl_add_u32 v{tA}, v{tB}, 4, v{tA}')
f_(f'  v_add_u32 v{vSe}, s{sT[0]}, v{tA}'); f_(f'  v_xor_b32 v{vSo}, 64, v{vSe}')
f_(f'  v_lshrrev_b32 v{tA}, 2, v{vn}'); f_(f'  v_lshl_add_u32 v{tA}, v{vg}, 2, v{tA}'); f_(f'  v_add_u32 v{tA}, s{sT[1]}, v{tA}')
f_(f'  v_bfe_u32 v{tB}, v{tA}, 1, 3')
f_(f'  v_and_b32 v{tC}, 2, v{vn}'); f_(f'  v_lshlrev_b32 v{tC}, 1, v{tC}'); f_(f'  v_xor_b32 v{tB}, v{tB}, v{tC}')
f_(f'  v_mul_u32_u24 v{tA}, 384, v{tA}'); f_(f'  v_lshl_add_u32 v{tA}, v{tB}, 4, v{tA}')
f_(f'  v_and_b32 v{tB}, 1, v{vn}'); f_(f'  v_lshl_add_u32 v{tA}, v{tB}, 3, v{tA}')
f_(f'  v_add_u32 v{vP[0]}, s{sT[0]}, v{tA}')
for k in range(1, 4): f_(f'  v_xor_b32 v{vP[k]}, {16*k}, v{vP[0]}')
f_(f'  v_lshl_add_u32 v{tA}, v{vg}, 2, s{sT[1]}'); f_(f'  v_sub_u32 v{vCT}, v{tA}, v{vCT}')
f_(f'  v_cndmask_b32 v{vCT}, v{vCT}, 64, s[{sINV[1]}:{sINV[1]+1}]')
f_(f'  v_add_u32 v{SB0[0]}, s{sD0}, v{vSe}'); f_(f'  v_add_u32 v{SB0[1]}, s{sD0}, v{vSo}')
for k in range(4): f_(f'  v_add_u32 v{PB0[k]}, s{sD0}, v{vP[k]}')
f_(f'  s_mov_b32 s{sSC}, {SCALE}')
o2 = [f'  v_lshrrev_b32 v{tD}, 4, v{vL0}', f'  v_lshrrev_b32 v{tA}, 3, v{tD}', f'  s_mul_i32 s{sT[4]}, s{sH}, 7', f'  s_add_i32 s{sT[4]}, s{sT[4]}, s{sKC}',
      f'  v_cmp_lt_u32 {MSK}, 6, v{tA}', f'  v_add_u32 v{tA}, s{sT[4]}, v{tA}', f'  v_max_i32 v{tB}, 0, v{tA}', f'  v_add3_u32 v{tA}, v{tA}, v{tB}, 6',
      f'  v_xor_b32 v{tA}, s{sMC}, v{tA}', f'  v_add_u32 v{tA}, s{sAC}, v{tA}', f'  v_mul_u32_u24 v{tA}, 384, v{tA}',
      f'  v_and_b32 v{tB}, 7, v{tD}', f'  v_xor_b32 v{tB}, v{tB}, v{vg}', f'  v_lshl_add_u32 v{tA}, v{tB}, 4, v{tA}', f'  v_mov_b32 v{tB}, 0x80000000',
      f'  v_cndmask_b32 v{QA[0]}, v{tA}, v{tB}, {MSK}', f'  v_xor_b32 v{QA[1]}, 64, v{QA[0]}',
      f'  s_lshl_b32 s{sT[0]}, s{sU}, 2', f'  s_add_i32 s{sT[0]}, s{sT[0]}, s{sTR}']
for k in range(4):
    d = sQR[k]
    o2 += [f'  s_lshl_b32 s{d}, s{sT[0]}, 1', f'  s_add_i32 s{d}, s{d}, {2*(k-2) + 6}', f'  s_xor_b32 s{d}, s{d}, s{sMR}', f'  s_add_i32 s{d}, s{d}, s{sAR}', f'  s_mul_i32 s{d}, s{d}, 86016']
o2 += [f'  s_mul_i32 s{sST}, s{sW4}, 6', f'  s_add_u32 s{sST}, s{sST}, {SO}',
       f'  v_bfe_u32 v{tA}, v{vn}, 1, 3', f'  v_xor_b32 v{tA}, v{tA}, v{vg}', f'  v_lshlrev_b32 v{tB}, 7, v{vn}', f'  v_lshl_add_u32 v{tB}, v{tA}, 4, v{tB}',
       f'  v_lshrrev_b32 v{tA}, 3, v{vn}', f'  v_lshl_add_u32 v{tA}, v{tA}, 11, v{tB}', f'  v_add_u32 v{vQR}, s{sST}, v{tA}']
OLATE = opt('olate', 1)
F.insert(0, f'  v_mov_b32 v{vNB}, 0'); F.insert(0, f'  v_mov_b32 v{vNA}, 0')
if OLATE == 0: F += role_lines('O', o2); o2 = []
NPRE = opt('npre', 999)
NB1 = opt('nb1', 40)
el(F[:NB1]); emit_pos('B')
if OLATE == 2:
    assert NB1 in (2, 8)
    el(role_lines('Y', F[NB1:])); o2 = F[NB1:] + o2
else: el(F[NB1:])
F = []

def dma_x(G):
    out = []
    if G < 2: out += [f'  s_max_u32 s{sVO}, s{sGmin}, {G}', f'  s_mul_i32 s{sVO}, s{sVO}, s{sGS}']
    else: out.append(f'  s_mul_i32 s{sVO}, s{sGS}, {G}')
    out.append(f'  s_add_i32 s{sVO}, s{sVO}, s{sXB}')
    for j in range(4):
        out.append(f'  s_add_u32 m0, s{sM0X}, {G*15360 + j*1024}' if j < 3 else f'  s_add_u32 m0, s{sM0X3}, {G*15360}')
        out.append('  s_nop 0')
        out.append(f'  buffer_load_dwordx4 v{vD[j]}, {RX}, s{sVO} offen{NT} lds')
    return out
def dma_xs(Gs): return sum((dma_x(G) for G in Gs), [])
SPECIAL = [(1, 7), (1, 0), (0, 7), (0, 1), (0, 0)]
def bias_init(tmp, MID, TL):
    out = []; o = out.append
    ninf, tt = tmp, tmp+1
    sp = [x for x in SPECIAL if x[0] in TL]
    o(f'  v_mov_b32 v{ninf}, 0xff800000')
    for i in range(4): o(f'  v_add_u32 v{tt+i}, {i}, v{vCT}')
    for i in range(4): o(f'  v_cmp_gt_u32 s[{sT[2+2*i]}:{sT[3+2*i]}], 7, v{tt+i}')
    for q, (t, jj) in enumerate(sp):
        slot = jj + 2*t
        if slot == 0: o(f'  v_sub_u32 v{tt+4+q}, s{sR0}, v{vRR[t]}')
        else:
            o(f'  s_add_i32 s{sT[0]}, s{sA2}, {slot-1}'); o(f'  v_sub_u32 v{tt+4+q}, s{sT[0]}, v{vRR[t]}')
    for i in range(4): o(f'  v_cndmask_b32 v{MID+i}, v{ninf}, 0, s[{sT[2+2*i]}:{sT[3+2*i]}]')
    for q in range(len(sp)): o(f'  v_cmp_gt_u32 s[{sT[2*q]}:{sT[2*q+1]}], 7, v{tt+4+q}')
    for q, (t, jj) in enumerate(sp):
        for i in range(4): o(f'  v_cndmask_b32 v{SACC[t]+4*jj+i}, v{ninf}, v{MID+i}, s[{sT[2*q]}:{sT[2*q+1]}]')
    return out

tsp()
emit_pos('C')
tsp()
vLN = 107
def n_loads():
    e(f'  v_lshrrev_b32 v{vLN}, 4, v{vL0}')
    e(f'  s_cmp_lt_u32 s2, 72'); e('  s_cbranch_scc0 MK_np1')
    e(f'  s_mul_hi_u32 s{sT[8]}, s2, 0x15555556'); e(f'  s_lshl_b32 s{sT[8]}, s{sT[8]}, 6')
    e(f'  s_mul_i32 s{sT[9]}, s{sW}, {16*384}'); e(f'  s_add_u32 s{sVO}, s{sT[8]}, s{sT[9]}')
    e(f'  v_lshrrev_b32 v{MPK}, 2, v{vLN}'); e(f'  v_mul_u32_u24 v{MPK}, 384, v{MPK}'); e(f'  v_and_b32 v{MPK+1}, 3, v{vLN}'); e(f'  v_lshl_add_u32 v{MPK}, v{MPK+1}, 4, v{MPK}')
    e(f'  s_add_u32 m0, s{sWL}, {WOL}'); e('  s_nop 0')
    e(f'  buffer_load_dwordx4 v{MPK}, {RWO}, s{sVO} offen lds')
    e(f'  s_mul_i32 s{sT[9]}, s{sW4}, 6'); e(f'  s_add_u32 s{sVO}, s{sT[8]}, s{sT[9]}')
    e(f'  s_add_u32 m0, s{sW4}, {WOL + 8192}'); e(f'  s_add_u32 s{sVO}, s{sVO}, {8*16*384}')
    e(f'  buffer_load_dwordx4 v{MPK}, {RWO}, s{sVO} offen lds')
    e('MK_np1:')
    e(f'  s_sub_u32 s{sPROD}, s2, 72'); e(f'  s_lshr_b32 s{sPROD}, s{sPROD}, 31')
    e(f'  s_lshr_b32 s{sPROD}, s{sPROD}, s{sU}')
    e(f'  s_cmp_eq_u32 s{sPROD}, 0'); e('  s_cbranch_scc1 MK_np3')
    e(f'  s_mul_hi_u32 s{sT[8]}, s2, 0x15555556'); e(f'  s_mul_i32 s{sT[9]}, s{sT[8]}, 12'); e(f'  s_sub_u32 s{sT[9]}, s2, s{sT[9]}')
    e(f'  s_cmp_ge_u32 s{sT[9]}, 6'); e(f'  s_cselect_b32 s{sT[5]}, 1, 0'); e(f'  s_mul_i32 s{sVO}, s{sT[5]}, 6'); e(f'  s_sub_u32 s{sT[9]}, s{sT[9]}, s{sVO}')
    e(f'  v_lshrrev_b32 v{MPK+2}, 2, v{vn}'); e(f'  v_and_b32 v{MPK+1}, 3, v{vn}')
    e(f'  v_lshl_add_u32 v{vNB}, v{vg}, 3, v{MPK+2}'); e(f'  v_lshlrev_b32 v{vNB}, 6, v{vNB}'); e(f'  v_lshl_add_u32 v{vNB}, v{MPK+1}, 4, v{vNB}')
    e(f'  s_lshl_b32 s{sT[5]}, s{sT[5]}, 3'); e(f'  s_add_u32 s{sT[5]}, s{sT[5]}, {WOL}'); e(f'  v_add_u32 v{vNB}, s{sT[5]}, v{vNB}')
    e(f'  s_lshr_b32 s{sT[8]}, s{sT[9]}, 1'); e(f'  s_lshl_b32 s{sT[8]}, s{sT[8]}, 6')
    e(f'  s_and_b32 s{sT[9]}, s{sT[9]}, 1'); e(f'  s_lshl_b32 s{sT[9]}, s{sT[9]}, 4'); e(f'  s_add_u32 s{sT[8]}, s{sT[8]}, s{sT[9]}')
    e(f'  v_lshrrev_b32 v{MPK}, 1, v{MPK+2}'); e(f'  v_lshlrev_b32 v{MPK}, 5, v{MPK}')
    e(f'  v_and_b32 v{MPK+2}, 1, v{MPK+2}'); e(f'  v_lshl_add_u32 v{MPK}, v{MPK+2}, 2, v{MPK}')
    e(f'  v_add3_u32 v{MPK}, v{MPK}, v{MPK+1}, s{sT[8]}')
    e(f'  v_mul_u32_u24 v{MPK}, 1152, v{MPK}'); e(f'  v_lshl_add_u32 v{vNA}, v{vg}, 4, v{MPK}')
    e(f'  s_mul_i32 s{sVO}, s{sH}, 9216')
    for kk in range(6):
        e(f'  buffer_load_dwordx4 {V(136+4*kk)}, v{vNA}, {RW}, s{sVO} offen offset:{768+64*kk}')
    e('MK_np3:')
def m_reads(kk):
    rb = 184 + 36*(kk % 2); co = (kk // 2) * 49152
    lo = co if co < 49152*2 else 0
    return ([f'  ds_read_b128 {V(rb+24+4*b)}, v{vMB[kk % 2]} offset:{2048*b}' for b in range(3)] +
            [f'  ds_read_b128 {V(rb+4*a)}, v{vMA[kk % 2]} offset:{2048*a}' for a in range(6)])
def chunk_sync(c, lg):
    wo_, wy_ = after('O', f'W{c}'), after('Y', f'W{c}')
    x = ' lgkmcnt(0)' if lg else ''
    def w(n, prod):
        if c == 2 and prod and ISS['Y'].count('b'):
            return [f'  s_cmp_lg_u32 s{sU}, 0', '  s_cbranch_scc1 MK_c2', f'  s_waitcnt vmcnt({n - ISS["Y"].count("b")})', 'MK_c2:', f'  s_waitcnt vmcnt({n}){x}']
        if c != 1 or n == 63: return [f'  s_waitcnt vmcnt({n}){x}']
        lbl[0] += 1; k = lbl[0]; o = []
        if prod: o += [f'  s_cmp_lg_u32 s{sPROD}, 0', f'  s_cbranch_scc1 CA{k}']
        o += ['  s_cmp_lt_u32 s2, 72', f'  s_cbranch_scc1 CB{k}', f'  s_waitcnt vmcnt({n})', f'CB{k}:']
        if prod: o += [f'  s_waitcnt vmcnt({n+2})', f'CA{k}:', f'  s_waitcnt vmcnt({n+8}){x}']
        else: o += [f'  s_waitcnt vmcnt({n+2}){x}']
        return o
    if c == 2:
        wo_, wy_ = min(wo_, len(ISS['O']) - N_AT['O']), min(wy_, len(ISS['Y']) - N_AT['Y'])
    assert c != 1 or 'b' not in ISS['Y']
    if wo_ == wy_ and c != 2: el(w(wo_, True))
    else: el(role2_lines(w(wo_, False), w(wy_, True)))
    e('  s_barrier')
    tsp()
N_AT = {}
FPG = opt('fpg', 4)
chunk_sync(0, False)
el(m_reads(0))
SYA = opt('sya', 0)
for kk in range(4):
    odd = kk % 2 == 1
    extra = sched_items(str(kk)); ne = len(extra); cnt = 0
    rb = 184 + 36*(kk % 2)
    nx = m_reads(kk+1)
    issued = 0
    for a in range(6):
        if odd and a == SYA:
            chunk_sync(kk // 2 + 1, True)
            for r in vMA + vMB: e(f'  v_add_u32 v{r}, 49152, v{r}')
        if not (odd and a >= SYA): e(f'  s_waitcnt lgkmcnt({5 - a + issued})')
        for b in range(3):
            acc = MACC + 12*a + 4*b
            e(mfma(acc, rb+4*a, rb+24+4*b, None if kk == 0 else acc))
            slots = FPG
            if odd:
                for _ in range(1 if SYA <= 3 else 2):
                    if nx and a >= SYA and (b < 2 or SYA >= 2): e(nx.pop(0)); slots -= 1
            elif nx and b < 2 and a >= 1:
                e(nx.pop(0)); issued += 1; slots -= 1
            cnt += 1
            while extra and (ne - len(extra)) * 18 < cnt * ne: emit_item(extra.pop(0)); slots = 0
            el(F[:max(slots, 0)]); F = F[max(slots, 0):]
    el(nx)
    assert not extra
    if kk == opt('olk', 2) and o2: el(role_lines('O', o2))
    if kk == 0: n_loads(); N_AT.update(O=len(ISS['O']), Y=len(ISS['Y']))
print('leftover F', len(F), file=sys.stderr); el(F); F = []
assert ISS['Y'].count('q') <= 6
e(f'  s_cmp_eq_u32 s{sPROD}, 0'); e('  s_cbranch_scc1 MK_np2')
e('  s_waitcnt lgkmcnt(0)')
for k2 in range(6):
    for hf in range(2):
        e(f'  ds_read_b64_tr_b16 {V(MPK+4*k2+2*hf, 2)}, v{vNB} offset:{(32*k2 + 4*hf)*64}')
e('  s_setprio 3'); e('  s_waitcnt lgkmcnt(0)')
for kk in range(6):
    e(mfma(128, 136+4*kk, MPK+4*kk, None if kk == 0 else 128))
e(f'  s_lshl_b32 s{sVO}, s2, 10'); e(f'  s_lshl_b32 s{sT[8]}, s{sH}, 3'); e(f'  s_add_u32 s{sVO}, s{sVO}, s{sT[8]}')
e('  s_nop 5')
for r in range(2): e(f'  v_cvt_pk_bf16_f32 v{132+r}, v{128+2*r}, v{129+2*r}')
e(f'  buffer_store_dwordx2 v[132:133], v{vL0}, {RWS}, s{sVO} offen sc1')
NY_AT_STORE = len(ISS['Y'])
e('  s_setprio 0')
e('MK_np2:')
r5 = m_reads(5)
el(r5[:5]); late = r5[5:]
extra = sched_items('4'); ne = len(extra); cnt = 0
pend = []; nw = 0; wq = []
BWF = 0
for fi in range(9):
    a3, b = fi // 3, fi % 3
    if fi == 0: e('  s_waitcnt lgkmcnt(5)')
    if fi == 2: e('  s_waitcnt lgkmcnt(0)')
    for kk in (4, 5):
        rb = 184 + 36*(kk % 2)
        if fi == 0 and kk == 5: e('  s_waitcnt lgkmcnt(2)')
        for a in (2*a3, 2*a3+1):
            acc = MACC + 12*a + 4*b
            e(mfma(acc, rb+4*a, rb+24+4*b, acc)); cnt += 1
            if late: e(late.pop(0))
            k = 0
            while wq and fi >= BWF and k < 1: e(wq.pop(0)); k += 1
            while pend and pend[0][0] <= cnt and k < 2:
                l = pend.pop(0)[1]
                if 'ds_write' in l and (fi < BWF or wq): wq.append(l)
                else: e(l); k += 1
            while extra and (ne - len(extra)) * 36 < cnt * ne: emit_item(extra.pop(0))
    o = MPK + 4*(fi % 6)
    for a in range(2):
        acc = MACC + 12*(2*a3 + a) + 4*b
        for i in range(2): pend.append((cnt + 5, f'  v_cvt_pk_bf16_f32 v{o+2*a+i}, v{acc+2*i}, v{acc+2*i+1}'))
    pend.append((cnt + 5, f'  ds_write_b128 v{vMW[0]}, {V(o)} offset:{1024*(2-a3) + 6144*(2-b)}'))
assert not extra
tsp()
assert not wq
for i, (_, l) in enumerate(pend):
    if len(pend) - i == 5: e('  s_nop 3')
    e(l)
e('  s_waitcnt lgkmcnt(0)')
e('  s_barrier')
tsp()
NXY = opt('nxy', 2)
XH = (9, 8, 7, 6, 5)
assert ('Y', 'Z') not in PLAN and ('Y', '4') not in PLAN
y = [f'  s_cmp_lg_u32 s{sPROD}, 0', '  s_cbranch_scc1 MK_np4', '  s_waitcnt vmcnt(0)', 'MK_np4:', '  s_waitcnt vmcnt(1)', '  s_setprio 1']
o_ = sum((ls for _, ls in PLAN.get(('O', 'Z'), [])), []) + dma_xs(XH[:min(NXY, 2)]) + [f'  s_waitcnt vmcnt({4*min(NXY, 2)}) lgkmcnt(0)'] + q_reads() + ['  s_waitcnt lgkmcnt(0)', '  s_barrier'] + dma_xs(XH[2:max(NXY, 2)])
PRE_P1 = (o_, y)
PUB = [f'  s_cmp_eq_u32 s{sPROD}, 0', '  s_cbranch_scc1 MK_np5', '  s_waitcnt vmcnt(0)', '  v_mov_b32 v23, 1', '  s_mov_b64 exec, 1',
       *([f'  buffer_atomic_add v23, off, {RDB}, 0 sc1'] if 'atom' in OPT else
         [f'  s_lshl_b32 s{sVO}, s{sH}, 7', f'  buffer_atomic_add v23, off, {RDB}, s{sVO} sc1']), '  s_mov_b64 exec, -1', '  s_nop 3', 'MK_np5:']

BODY = r'''# ---------------- pipelined body
stream = []; frags = []
def add_frag(reads, gate): frags.append(dict(reads=reads, gate=gate, uses=0)); return len(frags) - 1
def use(fid, fn): frags[fid]['uses'] += 1; stream.append(('mfma', fn, fid))
def mf(text): stream.append(('mfma', (lambda buf: text), None))
def raw(*lines):
    for l in lines: stream.append(('raw', l))
def fill(*lines):
    for l in lines: stream.append(('fill', l))
def flush(): stream.append(('flush',))
def need(fid): stream.append(('need', fid))
def gate(name): stream.append(('gate', name))
def role(r, lines):
    if not lines: return
    if not SINGLE: stream.append(('cond', role_lines(r, lines)))
    elif r == 'Y': stream.append(('plain', lines))
def role2(lo, ly):
    if SINGLE or not lo: role('Y', ly)
    elif not ly: role('O', lo)
    else: stream.append(('cond', role2_lines(lo, ly)))
MID = SACC[1] + 4 if SINGLE else SACC[0] + 8
BAR = '  s_barrier'
SDMA = 'odma' not in OPT       # the single-tile waves load N
def m_read(f):
    addr = (71-f)*1024
    if addr < HALF: return [f'  ds_read_b128 {{d4}}, v{vL0} offset:{addr}']
    return [f'  ds_read_b128 {{d4}}, v{vL1} offset:{addr-HALF}']
def n_addr(f): return NHI + 30720 + 1024*f if f < 30 else ((f-30)*1024 if f < 40 else NHI + (f-40)*1024)
def n_read(f):
    if f >= 70: return []
    a = n_addr(f)
    return [f'  ds_read_b128 {{d4}}, v{vL1} offset:{a-NHI}' if a >= NHI else f'  ds_read_b128 {{d4}}, v{vL0} offset:{a}']
def dma_n(a, b):          # fragments a..b-1 (one address region), four waves
    out = []
    nw_ = 2 if SDMA else 4
    for f0 in range(a, b, nw_):
        lim = (b - 1 - f0) * 1024; src = sW4
        if lim < 1024*(nw_ - 1): out.append(f'  s_min_u32 s{sT[5]}, s{sW4}, {lim}'); src = sT[5]
        out += [f'  s_add_u32 m0, s{src}, {n_addr(f0)}', f'  s_add_u32 s{sVO}, s{src}, {f0*1024}',
                f'  buffer_load_dwordx4 v{vL0}, {RWS}, s{sVO} offen{NSC} lds']
    return out
CHAIN = [(0,0),(0,1),(0,2),(1,0),(1,1),(1,2),(1,3),(1,4),(1,5),(0,3),(0,4),(0,5)] if 'nochain' not in OPT else [(t, k) for k in range(6) for t in range(2)]
CHAIN = [x for x in CHAIN if x[0] in TL]
def proj(B, rd, gate_of, post, hooks):
    for s in range(6):
        for hh in range(2):
            f0 = 12*s + 6*hh
            fid = [add_frag(rd(f0+ks), gate_of(f0+ks)) for ks in range(6)]
            seen = set()
            for t, ks in (CHAIN if f0 or len(TL) == 1 or rd is m_read else [(t, k) for t in (1, 0) for k in range(6)]):
                f = f0 + ks
                if f0 == 0 and rd is n_read: stream.append(('flushto', f'YB{ks}' if t == TL[-1] else 'T1'))
                if ks not in seen:
                    seen.add(ks)
                    if f in hooks: hooks[f](fid[ks])
                acc = ACC + 16*(s % 2) + 8*t + 4*hh
                fx = None if rd(f) else NREG + 4*(f-70)
                use(fid[ks], (lambda buf, acc=acc, t=t, ks=ks, fx=fx: mfma(acc, buf if fx is None else fx, B(t, ks), None if ks == 0 else acc)))
            if hh == 1: stream.append(('flushto', f'post{s-1}'))
            fill(*post(s, hh))
        stream.append(('tag', f'post{s}'))

gate('G0')
role2(PRE_P1[0], PRE_P1[1] if SINGLE else ['  s_waitcnt vmcnt(0)', '  s_setprio 1'])
raw('BODY:' if not SINGLE else 'BODYS:')
BF = bias_init(SACC[1] + 8, MID, TL)
fill(*BF[:30])
def p1_post(s, hh):
    out = []
    for t in (1, 0):
        if t == 0 and s == 5 and hh == 1: out.append('#QP5a')
        if t not in TL: continue
        acc = ACC + 16*(s % 2) + 8*t + 4*hh
        for r in range(4): out.append(f'  v_mul_f32 v{acc+r}, s{sSC}, v{acc+r}')
        for r in range(2): out.append(f'  v_cvt_pk_bf16_f32 v{QP+24*t+4*s+2*hh+r}, v{acc+2*r}, v{acc+2*r+1}')
    return out
proj(lambda t, ks: XQ+24*t+4*ks, m_read, lambda f: 'G0', p1_post,
     {13: lambda fid: fill(*BF[30:35]), 25: lambda fid: fill(*BF[35:39]), 37: lambda fid: fill(*BF[39:44]), 49: lambda fid: fill(*BF[44:48]), 60: lambda fid: (fill(*BF[48:]), stream.append(('tag', 'BIAS'))),
      opt('yb1', 58): lambda fid: role('Y', [BAR]),
      31: lambda fid: (need(fid), role2([BAR], PUB if SINGLE else [])),                                  # B2
      61: lambda fid: (need(fid), role('O', ['  s_waitcnt vmcnt(0)', BAR]))})         # B3
if 'p1flush' in OPT: flush()
stream.append(('tag', 'QP5'))
fill(f'  v_add_u32 v{vL1}, {NHI}, v{vL0}')
for r in range(4): fill(f'  v_mov_b32 v{ONES+r}, 0x3f803f80')
POLL = f'  buffer_load_dword v13, off, {RDB}, 0 sc1' if 'atom' in OPT else f'  buffer_load_dword v13, v14, {RDB}, 0 offen sc1'
PSET = [] if 'atom' in OPT else [f'  v_and_b32 v14, {128 if NCT == 2 else 192}, v{vL0}']
PMODE = opt('pmode', 1)      # 0 early plain poll, 1 late plain poll, 2 none (diagnostic only)
role('Y', ['  s_setprio 0'] + dma_xs(XH[NXY:]) + [BAR] + dma_xs((4, 3, 2)) + 
     ['  s_waitcnt vmcnt(12)', BAR] + dma_xs((1, 0)) + ['  s_waitcnt vmcnt(8)', BAR])        # B2 B3 B4a
for _ in range(opt('idle', 0)): raw('  s_sleep 8')      # diagnostic only
gate('S')
etn = [0, 0]
def sm_fill(t, jj):
    pool = ((ET, ET+4), (ET+8, ET+12, ET+16))[t]
    tmp = pool[etn[t] % len(pool)]; etn[t] += 1
    acc = SACC[t] + 4*jj
    for i in range(4): fill(f'  v_exp_f32 v{tmp+i}, v{acc+i}')
    for i in range(2): fill(f'  v_cvt_pk_bf16_f32 v{PREG[t]+2*jj+i}, v{tmp+2*i}, v{tmp+2*i+1}')
    stream.append(('tag', f'P{t}_{jj}'))
def sum_mfmas(t):
    stream.append(('flushto', f'P{t}_0') if t == 0 else ('flush1',))
    for kt in (3, 2, 1, 0): mf(mfma(SUM[t], ONES, PREG[t]+4*kt, None if kt == 3 else SUM[t]))
LO, HI = (127-30) << 23, (127+30) << 23
def check(t):
    raw(f'  v_subrev_u32 v{RI[1]}, {LO}, v{SUM[t]}')
    raw(f'  s_mov_b32 s{sT[6]}, {HI-LO}')
    raw(f'  v_cmp_gt_u32 s[{sT[2]}:{sT[3]}], s{sT[6]}, v{RI[1]}')
    raw(f'  s_or_b64 s[{sT[2]}:{sT[3]}], s[{sT[2]}:{sT[3]}], s[{sINV[t]}:{sINV[t]+1}]')
    raw(f'  s_cmp_eq_u64 s[{sT[2]}:{sT[3]}], -1')
    raw(f'  s_cbranch_scc0 FB{t}{SFX}')
    raw(f'FBR{t}{SFX}:')
if 'atom' in OPT:
    pollw = [f'  s_mov_b32 s{sT[7]}, 0x40000', 'NPOLL:', '  s_waitcnt vmcnt(0)', f'  v_readfirstlane_b32 s{sT[0]}, v13', f'  s_sub_u32 s{sT[7]}, s{sT[7]}, 1',
             f'  s_cselect_b32 s{sT[0]}, 144, s{sT[0]}', f'  s_cmp_ge_u32 s{sT[0]}, 144', '  s_cbranch_scc1 NPOLLD', POLL, '  s_branch NPOLL', 'NPOLLD:']
else:
    pollw = [f'  s_mov_b32 s{sT[7]}, 0x40000', f'  s_mov_b32 s{sT[0]}, {144 // NCT}', 'NPOLL:', '  s_waitcnt vmcnt(0)', f'  v_cmp_le_u32 s[{sT[2]}:{sT[3]}], s{sT[0]}, v13',
             f'  s_sub_u32 s{sT[7]}, s{sT[7]}, 1', '  s_cbranch_scc1 NPOLLD', f'  s_cmp_eq_u64 s[{sT[2]}:{sT[3]}], -1', '  s_cbranch_scc1 NPOLLD', POLL, '  s_branch NPOLL', 'NPOLLD:']
ODMA = not SDMA
# Y's positions of B5a / B5b / B6 in units of "S slot or PV step index": 0..9 = before the k-th S slot, 10..14 = before the k-th PV step
YP = {opt('y5a', 6): [BAR] + pollw + dma_n(0, 30) + dma_n(30, 40),
      opt('y5b', 9): ['  s_waitcnt vmcnt(0)', BAR] + dma_n(40, 70),
      opt('y6', 11): ['  s_waitcnt vmcnt(0)', BAR]}
assert len(YP) == 3
if ODMA or not SINGLE: YP = {k: [BAR] for k in YP}
else:
    YP = {opt('s5a', 7): pollw + dma_n(30, 40) + [BAR] + dma_n(0, 30), opt('s5b', 8): ['  s_waitcnt vmcnt(0)', BAR] + dma_n(40, 70),
          opt('s6', 9): ['  s_waitcnt vmcnt(0)', BAR], opt('spoll', 5): PSET + [POLL.replace(' sc1', '')]}
    assert len(YP) == 4
if 'yhi' in OPT: YP[opt('yhi', 0)] = YP.get(opt('yhi', 0), []) + ['  s_setprio 1']
O4B = opt('o4b', 6)
for k, slot in enumerate(range(9, -1, -1)):
    if k == 2:
        raw('  s_waitcnt vmcnt(0)', BAR); gate('S2')       # O: B4a ; Y: B4b
    if k == O4B: role('O', [BAR] + (PSET + [POLL.replace(' sc1', '')] if ODMA else []))             # B4b
    if k in YP: role('Y', YP[k])
    if SINGLE and slot < 2:
        if slot == 0: sum_mfmas(1)
        continue
    fid = []
    for s in range(6):
        if slot == 0: base, off = SB0[s % 2], 128*(s//2)
        else: base, off = (vSe, vSo)[s % 2], (slot-1)*ROW + 128*(s//2)
        fid.append(add_frag([f'  ds_read_b128 {{d4}}, v{base} offset:{off}'], 'S' if slot >= 6 else 'S2'))
    for t, s in CHAIN:
        jj = slot - 2*t
        if 0 <= jj < 8:
            if slot == 0 and s == 3: sum_mfmas(1)
            if slot == 9 and s == 0: stream.append(('flushto', 'BIAS'))
            if slot == 9 and s == 5: stream.append(('flushto', 'QP5a'))
            if slot == 7 and s == 5: stream.append(('flushto', 'QP5'))
            acc = SACC[t] + 4*jj
            cin = MID if s == 0 and (t, jj) not in SPECIAL else acc
            use(fid[s], (lambda buf, acc=acc, t=t, s=s, cin=cin: mfma(acc, buf, QP+24*t+4*s, cin)))
    for t in TL:
        jj = slot - 2*t
        if 0 <= jj < 8: sm_fill(t, jj)
    if slot <= opt('prio', 4): stream.append(('prio1',))
check(1)
YC1 = 0
def ycvt(t, ks, _=0):
    return [f'  v_cvt_pk_bf16_f32 v{YB[t][ks]+2*hf+i}, v{YACC[t][2*ks+hf]+2*i}, v{YACC[t][2*ks+hf]+2*i+1}' for hf in range(2) for i in range(2)]
lastf = None
PVO = (3, 4, 2, 1, 0)
def pv_reads(st, ct):
    b_, e_ = ct // 4, ct % 4
    rd = []
    for hf in range(2):
        slot = 2*st + hf
        if slot == 0: base, off = PB0[e_], 128*b_
        else: base, off = vP[e_], (slot-1)*ROW + 128*b_
        rd.append(f'  ds_read_b64_tr_b16 {{d{"lo" if hf == 0 else "hi"}}}, v{base} offset:{off}')
    return rd
for k, st in enumerate(PVO):
    if k == 1:
        if not SINGLE: sum_mfmas(0)
        else: fill(f'  v_rcp_f32 v{RI[1]}, v{SUM[1]}')
    if k == 2: need(lastf); role('O', [BAR] + (pollw + dma_n(30, 40) + dma_n(0, 30) if ODMA else []))     # B5a
    if 10 + k in YP: role('Y', YP[10 + k])
    if SINGLE and k == 4:
        gate('P4a'); continue
    if k == 0: stream.append(('flushto', 'P0_6'))
    for ct in range(12):
        tl = [t for t in TL if 0 <= st - t < 4]
        fid = add_frag(pv_reads(st, ct), 'S2'); lastf = fid
        if k == 4 and ct == opt('o5b', 6):
            stream.append(('needall', fid + 11 - ct)); role('O', ['  s_waitcnt vmcnt(0)', BAR] + dma_n(40, 70) if ODMA else [BAR]); gate('P4a')         # B5b: every X read of this wave has landed
        for t in tl:
            acc = YACC[t][ct]
            use(fid, (lambda buf, acc=acc, t=t, st=st, k=k: mfma(acc, buf, PREG[t]+4*(st-t), None if k == 0 else acc)))
        if k == 1 and not SINGLE and ct == 2:
            check(0)
            for t in TL: fill(f'  v_rcp_f32 v{RI[t]}, v{SUM[t]}')
        if k == 3 and ct % 2 and ct < 12 - YC1:
            fill(*ycvt(1, ct // 2, 1))
            if SINGLE: stream.append(('tag', f'YB{ct // 2}'))
        if k == 4 and ct % 2: fill(*ycvt(0, ct // 2, 0)); stream.append(('tag', f'YB{ct // 2}'))
    if k == 3: stream.append(('tag', 'T1'))
NLD = [f'  s_mov_b32 s{sVO}, {70*1024}'] + [f'  buffer_load_dwordx4 {V(NREG+4*i)}, v{vL0}, {RWS}, s{sVO} offen offset:{1024*i} sc1' for i in range(2)]
if 15 in YP: role('Y', YP[15])
def p4_post(s, hh):
    out = []
    for t in TL:
        acc = ACC + 16*(s % 2) + 8*t + 4*hh
        o = OUTR + 8*(s % 2) + 4*t
        for r in range(4): out.append(f'  v_mul_f32 v{acc+r}, v{acc+r}, v{RI[t]}')
        for r in range(2): out.append(f'  v_cvt_pk_bf16_f32 v{o+2*hh+r}, v{acc+2*r}, v{acc+2*r+1}')
        if hh: out.append(f'  buffer_store_dwordx4 {V(o)}, v{vO[t]}, {RO}, 0 offen offset:{64*s}{NTO}')
    return out
proj(lambda t, ks: YB[t][ks], n_read, lambda f: 'P4a' if f < 40 else 'P4b', p4_post,
     {12: lambda fid: raw(*NLD),
      opt('o6', 24): lambda fid: (role('O', (['  s_waitcnt vmcnt(%d)' % (2 if 'pairst' in OPT else 4)] if ODMA else []) + [BAR]), gate('P4b')),                 # B6
      60: lambda fid: raw(f'  s_waitcnt vmcnt({4*len(TL)})'),
      })
flush()

# ---------------- emitter: read scheduling, gap filling, hazard padding
def regs_of(tok):
    m = re.fullmatch(r'v\[(\d+):(\d+)\]', tok)
    if m: return list(range(int(m.group(1)), int(m.group(2)) + 1))
    m = re.fullmatch(r'-?v(\d+)', tok)
    return [int(m.group(1))] if m else []
def parse(line):
    p = line.strip().split(None, 1)
    op = p[0]; args = [a.strip().split()[0] for a in p[1].split(',')] if len(p) > 1 else []
    return op, args
clock = [0]
mf_w = {}; va_w = {}; tr_w = {}; mf_c = {}; sg_w = {}
def hazard(line):
    """wait states still required before `line` may issue"""
    op, args = parse(line); need_ = 0
    allr = [r for a in args for r in regs_of(a)]
    if op.startswith('v_mfma'):
        for r in [r for a in args[1:] for r in regs_of(a)]:
            if r in va_w: need_ = max(need_, 2 - (clock[0] - va_w[r] - 1))
        for r in regs_of(args[1]) + regs_of(args[2]):
            if r in mf_w: need_ = max(need_, 8 - (clock[0] - mf_w[r] - 1))
    elif op.startswith('v_') or op.startswith('buffer_') or op.startswith('ds_'):
        for r in allr:
            if r in mf_w: need_ = max(need_, 8 - (clock[0] - mf_w[r] - 1))
        if op.startswith('v_'):
            for r in regs_of(args[0]):
                if r in mf_c: need_ = max(need_, 3 - (clock[0] - mf_c[r] - 1))
            for r in [r for a in args[1:] for r in regs_of(a)]:
                if r in tr_w: need_ = max(need_, 1 - (clock[0] - tr_w[r] - 1))
            for a in args[1:]:
                if a in sg_w: need_ = max(need_, 2 - (clock[0] - sg_w[a] - 1))
    return need_
def emit(line):
    if line.endswith(':'):
        e(line); return
    n = hazard(line)
    if n > 0:
        e(f'  s_nop {n-1}'); clock[0] += n
    op, args = parse(line)
    e(line)
    if op.startswith('v_mfma'):
        for r in regs_of(args[0]): mf_w[r] = clock[0]
        for r in regs_of(args[3]): mf_c[r] = clock[0]
    elif op.startswith('v_'):
        if args[0].startswith('s'): sg_w[args[0]] = clock[0]
        for r in regs_of(args[0]):
            va_w[r] = clock[0]; tr_w.pop(r, None)
            if op in ('v_exp_f32', 'v_rcp_f32'): tr_w[r] = clock[0]
    if op == 's_nop': clock[0] += int(args[0])
    clock[0] += 1

gates = set(); nxt = 0; done_uses = [0]*len(frags)
ops = []; landed = -1; half = [None]
fq = []
def buf_of(f): return ABUF + 4*(f % NB)
def issue_one():
    global nxt
    while True:
        if half[0] is not None:
            emit(half[0]); ops.append(nxt); half[0] = None; nxt += 1; return True
        if nxt >= len(frags): return False
        fr = frags[nxt]
        if fr['gate'] not in gates: return False
        if nxt >= NB and done_uses[nxt-NB] < frags[nxt-NB]['uses']: return False
        if not fr['reads']:
            nxt += 1; continue
        if len(ops) + len(fr['reads']) > (13 if TSM else 15): return False
        b = buf_of(nxt)
        rs = [r.format(d4=V(b), dlo=V(b, 2), dhi=V(b+2, 2)) for r in fr['reads']]
        emit(rs[0]); ops.append(nxt)
        if len(rs) == 2: half[0] = rs[1]
        else: nxt += 1
        return True
def wait_for(f, pair=True):
    global landed, ops
    if f is None or f <= landed: return
    while nxt <= f:
        n0 = nxt
        if not issue_one() and nxt == n0: raise RuntimeError(f'cannot issue frag {nxt}')
    if any(o <= f for o in ops):
        for _ in range(GROUP - 1):
            if pair and f + 1 < nxt and sum(1 for o in ops if o > f + 1) >= (PAIRMIN if len(frags[f]['reads']) == 1 else PAIRMIN2): f = f + 1
        n = sum(1 for o in ops if o > f)
        emit(f'  s_waitcnt lgkmcnt({n})')
        ops = [o for o in ops if o > f]
    landed = f
def sregs(tok):
    m = re.fullmatch(r's\[(\d+):(\d+)\]', tok)
    if m: return [-1 - r for r in range(int(m.group(1)), int(m.group(2)) + 1)]
    m = re.fullmatch(r's(\d+)', tok)
    return [-1 - int(m.group(1))] if m else []
def wr(l):
    op, args = parse(l)
    return set() if op.startswith('buffer_') else set(regs_of(args[0]) + sregs(args[0]))
def rdset(l):
    op, args = parse(l)
    return set(r for a in (args if op.startswith('buffer_') else args[1:]) for r in regs_of(a) + sregs(a))
def pick(pred):
    """first filler satisfying pred that does not depend on an earlier pending filler (window limited)"""
    W, R = set(), set()
    for i, l in enumerate(fq[:WINDOW]):
        if l.startswith('#'): continue
        if pred(l) and not (rdset(l) & W) and not (wr(l) & (W | R)) and hazard(l) <= 0: return i
        W |= wr(l); R |= rdset(l)
    return None
def is2(l): return 'v_exp' in l or 'v_rcp' in l
def isst(l): return 'buffer_store' in l
def gap(si, ent):
    while fq and fq[0].startswith('#'): fq.pop(0)
    cur = ent[2] if ent[2] is not None else landed
    nf = STREAM_NEXT.get(si)
    wnext = nf is not None and nf > landed                     # a wait will precede the next MFMA
    ahead = nxt - cur
    i = pick(isst)
    if i is not None and half[0] is None and ahead >= MINAHEAD:
        emit(fq.pop(i))
        i = pick(lambda l: not is2(l) and not isst(l))
        if i is not None: emit(fq.pop(i))
        return
    slots = 1 if wnext else 2
    nexp = sum(1 for l in fq if is2(l))
    # an exp takes a whole gap: while the ring is deep enough leave this gap to it
    if not wnext and half[0] is None and ahead >= EXPAHEAD:
        ready = [l for l in fq[:CVTWIN] if not l.startswith('#')]
        i = pick(is2) if any(is2(l) for l in ready) else None
        if i is not None:
            emit(fq.pop(i)); return
    if issue_one(): slots -= 1
    if (half[0] is not None or slots > 0 and (nexp or not fq or ahead < 6)) and issue_one(): slots -= 1
    if nexp > BACKLOG: slots = max(slots, 1 if pick(lambda l: not is2(l) and not isst(l)) is not None else 2)
    while slots > 0:
        i = pick(is2) if slots >= 2 else None
        if i is not None:
            emit(fq.pop(i)); slots -= 2; continue
        i = pick(lambda l: not is2(l) and not isst(l))
        if i is None: break
        emit(fq.pop(i)); slots -= 1
CVTWIN = opt('cvtwin', 6); WINDOW = opt('window', 16); MINAHEAD = opt('minahead', 5); EXPAHEAD = opt('expahead', 7)
nmf = [0]
BACKLOG = opt('backlog', 6); PAIRMIN = opt('pairmin', 4); PAIRMIN2 = opt('pairmin2', 8); GROUP = opt('group', 4)
STREAM_NEXT = {}
mi = [i for i, x in enumerate(stream) if x[0] == 'mfma']
for a_, b_ in zip(mi, mi[1:]): STREAM_NEXT[a_] = stream[b_][2]
for si in range(len(stream) - 1):
    a_, b_ = stream[si], stream[si+1]
    if a_[0] == 'cond' and b_[0] == 'cond' and a_[1][1:-1] == [BAR] and b_[1][1:-1] == [BAR] and a_[1][0].split()[0] != b_[1][0].split()[0]:
        stream[si] = ('raw', BAR); stream[si+1] = ('tag', 'nil')
for si, ent in enumerate(stream):
    k = ent[0]
    if k == 'raw': emit(ent[1])
    elif k == 'fill': fq.append(ent[1])
    elif k == 'flush':
        for l in fq:
            if not l.startswith('#'): emit(l)
        fq = []
    elif k == 'flush1':          # only the exp / pack work of tile 1
        own = set(range(ET+8, ET+20))
        keep = []
        for l in fq:
            if not l.startswith('#') and ((wr(l) | rdset(l)) & own or not ('v_exp' in l or 'v_cvt' in l)): emit(l)
            else: keep.append(l)
        fq = keep
    elif k == 'prio1':           # tile 1 work first from here on
        own = set(range(ET+8, ET+20))
        sm = lambda l: 'v_exp' in l or 'v_cvt' in l
        if all(l.startswith('#') or sm(l) for l in fq):
            fq = [l for l in fq if not l.startswith('#') and (wr(l) | rdset(l)) & own] + [l for l in fq if l.startswith('#') or not (wr(l) | rdset(l)) & own]
    elif k == 'tag': fq.append('#' + ent[1])
    elif k == 'flushto':
        if '#' + ent[1] in fq:
            i = fq.index('#' + ent[1])
            for l in fq[:i]:
                if not l.startswith('#'): emit(l)
            fq = fq[i+1:]
    elif k == 'gate':
        gates.add(ent[1])
        while issue_one(): pass
    elif k in ('need', 'needall'): wait_for(ent[1])
    elif k == 'plain': el(ent[1])
    elif k == 'cond':
        emit(ent[1][0]); el(ent[1][1:])          # only the branch itself counts as distance
    elif k == 'mfma':
        wait_for(ent[2])
        if nmf[0] in TSM and not SINGLE: e(ts_line())
        nmf[0] += 1
        emit(ent[1](buf_of(ent[2]) if ent[2] is not None else None))
        if ent[2] is not None: done_uses[ent[2]] += 1
        gap(si, ent)
'''
e(f'  s_cmp_eq_u32 s{sU}, 0'); e('  s_cbranch_scc1 MK_single')
SINGLE, TL, SFX = False, (1, 0), ''
exec(BODY)
e('MK_fin:')
if TS:
    e('  s_waitcnt vmcnt(0)')
    e(ts_line()); e('  s_memrealtime s[98:99]')
    e('  s_waitcnt lgkmcnt(0)')
    e(f'  s_lshl_b32 s{sT[0]}, s2, 3'); e(f'  s_add_u32 s{sT[0]}, s{sT[0]}, s{sW}'); e(f'  s_lshl_b32 s{sT[0]}, s{sT[0]}, 6')
    e(f'  s_add_u32 s{sT[0]}, s{sT[0]}, 0x100000')
    e('  v_mov_b32 v1, 0')
    for i in range(nts[0]):
        if i == 0: e(f'  v_mov_b32 v2, s{sTS}')
        else:
            e(f'  s_sub_u32 s{sT[1]}, s{sTS+2*i}, s{sTS}'); e(f'  v_mov_b32 v2, s{sT[1]}')
        e(f'  buffer_store_dword v2, v1, s[20:23], s{sT[0]} offen offset:{4*i}')
    e('  v_mov_b32 v2, s96'); e('  v_mov_b32 v3, s98')
    e(f'  buffer_store_dwordx2 v[2:3], v1, s[20:23], s{sT[0]} offen offset:56')
    print('timestamps', nts[0]); assert nts[0] <= 12
e('MK_done:')
e('  s_endpgm')
e('MK_single:')
SINGLE, TL, SFX = True, (1,), 's'
exec(BODY)
e('  s_branch MK_fin' if TS else '  s_endpgm')
for t, sfx in ((0, ''), (1, ''), (1, 's')):
    R = SACC[t]; vm, vt = RI[0], RI[1]
    e(f'FB{t}{sfx}:')
    e('  s_nop 7')
    e(f'  v_max3_f32 v{vm}, v{R}, v{R+1}, v{R+2}')
    for k in range(3, 31, 2): e(f'  v_max3_f32 v{vm}, v{vm}, v{R+k}, v{R+k+1}')
    e(f'  s_mov_b32 s{sT[6]}, 0xff7fffff')
    e(f'  v_max3_f32 v{vm}, v{vm}, v{R+31}, s{sT[6]}')
    for sw in ('v_permlane32_swap_b32', 'v_permlane16_swap_b32'):
        e(f'  v_mov_b32 v{vt}, v{vm}'); e('  s_nop 1'); e(f'  {sw} v{vm}, v{vt}'); e('  s_nop 1')
        e(f'  v_max_f32 v{vm}, v{vm}, v{vt}')
    for k in range(32): e(f'  v_sub_f32 v{R+k}, v{R+k}, v{vm}')
    for k in range(32): e(f'  v_exp_f32 v{R+k}, v{R+k}')
    e('  s_nop 0')
    for k in range(16): e(f'  v_cvt_pk_bf16_f32 v{PREG[t]+k}, v{R+2*k}, v{R+2*k+1}')
    e('  s_nop 1')
    for kt in range(4): e(mfma(SUM[t], ONES, PREG[t]+4*kt, None if kt == 0 else SUM[t]))
    if t == 0:
        for c0 in (0, 6):
            e('  s_waitcnt lgkmcnt(0)')
            for ct in range(c0, c0 + 6):
                b = R + 4*(ct - c0)
                for r in pv_reads(PVO[0], ct): e(r.format(dlo=V(b, 2), dhi=V(b+2, 2)))
            e('  s_waitcnt lgkmcnt(0)')
            for ct in range(c0, c0 + 6): e(mfma(YACC[0][ct], R + 4*(ct - c0), PREG[0]+4*PVO[0], None))
    e('  s_nop 7')
    e(f'  s_branch FBR{t}{sfx}')
e('MK_end:')
e('.section .rodata,"a"')
e('.p2align 6'); e(f'.amdhsa_kernel {KN}')
e('  .amdhsa_next_free_vgpr 256'); e('  .amdhsa_next_free_sgpr 102'); e('  .amdhsa_accum_offset 256')
e('  .amdhsa_group_segment_fixed_size 0'); e('  .amdhsa_kernarg_size 48'); e('  .amdhsa_user_sgpr_count 2')
e('  .amdhsa_user_sgpr_kernarg_segment_ptr 1'); e('  .amdhsa_system_sgpr_workgroup_id_x 1')
e('.end_amdhsa_kernel')
if 'drop' in OPT:
    kinds = OPT['drop'].split(',')
    i0 = next(i for i, l in enumerate(L) if 'MK_np4:' in l)
    out = []; n = 0
    for i, l in enumerate(L):
        body = i > i0
        if 'mM' in kinds and not body and 'v_mfma' in l: l = '  s_nop 3'
        if 'exp' in kinds and 'v_exp' in l: l = l.replace('v_exp_f32', 'v_mov_b32')
        if 'lds' in kinds and body and 'ds_read_b128' in l:
            l = re.sub(r'ds_read_b128 v\[(\d+):\d+\]', lambda m: f'ds_read_b32 v{m.group(1)}', l)
        if 'tr' in kinds and body and 'ds_read_b64_tr' in l:
            l = re.sub(r'ds_read_b64_tr_b16 v\[(\d+):\d+\], v\d+', lambda m: f'ds_read_b32 v{m.group(1)}, v{vL0}', l)
        if 'mfma' in kinds and body and 'v_mfma' in l:
            n += 1
            if n % 2: l = '  s_nop 3'
        if 'nslab' in kinds and RWO in l and 'buffer_load' in l: l = '  s_nop 0'
        if 'nwv' in kinds and f'v{vNA}, {RW}' in l: l = '  s_nop 0'
        if 'ncomp' in kinds and 's_cbranch_scc1 MK_np2' in l: l = '  s_branch MK_np2'
        if 'st' in kinds and 'buffer_store_dwordx4' in l: l = '  s_nop 0'
        out.append(l)
    L = out
open(OUTF, 'w').write('\n'.join(L) + '\n')
```

```python
import sys, struct, math, re
OPT = dict(a.split('=') if '=' in a else (a, '1') for a in sys.argv[1:])
OUTF = OPT.get('out', 'standalone__neighborhood_nat__vision.s')
TS = 'ts' in OPT
TSM = [int(x) for x in OPT['tsm'].split(',')] if 'tsm' in OPT else []
TSP = 'tsp' in OPT
def opt(k, d): return int(OPT.get(k, d))
L = []
def e(s): L.append(s)
def el(ls):
    for l in ls: L.append(l)

X_BYTES = 19267584
WS_BYTES = 268435456
XB = 10240
ROW = 7680
HALF = 36864
NHI = XB + 12*ROW
WOL = 147456
SCALE = struct.unpack('<I', struct.pack('<f', (192 ** -0.5) * math.log2(math.e)))[0]
NT = ' nt' if 'nt' in OPT else ''
NCT = 2
NSC = '' if 'nplain' in OPT else ' sc1'
NTO = ' ' + OPT.get('st', 'nt+sc1').replace('+', ' ')
KN = 'standalone__neighborhood_nat__vision_kernel'

hdr = open('standalone__neighborhood_nat__vision.s.ref').read().split('\n')
for ln in hdr:
    if ln.startswith('; @launch'): break
    e(ln)
e('; @launch grid=(256,1,1) block=(512,1,1) lds=163840')
e('.amdgcn_target "amdgcn-amd-amdhsa--gfx950"')
e('.text')

def srd(d, b, n):
    return [f'  s_mov_b32 s{d}, s{b}', f'  s_and_b32 s{d+1}, s{b+1}, 0xffff', f'  s_mov_b32 s{d+2}, {n}', f'  s_mov_b32 s{d+3}, 0x00020000']
def V(a, n=4): return f'v[{a}:{a+n-1}]'
def mfma(d, a, b, c):
    cs = '0' if c is None else V(c)
    return f'  v_mfma_f32_16x16x32_bf16 {V(d)}, {V(a)}, {V(b)}, {cs}'

vL0, vL1 = 1, 2
vO = (5, 6)
vSe, vSo = 7, 8
vP = (9, 10, 11, 12)
vD = (13, 14, 3, 4)
PB0 = (15, 16, 17, 18)
vCT = 19
SB0 = (20, 0)
vRR = (21, 22)
RI = (22, 23)
SACC = (24, 56); QP = 88; XQ = 136; ACC = 184
ABUF = 216; NB = 10
PREG = (136, 152)
YB = ([140, 144, 148, 152, 36, 40], [156, 160, 164, 24, 28, 32])
YACC = ([56+4*i for i in range(8)] + [168+4*i for i in range(4)], [88+4*i for i in range(12)])
SUM = (184, 188); ONES = 192; ET = 196
OUTR = 88; NREG = 104
MACC = 24; MPK = 104
vWA = 96; vMA, vMB, vMW = (97, 98), (99, 100), (101, 102, 103)
vn, vg, tA, tB, tC, tD = 128, 129, 130, 131, 132, 133
vNB, vNA = 134, 135
QA = (134, 135); vQR = 23
CH = (0, 49152, 98304)
SO = 73728
sQR = (84, 85, 86, 87); sST = 101
sW, sU, sH, sPR, sPC, sKR, sKC, sXB, sGS, sGmin = range(24, 34)
sA2, sR0, sD0, sTR, sM0X, sM0X3, sW4, sWL = range(34, 42)
sINV = (42, 44)
sT = list(range(46, 60))
sMR, sAR, sMC, sAC = sT[10], sT[11], sT[12], sT[13]
sTS = 60
sPROD, sWB, sSC, sVO = 3, 92, 93, 100
RX, RO, RWS, RW, RWO, RDB = 's[12:15]', 's[16:19]', 's[20:23]', 's[88:91]', 's[4:7]', 's[8:11]'
MSK = f's[{sT[6]}:{sT[7]}]'
assert sT[6] % 2 == 0 and sT[2] % 2 == 0

nts = [0]
def ts_line():
    s = f'  s_memtime s[{sTS+2*nts[0]}:{sTS+2*nts[0]+1}]'; nts[0] += 1; return s
def tsp():
    if TSP: e(ts_line())

e(f'.globl {KN}'); e('.p2align 8'); e(f'.type {KN},@function'); e(f'{KN}:')
e('  s_cmp_ge_u32 s2, 256'); e('  s_cbranch_scc1 MK_done')
if TS: e(ts_line()); e('  s_memrealtime s[96:97]')
e('  s_load_dwordx8 s[4:11], s[0:1], 0')
e('  s_load_dwordx4 s[84:87], s[0:1], 32')
if 'nopf' not in OPT:
    e('  s_getpc_b64 s[12:13]'); e('MK_pc:')
    e('  s_and_b32 s13, s13, 0xffff'); e('  s_mov_b32 s14, MK_end-MK_pc'); e('  s_mov_b32 s15, 0x00020000')
    e('  v_lshlrev_b32 v23, 7, v0')
    e('  buffer_load_dword v255, v23, s[12:15], 0 offen')
e(f'  v_lshrrev_b32 v{tA}, 6, v0')
e('  v_and_b32 v0, 63, v0')
e(f'  v_readfirstlane_b32 s{sW}, v{tA}')
e(f'  v_and_b32 v{vn}, 15, v0'); e(f'  v_lshrrev_b32 v{vg}, 4, v0')
e(f'  v_lshrrev_b32 v{tA}, 5, v0'); e(f'  v_bfe_u32 v{tB}, v0, 3, 2'); e(f'  v_lshl_add_u32 v{tA}, v{tA}, 3, v{tB}')
e(f'  v_mul_u32_u24 v{tA}, 1152, v{tA}')
e(f'  s_and_b32 s{sH}, s{sW}, 1')
e(f'  s_lshl_b32 s{sT[0]}, s{sH}, 2')
e(f'  v_add_u32 v{tB}, s{sT[0]}, v{vg}'); e(f'  v_and_b32 v{tC}, 7, v0'); e(f'  v_xor_b32 v{tB}, v{tB}, v{tC}')
e(f'  v_lshl_add_u32 v{vWA}, v{tB}, 4, v{tA}')
e(f'  s_lshr_b32 s{sT[0]}, s{sW}, 2'); e(f'  s_lshl_b32 s{sT[0]}, s{sT[0]}, 5')
e(f'  s_lshl_b32 s{sT[1]}, s{sH}, 4'); e(f'  s_add_u32 s{sT[0]}, s{sT[0]}, s{sT[1]}')
e(f'  s_and_b32 s{sT[1]}, s{sW}, 2'); e(f'  s_lshl_b32 s{sT[1]}, s{sT[1]}, 1'); e(f'  s_add_u32 s{sT[0]}, s{sT[0]}, s{sT[1]}')
e(f'  s_mul_i32 s{sWB}, s{sT[0]}, 1152')
e(f'  s_lshl_b32 s{sWL}, s{sW}, 10')
e(f'  s_cmp_lt_u32 s{sW}, 4'); e('  s_cselect_b64 vcc, -1, 0')
EARLY_AT = len(L)
e(f'  s_bfe_u32 s{sPR}, s2, 0x10002')
e(f'  s_bfe_u32 s{sPC}, s2, 0x10001')
e(f'  s_and_b32 s{sKR}, s2, 1'); e(f'  s_lshl_b32 s{sKR}, s{sKR}, 2')
e(f'  s_lshr_b32 s{sT[0]}, s2, 6'); e(f'  s_add_u32 s{sKR}, s{sKR}, s{sT[0]}')
e(f'  s_bfe_u32 s{sKC}, s2, 0x30003')
e(f'  s_mul_i32 s{sTR}, s{sKR}, 14'); e(f'  s_add_i32 s{sTR}, s{sTR}, -6'); e(f'  s_max_i32 s{sKR}, s{sTR}, -4')
e(f'  s_mul_i32 s{sKC}, s{sKC}, 14'); e(f'  s_add_i32 s{sKC}, s{sKC}, -6')
e(f'  s_lshr_b32 s{sU}, s{sW}, 1'); e(f'  s_add_u32 s{sU}, s{sU}, 2'); e(f'  s_and_b32 s{sU}, s{sU}, 3')
e(f'  s_sub_u32 s{sMR}, 0, s{sPR}'); e(f'  s_mul_i32 s{sAR}, s{sPR}, 224')
e(f'  s_sub_u32 s{sMC}, 0, s{sPC}'); e(f'  s_mul_i32 s{sAC}, s{sPC}, 224')
e(f'  v_and_b32 v{tA}, 7, v{vn}')
e(f'  s_mul_i32 s{sT[0]}, s{sH}, 7'); e(f'  s_add_i32 s{sT[0]}, s{sT[0]}, s{sKC}')
e(f'  v_cmp_lt_u32 s[{sT[2]}:{sT[3]}], 6, v{tA}')
e(f'  v_add_u32 v{tA}, s{sT[0]}, v{tA}')
e(f'  v_max_i32 v{vCT}, 0, v{tA}')
e(f'  v_add3_u32 v{tA}, v{tA}, v{vCT}, 6')
e(f'  v_xor_b32 v{tA}, s{sMC}, v{tA}'); e(f'  v_add_u32 v{tA}, s{sAC}, v{tA}')
e(f'  v_subrev_u32 v{vCT}, s{sKC}, v{vCT}')
e(f'  v_mul_u32_u24 v{tA}, 384, v{tA}'); e(f'  v_lshl_add_u32 v{tA}, v{vg}, 4, v{tA}')
e(f'  s_lshl_b32 s{sT[0]}, s{sU}, 2'); e(f'  s_add_i32 s{sT[0]}, s{sT[0]}, -2')
e(f'  s_mov_b32 s{sT[1]}, 86016')
e(f'  v_lshrrev_b32 v{tB}, 3, v{vn}'); e(f'  v_add_u32 v{tB}, s{sT[0]}, v{tB}')
e(f'  v_mov_b32 v{tC}, 0x80000000')
for t in range(2):
    if t: e(f'  v_add_u32 v{tB}, 2, v{tB}')
    e(f'  v_cmp_gt_i32 s[{sINV[t]}:{sINV[t]+1}], 0, v{tB}')
    e(f'  v_add_u32 v{vO[t]}, s{sTR}, v{tB}')
    e(f'  v_max_i32 v{vRR[t]}, 0, v{vO[t]}')
    e(f'  v_add3_u32 v{vO[t]}, v{vO[t]}, v{vRR[t]}, 6')
    e(f'  s_or_b64 s[{sINV[t]}:{sINV[t]+1}], s[{sINV[t]}:{sINV[t]+1}], s[{sT[2]}:{sT[3]}]')
    e(f'  v_xor_b32 v{vO[t]}, s{sMR}, v{vO[t]}'); e(f'  v_add_u32 v{vO[t]}, s{sAR}, v{vO[t]}')
    e(f'  v_subrev_u32 v{vRR[t]}, s{sKR}, v{vRR[t]}')
    e(f'  v_mad_u32_u24 v{vO[t]}, v{vO[t]}, s{sT[1]}, v{tA}')
    e(f'  v_cndmask_b32 v{vRR[t]}, v{vRR[t]}, v{tC}, s[{sINV[t]}:{sINV[t]+1}]')
    e(f'  v_cndmask_b32 v{vO[t]}, v{vO[t]}, v{tC}, s[{sINV[t]}:{sINV[t]+1}]')

e('  s_waitcnt lgkmcnt(0)')
tsp()
el(srd(88, 6, 192*576*2))
if 'notlb' not in OPT:
    e(f'  s_cmp_lg_u32 s{sW}, 5'); e('  s_cbranch_scc1 MK_ntlb')
    e(f'  s_max_i32 s{sT[0]}, s{sTR}, 0'); e(f'  s_lshl_b32 s{sT[0]}, s{sT[0]}, 1'); e(f'  s_sub_u32 s{sT[1]}, 184, s{sT[0]}')
    e(f'  s_cmp_eq_u32 s{sPR}, 0'); e(f'  s_cselect_b32 s{sT[0]}, s{sT[0]}, s{sT[1]}'); e(f'  s_mul_i32 s{sT[0]}, s{sT[0]}, 86016')
    for k in range(3):
        e(f'  s_load_dword s94, s[4:5], s{sT[0]}'); e(f'  s_load_dword s95, s[10:11], s{sT[0]}')
        if k < 2: e(f'  s_add_u32 s{sT[0]}, s{sT[0]}, {20*86016 - 64}')
    e(f'  s_load_dword s94, s[84:85], 128'); e(f'  s_load_dword s95, s[86:87], 0x20000')
    e('MK_ntlb:')

def w_pieces(c, partner=0):
    return [[f'  s_add_i32 m0, s{sWL}, {CH[c] + mat*24576 + j*8192 + partner*4096}',
             f'  s_add_i32 s{sVO}, s{sWB}, {(j*64 + partner*32)*1152 + mat*384 + c*128}',
             f'  buffer_load_dwordx4 v{vWA}, {RW}, s{sVO} offen lds'] for mat in range(2) for j in range(3)]
def q_loads():
    return [f'  buffer_load_dwordx4 {V(XQ+24*t+4*s_)}, v{vO[t]}, {RX}, 0 offen offset:{64*s_}{NT}' for t in (1, 0) for s_ in range(6)]
def q_stage():
    return [[f'  s_add_u32 m0, s{sST}, {(1-t)*24576 + (3*qr + l)*1024 - 128*l}', '  s_nop 0',
             f'  buffer_load_dwordx4 v{QA[qr]}, {RX}, s{sQR[2*t+qr]} offen offset:{128*l}{NT} lds'] for t in (1, 0) for qr in range(2) for l in range(3)]
def q_reads():
    return ([f'  v_xor_b32 v{tA}, 64, v{vQR}'] +
            [f'  ds_read_b128 {V(XQ+24*t+4*s_)}, v{(vQR, tA)[s_ % 2]} offset:{(1-t)*24576 + 1024*(s_//2)}' for t in range(2) for s_ in range(6)])
SCH = {'O': OPT.get('so', 'A:W0,B:V0,0:W2+V2,4:q6,Z:q6'), 'Y': OPT.get('sy', 'C:W1+V1,1:q4,2:q4,3:q4')}
PLAN = {}; ISS = {'O': [], 'Y': []}
for r_, sp in SCH.items():
    qi = 0
    for part in sp.split(','):
        pos, items = part.split(':')
        for it in items.split('+'):
            lst = PLAN.setdefault((r_, pos), [])
            if it[0] == 'W': lst += [(f'W{it[1]}', p) for p in w_pieces(int(it[1]))]
            elif it[0] == 'V': lst += [(f'W{it[1]}', p) for p in w_pieces(int(it[1]), 1 if r_ == 'O' else -1)]
            elif it in 'pr':
                assert pos == 'A'
                lst.append(('t', [f'  v_min_u32 v253, 2, v{vg}', f'  v_mad_u32_u24 v253, v253, s{sT[8]}, v{vO[1 if it == "p" else 0]}',
                                  f'  buffer_load_dword v{252 if it == "p" else 251}, v253, {RX}, 0 offen']))
            else:
                for _ in range(int(it[1:])):
                    if r_ == 'Y' and qi >= 6: lst.append(('b', [f'  s_cmp_eq_u32 s{sU}, 0', f'  s_cbranch_scc1 QB{qi}', q_loads()[qi], f'QB{qi}:']))
                    elif r_ == 'O': lst.append(('q', q_stage()[qi])); assert pos in ('34Z' if qi < 6 else 'Z') and opt('sya', 0) == 0
                    else: lst.append(('q', [q_loads()[qi]]))
                    qi += 1
    assert qi == 12
lbl = [0]
def role_lines(r_, lines):
    lbl[0] += 1
    return [f'  s_cbranch_vcc{"z" if r_ == "O" else "nz"} SL{lbl[0]}'] + list(lines) + [f'SL{lbl[0]}:']
def role2_lines(lo, ly):
    lbl[0] += 1; n = lbl[0]
    return [f'  s_cbranch_vccz SL{n}'] + list(lo) + [f'  s_branch SM{n}', f'SL{n}:'] + list(ly) + [f'SM{n}:']
def sched_items(pos):
    o, y = list(PLAN.get(('O', pos), [])), list(PLAN.get(('Y', pos), []))
    out = []
    while o or y: out.append((o.pop(0) if o else None, y.pop(0) if y else None))
    return out
def emit_item(it):
    o, y = it
    if o: ISS['O'].append(o[0])
    if y: ISS['Y'].append(y[0])
    if o and y and o == y: el(o[1])
    elif o and y: el(role2_lines(o[1], y[1]))
    elif o: el(role_lines('O', o[1]))
    else: el(role_lines('Y', y[1]))
def emit_pos(pos):
    o, y = PLAN.get(('O', pos), []), PLAN.get(('Y', pos), [])
    k = 0
    while k < len(o) and k < len(y) and o[k] == y[k]: emit_item((o[k], y[k])); k += 1
    for r_, x in (('O', o[k:]), ('Y', y[k:])):
        if x:
            ISS[r_] += [i[0] for i in x]; el(role_lines(r_, sum((i[1] for i in x), [])))
def after(r_, tag):
    l = ISS[r_]
    if tag not in l: return len(l) if tag == 'W0' else 63
    return min(63, len(l) - 1 - max(i for i, t in enumerate(l) if t == tag))

if 'nowpf' not in OPT:
    WPW = opt('wpw', 4)
    e(f'  s_lshr_b32 s{sT[0]}, s{sW}, 1'); e(f'  s_cmp_lg_u32 s{sT[0]}, {WPW // 2}'); e('  s_cbranch_scc1 MK_nwpf')
    e(f'  s_cmp_eq_u32 s{sW}, {WPW}'); e(f'  s_cselect_b32 s{sT[0]}, 54, 18')
    e('  s_cselect_b32 s12, s6, s8'); e('  s_cselect_b32 s13, s7, s9'); e('  s_and_b32 s13, s13, 0xffff')
    e(f'  s_lshr_b32 s{sT[1]}, s2, 3'); e(f'  s_mul_i32 s{sT[1]}, s{sT[1]}, s{sT[0]}'); e(f'  s_lshl_b32 s{sVO}, s{sT[1]}, 7')
    e(f'  s_lshl_b32 s{sT[0]}, s{sT[0]}, 7'); e(f'  s_add_u32 s14, s{sVO}, s{sT[0]}'); e('  s_mov_b32 s15, 0x00020000')
    e('  v_lshlrev_b32 v23, 7, v0')
    e(f'  buffer_load_dword v254, v23, s[12:15], s{sVO} offen')
    e('MK_nwpf:')
el(srd(12, 4, X_BYTES))
e(f'  s_movk_i32 s{sT[8]}, 112')
if 'noearly' in OPT: emit_pos('A')
else:
    assert ('Y', 'A') not in PLAN
    it = PLAN[('O', 'A')]; ISS['O'] += [i[0] for i in it]
    L[EARLY_AT:EARLY_AT] = role_lines('O', ['  s_waitcnt lgkmcnt(0)'] + srd(88, 6, 192*576*2) + sum((i[1] for i in it), []))
tsp()
el(srd(16, 10, X_BYTES)); el(srd(4, 8, 192*192*2)); el(srd(8, 84, 256)); el(srd(20, 86, WS_BYTES if TS else 73728))
e(f'  v_lshlrev_b32 v{vL0}, 4, v0')
e(f'  v_add_u32 v{vL1}, {HALF}, v{vL0}')
e(f'  s_and_b32 s{sW4}, s{sW}, 3'); e(f'  s_lshl_b32 s{sW4}, s{sW4}, 10')
e(f'  v_bfe_u32 v{tA}, v{vn}, 1, 3'); e(f'  v_xor_b32 v{tA}, v{tA}, v{vg}')
e(f'  v_lshlrev_b32 v{tB}, 7, v{vn}'); e(f'  v_lshl_add_u32 v{tB}, v{tA}, 4, v{tB}')
e(f'  s_lshr_b32 s{sT[0]}, s{sW}, 2'); e(f'  s_mul_i32 s{sT[1]}, s{sT[0]}, {6*2048}'); e(f'  s_add_u32 s{sT[1]}, s{sT[1]}, {CH[0]}')
e(f'  v_add_u32 v{vMA[0]}, s{sT[1]}, v{tB}'); e(f'  v_xor_b32 v{vMA[1]}, 64, v{vMA[0]}')
e(f'  s_mul_i32 s{sT[1]}, s{sW4}, 6'); e(f'  s_add_u32 s{sT[1]}, s{sT[1]}, {24576 + CH[0]}')
e(f'  v_add_u32 v{vMB[0]}, s{sT[1]}, v{tB}'); e(f'  v_xor_b32 v{vMB[1]}, 64, v{vMB[0]}')
F = []; f_ = F.append
f_(f'  s_lshr_b32 s{sT[0]}, s{sW}, 2'); f_(f'  s_mul_i32 s{sT[0]}, s{sT[0]}, 3072'); f_(f'  s_mul_i32 s{sT[1]}, s{sW4}, 18')
f_(f'  s_add_u32 s{sT[0]}, s{sT[0]}, s{sT[1]}'); f_(f'  s_sub_u32 s{sT[0]}, {(71-14)*1024}, s{sT[0]}')
f_(f'  v_add_u32 v{vMW[0]}, s{sT[0]}, v{vL0}')
f_(f'  s_lshl_b32 s{sT[0]}, s{sKR}, 1'); f_(f'  s_xor_b32 s{sT[0]}, s{sT[0]}, s{sMR}')
f_(f'  s_mul_i32 s{sT[1]}, s{sPR}, 222'); f_(f'  s_add_i32 s{sXB}, s{sT[0]}, s{sT[1]}')
f_(f'  s_mul_i32 s{sXB}, s{sXB}, 86016')
f_(f'  s_mul_i32 s{sGS}, s{sPR}, {-2*344064}'); f_(f'  s_add_i32 s{sGS}, s{sGS}, 344064')
f_(f'  s_lshr_b32 s{sGmin}, s{sKR}, 31'); f_(f'  s_lshl_b32 s{sGmin}, s{sGmin}, 1')
f_(f'  s_lshl_b32 s{sM0X}, s{sW4}, 2')
f_(f'  s_add_u32 s{sM0X3}, s{sM0X}, 3072'); f_(f'  s_min_u32 s{sM0X3}, s{sM0X3}, {14*1024}')
f_(f'  s_mul_i32 s{sT[2]}, s{sPR}, 172032'); f_(f'  s_sub_u32 s{sT[3]}, 172032, s{sT[2]}')
f_(f'  v_mov_b32 v{tC}, s{sT[2]}'); f_(f'  v_mov_b32 v{tD}, s{sT[3]}')
for b in range(960): assert (b * 2731) >> 16 == b // 24
for j in range(4):
    d = vD[j]
    if j < 3:
        f_(f'  s_lshr_b32 s{sT[0]}, s{sM0X}, 4'); f_(f'  s_add_u32 s{sT[0]}, s{sT[0]}, {64*j}')
    else: f_(f'  s_lshr_b32 s{sT[0]}, s{sM0X3}, 4')
    f_(f'  v_add_u32 v{tA}, s{sT[0]}, v0')
    f_(f'  v_mul_u32_u24 v{d}, 2731, v{tA}'); f_(f'  v_lshrrev_b32 v{d}, 16, v{d}')
    f_(f'  v_cmp_le_u32 {MSK}, 20, v{d}')
    f_(f'  v_mul_u32_u24 v{tB}, 24, v{d}'); f_(f'  v_sub_u32 v{tA}, v{tA}, v{tB}')
    f_(f'  v_subrev_u32 v{tB}, 20, v{d}')
    f_(f'  v_cndmask_b32 v{d}, v{d}, v{tB}, {MSK}')
    f_(f'  v_bfe_u32 v{tB}, v{d}, 1, 3'); f_(f'  v_xor_b32 v{tA}, v{tA}, v{tB}')
    f_(f'  v_cndmask_b32 v{tB}, v{tC}, v{tD}, {MSK}')
    f_(f'  v_lshl_add_u32 v{tA}, v{tA}, 4, v{tB}')
    f_(f'  v_add_u32 v{d}, s{sKC}, v{d}'); f_(f'  v_max_i32 v{d}, 0, v{d}'); f_(f'  v_lshlrev_b32 v{d}, 1, v{d}')
    f_(f'  v_xor_b32 v{d}, s{sMC}, v{d}'); f_(f'  v_add_u32 v{d}, s{sAC}, v{d}')
    f_(f'  v_mul_u32_u24 v{d}, 384, v{d}'); f_(f'  v_add_u32 v{d}, v{d}, v{tA}')
f_(f'  s_add_u32 s{sM0X}, s{sM0X}, {XB}'); f_(f'  s_add_u32 s{sM0X3}, s{sM0X3}, {XB}')
for dst, add in ((sT[0], -2), (sA2, 0)):
    f_(f'  s_lshl_b32 s{dst}, s{sU}, 2')
    if add: f_(f'  s_add_i32 s{dst}, s{dst}, {add}'); f_(f'  s_max_i32 s{dst}, s{dst}, 0')
    f_(f'  s_add_i32 s{dst}, s{dst}, s{sTR}'); f_(f'  s_max_i32 s{dst}, s{dst}, 0'); f_(f'  s_sub_i32 s{dst}, s{dst}, s{sKR}')
f_(f'  s_sub_u32 s{sT[0]}, s{sA2}, s{sT[0]}'); f_(f'  s_lshr_b32 s{sT[0]}, s{sT[0]}, 1')
f_(f'  s_mul_i32 s{sD0}, s{sT[0]}, -8'); f_(f'  s_add_i32 s{sD0}, s{sD0}, 7')
f_(f'  s_add_i32 s{sA2}, s{sA2}, -1')
f_(f'  s_add_i32 s{sR0}, s{sA2}, s{sD0}'); f_(f'  s_mul_i32 s{sD0}, s{sD0}, {ROW}')
f_(f'  s_lshl_b32 s{sT[1]}, s{sH}, 2')
f_(f'  s_mul_i32 s{sT[0]}, s{sA2}, {ROW}'); f_(f'  s_add_i32 s{sT[0]}, s{sT[0]}, {XB}')
f_(f'  v_add_u32 v{tA}, s{sT[1]}, v{vn}')
f_(f'  v_bfe_u32 v{tB}, v{tA}, 1, 3'); f_(f'  v_xor_b32 v{tB}, v{tB}, v{vg}')
f_(f'  v_mul_u32_u24 v{tA}, 384, v{tA}'); f_(f'  v_lshl_add_u32 v{tA}, v{tB}, 4, v{tA}')
f_(f'  v_add_u32 v{vSe}, s{sT[0]}, v{tA}'); f_(f'  v_xor_b32 v{vSo}, 64, v{vSe}')
f_(f'  v_lshrrev_b32 v{tA}, 2, v{vn}'); f_(f'  v_lshl_add_u32 v{tA}, v{vg}, 2, v{tA}'); f_(f'  v_add_u32 v{tA}, s{sT[1]}, v{tA}')
f_(f'  v_bfe_u32 v{tB}, v{tA}, 1, 3')
f_(f'  v_and_b32 v{tC}, 2, v{vn}'); f_(f'  v_lshlrev_b32 v{tC}, 1, v{tC}'); f_(f'  v_xor_b32 v{tB}, v{tB}, v{tC}')
f_(f'  v_mul_u32_u24 v{tA}, 384, v{tA}'); f_(f'  v_lshl_add_u32 v{tA}, v{tB}, 4, v{tA}')
f_(f'  v_and_b32 v{tB}, 1, v{vn}'); f_(f'  v_lshl_add_u32 v{tA}, v{tB}, 3, v{tA}')
f_(f'  v_add_u32 v{vP[0]}, s{sT[0]}, v{tA}')
for k in range(1, 4): f_(f'  v_xor_b32 v{vP[k]}, {16*k}, v{vP[0]}')
f_(f'  v_lshl_add_u32 v{tA}, v{vg}, 2, s{sT[1]}'); f_(f'  v_sub_u32 v{vCT}, v{tA}, v{vCT}')
f_(f'  v_cndmask_b32 v{vCT}, v{vCT}, 64, s[{sINV[1]}:{sINV[1]+1}]')
f_(f'  v_add_u32 v{SB0[0]}, s{sD0}, v{vSe}'); f_(f'  v_add_u32 v{SB0[1]}, s{sD0}, v{vSo}')
for k in range(4): f_(f'  v_add_u32 v{PB0[k]}, s{sD0}, v{vP[k]}')
f_(f'  s_mov_b32 s{sSC}, {SCALE}')
o2 = [f'  v_lshrrev_b32 v{tD}, 4, v{vL0}', f'  v_lshrrev_b32 v{tA}, 3, v{tD}', f'  s_mul_i32 s{sT[4]}, s{sH}, 7', f'  s_add_i32 s{sT[4]}, s{sT[4]}, s{sKC}',
      f'  v_cmp_lt_u32 {MSK}, 6, v{tA}', f'  v_add_u32 v{tA}, s{sT[4]}, v{tA}', f'  v_max_i32 v{tB}, 0, v{tA}', f'  v_add3_u32 v{tA}, v{tA}, v{tB}, 6',
      f'  v_xor_b32 v{tA}, s{sMC}, v{tA}', f'  v_add_u32 v{tA}, s{sAC}, v{tA}', f'  v_mul_u32_u24 v{tA}, 384, v{tA}',
      f'  v_and_b32 v{tB}, 7, v{tD}', f'  v_xor_b32 v{tB}, v{tB}, v{vg}', f'  v_lshl_add_u32 v{tA}, v{tB}, 4, v{tA}', f'  v_mov_b32 v{tB}, 0x80000000',
      f'  v_cndmask_b32 v{QA[0]}, v{tA}, v{tB}, {MSK}', f'  v_xor_b32 v{QA[1]}, 64, v{QA[0]}',
      f'  s_lshl_b32 s{sT[0]}, s{sU}, 2', f'  s_add_i32 s{sT[0]}, s{sT[0]}, s{sTR}']
for k in range(4):
    d = sQR[k]
    o2 += [f'  s_lshl_b32 s{d}, s{sT[0]}, 1', f'  s_add_i32 s{d}, s{d}, {2*(k-2) + 6}', f'  s_xor_b32 s{d}, s{d}, s{sMR}', f'  s_add_i32 s{d}, s{d}, s{sAR}', f'  s_mul_i32 s{d}, s{d}, 86016']
o2 += [f'  s_mul_i32 s{sST}, s{sW4}, 6', f'  s_add_u32 s{sST}, s{sST}, {SO}',
       f'  v_bfe_u32 v{tA}, v{vn}, 1, 3', f'  v_xor_b32 v{tA}, v{tA}, v{vg}', f'  v_lshlrev_b32 v{tB}, 7, v{vn}', f'  v_lshl_add_u32 v{tB}, v{tA}, 4, v{tB}',
       f'  v_lshrrev_b32 v{tA}, 3, v{vn}', f'  v_lshl_add_u32 v{tA}, v{tA}, 11, v{tB}', f'  v_add_u32 v{vQR}, s{sST}, v{tA}']
OLATE = opt('olate', 1)
F.insert(0, f'  v_mov_b32 v{vNB}, 0'); F.insert(0, f'  v_mov_b32 v{vNA}, 0')
if OLATE == 0: F += role_lines('O', o2); o2 = []
NPRE = opt('npre', 999)
NB1 = opt('nb1', 40)
el(F[:NB1]); emit_pos('B')
if OLATE == 2:
    assert NB1 in (2, 8)
    el(role_lines('Y', F[NB1:])); o2 = F[NB1:] + o2
else: el(F[NB1:])
F = []

def dma_x(G):
    out = []
    if G < 2: out += [f'  s_max_u32 s{sVO}, s{sGmin}, {G}', f'  s_mul_i32 s{sVO}, s{sVO}, s{sGS}']
    else: out.append(f'  s_mul_i32 s{sVO}, s{sGS}, {G}')
    out.append(f'  s_add_i32 s{sVO}, s{sVO}, s{sXB}')
    for j in range(4):
        out.append(f'  s_add_u32 m0, s{sM0X}, {G*15360 + j*1024}' if j < 3 else f'  s_add_u32 m0, s{sM0X3}, {G*15360}')
        out.append('  s_nop 0')
        out.append(f'  buffer_load_dwordx4 v{vD[j]}, {RX}, s{sVO} offen{NT} lds')
    return out
def dma_xs(Gs): return sum((dma_x(G) for G in Gs), [])
SPECIAL = [(1, 7), (1, 0), (0, 7), (0, 1), (0, 0)]
def bias_init(tmp, MID, TL):
    out = []; o = out.append
    ninf, tt = tmp, tmp+1
    sp = [x for x in SPECIAL if x[0] in TL]
    o(f'  v_mov_b32 v{ninf}, 0xff800000')
    for i in range(4): o(f'  v_add_u32 v{tt+i}, {i}, v{vCT}')
    for i in range(4): o(f'  v_cmp_gt_u32 s[{sT[2+2*i]}:{sT[3+2*i]}], 7, v{tt+i}')
    for q, (t, jj) in enumerate(sp):
        slot = jj + 2*t
        if slot == 0: o(f'  v_sub_u32 v{tt+4+q}, s{sR0}, v{vRR[t]}')
        else:
            o(f'  s_add_i32 s{sT[0]}, s{sA2}, {slot-1}'); o(f'  v_sub_u32 v{tt+4+q}, s{sT[0]}, v{vRR[t]}')
    for i in range(4): o(f'  v_cndmask_b32 v{MID+i}, v{ninf}, 0, s[{sT[2+2*i]}:{sT[3+2*i]}]')
    for q in range(len(sp)): o(f'  v_cmp_gt_u32 s[{sT[2*q]}:{sT[2*q+1]}], 7, v{tt+4+q}')
    for q, (t, jj) in enumerate(sp):
        for i in range(4): o(f'  v_cndmask_b32 v{SACC[t]+4*jj+i}, v{ninf}, v{MID+i}, s[{sT[2*q]}:{sT[2*q+1]}]')
    return out

tsp()
emit_pos('C')
tsp()
vLN = 107
def n_loads():
    e(f'  v_lshrrev_b32 v{vLN}, 4, v{vL0}')
    e(f'  s_cmp_lt_u32 s2, 72'); e('  s_cbranch_scc0 MK_np1')
    e(f'  s_mul_hi_u32 s{sT[8]}, s2, 0x15555556'); e(f'  s_lshl_b32 s{sT[8]}, s{sT[8]}, 6')
    e(f'  s_mul_i32 s{sT[9]}, s{sW}, {16*384}'); e(f'  s_add_u32 s{sVO}, s{sT[8]}, s{sT[9]}')
    e(f'  v_lshrrev_b32 v{MPK}, 2, v{vLN}'); e(f'  v_mul_u32_u24 v{MPK}, 384, v{MPK}'); e(f'  v_and_b32 v{MPK+1}, 3, v{vLN}'); e(f'  v_lshl_add_u32 v{MPK}, v{MPK+1}, 4, v{MPK}')
    e(f'  s_add_u32 m0, s{sWL}, {WOL}'); e('  s_nop 0')
    e(f'  buffer_load_dwordx4 v{MPK}, {RWO}, s{sVO} offen lds')
    e(f'  s_mul_i32 s{sT[9]}, s{sW4}, 6'); e(f'  s_add_u32 s{sVO}, s{sT[8]}, s{sT[9]}')
    e(f'  s_add_u32 m0, s{sW4}, {WOL + 8192}'); e(f'  s_add_u32 s{sVO}, s{sVO}, {8*16*384}')
    e(f'  buffer_load_dwordx4 v{MPK}, {RWO}, s{sVO} offen lds')
    e('MK_np1:')
    e(f'  s_sub_u32 s{sPROD}, s2, 72'); e(f'  s_lshr_b32 s{sPROD}, s{sPROD}, 31')
    e(f'  s_lshr_b32 s{sPROD}, s{sPROD}, s{sU}')
    e(f'  s_cmp_eq_u32 s{sPROD}, 0'); e('  s_cbranch_scc1 MK_np3')
    e(f'  s_mul_hi_u32 s{sT[8]}, s2, 0x15555556'); e(f'  s_mul_i32 s{sT[9]}, s{sT[8]}, 12'); e(f'  s_sub_u32 s{sT[9]}, s2, s{sT[9]}')
    e(f'  s_cmp_ge_u32 s{sT[9]}, 6'); e(f'  s_cselect_b32 s{sT[5]}, 1, 0'); e(f'  s_mul_i32 s{sVO}, s{sT[5]}, 6'); e(f'  s_sub_u32 s{sT[9]}, s{sT[9]}, s{sVO}')
    e(f'  v_lshrrev_b32 v{MPK+2}, 2, v{vn}'); e(f'  v_and_b32 v{MPK+1}, 3, v{vn}')
    e(f'  v_lshl_add_u32 v{vNB}, v{vg}, 3, v{MPK+2}'); e(f'  v_lshlrev_b32 v{vNB}, 6, v{vNB}'); e(f'  v_lshl_add_u32 v{vNB}, v{MPK+1}, 4, v{vNB}')
    e(f'  s_lshl_b32 s{sT[5]}, s{sT[5]}, 3'); e(f'  s_add_u32 s{sT[5]}, s{sT[5]}, {WOL}'); e(f'  v_add_u32 v{vNB}, s{sT[5]}, v{vNB}')
    e(f'  s_lshr_b32 s{sT[8]}, s{sT[9]}, 1'); e(f'  s_lshl_b32 s{sT[8]}, s{sT[8]}, 6')
    e(f'  s_and_b32 s{sT[9]}, s{sT[9]}, 1'); e(f'  s_lshl_b32 s{sT[9]}, s{sT[9]}, 4'); e(f'  s_add_u32 s{sT[8]}, s{sT[8]}, s{sT[9]}')
    e(f'  v_lshrrev_b32 v{MPK}, 1, v{MPK+2}'); e(f'  v_lshlrev_b32 v{MPK}, 5, v{MPK}')
    e(f'  v_and_b32 v{MPK+2}, 1, v{MPK+2}'); e(f'  v_lshl_add_u32 v{MPK}, v{MPK+2}, 2, v{MPK}')
    e(f'  v_add3_u32 v{MPK}, v{MPK}, v{MPK+1}, s{sT[8]}')
    e(f'  v_mul_u32_u24 v{MPK}, 1152, v{MPK}'); e(f'  v_lshl_add_u32 v{vNA}, v{vg}, 4, v{MPK}')
    e(f'  s_mul_i32 s{sVO}, s{sH}, 9216')
    for kk in range(6):
        e(f'  buffer_load_dwordx4 {V(136+4*kk)}, v{vNA}, {RW}, s{sVO} offen offset:{768+64*kk}')
    e('MK_np3:')
def m_reads(kk):
    rb = 184 + 36*(kk % 2); co = (kk // 2) * 49152
    lo = co if co < 49152*2 else 0
    return ([f'  ds_read_b128 {V(rb+24+4*b)}, v{vMB[kk % 2]} offset:{2048*b}' for b in range(3)] +
            [f'  ds_read_b128 {V(rb+4*a)}, v{vMA[kk % 2]} offset:{2048*a}' for a in range(6)])
def chunk_sync(c, lg):
    wo_, wy_ = after('O', f'W{c}'), after('Y', f'W{c}')
    x = ' lgkmcnt(0)' if lg else ''
    def w(n, prod):
        if c == 2 and prod and ISS['Y'].count('b'):
            return [f'  s_cmp_lg_u32 s{sU}, 0', '  s_cbranch_scc1 MK_c2', f'  s_waitcnt vmcnt({n - ISS["Y"].count("b")})', 'MK_c2:', f'  s_waitcnt vmcnt({n}){x}']
        if c != 1 or n == 63: return [f'  s_waitcnt vmcnt({n}){x}']
        lbl[0] += 1; k = lbl[0]; o = []
        if prod: o += [f'  s_cmp_lg_u32 s{sPROD}, 0', f'  s_cbranch_scc1 CA{k}']
        o += ['  s_cmp_lt_u32 s2, 72', f'  s_cbranch_scc1 CB{k}', f'  s_waitcnt vmcnt({n})', f'CB{k}:']
        if prod: o += [f'  s_waitcnt vmcnt({n+2})', f'CA{k}:', f'  s_waitcnt vmcnt({n+8}){x}']
        else: o += [f'  s_waitcnt vmcnt({n+2}){x}']
        return o
    if c == 2:
        wo_, wy_ = min(wo_, len(ISS['O']) - N_AT['O']), min(wy_, len(ISS['Y']) - N_AT['Y'])
    assert c != 1 or 'b' not in ISS['Y']
    if wo_ == wy_ and c != 2: el(w(wo_, True))
    else: el(role2_lines(w(wo_, False), w(wy_, True)))
    e('  s_barrier')
    tsp()
N_AT = {}
FPG = opt('fpg', 4)
chunk_sync(0, False)
el(m_reads(0))
SYA = opt('sya', 0)
for kk in range(4):
    odd = kk % 2 == 1
    extra = sched_items(str(kk)); ne = len(extra); cnt = 0
    rb = 184 + 36*(kk % 2)
    nx = m_reads(kk+1)
    issued = 0
    for a in range(6):
        if odd and a == SYA:
            chunk_sync(kk // 2 + 1, True)
            for r in vMA + vMB: e(f'  v_add_u32 v{r}, 49152, v{r}')
        if not (odd and a >= SYA): e(f'  s_waitcnt lgkmcnt({5 - a + issued})')
        for b in range(3):
            acc = MACC + 12*a + 4*b
            e(mfma(acc, rb+4*a, rb+24+4*b, None if kk == 0 else acc))
            slots = FPG
            if odd:
                for _ in range(1 if SYA <= 3 else 2):
                    if nx and a >= SYA and (b < 2 or SYA >= 2): e(nx.pop(0)); slots -= 1
            elif nx and b < 2 and a >= 1:
                e(nx.pop(0)); issued += 1; slots -= 1
            cnt += 1
            while extra and (ne - len(extra)) * 18 < cnt * ne: emit_item(extra.pop(0)); slots = 0
            el(F[:max(slots, 0)]); F = F[max(slots, 0):]
    el(nx)
    assert not extra
    if kk == opt('olk', 0) and o2: el(role_lines('O', o2))
    if kk == 0: n_loads(); N_AT.update(O=len(ISS['O']), Y=len(ISS['Y']))
print('leftover F', len(F), file=sys.stderr); el(F); F = []
assert ISS['Y'].count('q') <= 6
e(f'  s_cmp_eq_u32 s{sPROD}, 0'); e('  s_cbranch_scc1 MK_np2')
e('  s_waitcnt lgkmcnt(0)')
for k2 in range(6):
    for hf in range(2):
        e(f'  ds_read_b64_tr_b16 {V(MPK+4*k2+2*hf, 2)}, v{vNB} offset:{(32*k2 + 4*hf)*64}')
e('  s_setprio 3'); e('  s_waitcnt lgkmcnt(0)')
for kk in range(6):
    e(mfma(128, 136+4*kk, MPK+4*kk, None if kk == 0 else 128))
e(f'  s_lshl_b32 s{sVO}, s2, 10'); e(f'  s_lshl_b32 s{sT[8]}, s{sH}, 3'); e(f'  s_add_u32 s{sVO}, s{sVO}, s{sT[8]}')
e('  s_nop 5')
for r in range(2): e(f'  v_cvt_pk_bf16_f32 v{132+r}, v{128+2*r}, v{129+2*r}')
e(f'  buffer_store_dwordx2 v[132:133], v{vL0}, {RWS}, s{sVO} offen sc1')
NY_AT_STORE = len(ISS['Y'])
e('  s_setprio 0')
e('MK_np2:')
r5 = m_reads(5)
el(r5[:5]); late = r5[5:]
extra = sched_items('4'); ne = len(extra); cnt = 0
pend = []; nw = 0; wq = []
BWF = 0
for fi in range(9):
    a3, b = fi // 3, fi % 3
    if fi == 0: e('  s_waitcnt lgkmcnt(5)')
    if fi == 2: e('  s_waitcnt lgkmcnt(0)')
    seq = [(4, 2*a3), (4, 2*a3+1), (5, 2*a3+1), (5, 2*a3)] if fi == 0 or 'nomch' in OPT else [(4, 2*a3), (5, 2*a3), (4, 2*a3+1), (5, 2*a3+1)]
    for q_, (kk, a) in enumerate(seq):
        rb = 184 + 36*(kk % 2)
        if fi == 0 and q_ == 2: e('  s_waitcnt lgkmcnt(2)')
        if True:
            acc = MACC + 12*a + 4*b
            e(mfma(acc, rb+4*a, rb+24+4*b, acc)); cnt += 1
            if late: e(late.pop(0))
            k = 0
            while wq and fi >= BWF and k < 1: e(wq.pop(0)); k += 1
            while pend and pend[0][0] <= cnt and k < 2:
                l = pend.pop(0)[1]
                if 'ds_write' in l and k > 0: wq.append(l); break
                else: e(l); k += 1
            while extra and (ne - len(extra)) * 36 < cnt * ne: emit_item(extra.pop(0))
    o = MPK + 4*(fi % 6)
    for a in range(2):
        acc = MACC + 12*(2*a3 + a) + 4*b
        for i in range(2): pend.append((cnt + 6, f'  v_cvt_pk_bf16_f32 v{o+2*a+i}, v{acc+2*i}, v{acc+2*i+1}'))
    pend.append((cnt + 6, f'  ds_write_b128 v{vMW[0]}, {V(o)} offset:{1024*(2-a3) + 6144*(2-b)}'))
assert not extra
tsp()
el(wq)
for i, (_, l) in enumerate(pend):
    if len(pend) - i == 5: e('  s_nop 3')
    e(l)
e('  s_waitcnt lgkmcnt(0)')
e('  s_barrier')
tsp()
NXY = opt('nxy', 2)
XH = (9, 8, 7, 6, 5)
assert ('Y', 'Z') not in PLAN and ('Y', '4') not in PLAN
y = [f'  s_cmp_lg_u32 s{sPROD}, 0', '  s_cbranch_scc1 MK_np4', '  s_waitcnt vmcnt(0)', 'MK_np4:', '  s_waitcnt vmcnt(1)', '  s_setprio 1']
o_ = sum((ls for _, ls in PLAN.get(('O', 'Z'), [])), []) + dma_xs(XH[:min(NXY, 2)]) + [f'  s_waitcnt vmcnt({4*min(NXY, 2)}) lgkmcnt(0)'] + q_reads() + ['  s_waitcnt lgkmcnt(0)', '  s_barrier'] + dma_xs(XH[2:max(NXY, 2)])
PRE_P1 = (o_, y)
PUB = [f'  s_cmp_eq_u32 s{sPROD}, 0', '  s_cbranch_scc1 MK_np5', '  s_waitcnt vmcnt(0)', '  v_mov_b32 v23, 1', '  s_mov_b64 exec, 1',
       *([f'  buffer_atomic_add v23, off, {RDB}, 0 sc1'] if 'atom' in OPT else
         [f'  s_lshl_b32 s{sVO}, s{sH}, 7', f'  buffer_atomic_add v23, off, {RDB}, s{sVO} sc1']), '  s_mov_b64 exec, -1', '  s_nop 3', 'MK_np5:']

BODY = r'''# ---------------- pipelined body
stream = []; frags = []
def add_frag(reads, gate): frags.append(dict(reads=reads, gate=gate, uses=0)); return len(frags) - 1
def use(fid, fn): frags[fid]['uses'] += 1; stream.append(('mfma', fn, fid))
def mf(text): stream.append(('mfma', (lambda buf: text), None))
def raw(*lines):
    for l in lines: stream.append(('raw', l))
def fill(*lines):
    for l in lines: stream.append(('fill', l))
def flush(): stream.append(('flush',))
def need(fid): stream.append(('need', fid))
def gate(name): stream.append(('gate', name))
def role(r, lines):
    if not lines: return
    if not SINGLE: stream.append(('cond', role_lines(r, lines)))
    elif r == 'Y': stream.append(('plain', lines))
def role2(lo, ly):
    if SINGLE or not lo: role('Y', ly)
    elif not ly: role('O', lo)
    else: stream.append(('cond', role2_lines(lo, ly)))
MID = SACC[1] + 4 if SINGLE else SACC[0] + 8
BAR = '  s_barrier'
SDMA = 'odma' not in OPT       # the single-tile waves load N
def m_read(f):
    addr = (71-f)*1024
    if addr < HALF: return [f'  ds_read_b128 {{d4}}, v{vL0} offset:{addr}']
    return [f'  ds_read_b128 {{d4}}, v{vL1} offset:{addr-HALF}']
def n_addr(f): return NHI + 30720 + 1024*f if f < 30 else ((f-30)*1024 if f < 40 else NHI + (f-40)*1024)
def n_read(f):
    if f >= 70: return []
    a = n_addr(f)
    return [f'  ds_read_b128 {{d4}}, v{vL1} offset:{a-NHI}' if a >= NHI else f'  ds_read_b128 {{d4}}, v{vL0} offset:{a}']
def dma_n(a, b):          # fragments a..b-1 (one address region), four waves
    out = []
    nw_ = 2 if SDMA else 4
    for f0 in range(a, b, nw_):
        lim = (b - 1 - f0) * 1024; src = sW4
        if lim < 1024*(nw_ - 1): out.append(f'  s_min_u32 s{sT[5]}, s{sW4}, {lim}'); src = sT[5]
        out += [f'  s_add_u32 m0, s{src}, {n_addr(f0)}', f'  s_add_u32 s{sVO}, s{src}, {f0*1024}',
                f'  buffer_load_dwordx4 v{vL0}, {RWS}, s{sVO} offen{NSC} lds']
    return out
CHAIN = [(0,0),(0,1),(0,2),(1,0),(1,1),(1,2),(1,3),(1,4),(1,5),(0,3),(0,4),(0,5)] if 'nochain' not in OPT else [(t, k) for k in range(6) for t in range(2)]
CHAIN = [x for x in CHAIN if x[0] in TL]
def proj(B, rd, gate_of, post, hooks):
    for s in range(6):
        for hh in range(2):
            f0 = 12*s + 6*hh
            fid = [add_frag(rd(f0+ks), gate_of(f0+ks)) for ks in range(6)]
            seen = set()
            for t, ks in (CHAIN if f0 or len(TL) == 1 or rd is m_read else [(t, k) for t in (1, 0) for k in range(6)]):
                f = f0 + ks
                if f0 == 0 and rd is n_read: stream.append(('flushto', f'YB{ks}' if t == TL[-1] else 'T1'))
                if ks not in seen:
                    seen.add(ks)
                    if f in hooks: hooks[f](fid[ks])
                acc = ACC + 16*(s % 2) + 8*t + 4*hh
                fx = None if rd(f) else NREG + 4*(f-70)
                use(fid[ks], (lambda buf, acc=acc, t=t, ks=ks, fx=fx: mfma(acc, buf if fx is None else fx, B(t, ks), None if ks == 0 else acc)))
            if hh == 1: stream.append(('flushto', f'post{s-1}'))
            fill(*post(s, hh))
        stream.append(('tag', f'post{s}'))

gate('G0')
role2(PRE_P1[0], PRE_P1[1] if SINGLE else ['  s_waitcnt vmcnt(0)', '  s_setprio 1'])
raw('BODY:' if not SINGLE else 'BODYS:')
BF = bias_init(SACC[1] + 8, MID, TL)
fill(*BF[:30])
def p1_post(s, hh):
    out = []
    for t in (1, 0):
        if t == 0 and s == 5 and hh == 1: out.append('#QP5a')
        if t not in TL: continue
        acc = ACC + 16*(s % 2) + 8*t + 4*hh
        for r in range(4): out.append(f'  v_mul_f32 v{acc+r}, s{sSC}, v{acc+r}')
        for r in range(2): out.append(f'  v_cvt_pk_bf16_f32 v{QP+24*t+4*s+2*hh+r}, v{acc+2*r}, v{acc+2*r+1}')
    return out
proj(lambda t, ks: XQ+24*t+4*ks, m_read, lambda f: 'G0', p1_post,
     {13: lambda fid: fill(*BF[30:35]), 25: lambda fid: fill(*BF[35:39]), 37: lambda fid: fill(*BF[39:44]), 49: lambda fid: fill(*BF[44:48]), 60: lambda fid: (fill(*BF[48:]), stream.append(('tag', 'BIAS'))),
      opt('yb1', 58): lambda fid: role('Y', [BAR]),
      31: lambda fid: (need(fid), role2([BAR], PUB if SINGLE else [])),                                  # B2
      61: lambda fid: (need(fid), role('O', ['  s_waitcnt vmcnt(0)', BAR]))})         # B3
if 'p1flush' in OPT: flush()
stream.append(('tag', 'QP5'))
fill(f'  v_add_u32 v{vL1}, {NHI}, v{vL0}')
for r in range(4): fill(f'  v_mov_b32 v{ONES+r}, 0x3f803f80')
POLL = f'  buffer_load_dword v13, off, {RDB}, 0 sc1' if 'atom' in OPT else f'  buffer_load_dword v13, v14, {RDB}, 0 offen sc1'
PSET = [] if 'atom' in OPT else [f'  v_and_b32 v14, {128 if NCT == 2 else 192}, v{vL0}']
PMODE = opt('pmode', 1)      # 0 early plain poll, 1 late plain poll, 2 none (diagnostic only)
role('Y', ['  s_setprio 0'] + dma_xs(XH[NXY:]) + [BAR] + dma_xs((4, 3, 2)) + 
     ['  s_waitcnt vmcnt(12)', BAR] + dma_xs((1, 0)) + ['  s_waitcnt vmcnt(8)', BAR])        # B2 B3 B4a
for _ in range(opt('idle', 0)): raw('  s_sleep 8')      # diagnostic only
gate('S')
etn = [0, 0]
def sm_fill(t, jj):
    pool = ((ET, ET+4), (ET+8, ET+12, ET+16))[t]
    tmp = pool[etn[t] % len(pool)]; etn[t] += 1
    acc = SACC[t] + 4*jj
    for i in range(4): fill(f'  v_exp_f32 v{tmp+i}, v{acc+i}')
    for i in range(2): fill(f'  v_cvt_pk_bf16_f32 v{PREG[t]+2*jj+i}, v{tmp+2*i}, v{tmp+2*i+1}')
    stream.append(('tag', f'P{t}_{jj}'))
def sum_mfmas(t):
    stream.append(('flushto', f'P{t}_0') if t == 0 else ('flush1',))
    for kt in (3, 2, 1, 0): mf(mfma(SUM[t], ONES, PREG[t]+4*kt, None if kt == 3 else SUM[t]))
LO, HI = (127-30) << 23, (127+30) << 23
def check(t):
    raw(f'  v_subrev_u32 v{RI[1]}, {LO}, v{SUM[t]}')
    raw(f'  s_mov_b32 s{sT[6]}, {HI-LO}')
    raw(f'  v_cmp_gt_u32 s[{sT[2]}:{sT[3]}], s{sT[6]}, v{RI[1]}')
    raw(f'  s_or_b64 s[{sT[2]}:{sT[3]}], s[{sT[2]}:{sT[3]}], s[{sINV[t]}:{sINV[t]+1}]')
    raw(f'  s_cmp_eq_u64 s[{sT[2]}:{sT[3]}], -1')
    raw(f'  s_cbranch_scc0 FB{t}{SFX}')
    raw(f'FBR{t}{SFX}:')
if 'atom' in OPT:
    pollw = [f'  s_mov_b32 s{sT[7]}, 0x40000', 'NPOLL:', '  s_waitcnt vmcnt(0)', f'  v_readfirstlane_b32 s{sT[0]}, v13', f'  s_sub_u32 s{sT[7]}, s{sT[7]}, 1',
             f'  s_cselect_b32 s{sT[0]}, 144, s{sT[0]}', f'  s_cmp_ge_u32 s{sT[0]}, 144', '  s_cbranch_scc1 NPOLLD', POLL, '  s_branch NPOLL', 'NPOLLD:']
else:
    pollw = [f'  s_mov_b32 s{sT[7]}, 0x40000', f'  s_mov_b32 s{sT[0]}, {144 // NCT}', 'NPOLL:', '  s_waitcnt vmcnt(0)', f'  v_cmp_le_u32 s[{sT[2]}:{sT[3]}], s{sT[0]}, v13',
             f'  s_sub_u32 s{sT[7]}, s{sT[7]}, 1', '  s_cbranch_scc1 NPOLLD', f'  s_cmp_eq_u64 s[{sT[2]}:{sT[3]}], -1', '  s_cbranch_scc1 NPOLLD', POLL, '  s_branch NPOLL', 'NPOLLD:']
ODMA = not SDMA
# Y's positions of B5a / B5b / B6 in units of "S slot or PV step index": 0..9 = before the k-th S slot, 10..14 = before the k-th PV step
YP = {opt('y5a', 6): [BAR] + pollw + dma_n(0, 30) + dma_n(30, 40),
      opt('y5b', 9): ['  s_waitcnt vmcnt(0)', BAR] + dma_n(40, 70),
      opt('y6', 11): ['  s_waitcnt vmcnt(0)', BAR]}
assert len(YP) == 3
if ODMA or not SINGLE: YP = {k: [BAR] for k in YP}
else:
    YP = {opt('s5a', 7): pollw + dma_n(30, 40) + [BAR] + dma_n(0, 30), opt('s5b', 8): ['  s_waitcnt vmcnt(0)', BAR] + dma_n(40, 70),
          opt('s6', 9): ['  s_waitcnt vmcnt(0)', BAR], opt('spoll', 5): PSET + [POLL.replace(' sc1', '')]}
    assert len(YP) == 4
if 'yhi' in OPT: YP[opt('yhi', 0)] = YP.get(opt('yhi', 0), []) + ['  s_setprio 1']
O4B = opt('o4b', 6)
for k, slot in enumerate(range(9, -1, -1)):
    if k == 2:
        raw('  s_waitcnt vmcnt(0)', BAR); gate('S2')       # O: B4a ; Y: B4b
    if k == O4B: role('O', [BAR] + (PSET + [POLL.replace(' sc1', '')] if ODMA else []))             # B4b
    if k in YP: role('Y', YP[k])
    if SINGLE and slot < 2:
        if slot == 0: sum_mfmas(1)
        continue
    fid = []
    for s in range(6):
        if slot == 0: base, off = SB0[s % 2], 128*(s//2)
        else: base, off = (vSe, vSo)[s % 2], (slot-1)*ROW + 128*(s//2)
        fid.append(add_frag([f'  ds_read_b128 {{d4}}, v{base} offset:{off}'], 'S' if slot >= 6 else 'S2'))
    for t, s in CHAIN:
        jj = slot - 2*t
        if 0 <= jj < 8:
            if slot == 0 and s == 3: sum_mfmas(1)
            if slot == 9 and s == 0: stream.append(('flushto', 'BIAS'))
            if slot == 9 and s == 5: stream.append(('flushto', 'QP5a'))
            if slot == 7 and s == 5: stream.append(('flushto', 'QP5'))
            acc = SACC[t] + 4*jj
            cin = MID if s == 0 and (t, jj) not in SPECIAL else acc
            use(fid[s], (lambda buf, acc=acc, t=t, s=s, cin=cin: mfma(acc, buf, QP+24*t+4*s, cin)))
    for t in TL:
        jj = slot - 2*t
        if 0 <= jj < 8: sm_fill(t, jj)
    if slot <= opt('prio', 4): stream.append(('prio1',))
check(1)
YC1 = 0
def ycvt(t, ks, _=0):
    return [f'  v_cvt_pk_bf16_f32 v{YB[t][ks]+2*hf+i}, v{YACC[t][2*ks+hf]+2*i}, v{YACC[t][2*ks+hf]+2*i+1}' for hf in range(2) for i in range(2)]
lastf = None
PVO = (3, 4, 2, 1, 0)
def pv_reads(st, ct):
    b_, e_ = ct // 4, ct % 4
    rd = []
    for hf in range(2):
        slot = 2*st + hf
        if slot == 0: base, off = PB0[e_], 128*b_
        else: base, off = vP[e_], (slot-1)*ROW + 128*b_
        rd.append(f'  ds_read_b64_tr_b16 {{d{"lo" if hf == 0 else "hi"}}}, v{base} offset:{off}')
    return rd
for k, st in enumerate(PVO):
    if k == 1:
        if not SINGLE: sum_mfmas(0)
        else: fill(f'  v_rcp_f32 v{RI[1]}, v{SUM[1]}')
    if k == 2: need(lastf); role('O', [BAR] + (pollw + dma_n(30, 40) + dma_n(0, 30) if ODMA else []))     # B5a
    if 10 + k in YP: role('Y', YP[10 + k])
    if SINGLE and k == 4:
        gate('P4a'); continue
    if k == 0: stream.append(('flushto', 'P0_6'))
    for ct in range(12):
        tl = [t for t in TL if 0 <= st - t < 4]
        fid = add_frag(pv_reads(st, ct), 'S2'); lastf = fid
        if k == 4 and ct == opt('o5b', 6):
            stream.append(('needall', fid + 11 - ct)); role('O', ['  s_waitcnt vmcnt(0)', BAR] + dma_n(40, 70) if ODMA else [BAR]); gate('P4a')         # B5b: every X read of this wave has landed
        for t in tl:
            acc = YACC[t][ct]
            use(fid, (lambda buf, acc=acc, t=t, st=st, k=k: mfma(acc, buf, PREG[t]+4*(st-t), None if k == 0 else acc)))
        if k == 1 and not SINGLE and ct == 2:
            check(0)
            for t in TL: fill(f'  v_rcp_f32 v{RI[t]}, v{SUM[t]}')
        if k == 3 and ct % 2 and ct < 12 - YC1:
            fill(*ycvt(1, ct // 2, 1))
            if SINGLE: stream.append(('tag', f'YB{ct // 2}'))
        if k == 4 and ct % 2: fill(*ycvt(0, ct // 2, 0)); stream.append(('tag', f'YB{ct // 2}'))
    if k == 3: stream.append(('tag', 'T1'))
NLD = [f'  s_mov_b32 s{sVO}, {70*1024}'] + [f'  buffer_load_dwordx4 {V(NREG+4*i)}, v{vL0}, {RWS}, s{sVO} offen offset:{1024*i} sc1' for i in range(2)]
if 15 in YP: role('Y', YP[15])
def p4_post(s, hh):
    out = []
    for t in TL:
        acc = ACC + 16*(s % 2) + 8*t + 4*hh
        o = OUTR + 8*(s % 2) + 4*t
        for r in range(4): out.append(f'  v_mul_f32 v{acc+r}, v{acc+r}, v{RI[t]}')
        for r in range(2): out.append(f'  v_cvt_pk_bf16_f32 v{o+2*hh+r}, v{acc+2*r}, v{acc+2*r+1}')
        if hh: out.append(f'  buffer_store_dwordx4 {V(o)}, v{vO[t]}, {RO}, 0 offen offset:{64*s}{NTO}')
    return out
proj(lambda t, ks: YB[t][ks], n_read, lambda f: 'P4a' if f < 40 else 'P4b', p4_post,
     {12: lambda fid: raw(*NLD),
      opt('o6', 24): lambda fid: (role('O', (['  s_waitcnt vmcnt(%d)' % (2 if 'pairst' in OPT else 4)] if ODMA else []) + [BAR]), gate('P4b')),                 # B6
      60: lambda fid: raw(f'  s_waitcnt vmcnt({4*len(TL)})'),
      })
flush()

# ---------------- emitter: read scheduling, gap filling, hazard padding
def regs_of(tok):
    m = re.fullmatch(r'v\[(\d+):(\d+)\]', tok)
    if m: return list(range(int(m.group(1)), int(m.group(2)) + 1))
    m = re.fullmatch(r'-?v(\d+)', tok)
    return [int(m.group(1))] if m else []
def parse(line):
    p = line.strip().split(None, 1)
    op = p[0]; args = [a.strip().split()[0] for a in p[1].split(',')] if len(p) > 1 else []
    return op, args
clock = [0]
mf_w = {}; va_w = {}; tr_w = {}; mf_c = {}; sg_w = {}
def hazard(line):
    """wait states still required before `line` may issue"""
    op, args = parse(line); need_ = 0
    allr = [r for a in args for r in regs_of(a)]
    if op.startswith('v_mfma'):
        for r in [r for a in args[1:] for r in regs_of(a)]:
            if r in va_w: need_ = max(need_, 2 - (clock[0] - va_w[r] - 1))
        for r in regs_of(args[1]) + regs_of(args[2]):
            if r in mf_w: need_ = max(need_, 8 - (clock[0] - mf_w[r] - 1))
    elif op.startswith('v_') or op.startswith('buffer_') or op.startswith('ds_'):
        for r in allr:
            if r in mf_w: need_ = max(need_, 8 - (clock[0] - mf_w[r] - 1))
        if op.startswith('v_'):
            for r in regs_of(args[0]):
                if r in mf_c: need_ = max(need_, 3 - (clock[0] - mf_c[r] - 1))
            for r in [r for a in args[1:] for r in regs_of(a)]:
                if r in tr_w: need_ = max(need_, 1 - (clock[0] - tr_w[r] - 1))
            for a in args[1:]:
                if a in sg_w: need_ = max(need_, 2 - (clock[0] - sg_w[a] - 1))
    return need_
def emit(line):
    if line.endswith(':'):
        e(line); return
    n = hazard(line)
    if n > 0:
        e(f'  s_nop {n-1}'); clock[0] += n
    op, args = parse(line)
    e(line)
    if op.startswith('v_mfma'):
        for r in regs_of(args[0]): mf_w[r] = clock[0]
        for r in regs_of(args[3]): mf_c[r] = clock[0]
    elif op.startswith('v_'):
        if args[0].startswith('s'): sg_w[args[0]] = clock[0]
        for r in regs_of(args[0]):
            va_w[r] = clock[0]; tr_w.pop(r, None)
            if op in ('v_exp_f32', 'v_rcp_f32'): tr_w[r] = clock[0]
    if op == 's_nop': clock[0] += int(args[0])
    clock[0] += 1

gates = set(); nxt = 0; done_uses = [0]*len(frags)
ops = []; landed = -1; half = [None]
fq = []
def buf_of(f): return ABUF + 4*(f % NB)
def issue_one():
    global nxt
    while True:
        if half[0] is not None:
            emit(half[0]); ops.append(nxt); half[0] = None; nxt += 1; return True
        if nxt >= len(frags): return False
        fr = frags[nxt]
        if fr['gate'] not in gates: return False
        if nxt >= NB and done_uses[nxt-NB] < frags[nxt-NB]['uses']: return False
        if not fr['reads']:
            nxt += 1; continue
        if len(ops) + len(fr['reads']) > (13 if TSM else 15): return False
        b = buf_of(nxt)
        rs = [r.format(d4=V(b), dlo=V(b, 2), dhi=V(b+2, 2)) for r in fr['reads']]
        emit(rs[0]); ops.append(nxt)
        if len(rs) == 2: half[0] = rs[1]
        else: nxt += 1
        return True
def wait_for(f, pair=True):
    global landed, ops
    if f is None or f <= landed: return
    while nxt <= f:
        n0 = nxt
        if not issue_one() and nxt == n0: raise RuntimeError(f'cannot issue frag {nxt}')
    if any(o <= f for o in ops):
        for _ in range(GROUP - 1):
            if pair and f + 1 < nxt and sum(1 for o in ops if o > f + 1) >= (PAIRMIN if len(frags[f]['reads']) == 1 else PAIRMIN2): f = f + 1
        n = sum(1 for o in ops if o > f)
        emit(f'  s_waitcnt lgkmcnt({n})')
        ops = [o for o in ops if o > f]
    landed = f
def sregs(tok):
    m = re.fullmatch(r's\[(\d+):(\d+)\]', tok)
    if m: return [-1 - r for r in range(int(m.group(1)), int(m.group(2)) + 1)]
    m = re.fullmatch(r's(\d+)', tok)
    return [-1 - int(m.group(1))] if m else []
def wr(l):
    op, args = parse(l)
    return set() if op.startswith('buffer_') else set(regs_of(args[0]) + sregs(args[0]))
def rdset(l):
    op, args = parse(l)
    return set(r for a in (args if op.startswith('buffer_') else args[1:]) for r in regs_of(a) + sregs(a))
def pick(pred):
    """first filler satisfying pred that does not depend on an earlier pending filler (window limited)"""
    W, R = set(), set()
    for i, l in enumerate(fq[:WINDOW]):
        if l.startswith('#'): continue
        if pred(l) and not (rdset(l) & W) and not (wr(l) & (W | R)) and hazard(l) <= 0: return i
        W |= wr(l); R |= rdset(l)
    return None
def is2(l): return 'v_exp' in l or 'v_rcp' in l
def isst(l): return 'buffer_store' in l
def gap(si, ent):
    while fq and fq[0].startswith('#'): fq.pop(0)
    cur = ent[2] if ent[2] is not None else landed
    nf = STREAM_NEXT.get(si)
    wnext = nf is not None and nf > landed                     # a wait will precede the next MFMA
    ahead = nxt - cur
    i = pick(isst)
    if i is not None and half[0] is None and ahead >= MINAHEAD:
        emit(fq.pop(i))
        i = pick(lambda l: not is2(l) and not isst(l))
        if i is not None: emit(fq.pop(i))
        return
    slots = 1 if wnext else 2
    nexp = sum(1 for l in fq if is2(l))
    # an exp takes a whole gap: while the ring is deep enough leave this gap to it
    if not wnext and half[0] is None and ahead >= EXPAHEAD:
        ready = [l for l in fq[:CVTWIN] if not l.startswith('#')]
        i = pick(is2) if any(is2(l) for l in ready) else None
        if i is not None:
            emit(fq.pop(i)); return
    if issue_one(): slots -= 1
    if (half[0] is not None or slots > 0 and (nexp or not fq or ahead < 6)) and issue_one(): slots -= 1
    if nexp > BACKLOG: slots = max(slots, 1 if pick(lambda l: not is2(l) and not isst(l)) is not None else 2)
    while slots > 0:
        i = pick(is2) if slots >= 2 else None
        if i is not None:
            emit(fq.pop(i)); slots -= 2; continue
        i = pick(lambda l: not is2(l) and not isst(l))
        if i is None: break
        emit(fq.pop(i)); slots -= 1
CVTWIN = opt('cvtwin', 6); WINDOW = opt('window', 16); MINAHEAD = opt('minahead', 5); EXPAHEAD = opt('expahead', 7)
nmf = [0]
BACKLOG = opt('backlog', 6); PAIRMIN = opt('pairmin', 4); PAIRMIN2 = opt('pairmin2', 8); GROUP = opt('group', 4)
STREAM_NEXT = {}
mi = [i for i, x in enumerate(stream) if x[0] == 'mfma']
for a_, b_ in zip(mi, mi[1:]): STREAM_NEXT[a_] = stream[b_][2]
for si in range(len(stream) - 1):
    a_, b_ = stream[si], stream[si+1]
    if a_[0] == 'cond' and b_[0] == 'cond' and a_[1][1:-1] == [BAR] and b_[1][1:-1] == [BAR] and a_[1][0].split()[0] != b_[1][0].split()[0]:
        stream[si] = ('raw', BAR); stream[si+1] = ('tag', 'nil')
for si, ent in enumerate(stream):
    k = ent[0]
    if k == 'raw': emit(ent[1])
    elif k == 'fill': fq.append(ent[1])
    elif k == 'flush':
        for l in fq:
            if not l.startswith('#'): emit(l)
        fq = []
    elif k == 'flush1':          # only the exp / pack work of tile 1
        own = set(range(ET+8, ET+20))
        keep = []
        for l in fq:
            if not l.startswith('#') and ((wr(l) | rdset(l)) & own or not ('v_exp' in l or 'v_cvt' in l)): emit(l)
            else: keep.append(l)
        fq = keep
    elif k == 'prio1':           # tile 1 work first from here on
        own = set(range(ET+8, ET+20))
        sm = lambda l: 'v_exp' in l or 'v_cvt' in l
        if all(l.startswith('#') or sm(l) for l in fq):
            fq = [l for l in fq if not l.startswith('#') and (wr(l) | rdset(l)) & own] + [l for l in fq if l.startswith('#') or not (wr(l) | rdset(l)) & own]
    elif k == 'tag': fq.append('#' + ent[1])
    elif k == 'flushto':
        if '#' + ent[1] in fq:
            i = fq.index('#' + ent[1])
            for l in fq[:i]:
                if not l.startswith('#'): emit(l)
            fq = fq[i+1:]
    elif k == 'gate':
        gates.add(ent[1])
        while issue_one(): pass
    elif k in ('need', 'needall'): wait_for(ent[1])
    elif k == 'plain': el(ent[1])
    elif k == 'cond':
        emit(ent[1][0]); el(ent[1][1:])          # only the branch itself counts as distance
    elif k == 'mfma':
        wait_for(ent[2])
        if nmf[0] in TSM and not SINGLE: e(ts_line())
        nmf[0] += 1
        emit(ent[1](buf_of(ent[2]) if ent[2] is not None else None))
        if ent[2] is not None: done_uses[ent[2]] += 1
        gap(si, ent)
'''
e(f'  s_cmp_eq_u32 s{sU}, 0'); e('  s_cbranch_scc1 MK_single')
SINGLE, TL, SFX = False, (1, 0), ''
exec(BODY)
e('MK_fin:')
if TS:
    e('  s_waitcnt vmcnt(0)')
    e(ts_line()); e('  s_memrealtime s[98:99]')
    e('  s_waitcnt lgkmcnt(0)')
    e(f'  s_lshl_b32 s{sT[0]}, s2, 3'); e(f'  s_add_u32 s{sT[0]}, s{sT[0]}, s{sW}'); e(f'  s_lshl_b32 s{sT[0]}, s{sT[0]}, 6')
    e(f'  s_add_u32 s{sT[0]}, s{sT[0]}, 0x100000')
    e('  v_mov_b32 v1, 0')
    for i in range(nts[0]):
        if i == 0: e(f'  v_mov_b32 v2, s{sTS}')
        else:
            e(f'  s_sub_u32 s{sT[1]}, s{sTS+2*i}, s{sTS}'); e(f'  v_mov_b32 v2, s{sT[1]}')
        e(f'  buffer_store_dword v2, v1, s[20:23], s{sT[0]} offen offset:{4*i}')
    e('  v_mov_b32 v2, s96'); e('  v_mov_b32 v3, s98')
    e(f'  buffer_store_dwordx2 v[2:3], v1, s[20:23], s{sT[0]} offen offset:56')
    print('timestamps', nts[0]); assert nts[0] <= 12
e('MK_done:')
e('  s_endpgm')
e('MK_single:')
SINGLE, TL, SFX = True, (1,), 's'
exec(BODY)
e('  s_branch MK_fin' if TS else '  s_endpgm')
for t, sfx in ((0, ''), (1, ''), (1, 's')):
    R = SACC[t]; vm, vt = RI[0], RI[1]
    e(f'FB{t}{sfx}:')
    e('  s_nop 7')
    e(f'  v_max3_f32 v{vm}, v{R}, v{R+1}, v{R+2}')
    for k in range(3, 31, 2): e(f'  v_max3_f32 v{vm}, v{vm}, v{R+k}, v{R+k+1}')
    e(f'  s_mov_b32 s{sT[6]}, 0xff7fffff')
    e(f'  v_max3_f32 v{vm}, v{vm}, v{R+31}, s{sT[6]}')
    for sw in ('v_permlane32_swap_b32', 'v_permlane16_swap_b32'):
        e(f'  v_mov_b32 v{vt}, v{vm}'); e('  s_nop 1'); e(f'  {sw} v{vm}, v{vt}'); e('  s_nop 1')
        e(f'  v_max_f32 v{vm}, v{vm}, v{vt}')
    for k in range(32): e(f'  v_sub_f32 v{R+k}, v{R+k}, v{vm}')
    for k in range(32): e(f'  v_exp_f32 v{R+k}, v{R+k}')
    e('  s_nop 0')
    for k in range(16): e(f'  v_cvt_pk_bf16_f32 v{PREG[t]+k}, v{R+2*k}, v{R+2*k+1}')
    e('  s_nop 1')
    for kt in range(4): e(mfma(SUM[t], ONES, PREG[t]+4*kt, None if kt == 0 else SUM[t]))
    if t == 0:
        for c0 in (0, 6):
            e('  s_waitcnt lgkmcnt(0)')
            for ct in range(c0, c0 + 6):
                b = R + 4*(ct - c0)
                for r in pv_reads(PVO[0], ct): e(r.format(dlo=V(b, 2), dhi=V(b+2, 2)))
            e('  s_waitcnt lgkmcnt(0)')
            for ct in range(c0, c0 + 6): e(mfma(YACC[0][ct], R + 4*(ct - c0), PREG[0]+4*PVO[0], None))
    e('  s_nop 7')
    e(f'  s_branch FBR{t}{sfx}')
e('MK_end:')
e('.section .rodata,"a"')
e('.p2align 6'); e(f'.amdhsa_kernel {KN}')
e('  .amdhsa_next_free_vgpr 256'); e('  .amdhsa_next_free_sgpr 102'); e('  .amdhsa_accum_offset 256')
e('  .amdhsa_group_segment_fixed_size 0'); e('  .amdhsa_kernarg_size 48'); e('  .amdhsa_user_sgpr_count 2')
e('  .amdhsa_user_sgpr_kernarg_segment_ptr 1'); e('  .amdhsa_system_sgpr_workgroup_id_x 1')
e('.end_amdhsa_kernel')
if 'drop' in OPT:
    kinds = OPT['drop'].split(',')
    i0 = next(i for i, l in enumerate(L) if 'MK_np4:' in l)
    out = []; n = 0
    for i, l in enumerate(L):
        body = i > i0
        if 'mM' in kinds and not body and 'v_mfma' in l: l = '  s_nop 3'
        if 'exp' in kinds and 'v_exp' in l: l = l.replace('v_exp_f32', 'v_mov_b32')
        if 'lds' in kinds and body and 'ds_read_b128' in l:
            l = re.sub(r'ds_read_b128 v\[(\d+):\d+\]', lambda m: f'ds_read_b32 v{m.group(1)}', l)
        if 'tr' in kinds and body and 'ds_read_b64_tr' in l:
            l = re.sub(r'ds_read_b64_tr_b16 v\[(\d+):\d+\], v\d+', lambda m: f'ds_read_b32 v{m.group(1)}, v{vL0}', l)
        if 'mfma' in kinds and body and 'v_mfma' in l:
            n += 1
            if n % 2: l = '  s_nop 3'
        if 'nslab' in kinds and RWO in l and 'buffer_load' in l: l = '  s_nop 0'
        if 'nwv' in kinds and f'v{vNA}, {RW}' in l: l = '  s_nop 0'
        if 'ncomp' in kinds and 's_cbranch_scc1 MK_np2' in l: l = '  s_branch MK_np2'
        if 'st' in kinds and 'buffer_store_dwordx4' in l: l = '  s_nop 0'
        out.append(l)
    L = out
open(OUTF, 'w').write('\n'.join(L) + '\n')
```

```python
import sys, struct, math, re
OPT = dict(a.split('=') if '=' in a else (a, '1') for a in sys.argv[1:])
OUTF = OPT.get('out', 'standalone__neighborhood_nat__vision.s')
TS = 'ts' in OPT
TSM = [int(x) for x in OPT['tsm'].split(',')] if 'tsm' in OPT else []
TSP = 'tsp' in OPT
def opt(k, d): return int(OPT.get(k, d))
L = []
def e(s): L.append(s)
def el(ls):
    for l in ls: L.append(l)

X_BYTES = 19267584
WS_BYTES = 268435456
XB = 10240
ROW = 7680
HALF = 36864
NHI = XB + 12*ROW
WOL = 147456
SCALE = struct.unpack('<I', struct.pack('<f', (192 ** -0.5) * math.log2(math.e)))[0]
NT = ' nt' if 'nt' in OPT else ''
NCT = 2
NSC = '' if 'nplain' in OPT else ' sc1'
NTO = ' ' + OPT.get('st', 'nt+sc1').replace('+', ' ')
KN = 'standalone__neighborhood_nat__vision_kernel'

hdr = open('standalone__neighborhood_nat__vision.s.ref').read().split('\n')
for ln in hdr:
    if ln.startswith('; @launch'): break
    e(ln)
e('; @launch grid=(256,1,1) block=(512,1,1) lds=163840')
e('.amdgcn_target "amdgcn-amd-amdhsa--gfx950"')
e('.text')

def srd(d, b, n):
    return [f'  s_mov_b32 s{d}, s{b}', f'  s_and_b32 s{d+1}, s{b+1}, 0xffff', f'  s_mov_b32 s{d+2}, {n}', f'  s_mov_b32 s{d+3}, 0x00020000']
def V(a, n=4): return f'v[{a}:{a+n-1}]'
def mfma(d, a, b, c):
    cs = '0' if c is None else V(c)
    return f'  v_mfma_f32_16x16x32_bf16 {V(d)}, {V(a)}, {V(b)}, {cs}'

vL0, vL1 = 1, 2
vO = (5, 6)
vSe, vSo = 7, 8
vP = (9, 10, 11, 12)
vD = (13, 14, 3, 4)
PB0 = (15, 16, 17, 18)
vCT = 19
SB0 = (20, 0)
vRR = (21, 22)
RI = (22, 23)
SACC = (24, 56); QP = 88; XQ = 136; ACC = 184
ABUF = 216; NB = 10
PREG = (136, 152)
YB = ([140, 144, 148, 152, 36, 40], [156, 160, 164, 24, 28, 32])
YACC = ([56+4*i for i in range(8)] + [168+4*i for i in range(4)], [88+4*i for i in range(12)])
SUM = (184, 188); ONES = 192; ET = 196
OUTR = 88; NREG = 104
MACC = 24; MPK = 104
vWA = 96; vMA, vMB, vMW = (97, 98), (99, 100), (101, 102, 103)
vn, vg, tA, tB, tC, tD = 128, 129, 130, 131, 132, 133
vNB, vNA = 134, 135
QA = (134, 135); vQR = 23
CH = (0, 49152, 98304)
SO = 73728
sQR = (84, 85, 86, 87); sST = 101
sW, sU, sH, sPR, sPC, sKR, sKC, sXB, sGS, sGmin = range(24, 34)
sA2, sR0, sD0, sTR, sM0X, sM0X3, sW4, sWL = range(34, 42)
sINV = (42, 44)
sT = list(range(46, 60))
sMR, sAR, sMC, sAC = sT[10], sT[11], sT[12], sT[13]
sTS = 60
sPROD, sWB, sSC, sVO = 3, 92, 93, 100
RX, RO, RWS, RW, RWO, RDB = 's[12:15]', 's[16:19]', 's[20:23]', 's[88:91]', 's[4:7]', 's[8:11]'
MSK = f's[{sT[6]}:{sT[7]}]'
assert sT[6] % 2 == 0 and sT[2] % 2 == 0

nts = [0]
def ts_line():
    s = f'  s_memtime s[{sTS+2*nts[0]}:{sTS+2*nts[0]+1}]'; nts[0] += 1; return s
def tsp():
    if TSP: e(ts_line())

e(f'.globl {KN}'); e('.p2align 8'); e(f'.type {KN},@function'); e(f'{KN}:')
e('  s_cmp_ge_u32 s2, 256'); e('  s_cbranch_scc1 MK_done')
if TS: e(ts_line()); e('  s_memrealtime s[96:97]')
e('  s_load_dwordx8 s[4:11], s[0:1], 0')
e('  s_load_dwordx4 s[84:87], s[0:1], 32')
if 'nopf' not in OPT:
    e('  s_getpc_b64 s[12:13]'); e('MK_pc:')
    e('  s_and_b32 s13, s13, 0xffff'); e('  s_mov_b32 s14, MK_end-MK_pc'); e('  s_mov_b32 s15, 0x00020000')
    PFS = opt('pfs', 5)
    e(f'  v_lshlrev_b32 v23, {7 + PFS}, v0'); e(f'  s_bfe_u32 s3, s2, {(PFS << 16) | 3}'); e('  s_lshl_b32 s3, s3, 7')
    e('  buffer_load_dword v255, v23, s[12:15], s3 offen')
e(f'  v_lshrrev_b32 v{tA}, 6, v0')
e('  v_and_b32 v0, 63, v0')
e(f'  v_readfirstlane_b32 s{sW}, v{tA}')
e(f'  v_and_b32 v{vn}, 15, v0'); e(f'  v_lshrrev_b32 v{vg}, 4, v0')
e(f'  v_lshrrev_b32 v{tA}, 5, v0'); e(f'  v_bfe_u32 v{tB}, v0, 3, 2'); e(f'  v_lshl_add_u32 v{tA}, v{tA}, 3, v{tB}')
e(f'  v_mul_u32_u24 v{tA}, 1152, v{tA}')
e(f'  s_and_b32 s{sH}, s{sW}, 1')
e(f'  s_lshl_b32 s{sT[0]}, s{sH}, 2')
e(f'  v_add_u32 v{tB}, s{sT[0]}, v{vg}'); e(f'  v_and_b32 v{tC}, 7, v0'); e(f'  v_xor_b32 v{tB}, v{tB}, v{tC}')
e(f'  v_lshl_add_u32 v{vWA}, v{tB}, 4, v{tA}')
e(f'  s_lshr_b32 s{sT[0]}, s{sW}, 2'); e(f'  s_lshl_b32 s{sT[0]}, s{sT[0]}, 5')
e(f'  s_lshl_b32 s{sT[1]}, s{sH}, 4'); e(f'  s_add_u32 s{sT[0]}, s{sT[0]}, s{sT[1]}')
e(f'  s_and_b32 s{sT[1]}, s{sW}, 2'); e(f'  s_lshl_b32 s{sT[1]}, s{sT[1]}, 1'); e(f'  s_add_u32 s{sT[0]}, s{sT[0]}, s{sT[1]}')
e(f'  s_mul_i32 s{sWB}, s{sT[0]}, 1152')
e(f'  s_lshl_b32 s{sWL}, s{sW}, 10')
e(f'  s_cmp_lt_u32 s{sW}, 4'); e('  s_cselect_b64 vcc, -1, 0')
EARLY_AT = len(L)
e(f'  s_bfe_u32 s{sPR}, s2, 0x10002')
e(f'  s_bfe_u32 s{sPC}, s2, 0x10001')
e(f'  s_and_b32 s{sKR}, s2, 1'); e(f'  s_lshl_b32 s{sKR}, s{sKR}, 2')
e(f'  s_lshr_b32 s{sT[0]}, s2, 6'); e(f'  s_add_u32 s{sKR}, s{sKR}, s{sT[0]}')
e(f'  s_bfe_u32 s{sKC}, s2, 0x30003')
e(f'  s_mul_i32 s{sTR}, s{sKR}, 14'); e(f'  s_add_i32 s{sTR}, s{sTR}, -6'); e(f'  s_max_i32 s{sKR}, s{sTR}, -4')
e(f'  s_mul_i32 s{sKC}, s{sKC}, 14'); e(f'  s_add_i32 s{sKC}, s{sKC}, -6')
e(f'  s_lshr_b32 s{sU}, s{sW}, 1'); e(f'  s_add_u32 s{sU}, s{sU}, 2'); e(f'  s_and_b32 s{sU}, s{sU}, 3')
e(f'  s_sub_u32 s{sMR}, 0, s{sPR}'); e(f'  s_mul_i32 s{sAR}, s{sPR}, 224')
e(f'  s_sub_u32 s{sMC}, 0, s{sPC}'); e(f'  s_mul_i32 s{sAC}, s{sPC}, 224')
e(f'  v_and_b32 v{tA}, 7, v{vn}')
e(f'  s_mul_i32 s{sT[0]}, s{sH}, 7'); e(f'  s_add_i32 s{sT[0]}, s{sT[0]}, s{sKC}')
e(f'  v_cmp_lt_u32 s[{sT[2]}:{sT[3]}], 6, v{tA}')
e(f'  v_add_u32 v{tA}, s{sT[0]}, v{tA}')
e(f'  v_max_i32 v{vCT}, 0, v{tA}')
e(f'  v_add3_u32 v{tA}, v{tA}, v{vCT}, 6')
e(f'  v_xor_b32 v{tA}, s{sMC}, v{tA}'); e(f'  v_add_u32 v{tA}, s{sAC}, v{tA}')
e(f'  v_subrev_u32 v{vCT}, s{sKC}, v{vCT}')
e(f'  v_mul_u32_u24 v{tA}, 384, v{tA}'); e(f'  v_lshl_add_u32 v{tA}, v{vg}, 4, v{tA}')
e(f'  s_lshl_b32 s{sT[0]}, s{sU}, 2'); e(f'  s_add_i32 s{sT[0]}, s{sT[0]}, -2')
e(f'  s_mov_b32 s{sT[1]}, 86016')
e(f'  v_lshrrev_b32 v{tB}, 3, v{vn}'); e(f'  v_add_u32 v{tB}, s{sT[0]}, v{tB}')
e(f'  v_mov_b32 v{tC}, 0x80000000')
for t in range(2):
    if t: e(f'  v_add_u32 v{tB}, 2, v{tB}')
    e(f'  v_cmp_gt_i32 s[{sINV[t]}:{sINV[t]+1}], 0, v{tB}')
    e(f'  v_add_u32 v{vO[t]}, s{sTR}, v{tB}')
    e(f'  v_max_i32 v{vRR[t]}, 0, v{vO[t]}')
    e(f'  v_add3_u32 v{vO[t]}, v{vO[t]}, v{vRR[t]}, 6')
    e(f'  s_or_b64 s[{sINV[t]}:{sINV[t]+1}], s[{sINV[t]}:{sINV[t]+1}], s[{sT[2]}:{sT[3]}]')
    e(f'  v_xor_b32 v{vO[t]}, s{sMR}, v{vO[t]}'); e(f'  v_add_u32 v{vO[t]}, s{sAR}, v{vO[t]}')
    e(f'  v_subrev_u32 v{vRR[t]}, s{sKR}, v{vRR[t]}')
    e(f'  v_mad_u32_u24 v{vO[t]}, v{vO[t]}, s{sT[1]}, v{tA}')
    e(f'  v_cndmask_b32 v{vRR[t]}, v{vRR[t]}, v{tC}, s[{sINV[t]}:{sINV[t]+1}]')
    e(f'  v_cndmask_b32 v{vO[t]}, v{vO[t]}, v{tC}, s[{sINV[t]}:{sINV[t]+1}]')

e('  s_waitcnt lgkmcnt(0)')
tsp()
el(srd(88, 6, 192*576*2))
if 'notlb' not in OPT:
    e(f'  s_cmp_lg_u32 s{sW}, 5'); e('  s_cbranch_scc1 MK_ntlb')
    e(f'  s_max_i32 s{sT[0]}, s{sTR}, 0'); e(f'  s_lshl_b32 s{sT[0]}, s{sT[0]}, 1'); e(f'  s_sub_u32 s{sT[1]}, 184, s{sT[0]}')
    e(f'  s_cmp_eq_u32 s{sPR}, 0'); e(f'  s_cselect_b32 s{sT[0]}, s{sT[0]}, s{sT[1]}'); e(f'  s_mul_i32 s{sT[0]}, s{sT[0]}, 86016')
    for k in range(3):
        e(f'  s_load_dword s94, s[4:5], s{sT[0]}'); e(f'  s_load_dword s95, s[10:11], s{sT[0]}')
        if k < 2: e(f'  s_add_u32 s{sT[0]}, s{sT[0]}, {20*86016 - 64}')
    e(f'  s_load_dword s94, s[84:85], 128'); e(f'  s_load_dword s95, s[86:87], 0x20000')
    e('MK_ntlb:')

def w_pieces(c, partner=0):
    return [[f'  s_add_i32 m0, s{sWL}, {CH[c] + mat*24576 + j*8192 + partner*4096}',
             f'  s_add_i32 s{sVO}, s{sWB}, {(j*64 + partner*32)*1152 + mat*384 + c*128}',
             f'  buffer_load_dwordx4 v{vWA}, {RW}, s{sVO} offen lds'] for mat in range(2) for j in range(3)]
def q_loads():
    return [f'  buffer_load_dwordx4 {V(XQ+24*t+4*s_)}, v{vO[t]}, {RX}, 0 offen offset:{64*s_}{NT}' for t in (1, 0) for s_ in range(6)]
def q_stage():
    return [[f'  s_add_u32 m0, s{sST}, {(1-t)*24576 + (3*qr + l)*1024 - 128*l}', '  s_nop 0',
             f'  buffer_load_dwordx4 v{QA[qr]}, {RX}, s{sQR[2*t+qr]} offen offset:{128*l}{NT} lds'] for t in (1, 0) for qr in range(2) for l in range(3)]
def q_reads():
    return ([f'  v_xor_b32 v{tA}, 64, v{vQR}'] +
            [f'  ds_read_b128 {V(XQ+24*t+4*s_)}, v{(vQR, tA)[s_ % 2]} offset:{(1-t)*24576 + 1024*(s_//2)}' for t in range(2) for s_ in range(6)])
SCH = {'O': OPT.get('so', 'A:W0+V0,0:W2+V2,4:q6,Z:q6'), 'Y': OPT.get('sy', 'C:W1+V1,1:q4,2:q4,3:q4')}
PLAN = {}; ISS = {'O': [], 'Y': []}
for r_, sp in SCH.items():
    qi = 0
    for part in sp.split(','):
        pos, items = part.split(':')
        for it in items.split('+'):
            lst = PLAN.setdefault((r_, pos), [])
            if it[0] == 'W': lst += [(f'W{it[1]}', p) for p in w_pieces(int(it[1]))]
            elif it[0] == 'V': lst += [(f'W{it[1]}', p) for p in w_pieces(int(it[1]), 1 if r_ == 'O' else -1)]
            elif it in 'pr':
                assert pos == 'A'
                lst.append(('t', [f'  v_min_u32 v253, 2, v{vg}', f'  v_mad_u32_u24 v253, v253, s{sT[8]}, v{vO[1 if it == "p" else 0]}',
                                  f'  buffer_load_dword v{252 if it == "p" else 251}, v253, {RX}, 0 offen']))
            else:
                for _ in range(int(it[1:])):
                    if r_ == 'Y' and qi >= 6: lst.append(('b', [f'  s_cmp_eq_u32 s{sU}, 0', f'  s_cbranch_scc1 QB{qi}', q_loads()[qi], f'QB{qi}:']))
                    elif r_ == 'O': lst.append(('q', q_stage()[qi])); assert pos in ('34Z' if qi < 6 else 'Z') and opt('sya', 0) == 0
                    else: lst.append(('q', [q_loads()[qi]]))
                    qi += 1
    assert qi == 12
lbl = [0]
def role_lines(r_, lines):
    lbl[0] += 1
    return [f'  s_cbranch_vcc{"z" if r_ == "O" else "nz"} SL{lbl[0]}'] + list(lines) + [f'SL{lbl[0]}:']
def role2_lines(lo, ly):
    lbl[0] += 1; n = lbl[0]
    return [f'  s_cbranch_vccz SL{n}'] + list(lo) + [f'  s_branch SM{n}', f'SL{n}:'] + list(ly) + [f'SM{n}:']
def sched_items(pos):
    o, y = list(PLAN.get(('O', pos), [])), list(PLAN.get(('Y', pos), []))
    out = []
    while o or y: out.append((o.pop(0) if o else None, y.pop(0) if y else None))
    return out
def emit_item(it):
    o, y = it
    if o: ISS['O'].append(o[0])
    if y: ISS['Y'].append(y[0])
    if o and y and o == y: el(o[1])
    elif o and y: el(role2_lines(o[1], y[1]))
    elif o: el(role_lines('O', o[1]))
    else: el(role_lines('Y', y[1]))
def emit_pos(pos):
    o, y = PLAN.get(('O', pos), []), PLAN.get(('Y', pos), [])
    k = 0
    while k < len(o) and k < len(y) and o[k] == y[k]: emit_item((o[k], y[k])); k += 1
    for r_, x in (('O', o[k:]), ('Y', y[k:])):
        if x:
            ISS[r_] += [i[0] for i in x]; el(role_lines(r_, sum((i[1] for i in x), [])))
def after(r_, tag):
    l = ISS[r_]
    if tag not in l: return len(l) if tag == 'W0' else 63
    return min(63, len(l) - 1 - max(i for i, t in enumerate(l) if t == tag))

W_AT = len(L)
if 'nowpf' not in OPT:
    WPW = opt('wpw', 2)
    e(f'  s_lshr_b32 s{sT[0]}, s{sW}, 1'); e(f'  s_cmp_lg_u32 s{sT[0]}, {WPW // 2}'); e('  s_cbranch_scc1 MK_nwpf')
    e(f'  s_cmp_eq_u32 s{sW}, {WPW}'); e(f'  s_cselect_b32 s{sT[0]}, 54, 18')
    e('  s_cselect_b32 s12, s6, s8'); e('  s_cselect_b32 s13, s7, s9'); e('  s_and_b32 s13, s13, 0xffff')
    e(f'  s_lshr_b32 s{sT[1]}, s2, 3'); e(f'  s_mul_i32 s{sT[1]}, s{sT[1]}, s{sT[0]}'); e(f'  s_lshl_b32 s{sVO}, s{sT[1]}, 7')
    e(f'  s_lshl_b32 s{sT[0]}, s{sT[0]}, 7'); e(f'  s_add_u32 s14, s{sVO}, s{sT[0]}'); e('  s_mov_b32 s15, 0x00020000')
    e('  v_lshlrev_b32 v23, 7, v0')
    e(f'  buffer_load_dword v254, v23, s[12:15], s{sVO} offen')
    e('MK_nwpf:')
WPF = []
if 'latewpf' not in OPT:
    WPF = L[W_AT:]; del L[W_AT:]
el(srd(12, 4, X_BYTES))
e(f'  s_movk_i32 s{sT[8]}, 112')
if 'noearly' in OPT: emit_pos('A')
else:
    assert ('Y', 'A') not in PLAN
    it = PLAN[('O', 'A')]; ISS['O'] += [i[0] for i in it]
    L[EARLY_AT:EARLY_AT] = role_lines('O', ['  s_waitcnt lgkmcnt(0)'] + WPF + srd(88, 6, 192*576*2) + sum((i[1] for i in it), []))
tsp()
el(srd(16, 10, X_BYTES)); el(srd(4, 8, 192*192*2)); el(srd(8, 84, 256)); el(srd(20, 86, WS_BYTES if TS else 73728))
e(f'  v_lshlrev_b32 v{vL0}, 4, v0')
e(f'  v_add_u32 v{vL1}, {HALF}, v{vL0}')
e(f'  s_and_b32 s{sW4}, s{sW}, 3'); e(f'  s_lshl_b32 s{sW4}, s{sW4}, 10')
e(f'  v_bfe_u32 v{tA}, v{vn}, 1, 3'); e(f'  v_xor_b32 v{tA}, v{tA}, v{vg}')
e(f'  v_lshlrev_b32 v{tB}, 7, v{vn}'); e(f'  v_lshl_add_u32 v{tB}, v{tA}, 4, v{tB}')
e(f'  s_lshr_b32 s{sT[0]}, s{sW}, 2'); e(f'  s_mul_i32 s{sT[1]}, s{sT[0]}, {6*2048}'); e(f'  s_add_u32 s{sT[1]}, s{sT[1]}, {CH[0]}')
e(f'  v_add_u32 v{vMA[0]}, s{sT[1]}, v{tB}'); e(f'  v_xor_b32 v{vMA[1]}, 64, v{vMA[0]}')
e(f'  s_mul_i32 s{sT[1]}, s{sW4}, 6'); e(f'  s_add_u32 s{sT[1]}, s{sT[1]}, {24576 + CH[0]}')
e(f'  v_add_u32 v{vMB[0]}, s{sT[1]}, v{tB}'); e(f'  v_xor_b32 v{vMB[1]}, 64, v{vMB[0]}')
F = []; f_ = F.append
f_(f'  s_lshr_b32 s{sT[0]}, s{sW}, 2'); f_(f'  s_mul_i32 s{sT[0]}, s{sT[0]}, 3072'); f_(f'  s_mul_i32 s{sT[1]}, s{sW4}, 18')
f_(f'  s_add_u32 s{sT[0]}, s{sT[0]}, s{sT[1]}'); f_(f'  s_sub_u32 s{sT[0]}, {(71-14)*1024}, s{sT[0]}')
f_(f'  v_add_u32 v{vMW[0]}, s{sT[0]}, v{vL0}')
f_(f'  s_lshl_b32 s{sT[0]}, s{sKR}, 1'); f_(f'  s_xor_b32 s{sT[0]}, s{sT[0]}, s{sMR}')
f_(f'  s_mul_i32 s{sT[1]}, s{sPR}, 222'); f_(f'  s_add_i32 s{sXB}, s{sT[0]}, s{sT[1]}')
f_(f'  s_mul_i32 s{sXB}, s{sXB}, 86016')
f_(f'  s_mul_i32 s{sGS}, s{sPR}, {-2*344064}'); f_(f'  s_add_i32 s{sGS}, s{sGS}, 344064')
f_(f'  s_lshr_b32 s{sGmin}, s{sKR}, 31'); f_(f'  s_lshl_b32 s{sGmin}, s{sGmin}, 1')
f_(f'  s_lshl_b32 s{sM0X}, s{sW4}, 2')
f_(f'  s_add_u32 s{sM0X3}, s{sM0X}, 3072'); f_(f'  s_min_u32 s{sM0X3}, s{sM0X3}, {14*1024}')
f_(f'  s_mul_i32 s{sT[2]}, s{sPR}, 172032'); f_(f'  s_sub_u32 s{sT[3]}, 172032, s{sT[2]}')
f_(f'  v_mov_b32 v{tC}, s{sT[2]}'); f_(f'  v_mov_b32 v{tD}, s{sT[3]}')
for b in range(960): assert (b * 2731) >> 16 == b // 24
for j in range(4):
    d = vD[j]
    if j < 3:
        f_(f'  s_lshr_b32 s{sT[0]}, s{sM0X}, 4'); f_(f'  s_add_u32 s{sT[0]}, s{sT[0]}, {64*j}')
    else: f_(f'  s_lshr_b32 s{sT[0]}, s{sM0X3}, 4')
    f_(f'  v_add_u32 v{tA}, s{sT[0]}, v0')
    f_(f'  v_mul_u32_u24 v{d}, 2731, v{tA}'); f_(f'  v_lshrrev_b32 v{d}, 16, v{d}')
    f_(f'  v_cmp_le_u32 {MSK}, 20, v{d}')
    f_(f'  v_mul_u32_u24 v{tB}, 24, v{d}'); f_(f'  v_sub_u32 v{tA}, v{tA}, v{tB}')
    f_(f'  v_subrev_u32 v{tB}, 20, v{d}')
    f_(f'  v_cndmask_b32 v{d}, v{d}, v{tB}, {MSK}')
    f_(f'  v_bfe_u32 v{tB}, v{d}, 1, 3'); f_(f'  v_xor_b32 v{tA}, v{tA}, v{tB}')
    f_(f'  v_cndmask_b32 v{tB}, v{tC}, v{tD}, {MSK}')
    f_(f'  v_lshl_add_u32 v{tA}, v{tA}, 4, v{tB}')
    f_(f'  v_add_u32 v{d}, s{sKC}, v{d}'); f_(f'  v_max_i32 v{d}, 0, v{d}'); f_(f'  v_lshlrev_b32 v{d}, 1, v{d}')
    f_(f'  v_xor_b32 v{d}, s{sMC}, v{d}'); f_(f'  v_add_u32 v{d}, s{sAC}, v{d}')
    f_(f'  v_mul_u32_u24 v{d}, 384, v{d}'); f_(f'  v_add_u32 v{d}, v{d}, v{tA}')
f_(f'  s_add_u32 s{sM0X}, s{sM0X}, {XB}'); f_(f'  s_add_u32 s{sM0X3}, s{sM0X3}, {XB}')
for dst, add in ((sT[0], -2), (sA2, 0)):
    f_(f'  s_lshl_b32 s{dst}, s{sU}, 2')
    if add: f_(f'  s_add_i32 s{dst}, s{dst}, {add}'); f_(f'  s_max_i32 s{dst}, s{dst}, 0')
    f_(f'  s_add_i32 s{dst}, s{dst}, s{sTR}'); f_(f'  s_max_i32 s{dst}, s{dst}, 0'); f_(f'  s_sub_i32 s{dst}, s{dst}, s{sKR}')
f_(f'  s_sub_u32 s{sT[0]}, s{sA2}, s{sT[0]}'); f_(f'  s_lshr_b32 s{sT[0]}, s{sT[0]}, 1')
f_(f'  s_mul_i32 s{sD0}, s{sT[0]}, -8'); f_(f'  s_add_i32 s{sD0}, s{sD0}, 7')
f_(f'  s_add_i32 s{sA2}, s{sA2}, -1')
f_(f'  s_add_i32 s{sR0}, s{sA2}, s{sD0}'); f_(f'  s_mul_i32 s{sD0}, s{sD0}, {ROW}')
f_(f'  s_lshl_b32 s{sT[1]}, s{sH}, 2')
f_(f'  s_mul_i32 s{sT[0]}, s{sA2}, {ROW}'); f_(f'  s_add_i32 s{sT[0]}, s{sT[0]}, {XB}')
f_(f'  v_add_u32 v{tA}, s{sT[1]}, v{vn}')
f_(f'  v_bfe_u32 v{tB}, v{tA}, 1, 3'); f_(f'  v_xor_b32 v{tB}, v{tB}, v{vg}')
f_(f'  v_mul_u32_u24 v{tA}, 384, v{tA}'); f_(f'  v_lshl_add_u32 v{tA}, v{tB}, 4, v{tA}')
f_(f'  v_add_u32 v{vSe}, s{sT[0]}, v{tA}'); f_(f'  v_xor_b32 v{vSo}, 64, v{vSe}')
f_(f'  v_lshrrev_b32 v{tA}, 2, v{vn}'); f_(f'  v_lshl_add_u32 v{tA}, v{vg}, 2, v{tA}'); f_(f'  v_add_u32 v{tA}, s{sT[1]}, v{tA}')
f_(f'  v_bfe_u32 v{tB}, v{tA}, 1, 3')
f_(f'  v_and_b32 v{tC}, 2, v{vn}'); f_(f'  v_lshlrev_b32 v{tC}, 1, v{tC}'); f_(f'  v_xor_b32 v{tB}, v{tB}, v{tC}')
f_(f'  v_mul_u32_u24 v{tA}, 384, v{tA}'); f_(f'  v_lshl_add_u32 v{tA}, v{tB}, 4, v{tA}')
f_(f'  v_and_b32 v{tB}, 1, v{vn}'); f_(f'  v_lshl_add_u32 v{tA}, v{tB}, 3, v{tA}')
f_(f'  v_add_u32 v{vP[0]}, s{sT[0]}, v{tA}')
for k in range(1, 4): f_(f'  v_xor_b32 v{vP[k]}, {16*k}, v{vP[0]}')
f_(f'  v_lshl_add_u32 v{tA}, v{vg}, 2, s{sT[1]}'); f_(f'  v_sub_u32 v{vCT}, v{tA}, v{vCT}')
f_(f'  v_cndmask_b32 v{vCT}, v{vCT}, 64, s[{sINV[1]}:{sINV[1]+1}]')
f_(f'  v_add_u32 v{SB0[0]}, s{sD0}, v{vSe}'); f_(f'  v_add_u32 v{SB0[1]}, s{sD0}, v{vSo}')
for k in range(4): f_(f'  v_add_u32 v{PB0[k]}, s{sD0}, v{vP[k]}')
f_(f'  s_mov_b32 s{sSC}, {SCALE}')
o2 = [f'  v_lshrrev_b32 v{tD}, 4, v{vL0}', f'  v_lshrrev_b32 v{tA}, 3, v{tD}', f'  s_mul_i32 s{sT[4]}, s{sH}, 7', f'  s_add_i32 s{sT[4]}, s{sT[4]}, s{sKC}',
      f'  v_cmp_lt_u32 {MSK}, 6, v{tA}', f'  v_add_u32 v{tA}, s{sT[4]}, v{tA}', f'  v_max_i32 v{tB}, 0, v{tA}', f'  v_add3_u32 v{tA}, v{tA}, v{tB}, 6',
      f'  v_xor_b32 v{tA}, s{sMC}, v{tA}', f'  v_add_u32 v{tA}, s{sAC}, v{tA}', f'  v_mul_u32_u24 v{tA}, 384, v{tA}',
      f'  v_and_b32 v{tB}, 7, v{tD}', f'  v_xor_b32 v{tB}, v{tB}, v{vg}', f'  v_lshl_add_u32 v{tA}, v{tB}, 4, v{tA}', f'  v_mov_b32 v{tB}, 0x80000000',
      f'  v_cndmask_b32 v{QA[0]}, v{tA}, v{tB}, {MSK}', f'  v_xor_b32 v{QA[1]}, 64, v{QA[0]}',
      f'  s_lshl_b32 s{sT[0]}, s{sU}, 2', f'  s_add_i32 s{sT[0]}, s{sT[0]}, s{sTR}']
for k in range(4):
    d = sQR[k]
    o2 += [f'  s_lshl_b32 s{d}, s{sT[0]}, 1', f'  s_add_i32 s{d}, s{d}, {2*(k-2) + 6}', f'  s_xor_b32 s{d}, s{d}, s{sMR}', f'  s_add_i32 s{d}, s{d}, s{sAR}', f'  s_mul_i32 s{d}, s{d}, 86016']
o2 += [f'  s_mul_i32 s{sST}, s{sW4}, 6', f'  s_add_u32 s{sST}, s{sST}, {SO}',
       f'  v_bfe_u32 v{tA}, v{vn}, 1, 3', f'  v_xor_b32 v{tA}, v{tA}, v{vg}', f'  v_lshlrev_b32 v{tB}, 7, v{vn}', f'  v_lshl_add_u32 v{tB}, v{tA}, 4, v{tB}',
       f'  v_lshrrev_b32 v{tA}, 3, v{vn}', f'  v_lshl_add_u32 v{tA}, v{tA}, 11, v{tB}', f'  v_add_u32 v{vQR}, s{sST}, v{tA}']
OLATE = opt('olate', 2)
F.insert(0, f'  v_mov_b32 v{vNB}, 0'); F.insert(0, f'  v_mov_b32 v{vNA}, 0')
if OLATE == 0: F += role_lines('O', o2); o2 = []
NPRE = opt('npre', 999)
NB1 = opt('nb1', 8)
el(F[:NB1]); emit_pos('B')
if OLATE == 2:
    assert NB1 in (2, 8)
    el(role2_lines([f'  v_mov_b32 v{r}, 0' for r in vD], F[NB1:])); o2 = F[NB1:] + o2
else: el(F[NB1:])
F = []

def dma_x(G):
    out = []
    if G < 2: out += [f'  s_max_u32 s{sVO}, s{sGmin}, {G}', f'  s_mul_i32 s{sVO}, s{sVO}, s{sGS}']
    else: out.append(f'  s_mul_i32 s{sVO}, s{sGS}, {G}')
    out.append(f'  s_add_i32 s{sVO}, s{sVO}, s{sXB}')
    for j in range(4):
        out.append(f'  s_add_u32 m0, s{sM0X}, {G*15360 + j*1024}' if j < 3 else f'  s_add_u32 m0, s{sM0X3}, {G*15360}')
        out.append('  s_nop 0')
        out.append(f'  buffer_load_dwordx4 v{vD[j]}, {RX}, s{sVO} offen{NT} lds')
    return out
def dma_xs(Gs): return sum((dma_x(G) for G in Gs), [])
SPECIAL = [(1, 7), (1, 0), (0, 7), (0, 1), (0, 0)]
def bias_init(tmp, MID, TL):
    out = []; o = out.append
    ninf, tt = tmp, tmp+1
    sp = [x for x in SPECIAL if x[0] in TL]
    o(f'  v_mov_b32 v{ninf}, 0xff800000')
    for i in range(4): o(f'  v_add_u32 v{tt+i}, {i}, v{vCT}')
    for i in range(4): o(f'  v_cmp_gt_u32 s[{sT[2+2*i]}:{sT[3+2*i]}], 7, v{tt+i}')
    for q, (t, jj) in enumerate(sp):
        slot = jj + 2*t
        if slot == 0: o(f'  v_sub_u32 v{tt+4+q}, s{sR0}, v{vRR[t]}')
        else:
            o(f'  s_add_i32 s{sT[0]}, s{sA2}, {slot-1}'); o(f'  v_sub_u32 v{tt+4+q}, s{sT[0]}, v{vRR[t]}')
    for i in range(4): o(f'  v_cndmask_b32 v{MID+i}, v{ninf}, 0, s[{sT[2+2*i]}:{sT[3+2*i]}]')
    for q in range(len(sp)): o(f'  v_cmp_gt_u32 s[{sT[2*q]}:{sT[2*q+1]}], 7, v{tt+4+q}')
    for q, (t, jj) in enumerate(sp):
        for i in range(4): o(f'  v_cndmask_b32 v{SACC[t]+4*jj+i}, v{ninf}, v{MID+i}, s[{sT[2*q]}:{sT[2*q+1]}]')
    return out

tsp()
emit_pos('C')
tsp()
vLN = 107
def n_loads():
    e(f'  v_lshrrev_b32 v{vLN}, 4, v{vL0}')
    e(f'  s_cmp_lt_u32 s2, 72'); e('  s_cbranch_scc0 MK_np1')
    e(f'  s_mul_hi_u32 s{sT[8]}, s2, 0x15555556'); e(f'  s_lshl_b32 s{sT[8]}, s{sT[8]}, 6')
    e(f'  s_mul_i32 s{sT[9]}, s{sW}, {16*384}'); e(f'  s_add_u32 s{sVO}, s{sT[8]}, s{sT[9]}')
    e(f'  v_lshrrev_b32 v{MPK}, 2, v{vLN}'); e(f'  v_mul_u32_u24 v{MPK}, 384, v{MPK}'); e(f'  v_and_b32 v{MPK+1}, 3, v{vLN}'); e(f'  v_lshl_add_u32 v{MPK}, v{MPK+1}, 4, v{MPK}')
    e(f'  s_add_u32 m0, s{sWL}, {WOL}'); e('  s_nop 0')
    e(f'  buffer_load_dwordx4 v{MPK}, {RWO}, s{sVO} offen lds')
    e(f'  s_mul_i32 s{sT[9]}, s{sW4}, 6'); e(f'  s_add_u32 s{sVO}, s{sT[8]}, s{sT[9]}')
    e(f'  s_add_u32 m0, s{sW4}, {WOL + 8192}'); e(f'  s_add_u32 s{sVO}, s{sVO}, {8*16*384}')
    e(f'  buffer_load_dwordx4 v{MPK}, {RWO}, s{sVO} offen lds')
    e('MK_np1:')
    e(f'  s_sub_u32 s{sPROD}, s2, 72'); e(f'  s_lshr_b32 s{sPROD}, s{sPROD}, 31')
    e(f'  s_lshr_b32 s{sPROD}, s{sPROD}, s{sU}')
    e(f'  s_cmp_eq_u32 s{sPROD}, 0'); e('  s_cbranch_scc1 MK_np3')
    e(f'  s_mul_hi_u32 s{sT[8]}, s2, 0x15555556'); e(f'  s_mul_i32 s{sT[9]}, s{sT[8]}, 12'); e(f'  s_sub_u32 s{sT[9]}, s2, s{sT[9]}')
    e(f'  s_cmp_ge_u32 s{sT[9]}, 6'); e(f'  s_cselect_b32 s{sT[5]}, 1, 0'); e(f'  s_mul_i32 s{sVO}, s{sT[5]}, 6'); e(f'  s_sub_u32 s{sT[9]}, s{sT[9]}, s{sVO}')
    e(f'  v_lshrrev_b32 v{MPK+2}, 2, v{vn}'); e(f'  v_and_b32 v{MPK+1}, 3, v{vn}')
    e(f'  v_lshl_add_u32 v{vNB}, v{vg}, 3, v{MPK+2}'); e(f'  v_lshlrev_b32 v{vNB}, 6, v{vNB}'); e(f'  v_lshl_add_u32 v{vNB}, v{MPK+1}, 4, v{vNB}')
    e(f'  s_lshl_b32 s{sT[5]}, s{sT[5]}, 3'); e(f'  s_add_u32 s{sT[5]}, s{sT[5]}, {WOL}'); e(f'  v_add_u32 v{vNB}, s{sT[5]}, v{vNB}')
    e(f'  s_lshr_b32 s{sT[8]}, s{sT[9]}, 1'); e(f'  s_lshl_b32 s{sT[8]}, s{sT[8]}, 6')
    e(f'  s_and_b32 s{sT[9]}, s{sT[9]}, 1'); e(f'  s_lshl_b32 s{sT[9]}, s{sT[9]}, 4'); e(f'  s_add_u32 s{sT[8]}, s{sT[8]}, s{sT[9]}')
    e(f'  v_lshrrev_b32 v{MPK}, 1, v{MPK+2}'); e(f'  v_lshlrev_b32 v{MPK}, 5, v{MPK}')
    e(f'  v_and_b32 v{MPK+2}, 1, v{MPK+2}'); e(f'  v_lshl_add_u32 v{MPK}, v{MPK+2}, 2, v{MPK}')
    e(f'  v_add3_u32 v{MPK}, v{MPK}, v{MPK+1}, s{sT[8]}')
    e(f'  v_mul_u32_u24 v{MPK}, 1152, v{MPK}'); e(f'  v_lshl_add_u32 v{vNA}, v{vg}, 4, v{MPK}')
    e(f'  s_mul_i32 s{sVO}, s{sH}, 9216')
    for kk in range(6):
        e(f'  buffer_load_dwordx4 {V(136+4*kk)}, v{vNA}, {RW}, s{sVO} offen offset:{768+64*kk}')
    e('MK_np3:')
def m_reads(kk):
    rb = 184 + 36*(kk % 2); co = (kk // 2) * 49152
    lo = co if co < 49152*2 else 0
    return ([f'  ds_read_b128 {V(rb+24+4*b)}, v{vMB[kk % 2]} offset:{2048*b}' for b in range(3)] +
            [f'  ds_read_b128 {V(rb+4*a)}, v{vMA[kk % 2]} offset:{2048*a}' for a in range(6)])
def chunk_sync(c, lg):
    wo_, wy_ = after('O', f'W{c}'), after('Y', f'W{c}')
    x = ' lgkmcnt(0)' if lg else ''
    def w(n, prod):
        if c == 2 and prod and ISS['Y'].count('b'):
            return [f'  s_cmp_lg_u32 s{sU}, 0', '  s_cbranch_scc1 MK_c2', f'  s_waitcnt vmcnt({n - ISS["Y"].count("b")})', 'MK_c2:', f'  s_waitcnt vmcnt({n}){x}']
        if c != 1 or n == 63: return [f'  s_waitcnt vmcnt({n}){x}']
        lbl[0] += 1; k = lbl[0]; o = []
        if prod: o += [f'  s_cmp_lg_u32 s{sPROD}, 0', f'  s_cbranch_scc1 CA{k}']
        o += ['  s_cmp_lt_u32 s2, 72', f'  s_cbranch_scc1 CB{k}', f'  s_waitcnt vmcnt({n})', f'CB{k}:']
        if prod: o += [f'  s_waitcnt vmcnt({n+2})', f'CA{k}:', f'  s_waitcnt vmcnt({n+8}){x}']
        else: o += [f'  s_waitcnt vmcnt({n+2}){x}']
        return o
    if c == 2:
        wo_, wy_ = min(wo_, len(ISS['O']) - N_AT['O']), min(wy_, len(ISS['Y']) - N_AT['Y'])
    assert c != 1 or 'b' not in ISS['Y']
    if wo_ == wy_ and c != 2: el(w(wo_, True))
    else: el(role2_lines(w(wo_, False), w(wy_, True)))
    e('  s_barrier')
    tsp()
N_AT = {}
FPG = opt('fpg', 4)
chunk_sync(0, False)
el(m_reads(0))
SYA = opt('sya', 0)
for kk in range(4):
    odd = kk % 2 == 1
    extra = sched_items(str(kk)); ne = len(extra); cnt = 0
    rb = 184 + 36*(kk % 2)
    nx = m_reads(kk+1)
    issued = 0
    for a in range(6):
        if odd and a == SYA:
            chunk_sync(kk // 2 + 1, True)
            for r in vMA + vMB: e(f'  v_add_u32 v{r}, 49152, v{r}')
        if not (odd and a >= SYA): e(f'  s_waitcnt lgkmcnt({5 - a + issued})')
        for b in range(3):
            acc = MACC + 12*a + 4*b
            e(mfma(acc, rb+4*a, rb+24+4*b, None if kk == 0 else acc))
            slots = FPG
            if odd:
                for _ in range(1 if SYA <= 3 else 2):
                    if nx and a >= SYA and (b < 2 or SYA >= 2): e(nx.pop(0)); slots -= 1
            elif nx and b < 2 and a >= 1:
                e(nx.pop(0)); issued += 1; slots -= 1
            cnt += 1
            while extra and (ne - len(extra)) * 18 < cnt * ne: emit_item(extra.pop(0)); slots = 0
            el(F[:max(slots, 0)]); F = F[max(slots, 0):]
    el(nx)
    assert not extra
    if kk == opt('olk', 1) and o2: el(role_lines('O', o2))
    if kk == 0: n_loads(); N_AT.update(O=len(ISS['O']), Y=len(ISS['Y']))
print('leftover F', len(F), file=sys.stderr); el(F); F = []
assert ISS['Y'].count('q') <= 6
e(f'  s_cmp_eq_u32 s{sPROD}, 0'); e('  s_cbranch_scc1 MK_np2')
e('  s_waitcnt lgkmcnt(0)')
for k2 in range(6):
    for hf in range(2):
        e(f'  ds_read_b64_tr_b16 {V(MPK+4*k2+2*hf, 2)}, v{vNB} offset:{(32*k2 + 4*hf)*64}')
e('  s_setprio 3'); e('  s_waitcnt lgkmcnt(0)')
for kk in range(6):
    e(mfma(128, 136+4*kk, MPK+4*kk, None if kk == 0 else 128))
e(f'  s_lshl_b32 s{sVO}, s2, 10'); e(f'  s_lshl_b32 s{sT[8]}, s{sH}, 3'); e(f'  s_add_u32 s{sVO}, s{sVO}, s{sT[8]}')
e('  s_nop 5')
for r in range(2): e(f'  v_cvt_pk_bf16_f32 v{132+r}, v{128+2*r}, v{129+2*r}')
e(f'  buffer_store_dwordx2 v[132:133], v{vL0}, {RWS}, s{sVO} offen sc1')
NY_AT_STORE = len(ISS['Y'])
e('  s_setprio 0')
e('MK_np2:')
r5 = m_reads(5)
el(r5[:5]); late = r5[5:]
extra = sched_items('4'); ne = len(extra); cnt = 0
pend = []; nw = 0; wq = []
BWF = 0
for fi in range(9):
    a3, b = fi // 3, fi % 3
    if fi == 0: e('  s_waitcnt lgkmcnt(5)')
    if fi == 2: e('  s_waitcnt lgkmcnt(0)')
    seq = [(4, 2*a3), (4, 2*a3+1), (5, 2*a3+1), (5, 2*a3)] if fi == 0 or 'nomch' in OPT else [(4, 2*a3), (5, 2*a3), (4, 2*a3+1), (5, 2*a3+1)]
    for q_, (kk, a) in enumerate(seq):
        rb = 184 + 36*(kk % 2)
        if fi == 0 and q_ == 2: e('  s_waitcnt lgkmcnt(2)')
        if True:
            acc = MACC + 12*a + 4*b
            e(mfma(acc, rb+4*a, rb+24+4*b, acc)); cnt += 1
            if late: e(late.pop(0))
            k = 0
            while wq and fi >= BWF and k < 1: e(wq.pop(0)); k += 1
            while pend and pend[0][0] <= cnt and k < 2:
                l = pend.pop(0)[1]
                if 'ds_write' in l and k > 0: wq.append(l); break
                else: e(l); k += 1
            while extra and (ne - len(extra)) * 36 < cnt * ne: emit_item(extra.pop(0))
    o = MPK + 4*(fi % 6)
    for a in range(2):
        acc = MACC + 12*(2*a3 + a) + 4*b
        for i in range(2): pend.append((cnt + 6, f'  v_cvt_pk_bf16_f32 v{o+2*a+i}, v{acc+2*i}, v{acc+2*i+1}'))
    pend.append((cnt + 6, f'  ds_write_b128 v{vMW[0]}, {V(o)} offset:{1024*(2-a3) + 6144*(2-b)}'))
assert not extra
tsp()
el(wq)
for i, (_, l) in enumerate(pend):
    if len(pend) - i == 5: e('  s_nop 3')
    e(l)
e('  s_waitcnt lgkmcnt(0)')
e('  s_barrier')
tsp()
NXY = opt('nxy', 2)
XH = (9, 8, 7, 6, 5)
assert ('Y', 'Z') not in PLAN and ('Y', '4') not in PLAN
y = [f'  s_cmp_lg_u32 s{sPROD}, 0', '  s_cbranch_scc1 MK_np4', '  s_waitcnt vmcnt(0)', 'MK_np4:', '  s_waitcnt vmcnt(1)', '  s_setprio 1']
o_ = sum((ls for _, ls in PLAN.get(('O', 'Z'), [])), []) + dma_xs(XH[:min(NXY, 2)]) + [f'  s_waitcnt vmcnt({4*min(NXY, 2)}) lgkmcnt(0)'] + q_reads() + ['  s_waitcnt lgkmcnt(0)', '  s_barrier'] + dma_xs(XH[2:max(NXY, 2)])
PRE_P1 = (o_, y)
PUB = [f'  s_cmp_eq_u32 s{sPROD}, 0', '  s_cbranch_scc1 MK_np5', '  s_waitcnt vmcnt(0)', '  v_mov_b32 v23, 1', '  s_mov_b64 exec, 1',
       *([f'  buffer_atomic_add v23, off, {RDB}, 0 sc1'] if 'atom' in OPT else
         [f'  s_lshl_b32 s{sVO}, s{sH}, 7', f'  buffer_atomic_add v23, off, {RDB}, s{sVO} sc1']), '  s_mov_b64 exec, -1', '  s_nop 3', 'MK_np5:']

BODY = r'''# ---------------- pipelined body
stream = []; frags = []
def add_frag(reads, gate): frags.append(dict(reads=reads, gate=gate, uses=0)); return len(frags) - 1
def use(fid, fn): frags[fid]['uses'] += 1; stream.append(('mfma', fn, fid))
def mf(text): stream.append(('mfma', (lambda buf: text), None))
def raw(*lines):
    for l in lines: stream.append(('raw', l))
def fill(*lines):
    for l in lines: stream.append(('fill', l))
def flush(): stream.append(('flush',))
def need(fid): stream.append(('need', fid))
def gate(name): stream.append(('gate', name))
def role(r, lines):
    if not lines: return
    if not SINGLE: stream.append(('cond', role_lines(r, lines)))
    elif r == 'Y': stream.append(('plain', lines))
def role2(lo, ly):
    if SINGLE or not lo: role('Y', ly)
    elif not ly: role('O', lo)
    else: stream.append(('cond', role2_lines(lo, ly)))
MID = SACC[1] + 4 if SINGLE else SACC[0] + 8
BAR = '  s_barrier'
SDMA = 'odma' not in OPT       # the single-tile waves load N
def m_read(f):
    addr = (71-f)*1024
    if addr < HALF: return [f'  ds_read_b128 {{d4}}, v{vL0} offset:{addr}']
    return [f'  ds_read_b128 {{d4}}, v{vL1} offset:{addr-HALF}']
def n_addr(f): return NHI + 30720 + 1024*f if f < 30 else ((f-30)*1024 if f < 40 else NHI + (f-40)*1024)
def n_read(f):
    if f >= 70: return []
    a = n_addr(f)
    return [f'  ds_read_b128 {{d4}}, v{vL1} offset:{a-NHI}' if a >= NHI else f'  ds_read_b128 {{d4}}, v{vL0} offset:{a}']
def dma_n(a, b):          # fragments a..b-1 (one address region), four waves
    out = []
    nw_ = 2 if SDMA else 4
    for f0 in range(a, b, nw_):
        lim = (b - 1 - f0) * 1024; src = sW4
        if lim < 1024*(nw_ - 1): out.append(f'  s_min_u32 s{sT[5]}, s{sW4}, {lim}'); src = sT[5]
        out += [f'  s_add_u32 m0, s{src}, {n_addr(f0)}', f'  s_add_u32 s{sVO}, s{src}, {f0*1024}',
                f'  buffer_load_dwordx4 v{vL0}, {RWS}, s{sVO} offen{NSC} lds']
    return out
CHAIN = [(0,0),(0,1),(0,2),(1,0),(1,1),(1,2),(1,3),(1,4),(1,5),(0,3),(0,4),(0,5)] if 'nochain' not in OPT else [(t, k) for k in range(6) for t in range(2)]
CHAIN = [x for x in CHAIN if x[0] in TL]
def proj(B, rd, gate_of, post, hooks):
    for s in range(6):
        for hh in range(2):
            f0 = 12*s + 6*hh
            fid = [add_frag(rd(f0+ks), gate_of(f0+ks)) for ks in range(6)]
            seen = set()
            for t, ks in (CHAIN if f0 or len(TL) == 1 or rd is m_read else [(t, k) for t in (1, 0) for k in range(6)]):
                f = f0 + ks
                if f0 == 0 and rd is n_read: stream.append(('flushto', f'YB{ks}' if t == TL[-1] else 'T1'))
                if ks not in seen:
                    seen.add(ks)
                    if f in hooks: hooks[f](fid[ks])
                acc = ACC + 16*(s % 2) + 8*t + 4*hh
                fx = None if rd(f) else NREG + 4*(f-70)
                use(fid[ks], (lambda buf, acc=acc, t=t, ks=ks, fx=fx: mfma(acc, buf if fx is None else fx, B(t, ks), None if ks == 0 else acc)))
            if hh == 1: stream.append(('flushto', f'post{s-1}'))
            fill(*post(s, hh))
        stream.append(('tag', f'post{s}'))

gate('G0')
role2(PRE_P1[0], PRE_P1[1] if SINGLE else ['  s_waitcnt vmcnt(0)', '  s_setprio 1'])
raw('BODY:' if not SINGLE else 'BODYS:')
BF = bias_init(SACC[1] + 8, MID, TL)
fill(*BF[:30])
def p1_post(s, hh):
    out = []
    for t in (1, 0):
        if t == 0 and s == 5 and hh == 1: out.append('#QP5a')
        if t not in TL: continue
        acc = ACC + 16*(s % 2) + 8*t + 4*hh
        for r in range(4): out.append(f'  v_mul_f32 v{acc+r}, s{sSC}, v{acc+r}')
        for r in range(2): out.append(f'  v_cvt_pk_bf16_f32 v{QP+24*t+4*s+2*hh+r}, v{acc+2*r}, v{acc+2*r+1}')
    return out
proj(lambda t, ks: XQ+24*t+4*ks, m_read, lambda f: 'G0', p1_post,
     {13: lambda fid: fill(*BF[30:35]), 25: lambda fid: fill(*BF[35:39]), 37: lambda fid: fill(*BF[39:44]), 49: lambda fid: fill(*BF[44:48]), 60: lambda fid: (fill(*BF[48:]), stream.append(('tag', 'BIAS'))),
      opt('yb1', 64): lambda fid: role('Y', [BAR]),
      31: lambda fid: (need(fid), role2([BAR], PUB if SINGLE else [])),                                  # B2
      61: lambda fid: (need(fid), role('O', ['  s_waitcnt vmcnt(0)', BAR]))})         # B3
if 'p1flush' in OPT: flush()
stream.append(('tag', 'QP5'))
fill(f'  v_add_u32 v{vL1}, {NHI}, v{vL0}')
for r in range(4): fill(f'  v_mov_b32 v{ONES+r}, 0x3f803f80')
POLL = f'  buffer_load_dword v13, off, {RDB}, 0 sc1' if 'atom' in OPT else f'  buffer_load_dword v13, v14, {RDB}, 0 offen sc1'
PSET = [] if 'atom' in OPT else [f'  v_and_b32 v14, {128 if NCT == 2 else 192}, v{vL0}']
PMODE = opt('pmode', 1)      # 0 early plain poll, 1 late plain poll, 2 none (diagnostic only)
role('Y', ['  s_setprio 0'] + dma_xs(XH[NXY:]) + [BAR] + dma_xs((4, 3, 2)) + 
     ['  s_waitcnt vmcnt(12)', BAR] + dma_xs((1, 0)) + ['  s_waitcnt vmcnt(8)', BAR])        # B2 B3 B4a
for _ in range(opt('idle', 0)): raw('  s_sleep 8')      # diagnostic only
gate('S')
etn = [0, 0]
def sm_fill(t, jj):
    pool = ((ET, ET+4), (ET+8, ET+12, ET+16))[t]
    tmp = pool[etn[t] % len(pool)]; etn[t] += 1
    acc = SACC[t] + 4*jj
    for i in range(4): fill(f'  v_exp_f32 v{tmp+i}, v{acc+i}')
    for i in range(2): fill(f'  v_cvt_pk_bf16_f32 v{PREG[t]+2*jj+i}, v{tmp+2*i}, v{tmp+2*i+1}')
    stream.append(('tag', f'P{t}_{jj}'))
def sum_mfmas(t):
    stream.append(('flushto', f'P{t}_0') if t == 0 else ('flush1',))
    for kt in (3, 2, 1, 0): mf(mfma(SUM[t], ONES, PREG[t]+4*kt, None if kt == 3 else SUM[t]))
LO, HI = (127-30) << 23, (127+30) << 23
def check(t):
    raw(f'  v_subrev_u32 v{RI[1]}, {LO}, v{SUM[t]}')
    raw(f'  s_mov_b32 s{sT[6]}, {HI-LO}')
    raw(f'  v_cmp_gt_u32 s[{sT[2]}:{sT[3]}], s{sT[6]}, v{RI[1]}')
    raw(f'  s_or_b64 s[{sT[2]}:{sT[3]}], s[{sT[2]}:{sT[3]}], s[{sINV[t]}:{sINV[t]+1}]')
    raw(f'  s_cmp_eq_u64 s[{sT[2]}:{sT[3]}], -1')
    raw(f'  s_cbranch_scc0 FB{t}{SFX}')
    raw(f'FBR{t}{SFX}:')
if 'atom' in OPT:
    pollw = [f'  s_mov_b32 s{sT[7]}, 0x40000', 'NPOLL:', '  s_waitcnt vmcnt(0)', f'  v_readfirstlane_b32 s{sT[0]}, v13', f'  s_sub_u32 s{sT[7]}, s{sT[7]}, 1',
             f'  s_cselect_b32 s{sT[0]}, 144, s{sT[0]}', f'  s_cmp_ge_u32 s{sT[0]}, 144', '  s_cbranch_scc1 NPOLLD', POLL, '  s_branch NPOLL', 'NPOLLD:']
else:
    pollw = [f'  s_mov_b32 s{sT[7]}, 0x40000', f'  s_mov_b32 s{sT[0]}, {144 // NCT}', 'NPOLL:', '  s_waitcnt vmcnt(0)', f'  v_cmp_le_u32 s[{sT[2]}:{sT[3]}], s{sT[0]}, v13',
             f'  s_sub_u32 s{sT[7]}, s{sT[7]}, 1', '  s_cbranch_scc1 NPOLLD', f'  s_cmp_eq_u64 s[{sT[2]}:{sT[3]}], -1', '  s_cbranch_scc1 NPOLLD', POLL, '  s_branch NPOLL', 'NPOLLD:']
ODMA = not SDMA
# Y's positions of B5a / B5b / B6 in units of "S slot or PV step index": 0..9 = before the k-th S slot, 10..14 = before the k-th PV step
YP = {opt('y5a', 6): [BAR] + pollw + dma_n(0, 30) + dma_n(30, 40),
      opt('y5b', 9): ['  s_waitcnt vmcnt(0)', BAR] + dma_n(40, 70),
      opt('y6', 11): ['  s_waitcnt vmcnt(0)', BAR]}
assert len(YP) == 3
if ODMA or not SINGLE: YP = {k: [BAR] for k in YP}
else:
    YP = {opt('s5a', 7): pollw + dma_n(30, 40) + [BAR] + dma_n(0, 30), opt('s5b', 8): ['  s_waitcnt vmcnt(0)', BAR] + dma_n(40, 70),
          opt('s6', 9): ['  s_waitcnt vmcnt(0)', BAR], opt('spoll', 5): PSET + [POLL.replace(' sc1', '')]}
    assert len(YP) == 4
if 'yhi' in OPT: YP[opt('yhi', 0)] = YP.get(opt('yhi', 0), []) + ['  s_setprio 1']
O4B = opt('o4b', 6)
for k, slot in enumerate(range(9, -1, -1)):
    if k == 2:
        raw('  s_waitcnt vmcnt(0)', BAR); gate('S2')       # O: B4a ; Y: B4b
    if k == O4B: role('O', [BAR] + (PSET + [POLL.replace(' sc1', '')] if ODMA else []))             # B4b
    if k in YP: role('Y', YP[k])
    if SINGLE and slot < 2:
        if slot == 0: sum_mfmas(1)
        continue
    fid = []
    for s in range(6):
        if slot == 0: base, off = SB0[s % 2], 128*(s//2)
        else: base, off = (vSe, vSo)[s % 2], (slot-1)*ROW + 128*(s//2)
        fid.append(add_frag([f'  ds_read_b128 {{d4}}, v{base} offset:{off}'], 'S' if slot >= 6 else 'S2'))
    for t, s in CHAIN:
        jj = slot - 2*t
        if 0 <= jj < 8:
            if slot == 0 and s == 3: sum_mfmas(1)
            if slot == 9 and s == 0: stream.append(('flushto', 'BIAS'))
            if slot == 9 and s == 5: stream.append(('flushto', 'QP5a'))
            if slot == 7 and s == 5: stream.append(('flushto', 'QP5'))
            acc = SACC[t] + 4*jj
            cin = MID if s == 0 and (t, jj) not in SPECIAL else acc
            use(fid[s], (lambda buf, acc=acc, t=t, s=s, cin=cin: mfma(acc, buf, QP+24*t+4*s, cin)))
    for t in TL:
        jj = slot - 2*t
        if 0 <= jj < 8: sm_fill(t, jj)
    if slot <= opt('prio', 4): stream.append(('prio1',))
check(1)
YC1 = 0
def ycvt(t, ks, _=0):
    return [f'  v_cvt_pk_bf16_f32 v{YB[t][ks]+2*hf+i}, v{YACC[t][2*ks+hf]+2*i}, v{YACC[t][2*ks+hf]+2*i+1}' for hf in range(2) for i in range(2)]
lastf = None
PVO = (3, 4, 2, 1, 0)
def pv_reads(st, ct):
    b_, e_ = ct // 4, ct % 4
    rd = []
    for hf in range(2):
        slot = 2*st + hf
        if slot == 0: base, off = PB0[e_], 128*b_
        else: base, off = vP[e_], (slot-1)*ROW + 128*b_
        rd.append(f'  ds_read_b64_tr_b16 {{d{"lo" if hf == 0 else "hi"}}}, v{base} offset:{off}')
    return rd
for k, st in enumerate(PVO):
    if k == 1:
        if not SINGLE: sum_mfmas(0)
        else: fill(f'  v_rcp_f32 v{RI[1]}, v{SUM[1]}')
    if k == 2: need(lastf); role('O', [BAR] + (pollw + dma_n(30, 40) + dma_n(0, 30) if ODMA else []))     # B5a
    if 10 + k in YP: role('Y', YP[10 + k])
    if SINGLE and k == 4:
        gate('P4a'); continue
    if k == 0: stream.append(('flushto', 'P0_6'))
    for ct in range(12):
        tl = [t for t in TL if 0 <= st - t < 4]
        fid = add_frag(pv_reads(st, ct), 'S2'); lastf = fid
        if k == 4 and ct == opt('o5b', 6):
            stream.append(('needall', fid + 11 - ct)); role('O', ['  s_waitcnt vmcnt(0)', BAR] + dma_n(40, 70) if ODMA else [BAR]); gate('P4a')         # B5b: every X read of this wave has landed
        for t in tl:
            acc = YACC[t][ct]
            use(fid, (lambda buf, acc=acc, t=t, st=st, k=k: mfma(acc, buf, PREG[t]+4*(st-t), None if k == 0 else acc)))
        if k == 1 and not SINGLE and ct == 2:
            check(0)
            for t in TL: fill(f'  v_rcp_f32 v{RI[t]}, v{SUM[t]}')
        if k == 3 and ct % 2 and ct < 12 - YC1:
            fill(*ycvt(1, ct // 2, 1))
            if SINGLE: stream.append(('tag', f'YB{ct // 2}'))
        if k == 4 and ct % 2: fill(*ycvt(0, ct // 2, 0)); stream.append(('tag', f'YB{ct // 2}'))
    if k == 3: stream.append(('tag', 'T1'))
NLD = [f'  s_mov_b32 s{sVO}, {70*1024}'] + [f'  buffer_load_dwordx4 {V(NREG+4*i)}, v{vL0}, {RWS}, s{sVO} offen offset:{1024*i} sc1' for i in range(2)]
if 15 in YP: role('Y', YP[15])
def p4_post(s, hh):
    out = []
    for t in TL:
        acc = ACC + 16*(s % 2) + 8*t + 4*hh
        o = OUTR + 8*(s % 2) + 4*t
        for r in range(4): out.append(f'  v_mul_f32 v{acc+r}, v{acc+r}, v{RI[t]}')
        for r in range(2): out.append(f'  v_cvt_pk_bf16_f32 v{o+2*hh+r}, v{acc+2*r}, v{acc+2*r+1}')
        if hh: out.append(f'  buffer_store_dwordx4 {V(o)}, v{vO[t]}, {RO}, 0 offen offset:{64*s}{NTO}')
    return out
proj(lambda t, ks: YB[t][ks], n_read, lambda f: 'P4a' if f < 40 else 'P4b', p4_post,
     {12: lambda fid: raw(*NLD),
      opt('o6', 24): lambda fid: (role('O', (['  s_waitcnt vmcnt(%d)' % (2 if 'pairst' in OPT else 4)] if ODMA else []) + [BAR]), gate('P4b')),                 # B6
      60: lambda fid: raw(f'  s_waitcnt vmcnt({4*len(TL)})'),
      })
flush()

# ---------------- emitter: read scheduling, gap filling, hazard padding
def regs_of(tok):
    m = re.fullmatch(r'v\[(\d+):(\d+)\]', tok)
    if m: return list(range(int(m.group(1)), int(m.group(2)) + 1))
    m = re.fullmatch(r'-?v(\d+)', tok)
    return [int(m.group(1))] if m else []
def parse(line):
    p = line.strip().split(None, 1)
    op = p[0]; args = [a.strip().split()[0] for a in p[1].split(',')] if len(p) > 1 else []
    return op, args
clock = [0]
mf_w = {}; va_w = {}; tr_w = {}; mf_c = {}; sg_w = {}
def hazard(line):
    """wait states still required before `line` may issue"""
    op, args = parse(line); need_ = 0
    allr = [r for a in args for r in regs_of(a)]
    if op.startswith('v_mfma'):
        for r in [r for a in args[1:] for r in regs_of(a)]:
            if r in va_w: need_ = max(need_, 2 - (clock[0] - va_w[r] - 1))
        for r in regs_of(args[1]) + regs_of(args[2]):
            if r in mf_w: need_ = max(need_, 8 - (clock[0] - mf_w[r] - 1))
    elif op.startswith('v_') or op.startswith('buffer_') or op.startswith('ds_'):
        for r in allr:
            if r in mf_w: need_ = max(need_, 8 - (clock[0] - mf_w[r] - 1))
        if op.startswith('v_'):
            for r in regs_of(args[0]):
                if r in mf_c: need_ = max(need_, 3 - (clock[0] - mf_c[r] - 1))
            for r in [r for a in args[1:] for r in regs_of(a)]:
                if r in tr_w: need_ = max(need_, 1 - (clock[0] - tr_w[r] - 1))
            for a in args[1:]:
                if a in sg_w: need_ = max(need_, 2 - (clock[0] - sg_w[a] - 1))
    return need_
def emit(line):
    if line.endswith(':'):
        e(line); return
    n = hazard(line)
    if n > 0:
        e(f'  s_nop {n-1}'); clock[0] += n
    op, args = parse(line)
    e(line)
    if op.startswith('v_mfma'):
        for r in regs_of(args[0]): mf_w[r] = clock[0]
        for r in regs_of(args[3]): mf_c[r] = clock[0]
    elif op.startswith('v_'):
        if args[0].startswith('s'): sg_w[args[0]] = clock[0]
        for r in regs_of(args[0]):
            va_w[r] = clock[0]; tr_w.pop(r, None)
            if op in ('v_exp_f32', 'v_rcp_f32'): tr_w[r] = clock[0]
    if op == 's_nop': clock[0] += int(args[0])
    clock[0] += 1

gates = set(); nxt = 0; done_uses = [0]*len(frags)
ops = []; landed = -1; half = [None]
fq = []
def buf_of(f): return ABUF + 4*(f % NB)
def issue_one():
    global nxt
    while True:
        if half[0] is not None:
            emit(half[0]); ops.append(nxt); half[0] = None; nxt += 1; return True
        if nxt >= len(frags): return False
        fr = frags[nxt]
        if fr['gate'] not in gates: return False
        if nxt >= NB and done_uses[nxt-NB] < frags[nxt-NB]['uses']: return False
        if not fr['reads']:
            nxt += 1; continue
        if len(ops) + len(fr['reads']) > (13 if TSM else 15): return False
        b = buf_of(nxt)
        rs = [r.format(d4=V(b), dlo=V(b, 2), dhi=V(b+2, 2)) for r in fr['reads']]
        emit(rs[0]); ops.append(nxt)
        if len(rs) == 2: half[0] = rs[1]
        else: nxt += 1
        return True
def wait_for(f, pair=True):
    global landed, ops
    if f is None or f <= landed: return
    while nxt <= f:
        n0 = nxt
        if not issue_one() and nxt == n0: raise RuntimeError(f'cannot issue frag {nxt}')
    if any(o <= f for o in ops):
        for _ in range(GROUP - 1):
            if pair and f + 1 < nxt and sum(1 for o in ops if o > f + 1) >= (PAIRMIN if len(frags[f]['reads']) == 1 else PAIRMIN2): f = f + 1
        n = sum(1 for o in ops if o > f)
        emit(f'  s_waitcnt lgkmcnt({n})')
        ops = [o for o in ops if o > f]
    landed = f
def sregs(tok):
    m = re.fullmatch(r's\[(\d+):(\d+)\]', tok)
    if m: return [-1 - r for r in range(int(m.group(1)), int(m.group(2)) + 1)]
    m = re.fullmatch(r's(\d+)', tok)
    return [-1 - int(m.group(1))] if m else []
def wr(l):
    op, args = parse(l)
    return set() if op.startswith('buffer_') else set(regs_of(args[0]) + sregs(args[0]))
def rdset(l):
    op, args = parse(l)
    return set(r for a in (args if op.startswith('buffer_') else args[1:]) for r in regs_of(a) + sregs(a))
def pick(pred):
    """first filler satisfying pred that does not depend on an earlier pending filler (window limited)"""
    W, R = set(), set()
    for i, l in enumerate(fq[:WINDOW]):
        if l.startswith('#'): continue
        if pred(l) and not (rdset(l) & W) and not (wr(l) & (W | R)) and hazard(l) <= 0: return i
        W |= wr(l); R |= rdset(l)
    return None
def is2(l): return 'v_exp' in l or 'v_rcp' in l
def isst(l): return 'buffer_store' in l
def gap(si, ent):
    while fq and fq[0].startswith('#'): fq.pop(0)
    cur = ent[2] if ent[2] is not None else landed
    nf = STREAM_NEXT.get(si)
    wnext = nf is not None and nf > landed                     # a wait will precede the next MFMA
    ahead = nxt - cur
    i = pick(isst)
    if i is not None and half[0] is None and ahead >= MINAHEAD:
        emit(fq.pop(i))
        i = pick(lambda l: not is2(l) and not isst(l))
        if i is not None: emit(fq.pop(i))
        return
    slots = 1 if wnext else 2
    nexp = sum(1 for l in fq if is2(l))
    # an exp takes a whole gap: while the ring is deep enough leave this gap to it
    if not wnext and half[0] is None and ahead >= EXPAHEAD:
        ready = [l for l in fq[:CVTWIN] if not l.startswith('#')]
        i = pick(is2) if any(is2(l) for l in ready) else None
        if i is not None:
            emit(fq.pop(i)); return
    if issue_one(): slots -= 1
    if (half[0] is not None or slots > 0 and (nexp or not fq or ahead < 6)) and issue_one(): slots -= 1
    if nexp > BACKLOG: slots = max(slots, 1 if pick(lambda l: not is2(l) and not isst(l)) is not None else 2)
    while slots > 0:
        i = pick(is2) if slots >= 2 else None
        if i is not None:
            emit(fq.pop(i)); slots -= 2; continue
        i = pick(lambda l: not is2(l) and not isst(l))
        if i is None: break
        emit(fq.pop(i)); slots -= 1
CVTWIN = opt('cvtwin', 6); WINDOW = opt('window', 16); MINAHEAD = opt('minahead', 5); EXPAHEAD = opt('expahead', 7)
nmf = [0]
BACKLOG = opt('backlog', 6); PAIRMIN = opt('pairmin', 4); PAIRMIN2 = opt('pairmin2', 8); GROUP = opt('group', 4)
STREAM_NEXT = {}
mi = [i for i, x in enumerate(stream) if x[0] == 'mfma']
for a_, b_ in zip(mi, mi[1:]): STREAM_NEXT[a_] = stream[b_][2]
for si in range(len(stream) - 1):
    a_, b_ = stream[si], stream[si+1]
    if a_[0] == 'cond' and b_[0] == 'cond' and a_[1][1:-1] == [BAR] and b_[1][1:-1] == [BAR] and a_[1][0].split()[0] != b_[1][0].split()[0]:
        stream[si] = ('raw', BAR); stream[si+1] = ('tag', 'nil')
for si, ent in enumerate(stream):
    k = ent[0]
    if k == 'raw': emit(ent[1])
    elif k == 'fill': fq.append(ent[1])
    elif k == 'flush':
        for l in fq:
            if not l.startswith('#'): emit(l)
        fq = []
    elif k == 'flush1':          # only the exp / pack work of tile 1
        own = set(range(ET+8, ET+20))
        keep = []
        for l in fq:
            if not l.startswith('#') and ((wr(l) | rdset(l)) & own or not ('v_exp' in l or 'v_cvt' in l)): emit(l)
            else: keep.append(l)
        fq = keep
    elif k == 'prio1':           # tile 1 work first from here on
        own = set(range(ET+8, ET+20))
        sm = lambda l: 'v_exp' in l or 'v_cvt' in l
        if all(l.startswith('#') or sm(l) for l in fq):
            fq = [l for l in fq if not l.startswith('#') and (wr(l) | rdset(l)) & own] + [l for l in fq if l.startswith('#') or not (wr(l) | rdset(l)) & own]
    elif k == 'tag': fq.append('#' + ent[1])
    elif k == 'flushto':
        if '#' + ent[1] in fq:
            i = fq.index('#' + ent[1])
            for l in fq[:i]:
                if not l.startswith('#'): emit(l)
            fq = fq[i+1:]
    elif k == 'gate':
        gates.add(ent[1])
        while issue_one(): pass
    elif k in ('need', 'needall'): wait_for(ent[1])
    elif k == 'plain': el(ent[1])
    elif k == 'cond':
        emit(ent[1][0]); el(ent[1][1:])          # only the branch itself counts as distance
    elif k == 'mfma':
        wait_for(ent[2])
        if nmf[0] in TSM and not SINGLE: e(ts_line())
        nmf[0] += 1
        emit(ent[1](buf_of(ent[2]) if ent[2] is not None else None))
        if ent[2] is not None: done_uses[ent[2]] += 1
        gap(si, ent)
'''
e(f'  s_cmp_eq_u32 s{sU}, 0'); e('  s_cbranch_scc1 MK_single')
SINGLE, TL, SFX = False, (1, 0), ''
exec(BODY)
e('MK_fin:')
if TS:
    e('  s_waitcnt vmcnt(0)')
    e(ts_line()); e('  s_memrealtime s[98:99]')
    e('  s_waitcnt lgkmcnt(0)')
    e(f'  s_lshl_b32 s{sT[0]}, s2, 3'); e(f'  s_add_u32 s{sT[0]}, s{sT[0]}, s{sW}'); e(f'  s_lshl_b32 s{sT[0]}, s{sT[0]}, 6')
    e(f'  s_add_u32 s{sT[0]}, s{sT[0]}, 0x100000')
    e('  v_mov_b32 v1, 0')
    for i in range(nts[0]):
        if i == 0: e(f'  v_mov_b32 v2, s{sTS}')
        else:
            e(f'  s_sub_u32 s{sT[1]}, s{sTS+2*i}, s{sTS}'); e(f'  v_mov_b32 v2, s{sT[1]}')
        e(f'  buffer_store_dword v2, v1, s[20:23], s{sT[0]} offen offset:{4*i}')
    e('  v_mov_b32 v2, s96'); e('  v_mov_b32 v3, s98')
    e(f'  buffer_store_dwordx2 v[2:3], v1, s[20:23], s{sT[0]} offen offset:56')
    print('timestamps', nts[0]); assert nts[0] <= 12
e('MK_done:')
e('  s_endpgm')
e('MK_single:')
SINGLE, TL, SFX = True, (1,), 's'
exec(BODY)
e('  s_branch MK_fin' if TS else '  s_endpgm')
for t, sfx in ((0, ''), (1, ''), (1, 's')):
    R = SACC[t]; vm, vt = RI[0], RI[1]
    e(f'FB{t}{sfx}:')
    e('  s_nop 7')
    e(f'  v_max3_f32 v{vm}, v{R}, v{R+1}, v{R+2}')
    for k in range(3, 31, 2): e(f'  v_max3_f32 v{vm}, v{vm}, v{R+k}, v{R+k+1}')
    e(f'  s_mov_b32 s{sT[6]}, 0xff7fffff')
    e(f'  v_max3_f32 v{vm}, v{vm}, v{R+31}, s{sT[6]}')
    for sw in ('v_permlane32_swap_b32', 'v_permlane16_swap_b32'):
        e(f'  v_mov_b32 v{vt}, v{vm}'); e('  s_nop 1'); e(f'  {sw} v{vm}, v{vt}'); e('  s_nop 1')
        e(f'  v_max_f32 v{vm}, v{vm}, v{vt}')
    for k in range(32): e(f'  v_sub_f32 v{R+k}, v{R+k}, v{vm}')
    for k in range(32): e(f'  v_exp_f32 v{R+k}, v{R+k}')
    e('  s_nop 0')
    for k in range(16): e(f'  v_cvt_pk_bf16_f32 v{PREG[t]+k}, v{R+2*k}, v{R+2*k+1}')
    e('  s_nop 1')
    for kt in range(4): e(mfma(SUM[t], ONES, PREG[t]+4*kt, None if kt == 0 else SUM[t]))
    if t == 0:
        for c0 in (0, 6):
            e('  s_waitcnt lgkmcnt(0)')
            for ct in range(c0, c0 + 6):
                b = R + 4*(ct - c0)
                for r in pv_reads(PVO[0], ct): e(r.format(dlo=V(b, 2), dhi=V(b+2, 2)))
            e('  s_waitcnt lgkmcnt(0)')
            for ct in range(c0, c0 + 6): e(mfma(YACC[0][ct], R + 4*(ct - c0), PREG[0]+4*PVO[0], None))
    e('  s_nop 7')
    e(f'  s_branch FBR{t}{sfx}')
e('MK_end:')
e('.section .rodata,"a"')
e('.p2align 6'); e(f'.amdhsa_kernel {KN}')
e('  .amdhsa_next_free_vgpr 256'); e('  .amdhsa_next_free_sgpr 102'); e('  .amdhsa_accum_offset 256')
e('  .amdhsa_group_segment_fixed_size 0'); e('  .amdhsa_kernarg_size 48'); e('  .amdhsa_user_sgpr_count 2')
e('  .amdhsa_user_sgpr_kernarg_segment_ptr 1'); e('  .amdhsa_system_sgpr_workgroup_id_x 1')
e('.end_amdhsa_kernel')
if 'drop' in OPT:
    kinds = OPT['drop'].split(',')
    i0 = next(i for i, l in enumerate(L) if 'MK_np4:' in l)
    out = []; n = 0
    for i, l in enumerate(L):
        body = i > i0
        if 'mM' in kinds and not body and 'v_mfma' in l: l = '  s_nop 3'
        if 'exp' in kinds and 'v_exp' in l: l = l.replace('v_exp_f32', 'v_mov_b32')
        if 'lds' in kinds and body and 'ds_read_b128' in l:
            l = re.sub(r'ds_read_b128 v\[(\d+):\d+\]', lambda m: f'ds_read_b32 v{m.group(1)}', l)
        if 'tr' in kinds and body and 'ds_read_b64_tr' in l:
            l = re.sub(r'ds_read_b64_tr_b16 v\[(\d+):\d+\], v\d+', lambda m: f'ds_read_b32 v{m.group(1)}, v{vL0}', l)
        if 'mfma' in kinds and body and 'v_mfma' in l:
            n += 1
            if n % 2: l = '  s_nop 3'
        if 'nslab' in kinds and RWO in l and 'buffer_load' in l: l = '  s_nop 0'
        if 'nwv' in kinds and f'v{vNA}, {RW}' in l: l = '  s_nop 0'
        if 'ncomp' in kinds and 's_cbranch_scc1 MK_np2' in l: l = '  s_branch MK_np2'
        if 'st' in kinds and 'buffer_store_dwordx4' in l: l = '  s_nop 0'
        out.append(l)
    L = out
open(OUTF, 'w').write('\n'.join(L) + '\n')
```

```python
import sys, struct, math, re
OPT = dict(a.split('=') if '=' in a else (a, '1') for a in sys.argv[1:])
OUTF = OPT.get('out', 'standalone__neighborhood_nat__vision.s')
TS = 'ts' in OPT
TSM = [int(x) for x in OPT['tsm'].split(',')] if 'tsm' in OPT else []
TSP = 'tsp' in OPT
def opt(k, d): return int(OPT.get(k, d))
L = []
def e(s): L.append(s)
def el(ls):
    for l in ls: L.append(l)

X_BYTES = 19267584
WS_BYTES = 268435456
XB = 10240
ROW = 7680
HALF = 36864
NHI = XB + 12*ROW
WOL = 147456
SCALE = struct.unpack('<I', struct.pack('<f', (192 ** -0.5) * math.log2(math.e)))[0]
NT = ' nt' if 'nt' in OPT else ''
NCT = 2
NSC = '' if 'nplain' in OPT else ' sc1'
NTO = ' ' + OPT.get('st', 'nt+sc1').replace('+', ' ')
KN = 'standalone__neighborhood_nat__vision_kernel'

hdr = open('standalone__neighborhood_nat__vision.s.ref').read().split('\n')
for ln in hdr:
    if ln.startswith('; @launch'): break
    e(ln)
e('; @launch grid=(256,1,1) block=(512,1,1) lds=163840')
e('.amdgcn_target "amdgcn-amd-amdhsa--gfx950"')
e('.text')

def srd(d, b, n):
    return [f'  s_mov_b32 s{d}, s{b}', f'  s_and_b32 s{d+1}, s{b+1}, 0xffff', f'  s_mov_b32 s{d+2}, {n}', f'  s_mov_b32 s{d+3}, 0x00020000']
def V(a, n=4): return f'v[{a}:{a+n-1}]'
def mfma(d, a, b, c):
    cs = '0' if c is None else V(c)
    return f'  v_mfma_f32_16x16x32_bf16 {V(d)}, {V(a)}, {V(b)}, {cs}'

vL0, vL1 = 1, 2
vO = (5, 6)
vSe, vSo = 7, 8
vP = (9, 10, 11, 12)
vD = (13, 14, 3, 4)
PB0 = (15, 16, 17, 18)
vCT = 19
SB0 = (20, 0)
vRR = (21, 22)
RI = (22, 23)
SACC = (24, 56); QP = 88; XQ = 136; ACC = 184
ABUF = 216; NB = 10
PREG = (136, 152)
YB = ([140, 144, 148, 152, 36, 40], [156, 160, 164, 24, 28, 32])
YACC = ([56+4*i for i in range(8)] + [168+4*i for i in range(4)], [88+4*i for i in range(12)])
SUM = (184, 188); ONES = 192; ET = 196
OUTR = 88; NREG = 104
MACC = 24; MPK = 104
vWA = 96; vMA, vMB, vMW = (97, 98), (99, 100), (101, 102, 103)
vn, vg, tA, tB, tC, tD = 128, 129, 130, 131, 132, 133
vNB, vNA = 134, 135
QA = (134, 135); vQR = 23
CH = (0, 49152, 98304)
SO = 73728
sQR = (84, 85, 86, 87); sST = 101
sW, sU, sH, sPR, sPC, sKR, sKC, sXB, sGS, sGmin = range(24, 34)
sA2, sR0, sD0, sTR, sM0X, sM0X3, sW4, sWL = range(34, 42)
sINV = (42, 44)
sT = list(range(46, 60))
sMR, sAR, sMC, sAC = sT[10], sT[11], sT[12], sT[13]
sTS = 60
sPROD, sWB, sSC, sVO = 3, 92, 93, 100
RX, RO, RWS, RW, RWO, RDB = 's[12:15]', 's[16:19]', 's[20:23]', 's[88:91]', 's[4:7]', 's[8:11]'
MSK = f's[{sT[6]}:{sT[7]}]'
assert sT[6] % 2 == 0 and sT[2] % 2 == 0

nts = [0]
def ts_line():
    s = f'  s_memtime s[{sTS+2*nts[0]}:{sTS+2*nts[0]+1}]'; nts[0] += 1; return s
def tsp():
    if TSP: e(ts_line())

e(f'.globl {KN}'); e('.p2align 8'); e(f'.type {KN},@function'); e(f'{KN}:')
e('  s_cmp_ge_u32 s2, 256'); e('  s_cbranch_scc1 MK_done')
if TS: e(ts_line()); e('  s_memrealtime s[96:97]')
e('  s_load_dwordx8 s[4:11], s[0:1], 0')
e('  s_load_dwordx4 s[84:87], s[0:1], 32')
if 'nopf' not in OPT:
    e('  s_getpc_b64 s[12:13]'); e('MK_pc:')
    e('  s_and_b32 s13, s13, 0xffff'); e('  s_mov_b32 s14, MK_end-MK_pc'); e('  s_mov_b32 s15, 0x00020000')
    PFS = opt('pfs', 5)
    e(f'  v_lshlrev_b32 v23, {7 + PFS}, v0'); e(f'  s_bfe_u32 s3, s2, {(PFS << 16) | 3}'); e('  s_lshl_b32 s3, s3, 7')
    e('  buffer_load_dword v255, v23, s[12:15], s3 offen')
e(f'  v_lshrrev_b32 v{tA}, 6, v0')
e('  v_and_b32 v0, 63, v0')
e(f'  v_readfirstlane_b32 s{sW}, v{tA}')
e(f'  v_and_b32 v{vn}, 15, v0'); e(f'  v_lshrrev_b32 v{vg}, 4, v0')
e(f'  v_lshrrev_b32 v{tA}, 5, v0'); e(f'  v_bfe_u32 v{tB}, v0, 3, 2'); e(f'  v_lshl_add_u32 v{tA}, v{tA}, 3, v{tB}')
e(f'  v_mul_u32_u24 v{tA}, 1152, v{tA}')
e(f'  s_and_b32 s{sH}, s{sW}, 1')
e(f'  s_lshl_b32 s{sT[0]}, s{sH}, 2')
e(f'  v_add_u32 v{tB}, s{sT[0]}, v{vg}'); e(f'  v_and_b32 v{tC}, 7, v0'); e(f'  v_xor_b32 v{tB}, v{tB}, v{tC}')
e(f'  v_lshl_add_u32 v{vWA}, v{tB}, 4, v{tA}')
e(f'  s_lshr_b32 s{sT[0]}, s{sW}, 2'); e(f'  s_lshl_b32 s{sT[0]}, s{sT[0]}, 5')
e(f'  s_lshl_b32 s{sT[1]}, s{sH}, 4'); e(f'  s_add_u32 s{sT[0]}, s{sT[0]}, s{sT[1]}')
e(f'  s_and_b32 s{sT[1]}, s{sW}, 2'); e(f'  s_lshl_b32 s{sT[1]}, s{sT[1]}, 1'); e(f'  s_add_u32 s{sT[0]}, s{sT[0]}, s{sT[1]}')
e(f'  s_mul_i32 s{sWB}, s{sT[0]}, 1152')
e(f'  s_lshl_b32 s{sWL}, s{sW}, 10')
e(f'  s_cmp_lt_u32 s{sW}, 4'); e('  s_cselect_b64 vcc, -1, 0')
EARLY_AT = len(L)
e(f'  s_bfe_u32 s{sPR}, s2, 0x10002')
e(f'  s_bfe_u32 s{sPC}, s2, 0x10001')
e(f'  s_and_b32 s{sKR}, s2, 1'); e(f'  s_lshl_b32 s{sKR}, s{sKR}, 2')
e(f'  s_lshr_b32 s{sT[0]}, s2, 6'); e(f'  s_add_u32 s{sKR}, s{sKR}, s{sT[0]}')
e(f'  s_bfe_u32 s{sKC}, s2, 0x30003')
e(f'  s_mul_i32 s{sTR}, s{sKR}, 14'); e(f'  s_add_i32 s{sTR}, s{sTR}, -6'); e(f'  s_max_i32 s{sKR}, s{sTR}, -4')
e(f'  s_mul_i32 s{sKC}, s{sKC}, 14'); e(f'  s_add_i32 s{sKC}, s{sKC}, -6')
e(f'  s_lshr_b32 s{sU}, s{sW}, 1'); e(f'  s_add_u32 s{sU}, s{sU}, 2'); e(f'  s_and_b32 s{sU}, s{sU}, 3')
e(f'  s_sub_u32 s{sMR}, 0, s{sPR}'); e(f'  s_mul_i32 s{sAR}, s{sPR}, 224')
e(f'  s_sub_u32 s{sMC}, 0, s{sPC}'); e(f'  s_mul_i32 s{sAC}, s{sPC}, 224')
e(f'  v_and_b32 v{tA}, 7, v{vn}')
e(f'  s_mul_i32 s{sT[0]}, s{sH}, 7'); e(f'  s_add_i32 s{sT[0]}, s{sT[0]}, s{sKC}')
e(f'  v_cmp_lt_u32 s[{sT[2]}:{sT[3]}], 6, v{tA}')
e(f'  v_add_u32 v{tA}, s{sT[0]}, v{tA}')
e(f'  v_max_i32 v{vCT}, 0, v{tA}')
e(f'  v_add3_u32 v{tA}, v{tA}, v{vCT}, 6')
e(f'  v_xor_b32 v{tA}, s{sMC}, v{tA}'); e(f'  v_add_u32 v{tA}, s{sAC}, v{tA}')
e(f'  v_subrev_u32 v{vCT}, s{sKC}, v{vCT}')
e(f'  v_mul_u32_u24 v{tA}, 384, v{tA}'); e(f'  v_lshl_add_u32 v{tA}, v{vg}, 4, v{tA}')
e(f'  s_lshl_b32 s{sT[0]}, s{sU}, 2'); e(f'  s_add_i32 s{sT[0]}, s{sT[0]}, -2')
e(f'  s_mov_b32 s{sT[1]}, 86016')
e(f'  v_lshrrev_b32 v{tB}, 3, v{vn}'); e(f'  v_add_u32 v{tB}, s{sT[0]}, v{tB}')
e(f'  v_mov_b32 v{tC}, 0x80000000')
for t in range(2):
    if t: e(f'  v_add_u32 v{tB}, 2, v{tB}')
    e(f'  v_cmp_gt_i32 s[{sINV[t]}:{sINV[t]+1}], 0, v{tB}')
    e(f'  v_add_u32 v{vO[t]}, s{sTR}, v{tB}')
    e(f'  v_max_i32 v{vRR[t]}, 0, v{vO[t]}')
    e(f'  v_add3_u32 v{vO[t]}, v{vO[t]}, v{vRR[t]}, 6')
    e(f'  s_or_b64 s[{sINV[t]}:{sINV[t]+1}], s[{sINV[t]}:{sINV[t]+1}], s[{sT[2]}:{sT[3]}]')
    e(f'  v_xor_b32 v{vO[t]}, s{sMR}, v{vO[t]}'); e(f'  v_add_u32 v{vO[t]}, s{sAR}, v{vO[t]}')
    e(f'  v_subrev_u32 v{vRR[t]}, s{sKR}, v{vRR[t]}')
    e(f'  v_mad_u32_u24 v{vO[t]}, v{vO[t]}, s{sT[1]}, v{tA}')
    e(f'  v_cndmask_b32 v{vRR[t]}, v{vRR[t]}, v{tC}, s[{sINV[t]}:{sINV[t]+1}]')
    e(f'  v_cndmask_b32 v{vO[t]}, v{vO[t]}, v{tC}, s[{sINV[t]}:{sINV[t]+1}]')

e('  s_waitcnt lgkmcnt(0)')
tsp()
el(srd(88, 6, 192*576*2))
if 'notlb' not in OPT:
    e(f'  s_cmp_lg_u32 s{sW}, 5'); e('  s_cbranch_scc1 MK_ntlb')
    e(f'  s_max_i32 s{sT[0]}, s{sTR}, 0'); e(f'  s_lshl_b32 s{sT[0]}, s{sT[0]}, 1'); e(f'  s_sub_u32 s{sT[1]}, 184, s{sT[0]}')
    e(f'  s_cmp_eq_u32 s{sPR}, 0'); e(f'  s_cselect_b32 s{sT[0]}, s{sT[0]}, s{sT[1]}'); e(f'  s_mul_i32 s{sT[0]}, s{sT[0]}, 86016')
    for k in range(3):
        e(f'  s_load_dword s94, s[4:5], s{sT[0]}')
        if 'tlball' in OPT: e(f'  s_load_dword s95, s[10:11], s{sT[0]}')
        if k < 2: e(f'  s_add_u32 s{sT[0]}, s{sT[0]}, {20*86016 - 64}')
    if 'tlball' in OPT: e(f'  s_load_dword s94, s[84:85], 128'); e(f'  s_load_dword s95, s[86:87], 0x20000')
    e('MK_ntlb:')

def w_pieces(c, partner=0):
    return [[f'  s_add_i32 m0, s{sWL}, {CH[c] + mat*24576 + j*8192 + partner*4096}',
             f'  s_add_i32 s{sVO}, s{sWB}, {(j*64 + partner*32)*1152 + mat*384 + c*128}',
             f'  buffer_load_dwordx4 v{vWA}, {RW}, s{sVO} offen lds'] for mat in range(2) for j in range(3)]
def q_loads():
    return [f'  buffer_load_dwordx4 {V(XQ+24*t+4*s_)}, v{vO[t]}, {RX}, 0 offen offset:{64*s_}{NT}' for t in (1, 0) for s_ in range(6)]
def q_stage():
    return [[f'  s_add_u32 m0, s{sST}, {(1-t)*24576 + (3*qr + l)*1024 - 128*l}', '  s_nop 0',
             f'  buffer_load_dwordx4 v{QA[qr]}, {RX}, s{sQR[2*t+qr]} offen offset:{128*l}{NT} lds'] for t in (1, 0) for qr in range(2) for l in range(3)]
def q_reads():
    return ([f'  v_xor_b32 v{tA}, 64, v{vQR}'] +
            [f'  ds_read_b128 {V(XQ+24*t+4*s_)}, v{(vQR, tA)[s_ % 2]} offset:{(1-t)*24576 + 1024*(s_//2)}' for t in range(2) for s_ in range(6)])
SCH = {'O': OPT.get('so', 'A:W0+V0,0:W2+V2,4:q6,Z:q6'), 'Y': OPT.get('sy', 'C:W1+V1,1:q4,2:q4,3:q4')}
PLAN = {}; ISS = {'O': [], 'Y': []}
for r_, sp in SCH.items():
    qi = 0
    for part in sp.split(','):
        pos, items = part.split(':')
        for it in items.split('+'):
            lst = PLAN.setdefault((r_, pos), [])
            if it[0] == 'W': lst += [(f'W{it[1]}', p) for p in w_pieces(int(it[1]))]
            elif it[0] == 'V': lst += [(f'W{it[1]}', p) for p in w_pieces(int(it[1]), 1 if r_ == 'O' else -1)]
            elif it in 'pr':
                assert pos == 'A'
                lst.append(('t', [f'  v_min_u32 v253, 2, v{vg}', f'  v_mad_u32_u24 v253, v253, s{sT[8]}, v{vO[1 if it == "p" else 0]}',
                                  f'  buffer_load_dword v{252 if it == "p" else 251}, v253, {RX}, 0 offen']))
            else:
                for _ in range(int(it[1:])):
                    if r_ == 'Y' and qi >= 6: lst.append(('b', [f'  s_cmp_eq_u32 s{sU}, 0', f'  s_cbranch_scc1 QB{qi}', q_loads()[qi], f'QB{qi}:']))
                    elif r_ == 'O': lst.append(('q', q_stage()[qi])); assert pos in ('34Z' if qi < 6 else 'Z') and opt('sya', 0) == 0
                    else: lst.append(('q', [q_loads()[qi]]))
                    qi += 1
    assert qi == 12
lbl = [0]
def role_lines(r_, lines):
    lbl[0] += 1
    return [f'  s_cbranch_vcc{"z" if r_ == "O" else "nz"} SL{lbl[0]}'] + list(lines) + [f'SL{lbl[0]}:']
def role2_lines(lo, ly):
    lbl[0] += 1; n = lbl[0]
    return [f'  s_cbranch_vccz SL{n}'] + list(lo) + [f'  s_branch SM{n}', f'SL{n}:'] + list(ly) + [f'SM{n}:']
def sched_items(pos):
    o, y = list(PLAN.get(('O', pos), [])), list(PLAN.get(('Y', pos), []))
    out = []
    while o or y: out.append((o.pop(0) if o else None, y.pop(0) if y else None))
    return out
def emit_item(it):
    o, y = it
    if o: ISS['O'].append(o[0])
    if y: ISS['Y'].append(y[0])
    if o and y and o == y: el(o[1])
    elif o and y: el(role2_lines(o[1], y[1]))
    elif o: el(role_lines('O', o[1]))
    else: el(role_lines('Y', y[1]))
def emit_pos(pos):
    o, y = PLAN.get(('O', pos), []), PLAN.get(('Y', pos), [])
    k = 0
    while k < len(o) and k < len(y) and o[k] == y[k]: emit_item((o[k], y[k])); k += 1
    for r_, x in (('O', o[k:]), ('Y', y[k:])):
        if x:
            ISS[r_] += [i[0] for i in x]; el(role_lines(r_, sum((i[1] for i in x), [])))
def after(r_, tag):
    l = ISS[r_]
    if tag not in l: return len(l) if tag == 'W0' else 63
    return min(63, len(l) - 1 - max(i for i, t in enumerate(l) if t == tag))

W_AT = len(L)
if 'nowpf' not in OPT:
    WPW = opt('wpw', 2)
    e(f'  s_lshr_b32 s{sT[0]}, s{sW}, 1'); e(f'  s_cmp_lg_u32 s{sT[0]}, {WPW // 2}'); e('  s_cbranch_scc1 MK_nwpf')
    e(f'  s_cmp_eq_u32 s{sW}, {WPW}'); e(f'  s_cselect_b32 s{sT[0]}, 54, 18')
    e('  s_cselect_b32 s12, s6, s8'); e('  s_cselect_b32 s13, s7, s9'); e('  s_and_b32 s13, s13, 0xffff')
    e(f'  s_lshr_b32 s{sT[1]}, s2, 3'); e(f'  s_mul_i32 s{sT[1]}, s{sT[1]}, s{sT[0]}'); e(f'  s_lshl_b32 s{sVO}, s{sT[1]}, 7')
    e(f'  s_lshl_b32 s{sT[0]}, s{sT[0]}, 7'); e(f'  s_add_u32 s14, s{sVO}, s{sT[0]}'); e('  s_mov_b32 s15, 0x00020000')
    e('  v_lshlrev_b32 v23, 7, v0')
    e(f'  buffer_load_dword v254, v23, s[12:15], s{sVO} offen')
    e('MK_nwpf:')
WPF = []
if 'latewpf' not in OPT:
    WPF = L[W_AT:]; del L[W_AT:]
el(srd(12, 4, X_BYTES))
e(f'  s_movk_i32 s{sT[8]}, 112')
if 'noearly' in OPT: emit_pos('A')
else:
    assert ('Y', 'A') not in PLAN
    it = PLAN[('O', 'A')]; ISS['O'] += [i[0] for i in it]
    L[EARLY_AT:EARLY_AT] = role_lines('O', ['  s_waitcnt lgkmcnt(0)'] + WPF + srd(88, 6, 192*576*2) + sum((i[1] for i in it), []))
tsp()
el(srd(16, 10, X_BYTES)); el(srd(4, 8, 192*192*2)); el(srd(8, 84, 256)); el(srd(20, 86, WS_BYTES if TS else 73728))
e(f'  v_lshlrev_b32 v{vL0}, 4, v0')
e(f'  v_add_u32 v{vL1}, {HALF}, v{vL0}')
e(f'  s_and_b32 s{sW4}, s{sW}, 3'); e(f'  s_lshl_b32 s{sW4}, s{sW4}, 10')
e(f'  v_bfe_u32 v{tA}, v{vn}, 1, 3'); e(f'  v_xor_b32 v{tA}, v{tA}, v{vg}')
e(f'  v_lshlrev_b32 v{tB}, 7, v{vn}'); e(f'  v_lshl_add_u32 v{tB}, v{tA}, 4, v{tB}')
e(f'  s_lshr_b32 s{sT[0]}, s{sW}, 2'); e(f'  s_mul_i32 s{sT[1]}, s{sT[0]}, {6*2048}'); e(f'  s_add_u32 s{sT[1]}, s{sT[1]}, {CH[0]}')
e(f'  v_add_u32 v{vMA[0]}, s{sT[1]}, v{tB}'); e(f'  v_xor_b32 v{vMA[1]}, 64, v{vMA[0]}')
e(f'  s_mul_i32 s{sT[1]}, s{sW4}, 6'); e(f'  s_add_u32 s{sT[1]}, s{sT[1]}, {24576 + CH[0]}')
e(f'  v_add_u32 v{vMB[0]}, s{sT[1]}, v{tB}'); e(f'  v_xor_b32 v{vMB[1]}, 64, v{vMB[0]}')
F = []; f_ = F.append
f_(f'  s_lshr_b32 s{sT[0]}, s{sW}, 2'); f_(f'  s_mul_i32 s{sT[0]}, s{sT[0]}, 3072'); f_(f'  s_mul_i32 s{sT[1]}, s{sW4}, 18')
f_(f'  s_add_u32 s{sT[0]}, s{sT[0]}, s{sT[1]}'); f_(f'  s_sub_u32 s{sT[0]}, {(71-14)*1024}, s{sT[0]}')
f_(f'  v_add_u32 v{vMW[0]}, s{sT[0]}, v{vL0}')
f_(f'  s_lshl_b32 s{sT[0]}, s{sKR}, 1'); f_(f'  s_xor_b32 s{sT[0]}, s{sT[0]}, s{sMR}')
f_(f'  s_mul_i32 s{sT[1]}, s{sPR}, 222'); f_(f'  s_add_i32 s{sXB}, s{sT[0]}, s{sT[1]}')
f_(f'  s_mul_i32 s{sXB}, s{sXB}, 86016')
f_(f'  s_mul_i32 s{sGS}, s{sPR}, {-2*344064}'); f_(f'  s_add_i32 s{sGS}, s{sGS}, 344064')
f_(f'  s_lshr_b32 s{sGmin}, s{sKR}, 31'); f_(f'  s_lshl_b32 s{sGmin}, s{sGmin}, 1')
f_(f'  s_lshl_b32 s{sM0X}, s{sW4}, 2')
f_(f'  s_add_u32 s{sM0X3}, s{sM0X}, 3072'); f_(f'  s_min_u32 s{sM0X3}, s{sM0X3}, {14*1024}')
f_(f'  s_mul_i32 s{sT[2]}, s{sPR}, 172032'); f_(f'  s_sub_u32 s{sT[3]}, 172032, s{sT[2]}')
f_(f'  v_mov_b32 v{tC}, s{sT[2]}'); f_(f'  v_mov_b32 v{tD}, s{sT[3]}')
for b in range(960): assert (b * 2731) >> 16 == b // 24
for j in range(4):
    d = vD[j]
    if j < 3:
        f_(f'  s_lshr_b32 s{sT[0]}, s{sM0X}, 4'); f_(f'  s_add_u32 s{sT[0]}, s{sT[0]}, {64*j}')
    else: f_(f'  s_lshr_b32 s{sT[0]}, s{sM0X3}, 4')
    f_(f'  v_add_u32 v{tA}, s{sT[0]}, v0')
    f_(f'  v_mul_u32_u24 v{d}, 2731, v{tA}'); f_(f'  v_lshrrev_b32 v{d}, 16, v{d}')
    f_(f'  v_cmp_le_u32 {MSK}, 20, v{d}')
    f_(f'  v_mul_u32_u24 v{tB}, 24, v{d}'); f_(f'  v_sub_u32 v{tA}, v{tA}, v{tB}')
    f_(f'  v_subrev_u32 v{tB}, 20, v{d}')
    f_(f'  v_cndmask_b32 v{d}, v{d}, v{tB}, {MSK}')
    f_(f'  v_bfe_u32 v{tB}, v{d}, 1, 3'); f_(f'  v_xor_b32 v{tA}, v{tA}, v{tB}')
    f_(f'  v_cndmask_b32 v{tB}, v{tC}, v{tD}, {MSK}')
    f_(f'  v_lshl_add_u32 v{tA}, v{tA}, 4, v{tB}')
    f_(f'  v_add_u32 v{d}, s{sKC}, v{d}'); f_(f'  v_max_i32 v{d}, 0, v{d}'); f_(f'  v_lshlrev_b32 v{d}, 1, v{d}')
    f_(f'  v_xor_b32 v{d}, s{sMC}, v{d}'); f_(f'  v_add_u32 v{d}, s{sAC}, v{d}')
    f_(f'  v_mul_u32_u24 v{d}, 384, v{d}'); f_(f'  v_add_u32 v{d}, v{d}, v{tA}')
f_(f'  s_add_u32 s{sM0X}, s{sM0X}, {XB}'); f_(f'  s_add_u32 s{sM0X3}, s{sM0X3}, {XB}')
F_ROWS = len(F) + 2
for dst, add in ((sT[0], -2), (sA2, 0)):
    f_(f'  s_lshl_b32 s{dst}, s{sU}, 2')
    if add: f_(f'  s_add_i32 s{dst}, s{dst}, {add}'); f_(f'  s_max_i32 s{dst}, s{dst}, 0')
    f_(f'  s_add_i32 s{dst}, s{dst}, s{sTR}'); f_(f'  s_max_i32 s{dst}, s{dst}, 0'); f_(f'  s_sub_i32 s{dst}, s{dst}, s{sKR}')
f_(f'  s_sub_u32 s{sT[0]}, s{sA2}, s{sT[0]}'); f_(f'  s_lshr_b32 s{sT[0]}, s{sT[0]}, 1')
f_(f'  s_mul_i32 s{sD0}, s{sT[0]}, -8'); f_(f'  s_add_i32 s{sD0}, s{sD0}, 7')
f_(f'  s_add_i32 s{sA2}, s{sA2}, -1')
f_(f'  s_add_i32 s{sR0}, s{sA2}, s{sD0}'); f_(f'  s_mul_i32 s{sD0}, s{sD0}, {ROW}')
f_(f'  s_lshl_b32 s{sT[1]}, s{sH}, 2')
f_(f'  s_mul_i32 s{sT[0]}, s{sA2}, {ROW}'); f_(f'  s_add_i32 s{sT[0]}, s{sT[0]}, {XB}')
f_(f'  v_add_u32 v{tA}, s{sT[1]}, v{vn}')
f_(f'  v_bfe_u32 v{tB}, v{tA}, 1, 3'); f_(f'  v_xor_b32 v{tB}, v{tB}, v{vg}')
f_(f'  v_mul_u32_u24 v{tA}, 384, v{tA}'); f_(f'  v_lshl_add_u32 v{tA}, v{tB}, 4, v{tA}')
f_(f'  v_add_u32 v{vSe}, s{sT[0]}, v{tA}'); f_(f'  v_xor_b32 v{vSo}, 64, v{vSe}')
f_(f'  v_lshrrev_b32 v{tA}, 2, v{vn}'); f_(f'  v_lshl_add_u32 v{tA}, v{vg}, 2, v{tA}'); f_(f'  v_add_u32 v{tA}, s{sT[1]}, v{tA}')
f_(f'  v_bfe_u32 v{tB}, v{tA}, 1, 3')
f_(f'  v_and_b32 v{tC}, 2, v{vn}'); f_(f'  v_lshlrev_b32 v{tC}, 1, v{tC}'); f_(f'  v_xor_b32 v{tB}, v{tB}, v{tC}')
f_(f'  v_mul_u32_u24 v{tA}, 384, v{tA}'); f_(f'  v_lshl_add_u32 v{tA}, v{tB}, 4, v{tA}')
f_(f'  v_and_b32 v{tB}, 1, v{vn}'); f_(f'  v_lshl_add_u32 v{tA}, v{tB}, 3, v{tA}')
f_(f'  v_add_u32 v{vP[0]}, s{sT[0]}, v{tA}')
for k in range(1, 4): f_(f'  v_xor_b32 v{vP[k]}, {16*k}, v{vP[0]}')
f_(f'  v_lshl_add_u32 v{tA}, v{vg}, 2, s{sT[1]}'); f_(f'  v_sub_u32 v{vCT}, v{tA}, v{vCT}')
f_(f'  v_cndmask_b32 v{vCT}, v{vCT}, 64, s[{sINV[1]}:{sINV[1]+1}]')
f_(f'  v_add_u32 v{SB0[0]}, s{sD0}, v{vSe}'); f_(f'  v_add_u32 v{SB0[1]}, s{sD0}, v{vSo}')
for k in range(4): f_(f'  v_add_u32 v{PB0[k]}, s{sD0}, v{vP[k]}')
f_(f'  s_mov_b32 s{sSC}, {SCALE}')
o2 = [f'  v_lshrrev_b32 v{tD}, 4, v{vL0}', f'  v_lshrrev_b32 v{tA}, 3, v{tD}', f'  s_mul_i32 s{sT[4]}, s{sH}, 7', f'  s_add_i32 s{sT[4]}, s{sT[4]}, s{sKC}',
      f'  v_cmp_lt_u32 {MSK}, 6, v{tA}', f'  v_add_u32 v{tA}, s{sT[4]}, v{tA}', f'  v_max_i32 v{tB}, 0, v{tA}', f'  v_add3_u32 v{tA}, v{tA}, v{tB}, 6',
      f'  v_xor_b32 v{tA}, s{sMC}, v{tA}', f'  v_add_u32 v{tA}, s{sAC}, v{tA}', f'  v_mul_u32_u24 v{tA}, 384, v{tA}',
      f'  v_and_b32 v{tB}, 7, v{tD}', f'  v_xor_b32 v{tB}, v{tB}, v{vg}', f'  v_lshl_add_u32 v{tA}, v{tB}, 4, v{tA}', f'  v_mov_b32 v{tB}, 0x80000000',
      f'  v_cndmask_b32 v{QA[0]}, v{tA}, v{tB}, {MSK}', f'  v_xor_b32 v{QA[1]}, 64, v{QA[0]}',
      f'  s_lshl_b32 s{sT[0]}, s{sU}, 2', f'  s_add_i32 s{sT[0]}, s{sT[0]}, s{sTR}']
for k in range(4):
    d = sQR[k]
    o2 += [f'  s_lshl_b32 s{d}, s{sT[0]}, 1', f'  s_add_i32 s{d}, s{d}, {2*(k-2) + 6}', f'  s_xor_b32 s{d}, s{d}, s{sMR}', f'  s_add_i32 s{d}, s{d}, s{sAR}', f'  s_mul_i32 s{d}, s{d}, 86016']
o2 += [f'  s_mul_i32 s{sST}, s{sW4}, 6', f'  s_add_u32 s{sST}, s{sST}, {SO}',
       f'  v_bfe_u32 v{tA}, v{vn}, 1, 3', f'  v_xor_b32 v{tA}, v{tA}, v{vg}', f'  v_lshlrev_b32 v{tB}, 7, v{vn}', f'  v_lshl_add_u32 v{tB}, v{tA}, 4, v{tB}',
       f'  v_lshrrev_b32 v{tA}, 3, v{vn}', f'  v_lshl_add_u32 v{tA}, v{tA}, 11, v{tB}', f'  v_add_u32 v{vQR}, s{sST}, v{tA}']
OLATE = opt('olate', 2)
F.insert(0, f'  v_mov_b32 v{vNB}, 0'); F.insert(0, f'  v_mov_b32 v{vNA}, 0')
if OLATE == 0: F += role_lines('O', o2); o2 = []
NPRE = opt('npre', 999)
NB1 = opt('nb1', 8)
el(F[:NB1]); emit_pos('B')
if OLATE == 2:
    assert NB1 in (2, 8)
    el(role2_lines([f'  v_mov_b32 v{r}, 0' for r in vD], F[NB1:])); o2 = F[NB1:] + o2
elif OLATE == 3:
    el(F[NB1:F_ROWS]); el(role_lines('Y', F[F_ROWS:])); o2 = F[F_ROWS:] + o2
elif OLATE == 4:
    el(role2_lines([f'  v_mov_b32 v{r}, 0' for r in vD], F[NB1:])); o3 = F[NB1:F_ROWS]; o2 = F[F_ROWS:] + o2
else: el(F[NB1:])
F = []

def dma_x(G):
    out = []
    if G < 2: out += [f'  s_max_u32 s{sVO}, s{sGmin}, {G}', f'  s_mul_i32 s{sVO}, s{sVO}, s{sGS}']
    else: out.append(f'  s_mul_i32 s{sVO}, s{sGS}, {G}')
    out.append(f'  s_add_i32 s{sVO}, s{sVO}, s{sXB}')
    for j in range(4):
        out.append(f'  s_add_u32 m0, s{sM0X}, {G*15360 + j*1024}' if j < 3 else f'  s_add_u32 m0, s{sM0X3}, {G*15360}')
        out.append('  s_nop 0')
        out.append(f'  buffer_load_dwordx4 v{vD[j]}, {RX}, s{sVO} offen{NT} lds')
    return out
def dma_xs(Gs): return sum((dma_x(G) for G in Gs), [])
SPECIAL = [(1, 7), (1, 0), (0, 7), (0, 1), (0, 0)]
def bias_init(tmp, MID, TL):
    out = []; o = out.append
    ninf, tt = tmp, tmp+1
    sp = [x for x in SPECIAL if x[0] in TL]
    o(f'  v_mov_b32 v{ninf}, 0xff800000')
    for i in range(4): o(f'  v_add_u32 v{tt+i}, {i}, v{vCT}')
    for i in range(4): o(f'  v_cmp_gt_u32 s[{sT[2+2*i]}:{sT[3+2*i]}], 7, v{tt+i}')
    for q, (t, jj) in enumerate(sp):
        slot = jj + 2*t
        if slot == 0: o(f'  v_sub_u32 v{tt+4+q}, s{sR0}, v{vRR[t]}')
        else:
            o(f'  s_add_i32 s{sT[0]}, s{sA2}, {slot-1}'); o(f'  v_sub_u32 v{tt+4+q}, s{sT[0]}, v{vRR[t]}')
    for i in range(4): o(f'  v_cndmask_b32 v{MID+i}, v{ninf}, 0, s[{sT[2+2*i]}:{sT[3+2*i]}]')
    for q in range(len(sp)): o(f'  v_cmp_gt_u32 s[{sT[2*q]}:{sT[2*q+1]}], 7, v{tt+4+q}')
    for q, (t, jj) in enumerate(sp):
        for i in range(4): o(f'  v_cndmask_b32 v{SACC[t]+4*jj+i}, v{ninf}, v{MID+i}, s[{sT[2*q]}:{sT[2*q+1]}]')
    return out

tsp()
emit_pos('C')
tsp()
vLN = 107
def n_loads():
    e(f'  v_lshrrev_b32 v{vLN}, 4, v{vL0}')
    e(f'  s_cmp_lt_u32 s2, 72'); e('  s_cbranch_scc0 MK_np1')
    e(f'  s_mul_hi_u32 s{sT[8]}, s2, 0x15555556'); e(f'  s_lshl_b32 s{sT[8]}, s{sT[8]}, 6')
    e(f'  s_mul_i32 s{sT[9]}, s{sW}, {16*384}'); e(f'  s_add_u32 s{sVO}, s{sT[8]}, s{sT[9]}')
    e(f'  v_lshrrev_b32 v{MPK}, 2, v{vLN}'); e(f'  v_mul_u32_u24 v{MPK}, 384, v{MPK}'); e(f'  v_and_b32 v{MPK+1}, 3, v{vLN}'); e(f'  v_lshl_add_u32 v{MPK}, v{MPK+1}, 4, v{MPK}')
    e(f'  s_add_u32 m0, s{sWL}, {WOL}'); e('  s_nop 0')
    e(f'  buffer_load_dwordx4 v{MPK}, {RWO}, s{sVO} offen lds')
    e(f'  s_mul_i32 s{sT[9]}, s{sW4}, 6'); e(f'  s_add_u32 s{sVO}, s{sT[8]}, s{sT[9]}')
    e(f'  s_add_u32 m0, s{sW4}, {WOL + 8192}'); e(f'  s_add_u32 s{sVO}, s{sVO}, {8*16*384}')
    e(f'  buffer_load_dwordx4 v{MPK}, {RWO}, s{sVO} offen lds')
    e('MK_np1:')
    e(f'  s_sub_u32 s{sPROD}, s2, 72'); e(f'  s_lshr_b32 s{sPROD}, s{sPROD}, 31')
    e(f'  s_lshr_b32 s{sPROD}, s{sPROD}, s{sU}')
    e(f'  s_cmp_eq_u32 s{sPROD}, 0'); e('  s_cbranch_scc1 MK_np3')
    e(f'  s_mul_hi_u32 s{sT[8]}, s2, 0x15555556'); e(f'  s_mul_i32 s{sT[9]}, s{sT[8]}, 12'); e(f'  s_sub_u32 s{sT[9]}, s2, s{sT[9]}')
    e(f'  s_cmp_ge_u32 s{sT[9]}, 6'); e(f'  s_cselect_b32 s{sT[5]}, 1, 0'); e(f'  s_mul_i32 s{sVO}, s{sT[5]}, 6'); e(f'  s_sub_u32 s{sT[9]}, s{sT[9]}, s{sVO}')
    e(f'  v_lshrrev_b32 v{MPK+2}, 2, v{vn}'); e(f'  v_and_b32 v{MPK+1}, 3, v{vn}')
    e(f'  v_lshl_add_u32 v{vNB}, v{vg}, 3, v{MPK+2}'); e(f'  v_lshlrev_b32 v{vNB}, 6, v{vNB}'); e(f'  v_lshl_add_u32 v{vNB}, v{MPK+1}, 4, v{vNB}')
    e(f'  s_lshl_b32 s{sT[5]}, s{sT[5]}, 3'); e(f'  s_add_u32 s{sT[5]}, s{sT[5]}, {WOL}'); e(f'  v_add_u32 v{vNB}, s{sT[5]}, v{vNB}')
    e(f'  s_lshr_b32 s{sT[8]}, s{sT[9]}, 1'); e(f'  s_lshl_b32 s{sT[8]}, s{sT[8]}, 6')
    e(f'  s_and_b32 s{sT[9]}, s{sT[9]}, 1'); e(f'  s_lshl_b32 s{sT[9]}, s{sT[9]}, 4'); e(f'  s_add_u32 s{sT[8]}, s{sT[8]}, s{sT[9]}')
    e(f'  v_lshrrev_b32 v{MPK}, 1, v{MPK+2}'); e(f'  v_lshlrev_b32 v{MPK}, 5, v{MPK}')
    e(f'  v_and_b32 v{MPK+2}, 1, v{MPK+2}'); e(f'  v_lshl_add_u32 v{MPK}, v{MPK+2}, 2, v{MPK}')
    e(f'  v_add3_u32 v{MPK}, v{MPK}, v{MPK+1}, s{sT[8]}')
    e(f'  v_mul_u32_u24 v{MPK}, 1152, v{MPK}'); e(f'  v_lshl_add_u32 v{vNA}, v{vg}, 4, v{MPK}')
    e(f'  s_mul_i32 s{sVO}, s{sH}, 9216')
    for kk in range(6):
        e(f'  buffer_load_dwordx4 {V(136+4*kk)}, v{vNA}, {RW}, s{sVO} offen offset:{768+64*kk}')
    e('MK_np3:')
def m_reads(kk):
    rb = 184 + 36*(kk % 2); co = (kk // 2) * 49152
    lo = co if co < 49152*2 else 0
    return ([f'  ds_read_b128 {V(rb+24+4*b)}, v{vMB[kk % 2]} offset:{2048*b}' for b in range(3)] +
            [f'  ds_read_b128 {V(rb+4*a)}, v{vMA[kk % 2]} offset:{2048*a}' for a in range(6)])
def chunk_sync(c, lg):
    wo_, wy_ = after('O', f'W{c}'), after('Y', f'W{c}')
    x = ' lgkmcnt(0)' if lg else ''
    def w(n, prod):
        if c == 2 and prod and ISS['Y'].count('b'):
            return [f'  s_cmp_lg_u32 s{sU}, 0', '  s_cbranch_scc1 MK_c2', f'  s_waitcnt vmcnt({n - ISS["Y"].count("b")})', 'MK_c2:', f'  s_waitcnt vmcnt({n}){x}']
        if c != 1 or n == 63: return [f'  s_waitcnt vmcnt({n}){x}']
        lbl[0] += 1; k = lbl[0]; o = []
        if prod: o += [f'  s_cmp_lg_u32 s{sPROD}, 0', f'  s_cbranch_scc1 CA{k}']
        o += ['  s_cmp_lt_u32 s2, 72', f'  s_cbranch_scc1 CB{k}', f'  s_waitcnt vmcnt({n})', f'CB{k}:']
        if prod: o += [f'  s_waitcnt vmcnt({n+2})', f'CA{k}:', f'  s_waitcnt vmcnt({n+8}){x}']
        else: o += [f'  s_waitcnt vmcnt({n+2}){x}']
        return o
    if c == 2:
        wo_, wy_ = min(wo_, len(ISS['O']) - N_AT['O']), min(wy_, len(ISS['Y']) - N_AT['Y'])
    assert c != 1 or 'b' not in ISS['Y']
    if wo_ == wy_ and c != 2: el(w(wo_, True))
    else: el(role2_lines(w(wo_, False), w(wy_, True)))
    e('  s_barrier')
    tsp()
N_AT = {}
FPG = opt('fpg', 4)
chunk_sync(0, False)
el(m_reads(0))
SYA = opt('sya', 0)
for kk in range(4):
    odd = kk % 2 == 1
    extra = sched_items(str(kk)); ne = len(extra); cnt = 0
    rb = 184 + 36*(kk % 2)
    nx = m_reads(kk+1)
    issued = 0
    for a in range(6):
        if odd and a == SYA:
            chunk_sync(kk // 2 + 1, True)
            for r in vMA + vMB: e(f'  v_add_u32 v{r}, 49152, v{r}')
        if not (odd and a >= SYA): e(f'  s_waitcnt lgkmcnt({5 - a + issued})')
        for b in range(3):
            acc = MACC + 12*a + 4*b
            e(mfma(acc, rb+4*a, rb+24+4*b, None if kk == 0 else acc))
            slots = FPG
            if odd:
                for _ in range(1 if SYA <= 3 else 2):
                    if nx and a >= SYA and (b < 2 or SYA >= 2): e(nx.pop(0)); slots -= 1
            elif nx and b < 2 and a >= 1:
                e(nx.pop(0)); issued += 1; slots -= 1
            cnt += 1
            while extra and (ne - len(extra)) * 18 < cnt * ne: emit_item(extra.pop(0)); slots = 0
            el(F[:max(slots, 0)]); F = F[max(slots, 0):]
    el(nx)
    assert not extra
    if OLATE == 4 and kk == opt('olk3', 0): el(role_lines('O', o3))
    if kk == opt('olk', 1) and o2: el(role_lines('O', o2))
    if kk == 0: n_loads(); N_AT.update(O=len(ISS['O']), Y=len(ISS['Y']))
print('leftover F', len(F), file=sys.stderr); el(F); F = []
assert ISS['Y'].count('q') <= 6
e(f'  s_cmp_eq_u32 s{sPROD}, 0'); e('  s_cbranch_scc1 MK_np2')
e('  s_waitcnt lgkmcnt(0)')
for k2 in range(6):
    for hf in range(2):
        e(f'  ds_read_b64_tr_b16 {V(MPK+4*k2+2*hf, 2)}, v{vNB} offset:{(32*k2 + 4*hf)*64}')
e('  s_setprio 3'); e('  s_waitcnt lgkmcnt(0)')
for kk in range(6):
    e(mfma(128, 136+4*kk, MPK+4*kk, None if kk == 0 else 128))
e(f'  s_lshl_b32 s{sVO}, s2, 10'); e(f'  s_lshl_b32 s{sT[8]}, s{sH}, 3'); e(f'  s_add_u32 s{sVO}, s{sVO}, s{sT[8]}')
e('  s_nop 5')
for r in range(2): e(f'  v_cvt_pk_bf16_f32 v{132+r}, v{128+2*r}, v{129+2*r}')
e(f'  buffer_store_dwordx2 v[132:133], v{vL0}, {RWS}, s{sVO} offen sc1')
NY_AT_STORE = len(ISS['Y'])
e('  s_setprio 0')
e('MK_np2:')
r5 = m_reads(5)
el(r5[:5]); late = r5[5:]
extra = sched_items('4'); ne = len(extra); cnt = 0
pend = []; nw = 0; wq = []
BWF = 0
for fi in range(9):
    a3, b = fi // 3, fi % 3
    if fi == 0: e('  s_waitcnt lgkmcnt(5)')
    if fi == 2: e('  s_waitcnt lgkmcnt(0)')
    seq = [(4, 2*a3), (4, 2*a3+1), (5, 2*a3+1), (5, 2*a3)] if fi == 0 or 'nomch' in OPT else [(4, 2*a3), (5, 2*a3), (4, 2*a3+1), (5, 2*a3+1)]
    for q_, (kk, a) in enumerate(seq):
        rb = 184 + 36*(kk % 2)
        if fi == 0 and q_ == 2: e('  s_waitcnt lgkmcnt(2)')
        if True:
            acc = MACC + 12*a + 4*b
            e(mfma(acc, rb+4*a, rb+24+4*b, acc)); cnt += 1
            if late: e(late.pop(0))
            k = 0
            while wq and fi >= BWF and k < 1: e(wq.pop(0)); k += 1
            while pend and pend[0][0] <= cnt and k < 2:
                l = pend.pop(0)[1]
                if 'ds_write' in l and k > 0: wq.append(l); break
                else: e(l); k += 1
            while extra and (ne - len(extra)) * 36 < cnt * ne: emit_item(extra.pop(0))
    o = MPK + 4*(fi % 6)
    for a in range(2):
        acc = MACC + 12*(2*a3 + a) + 4*b
        for i in range(2): pend.append((cnt + 6, f'  v_cvt_pk_bf16_f32 v{o+2*a+i}, v{acc+2*i}, v{acc+2*i+1}'))
    pend.append((cnt + 6, f'  ds_write_b128 v{vMW[0]}, {V(o)} offset:{1024*(2-a3) + 6144*(2-b)}'))
assert not extra
tsp()
el(wq)
for i, (_, l) in enumerate(pend):
    if len(pend) - i == 5: e('  s_nop 3')
    e(l)
e('  s_waitcnt lgkmcnt(0)')
e('  s_barrier')
tsp()
NXY = opt('nxy', 2)
XH = (9, 8, 7, 6, 5)
assert ('Y', 'Z') not in PLAN and ('Y', '4') not in PLAN
y = [f'  s_cmp_lg_u32 s{sPROD}, 0', '  s_cbranch_scc1 MK_np4', '  s_waitcnt vmcnt(0)', 'MK_np4:', '  s_waitcnt vmcnt(1)', '  s_setprio 1']
o_ = sum((ls for _, ls in PLAN.get(('O', 'Z'), [])), []) + dma_xs(XH[:min(NXY, 2)]) + [f'  s_waitcnt vmcnt({4*min(NXY, 2)}) lgkmcnt(0)'] + q_reads() + ['  s_waitcnt lgkmcnt(0)', '  s_barrier'] + dma_xs(XH[2:max(NXY, 2)])
PRE_P1 = (o_, y)
PUB = [f'  s_cmp_eq_u32 s{sPROD}, 0', '  s_cbranch_scc1 MK_np5', '  s_waitcnt vmcnt(0)', '  v_mov_b32 v23, 1', '  s_mov_b64 exec, 1',
       *([f'  buffer_atomic_add v23, off, {RDB}, 0 sc1'] if 'atom' in OPT else
         [f'  s_lshl_b32 s{sVO}, s{sH}, 7', f'  buffer_atomic_add v23, off, {RDB}, s{sVO} sc1']), '  s_mov_b64 exec, -1', '  s_nop 3', 'MK_np5:']

BODY = r'''# ---------------- pipelined body
stream = []; frags = []
def add_frag(reads, gate): frags.append(dict(reads=reads, gate=gate, uses=0)); return len(frags) - 1
def use(fid, fn): frags[fid]['uses'] += 1; stream.append(('mfma', fn, fid))
def mf(text): stream.append(('mfma', (lambda buf: text), None))
def raw(*lines):
    for l in lines: stream.append(('raw', l))
def fill(*lines):
    for l in lines: stream.append(('fill', l))
def flush(): stream.append(('flush',))
def need(fid): stream.append(('need', fid))
def gate(name): stream.append(('gate', name))
def role(r, lines):
    if not lines: return
    if not SINGLE: stream.append(('cond', role_lines(r, lines)))
    elif r == 'Y': stream.append(('plain', lines))
def role2(lo, ly):
    if SINGLE or not lo: role('Y', ly)
    elif not ly: role('O', lo)
    else: stream.append(('cond', role2_lines(lo, ly)))
MID = SACC[1] + 4 if SINGLE else SACC[0] + 8
BAR = '  s_barrier'
SDMA = 'odma' not in OPT       # the single-tile waves load N
def m_read(f):
    addr = (71-f)*1024
    if addr < HALF: return [f'  ds_read_b128 {{d4}}, v{vL0} offset:{addr}']
    return [f'  ds_read_b128 {{d4}}, v{vL1} offset:{addr-HALF}']
def n_addr(f): return NHI + 30720 + 1024*f if f < 30 else ((f-30)*1024 if f < 40 else NHI + (f-40)*1024)
def n_read(f):
    if f >= 70: return []
    a = n_addr(f)
    return [f'  ds_read_b128 {{d4}}, v{vL1} offset:{a-NHI}' if a >= NHI else f'  ds_read_b128 {{d4}}, v{vL0} offset:{a}']
def dma_n(a, b):          # fragments a..b-1 (one address region), four waves
    out = []
    nw_ = 2 if SDMA else 4
    for f0 in range(a, b, nw_):
        lim = (b - 1 - f0) * 1024; src = sW4
        if lim < 1024*(nw_ - 1): out.append(f'  s_min_u32 s{sT[5]}, s{sW4}, {lim}'); src = sT[5]
        out += [f'  s_add_u32 m0, s{src}, {n_addr(f0)}', f'  s_add_u32 s{sVO}, s{src}, {f0*1024}',
                f'  buffer_load_dwordx4 v{vL0}, {RWS}, s{sVO} offen{NSC} lds']
    return out
CHAIN = [(0,0),(0,1),(0,2),(1,0),(1,1),(1,2),(1,3),(1,4),(1,5),(0,3),(0,4),(0,5)] if 'nochain' not in OPT else [(t, k) for k in range(6) for t in range(2)]
CHAIN = [x for x in CHAIN if x[0] in TL]
def proj(B, rd, gate_of, post, hooks):
    for s in range(6):
        for hh in range(2):
            f0 = 12*s + 6*hh
            fid = [add_frag(rd(f0+ks), gate_of(f0+ks)) for ks in range(6)]
            seen = set()
            for t, ks in (CHAIN if f0 or len(TL) == 1 or rd is m_read else [(t, k) for t in (1, 0) for k in range(6)]):
                f = f0 + ks
                if f0 == 0 and rd is n_read: stream.append(('flushto', f'YB{ks}' if t == TL[-1] else 'T1'))
                if ks not in seen:
                    seen.add(ks)
                    if f in hooks: hooks[f](fid[ks])
                acc = ACC + 16*(s % 2) + 8*t + 4*hh
                fx = None if rd(f) else NREG + 4*(f-70)
                use(fid[ks], (lambda buf, acc=acc, t=t, ks=ks, fx=fx: mfma(acc, buf if fx is None else fx, B(t, ks), None if ks == 0 else acc)))
            if hh == 1: stream.append(('flushto', f'post{s-1}'))
            fill(*post(s, hh))
        stream.append(('tag', f'post{s}'))

gate('G0')
role2(PRE_P1[0], PRE_P1[1] if SINGLE else ['  s_waitcnt vmcnt(0)', '  s_setprio 1'])
raw('BODY:' if not SINGLE else 'BODYS:')
BF = bias_init(SACC[1] + 8, MID, TL)
fill(*BF[:30])
def p1_post(s, hh):
    out = []
    for t in (1, 0):
        if t == 0 and s == 5 and hh == 1: out.append('#QP5a')
        if t not in TL: continue
        acc = ACC + 16*(s % 2) + 8*t + 4*hh
        for r in range(4): out.append(f'  v_mul_f32 v{acc+r}, s{sSC}, v{acc+r}')
        for r in range(2): out.append(f'  v_cvt_pk_bf16_f32 v{QP+24*t+4*s+2*hh+r}, v{acc+2*r}, v{acc+2*r+1}')
    return out
proj(lambda t, ks: XQ+24*t+4*ks, m_read, lambda f: 'G0', p1_post,
     {13: lambda fid: fill(*BF[30:35]), 25: lambda fid: fill(*BF[35:39]), 37: lambda fid: fill(*BF[39:44]), 49: lambda fid: fill(*BF[44:48]), 60: lambda fid: (fill(*BF[48:]), stream.append(('tag', 'BIAS'))),
      opt('yb1', 64): lambda fid: role('Y', [BAR]),
      31: lambda fid: (need(fid), role2([BAR], PUB if SINGLE else [])),                                  # B2
      61: lambda fid: (need(fid), role('O', ['  s_waitcnt vmcnt(0)', BAR]))})         # B3
if 'p1flush' in OPT: flush()
stream.append(('tag', 'QP5'))
fill(f'  v_add_u32 v{vL1}, {NHI}, v{vL0}')
for r in range(4): fill(f'  v_mov_b32 v{ONES+r}, 0x3f803f80')
POLL = f'  buffer_load_dword v13, off, {RDB}, 0 sc1' if 'atom' in OPT else f'  buffer_load_dword v13, v14, {RDB}, 0 offen sc1'
PSET = [] if 'atom' in OPT else [f'  v_and_b32 v14, {128 if NCT == 2 else 192}, v{vL0}']
PMODE = opt('pmode', 1)      # 0 early plain poll, 1 late plain poll, 2 none (diagnostic only)
role('Y', ['  s_setprio 0'] + dma_xs(XH[NXY:]) + [BAR] + dma_xs((4, 3, 2)) + 
     ['  s_waitcnt vmcnt(12)', BAR] + dma_xs((1, 0)) + ['  s_waitcnt vmcnt(8)', BAR])        # B2 B3 B4a
for _ in range(opt('idle', 0)): raw('  s_sleep 8')      # diagnostic only
gate('S')
etn = [0, 0]
def sm_fill(t, jj):
    pool = ((ET, ET+4), (ET+8, ET+12, ET+16))[t]
    tmp = pool[etn[t] % len(pool)]; etn[t] += 1
    acc = SACC[t] + 4*jj
    for i in range(4): fill(f'  v_exp_f32 v{tmp+i}, v{acc+i}')
    for i in range(2): fill(f'  v_cvt_pk_bf16_f32 v{PREG[t]+2*jj+i}, v{tmp+2*i}, v{tmp+2*i+1}')
    stream.append(('tag', f'P{t}_{jj}'))
def sum_mfmas(t):
    stream.append(('flushto', f'P{t}_0') if t == 0 else ('flush1',))
    for kt in (3, 2, 1, 0): mf(mfma(SUM[t], ONES, PREG[t]+4*kt, None if kt == 3 else SUM[t]))
LO, HI = (127-20) << 23, (127+20) << 23
def check(t):
    raw(f'  v_subrev_u32 v{RI[1]}, {LO}, v{SUM[t]}')
    raw(f'  s_mov_b32 s{sT[6]}, {HI-LO}')
    raw(f'  v_cmp_gt_u32 s[{sT[2]}:{sT[3]}], s{sT[6]}, v{RI[1]}')
    raw(f'  s_or_b64 s[{sT[2]}:{sT[3]}], s[{sT[2]}:{sT[3]}], s[{sINV[t]}:{sINV[t]+1}]')
    raw(f'  s_cmp_eq_u64 s[{sT[2]}:{sT[3]}], -1')
    raw(f'  s_cbranch_scc0 FB{t}{SFX}')
    raw(f'FBR{t}{SFX}:')
if 'atom' in OPT:
    pollw = [f'  s_mov_b32 s{sT[7]}, 0x40000', 'NPOLL:', '  s_waitcnt vmcnt(0)', f'  v_readfirstlane_b32 s{sT[0]}, v13', f'  s_sub_u32 s{sT[7]}, s{sT[7]}, 1',
             f'  s_cselect_b32 s{sT[0]}, 144, s{sT[0]}', f'  s_cmp_ge_u32 s{sT[0]}, 144', '  s_cbranch_scc1 NPOLLD', POLL, '  s_branch NPOLL', 'NPOLLD:']
else:
    pollw = [f'  s_mov_b32 s{sT[7]}, 0x40000', f'  s_mov_b32 s{sT[0]}, {144 // NCT}', 'NPOLL:', '  s_waitcnt vmcnt(0)', f'  v_cmp_le_u32 s[{sT[2]}:{sT[3]}], s{sT[0]}, v13',
             f'  s_sub_u32 s{sT[7]}, s{sT[7]}, 1', '  s_cbranch_scc1 NPOLLD', f'  s_cmp_eq_u64 s[{sT[2]}:{sT[3]}], -1', '  s_cbranch_scc1 NPOLLD', POLL, '  s_branch NPOLL', 'NPOLLD:']
ODMA = not SDMA
# Y's positions of B5a / B5b / B6 in units of "S slot or PV step index": 0..9 = before the k-th S slot, 10..14 = before the k-th PV step
YP = {opt('y5a', 6): [BAR] + pollw + dma_n(0, 30) + dma_n(30, 40),
      opt('y5b', 9): ['  s_waitcnt vmcnt(0)', BAR] + dma_n(40, 70),
      opt('y6', 11): ['  s_waitcnt vmcnt(0)', BAR]}
assert len(YP) == 3
if ODMA or not SINGLE: YP = {k: [BAR] for k in YP}
else:
    YP = {opt('s5a', 7): pollw + dma_n(30, 40) + [BAR] + dma_n(0, 30), opt('s5b', 8): ['  s_waitcnt vmcnt(0)', BAR] + dma_n(40, 70),
          opt('s6', 9): ['  s_waitcnt vmcnt(0)', BAR], opt('spoll', 5): PSET + [POLL.replace(' sc1', '')]}
    assert len(YP) == 4
if 'yhi' in OPT: YP[opt('yhi', 0)] = YP.get(opt('yhi', 0), []) + ['  s_setprio 1']
O4B = opt('o4b', 6)
for k, slot in enumerate(range(9, -1, -1)):
    if k == 2:
        raw('  s_waitcnt vmcnt(0)', BAR); gate('S2')       # O: B4a ; Y: B4b
    if k == O4B: role('O', [BAR] + (PSET + [POLL.replace(' sc1', '')] if ODMA else []))             # B4b
    if k in YP: role('Y', YP[k])
    if SINGLE and slot < 2:
        if slot == 0: sum_mfmas(1)
        continue
    fid = []
    for s in range(6):
        if slot == 0: base, off = SB0[s % 2], 128*(s//2)
        else: base, off = (vSe, vSo)[s % 2], (slot-1)*ROW + 128*(s//2)
        fid.append(add_frag([f'  ds_read_b128 {{d4}}, v{base} offset:{off}'], 'S' if slot >= 6 else 'S2'))
    for t, s in CHAIN:
        jj = slot - 2*t
        if 0 <= jj < 8:
            if slot == 0 and s == 3: sum_mfmas(1)
            if slot == 9 and s == 0: stream.append(('flushto', 'BIAS'))
            if slot == 9 and s == 5: stream.append(('flushto', 'QP5a'))
            if slot == 7 and s == 5: stream.append(('flushto', 'QP5'))
            acc = SACC[t] + 4*jj
            cin = MID if s == 0 and (t, jj) not in SPECIAL else acc
            use(fid[s], (lambda buf, acc=acc, t=t, s=s, cin=cin: mfma(acc, buf, QP+24*t+4*s, cin)))
    for t in TL:
        jj = slot - 2*t
        if 0 <= jj < 8: sm_fill(t, jj)
    if slot <= opt('prio', 4): stream.append(('prio1',))
check(1)
YC1 = 0
def ycvt(t, ks, _=0):
    return [f'  v_cvt_pk_bf16_f32 v{YB[t][ks]+2*hf+i}, v{YACC[t][2*ks+hf]+2*i}, v{YACC[t][2*ks+hf]+2*i+1}' for hf in range(2) for i in range(2)]
lastf = None
PVO = (3, 4, 2, 1, 0)
def pv_reads(st, ct):
    b_, e_ = ct // 4, ct % 4
    rd = []
    for hf in range(2):
        slot = 2*st + hf
        if slot == 0: base, off = PB0[e_], 128*b_
        else: base, off = vP[e_], (slot-1)*ROW + 128*b_
        rd.append(f'  ds_read_b64_tr_b16 {{d{"lo" if hf == 0 else "hi"}}}, v{base} offset:{off}')
    return rd
for k, st in enumerate(PVO):
    if k == 1:
        if not SINGLE: sum_mfmas(0)
        else: fill(f'  v_rcp_f32 v{RI[1]}, v{SUM[1]}')
    if k == 2: need(lastf); role('O', [BAR] + (pollw + dma_n(30, 40) + dma_n(0, 30) if ODMA else []))     # B5a
    if 10 + k in YP: role('Y', YP[10 + k])
    if SINGLE and k == 4:
        gate('P4a'); continue
    if k == 0: stream.append(('flushto', 'P0_6'))
    for ct in range(12):
        tl = [t for t in TL if 0 <= st - t < 4]
        fid = add_frag(pv_reads(st, ct), 'S2'); lastf = fid
        if k == 4 and ct == opt('o5b', 6):
            stream.append(('needall', fid + 11 - ct)); role('O', ['  s_waitcnt vmcnt(0)', BAR] + dma_n(40, 70) if ODMA else [BAR]); gate('P4a')         # B5b: every X read of this wave has landed
        for t in tl:
            acc = YACC[t][ct]
            use(fid, (lambda buf, acc=acc, t=t, st=st, k=k: mfma(acc, buf, PREG[t]+4*(st-t), None if k == 0 else acc)))
        if k == 1 and not SINGLE and ct == 2:
            check(0)
            for t in TL: fill(f'  v_rcp_f32 v{RI[t]}, v{SUM[t]}')
        if k == 3 and ct % 2 and ct < 12 - YC1:
            fill(*ycvt(1, ct // 2, 1))
            if SINGLE: stream.append(('tag', f'YB{ct // 2}'))
        if k == 4 and ct % 2: fill(*ycvt(0, ct // 2, 0)); stream.append(('tag', f'YB{ct // 2}'))
    if k == 3: stream.append(('tag', 'T1'))
NLD = [f'  s_mov_b32 s{sVO}, {70*1024}'] + [f'  buffer_load_dwordx4 {V(NREG+4*i)}, v{vL0}, {RWS}, s{sVO} offen offset:{1024*i} sc1' for i in range(2)]
if 15 in YP: role('Y', YP[15])
def p4_post(s, hh):
    out = []
    for t in TL:
        acc = ACC + 16*(s % 2) + 8*t + 4*hh
        o = OUTR + 8*(s % 2) + 4*t
        for r in range(4): out.append(f'  v_mul_f32 v{acc+r}, v{acc+r}, v{RI[t]}')
        for r in range(2): out.append(f'  v_cvt_pk_bf16_f32 v{o+2*hh+r}, v{acc+2*r}, v{acc+2*r+1}')
        if hh: out.append(f'  buffer_store_dwordx4 {V(o)}, v{vO[t]}, {RO}, 0 offen offset:{64*s}{NTO}')
    return out
proj(lambda t, ks: YB[t][ks], n_read, lambda f: 'P4a' if f < 40 else 'P4b', p4_post,
     {12: lambda fid: raw(*NLD),
      opt('o6', 24): lambda fid: (role('O', (['  s_waitcnt vmcnt(%d)' % (2 if 'pairst' in OPT else 4)] if ODMA else []) + [BAR]), gate('P4b')),                 # B6
      60: lambda fid: raw(f'  s_waitcnt vmcnt({4*len(TL)})'),
      })
flush()

# ---------------- emitter: read scheduling, gap filling, hazard padding
def regs_of(tok):
    m = re.fullmatch(r'v\[(\d+):(\d+)\]', tok)
    if m: return list(range(int(m.group(1)), int(m.group(2)) + 1))
    m = re.fullmatch(r'-?v(\d+)', tok)
    return [int(m.group(1))] if m else []
def parse(line):
    p = line.strip().split(None, 1)
    op = p[0]; args = [a.strip().split()[0] for a in p[1].split(',')] if len(p) > 1 else []
    return op, args
clock = [0]
mf_w = {}; va_w = {}; tr_w = {}; mf_c = {}; sg_w = {}
def hazard(line):
    """wait states still required before `line` may issue"""
    op, args = parse(line); need_ = 0
    allr = [r for a in args for r in regs_of(a)]
    if op.startswith('v_mfma'):
        for r in [r for a in args[1:] for r in regs_of(a)]:
            if r in va_w: need_ = max(need_, 2 - (clock[0] - va_w[r] - 1))
        for r in regs_of(args[1]) + regs_of(args[2]):
            if r in mf_w: need_ = max(need_, 8 - (clock[0] - mf_w[r] - 1))
    elif op.startswith('v_') or op.startswith('buffer_') or op.startswith('ds_'):
        for r in allr:
            if r in mf_w: need_ = max(need_, 8 - (clock[0] - mf_w[r] - 1))
        if op.startswith('v_'):
            for r in regs_of(args[0]):
                if r in mf_c: need_ = max(need_, 3 - (clock[0] - mf_c[r] - 1))
            for r in [r for a in args[1:] for r in regs_of(a)]:
                if r in tr_w: need_ = max(need_, 1 - (clock[0] - tr_w[r] - 1))
            for a in args[1:]:
                if a in sg_w: need_ = max(need_, 2 - (clock[0] - sg_w[a] - 1))
    return need_
def emit(line):
    if line.endswith(':'):
        e(line); return
    n = hazard(line)
    if n > 0:
        e(f'  s_nop {n-1}'); clock[0] += n
    op, args = parse(line)
    e(line)
    if op.startswith('v_mfma'):
        for r in regs_of(args[0]): mf_w[r] = clock[0]
        for r in regs_of(args[3]): mf_c[r] = clock[0]
    elif op.startswith('v_'):
        if args[0].startswith('s'): sg_w[args[0]] = clock[0]
        for r in regs_of(args[0]):
            va_w[r] = clock[0]; tr_w.pop(r, None)
            if op in ('v_exp_f32', 'v_rcp_f32'): tr_w[r] = clock[0]
    if op == 's_nop': clock[0] += int(args[0])
    clock[0] += 1

gates = set(); nxt = 0; done_uses = [0]*len(frags)
ops = []; landed = -1; half = [None]
fq = []
def buf_of(f): return ABUF + 4*(f % NB)
def issue_one():
    global nxt
    while True:
        if half[0] is not None:
            emit(half[0]); ops.append(nxt); half[0] = None; nxt += 1; return True
        if nxt >= len(frags): return False
        fr = frags[nxt]
        if fr['gate'] not in gates: return False
        if nxt >= NB and done_uses[nxt-NB] < frags[nxt-NB]['uses']: return False
        if not fr['reads']:
            nxt += 1; continue
        if len(ops) + len(fr['reads']) > (13 if TSM else 15): return False
        b = buf_of(nxt)
        rs = [r.format(d4=V(b), dlo=V(b, 2), dhi=V(b+2, 2)) for r in fr['reads']]
        emit(rs[0]); ops.append(nxt)
        if len(rs) == 2: half[0] = rs[1]
        else: nxt += 1
        return True
def wait_for(f, pair=True):
    global landed, ops
    if f is None or f <= landed: return
    while nxt <= f:
        n0 = nxt
        if not issue_one() and nxt == n0: raise RuntimeError(f'cannot issue frag {nxt}')
    if any(o <= f for o in ops):
        for _ in range(GROUP - 1):
            if pair and f + 1 < nxt and sum(1 for o in ops if o > f + 1) >= (PAIRMIN if len(frags[f]['reads']) == 1 else PAIRMIN2): f = f + 1
        n = sum(1 for o in ops if o > f)
        emit(f'  s_waitcnt lgkmcnt({n})')
        ops = [o for o in ops if o > f]
    landed = f
def sregs(tok):
    m = re.fullmatch(r's\[(\d+):(\d+)\]', tok)
    if m: return [-1 - r for r in range(int(m.group(1)), int(m.group(2)) + 1)]
    m = re.fullmatch(r's(\d+)', tok)
    return [-1 - int(m.group(1))] if m else []
def wr(l):
    op, args = parse(l)
    return set() if op.startswith('buffer_') else set(regs_of(args[0]) + sregs(args[0]))
def rdset(l):
    op, args = parse(l)
    return set(r for a in (args if op.startswith('buffer_') else args[1:]) for r in regs_of(a) + sregs(a))
def pick(pred):
    """first filler satisfying pred that does not depend on an earlier pending filler (window limited)"""
    W, R = set(), set()
    for i, l in enumerate(fq[:WINDOW]):
        if l.startswith('#'): continue
        if pred(l) and not (rdset(l) & W) and not (wr(l) & (W | R)) and hazard(l) <= 0: return i
        W |= wr(l); R |= rdset(l)
    return None
def is2(l): return 'v_exp' in l or 'v_rcp' in l
def isst(l): return 'buffer_store' in l
def gap(si, ent):
    while fq and fq[0].startswith('#'): fq.pop(0)
    cur = ent[2] if ent[2] is not None else landed
    nf = STREAM_NEXT.get(si)
    wnext = nf is not None and nf > landed                     # a wait will precede the next MFMA
    ahead = nxt - cur
    i = pick(isst)
    if i is not None and half[0] is None and ahead >= MINAHEAD:
        emit(fq.pop(i))
        i = pick(lambda l: not is2(l) and not isst(l))
        if i is not None: emit(fq.pop(i))
        return
    slots = 1 if wnext else 2
    nexp = sum(1 for l in fq if is2(l))
    # an exp takes a whole gap: while the ring is deep enough leave this gap to it
    if not wnext and half[0] is None and ahead >= EXPAHEAD:
        ready = [l for l in fq[:CVTWIN] if not l.startswith('#')]
        i = pick(is2) if any(is2(l) for l in ready) else None
        if i is not None:
            emit(fq.pop(i)); return
    if issue_one(): slots -= 1
    if (half[0] is not None or slots > 0 and (nexp or not fq or ahead < 6)) and issue_one(): slots -= 1
    if nexp > BACKLOG: slots = max(slots, 1 if pick(lambda l: not is2(l) and not isst(l)) is not None else 2)
    while slots > 0:
        i = pick(is2) if slots >= 2 else None
        if i is not None:
            emit(fq.pop(i)); slots -= 2; continue
        i = pick(lambda l: not is2(l) and not isst(l))
        if i is None: break
        emit(fq.pop(i)); slots -= 1
CVTWIN = opt('cvtwin', 6); WINDOW = opt('window', 16); MINAHEAD = opt('minahead', 5); EXPAHEAD = opt('expahead', 7)
nmf = [0]
BACKLOG = opt('backlog', 6); PAIRMIN = opt('pairmin', 4); PAIRMIN2 = opt('pairmin2', 8); GROUP = opt('group', 4)
STREAM_NEXT = {}
mi = [i for i, x in enumerate(stream) if x[0] == 'mfma']
for a_, b_ in zip(mi, mi[1:]): STREAM_NEXT[a_] = stream[b_][2]
for si in range(len(stream) - 1):
    a_, b_ = stream[si], stream[si+1]
    if a_[0] == 'cond' and b_[0] == 'cond' and a_[1][1:-1] == [BAR] and b_[1][1:-1] == [BAR] and a_[1][0].split()[0] != b_[1][0].split()[0]:
        stream[si] = ('raw', BAR); stream[si+1] = ('tag', 'nil')
for si, ent in enumerate(stream):
    k = ent[0]
    if k == 'raw': emit(ent[1])
    elif k == 'fill': fq.append(ent[1])
    elif k == 'flush':
        for l in fq:
            if not l.startswith('#'): emit(l)
        fq = []
    elif k == 'flush1':          # only the exp / pack work of tile 1
        own = set(range(ET+8, ET+20))
        keep = []
        for l in fq:
            if not l.startswith('#') and ((wr(l) | rdset(l)) & own or not ('v_exp' in l or 'v_cvt' in l)): emit(l)
            else: keep.append(l)
        fq = keep
    elif k == 'prio1':           # tile 1 work first from here on
        own = set(range(ET+8, ET+20))
        sm = lambda l: 'v_exp' in l or 'v_cvt' in l
        if all(l.startswith('#') or sm(l) for l in fq):
            fq = [l for l in fq if not l.startswith('#') and (wr(l) | rdset(l)) & own] + [l for l in fq if l.startswith('#') or not (wr(l) | rdset(l)) & own]
    elif k == 'tag': fq.append('#' + ent[1])
    elif k == 'flushto':
        if '#' + ent[1] in fq:
            i = fq.index('#' + ent[1])
            for l in fq[:i]:
                if not l.startswith('#'): emit(l)
            fq = fq[i+1:]
    elif k == 'gate':
        gates.add(ent[1])
        while issue_one(): pass
    elif k in ('need', 'needall'): wait_for(ent[1])
    elif k == 'plain': el(ent[1])
    elif k == 'cond':
        emit(ent[1][0]); el(ent[1][1:])          # only the branch itself counts as distance
    elif k == 'mfma':
        wait_for(ent[2])
        if nmf[0] in TSM and not SINGLE: e(ts_line())
        nmf[0] += 1
        emit(ent[1](buf_of(ent[2]) if ent[2] is not None else None))
        if ent[2] is not None: done_uses[ent[2]] += 1
        gap(si, ent)
'''
e(f'  s_cmp_eq_u32 s{sU}, 0'); e('  s_cbranch_scc1 MK_single')
SINGLE, TL, SFX = False, (1, 0), ''
exec(BODY)
e('MK_fin:')
if TS:
    e('  s_waitcnt vmcnt(0)')
    e(ts_line()); e('  s_memrealtime s[98:99]')
    e('  s_waitcnt lgkmcnt(0)')
    e(f'  s_lshl_b32 s{sT[0]}, s2, 3'); e(f'  s_add_u32 s{sT[0]}, s{sT[0]}, s{sW}'); e(f'  s_lshl_b32 s{sT[0]}, s{sT[0]}, 6')
    e(f'  s_add_u32 s{sT[0]}, s{sT[0]}, 0x100000')
    e('  v_mov_b32 v1, 0')
    for i in range(nts[0]):
        if i == 0: e(f'  v_mov_b32 v2, s{sTS}')
        else:
            e(f'  s_sub_u32 s{sT[1]}, s{sTS+2*i}, s{sTS}'); e(f'  v_mov_b32 v2, s{sT[1]}')
        e(f'  buffer_store_dword v2, v1, s[20:23], s{sT[0]} offen offset:{4*i}')
    e('  v_mov_b32 v2, s96'); e('  v_mov_b32 v3, s98')
    e(f'  buffer_store_dwordx2 v[2:3], v1, s[20:23], s{sT[0]} offen offset:56')
    print('timestamps', nts[0]); assert nts[0] <= 12
e('MK_done:')
e('  s_endpgm')
e('MK_single:')
SINGLE, TL, SFX = True, (1,), 's'
exec(BODY)
e('  s_branch MK_fin' if TS else '  s_endpgm')
for t, sfx in ((0, ''), (1, ''), (1, 's')):
    R = SACC[t]; vm, vt = RI[0], RI[1]
    e(f'FB{t}{sfx}:')
    e('  s_nop 7')
    e(f'  v_max3_f32 v{vm}, v{R}, v{R+1}, v{R+2}')
    for k in range(3, 31, 2): e(f'  v_max3_f32 v{vm}, v{vm}, v{R+k}, v{R+k+1}')
    e(f'  s_mov_b32 s{sT[6]}, 0xff7fffff')
    e(f'  v_max3_f32 v{vm}, v{vm}, v{R+31}, s{sT[6]}')
    for sw in ('v_permlane32_swap_b32', 'v_permlane16_swap_b32'):
        e(f'  v_mov_b32 v{vt}, v{vm}'); e('  s_nop 1'); e(f'  {sw} v{vm}, v{vt}'); e('  s_nop 1')
        e(f'  v_max_f32 v{vm}, v{vm}, v{vt}')
    for k in range(32): e(f'  v_sub_f32 v{R+k}, v{R+k}, v{vm}')
    for k in range(32): e(f'  v_exp_f32 v{R+k}, v{R+k}')
    e('  s_nop 0')
    for k in range(16): e(f'  v_cvt_pk_bf16_f32 v{PREG[t]+k}, v{R+2*k}, v{R+2*k+1}')
    e('  s_nop 1')
    for kt in range(4): e(mfma(SUM[t], ONES, PREG[t]+4*kt, None if kt == 0 else SUM[t]))
    if t == 0:
        for c0 in (0, 6):
            e('  s_waitcnt lgkmcnt(0)')
            for ct in range(c0, c0 + 6):
                b = R + 4*(ct - c0)
                for r in pv_reads(PVO[0], ct): e(r.format(dlo=V(b, 2), dhi=V(b+2, 2)))
            e('  s_waitcnt lgkmcnt(0)')
            for ct in range(c0, c0 + 6): e(mfma(YACC[0][ct], R + 4*(ct - c0), PREG[0]+4*PVO[0], None))
    e('  s_nop 7')
    e(f'  s_branch FBR{t}{sfx}')
e('MK_end:')
e('.section .rodata,"a"')
e('.p2align 6'); e(f'.amdhsa_kernel {KN}')
e('  .amdhsa_next_free_vgpr 256'); e('  .amdhsa_next_free_sgpr 102'); e('  .amdhsa_accum_offset 256')
e('  .amdhsa_group_segment_fixed_size 0'); e('  .amdhsa_kernarg_size 48'); e('  .amdhsa_user_sgpr_count 2')
e('  .amdhsa_user_sgpr_kernarg_segment_ptr 1'); e('  .amdhsa_system_sgpr_workgroup_id_x 1')
e('.end_amdhsa_kernel')
if 'drop' in OPT:
    kinds = OPT['drop'].split(',')
    i0 = next(i for i, l in enumerate(L) if 'MK_np4:' in l)
    out = []; n = 0
    for i, l in enumerate(L):
        body = i > i0
        if 'mM' in kinds and not body and 'v_mfma' in l: l = '  s_nop 3'
        if 'exp' in kinds and 'v_exp' in l: l = l.replace('v_exp_f32', 'v_mov_b32')
        if 'lds' in kinds and body and 'ds_read_b128' in l:
            l = re.sub(r'ds_read_b128 v\[(\d+):\d+\]', lambda m: f'ds_read_b32 v{m.group(1)}', l)
        if 'tr' in kinds and body and 'ds_read_b64_tr' in l:
            l = re.sub(r'ds_read_b64_tr_b16 v\[(\d+):\d+\], v\d+', lambda m: f'ds_read_b32 v{m.group(1)}, v{vL0}', l)
        if 'mfma' in kinds and body and 'v_mfma' in l:
            n += 1
            if n % 2: l = '  s_nop 3'
        if 'nslab' in kinds and RWO in l and 'buffer_load' in l: l = '  s_nop 0'
        if 'nwv' in kinds and f'v{vNA}, {RW}' in l: l = '  s_nop 0'
        if 'ncomp' in kinds and 's_cbranch_scc1 MK_np2' in l: l = '  s_branch MK_np2'
        if 'st' in kinds and 'buffer_store_dwordx4' in l: l = '  s_nop 0'
        out.append(l)
    L = out
open(OUTF, 'w').write('\n'.join(L) + '\n')
```

```python
import sys, struct, math, re
OPT = dict(a.split('=') if '=' in a else (a, '1') for a in sys.argv[1:])
OUTF = OPT.get('out', 'standalone__neighborhood_nat__vision.s')
TS = 'ts' in OPT
TSM = [int(x) for x in OPT['tsm'].split(',')] if 'tsm' in OPT else []
TSP = 'tsp' in OPT
def opt(k, d): return int(OPT.get(k, d))
L = []
def e(s): L.append(s)
def el(ls):
    for l in ls: L.append(l)

X_BYTES = 19267584
WS_BYTES = 268435456
XB = 10240
ROW = 7680
HALF = 36864
NHI = XB + 12*ROW
WOL = 147456
SCALE = struct.unpack('<I', struct.pack('<f', (192 ** -0.5) * math.log2(math.e)))[0]
NT = ' nt' if 'nt' in OPT else ''
NCT = 2
NSC = '' if 'nplain' in OPT else ' sc1'
NTO = ' ' + OPT.get('st', 'nt+sc1').replace('+', ' ')
KN = 'standalone__neighborhood_nat__vision_kernel'

hdr = open('standalone__neighborhood_nat__vision.s.ref').read().split('\n')
for ln in hdr:
    if ln.startswith('; @launch'): break
    e(ln)
e('; @launch grid=(256,1,1) block=(512,1,1) lds=163840')
e('.amdgcn_target "amdgcn-amd-amdhsa--gfx950"')
e('.text')

def srd(d, b, n):
    return [f'  s_mov_b32 s{d}, s{b}', f'  s_and_b32 s{d+1}, s{b+1}, 0xffff', f'  s_mov_b32 s{d+2}, {n}', f'  s_mov_b32 s{d+3}, 0x00020000']
def V(a, n=4): return f'v[{a}:{a+n-1}]'
def mfma(d, a, b, c):
    cs = '0' if c is None else V(c)
    return f'  v_mfma_f32_16x16x32_bf16 {V(d)}, {V(a)}, {V(b)}, {cs}'

vL0, vL1 = 1, 2
vO = (5, 6)
vSe, vSo = 7, 8
vP = (9, 10, 11, 12)
vD = (13, 14, 3, 4)
PB0 = (15, 16, 17, 18)
vCT = 19
SB0 = (20, 0)
vRR = (21, 22)
RI = (22, 23)
SACC = (24, 56); QP = 88; XQ = 136; ACC = 184
ABUF = 216; NB = 10
PREG = (136, 152)
YB = ([140, 144, 148, 152, 36, 40], [156, 160, 164, 24, 28, 32])
YACC = ([56+4*i for i in range(8)] + [168+4*i for i in range(4)], [88+4*i for i in range(12)])
SUM = (184, 188); ONES = 192; ET = 196
OUTR = 88; NREG = 104
MACC = 24; MPK = 104
vWA = 96; vMA, vMB, vMW = (97, 98), (99, 100), (101, 102, 103)
vn, vg, tA, tB, tC, tD = 128, 129, 130, 131, 132, 133
vNB, vNA = 134, 135
QA = (134, 135); vQR = 23
CH = (0, 49152, 98304)
SO = 73728
sQR = (84, 85, 86, 87); sST = 101
sW, sU, sH, sPR, sPC, sKR, sKC, sXB, sGS, sGmin = range(24, 34)
sA2, sR0, sD0, sTR, sM0X, sM0X3, sW4, sWL = range(34, 42)
sINV = (42, 44)
sT = list(range(46, 60))
sMR, sAR, sMC, sAC = sT[10], sT[11], sT[12], sT[13]
sTS = 60
sPROD, sWB, sSC, sVO = 3, 92, 93, 100
RX, RO, RWS, RW, RWO, RDB = 's[12:15]', 's[16:19]', 's[20:23]', 's[88:91]', 's[4:7]', 's[8:11]'
MSK = f's[{sT[6]}:{sT[7]}]'
assert sT[6] % 2 == 0 and sT[2] % 2 == 0

nts = [0]
def ts_line():
    s = f'  s_memtime s[{sTS+2*nts[0]}:{sTS+2*nts[0]+1}]'; nts[0] += 1; return s
def tsp():
    if TSP: e(ts_line())

e(f'.globl {KN}'); e('.p2align 8'); e(f'.type {KN},@function'); e(f'{KN}:')
e('  s_cmp_ge_u32 s2, 256'); e('  s_cbranch_scc1 MK_done')
if TS: e(ts_line()); e('  s_memrealtime s[96:97]')
e('  s_load_dwordx8 s[4:11], s[0:1], 0')
e('  s_load_dwordx4 s[84:87], s[0:1], 32')
if 'nopf' not in OPT:
    e('  s_getpc_b64 s[12:13]'); e('MK_pc:')
    e('  s_and_b32 s13, s13, 0xffff'); e('  s_mov_b32 s14, MK_end-MK_pc'); e('  s_mov_b32 s15, 0x00020000')
    PFS = opt('pfs', 5)
    e(f'  v_lshlrev_b32 v23, {7 + PFS}, v0'); e(f'  s_bfe_u32 s3, s2, {(PFS << 16) | 3}'); e('  s_lshl_b32 s3, s3, 7')
    e('  buffer_load_dword v255, v23, s[12:15], s3 offen')
e(f'  v_lshrrev_b32 v{tA}, 6, v0')
e('  v_and_b32 v0, 63, v0')
e(f'  v_readfirstlane_b32 s{sW}, v{tA}')
e(f'  v_and_b32 v{vn}, 15, v0'); e(f'  v_lshrrev_b32 v{vg}, 4, v0')
e(f'  v_lshrrev_b32 v{tA}, 5, v0'); e(f'  v_bfe_u32 v{tB}, v0, 3, 2'); e(f'  v_lshl_add_u32 v{tA}, v{tA}, 3, v{tB}')
e(f'  v_mul_u32_u24 v{tA}, 1152, v{tA}')
e(f'  s_and_b32 s{sH}, s{sW}, 1')
e(f'  s_lshl_b32 s{sT[0]}, s{sH}, 2')
e(f'  v_add_u32 v{tB}, s{sT[0]}, v{vg}'); e(f'  v_and_b32 v{tC}, 7, v0'); e(f'  v_xor_b32 v{tB}, v{tB}, v{tC}')
e(f'  v_lshl_add_u32 v{vWA}, v{tB}, 4, v{tA}')
e(f'  s_lshr_b32 s{sT[0]}, s{sW}, 2'); e(f'  s_lshl_b32 s{sT[0]}, s{sT[0]}, 5')
e(f'  s_lshl_b32 s{sT[1]}, s{sH}, 4'); e(f'  s_add_u32 s{sT[0]}, s{sT[0]}, s{sT[1]}')
e(f'  s_and_b32 s{sT[1]}, s{sW}, 2'); e(f'  s_lshl_b32 s{sT[1]}, s{sT[1]}, 1'); e(f'  s_add_u32 s{sT[0]}, s{sT[0]}, s{sT[1]}')
e(f'  s_mul_i32 s{sWB}, s{sT[0]}, 1152')
e(f'  s_lshl_b32 s{sWL}, s{sW}, 10')
e(f'  s_cmp_lt_u32 s{sW}, 4'); e('  s_cselect_b64 vcc, -1, 0')
EARLY_AT = len(L)
e(f'  s_bfe_u32 s{sPR}, s2, 0x10002')
e(f'  s_bfe_u32 s{sPC}, s2, 0x10001')
e(f'  s_and_b32 s{sKR}, s2, 1'); e(f'  s_lshl_b32 s{sKR}, s{sKR}, 2')
e(f'  s_lshr_b32 s{sT[0]}, s2, 6'); e(f'  s_add_u32 s{sKR}, s{sKR}, s{sT[0]}')
e(f'  s_bfe_u32 s{sKC}, s2, 0x30003')
e(f'  s_mul_i32 s{sTR}, s{sKR}, 14'); e(f'  s_add_i32 s{sTR}, s{sTR}, -6'); e(f'  s_max_i32 s{sKR}, s{sTR}, -4')
e(f'  s_mul_i32 s{sKC}, s{sKC}, 14'); e(f'  s_add_i32 s{sKC}, s{sKC}, -6')
e(f'  s_lshr_b32 s{sU}, s{sW}, 1'); e(f'  s_add_u32 s{sU}, s{sU}, 2'); e(f'  s_and_b32 s{sU}, s{sU}, 3')
e(f'  s_sub_u32 s{sMR}, 0, s{sPR}'); e(f'  s_mul_i32 s{sAR}, s{sPR}, 224')
e(f'  s_sub_u32 s{sMC}, 0, s{sPC}'); e(f'  s_mul_i32 s{sAC}, s{sPC}, 224')
e(f'  v_and_b32 v{tA}, 7, v{vn}')
e(f'  s_mul_i32 s{sT[0]}, s{sH}, 7'); e(f'  s_add_i32 s{sT[0]}, s{sT[0]}, s{sKC}')
e(f'  v_cmp_lt_u32 s[{sT[2]}:{sT[3]}], 6, v{tA}')
e(f'  v_add_u32 v{tA}, s{sT[0]}, v{tA}')
e(f'  v_max_i32 v{vCT}, 0, v{tA}')
e(f'  v_add3_u32 v{tA}, v{tA}, v{vCT}, 6')
e(f'  v_xor_b32 v{tA}, s{sMC}, v{tA}'); e(f'  v_add_u32 v{tA}, s{sAC}, v{tA}')
e(f'  v_subrev_u32 v{vCT}, s{sKC}, v{vCT}')
e(f'  v_mul_u32_u24 v{tA}, 384, v{tA}'); e(f'  v_lshl_add_u32 v{tA}, v{vg}, 4, v{tA}')
e(f'  s_lshl_b32 s{sT[0]}, s{sU}, 2'); e(f'  s_add_i32 s{sT[0]}, s{sT[0]}, -2')
e(f'  s_mov_b32 s{sT[1]}, 86016')
e(f'  v_lshrrev_b32 v{tB}, 3, v{vn}'); e(f'  v_add_u32 v{tB}, s{sT[0]}, v{tB}')
e(f'  v_mov_b32 v{tC}, 0x80000000')
for t in range(2):
    if t: e(f'  v_add_u32 v{tB}, 2, v{tB}')
    e(f'  v_cmp_gt_i32 s[{sINV[t]}:{sINV[t]+1}], 0, v{tB}')
    e(f'  v_add_u32 v{vO[t]}, s{sTR}, v{tB}')
    e(f'  v_max_i32 v{vRR[t]}, 0, v{vO[t]}')
    e(f'  v_add3_u32 v{vO[t]}, v{vO[t]}, v{vRR[t]}, 6')
    e(f'  s_or_b64 s[{sINV[t]}:{sINV[t]+1}], s[{sINV[t]}:{sINV[t]+1}], s[{sT[2]}:{sT[3]}]')
    e(f'  v_xor_b32 v{vO[t]}, s{sMR}, v{vO[t]}'); e(f'  v_add_u32 v{vO[t]}, s{sAR}, v{vO[t]}')
    e(f'  v_subrev_u32 v{vRR[t]}, s{sKR}, v{vRR[t]}')
    e(f'  v_mad_u32_u24 v{vO[t]}, v{vO[t]}, s{sT[1]}, v{tA}')
    e(f'  v_cndmask_b32 v{vRR[t]}, v{vRR[t]}, v{tC}, s[{sINV[t]}:{sINV[t]+1}]')
    e(f'  v_cndmask_b32 v{vO[t]}, v{vO[t]}, v{tC}, s[{sINV[t]}:{sINV[t]+1}]')

e('  s_waitcnt lgkmcnt(0)')
tsp()
el(srd(88, 6, 192*576*2))
if 'tlb' in OPT or 'tlball' in OPT:
    e(f'  s_cmp_lg_u32 s{sW}, 5'); e('  s_cbranch_scc1 MK_ntlb')
    e(f'  s_max_i32 s{sT[0]}, s{sTR}, 0'); e(f'  s_lshl_b32 s{sT[0]}, s{sT[0]}, 1'); e(f'  s_sub_u32 s{sT[1]}, 184, s{sT[0]}')
    e(f'  s_cmp_eq_u32 s{sPR}, 0'); e(f'  s_cselect_b32 s{sT[0]}, s{sT[0]}, s{sT[1]}'); e(f'  s_mul_i32 s{sT[0]}, s{sT[0]}, 86016')
    for k in range(3):
        e(f'  s_load_dword s94, s[4:5], s{sT[0]}')
        if 'tlball' in OPT: e(f'  s_load_dword s95, s[10:11], s{sT[0]}')
        if k < 2: e(f'  s_add_u32 s{sT[0]}, s{sT[0]}, {20*86016 - 64}')
    if 'tlball' in OPT: e(f'  s_load_dword s94, s[84:85], 128'); e(f'  s_load_dword s95, s[86:87], 0x20000')
    e('MK_ntlb:')

def w_pieces(c, partner=0):
    return [[f'  s_add_i32 m0, s{sWL}, {CH[c] + mat*24576 + j*8192 + partner*4096}',
             f'  s_add_i32 s{sVO}, s{sWB}, {(j*64 + partner*32)*1152 + mat*384 + c*128}',
             f'  buffer_load_dwordx4 v{vWA}, {RW}, s{sVO} offen lds'] for mat in range(2) for j in range(3)]
def q_loads():
    return [f'  buffer_load_dwordx4 {V(XQ+24*t+4*s_)}, v{vO[t]}, {RX}, 0 offen offset:{64*s_}{NT}' for t in (1, 0) for s_ in range(6)]
def q_stage():
    return [[f'  s_add_u32 m0, s{sST}, {(1-t)*24576 + (3*qr + l)*1024 - 128*l}', '  s_nop 0',
             f'  buffer_load_dwordx4 v{QA[qr]}, {RX}, s{sQR[2*t+qr]} offen offset:{128*l}{NT} lds'] for t in (1, 0) for qr in range(2) for l in range(3)]
def q_reads():
    return ([f'  v_xor_b32 v{tA}, 64, v{vQR}'] +
            [f'  ds_read_b128 {V(XQ+24*t+4*s_)}, v{(vQR, tA)[s_ % 2]} offset:{(1-t)*24576 + 1024*(s_//2)}' for t in range(2) for s_ in range(6)])
SCH = {'O': OPT.get('so', 'A:W0+V0,0:W2+V2,4:q6,Z:q6'), 'Y': OPT.get('sy', 'C:W1+V1,1:q4,2:q4,3:q4')}
PLAN = {}; ISS = {'O': [], 'Y': []}
for r_, sp in SCH.items():
    qi = 0
    for part in sp.split(','):
        pos, items = part.split(':')
        for it in items.split('+'):
            lst = PLAN.setdefault((r_, pos), [])
            if it[0] == 'W': lst += [(f'W{it[1]}', p) for p in w_pieces(int(it[1]))]
            elif it[0] == 'V': lst += [(f'W{it[1]}', p) for p in w_pieces(int(it[1]), 1 if r_ == 'O' else -1)]
            elif it in 'pr':
                assert pos == 'A'
                lst.append(('t', [f'  v_min_u32 v253, 2, v{vg}', f'  v_mad_u32_u24 v253, v253, s{sT[8]}, v{vO[1 if it == "p" else 0]}',
                                  f'  buffer_load_dword v{252 if it == "p" else 251}, v253, {RX}, 0 offen']))
            else:
                for _ in range(int(it[1:])):
                    if r_ == 'Y' and qi >= 6: lst.append(('b', [f'  s_cmp_eq_u32 s{sU}, 0', f'  s_cbranch_scc1 QB{qi}', q_loads()[qi], f'QB{qi}:']))
                    elif r_ == 'O': lst.append(('q', q_stage()[qi])); assert pos in ('34Z' if qi < 6 else 'Z') and opt('sya', 0) == 0
                    else: lst.append(('q', [q_loads()[qi]]))
                    qi += 1
    assert qi == 12
lbl = [0]
def role_lines(r_, lines):
    lbl[0] += 1
    return [f'  s_cbranch_vcc{"z" if r_ == "O" else "nz"} SL{lbl[0]}'] + list(lines) + [f'SL{lbl[0]}:']
def role2_lines(lo, ly):
    lbl[0] += 1; n = lbl[0]
    return [f'  s_cbranch_vccz SL{n}'] + list(lo) + [f'  s_branch SM{n}', f'SL{n}:'] + list(ly) + [f'SM{n}:']
def sched_items(pos):
    o, y = list(PLAN.get(('O', pos), [])), list(PLAN.get(('Y', pos), []))
    out = []
    while o or y: out.append((o.pop(0) if o else None, y.pop(0) if y else None))
    return out
def emit_item(it):
    o, y = it
    if o: ISS['O'].append(o[0])
    if y: ISS['Y'].append(y[0])
    if o and y and o == y: el(o[1])
    elif o and y: el(role2_lines(o[1], y[1]))
    elif o: el(role_lines('O', o[1]))
    else: el(role_lines('Y', y[1]))
def emit_pos(pos):
    o, y = PLAN.get(('O', pos), []), PLAN.get(('Y', pos), [])
    k = 0
    while k < len(o) and k < len(y) and o[k] == y[k]: emit_item((o[k], y[k])); k += 1
    for r_, x in (('O', o[k:]), ('Y', y[k:])):
        if x:
            ISS[r_] += [i[0] for i in x]; el(role_lines(r_, sum((i[1] for i in x), [])))
def after(r_, tag):
    l = ISS[r_]
    if tag not in l: return len(l) if tag == 'W0' else 63
    return min(63, len(l) - 1 - max(i for i, t in enumerate(l) if t == tag))

W_AT = len(L)
if 'nowpf' not in OPT:
    WPW = opt('wpw', 2)
    e(f'  s_lshr_b32 s{sT[0]}, s{sW}, 1'); e(f'  s_cmp_lg_u32 s{sT[0]}, {WPW // 2}'); e('  s_cbranch_scc1 MK_nwpf')
    e(f'  s_cmp_eq_u32 s{sW}, {WPW}'); e(f'  s_cselect_b32 s{sT[0]}, 54, 18')
    e('  s_cselect_b32 s12, s6, s8'); e('  s_cselect_b32 s13, s7, s9'); e('  s_and_b32 s13, s13, 0xffff')
    e(f'  s_lshr_b32 s{sT[1]}, s2, 3'); e(f'  s_mul_i32 s{sT[1]}, s{sT[1]}, s{sT[0]}'); e(f'  s_lshl_b32 s{sVO}, s{sT[1]}, 7')
    e(f'  s_lshl_b32 s{sT[0]}, s{sT[0]}, 7'); e(f'  s_add_u32 s14, s{sVO}, s{sT[0]}'); e('  s_mov_b32 s15, 0x00020000')
    e('  v_lshlrev_b32 v23, 7, v0')
    e(f'  buffer_load_dword v254, v23, s[12:15], s{sVO} offen')
    e('MK_nwpf:')
WPF = []
if 'latewpf' not in OPT:
    WPF = L[W_AT:]; del L[W_AT:]
el(srd(12, 4, X_BYTES))
e(f'  s_movk_i32 s{sT[8]}, 112')
if 'noearly' in OPT: emit_pos('A')
else:
    assert ('Y', 'A') not in PLAN
    it = PLAN[('O', 'A')]; ISS['O'] += [i[0] for i in it]
    L[EARLY_AT:EARLY_AT] = role_lines('O', ['  s_waitcnt lgkmcnt(0)'] + WPF + srd(88, 6, 192*576*2) + sum((i[1] for i in it), []))
tsp()
el(srd(16, 10, X_BYTES)); el(srd(4, 8, 192*192*2)); el(srd(8, 84, 256)); el(srd(20, 86, WS_BYTES if TS else 73728))
e(f'  v_lshlrev_b32 v{vL0}, 4, v0')
e(f'  v_add_u32 v{vL1}, {HALF}, v{vL0}')
e(f'  s_and_b32 s{sW4}, s{sW}, 3'); e(f'  s_lshl_b32 s{sW4}, s{sW4}, 10')
e(f'  v_bfe_u32 v{tA}, v{vn}, 1, 3'); e(f'  v_xor_b32 v{tA}, v{tA}, v{vg}')
e(f'  v_lshlrev_b32 v{tB}, 7, v{vn}'); e(f'  v_lshl_add_u32 v{tB}, v{tA}, 4, v{tB}')
e(f'  s_lshr_b32 s{sT[0]}, s{sW}, 2'); e(f'  s_mul_i32 s{sT[1]}, s{sT[0]}, {6*2048}'); e(f'  s_add_u32 s{sT[1]}, s{sT[1]}, {CH[0]}')
e(f'  v_add_u32 v{vMA[0]}, s{sT[1]}, v{tB}'); e(f'  v_xor_b32 v{vMA[1]}, 64, v{vMA[0]}')
e(f'  s_mul_i32 s{sT[1]}, s{sW4}, 6'); e(f'  s_add_u32 s{sT[1]}, s{sT[1]}, {24576 + CH[0]}')
e(f'  v_add_u32 v{vMB[0]}, s{sT[1]}, v{tB}'); e(f'  v_xor_b32 v{vMB[1]}, 64, v{vMB[0]}')
F = []; f_ = F.append
f_(f'  s_lshr_b32 s{sT[0]}, s{sW}, 2'); f_(f'  s_mul_i32 s{sT[0]}, s{sT[0]}, 3072'); f_(f'  s_mul_i32 s{sT[1]}, s{sW4}, 18')
f_(f'  s_add_u32 s{sT[0]}, s{sT[0]}, s{sT[1]}'); f_(f'  s_sub_u32 s{sT[0]}, {(71-14)*1024}, s{sT[0]}')
f_(f'  v_add_u32 v{vMW[0]}, s{sT[0]}, v{vL0}')
f_(f'  s_lshl_b32 s{sT[0]}, s{sKR}, 1'); f_(f'  s_xor_b32 s{sT[0]}, s{sT[0]}, s{sMR}')
f_(f'  s_mul_i32 s{sT[1]}, s{sPR}, 222'); f_(f'  s_add_i32 s{sXB}, s{sT[0]}, s{sT[1]}')
f_(f'  s_mul_i32 s{sXB}, s{sXB}, 86016')
f_(f'  s_mul_i32 s{sGS}, s{sPR}, {-2*344064}'); f_(f'  s_add_i32 s{sGS}, s{sGS}, 344064')
f_(f'  s_lshr_b32 s{sGmin}, s{sKR}, 31'); f_(f'  s_lshl_b32 s{sGmin}, s{sGmin}, 1')
f_(f'  s_lshl_b32 s{sM0X}, s{sW4}, 2')
f_(f'  s_add_u32 s{sM0X3}, s{sM0X}, 3072'); f_(f'  s_min_u32 s{sM0X3}, s{sM0X3}, {14*1024}')
f_(f'  s_mul_i32 s{sT[2]}, s{sPR}, 172032'); f_(f'  s_sub_u32 s{sT[3]}, 172032, s{sT[2]}')
f_(f'  v_mov_b32 v{tC}, s{sT[2]}'); f_(f'  v_mov_b32 v{tD}, s{sT[3]}')
for b in range(960): assert (b * 2731) >> 16 == b // 24
for j in range(4):
    d = vD[j]
    if j < 3:
        f_(f'  s_lshr_b32 s{sT[0]}, s{sM0X}, 4'); f_(f'  s_add_u32 s{sT[0]}, s{sT[0]}, {64*j}')
    else: f_(f'  s_lshr_b32 s{sT[0]}, s{sM0X3}, 4')
    f_(f'  v_add_u32 v{tA}, s{sT[0]}, v0')
    f_(f'  v_mul_u32_u24 v{d}, 2731, v{tA}'); f_(f'  v_lshrrev_b32 v{d}, 16, v{d}')
    f_(f'  v_cmp_le_u32 {MSK}, 20, v{d}')
    f_(f'  v_mul_u32_u24 v{tB}, 24, v{d}'); f_(f'  v_sub_u32 v{tA}, v{tA}, v{tB}')
    f_(f'  v_subrev_u32 v{tB}, 20, v{d}')
    f_(f'  v_cndmask_b32 v{d}, v{d}, v{tB}, {MSK}')
    f_(f'  v_bfe_u32 v{tB}, v{d}, 1, 3'); f_(f'  v_xor_b32 v{tA}, v{tA}, v{tB}')
    f_(f'  v_cndmask_b32 v{tB}, v{tC}, v{tD}, {MSK}')
    f_(f'  v_lshl_add_u32 v{tA}, v{tA}, 4, v{tB}')
    f_(f'  v_add_u32 v{d}, s{sKC}, v{d}'); f_(f'  v_max_i32 v{d}, 0, v{d}'); f_(f'  v_lshlrev_b32 v{d}, 1, v{d}')
    f_(f'  v_xor_b32 v{d}, s{sMC}, v{d}'); f_(f'  v_add_u32 v{d}, s{sAC}, v{d}')
    f_(f'  v_mul_u32_u24 v{d}, 384, v{d}'); f_(f'  v_add_u32 v{d}, v{d}, v{tA}')
f_(f'  s_add_u32 s{sM0X}, s{sM0X}, {XB}'); f_(f'  s_add_u32 s{sM0X3}, s{sM0X3}, {XB}')
F_ROWS = len(F) + 2
for dst, add in ((sT[0], -2), (sA2, 0)):
    f_(f'  s_lshl_b32 s{dst}, s{sU}, 2')
    if add: f_(f'  s_add_i32 s{dst}, s{dst}, {add}'); f_(f'  s_max_i32 s{dst}, s{dst}, 0')
    f_(f'  s_add_i32 s{dst}, s{dst}, s{sTR}'); f_(f'  s_max_i32 s{dst}, s{dst}, 0'); f_(f'  s_sub_i32 s{dst}, s{dst}, s{sKR}')
f_(f'  s_sub_u32 s{sT[0]}, s{sA2}, s{sT[0]}'); f_(f'  s_lshr_b32 s{sT[0]}, s{sT[0]}, 1')
f_(f'  s_mul_i32 s{sD0}, s{sT[0]}, -8'); f_(f'  s_add_i32 s{sD0}, s{sD0}, 7')
f_(f'  s_add_i32 s{sA2}, s{sA2}, -1')
f_(f'  s_add_i32 s{sR0}, s{sA2}, s{sD0}'); f_(f'  s_mul_i32 s{sD0}, s{sD0}, {ROW}')
f_(f'  s_lshl_b32 s{sT[1]}, s{sH}, 2')
f_(f'  s_mul_i32 s{sT[0]}, s{sA2}, {ROW}'); f_(f'  s_add_i32 s{sT[0]}, s{sT[0]}, {XB}')
f_(f'  v_add_u32 v{tA}, s{sT[1]}, v{vn}')
f_(f'  v_bfe_u32 v{tB}, v{tA}, 1, 3'); f_(f'  v_xor_b32 v{tB}, v{tB}, v{vg}')
f_(f'  v_mul_u32_u24 v{tA}, 384, v{tA}'); f_(f'  v_lshl_add_u32 v{tA}, v{tB}, 4, v{tA}')
f_(f'  v_add_u32 v{vSe}, s{sT[0]}, v{tA}'); f_(f'  v_xor_b32 v{vSo}, 64, v{vSe}')
f_(f'  v_lshrrev_b32 v{tA}, 2, v{vn}'); f_(f'  v_lshl_add_u32 v{tA}, v{vg}, 2, v{tA}'); f_(f'  v_add_u32 v{tA}, s{sT[1]}, v{tA}')
f_(f'  v_bfe_u32 v{tB}, v{tA}, 1, 3')
f_(f'  v_and_b32 v{tC}, 2, v{vn}'); f_(f'  v_lshlrev_b32 v{tC}, 1, v{tC}'); f_(f'  v_xor_b32 v{tB}, v{tB}, v{tC}')
f_(f'  v_mul_u32_u24 v{tA}, 384, v{tA}'); f_(f'  v_lshl_add_u32 v{tA}, v{tB}, 4, v{tA}')
f_(f'  v_and_b32 v{tB}, 1, v{vn}'); f_(f'  v_lshl_add_u32 v{tA}, v{tB}, 3, v{tA}')
f_(f'  v_add_u32 v{vP[0]}, s{sT[0]}, v{tA}')
for k in range(1, 4): f_(f'  v_xor_b32 v{vP[k]}, {16*k}, v{vP[0]}')
f_(f'  v_lshl_add_u32 v{tA}, v{vg}, 2, s{sT[1]}'); f_(f'  v_sub_u32 v{vCT}, v{tA}, v{vCT}')
f_(f'  v_cndmask_b32 v{vCT}, v{vCT}, 64, s[{sINV[1]}:{sINV[1]+1}]')
f_(f'  v_add_u32 v{SB0[0]}, s{sD0}, v{vSe}'); f_(f'  v_add_u32 v{SB0[1]}, s{sD0}, v{vSo}')
for k in range(4): f_(f'  v_add_u32 v{PB0[k]}, s{sD0}, v{vP[k]}')
f_(f'  s_mov_b32 s{sSC}, {SCALE}')
o2 = [f'  v_lshrrev_b32 v{tD}, 4, v{vL0}', f'  v_lshrrev_b32 v{tA}, 3, v{tD}', f'  s_mul_i32 s{sT[4]}, s{sH}, 7', f'  s_add_i32 s{sT[4]}, s{sT[4]}, s{sKC}',
      f'  v_cmp_lt_u32 {MSK}, 6, v{tA}', f'  v_add_u32 v{tA}, s{sT[4]}, v{tA}', f'  v_max_i32 v{tB}, 0, v{tA}', f'  v_add3_u32 v{tA}, v{tA}, v{tB}, 6',
      f'  v_xor_b32 v{tA}, s{sMC}, v{tA}', f'  v_add_u32 v{tA}, s{sAC}, v{tA}', f'  v_mul_u32_u24 v{tA}, 384, v{tA}',
      f'  v_and_b32 v{tB}, 7, v{tD}', f'  v_xor_b32 v{tB}, v{tB}, v{vg}', f'  v_lshl_add_u32 v{tA}, v{tB}, 4, v{tA}', f'  v_mov_b32 v{tB}, 0x80000000',
      f'  v_cndmask_b32 v{QA[0]}, v{tA}, v{tB}, {MSK}', f'  v_xor_b32 v{QA[1]}, 64, v{QA[0]}',
      f'  s_lshl_b32 s{sT[0]}, s{sU}, 2', f'  s_add_i32 s{sT[0]}, s{sT[0]}, s{sTR}']
for k in range(4):
    d = sQR[k]
    o2 += [f'  s_lshl_b32 s{d}, s{sT[0]}, 1', f'  s_add_i32 s{d}, s{d}, {2*(k-2) + 6}', f'  s_xor_b32 s{d}, s{d}, s{sMR}', f'  s_add_i32 s{d}, s{d}, s{sAR}', f'  s_mul_i32 s{d}, s{d}, 86016']
o2 += [f'  s_mul_i32 s{sST}, s{sW4}, 6', f'  s_add_u32 s{sST}, s{sST}, {SO}',
       f'  v_bfe_u32 v{tA}, v{vn}, 1, 3', f'  v_xor_b32 v{tA}, v{tA}, v{vg}', f'  v_lshlrev_b32 v{tB}, 7, v{vn}', f'  v_lshl_add_u32 v{tB}, v{tA}, 4, v{tB}',
       f'  v_lshrrev_b32 v{tA}, 3, v{vn}', f'  v_lshl_add_u32 v{tA}, v{tA}, 11, v{tB}', f'  v_add_u32 v{vQR}, s{sST}, v{tA}']
OLATE = opt('olate', 2)
F.insert(0, f'  v_mov_b32 v{vNB}, 0'); F.insert(0, f'  v_mov_b32 v{vNA}, 0')
if OLATE == 0: F += role_lines('O', o2); o2 = []
NPRE = opt('npre', 999)
NB1 = opt('nb1', 8)
el(F[:NB1]); emit_pos('B')
if OLATE == 2:
    assert NB1 in (2, 8)
    el(role2_lines([f'  v_mov_b32 v{r}, 0' for r in vD], F[NB1:])); o2 = F[NB1:] + o2
elif OLATE == 3:
    el(F[NB1:F_ROWS]); el(role_lines('Y', F[F_ROWS:])); o2 = F[F_ROWS:] + o2
elif OLATE == 4:
    el(role2_lines([f'  v_mov_b32 v{r}, 0' for r in vD], F[NB1:])); o3 = F[NB1:F_ROWS]; o2 = F[F_ROWS:] + o2
else: el(F[NB1:])
F = []

def dma_x(G):
    out = []
    if G < 2: out += [f'  s_max_u32 s{sVO}, s{sGmin}, {G}', f'  s_mul_i32 s{sVO}, s{sVO}, s{sGS}']
    else: out.append(f'  s_mul_i32 s{sVO}, s{sGS}, {G}')
    out.append(f'  s_add_i32 s{sVO}, s{sVO}, s{sXB}')
    for j in range(4):
        out.append(f'  s_add_u32 m0, s{sM0X}, {G*15360 + j*1024}' if j < 3 else f'  s_add_u32 m0, s{sM0X3}, {G*15360}')
        out.append('  s_nop 0')
        out.append(f'  buffer_load_dwordx4 v{vD[j]}, {RX}, s{sVO} offen{NT} lds')
    return out
def dma_xs(Gs): return sum((dma_x(G) for G in Gs), [])
SPECIAL = [(1, 7), (1, 0), (0, 7), (0, 1), (0, 0)]
def bias_init(tmp, MID, TL):
    out = []; o = out.append
    ninf, tt = tmp, tmp+1
    sp = [x for x in SPECIAL if x[0] in TL]
    o(f'  v_mov_b32 v{ninf}, 0xff800000')
    for i in range(4): o(f'  v_add_u32 v{tt+i}, {i}, v{vCT}')
    for i in range(4): o(f'  v_cmp_gt_u32 s[{sT[2+2*i]}:{sT[3+2*i]}], 7, v{tt+i}')
    for q, (t, jj) in enumerate(sp):
        slot = jj + 2*t
        if slot == 0: o(f'  v_sub_u32 v{tt+4+q}, s{sR0}, v{vRR[t]}')
        else:
            o(f'  s_add_i32 s{sT[0]}, s{sA2}, {slot-1}'); o(f'  v_sub_u32 v{tt+4+q}, s{sT[0]}, v{vRR[t]}')
    for i in range(4): o(f'  v_cndmask_b32 v{MID+i}, v{ninf}, 0, s[{sT[2+2*i]}:{sT[3+2*i]}]')
    for q in range(len(sp)): o(f'  v_cmp_gt_u32 s[{sT[2*q]}:{sT[2*q+1]}], 7, v{tt+4+q}')
    for q, (t, jj) in enumerate(sp):
        for i in range(4): o(f'  v_cndmask_b32 v{SACC[t]+4*jj+i}, v{ninf}, v{MID+i}, s[{sT[2*q]}:{sT[2*q+1]}]')
    return out

tsp()
emit_pos('C')
tsp()
vLN = 107
def n_loads():
    e(f'  v_lshrrev_b32 v{vLN}, 4, v{vL0}')
    e(f'  s_cmp_lt_u32 s2, 72'); e('  s_cbranch_scc0 MK_np1')
    e(f'  s_mul_hi_u32 s{sT[8]}, s2, 0x15555556'); e(f'  s_lshl_b32 s{sT[8]}, s{sT[8]}, 6')
    e(f'  s_mul_i32 s{sT[9]}, s{sW}, {16*384}'); e(f'  s_add_u32 s{sVO}, s{sT[8]}, s{sT[9]}')
    e(f'  v_lshrrev_b32 v{MPK}, 2, v{vLN}'); e(f'  v_mul_u32_u24 v{MPK}, 384, v{MPK}'); e(f'  v_and_b32 v{MPK+1}, 3, v{vLN}'); e(f'  v_lshl_add_u32 v{MPK}, v{MPK+1}, 4, v{MPK}')
    e(f'  s_add_u32 m0, s{sWL}, {WOL}'); e('  s_nop 0')
    e(f'  buffer_load_dwordx4 v{MPK}, {RWO}, s{sVO} offen lds')
    e(f'  s_mul_i32 s{sT[9]}, s{sW4}, 6'); e(f'  s_add_u32 s{sVO}, s{sT[8]}, s{sT[9]}')
    e(f'  s_add_u32 m0, s{sW4}, {WOL + 8192}'); e(f'  s_add_u32 s{sVO}, s{sVO}, {8*16*384}')
    e(f'  buffer_load_dwordx4 v{MPK}, {RWO}, s{sVO} offen lds')
    e('MK_np1:')
    e(f'  s_sub_u32 s{sPROD}, s2, 72'); e(f'  s_lshr_b32 s{sPROD}, s{sPROD}, 31')
    e(f'  s_lshr_b32 s{sPROD}, s{sPROD}, s{sU}')
    e(f'  s_cmp_eq_u32 s{sPROD}, 0'); e('  s_cbranch_scc1 MK_np3')
    e(f'  s_mul_hi_u32 s{sT[8]}, s2, 0x15555556'); e(f'  s_mul_i32 s{sT[9]}, s{sT[8]}, 12'); e(f'  s_sub_u32 s{sT[9]}, s2, s{sT[9]}')
    e(f'  s_cmp_ge_u32 s{sT[9]}, 6'); e(f'  s_cselect_b32 s{sT[5]}, 1, 0'); e(f'  s_mul_i32 s{sVO}, s{sT[5]}, 6'); e(f'  s_sub_u32 s{sT[9]}, s{sT[9]}, s{sVO}')
    e(f'  v_lshrrev_b32 v{MPK+2}, 2, v{vn}'); e(f'  v_and_b32 v{MPK+1}, 3, v{vn}')
    e(f'  v_lshl_add_u32 v{vNB}, v{vg}, 3, v{MPK+2}'); e(f'  v_lshlrev_b32 v{vNB}, 6, v{vNB}'); e(f'  v_lshl_add_u32 v{vNB}, v{MPK+1}, 4, v{vNB}')
    e(f'  s_lshl_b32 s{sT[5]}, s{sT[5]}, 3'); e(f'  s_add_u32 s{sT[5]}, s{sT[5]}, {WOL}'); e(f'  v_add_u32 v{vNB}, s{sT[5]}, v{vNB}')
    e(f'  s_lshr_b32 s{sT[8]}, s{sT[9]}, 1'); e(f'  s_lshl_b32 s{sT[8]}, s{sT[8]}, 6')
    e(f'  s_and_b32 s{sT[9]}, s{sT[9]}, 1'); e(f'  s_lshl_b32 s{sT[9]}, s{sT[9]}, 4'); e(f'  s_add_u32 s{sT[8]}, s{sT[8]}, s{sT[9]}')
    e(f'  v_lshrrev_b32 v{MPK}, 1, v{MPK+2}'); e(f'  v_lshlrev_b32 v{MPK}, 5, v{MPK}')
    e(f'  v_and_b32 v{MPK+2}, 1, v{MPK+2}'); e(f'  v_lshl_add_u32 v{MPK}, v{MPK+2}, 2, v{MPK}')
    e(f'  v_add3_u32 v{MPK}, v{MPK}, v{MPK+1}, s{sT[8]}')
    e(f'  v_mul_u32_u24 v{MPK}, 1152, v{MPK}'); e(f'  v_lshl_add_u32 v{vNA}, v{vg}, 4, v{MPK}')
    e(f'  s_mul_i32 s{sVO}, s{sH}, 9216')
    for kk in range(6):
        e(f'  buffer_load_dwordx4 {V(136+4*kk)}, v{vNA}, {RW}, s{sVO} offen offset:{768+64*kk}')
    e('MK_np3:')
def m_reads(kk):
    rb = 184 + 36*(kk % 2); co = (kk // 2) * 49152
    lo = co if co < 49152*2 else 0
    return ([f'  ds_read_b128 {V(rb+24+4*b)}, v{vMB[kk % 2]} offset:{2048*b}' for b in range(3)] +
            [f'  ds_read_b128 {V(rb+4*a)}, v{vMA[kk % 2]} offset:{2048*a}' for a in range(6)])
def chunk_sync(c, lg):
    wo_, wy_ = after('O', f'W{c}'), after('Y', f'W{c}')
    x = ' lgkmcnt(0)' if lg else ''
    def w(n, prod):
        if c == 2 and prod and ISS['Y'].count('b'):
            return [f'  s_cmp_lg_u32 s{sU}, 0', '  s_cbranch_scc1 MK_c2', f'  s_waitcnt vmcnt({n - ISS["Y"].count("b")})', 'MK_c2:', f'  s_waitcnt vmcnt({n}){x}']
        if c != 1 or n == 63: return [f'  s_waitcnt vmcnt({n}){x}']
        lbl[0] += 1; k = lbl[0]; o = []
        if prod: o += [f'  s_cmp_lg_u32 s{sPROD}, 0', f'  s_cbranch_scc1 CA{k}']
        o += ['  s_cmp_lt_u32 s2, 72', f'  s_cbranch_scc1 CB{k}', f'  s_waitcnt vmcnt({n})', f'CB{k}:']
        if prod: o += [f'  s_waitcnt vmcnt({n+2})', f'CA{k}:', f'  s_waitcnt vmcnt({n+8}){x}']
        else: o += [f'  s_waitcnt vmcnt({n+2}){x}']
        return o
    if c == 2:
        wo_, wy_ = min(wo_, len(ISS['O']) - N_AT['O']), min(wy_, len(ISS['Y']) - N_AT['Y'])
    assert c != 1 or 'b' not in ISS['Y']
    if wo_ == wy_ and c != 2: el(w(wo_, True))
    else: el(role2_lines(w(wo_, False), w(wy_, True)))
    e('  s_barrier')
    if opt('dz', -1) == c: e(f"  s_sleep {opt('dzn', 8)}")
    if c == 1:
        for i_ in range(opt('xm', 0)): e(mfma(108 + 4*(i_ % 4), 220 + 4*(i_ % 6), 244 + 4*(i_ % 3), None if i_ < 4 else 108 + 4*(i_ % 4)))
    tsp()
N_AT = {}
FPG = opt('fpg', 4)
chunk_sync(0, False)
el(m_reads(0))
SYA = opt('sya', 0)
for kk in range(4):
    odd = kk % 2 == 1
    extra = sched_items(str(kk)); ne = len(extra); cnt = 0
    rb = 184 + 36*(kk % 2)
    nx = m_reads(kk+1)
    issued = 0
    for a in range(6):
        if odd and a == SYA:
            chunk_sync(kk // 2 + 1, True)
            for r in vMA + vMB: e(f'  v_add_u32 v{r}, 49152, v{r}')
        if not (odd and a >= SYA): e(f'  s_waitcnt lgkmcnt({5 - a + issued})')
        for b in range(3):
            acc = MACC + 12*a + 4*b
            e(mfma(acc, rb+4*a, rb+24+4*b, None if kk == 0 else acc))
            slots = FPG
            if odd:
                for _ in range(1 if SYA <= 3 else 2):
                    if nx and a >= SYA and (b < 2 or SYA >= 2): e(nx.pop(0)); slots -= 1
            elif nx and b < 2 and a >= 1:
                e(nx.pop(0)); issued += 1; slots -= 1
            cnt += 1
            while extra and (ne - len(extra)) * 18 < cnt * ne: emit_item(extra.pop(0)); slots = 0
            el(F[:max(slots, 0)]); F = F[max(slots, 0):]
    el(nx)
    assert not extra
    if OLATE == 4 and kk == opt('olk3', 0): el(role_lines('O', o3))
    if kk == opt('olk', 1) and o2: el(role_lines('O', o2))
    if kk == 0: n_loads(); N_AT.update(O=len(ISS['O']), Y=len(ISS['Y']))
print('leftover F', len(F), file=sys.stderr); el(F); F = []
assert ISS['Y'].count('q') <= 6
e(f'  s_cmp_eq_u32 s{sPROD}, 0'); e('  s_cbranch_scc1 MK_np2')
e('  s_waitcnt lgkmcnt(0)')
for k2 in range(6):
    for hf in range(2):
        e(f'  ds_read_b64_tr_b16 {V(MPK+4*k2+2*hf, 2)}, v{vNB} offset:{(32*k2 + 4*hf)*64}')
e('  s_setprio 3'); e('  s_waitcnt lgkmcnt(0)')
for kk in range(6):
    e(mfma(128, 136+4*kk, MPK+4*kk, None if kk == 0 else 128))
e(f'  s_lshl_b32 s{sVO}, s2, 10'); e(f'  s_lshl_b32 s{sT[8]}, s{sH}, 3'); e(f'  s_add_u32 s{sVO}, s{sVO}, s{sT[8]}')
e('  s_nop 5')
for r in range(2): e(f'  v_cvt_pk_bf16_f32 v{132+r}, v{128+2*r}, v{129+2*r}')
e(f'  buffer_store_dwordx2 v[132:133], v{vL0}, {RWS}, s{sVO} offen sc1')
NY_AT_STORE = len(ISS['Y'])
e('  s_setprio 0')
e('MK_np2:')
r5 = m_reads(5)
el(r5[:5]); late = r5[5:]
extra = sched_items('4'); ne = len(extra); cnt = 0
pend = []; nw = 0; wq = []
BWF = 0
for fi in range(9):
    a3, b = fi // 3, fi % 3
    if fi == 0: e('  s_waitcnt lgkmcnt(5)')
    if fi == 2: e('  s_waitcnt lgkmcnt(0)')
    seq = [(4, 2*a3), (4, 2*a3+1), (5, 2*a3+1), (5, 2*a3)] if fi == 0 or 'nomch' in OPT else [(4, 2*a3), (5, 2*a3), (4, 2*a3+1), (5, 2*a3+1)]
    for q_, (kk, a) in enumerate(seq):
        rb = 184 + 36*(kk % 2)
        if fi == 0 and q_ == 2: e('  s_waitcnt lgkmcnt(2)')
        if True:
            acc = MACC + 12*a + 4*b
            e(mfma(acc, rb+4*a, rb+24+4*b, acc)); cnt += 1
            if late: e(late.pop(0))
            k = 0
            while wq and fi >= BWF and k < 1: e(wq.pop(0)); k += 1
            while pend and pend[0][0] <= cnt and k < 2:
                l = pend.pop(0)[1]
                if 'ds_write' in l and k > 0: wq.append(l); break
                else: e(l); k += 1
            while extra and (ne - len(extra)) * 36 < cnt * ne: emit_item(extra.pop(0))
    o = MPK + 4*(fi % 6)
    for a in range(2):
        acc = MACC + 12*(2*a3 + a) + 4*b
        for i in range(2): pend.append((cnt + 6, f'  v_cvt_pk_bf16_f32 v{o+2*a+i}, v{acc+2*i}, v{acc+2*i+1}'))
    pend.append((cnt + 6, f'  ds_write_b128 v{vMW[0]}, {V(o)} offset:{1024*(2-a3) + 6144*(2-b)}'))
assert not extra
tsp()
el(wq)
for i, (_, l) in enumerate(pend):
    if len(pend) - i == 5: e('  s_nop 3')
    e(l)
e('  s_waitcnt lgkmcnt(0)')
e('  s_barrier')
if opt('dz', -1) == 3: e('  s_sleep 8')
tsp()
NXY = opt('nxy', 2)
XH = (9, 8, 7, 6, 5)
assert ('Y', 'Z') not in PLAN and ('Y', '4') not in PLAN
y = [f'  s_cmp_lg_u32 s{sPROD}, 0', '  s_cbranch_scc1 MK_np4', '  s_waitcnt vmcnt(0)', 'MK_np4:', '  s_waitcnt vmcnt(1)', '  s_setprio 1']
o_ = sum((ls for _, ls in PLAN.get(('O', 'Z'), [])), []) + dma_xs(XH[:min(NXY, 2)]) + [f'  s_waitcnt vmcnt({4*min(NXY, 2)}) lgkmcnt(0)'] + q_reads() + ['  s_waitcnt lgkmcnt(0)', '  s_barrier'] + dma_xs(XH[2:max(NXY, 2)])
PRE_P1 = (o_, y)
PUB = [f'  s_cmp_eq_u32 s{sPROD}, 0', '  s_cbranch_scc1 MK_np5', '  s_waitcnt vmcnt(0)', '  v_mov_b32 v23, 1', '  s_mov_b64 exec, 1',
       *([f'  buffer_atomic_add v23, off, {RDB}, 0 sc1'] if 'atom' in OPT else
         [f'  s_lshl_b32 s{sVO}, s{sH}, 7', f'  buffer_atomic_add v23, off, {RDB}, s{sVO} sc1']), '  s_mov_b64 exec, -1', '  s_nop 3', 'MK_np5:']

BODY = r'''# ---------------- pipelined body
stream = []; frags = []
def add_frag(reads, gate): frags.append(dict(reads=reads, gate=gate, uses=0)); return len(frags) - 1
def use(fid, fn): frags[fid]['uses'] += 1; stream.append(('mfma', fn, fid))
def mf(text): stream.append(('mfma', (lambda buf: text), None))
def raw(*lines):
    for l in lines: stream.append(('raw', l))
def fill(*lines):
    for l in lines: stream.append(('fill', l))
def flush(): stream.append(('flush',))
def need(fid): stream.append(('need', fid))
def gate(name): stream.append(('gate', name))
def role(r, lines):
    if not lines: return
    if not SINGLE: stream.append(('cond', role_lines(r, lines)))
    elif r == 'Y': stream.append(('plain', lines))
def role2(lo, ly):
    if SINGLE or not lo: role('Y', ly)
    elif not ly: role('O', lo)
    else: stream.append(('cond', role2_lines(lo, ly)))
MID = SACC[1] + 4 if SINGLE else SACC[0] + 8
BAR = '  s_barrier'
SDMA = 'odma' not in OPT       # the single-tile waves load N
def m_read(f):
    addr = (71-f)*1024
    if addr < HALF: return [f'  ds_read_b128 {{d4}}, v{vL0} offset:{addr}']
    return [f'  ds_read_b128 {{d4}}, v{vL1} offset:{addr-HALF}']
def n_addr(f): return NHI + 30720 + 1024*f if f < 30 else ((f-30)*1024 if f < 40 else NHI + (f-40)*1024)
def n_read(f):
    if f >= 70: return []
    a = n_addr(f)
    return [f'  ds_read_b128 {{d4}}, v{vL1} offset:{a-NHI}' if a >= NHI else f'  ds_read_b128 {{d4}}, v{vL0} offset:{a}']
def dma_n(a, b):          # fragments a..b-1 (one address region), four waves
    out = []
    nw_ = 2 if SDMA else 4
    for f0 in range(a, b, nw_):
        lim = (b - 1 - f0) * 1024; src = sW4
        if lim < 1024*(nw_ - 1): out.append(f'  s_min_u32 s{sT[5]}, s{sW4}, {lim}'); src = sT[5]
        out += [f'  s_add_u32 m0, s{src}, {n_addr(f0)}', f'  s_add_u32 s{sVO}, s{src}, {f0*1024}',
                f'  buffer_load_dwordx4 v{vL0}, {RWS}, s{sVO} offen{NSC} lds']
    return out
CHAIN = [(0,0),(0,1),(0,2),(1,0),(1,1),(1,2),(1,3),(1,4),(1,5),(0,3),(0,4),(0,5)] if 'nochain' not in OPT else [(t, k) for k in range(6) for t in range(2)]
CHAIN = [x for x in CHAIN if x[0] in TL]
def proj(B, rd, gate_of, post, hooks):
    for s in range(6):
        for hh in range(2):
            f0 = 12*s + 6*hh
            fid = [add_frag(rd(f0+ks), gate_of(f0+ks)) for ks in range(6)]
            seen = set()
            for t, ks in (CHAIN if f0 or len(TL) == 1 or rd is m_read else [(t, k) for t in (1, 0) for k in range(6)]):
                f = f0 + ks
                if f0 == 0 and rd is n_read: stream.append(('flushto', f'YB{ks}' if t == TL[-1] else 'T1'))
                if ks not in seen:
                    seen.add(ks)
                    if f in hooks: hooks[f](fid[ks])
                acc = ACC + 16*(s % 2) + 8*t + 4*hh
                fx = None if rd(f) else NREG + 4*(f-70)
                use(fid[ks], (lambda buf, acc=acc, t=t, ks=ks, fx=fx: mfma(acc, buf if fx is None else fx, B(t, ks), None if ks == 0 else acc)))
            if hh == 1: stream.append(('flushto', f'post{s-1}'))
            fill(*post(s, hh))
        stream.append(('tag', f'post{s}'))

gate('G0')
role2(PRE_P1[0], PRE_P1[1] if SINGLE else ['  s_waitcnt vmcnt(0)', '  s_setprio 1'])
raw('BODY:' if not SINGLE else 'BODYS:')
BF = bias_init(SACC[1] + 8, MID, TL)
fill(*BF[:30])
def p1_post(s, hh):
    out = []
    for t in (1, 0):
        if t == 0 and s == 5 and hh == 1: out.append('#QP5a')
        if t not in TL: continue
        acc = ACC + 16*(s % 2) + 8*t + 4*hh
        for r in range(4): out.append(f'  v_mul_f32 v{acc+r}, s{sSC}, v{acc+r}')
        for r in range(2): out.append(f'  v_cvt_pk_bf16_f32 v{QP+24*t+4*s+2*hh+r}, v{acc+2*r}, v{acc+2*r+1}')
    return out
proj(lambda t, ks: XQ+24*t+4*ks, m_read, lambda f: 'G0', p1_post,
     {13: lambda fid: fill(*BF[30:35]), 25: lambda fid: fill(*BF[35:39]), 37: lambda fid: fill(*BF[39:44]), 49: lambda fid: fill(*BF[44:48]), 60: lambda fid: (fill(*BF[48:]), stream.append(('tag', 'BIAS'))),
      opt('yb1', 64): lambda fid: role('Y', [BAR]),
      31: lambda fid: (need(fid), role2([BAR], PUB if SINGLE else [])),                                  # B2
      61: lambda fid: (need(fid), role('O', ['  s_waitcnt vmcnt(0)', BAR]))})         # B3
if 'p1flush' in OPT: flush()
stream.append(('tag', 'QP5'))
fill(f'  v_add_u32 v{vL1}, {NHI}, v{vL0}')
for r in range(4): fill(f'  v_mov_b32 v{ONES+r}, 0x3f803f80')
POLL = f'  buffer_load_dword v13, off, {RDB}, 0 sc1' if 'atom' in OPT else f'  buffer_load_dword v13, v14, {RDB}, 0 offen sc1'
PSET = [] if 'atom' in OPT else [f'  v_and_b32 v14, {128 if NCT == 2 else 192}, v{vL0}']
PMODE = opt('pmode', 1)      # 0 early plain poll, 1 late plain poll, 2 none (diagnostic only)
role('Y', ['  s_setprio 0'] + dma_xs(XH[NXY:]) + [BAR] + dma_xs((4, 3, 2)) + 
     ['  s_waitcnt vmcnt(12)', BAR] + dma_xs((1, 0)) + ['  s_waitcnt vmcnt(8)', BAR])        # B2 B3 B4a
for _ in range(opt('idle', 0)): raw('  s_sleep 8')      # diagnostic only
gate('S')
etn = [0, 0]
def sm_fill(t, jj):
    pool = ((ET, ET+4), (ET+8, ET+12, ET+16))[t]
    tmp = pool[etn[t] % len(pool)]; etn[t] += 1
    acc = SACC[t] + 4*jj
    for i in range(4): fill(f'  v_exp_f32 v{tmp+i}, v{acc+i}')
    for i in range(2): fill(f'  v_cvt_pk_bf16_f32 v{PREG[t]+2*jj+i}, v{tmp+2*i}, v{tmp+2*i+1}')
    stream.append(('tag', f'P{t}_{jj}'))
def sum_mfmas(t):
    stream.append(('flushto', f'P{t}_0') if t == 0 else ('flush1',))
    for kt in (3, 2, 1, 0): mf(mfma(SUM[t], ONES, PREG[t]+4*kt, None if kt == 3 else SUM[t]))
LO, HI = (127-20) << 23, (127+20) << 23
def check(t):
    raw(f'  v_subrev_u32 v{RI[1]}, {LO}, v{SUM[t]}')
    raw(f'  s_mov_b32 s{sT[6]}, {HI-LO}')
    raw(f'  v_cmp_gt_u32 s[{sT[2]}:{sT[3]}], s{sT[6]}, v{RI[1]}')
    raw(f'  s_or_b64 s[{sT[2]}:{sT[3]}], s[{sT[2]}:{sT[3]}], s[{sINV[t]}:{sINV[t]+1}]')
    raw(f'  s_cmp_eq_u64 s[{sT[2]}:{sT[3]}], -1')
    raw(f'  s_cbranch_scc0 FB{t}{SFX}')
    raw(f'FBR{t}{SFX}:')
if 'atom' in OPT:
    pollw = [f'  s_mov_b32 s{sT[7]}, 0x40000', 'NPOLL:', '  s_waitcnt vmcnt(0)', f'  v_readfirstlane_b32 s{sT[0]}, v13', f'  s_sub_u32 s{sT[7]}, s{sT[7]}, 1',
             f'  s_cselect_b32 s{sT[0]}, 144, s{sT[0]}', f'  s_cmp_ge_u32 s{sT[0]}, 144', '  s_cbranch_scc1 NPOLLD', POLL, '  s_branch NPOLL', 'NPOLLD:']
else:
    pollw = [f'  s_mov_b32 s{sT[7]}, 0x40000', f'  s_mov_b32 s{sT[0]}, {144 // NCT}', 'NPOLL:', '  s_waitcnt vmcnt(0)', f'  v_cmp_le_u32 s[{sT[2]}:{sT[3]}], s{sT[0]}, v13',
             f'  s_sub_u32 s{sT[7]}, s{sT[7]}, 1', '  s_cbranch_scc1 NPOLLD', f'  s_cmp_eq_u64 s[{sT[2]}:{sT[3]}], -1', '  s_cbranch_scc1 NPOLLD', POLL, '  s_branch NPOLL', 'NPOLLD:']
ODMA = not SDMA
# Y's positions of B5a / B5b / B6 in units of "S slot or PV step index": 0..9 = before the k-th S slot, 10..14 = before the k-th PV step
YP = {opt('y5a', 6): [BAR] + pollw + dma_n(0, 30) + dma_n(30, 40),
      opt('y5b', 9): ['  s_waitcnt vmcnt(0)', BAR] + dma_n(40, 70),
      opt('y6', 11): ['  s_waitcnt vmcnt(0)', BAR]}
assert len(YP) == 3
if ODMA or not SINGLE: YP = {k: [BAR] for k in YP}
else:
    YP = {opt('s5a', 7): pollw + dma_n(30, 40) + [BAR] + dma_n(0, 30), opt('s5b', 8): ['  s_waitcnt vmcnt(0)', BAR] + dma_n(40, 70),
          opt('s6', 9): ['  s_waitcnt vmcnt(0)', BAR], opt('spoll', 5): PSET + [POLL.replace(' sc1', '')]}
    assert len(YP) == 4
if 'yhi' in OPT: YP[opt('yhi', 0)] = YP.get(opt('yhi', 0), []) + ['  s_setprio 1']
O4B = opt('o4b', 6)
for k, slot in enumerate(range(9, -1, -1)):
    if k == 2:
        raw('  s_waitcnt vmcnt(0)', BAR); gate('S2')       # O: B4a ; Y: B4b
    if k == O4B: role('O', [BAR] + (PSET + [POLL.replace(' sc1', '')] if ODMA else []))             # B4b
    if k in YP: role('Y', YP[k])
    if SINGLE and slot < 2:
        if slot == 0: sum_mfmas(1)
        continue
    fid = []
    for s in range(6):
        if slot == 0: base, off = SB0[s % 2], 128*(s//2)
        else: base, off = (vSe, vSo)[s % 2], (slot-1)*ROW + 128*(s//2)
        fid.append(add_frag([f'  ds_read_b128 {{d4}}, v{base} offset:{off}'], 'S' if slot >= 6 else 'S2'))
    for t, s in CHAIN:
        jj = slot - 2*t
        if 0 <= jj < 8:
            if slot == 0 and s == 3: sum_mfmas(1)
            if slot == 9 and s == 0: stream.append(('flushto', 'BIAS'))
            if slot == 9 and s == 5: stream.append(('flushto', 'QP5a'))
            if slot == 7 and s == 5: stream.append(('flushto', 'QP5'))
            acc = SACC[t] + 4*jj
            cin = MID if s == 0 and (t, jj) not in SPECIAL else acc
            use(fid[s], (lambda buf, acc=acc, t=t, s=s, cin=cin: mfma(acc, buf, QP+24*t+4*s, cin)))
    for t in TL:
        jj = slot - 2*t
        if 0 <= jj < 8: sm_fill(t, jj)
    if slot <= opt('prio', 4): stream.append(('prio1',))
check(1)
YC1 = 0
def ycvt(t, ks, _=0):
    return [f'  v_cvt_pk_bf16_f32 v{YB[t][ks]+2*hf+i}, v{YACC[t][2*ks+hf]+2*i}, v{YACC[t][2*ks+hf]+2*i+1}' for hf in range(2) for i in range(2)]
lastf = None
PVO = (3, 4, 2, 1, 0)
def pv_reads(st, ct):
    b_, e_ = ct // 4, ct % 4
    rd = []
    for hf in range(2):
        slot = 2*st + hf
        if slot == 0: base, off = PB0[e_], 128*b_
        else: base, off = vP[e_], (slot-1)*ROW + 128*b_
        rd.append(f'  ds_read_b64_tr_b16 {{d{"lo" if hf == 0 else "hi"}}}, v{base} offset:{off}')
    return rd
for k, st in enumerate(PVO):
    if k == 1:
        if not SINGLE: sum_mfmas(0)
        else: fill(f'  v_rcp_f32 v{RI[1]}, v{SUM[1]}')
    if k == 2: need(lastf); role('O', [BAR] + (pollw + dma_n(30, 40) + dma_n(0, 30) if ODMA else []))     # B5a
    if 10 + k in YP: role('Y', YP[10 + k])
    if SINGLE and k == 4:
        gate('P4a'); continue
    if k == 0: stream.append(('flushto', 'P0_6'))
    for ct in range(12):
        tl = [t for t in TL if 0 <= st - t < 4]
        fid = add_frag(pv_reads(st, ct), 'S2'); lastf = fid
        if k == 4 and ct == opt('o5b', 6):
            stream.append(('needall', fid + 11 - ct)); role('O', ['  s_waitcnt vmcnt(0)', BAR] + dma_n(40, 70) if ODMA else [BAR]); gate('P4a')         # B5b: every X read of this wave has landed
        for t in tl:
            acc = YACC[t][ct]
            use(fid, (lambda buf, acc=acc, t=t, st=st, k=k: mfma(acc, buf, PREG[t]+4*(st-t), None if k == 0 else acc)))
        if k == 1 and not SINGLE and ct == 2:
            check(0)
            for t in TL: fill(f'  v_rcp_f32 v{RI[t]}, v{SUM[t]}')
        if k == 3 and ct % 2 and ct < 12 - YC1:
            fill(*ycvt(1, ct // 2, 1))
            if SINGLE: stream.append(('tag', f'YB{ct // 2}'))
        if k == 4 and ct % 2: fill(*ycvt(0, ct // 2, 0)); stream.append(('tag', f'YB{ct // 2}'))
    if k == 3: stream.append(('tag', 'T1'))
NLD = [f'  s_mov_b32 s{sVO}, {70*1024}'] + [f'  buffer_load_dwordx4 {V(NREG+4*i)}, v{vL0}, {RWS}, s{sVO} offen offset:{1024*i} sc1' for i in range(2)]
if 15 in YP: role('Y', YP[15])
def p4_post(s, hh):
    out = []
    for t in TL:
        acc = ACC + 16*(s % 2) + 8*t + 4*hh
        o = OUTR + 8*(s % 2) + 4*t
        for r in range(4): out.append(f'  v_mul_f32 v{acc+r}, v{acc+r}, v{RI[t]}')
        for r in range(2): out.append(f'  v_cvt_pk_bf16_f32 v{o+2*hh+r}, v{acc+2*r}, v{acc+2*r+1}')
        if hh: out.append(f'  buffer_store_dwordx4 {V(o)}, v{vO[t]}, {RO}, 0 offen offset:{64*s}{NTO}')
    return out
proj(lambda t, ks: YB[t][ks], n_read, lambda f: 'P4a' if f < 40 else 'P4b', p4_post,
     {12: lambda fid: raw(*NLD),
      opt('o6', 24): lambda fid: (role('O', (['  s_waitcnt vmcnt(%d)' % (2 if 'pairst' in OPT else 4)] if ODMA else []) + [BAR]), gate('P4b')),                 # B6
      60: lambda fid: raw(f'  s_waitcnt vmcnt({4*len(TL)})'),
      })
flush()

# ---------------- emitter: read scheduling, gap filling, hazard padding
def regs_of(tok):
    m = re.fullmatch(r'v\[(\d+):(\d+)\]', tok)
    if m: return list(range(int(m.group(1)), int(m.group(2)) + 1))
    m = re.fullmatch(r'-?v(\d+)', tok)
    return [int(m.group(1))] if m else []
def parse(line):
    p = line.strip().split(None, 1)
    op = p[0]; args = [a.strip().split()[0] for a in p[1].split(',')] if len(p) > 1 else []
    return op, args
clock = [0]
mf_w = {}; va_w = {}; tr_w = {}; mf_c = {}; sg_w = {}
def hazard(line):
    """wait states still required before `line` may issue"""
    op, args = parse(line); need_ = 0
    allr = [r for a in args for r in regs_of(a)]
    if op.startswith('v_mfma'):
        for r in [r for a in args[1:] for r in regs_of(a)]:
            if r in va_w: need_ = max(need_, 2 - (clock[0] - va_w[r] - 1))
        for r in regs_of(args[1]) + regs_of(args[2]):
            if r in mf_w: need_ = max(need_, 8 - (clock[0] - mf_w[r] - 1))
    elif op.startswith('v_') or op.startswith('buffer_') or op.startswith('ds_'):
        for r in allr:
            if r in mf_w: need_ = max(need_, 8 - (clock[0] - mf_w[r] - 1))
        if op.startswith('v_'):
            for r in regs_of(args[0]):
                if r in mf_c: need_ = max(need_, 3 - (clock[0] - mf_c[r] - 1))
            for r in [r for a in args[1:] for r in regs_of(a)]:
                if r in tr_w: need_ = max(need_, 1 - (clock[0] - tr_w[r] - 1))
            for a in args[1:]:
                if a in sg_w: need_ = max(need_, 2 - (clock[0] - sg_w[a] - 1))
    return need_
def emit(line):
    if line.endswith(':'):
        e(line); return
    n = hazard(line)
    if n > 0:
        e(f'  s_nop {n-1}'); clock[0] += n
    op, args = parse(line)
    e(line)
    if op.startswith('v_mfma'):
        for r in regs_of(args[0]): mf_w[r] = clock[0]
        for r in regs_of(args[3]): mf_c[r] = clock[0]
    elif op.startswith('v_'):
        if args[0].startswith('s'): sg_w[args[0]] = clock[0]
        for r in regs_of(args[0]):
            va_w[r] = clock[0]; tr_w.pop(r, None)
            if op in ('v_exp_f32', 'v_rcp_f32'): tr_w[r] = clock[0]
    if op == 's_nop': clock[0] += int(args[0])
    clock[0] += 1

gates = set(); nxt = 0; done_uses = [0]*len(frags)
ops = []; landed = -1; half = [None]
fq = []
def buf_of(f): return ABUF + 4*(f % NB)
def issue_one():
    global nxt
    while True:
        if half[0] is not None:
            emit(half[0]); ops.append(nxt); half[0] = None; nxt += 1; return True
        if nxt >= len(frags): return False
        fr = frags[nxt]
        if fr['gate'] not in gates: return False
        if nxt >= NB and done_uses[nxt-NB] < frags[nxt-NB]['uses']: return False
        if not fr['reads']:
            nxt += 1; continue
        if len(ops) + len(fr['reads']) > (13 if TSM else 15): return False
        b = buf_of(nxt)
        rs = [r.format(d4=V(b), dlo=V(b, 2), dhi=V(b+2, 2)) for r in fr['reads']]
        emit(rs[0]); ops.append(nxt)
        if len(rs) == 2: half[0] = rs[1]
        else: nxt += 1
        return True
def wait_for(f, pair=True):
    global landed, ops
    if f is None or f <= landed: return
    while nxt <= f:
        n0 = nxt
        if not issue_one() and nxt == n0: raise RuntimeError(f'cannot issue frag {nxt}')
    if any(o <= f for o in ops):
        for _ in range(GROUP - 1):
            if pair and f + 1 < nxt and sum(1 for o in ops if o > f + 1) >= (PAIRMIN if len(frags[f]['reads']) == 1 else PAIRMIN2): f = f + 1
        n = sum(1 for o in ops if o > f)
        emit(f'  s_waitcnt lgkmcnt({n})')
        ops = [o for o in ops if o > f]
    landed = f
def sregs(tok):
    m = re.fullmatch(r's\[(\d+):(\d+)\]', tok)
    if m: return [-1 - r for r in range(int(m.group(1)), int(m.group(2)) + 1)]
    m = re.fullmatch(r's(\d+)', tok)
    return [-1 - int(m.group(1))] if m else []
def wr(l):
    op, args = parse(l)
    return set() if op.startswith('buffer_') else set(regs_of(args[0]) + sregs(args[0]))
def rdset(l):
    op, args = parse(l)
    return set(r for a in (args if op.startswith('buffer_') else args[1:]) for r in regs_of(a) + sregs(a))
def pick(pred):
    """first filler satisfying pred that does not depend on an earlier pending filler (window limited)"""
    W, R = set(), set()
    for i, l in enumerate(fq[:WINDOW]):
        if l.startswith('#'): continue
        if pred(l) and not (rdset(l) & W) and not (wr(l) & (W | R)) and hazard(l) <= 0: return i
        W |= wr(l); R |= rdset(l)
    return None
def is2(l): return 'v_exp' in l or 'v_rcp' in l
def isst(l): return 'buffer_store' in l
def gap(si, ent):
    while fq and fq[0].startswith('#'): fq.pop(0)
    cur = ent[2] if ent[2] is not None else landed
    nf = STREAM_NEXT.get(si)
    wnext = nf is not None and nf > landed                     # a wait will precede the next MFMA
    ahead = nxt - cur
    i = pick(isst)
    if i is not None and half[0] is None and ahead >= MINAHEAD:
        emit(fq.pop(i))
        i = pick(lambda l: not is2(l) and not isst(l))
        if i is not None: emit(fq.pop(i))
        return
    slots = 1 if wnext else 2
    nexp = sum(1 for l in fq if is2(l))
    # an exp takes a whole gap: while the ring is deep enough leave this gap to it
    if not wnext and half[0] is None and ahead >= EXPAHEAD:
        ready = [l for l in fq[:CVTWIN] if not l.startswith('#')]
        i = pick(is2) if any(is2(l) for l in ready) else None
        if i is not None:
            emit(fq.pop(i)); return
    if issue_one(): slots -= 1
    if (half[0] is not None or slots > 0 and (nexp or not fq or ahead < 6)) and issue_one(): slots -= 1
    if nexp > BACKLOG: slots = max(slots, 1 if pick(lambda l: not is2(l) and not isst(l)) is not None else 2)
    while slots > 0:
        i = pick(is2) if slots >= 2 else None
        if i is not None:
            emit(fq.pop(i)); slots -= 2; continue
        i = pick(lambda l: not is2(l) and not isst(l))
        if i is None: break
        emit(fq.pop(i)); slots -= 1
CVTWIN = opt('cvtwin', 6); WINDOW = opt('window', 16); MINAHEAD = opt('minahead', 5); EXPAHEAD = opt('expahead', 7)
nmf = [0]
BACKLOG = opt('backlog', 6); PAIRMIN = opt('pairmin', 4); PAIRMIN2 = opt('pairmin2', 8); GROUP = opt('group', 4)
STREAM_NEXT = {}
mi = [i for i, x in enumerate(stream) if x[0] == 'mfma']
for a_, b_ in zip(mi, mi[1:]): STREAM_NEXT[a_] = stream[b_][2]
for si in range(len(stream) - 1):
    a_, b_ = stream[si], stream[si+1]
    if a_[0] == 'cond' and b_[0] == 'cond' and a_[1][1:-1] == [BAR] and b_[1][1:-1] == [BAR] and a_[1][0].split()[0] != b_[1][0].split()[0]:
        stream[si] = ('raw', BAR); stream[si+1] = ('tag', 'nil')
for si, ent in enumerate(stream):
    k = ent[0]
    if k == 'raw': emit(ent[1])
    elif k == 'fill': fq.append(ent[1])
    elif k == 'flush':
        for l in fq:
            if not l.startswith('#'): emit(l)
        fq = []
    elif k == 'flush1':          # only the exp / pack work of tile 1
        own = set(range(ET+8, ET+20))
        keep = []
        for l in fq:
            if not l.startswith('#') and ((wr(l) | rdset(l)) & own or not ('v_exp' in l or 'v_cvt' in l)): emit(l)
            else: keep.append(l)
        fq = keep
    elif k == 'prio1':           # tile 1 work first from here on
        own = set(range(ET+8, ET+20))
        sm = lambda l: 'v_exp' in l or 'v_cvt' in l
        if all(l.startswith('#') or sm(l) for l in fq):
            fq = [l for l in fq if not l.startswith('#') and (wr(l) | rdset(l)) & own] + [l for l in fq if l.startswith('#') or not (wr(l) | rdset(l)) & own]
    elif k == 'tag': fq.append('#' + ent[1])
    elif k == 'flushto':
        if '#' + ent[1] in fq:
            i = fq.index('#' + ent[1])
            for l in fq[:i]:
                if not l.startswith('#'): emit(l)
            fq = fq[i+1:]
    elif k == 'gate':
        gates.add(ent[1])
        while issue_one(): pass
    elif k in ('need', 'needall'): wait_for(ent[1])
    elif k == 'plain': el(ent[1])
    elif k == 'cond':
        emit(ent[1][0]); el(ent[1][1:])          # only the branch itself counts as distance
    elif k == 'mfma':
        wait_for(ent[2])
        if nmf[0] in TSM and not SINGLE: e(ts_line())
        nmf[0] += 1
        emit(ent[1](buf_of(ent[2]) if ent[2] is not None else None))
        if ent[2] is not None: done_uses[ent[2]] += 1
        gap(si, ent)
'''
e(f'  s_cmp_eq_u32 s{sU}, 0'); e('  s_cbranch_scc1 MK_single')
SINGLE, TL, SFX = False, (1, 0), ''
exec(BODY)
e('MK_fin:')
if TS:
    e('  s_waitcnt vmcnt(0)')
    e(ts_line()); e('  s_memrealtime s[98:99]')
    e('  s_waitcnt lgkmcnt(0)')
    e(f'  s_lshl_b32 s{sT[0]}, s2, 3'); e(f'  s_add_u32 s{sT[0]}, s{sT[0]}, s{sW}'); e(f'  s_lshl_b32 s{sT[0]}, s{sT[0]}, 6')
    e(f'  s_add_u32 s{sT[0]}, s{sT[0]}, 0x100000')
    e('  v_mov_b32 v1, 0')
    for i in range(nts[0]):
        if i == 0: e(f'  v_mov_b32 v2, s{sTS}')
        else:
            e(f'  s_sub_u32 s{sT[1]}, s{sTS+2*i}, s{sTS}'); e(f'  v_mov_b32 v2, s{sT[1]}')
        e(f'  buffer_store_dword v2, v1, s[20:23], s{sT[0]} offen offset:{4*i}')
    e('  v_mov_b32 v2, s96'); e('  v_mov_b32 v3, s98')
    e(f'  buffer_store_dwordx2 v[2:3], v1, s[20:23], s{sT[0]} offen offset:56')
    print('timestamps', nts[0]); assert nts[0] <= 12
e('MK_done:')
e('  s_endpgm')
e('MK_single:')
SINGLE, TL, SFX = True, (1,), 's'
exec(BODY)
e('  s_branch MK_fin' if TS else '  s_endpgm')
for t, sfx in ((0, ''), (1, ''), (1, 's')):
    R = SACC[t]; vm, vt = RI[0], RI[1]
    e(f'FB{t}{sfx}:')
    e('  s_nop 7')
    e(f'  v_max3_f32 v{vm}, v{R}, v{R+1}, v{R+2}')
    for k in range(3, 31, 2): e(f'  v_max3_f32 v{vm}, v{vm}, v{R+k}, v{R+k+1}')
    e(f'  s_mov_b32 s{sT[6]}, 0xff7fffff')
    e(f'  v_max3_f32 v{vm}, v{vm}, v{R+31}, s{sT[6]}')
    for sw in ('v_permlane32_swap_b32', 'v_permlane16_swap_b32'):
        e(f'  v_mov_b32 v{vt}, v{vm}'); e('  s_nop 1'); e(f'  {sw} v{vm}, v{vt}'); e('  s_nop 1')
        e(f'  v_max_f32 v{vm}, v{vm}, v{vt}')
    for k in range(32): e(f'  v_sub_f32 v{R+k}, v{R+k}, v{vm}')
    for k in range(32): e(f'  v_exp_f32 v{R+k}, v{R+k}')
    e('  s_nop 0')
    for k in range(16): e(f'  v_cvt_pk_bf16_f32 v{PREG[t]+k}, v{R+2*k}, v{R+2*k+1}')
    e('  s_nop 1')
    for kt in range(4): e(mfma(SUM[t], ONES, PREG[t]+4*kt, None if kt == 0 else SUM[t]))
    if t == 0:
        for c0 in (0, 6):
            e('  s_waitcnt lgkmcnt(0)')
            for ct in range(c0, c0 + 6):
                b = R + 4*(ct - c0)
                for r in pv_reads(PVO[0], ct): e(r.format(dlo=V(b, 2), dhi=V(b+2, 2)))
            e('  s_waitcnt lgkmcnt(0)')
            for ct in range(c0, c0 + 6): e(mfma(YACC[0][ct], R + 4*(ct - c0), PREG[0]+4*PVO[0], None))
    e('  s_nop 7')
    e(f'  s_branch FBR{t}{sfx}')
e('MK_end:')
e('.section .rodata,"a"')
e('.p2align 6'); e(f'.amdhsa_kernel {KN}')
e('  .amdhsa_next_free_vgpr 256'); e('  .amdhsa_next_free_sgpr 102'); e('  .amdhsa_accum_offset 256')
e('  .amdhsa_group_segment_fixed_size 0'); e('  .amdhsa_kernarg_size 48'); e('  .amdhsa_user_sgpr_count 2')
e('  .amdhsa_user_sgpr_kernarg_segment_ptr 1'); e('  .amdhsa_system_sgpr_workgroup_id_x 1')
e('.end_amdhsa_kernel')
if 'drop' in OPT:
    kinds = OPT['drop'].split(',')
    i0 = next(i for i, l in enumerate(L) if 'MK_np4:' in l)
    out = []; n = 0
    for i, l in enumerate(L):
        body = i > i0
        if 'mM' in kinds and not body and 'v_mfma' in l: l = '  s_nop 3'
        if 'exp' in kinds and 'v_exp' in l: l = l.replace('v_exp_f32', 'v_mov_b32')
        if 'lds' in kinds and body and 'ds_read_b128' in l:
            l = re.sub(r'ds_read_b128 v\[(\d+):\d+\]', lambda m: f'ds_read_b32 v{m.group(1)}', l)
        if 'tr' in kinds and body and 'ds_read_b64_tr' in l:
            l = re.sub(r'ds_read_b64_tr_b16 v\[(\d+):\d+\], v\d+', lambda m: f'ds_read_b32 v{m.group(1)}, v{vL0}', l)
        if 'mfma' in kinds and body and 'v_mfma' in l:
            n += 1
            if n % 2: l = '  s_nop 3'
        if 'nslab' in kinds and RWO in l and 'buffer_load' in l: l = '  s_nop 0'
        if 'nwv' in kinds and f'v{vNA}, {RW}' in l: l = '  s_nop 0'
        if 'ncomp' in kinds and 's_cbranch_scc1 MK_np2' in l: l = '  s_branch MK_np2'
        if 'st' in kinds and 'buffer_store_dwordx4' in l: l = '  s_nop 0'
        out.append(l)
    L = out
open(OUTF, 'w').write('\n'.join(L) + '\n')
```
